```python
import torch

def _softmax(x, axis=-1):
    return torch.softmax(x, dim=axis)
def _gelu(x):
    return torch.nn.functional.gelu(x, approximate="tanh")
def _silu(x):
    return torch.nn.functional.silu(x)
def _sigmoid(x):
    return torch.sigmoid(x)
def _layernorm(x, axis=-1, eps=1e-5):
    m = x.mean(dim=axis, keepdim=True)
    v = x.var(dim=axis, keepdim=True, unbiased=False)
    return (x - m) / torch.sqrt(v + eps)
def _scatter_add(tgt, idx, src, axis=0):
    return tgt.clone().index_add_(axis, idx, src)
def _segment_sum(src, seg, n):
    out = torch.zeros((n,) + src.shape[1:], dtype=src.dtype)
    return out.index_add_(0, seg, src)
def _pad(x, pw):
    flat = tuple(v for pair in reversed(pw) for v in pair)
    return torch.nn.functional.pad(x, flat)

kernel_name = 'sequential_preLN__ssm_conv_h3__glu_gated_glu__prompt'

def setup_inputs():

    _w = (lambda a: (lambda t: t.to(torch.bfloat16) if t.is_floating_point() else t)(torch.as_tensor(a)))
    def _A_setup():
        B, S, D = 1, 2048, 448
        ks = 4
        return {
            "q": _w((lambda *s: torch.randn(*s, dtype=torch.bfloat16) * 0.05)(B, S, D)),
            "k": _w((lambda *s: torch.randn(*s, dtype=torch.bfloat16) * 0.4)(B, S, D)),
            "v": _w((lambda *s: torch.randn(*s, dtype=torch.bfloat16) * 0.4)(B, S, D)),
            "shift_k": _w((lambda *s: torch.randn(*s, dtype=torch.bfloat16) * 0.4)(D, ks) * 0.5),
            "ssm_k": _w((lambda *s: torch.randn(*s, dtype=torch.bfloat16) * 0.4)(D, S) * (1.0 / S ** 0.5)),
            "ssm_D": _w((lambda *s: torch.randn(*s, dtype=torch.bfloat16) * 0.4)(D)),
        }
    _A_in = _A_setup()

    def _B_setup():
        B, S, D, F = 1, 2048, 448, 1792
        return {
            "x": _w((lambda *s: torch.randn(*s, dtype=torch.bfloat16) * 0.05)(B, S, D)),
            "w_gate": _w((lambda *s: torch.randn(*s, dtype=torch.bfloat16) * 0.05)(D, F)),
            "w_up": _w((lambda *s: torch.randn(*s, dtype=torch.bfloat16) * 0.05)(D, F)),
            "w_down": _w((lambda *s: torch.randn(*s, dtype=torch.bfloat16) * 0.05)(F, D)),
        }
    _B_in = _B_setup()

    return {
        "A_q": _A_in["q"],
        "A_k": _A_in["k"],
        "A_v": _A_in["v"],
        "A_shift_k": _A_in["shift_k"],
        "A_ssm_k": _A_in["ssm_k"],
        "A_ssm_D": _A_in["ssm_D"],
        "B_x": _B_in["x"],
        "B_w_gate": _B_in["w_gate"],
        "B_w_up": _B_in["w_up"],
        "B_w_down": _B_in["w_down"],
    }

def reference(A_q, A_k, A_v, A_shift_k, A_ssm_k, A_ssm_D, B_x, B_w_gate, B_w_up, B_w_down):
    def _A_ref(q, k, v, shift_k, ssm_k, ssm_D):
        B, S, D = q.shape
        ks = shift_k.shape[-1]
        k_pad = _pad(k, ((0, 0), (ks - 1, 0), (0, 0)))
        k_shift = torch.zeros_like(k)
        for t in range(ks):
            k_shift = k_shift + k_pad[:, t:t + S, :] * shift_k[:, ks - 1 - t][None, None, :]
        kv = k_shift * v
        L = 2 * S
        kv_pad = _pad(kv, ((0, 0), (0, S), (0, 0)))
        kf_pad = _pad(ssm_k, ((0, 0), (0, S)))
        kv_f = (lambda x, axes=(-2,-1): torch.fft.rfft2(x.float(), dim=axes))(kv_pad[:, None, :, :], axes=(1, 2))
        kf_f = (lambda x, axes=(-2,-1): torch.fft.rfft2(x.float(), dim=axes))(kf_pad[:, None, :], axes=(1, 2))
        kf_f = (lambda x, *d: x.permute(*d))(kf_f, 1, 2, 0)
        y_f = kv_f * kf_f[None, :, :, :]
        y = (lambda x, s, axes=(-2,-1): torch.fft.irfft2(x, s=s, dim=axes).to(torch.bfloat16))(y_f, (1, L), axes=(1, 2))[:, 0, :S, :]
        y = y + kv * ssm_D[None, None, :]
        return q * y

    def _B_ref(x, w_gate, w_up, w_down):
        g = torch.einsum("bsd,df->bsf", x, w_gate)
        u = torch.einsum("bsd,df->bsf", x, w_up)
        h = _sigmoid(g) * u
        return torch.einsum("bsf,fd->bsd", h, w_down)

    x = A_q
    h = x + _A_ref(_layernorm(x, axis=-1), A_k, A_v, A_shift_k, A_ssm_k, A_ssm_D)
    h2 = h + _B_ref(_layernorm(h, axis=-1), B_w_gate, B_w_up, B_w_down)
    return h2
```

```python
import re


class Asm:
    def __init__(self):
        self.L = []
        self.vm = []
        self.lg = []
        self.nlab = 0

    def e(self, line):
        for ln in line.strip("\n").split("\n"):
            ln = ln.strip()
            if ln:
                self.L.append("  " + ln)

    def c(self, text):
        self.L.append("  ; " + text)

    def label(self, name):
        self.L.append(name + ":")

    def newlabel(self, stem):
        self.nlab += 1
        return "L_%s_%d" % (stem, self.nlab)

    def vmem(self, line, tag):
        self.e(line)
        self.vm.append(tag)

    def lds(self, line, tag):
        self.e(line)
        self.lg.append(tag)

    def _need(self, q, tags):
        if isinstance(tags, str):
            tags = [tags]
        idx = -1
        for i, t in enumerate(q):
            if t in tags:
                idx = i
        return idx

    def wait_vm(self, tags, emit=True):
        idx = self._need(self.vm, tags)
        if idx < 0:
            return None
        n = len(self.vm) - 1 - idx
        self.vm = self.vm[idx + 1:]
        s = "s_waitcnt vmcnt(%d)" % min(n, 63)
        if emit:
            self.e(s)
        return s

    def wait_lg(self, tags, emit=True):
        idx = self._need(self.lg, tags)
        if idx < 0:
            return None
        n = len(self.lg) - 1 - idx
        self.lg = self.lg[idx + 1:]
        s = "s_waitcnt lgkmcnt(%d)" % min(n, 15)
        if emit:
            self.e(s)
        return s

    def wait_all(self):
        self.e("s_waitcnt vmcnt(0) lgkmcnt(0)")
        self.vm = []
        self.lg = []

    def wait_vm0(self):
        self.e("s_waitcnt vmcnt(0)")
        self.vm = []

    def wait_lg0(self):
        self.e("s_waitcnt lgkmcnt(0)")
        self.lg = []

    def text(self):
        return "\n".join(self.L) + "\n"


REG = re.compile(r"\b([vas])(\d+)\b|\b([vas])\[(\d+):(\d+)\]")


def regs_of(op):
    out = []
    for m in REG.finditer(op):
        if m.group(1):
            out.append((m.group(1), int(m.group(2))))
        else:
            for r in range(int(m.group(4)), int(m.group(5)) + 1):
                out.append((m.group(3), r))
    return out


TRANS = ("v_exp_f32", "v_log_f32", "v_rcp_f32", "v_rsq_f32", "v_sqrt_f32", "v_sin_f32", "v_cos_f32")


def parse(line):
    line = line.split(";")[0].strip()
    if not line or line.endswith(":") or line.startswith("."):
        return None
    parts = line.split(None, 1)
    op = parts[0]
    ops = [x.strip() for x in parts[1].split(",")] if len(parts) > 1 else []
    d = dict(op=op, ops=ops, w=[], r=[], line=line)
    allr = [regs_of(o) for o in ops]
    if op.startswith("v_mfma"):
        d["cls"] = "mfma"
        d["w"] = allr[0]
        d["ra"] = allr[1]
        d["rb"] = allr[2]
        d["rc"] = allr[3] if len(allr) > 3 else []
        d["r"] = d["ra"] + d["rb"] + d["rc"]
        d["passes"] = 8 if "32x32" in op else 4
    elif op.startswith("v_cmp"):
        d["cls"] = "valu"
        d["w"] = allr[0]
        d["wvcc"] = ops[0] == "vcc"
        d["r"] = sum(allr[1:], [])
    elif op.startswith("v_permlane"):
        d["cls"] = "valu"
        d["perm"] = True
        d["w"] = allr[0] + allr[1]
        d["r"] = allr[0] + allr[1]
    elif op.startswith("v_readfirstlane") or op.startswith("v_readlane"):
        d["cls"] = "valu"
        d["rfl"] = True
        d["w"] = allr[0]
        d["r"] = sum(allr[1:], [])
    elif op.startswith("v_"):
        d["cls"] = "valu"
        d["w"] = allr[0]
        d["r"] = sum(allr[1:], [])
        if op.startswith(("v_fmac", "v_dot2c", "v_mac")) or "d16" in op:
            d["r"] = d["r"] + allr[0]
        if op.startswith("v_cndmask") and (len(ops) < 4 or ops[3].startswith("vcc")):
            d["rvcc"] = True
        if op.startswith(("v_add_co", "v_addc_co", "v_sub_co")):
            d["wvcc"] = True
        d["dpp"] = "dpp" in op or "row_" in line or "quad_perm" in line
    elif op.startswith("ds_"):
        d["cls"] = "ds"
        if op.startswith(("ds_read", "ds_bpermute", "ds_permute", "ds_swizzle")):
            d["w"] = allr[0]
            d["r"] = sum(allr[1:], [])
        else:
            d["r"] = sum(allr, [])
    elif op.startswith(("buffer_", "global_")):
        d["cls"] = "vmem"
        lds = " lds" in (" " + line)
        if op.startswith(("buffer_load", "global_load")) and not lds and "load_lds" not in op:
            d["w"] = allr[0]
            d["r"] = sum(allr[1:], [])
        else:
            d["r"] = sum(allr, [])
        d["ldsdma"] = lds or "load_lds" in op
        d["store"] = "store" in op or "atomic" in op
        d["wide"] = "x3" in op or "x4" in op
        if d["store"]:
            d["data"] = allr[0] if op.startswith("buffer_") else allr[1]
    elif op.startswith("s_"):
        d["cls"] = "salu"
        if op in ("s_nop",):
            d["nop"] = int(ops[0], 0) + 1
        if op.startswith(("s_cmp", "s_waitcnt", "s_barrier", "s_branch", "s_cbranch", "s_sleep", "s_nop", "s_endpgm", "s_setprio")):
            d["r"] = sum(allr, [])
        else:
            d["w"] = allr[0] if allr else []
            d["r"] = sum(allr[1:], [])
            if ops and ops[0] == "m0":
                d["wm0"] = True
            if ops and ops[0] == "exec":
                d["wexec"] = True
    else:
        d["cls"] = "other"
    return d


def check_hazards(text, verbose=True):
    ins = []
    for n, line in enumerate(text.split("\n")):
        d = parse(line)
        if d:
            d["n"] = n + 1
            ins.append(d)
    probs = []

    def states(i, j):
        s = 0
        for k in range(i + 1, j):
            s += ins[k].get("nop", 1)
        return s

    W = 24
    for j, cns in enumerate(ins):
        for i in range(max(0, j - W), j):
            p = ins[i]
            st = None
            need = 0
            why = ""
            pw = set(p["w"])
            cr = set(cns["r"])
            cw = set(cns["w"])
            if p["cls"] == "valu":
                vw = {x for x in pw if x[0] in "va"}
                sw = {x for x in pw if x[0] == "s"}
                if cns["cls"] == "mfma" and vw & cr:
                    need, why = 2, "VALU write -> MFMA read"
                elif cns.get("perm") and vw & cr:
                    need, why = 2, "VALU write -> permlane"
                elif cns.get("rfl") and vw & cr:
                    need, why = 1, "VALU write -> readlane"
                elif cns.get("dpp") and vw & cr:
                    need, why = 2, "VALU write -> DPP"
                if p["op"].startswith(TRANS) and cns["cls"] == "valu" and not cns["op"].startswith(TRANS) and vw & cr:
                    need, why = max(need, 1), why or "trans -> VALU"
                if p["op"].startswith(TRANS) and cns["cls"] == "valu" and cns["op"].startswith(TRANS) and vw & cr:
                    need, why = max(need, 1), why or "trans -> trans (padded too)"
                if sw and cns["cls"] == "vmem" and sw & cr:
                    need, why = 5, "VALU writes SGPR -> VMEM"
                if sw and cns["cls"] == "valu" and sw & cr:
                    need, why = max(need, 2), "VALU writes SGPR -> VALU const"
                if p.get("wvcc") and (cns.get("rvcc") or ("vcc" in cns["ops"][1:] and cns["cls"] == "valu")):
                    need, why = max(need, 2), "VALU writes VCC -> VALU reads vcc"
                if sw and cns["cls"] == "salu" and sw & cr:
                    need, why = max(need, 3), "VALU writes SGPR -> SALU read (padded)"
                if p["op"].startswith("v_cmpx") and cns["cls"] in ("valu",):
                    pass
            if p["cls"] == "mfma":
                d = set(p["w"])
                ps = p["passes"]
                if cns["cls"] == "mfma":
                    if d & (set(cns["ra"]) | set(cns["rb"])):
                        need, why = (8 if ps == 4 else 12), "MFMA D -> MFMA A/B"
                    elif d & set(cns["rc"]):
                        if not (set(cns["rc"]) == d and cns["passes"] == ps):
                            need, why = (6 if ps == 4 else 10), "MFMA D -> MFMA C overlap"
                    elif d & cw and not cns["rc"]:
                        need, why = 0, ""
                elif cns["cls"] in ("valu", "ds", "vmem"):
                    if d & (cr | cw):
                        need, why = (8 if ps == 4 else 12), "MFMA D -> VALU/mem access"
                if cns["cls"] == "valu" and set(p["rc"]) & cw and not (d & cw):
                    need, why = max(need, 3 if ps == 4 else 7), why or "MFMA C read -> VALU write"
            if p["cls"] == "salu" and p.get("wm0") and cns.get("ldsdma"):
                later = any(ins[k].get("wm0") for k in range(i + 1, j))
                if not later:
                    need, why = 1, "m0 write -> LDS DMA"
            if p["cls"] == "vmem" and p.get("store") and p.get("wide") and cns["cls"] == "valu" and set(p["data"]) & cw:
                need, why = 2, "wide store data WAR"
            if p["cls"] == "salu" and p.get("wexec") and False:
                pass
            if need:
                st = states(i, j)
                if st < need:
                    probs.append("line %d -> %d: %s needs %d has %d\n    %s\n    %s" % (p["n"], cns["n"], why, need, st, p["line"], cns["line"]))
    if verbose:
        for x in probs[:40]:
            print("HAZARD", x)
        print("hazard check: %d problem(s) in %d instructions" % (len(probs), len(ins)))
    return probs
```

```python
from collections import deque
from gen import *
import gen as G_

vHTR0, vHTR2, vL16, vHST, vSTA, vT = 2, 3, 4, 5, 6, 7
vWDB = 8
vWDO = 12
vST, vS, vC1 = 13, 14, 15
FOLD = 16
CS = 20
vU, vW = 28, 29
ACC = [32, 64]
HF = 96
PK = 108
L_RES = 57344
L_RESP = L_RES + 8192
L_R3TOP = 151552
PART_STRIDE = 4352


def wdf(ks, ct):
    i = 4 * ks + ct
    if i < 8:
        return a(224 + 4 * i, 4), ("a", 224 + 4 * i)
    if i < 32:
        return v(160 + 4 * (i - 8), 4), ("v", 160 + 4 * (i - 8))
    return a(4 * (i - 32), 4), ("a", 4 * (i - 32))


def half(reg, e):
    k, n = reg
    return (a if k == "a" else v)(n + 2 * e, 2)


class Q:
    def __init__(self, g):
        self.g = g
        self.l = deque()
        self.o = deque()

    def lds(self, line, tag, nb=0):
        self.l.append((4, lambda: self.g.lds(line, tag), nb))

    def ldsq(self, fn, nb=0, cost=4):
        self.l.append((cost, fn, nb))

    def op(self, line, cost=4, nb=0):
        self.o.append((cost, lambda: self.g.e(line), nb))

    def fn(self, fn, cost=4, nb=0):
        self.o.append((cost, fn, nb))

    def gap(self, budget, step, maxl=2):
        n = 0
        while self.l and n < maxl and self.l[0][2] <= step and self.l[0][0] <= budget:
            c, f, _ = self.l.popleft()
            f()
            budget -= c
            n += 1
        fresh = n == 0
        while self.o and self.o[0][2] <= step and (self.o[0][0] <= budget or fresh):
            c, f, _ = self.o.popleft()
            f()
            budget -= c
            fresh = False

    def flush(self):
        while self.l:
            self.l.popleft()[1]()
        while self.o:
            self.o.popleft()[1]()


def wd_dma_items(g, q, rnd, nb):
    k0 = 4 * rnd
    nks = 4 if rnd < 3 else 2
    sSO, sMM = sT2, sT3

    def setup():
        g.e("s_mul_i32 s%d, s%d, 401408" % (sSO, sWAVE))
        g.e("s_lshl_b32 s%d, s%d, 7" % (sMM, sCJ))
        g.e("s_add_u32 s%d, s%d, s%d" % (sSO, sSO, sMM))
        if k0:
            g.e("s_add_u32 s%d, s%d, %d" % (sSO, sSO, k0 * 28672))
        if rnd < 3:
            g.e("s_lshl_b32 s%d, s%d, 14" % (sMM, sWAVE))
            g.e("s_add_u32 s%d, s%d, %d" % (sMM, sMM, L_WD))
        else:
            g.e("s_lshl_b32 s%d, s%d, 13" % (sMM, sWAVE))
            g.e("s_add_u32 s%d, s%d, 28672" % (sMM, sMM))
            g.e("s_cmp_eq_u32 s%d, 3" % sWAVE)
            g.e("s_cselect_b32 s%d, %d, s%d" % (sMM, L_R3TOP, sMM))
    q.fn(setup, 24, nb)
    for n in range(4 * nks):
        def one(n=n):
            g.e("s_mov_b32 m0, s%d" % sMM)
            g.e("s_add_u32 s%d, s%d, 1024" % (sMM, sMM))
            g.vmem("buffer_load_dwordx4 %s, %s, s%d offen lds" % (v(vWDO), srd(SRD_WD), sSO), "wd%d" % rnd)
            g.e("s_add_u32 s%d, s%d, 7168" % (sSO, sSO))
        q.fn(one, 16, nb)


def wd_read_items(g, q, rnd, nb, bases=None):
    k0 = 4 * rnd
    nks = 4 if rnd < 3 else 2
    bases = bases or [vWDB + ct for ct in range(4)]
    first = True
    for ks in range(k0, k0 + nks):
        for ct in range(4):
            _, reg = wdf(ks, ct)
            for ee in range(2):
                line = "ds_read_b64_tr_b16 %s, %s offset:%d" % (half(reg, ee), v(bases[ct]), 4096 * (ks - k0) + 1024 * ee)
                if first:
                    def w(line=line):
                        g.wait_vm("wd%d" % rnd)
                        g.lds(line, "wr%d" % rnd)
                    q.ldsq(w, nb, 8)
                    first = False
                else:
                    q.lds(line, "wr%d" % rnd, nb)


def epilogue_items(g, q, p, nb):
    e = g.e
    acc = ACC[p & 1]

    def stats():
        g.wait_vm("st%d" % p)
        loop, ok = g.newlabel("stl"), g.newlabel("sto")
        e("s_mov_b32 s%d, %d" % (sSPIN, SPIN_LIMIT))
        g.label(loop)
        e("v_cmp_eq_u32 vcc, 0, %s" % v(vST))
        e("s_nop 4")
        e("s_cbranch_vccz %s" % ok)
        e("buffer_load_dword %s, %s, %s, 0 offen offset:%d sc1" % (v(vST), v(vSTA), srd(SRD_WS), 128 * p))
        e("s_waitcnt vmcnt(0)")
        e("s_sub_u32 s%d, s%d, 1" % (sSPIN, sSPIN))
        e("s_cmp_lg_u32 s%d, 0" % sSPIN)
        e("s_cbranch_scc1 %s" % loop)
        g.label(ok)
    q.fn(stats, 24, nb)
    q.op("v_and_b32 %s, 0xffff0000, %s" % (v(vS), v(vST)), nb=nb)
    q.op("v_and_b32 %s, 0xffff, %s" % (v(FOLD + 1), v(vST)), nb=nb)
    q.op("v_rcp_f32 %s, %s" % (v(vC1), v(vS)), 8, nb)
    q.op("v_xor_b32 %s, 0x8000, %s" % (v(FOLD + 1), v(FOLD + 1)), nb=nb)
    q.op("v_cndmask_b32 %s, 0, %s, s[%d:%d]" % (v(FOLD + 1), v(FOLD + 1), sEX, sEX + 1), nb=nb)
    q.op("v_lshl_or_b32 %s, %s, 16, %s" % (v(FOLD), v(FOLD + 1), v(FOLD + 1)), nb=nb)
    q.op("v_mul_f32 %s, 0xbfb8aa3b, %s" % (v(vC1), v(vC1)), nb=nb)
    q.op("s_nop 0", nb=nb)

    def fold():
        for ft in range(2):
            e("v_mfma_f32_32x32x16_bf16 %s, %s, %s, %s" % (v(acc + 16 * ft, 16), v(CS + 4 * ft, 4), v(FOLD, 4), v(acc + 16 * ft, 16)))
    q.fn(fold, 0, nb)
    for _ in range(4):
        q.fn(lambda: None, 100, nb)
    return


def epilogue_valu(g, q, p, nb, direct=False):
    acc = ACC[p & 1]

    def put(line, cost=4):
        if direct:
            g.e(line)
        else:
            q.op(line, cost, nb)
    for ft in range(2):
        b = acc + 16 * ft
        for x in range(8):
            put("v_mul_f32 %s, %s, %s" % (v(b + x), v(b + x), v(vC1)))
        for x in range(8):
            put("v_exp_f32 %s, %s" % (v(b + x), v(b + x)), 8)
        for x in range(8):
            put("v_fma_f32 %s, %s, %s, %s" % (v(b + x), v(b + x), v(vS), v(vS)))
        for x in range(8):
            put("v_rcp_f32 %s, %s" % (v(b + x), v(b + x)), 8)
        for x in range(8):
            put("v_mul_f32 %s, %s, %s" % (v(b + 8 + x), v(b + 8 + x), v(b + x)))
        for i in range(4):
            put("v_cvt_pk_bf16_f32 %s, %s, %s" % (v(PK + 4 * ft + i), v(b + 8 + 2 * i), v(b + 9 + 2 * i)))

        def st(ft=ft):
            g.vmem("buffer_store_dwordx4 %s, %s, %s, s%d offen offset:%d sc1" % (v(PK + 4 * ft, 4), v(vHST), srd(SRD_WS), sT6, 512 * ft), "hst%d" % p)
        if ft == 0:
            def so():
                g.e("s_lshl_b32 s%d, s%d, 2" % (sT6, sBI))
                g.e("s_add_u32 s%d, s%d, %d" % (sT6, sT6, p))
                g.e("s_mul_i32 s%d, s%d, 114688" % (sT6, sT6))
                g.e("s_lshl_b32 s%d, s%d, 2" % (sT7, sBJ))
                g.e("s_add_u32 s%d, s%d, s%d" % (sT7, sT7, sWAVE))
                g.e("s_lshl_b32 s%d, s%d, 10" % (sT7, sT7))
                g.e("s_add_u32 s%d, s%d, s%d" % (sT6, sT6, sT7))
                g.e("s_add_u32 s%d, s%d, %d" % (sT6, sT6, WS_HF))
            if direct:
                so()
            else:
                q.fn(so, 20, nb)
        if direct:
            st()
        else:
            q.fn(st, 4, nb)


def hb_dma(g, blk, buf):
    e = g.e
    e("s_lshl_b32 s%d, s%d, 2" % (sT4, sBI))
    e("s_add_u32 s%d, s%d, %d" % (sT4, sT4, blk))
    e("s_mul_i32 s%d, s%d, 28672" % (sT4, sT4))
    e("s_mul_i32 s%d, s%d, 7168" % (sT5, sWAVE))
    e("s_add_u32 s%d, s%d, s%d" % (sT4, sT4, sT5))
    e("s_add_u32 s%d, s%d, %d" % (sT4, sT4, WS_HB))
    e("s_add_u32 m0, s%d, %d" % (sT5, L_HB + 28672 * buf))
    e("s_nop 0")
    for i in range(4):
        g.vmem("buffer_load_dwordx4 %s, %s, s%d offen offset:%d sc1 lds" % (v(vL16), srd(SRD_WS), sT4, 1024 * i), "hb%d" % blk)
    e("s_add_u32 s%d, s%d, 4096" % (sT4, sT4))
    e("s_add_u32 m0, s%d, %d" % (sT5, L_HB + 28672 * buf + 4096))
    e("s_nop 0")
    for i in range(3):
        g.vmem("buffer_load_dwordx4 %s, %s, s%d offen offset:%d sc1 lds" % (v(vL16), srd(SRD_WS), sT4, 1024 * i), "hb%d" % blk)


def s3_signal(g, us):
    e = g.e
    n = len(us)
    e("s_lshl_b32 s%d, s%d, 2" % (sT0, sBI))
    e("s_add_u32 s%d, s%d, %d" % (sT0, sT0, C_S3 + us[0]))
    e("s_lshl_b32 s%d, s%d, 8" % (sT0, sT0))
    e("s_add_u32 s%d, s%d, %d" % (sT0, sT0, WS_CNT))
    e("v_lshl_add_u32 %s, v1, 8, s%d" % (v(vU), sT0))
    e("v_mov_b32 %s, 1" % v(vW))
    g.signal(vU, vW, n)


def phase_b(g):
    e = g.e
    g.c("==== B prologue ====")
    g.w_stage_read(1)
    ONES = PK
    for i in range(4):
        e("v_mov_b32 %s, 0x3f803f80" % v(ONES + i))
    e("s_nop 1")
    for s in range(28):
        if s == 14:
            g.wait_lg("wr")
        for ft in range(2):
            e("v_mfma_f32_32x32x16_bf16 %s, %s, %s, %s" % (v(ACC[0] + 16 * ft, 16), v(ONES, 4), a(8 * s + 4 * ft, 4), "0" if s == 0 else v(ACC[0] + 16 * ft, 16)))
    e("v_lshlrev_b32 %s, 4, v1" % v(vL16))
    e("v_lshrrev_b32 %s, 5, v1" % v(vT))
    e("v_bfe_u32 %s, v1, 2, 2" % v(vU))
    e("v_lshl_add_u32 %s, %s, 3, %s" % (v(vT), v(vT), v(vU)))
    e("v_lshlrev_b32 %s, 6, %s" % (v(vHTR0), v(vT)))
    e("v_bfe_u32 %s, v1, 4, 1" % v(vT))
    e("v_lshl_add_u32 %s, %s, 5, %s" % (v(vHTR0), v(vT), v(vHTR0)))
    e("v_and_b32 %s, 3, v1" % v(vT))
    e("v_lshl_add_u32 %s, %s, 3, %s" % (v(vHTR0), v(vT), v(vHTR0)))
    e("v_add_u32 %s, %d, %s" % (v(vHTR2), 57344, v(vHTR0)))
    e("v_bfe_u32 %s, v1, 4, 1" % v(vT))
    e("v_mul_u32_u24 %s, 57344, %s" % (v(vHST), v(vT)))
    e("v_lshrrev_b32 %s, 5, v1" % v(vT))
    e("v_lshl_add_u32 %s, %s, 8, %s" % (v(vHST), v(vT), v(vHST)))
    e("v_and_b32 %s, 15, v1" % v(vT))
    e("v_lshl_add_u32 %s, %s, 4, %s" % (v(vHST), v(vT), v(vHST)))
    e("v_and_b32 %s, 31, v1" % v(vT))
    e("s_lshl_b32 s%d, s%d, 9" % (sT0, sBI))
    e("s_add_u32 s%d, s%d, %d" % (sT0, sT0, WS_ST2))
    e("v_lshl_add_u32 %s, %s, 2, s%d" % (v(vSTA), v(vT), sT0))
    e("v_lshrrev_b32 %s, 3, v1" % v(vT))
    e("v_mul_u32_u24 %s, 896, %s" % (v(vWDO), v(vT)))
    e("v_lshrrev_b32 %s, 1, %s" % (v(vT), v(vT)))
    e("v_lshlrev_b32 %s, 1, %s" % (v(vT), v(vT)))
    e("v_and_b32 %s, 7, v1" % v(vU))
    e("v_xor_b32 %s, %s, %s" % (v(vU), v(vU), v(vT)))
    e("v_lshl_add_u32 %s, %s, 4, %s" % (v(vWDO), v(vU), v(vWDO)))
    wd_bases(g, vWDB, None)
    e("s_mov_b32 s%d, -1" % sEX)
    e("s_mov_b32 s%d, 0" % (sEX + 1))
    e("v_mov_b32 %s, 0" % v(FOLD + 2))
    e("v_mov_b32 %s, 0" % v(FOLD + 3))
    e("s_nop 7")
    for ft in range(2):
        cs = ACC[0] + 16 * ft
        d = CS + 4 * ft
        e("v_cvt_pk_bf16_f32 %s, %s, %s" % (v(vT), v(cs), v(cs)))
        e("v_lshlrev_b32 %s, 16, %s" % (v(vT), v(vT)))
        e("v_sub_f32 %s, %s, %s" % (v(vU), v(cs), v(vT)))
        e("v_cvt_pk_bf16_f32 %s, %s, %s" % (v(d), v(cs), v(vU)))
        e("v_and_b32 %s, 0xffff0000, %s" % (v(vT), v(d)))
        e("v_sub_f32 %s, %s, %s" % (v(vU), v(vU), v(vT)))
        e("v_cvt_pk_bf16_f32 %s, %s, 0" % (v(d + 1), v(vU)))
        e("v_cndmask_b32 %s, 0, %s, s[%d:%d]" % (v(d), v(d), sEX, sEX + 1))
        e("v_cndmask_b32 %s, 0, %s, s[%d:%d]" % (v(d + 1), v(d + 1), sEX, sEX + 1))
        e("v_mov_b32 %s, 0" % v(d + 2))
        e("v_mov_b32 %s, 0" % v(d + 3))
    e("v_and_b32 %s, 15, v1" % v(vT))
    e("v_lshlrev_b32 %s, 8, %s" % (v(vT), v(vT)))
    e("v_add_u32 %s, %d, %s" % (v(vT), WS_CNT + 256 * C_S2, v(vT)))
    e("v_mov_b32 %s, 14" % v(vU))
    g.wait_lg0()
    g.poll(vT, vU, vW)
    g.stamp(9)
    for b in range(3):
        hb_dma(g, b, b)
    q0 = Q(g)
    wd_dma_items(g, q0, 0, 0)
    q0.flush()
    g.wait_vm("hb0")
    e("s_barrier")
    g.stamp(10)

    def hread(gs):
        u, s = divmod(gs, 28)
        if u > 3:
            return
        buf = u % 3
        base = vHTR2 if buf == 2 else vHTR0
        off = (28672 * buf if buf < 2 else 0) + 1024 * s
        for ee in range(2):
            g.lds("ds_read_b64_tr_b16 %s, %s offset:%d" % (v(HF + 4 * (gs % 3) + 2 * ee, 2), v(base), L_HB + off + 256 * ee), "h%d" % gs)

    hread(0)
    hread(1)
    for u in range(4):
        g.c("---- B block %d" % u)
        q = Q(g)
        acc = ACC[u & 1]
        if u >= 1:
            epilogue_items(g, q, u - 1, 3)
            epilogue_valu(g, q, u - 1, 6)
        if u == 0:
            wd_read_items(g, q, 0, 10)
        if u == 1:
            wd_read_items(g, q, 1, 4)
        for s in range(28):
            gs = 28 * u + s
            g.wait_lg("h%d" % gs)
            srcc = lambda ft: "0" if s == 0 else v(acc + 16 * ft, 16)
            e("v_mfma_f32_32x32x16_bf16 %s, %s, %s, %s" % (v(acc, 16), a(8 * s, 4), v(HF + 4 * (gs % 3), 4), srcc(0)))
            hread(gs + 2)
            q.gap(16, s, maxl=(2 if u == 0 else 0))
            e("v_mfma_f32_32x32x16_bf16 %s, %s, %s, %s" % (v(acc + 16, 16), a(8 * s + 4, 4), v(HF + 4 * (gs % 3), 4), srcc(1)))
            q.gap(20, s, maxl=2)
            if s == 20:
                g.vmem("buffer_load_dword %s, %s, %s, 0 offen offset:%d sc1" % (v(vST), v(vSTA), srd(SRD_WS), 128 * u), "st%d" % u)
            if s == 22 and u in (0, 1):
                assert not q.l, "w_down reads still queued"
                g.wait_lg("wr%d" % u)
                wd_dma_items(g, q, u + 1, 22)
            if s == 25:
                tags = []
                if u <= 2:
                    tags.append("hb%d" % (u + 1))
                if u >= 2:
                    tags.append("hst%d" % (u - 2))
                g.wait_vm(tags)
                e("s_barrier")
                if u >= 2:
                    s3_signal(g, [u - 2])
                if u == 1:
                    hb_dma(g, 3, 0)
                if u == 2:
                    wd_dma_items(g, q, 3, 25)
                if u == 3:
                    res_dma(g)
        q.flush()
        g.stamp(11 + u)
    g.wait_vm("hst2")
    e("s_barrier")
    s3_signal(g, [2])
    q = Q(g)
    epilogue_items(g, q, 3, 0)
    q.flush()
    e("s_nop 7")
    e("s_nop 3")
    epilogue_valu(g, q, 3, 0, direct=True)
    g.wait_vm("hst3")
    e("s_barrier")
    s3_signal(g, [3])
    g.stamp(15)


def wd_bases(g, dst, sbase):
    e = g.e
    t0, t1, t2 = vT, vU, vW
    e("v_lshrrev_b32 %s, 5, v1" % v(t0))
    e("v_bfe_u32 %s, v1, 4, 1" % v(t1))
    e("v_lshlrev_b32 %s, 4, %s" % (v(t0), v(t0)))
    e("v_lshl_add_u32 %s, %s, 2, %s" % (v(t0), v(t1), v(t0)))
    e("v_bfe_u32 %s, v1, 2, 2" % v(t2))
    e("v_add_u32 %s, %s, %s" % (v(t0), v(t0), v(t2)))
    e("v_lshlrev_b32 %s, 7, %s" % (v(t0), v(t0)))
    e("v_lshrrev_b32 %s, 1, %s" % (v(t2), v(t2)))
    e("v_lshl_add_u32 %s, %s, 1, %s" % (v(t1), v(t1), v(t2)))
    e("v_and_b32 %s, 3, v1" % v(t2))
    e("v_lshl_add_u32 %s, %s, 3, %s" % (v(t0), v(t2), v(t0)))
    if sbase is None:
        e("s_lshl_b32 s%d, s%d, 14" % (sT0, sWAVE))
        e("s_add_u32 s%d, s%d, %d" % (sT0, sT0, L_WD))
        sb = sT0
    else:
        sb = sbase
    e("v_add_u32 %s, s%d, %s" % (v(t0), sb, v(t0)))
    for ct in range(4):
        e("v_xor_b32 %s, %d, %s" % (v(t2), ct, v(t1)))
        e("v_lshl_add_u32 %s, %s, 5, %s" % (v(dst + ct), v(t2), v(t0)))


def res_dma(g):
    e = g.e
    e("v_lshrrev_b32 %s, 1, v1" % v(vU))
    e("v_lshlrev_b32 %s, 6, %s" % (v(vU), v(vU)))
    e("v_and_b32 %s, 1, v1" % v(vW))
    e("v_lshl_add_u32 %s, %s, 4, %s" % (v(vU), v(vW), v(vU)))
    e("s_lshl_b32 s%d, s%d, 2" % (sT4, sCI))
    e("s_add_u32 s%d, s%d, s%d" % (sT4, sT4, sWAVE))
    e("s_mul_i32 s%d, s%d, 28672" % (sT4, sT4))
    e("s_lshl_b32 s%d, s%d, 12" % (sT5, sCJ))
    e("s_add_u32 s%d, s%d, s%d" % (sT4, sT4, sT5))
    e("s_lshl_b32 s%d, s%d, 5" % (sT5, sCS))
    e("s_add_u32 s%d, s%d, s%d" % (sT4, sT4, sT5))
    e("s_add_u32 s%d, s%d, %d" % (sT4, sT4, WS_HB))
    e("s_lshl_b32 s%d, s%d, 11" % (sT5, sWAVE))
    e("s_add_u32 m0, s%d, %d" % (sT5, L_RES))
    e("s_nop 0")
    g.vmem("buffer_load_dwordx4 %s, %s, s%d offen sc1 lds" % (v(vU), srd(SRD_WS), sT4), "res")
    e("s_add_u32 s%d, s%d, 2048" % (sT4, sT4))
    e("s_add_u32 m0, s%d, %d" % (sT5, L_RES + 1024))
    e("s_nop 0")
    g.vmem("buffer_load_dwordx4 %s, %s, s%d offen sc1 lds" % (v(vU), srd(SRD_WS), sT4), "res")


def phase_c(g):
    e = g.e
    g.c("==== C ====")
    CACC = [32, 48]
    SUM = 64
    RS = 84
    def hslot(u, s):
        k = u % 3
        if k == 0:
            return a(96 + 4 * s, 4)
        if k == 1:
            return a(152 + 4 * s, 4)
        return v(104 + 4 * s, 4)
    vLO = [2, 3, 5, 6]
    vPW, vPR, vRW, vRR, vOUT, vRES = 13, 14, 15, 16, 17, 18
    vB3 = 20
    q = Q(g)
    wd_read_items(g, q, 2, 0)
    q.flush()
    e("s_lshl_b32 s%d, s%d, 13" % (sT1, sWAVE))
    e("s_add_u32 s%d, s%d, 28672" % (sT1, sT1))
    e("s_cmp_eq_u32 s%d, 3" % sWAVE)
    e("s_cselect_b32 s%d, %d, s%d" % (sT1, L_R3TOP, sT1))
    wd_bases(g, vB3, sT1)
    wd_read_items(g, q, 3, 0, bases=[vB3 + i for i in range(4)])
    q.flush()
    for k in range(4):
        e("v_add_u32 %s, %d, %s" % (v(vLO[k]), 4096 * k, v(vL16)))
    e("v_lshrrev_b32 %s, 4, v1" % v(vT))
    e("v_and_b32 %s, 15, v1" % v(vU))
    e("v_mul_u32_u24 %s, 272, %s" % (v(vW), v(vT)))
    e("v_lshl_add_u32 %s, %s, 4, %s" % (v(vW), v(vU), v(vW)))
    e("s_lshl_b32 s%d, s%d, 14" % (sT0, sWAVE))
    e("s_add_u32 s%d, s%d, %d" % (sT0, sT0, L_WD))
    e("v_add_u32 %s, s%d, %s" % (v(vPW), sT0, v(vW)))
    e("s_mul_i32 s%d, s%d, 1088" % (sT0, sWAVE))
    e("s_add_u32 s%d, s%d, %d" % (sT0, sT0, L_RESP))
    e("v_add_u32 %s, s%d, %s" % (v(vRW), sT0, v(vW)))
    e("v_mul_u32_u24 %s, 272, %s" % (v(vW), v(vU)))
    e("s_lshl_b32 s%d, s%d, 2" % (sT0, sWAVE))
    e("v_add_u32 %s, s%d, %s" % (v(vPR), sT0, v(vT)))
    e("v_lshl_add_u32 %s, %s, 4, %s" % (v(vW), v(vPR), v(vW)))
    e("s_lshl_b32 s%d, s%d, 7" % (sT0, sCI))
    e("s_lshl_b32 s%d, s%d, 4" % (sT1, sCS))
    e("s_add_u32 s%d, s%d, s%d" % (sT0, sT0, sT1))
    e("v_add_u32 %s, s%d, %s" % (v(vOUT), sT0, v(vPR)))
    e("v_mul_u32_u24 %s, 896, %s" % (v(vOUT), v(vOUT)))
    e("v_lshl_add_u32 %s, %s, 3, %s" % (v(vOUT), v(vU), v(vOUT)))
    e("s_lshl_b32 s%d, s%d, 7" % (sT0, sCJ))
    e("v_add_u32 %s, s%d, %s" % (v(vOUT), sT0, v(vOUT)))
    e("v_add_u32 %s, %d, %s" % (v(vPR), L_WD, v(vW)))
    e("v_add_u32 %s, %d, %s" % (v(vRR), L_RESP, v(vW)))
    e("v_lshrrev_b32 %s, 4, v1" % v(vT))
    e("v_bfe_u32 %s, v1, 2, 2" % v(vU))
    e("v_lshl_add_u32 %s, %s, 2, %s" % (v(vT), v(vT), v(vU)))
    e("s_lshl_b32 s%d, s%d, 4" % (sT0, sWAVE))
    e("v_add_u32 %s, s%d, %s" % (v(vT), sT0, v(vT)))
    e("v_lshlrev_b32 %s, 5, %s" % (v(vT), v(vT)))
    e("v_and_b32 %s, 3, v1" % v(vU))
    e("v_lshl_add_u32 %s, %s, 3, %s" % (v(vT), v(vU), v(vT)))
    e("v_add_u32 %s, %d, %s" % (v(vRES), L_RES, v(vT)))
    e("v_and_b32 %s, 3, v1" % v(vT))
    e("s_lshl_b32 s%d, s%d, 2" % (sT0, sCI))
    e("s_add_u32 s%d, s%d, %d" % (sT0, sT0, C_S3))
    e("s_lshl_b32 s%d, s%d, 8" % (sT0, sT0))
    e("s_add_u32 s%d, s%d, %d" % (sT0, sT0, WS_CNT))
    e("v_lshl_add_u32 %s, %s, 8, s%d" % (v(vT), v(vT), sT0))
    e("v_mov_b32 %s, 14" % v(vU))
    g.wait_vm("res")
    g.wait_lg0()
    g.poll(vT, vU, vW)
    g.stamp(16)

    def hso(u):
        e("s_lshl_b32 s%d, s%d, 2" % (sT2, sCI))
        e("s_add_u32 s%d, s%d, %d" % (sT2, sT2, u))
        e("s_lshl_b32 s%d, s%d, 1" % (sT2, sT2))
        e("s_add_u32 s%d, s%d, s%d" % (sT2, sT2, sCS))
        e("s_mul_i32 s%d, s%d, 57344" % (sT2, sT2))
        e("s_mul_i32 s%d, s%d, 14336" % (sT3, sWAVE))
        e("s_add_u32 s%d, s%d, s%d" % (sT2, sT2, sT3))
        e("s_add_u32 s%d, s%d, %d" % (sT2, sT2, WS_HF))

    def hload(u, s):
        g.vmem("buffer_load_dwordx4 %s, %s, %s, s%d offen offset:%d sc1" % (hslot(u, s), v(vLO[s >> 2]), srd(SRD_WS), sT2, 1024 * (s & 3)), "hf%d_%d" % (u, s))

    for u in range(3):
        hso(u)
        for s in range(14):
            hload(u, s)
    for u in range(4):
        g.lds("ds_read_b64_tr_b16 %s, %s offset:%d" % (v(RS + 2 * u, 2), v(vRES), 2048 * u), "rs%d" % u)
    for u in range(4):
        g.wait_lg("rs%d" % u)
        t = SUM + 4 * u
        e("v_lshlrev_b32 %s, 16, %s" % (v(t), v(RS + 2 * u)))
        e("v_and_b32 %s, 0xffff0000, %s" % (v(t + 1), v(RS + 2 * u)))
        e("v_lshlrev_b32 %s, 16, %s" % (v(t + 2), v(RS + 2 * u + 1)))
        e("v_and_b32 %s, 0xffff0000, %s" % (v(t + 3), v(RS + 2 * u + 1)))
        g.lds("ds_write_b128 %s, %s offset:%d" % (v(vRW), v(t, 4), PART_STRIDE * u), "rw")
    g.wait_lg0()

    def finish(u):
        buf = u & 1
        for w in range(4):
            g.lds("ds_read_b128 %s, %s offset:%d" % (v(SUM + 4 * w, 4), v(vPR), 16384 * w + PART_STRIDE * buf), "p%d" % w)
        g.lds("ds_read_b128 %s, %s offset:%d" % (v(SUM + 16, 4), v(vRR), PART_STRIDE * u), "p4")
        g.wait_lg("p1")
        for i in range(4):
            e("v_add_f32 %s, %s, %s" % (v(SUM + i), v(SUM + i), v(SUM + 4 + i)))
        g.wait_lg("p3")
        for i in range(4):
            e("v_add_f32 %s, %s, %s" % (v(SUM + 8 + i), v(SUM + 8 + i), v(SUM + 12 + i)))
        g.wait_lg("p4")
        for i in range(4):
            e("v_add_f32 %s, %s, %s" % (v(SUM + i), v(SUM + i), v(SUM + 16 + i)))
        for i in range(4):
            e("v_add_f32 %s, %s, %s" % (v(SUM + i), v(SUM + i), v(SUM + 8 + i)))
        e("v_cvt_pk_bf16_f32 %s, %s, %s" % (v(SUM + 20), v(SUM), v(SUM + 1)))
        e("v_cvt_pk_bf16_f32 %s, %s, %s" % (v(SUM + 21), v(SUM + 2), v(SUM + 3)))
        e("s_mov_b32 s%d, %d" % (sT4, 32 * 896 * u))
        g.vmem("buffer_store_dwordx2 %s, %s, %s, s%d offen" % (v(SUM + 20, 2), v(vOUT), srd(SRD_OUT), sT4), "out")

    for u in range(4):
        g.c("---- C chunk %d" % u)
        acc = CACC[u & 1]
        if u == 1:
            hso(3)
        for s in range(14):
            g.wait_vm("hf%d_%d" % (u, s))
            for ct in range(4):
                w, _ = wdf(s, ct)
                e("v_mfma_f32_16x16x32_bf16 %s, %s, %s, %s" % (v(acc + 4 * ct, 4), w, hslot(u, s), "0" if s == 0 else v(acc + 4 * ct, 4)))
            if u == 1:
                hload(3, s)
        e("s_nop 7")
        for ct in range(4):
            g.lds("ds_write_b128 %s, %s offset:%d" % (v(vPW), v(acc + 4 * ct, 4), 1088 * ct + PART_STRIDE * (u & 1)), "pw")
        g.wait_lg0()
        e("s_barrier")
        finish(u)
        g.stamp(17 + u)
```

```python
import sys, os
sys.path.insert(0, os.path.dirname(os.path.abspath(__file__)))
from asmlib import Asm, check_hazards

NAME = "sequential_preLN__ssm_conv_h3__glu_gated_glu__prompt_kernel"
S, D, F = 2048, 448, 1792

WS_KVT = 0x000000
WS_QT = 0x200000
WS_HB = 0x400000
WS_HF = 0x600000
WS_ST1 = 0xE00000
WS_ST2 = 0xE08000
WS_CNT = 0xE10000
WS_TS = 0xF00000
WS_SIZE = 0x1000000
C_S1, C_SL1, C_S2, C_S3 = 0, 8, 16, 32
N_CNT = 96

L_WST = 0
L_K = 114688
L_V = L_K + 9216
L_Q = L_V + 8192
L_TS = L_Q + 8192
L_X = L_K
L_EX = L_V
L_HB = 0
L_WD = 86016
LDS_BYTES = 163840

sWAVE = 3
SRD_WS, SRD_Q, SRD_K, SRD_V, SRD_SK, SRD_SH, SRD_WG, SRD_WU, SRD_WD, SRD_OUT, SRD_DBG = 4, 8, 12, 16, 20, 24, 28, 32, 36, 40, 44
sPC = 48
sD = 50
sT0, sT1, sT2, sT3, sT4, sT5, sT6, sT7 = 76, 77, 78, 79, 80, 81, 82, 83
sA0BASE = 84
sG0 = 85
sRB = 86
sBI, sBJ = 87, 88
sCI, sCS, sCJ = 89, 90, 91
sSPIN = 92
sM = 93
sEX = 94
sTS = 96
sHALF = 98
sCHL = 99


def srd(n):
    return "s[%d:%d]" % (n, n + 3)


def v(a, n=1):
    return "v%d" % a if n == 1 else "v[%d:%d]" % (a, a + n - 1)


def a(i, n=1):
    return "a%d" % i if n == 1 else "a[%d:%d]" % (i, i + n - 1)


SPIN_LIMIT = 40000


class Gen(Asm):
    def __init__(self, stop=None, stamps=False):
        super().__init__()
        self.stop = stop
        self.stamps = stamps

    def stamp(self, idx):
        if not self.stamps:
            return
        lab = self.newlabel("st")
        self.e("s_cmp_eq_u32 s%d, 0" % sWAVE)
        self.e("s_cbranch_scc0 %s" % lab)
        self.e("s_memrealtime s[%d:%d]" % (sTS, sTS + 1))
        self.e("s_waitcnt lgkmcnt(0)")
        self.e("v_mov_b32 v30, s%d" % sTS)
        self.e("s_lshl_b32 s%d, s2, 7" % (sTS + 1))
        self.e("s_add_u32 s%d, s%d, %d" % (sTS + 1, sTS + 1, WS_TS + 4 * idx))
        self.e("v_mov_b32 v31, s%d" % (sTS + 1))
        self.e("s_mov_b64 exec, 1")
        self.e("buffer_store_dword v30, v31, %s, 0 offen" % srd(SRD_WS))
        self.e("s_mov_b64 exec, -1")
        self.label(lab)

    def poll(self, vaddr, vtarget, vtmp):
        skip = self.newlabel("pskip")
        loop = self.newlabel("ploop")
        done = self.newlabel("pdone")
        self.e("s_cmp_eq_u32 s%d, 0" % sWAVE)
        self.e("s_cbranch_scc0 %s" % skip)
        self.e("s_mov_b32 s%d, %d" % (sSPIN, SPIN_LIMIT))
        self.label(loop)
        self.e("buffer_load_dword %s, %s, %s, 0 offen sc1" % (v(vtmp), v(vaddr), srd(SRD_WS)))
        self.e("s_waitcnt vmcnt(0)")
        self.e("v_cmp_lt_u32 vcc, %s, %s" % (v(vtmp), v(vtarget)))
        self.e("s_nop 4")
        self.e("s_cbranch_vccz %s" % done)
        self.e("s_sub_u32 s%d, s%d, 1" % (sSPIN, sSPIN))
        self.e("s_cmp_lg_u32 s%d, 0" % sSPIN)
        self.e("s_cbranch_scc0 %s" % done)
        self.e("s_sleep 1")
        self.e("s_branch %s" % loop)
        self.label(done)
        self.label(skip)
        self.e("s_barrier")

    def signal(self, vaddr, vone, nlanes):
        skip = self.newlabel("sig")
        self.e("s_cmp_eq_u32 s%d, 0" % sWAVE)
        self.e("s_cbranch_scc0 %s" % skip)
        self.e("s_mov_b64 exec, %d" % ((1 << nlanes) - 1))
        self.e("buffer_atomic_add %s, %s, %s, 0 offen sc1" % (v(vone), v(vaddr), srd(SRD_WS)))
        self.e("s_mov_b64 exec, -1")
        self.label(skip)

    def endif_stop(self, name):
        if self.stop == name:
            self.wait_all()
            self.e("s_endpgm")
            return True
        return False

    def prologue(self):
        e = self.e
        e("s_cmp_ge_u32 s2, 256")
        e("s_cbranch_scc1 L_end")
        e("s_load_dwordx4 s[52:55], s[0:1], 0")
        e("s_load_dwordx4 s[56:59], s[0:1], 16")
        e("s_load_dwordx4 s[60:63], s[0:1], 32")
        e("s_load_dwordx4 s[64:67], s[0:1], 56")
        e("s_load_dwordx4 s[68:71], s[0:1], 72")
        e("s_load_dwordx4 s[72:75], s[0:1], 88")
        e("s_getpc_b64 s[%d:%d]" % (sPC, sPC + 1))
        self.label("L_pc")
        e("v_and_b32 v1, 63, v0")
        e("v_lshrrev_b32 v2, 6, v0")
        e("s_nop 0")
        e("v_readfirstlane_b32 s%d, v2" % sWAVE)
        e("s_waitcnt lgkmcnt(0)")

        def mk(dst, src, size):
            e("s_mov_b32 s%d, s%d" % (dst, src))
            e("s_mov_b32 s%d, s%d" % (dst + 1, src + 1))
            e("s_mov_b32 s%d, %d" % (dst + 2, size))
            e("s_mov_b32 s%d, 0x20000" % (dst + 3))
        mk(SRD_Q, 52, S * D * 2)
        mk(SRD_K, 54, S * D * 2)
        mk(SRD_V, 56, S * D * 2)
        mk(SRD_SH, 58, D * 4 * 2)
        mk(SRD_SK, 60, S * D * 2)
        mk(SRD_WG, 64, D * F * 2)
        mk(SRD_WU, 66, D * F * 2)
        mk(SRD_WD, 68, D * F * 2)
        mk(SRD_OUT, 70, S * D * 2)
        mk(SRD_DBG, 72, 256)
        mk(SRD_WS, 74, WS_SIZE)
        lab = self.newlabel("nowarm")
        e("s_lshr_b32 s%d, s2, 3" % sT0)
        e("s_cmp_lt_u32 s%d, 4" % sT0)
        e("s_cbranch_scc0 %s" % lab)
        e("s_lshl_b32 s%d, s%d, 2" % (sT0, sT0))
        e("s_add_u32 s%d, s%d, s%d" % (sT0, sT0, sWAVE))
        e("s_mul_i32 s%d, s%d, (L_codeend-L_pc+15)/16" % (sT0, sT0))
        e("v_lshlrev_b32 v2, 5, v1")
        e("v_add_u32 v2, s%d, v2" % sT0)
        e("v_min_u32 v2, L_codeend-L_pc-4, v2")
        e("v_and_b32 v2, -4, v2")
        e("global_load_dword v253, v2, s[%d:%d]" % (sPC, sPC + 1))
        self.label(lab)
        e("s_cmp_ge_u32 s2, 224")
        e("s_cbranch_scc1 L_helper")

    def phase_a0(self):
        e = self.e
        self.c("==== A0 ====")
        e("s_mul_i32 s%d, s2, 293" % sRB)
        e("s_lshr_b32 s%d, s%d, 11" % (sRB, sRB))
        e("s_mul_i32 s%d, s%d, 7" % (sT0, sRB))
        e("s_sub_u32 s%d, s2, s%d" % (sG0, sT0))
        e("s_mul_i32 s%d, s%d, %d" % (sA0BASE, sRB, 64 * 896))
        e("s_lshl_b32 s%d, s%d, 7" % (sT0, sG0))
        e("s_add_u32 s%d, s%d, s%d" % (sA0BASE, sA0BASE, sT0))
        vP, vOff, vOffH, vT = 4, 5, 6, 7
        e("v_lshrrev_b32 %s, 4, v1" % v(vT))
        e("v_and_b32 %s, 1, %s" % (v(vT), v(vT)))
        e("v_lshlrev_b32 %s, 1, %s" % (v(vT), v(vT)))
        e("v_and_b32 %s, 7, v1" % v(vP))
        e("v_xor_b32 %s, %s, %s" % (v(vP), v(vP), v(vT)))
        e("v_lshlrev_b32 %s, 4, %s" % (v(vP), v(vP)))
        e("v_lshrrev_b32 %s, 3, v1" % v(vT))
        e("v_mul_u32_u24 %s, 896, %s" % (v(vT), v(vT)))
        e("v_add_u32 %s, %s, %s" % (v(vP), v(vP), v(vT)))
        e("s_and_b32 s%d, s%d, 1" % (sT0, sWAVE))
        e("s_lshl_b32 s%d, s%d, 6" % (sT0, sT0))
        e("v_xor_b32 %s, s%d, %s" % (v(vOff), sT0, v(vP)))
        e("v_xor_b32 %s, 64, %s" % (v(vOffH), v(vP)))
        e("s_cmp_eq_u32 s%d, 0" % sRB)
        e("s_cselect_b32 s%d, 0x80000000, 0" % sT1)
        e("v_add_u32 %s, s%d, %s" % (v(vOffH), sT1, v(vOffH)))
        e("s_sub_u32 s%d, s%d, 7168" % (sT2, sA0BASE))
        e("s_cmp_eq_u32 s%d, 0" % sRB)
        e("s_cselect_b32 s%d, 0, s%d" % (sT2, sT2))
        e("s_mul_i32 s%d, s%d, 7168" % (sT3, sWAVE))
        e("s_add_u32 s%d, s%d, s%d" % (sT3, sT3, sA0BASE))
        e("s_add_u32 s%d, s%d, %d" % (sT4, sT3, 4 * 7168))
        e("s_lshl_b32 s%d, s%d, 10" % (sT5, sWAVE))

        def dma(srdn, voff, soff, ldsbase, addw=True):
            if addw:
                e("s_add_u32 m0, s%d, %d" % (sT5, ldsbase))
            else:
                e("s_mov_b32 m0, %d" % ldsbase)
            e("s_nop 0")
            self.vmem("buffer_load_dwordx4 %s, %s, s%d offen lds" % (v(voff), srd(srdn), soff), "a0")
        dma(SRD_K, vOffH, sT2, L_K, addw=False)
        dma(SRD_K, vOff, sT3, L_K + 1024)
        dma(SRD_K, vOff, sT4, L_K + 5 * 1024)
        dma(SRD_V, vOff, sT3, L_V)
        dma(SRD_V, vOff, sT4, L_V + 4 * 1024)
        dma(SRD_Q, vOff, sT3, L_Q)
        dma(SRD_Q, vOff, sT4, L_Q + 4 * 1024)
        vCH, vSK = 8, 10
        e("s_lshl_b32 s%d, s%d, 6" % (sT0, sG0))
        e("s_lshl_b32 s%d, s%d, 4" % (sT1, sWAVE))
        e("s_add_u32 s%d, s%d, s%d" % (sT0, sT0, sT1))
        e("v_and_b32 %s, 15, v1" % v(vCH))
        e("v_add_u32 %s, s%d, %s" % (v(vCH), sT0, v(vCH)))
        e("v_lshlrev_b32 %s, 3, %s" % (v(vT), v(vCH)))
        self.vmem("buffer_load_dwordx2 %s, %s, %s, 0 offen" % (v(vSK, 2), v(vT), srd(SRD_SH)), "a0")

        self.c("T staging DMA: wave w -> channel 2*id + (w>>1), copy w&1")
        e("s_lshr_b32 s%d, s%d, 1" % (sCHL, sWAVE))
        e("s_and_b32 s%d, s%d, 1" % (sHALF, sWAVE))
        e("s_lshl_b32 s%d, s2, 1" % sT0)
        e("s_add_u32 s%d, s%d, s%d" % (sT0, sT0, sCHL))
        e("s_lshl_b32 s%d, s%d, 12" % (sT0, sT0))
        e("s_lshl_b32 s%d, s%d, 1" % (sT1, sHALF))
        e("s_add_u32 s%d, s%d, s%d" % (sT1, sT0, sT1))
        e("s_mul_i32 s%d, s%d, 4160" % (sT2, sWAVE))
        e("s_add_u32 s%d, s%d, %d" % (sT2, sT2, L_TS + 32))
        e("s_mov_b32 m0, s%d" % sT2)
        vL16 = 9
        e("v_lshlrev_b32 %s, 4, v1" % v(vL16))
        for i in range(4):
            self.vmem("buffer_load_dwordx4 %s, %s, s%d offen offset:%d lds" % (v(vL16), srd(SRD_SK), sT1, 1024 * i), "ts")
        vH0 = 12
        e("v_mov_b32 %s, s%d" % (v(vT), sT0))
        self.vmem("buffer_load_ushort %s, %s, %s, 0 offen" % (v(vH0), v(vT), srd(SRD_SK)), "ts")
        e("s_lshl_b32 s%d, s2, 2" % sT3)
        e("s_load_dword s%d, s[62:63], s%d" % (sD, sT3))

        vTR, vTRH, vG, vR = 13, 14, 15, 16
        e("v_lshrrev_b32 %s, 4, v1" % v(vG))
        e("v_bfe_u32 %s, v1, 2, 2" % v(vR))
        e("v_lshrrev_b32 %s, 1, %s" % (v(vT), v(vR)))
        e("v_and_b32 %s, 1, %s" % (v(vTR), v(vG)))
        e("v_lshl_or_b32 %s, %s, 1, %s" % (v(vT), v(vTR), v(vT)))
        e("v_xor_b32 %s, s%d, %s" % (v(vT), sWAVE, v(vT)))
        e("v_lshlrev_b32 %s, 5, %s" % (v(vT), v(vT)))
        e("v_lshl_add_u32 %s, %s, 3, %s" % (v(vTR), v(vG), v(vR)))
        e("v_lshl_add_u32 %s, %s, 7, %s" % (v(vTR), v(vTR), v(vT)))
        e("v_and_b32 %s, 3, v1" % v(vT))
        e("v_lshl_add_u32 %s, %s, 3, %s" % (v(vTR), v(vT), v(vTR)))
        e("v_add_u32 %s, %d, %s" % (v(vTR), L_K, v(vTR)))
        e("v_xor_b32 %s, 64, %s" % (v(vTRH), v(vTR)))
        vSKV, vSQ = 17, 18
        e("s_lshl_b32 s%d, s%d, 7" % (sT0, sRB))
        e("v_lshlrev_b32 %s, 12, %s" % (v(vSQ), v(vCH)))
        e("v_lshlrev_b32 %s, 4, %s" % (v(vT), v(vG)))
        e("s_sub_u32 s%d, %d, s%d" % (sT1, WS_KVT + 4080 - 64, sT0))
        e("v_add_u32 %s, s%d, %s" % (v(vSKV), sT1, v(vSQ)))
        e("v_sub_u32 %s, %s, %s" % (v(vSKV), v(vSKV), v(vT)))
        e("s_add_u32 s%d, s%d, %d" % (sT1, sT0, WS_QT))
        e("v_add3_u32 %s, %s, %s, s%d" % (v(vSQ), v(vSQ), v(vT), sT1))
        self.wait_vm("a0")
        e("s_waitcnt lgkmcnt(0)")
        self.lg = []
        e("s_lshl_b32 s%d, s%d, 16" % (sT0, sD))
        e("s_and_b32 s%d, s%d, 0xffff0000" % (sT1, sD))
        e("s_cmp_eq_u32 s%d, 0" % sCHL)
        e("s_cselect_b32 s%d, s%d, s%d" % (sD, sT0, sT1))
        e("s_barrier")
        self.stamp(1)

        KH = [24, 34]
        KM = [26, 36]
        VV = [40, 44]
        QQ = [48, 52]
        for rho in range(2):
            self.lds("ds_read_b64_tr_b16 %s, %s offset:%d" % (v(KH[rho], 2), v(vTRH), 512 + 4096 * rho), "k%d" % rho)
            self.lds("ds_read_b64_tr_b16 %s, %s offset:%d" % (v(KM[rho], 2), v(vTR), 1024 + 4096 * rho), "k%d" % rho)
            self.lds("ds_read_b64_tr_b16 %s, %s offset:%d" % (v(KM[rho] + 2, 2), v(vTR), 1024 + 512 + 4096 * rho), "k%d" % rho)
            self.lds("ds_read_b64_tr_b16 %s, %s offset:%d" % (v(VV[rho], 2), v(vTR), L_V - L_K + 4096 * rho), "v%d" % rho)
            self.lds("ds_read_b64_tr_b16 %s, %s offset:%d" % (v(VV[rho] + 2, 2), v(vTR), L_V - L_K + 512 + 4096 * rho), "v%d" % rho)
        for rho in range(2):
            self.lds("ds_read_b64_tr_b16 %s, %s offset:%d" % (v(QQ[rho], 2), v(vTR), L_Q - L_K + 4096 * rho), "q")
            self.lds("ds_read_b64_tr_b16 %s, %s offset:%d" % (v(QQ[rho] + 2, 2), v(vTR), L_Q - L_K + 512 + 4096 * rho), "q")
        CA, CB = 21, 22
        e("v_alignbit_b32 %s, %s, %s, 16" % (v(CA), v(vSK), v(vSK)))
        e("v_alignbit_b32 %s, %s, %s, 16" % (v(CB), v(vSK + 1), v(vSK + 1)))
        MM = 56
        KS = 64
        VF = 72
        OUTR = [80, 84]
        for rho in range(2):
            self.wait_lg("v%d" % rho)
            Dw = [KH[rho], KH[rho] + 1, KM[rho], KM[rho] + 1, KM[rho] + 2, KM[rho] + 3]
            for i in range(5):
                e("v_alignbit_b32 %s, %s, %s, 16" % (v(MM + i), v(Dw[i + 1]), v(Dw[i])))
            for t in range(8):
                if t & 1:
                    p0, p1 = Dw[2 + (t >> 1)], Dw[1 + (t >> 1)]
                else:
                    p0, p1 = MM + 1 + (t >> 1), MM + (t >> 1)
                e("v_dot2_f32_bf16 %s, %s, %s, 0" % (v(KS + t), v(p1), v(CB)))
            for t in range(8):
                if t & 1:
                    p0 = Dw[2 + (t >> 1)]
                else:
                    p0 = MM + 1 + (t >> 1)
                e("v_dot2_f32_bf16 %s, %s, %s, %s" % (v(KS + t), v(p0), v(CA), v(KS + t)))
            for t in range(8):
                src = VV[rho] + (t >> 1)
                if t & 1:
                    e("v_and_b32 %s, 0xffff0000, %s" % (v(VF + t), v(src)))
                else:
                    e("v_lshlrev_b32 %s, 16, %s" % (v(VF + t), v(src)))
            for t in range(8):
                e("v_mul_f32 %s, %s, %s" % (v(KS + t), v(KS + t), v(VF + t)))
            for i in range(4):
                e("v_cvt_pk_bf16_f32 %s, %s, %s" % (v(OUTR[rho] + i), v(KS + 7 - 2 * i), v(KS + 6 - 2 * i)))
            self.vmem("buffer_store_dwordx4 %s, %s, %s, 0 offen offset:%d sc1" % (v(OUTR[rho], 4), v(vSKV), srd(SRD_WS), 64 if rho == 0 else 0), "a0st")
        self.wait_lg("q")
        for rho in range(2):
            self.vmem("buffer_store_dwordx4 %s, %s, %s, 0 offen offset:%d sc1" % (v(QQ[rho], 4), v(vSQ), srd(SRD_WS), 64 * rho), "a0st")
        vGO, vZERO = 23, 58
        e("v_mov_b32 %s, 0" % v(vZERO))
        self.vmem("buffer_load_dword %s, %s, %s, 0 offen sc1" % (v(vGO), v(vZERO), srd(SRD_DBG)), "go")
        self.stamp(2)

    def t_pad(self):
        e = self.e
        vH0, vZ, vZA = 12, 19, 20
        e("v_lshlrev_b32 %s, 16, %s" % (v(vH0), v(vH0)))
        e("v_cmp_eq_u32 vcc, 7, v1")
        e("s_nop 3")
        e("s_cmp_eq_u32 s%d, 1" % sHALF)
        e("s_cselect_b64 s[%d:%d], vcc, 0" % (sEX, sEX + 1))
        e("v_mov_b32 %s, 0" % v(vZ))
        e("s_nop 1")
        e("v_cndmask_b32 %s, %s, %s, s[%d:%d]" % (v(vZ), v(vZ), v(vH0), sEX, sEX + 1))
        e("s_mul_i32 s%d, s%d, 4160" % (sT2, sWAVE))
        e("s_add_u32 s%d, s%d, %d" % (sT2, sT2, L_TS))
        e("v_lshl_add_u32 %s, v1, 2, s%d" % (v(vZA), sT2))
        e("s_mov_b64 exec, 0xff")
        self.lds("ds_write_b32 %s, %s" % (v(vZA), v(vZ)), "z")
        e("s_mov_b64 exec, -1")
        self.wait_lg0()

    def w_stage_dma(self, rnd):
        e = self.e
        self.c("W staging DMA round %d" % rnd)
        vWG, vWU, vT = 2, 3, 7
        e("v_lshrrev_b32 %s, 2, v1" % v(vT))
        e("v_mul_u32_u24 %s, 3584, %s" % (v(vT), v(vT)))
        e("v_and_b32 %s, 3, v1" % v(vWG))
        e("v_xor_b32 %s, 2, %s" % (v(vWU), v(vWG)))
        e("v_lshl_add_u32 %s, %s, 4, %s" % (v(vWG), v(vWG), v(vT)))
        e("v_lshl_add_u32 %s, %s, 4, %s" % (v(vWU), v(vWU), v(vT)))
        e("s_lshl_b32 s%d, s%d, 8" % (sT0, sBJ))
        e("s_lshl_b32 s%d, s%d, 6" % (sT1, sWAVE))
        e("s_add_u32 s%d, s%d, s%d" % (sT0, sT0, sT1))
        if rnd:
            e("s_add_u32 s%d, s%d, %d" % (sT0, sT0, 14 * rnd * 57344))
        e("s_mul_i32 s%d, s%d, 28672" % (sM, sWAVE))
        if L_WST:
            e("s_add_u32 s%d, s%d, %d" % (sM, sM, L_WST))
        for s in range(14):
            e("s_mov_b32 m0, s%d" % sM)
            e("s_add_u32 s%d, s%d, 1024" % (sM, sM))
            self.vmem("buffer_load_dwordx4 %s, %s, s%d offen lds" % (v(vWG), srd(SRD_WG), sT0), "w%d" % rnd)
            e("s_mov_b32 m0, s%d" % sM)
            e("s_add_u32 s%d, s%d, 1024" % (sM, sM))
            self.vmem("buffer_load_dwordx4 %s, %s, s%d offen lds" % (v(vWU), srd(SRD_WU), sT0), "w%d" % rnd)
            if s != 13:
                e("s_add_u32 s%d, s%d, 57344" % (sT0, sT0))

    def w_stage_read(self, rnd):
        e = self.e
        self.c("W staging -> AGPR round %d" % rnd)
        vB0, vB1, vT, vU = 2, 3, 7, 4
        e("v_bfe_u32 %s, v1, 4, 1" % v(vT))
        e("v_lshrrev_b32 %s, 5, v1" % v(vU))
        e("v_lshlrev_b32 %s, 3, %s" % (v(vU), v(vU)))
        e("v_bfe_u32 %s, v1, 2, 2" % v(vB0))
        e("v_add_u32 %s, %s, %s" % (v(vU), v(vU), v(vB0)))
        e("v_lshlrev_b32 %s, 6, %s" % (v(vU), v(vU)))
        e("v_and_b32 %s, 3, v1" % v(vB0))
        e("v_lshl_add_u32 %s, %s, 3, %s" % (v(vU), v(vB0), v(vU)))
        e("v_mul_u32_u24 %s, 1056, %s" % (v(vT), v(vT)))
        e("s_mul_i32 s%d, s%d, 28672" % (sT0, sWAVE))
        e("v_add3_u32 %s, %s, %s, s%d" % (v(vB0), v(vU), v(vT), sT0))
        e("v_xor_b32 %s, 32, %s" % (v(vB1), v(vB0)))
        self.wait_vm("w%d" % rnd)
        for s in range(14):
            for ft in range(2):
                base = 8 * (14 * rnd + s) + 4 * ft
                for ee in range(2):
                    self.lds("ds_read_b64_tr_b16 %s, %s offset:%d" % (a(base + 2 * ee, 2), v(vB0 if ft == 0 else vB1), L_WST + 2048 * s + 256 * ee), "wr")

    def t_read(self):
        e = self.e
        self.c("T fragments -> a112..a239")
        vB, vT, vU = 8, 7, 4
        e("v_and_b32 %s, 15, v1" % v(vT))
        e("v_and_b32 %s, 1, %s" % (v(vU), v(vT)))
        e("v_add_u32 %s, %s, %s" % (v(vT), v(vT), v(vU)))
        e("v_lshrrev_b32 %s, 4, v1" % v(vB))
        e("v_lshl_add_u32 %s, %s, 3, %s" % (v(vT), v(vB), v(vT)))
        e("v_lshlrev_b32 %s, 1, %s" % (v(vT), v(vT)))
        e("v_xor_b32 %s, 1, %s" % (v(vU), v(vU)))
        e("v_mul_u32_u24 %s, 4160, %s" % (v(vU), v(vU)))
        e("s_mul_i32 s%d, s%d, 8320" % (sT0, sCHL))
        e("s_lshl_b32 s%d, s%d, 8" % (sT1, sHALF))
        e("s_add_u32 s%d, s%d, s%d" % (sT0, sT0, sT1))
        e("s_add_u32 s%d, s%d, %d" % (sT0, sT0, L_TS))
        e("v_add3_u32 %s, %s, %s, s%d" % (v(vB), v(vT), v(vU), sT0))
        for i in range(1, 4):
            e("v_add_u32 %s, %d, %s" % (v(vB + i), 1024 * i, v(vB)))
        for rr in range(4):
            for q in range(8):
                base = 112 + 4 * (8 * rr + q)
                o = 128 * (q & 1) + 16 * rr
                for hh in range(2):
                    self.lds("ds_read2_b32 %s, %s offset0:%d offset1:%d" % (a(base + 2 * hh, 2), v(vB + (q >> 1)), o + 2 * hh, o + 2 * hh + 1), "t")

    def phase_a1(self):
        e = self.e
        self.c("==== A1 ====")
        ACC = 32
        XF = [64, 96]
        QR, KVR, AR, BR = 128, 136, 144, 160
        LN, KD, QF = 176, 192, 208
        Y = 224
        vT, vU = 7, 4
        vL16 = 9
        e("v_lshlrev_b32 %s, 4, v1" % v(vL16))
        e("s_lshl_b32 s%d, s2, 1" % sT0)
        e("s_add_u32 s%d, s%d, s%d" % (sT0, sT0, sCHL))
        e("s_lshl_b32 s%d, s%d, 12" % (sT0, sT0))
        e("s_lshl_b32 s%d, s%d, 11" % (sT1, sHALF))
        e("s_add_u32 s%d, s%d, s%d" % (sT2, sT0, sT1))
        if WS_KVT:
            e("s_add_u32 s%d, s%d, %d" % (sT2, sT2, WS_KVT))
        e("s_mul_i32 s%d, s%d, 4608" % (sT3, sCHL))
        e("s_add_u32 s%d, s%d, s%d" % (sT3, sT3, sT1))
        e("s_add_u32 m0, s%d, %d" % (sT3, L_X))
        e("s_nop 0")
        for i in range(2):
            self.vmem("buffer_load_dwordx4 %s, %s, s%d offen offset:%d sc1 lds" % (v(vL16), srd(SRD_WS), sT2, 1024 * i), "x")
        vTL = 5
        e("v_and_b32 %s, 15, v1" % v(vT))
        e("v_lshrrev_b32 %s, 4, v1" % v(vU))
        e("v_lshlrev_b32 %s, 2, %s" % (v(vU), v(vU)))
        e("v_lshl_add_u32 %s, %s, 4, %s" % (v(vTL), v(vT), v(vU)))
        e("s_lshl_b32 s%d, s%d, 10" % (sT1, sHALF))
        e("v_add_u32 %s, s%d, %s" % (v(vTL), sT1, v(vTL)))
        vQA, vSA = 6, 8
        e("s_add_u32 s%d, s%d, %d" % (sT2, sT0, WS_QT))
        e("v_lshl_add_u32 %s, %s, 1, s%d" % (v(vQA), v(vTL), sT2))
        e("v_lshlrev_b32 %s, 2, %s" % (v(vSA), v(vTL)))
        e("s_mov_b32 s%d, %d" % (sT4, WS_ST1))
        e("s_mov_b32 s%d, %d" % (sT5, WS_ST1 + 8192))
        for cc in range(4):
            self.vmem("buffer_load_dwordx2 %s, %s, %s, 0 offen offset:%d sc1" % (v(QR + 2 * cc, 2), v(vQA), srd(SRD_WS), 512 * cc), "q")
        for cc in range(4):
            self.vmem("buffer_load_dwordx4 %s, %s, %s, s%d offen offset:%d sc1" % (v(AR + 4 * cc, 4), v(vSA), srd(SRD_WS), sT4, 1024 * cc), "ab")
            self.vmem("buffer_load_dwordx4 %s, %s, %s, s%d offen offset:%d sc1" % (v(BR + 4 * cc, 4), v(vSA), srd(SRD_WS), sT5, 1024 * cc), "ab")
        self.w_stage_dma(1)
        vXB, vKVA, vEW, vER = 10, 11, 12, 13
        e("v_and_b32 %s, 15, v1" % v(vT))
        e("v_lshrrev_b32 %s, 4, v1" % v(vU))
        e("v_lshlrev_b32 %s, 4, %s" % (v(vU), v(vU)))
        e("v_lshlrev_b32 %s, 5, %s" % (v(vT), v(vT)))
        e("v_sub_u32 %s, %s, %s" % (v(vXB), v(vU), v(vT)))
        e("s_mul_i32 s%d, s%d, 4608" % (sT0, sCHL))
        e("s_lshl_b32 s%d, s%d, 8" % (sT1, sHALF))
        e("s_add_u32 s%d, s%d, s%d" % (sT1, sT1, sT0))
        e("s_add_u32 s%d, s%d, %d" % (sT1, sT1, L_X + 480))
        e("v_add_u32 %s, s%d, %s" % (v(vXB), sT1, v(vXB)))
        e("s_add_u32 s%d, s%d, %d" % (sT1, sT0, L_X + 4088 - 1536))
        e("v_lshlrev_b32 %s, 1, %s" % (v(vT), v(vTL)))
        e("v_sub_u32 %s, s%d, %s" % (v(vKVA), sT1, v(vT)))
        e("s_lshl_b32 s%d, s%d, 12" % (sT0, sWAVE))
        e("s_add_u32 s%d, s%d, %d" % (sT1, sT0, L_EX))
        e("v_add_u32 %s, s%d, %s" % (v(vEW), sT1, v(vL16)))
        e("s_xor_b32 s%d, s%d, 0x1000" % (sT0, sT0))
        e("s_add_u32 s%d, s%d, %d" % (sT1, sT0, L_EX))
        e("v_add_u32 %s, s%d, %s" % (v(vER), sT1, v(vL16)))
        vHO = 14
        vRow = 15
        e("v_lshrrev_b32 %s, 4, v1" % v(vRow))
        e("v_and_b32 %s, 15, v1" % v(vT))
        e("v_lshrrev_b32 %s, 1, %s" % (v(vU), v(vT)))
        e("v_and_b32 %s, 1, %s" % (v(vHO), v(vRow)))
        e("v_lshl_add_u32 %s, %s, 3, %s" % (v(vU), v(vHO), v(vU)))
        e("v_mul_u32_u24 %s, 28672, %s" % (v(vHO), v(vU)))
        e("v_and_b32 %s, 1, %s" % (v(vT), v(vT)))
        e("v_lshl_add_u32 %s, %s, 5, %s" % (v(vHO), v(vT), v(vHO)))
        e("v_lshrrev_b32 %s, 1, %s" % (v(vRow), v(vRow)))
        e("v_lshl_add_u32 %s, %s, 4, %s" % (v(vHO), v(vRow), v(vHO)))
        e("s_lshl_b32 s%d, s2, 1" % sT0)
        e("s_add_u32 s%d, s%d, s%d" % (sT0, sT0, sCHL))
        e("s_lshl_b32 s%d, s%d, 6" % (sT0, sT0))
        e("s_mul_i32 s%d, s%d, %d" % (sT1, sHALF, 32 * 28672))
        e("s_add_u32 s%d, s%d, s%d" % (sT0, sT0, sT1))
        e("s_add_u32 s%d, s%d, %d" % (sT6, sT0, WS_HB))
        e("s_add_u32 s%d, s%d, %d" % (sT7, sT6, 16 * 28672))
        self.wait_vm("x")
        e("s_barrier")
        self.stamp(5)

        def xread(rr):
            for m in range(8):
                self.lds("ds_read_b128 %s, %s offset:%d" % (v(XF[rr & 1] + 4 * m, 4), v(vXB), 512 * (7 - m) + 64 * rr), "x%d" % rr)

        fill = []
        for cc in range(4):
            fill.append(("lds", "ds_read_b64 %s, %s offset:%d" % (v(KVR + 2 * cc, 2), v(vKVA), 512 * (3 - cc)), "kv"))
        fill.append(("waitvm", ["q", "ab"]))
        for cc in range(4):
            for i in range(4):
                src = QR + 2 * cc + (i >> 1)
                if i & 1:
                    fill.append(("v", "v_and_b32 %s, 0xffff0000, %s" % (v(QF + 4 * cc + i), v(src))))
                else:
                    fill.append(("v", "v_lshlrev_b32 %s, 16, %s" % (v(QF + 4 * cc + i), v(src))))
        for x in range(16):
            fill.append(("v", "v_fma_f32 %s, %s, %s, %s" % (v(LN + x), v(QF + x), v(AR + x), v(BR + x))))
        fill.append(("waitlg", "kv"))
        for cc in range(4):
            for i in range(4):
                src = KVR + 2 * cc + (1 - (i >> 1))
                if i & 1:
                    fill.append(("v", "v_lshlrev_b32 %s, 16, %s" % (v(KD + 4 * cc + i), v(src))))
                else:
                    fill.append(("v", "v_and_b32 %s, 0xffff0000, %s" % (v(KD + 4 * cc + i), v(src))))
        for x in range(16):
            fill.append(("v", "v_mul_f32 %s, s%d, %s" % (v(KD + x), sD, v(KD + x))))
        fi = 0

        def filler():
            nonlocal fi
            while fi < len(fill):
                k = fill[fi]
                fi += 1
                if k[0] == "v":
                    e(k[1])
                    return
                if k[0] == "lds":
                    self.lds(k[1], k[2])
                    return
                if k[0] == "waitvm":
                    self.wait_vm(k[1])
                    return
                if k[0] == "waitlg":
                    self.wait_lg(k[1])
                    return

        xread(0)
        for rr in range(4):
            self.wait_lg("x%d" % rr)
            cnt = 0
            for q in range(8):
                for c in range(q, 8):
                    m = c - q
                    srcc = "0" if (rr == 0 and q == 0) else v(ACC + 4 * c, 4)
                    e("v_mfma_f32_16x16x32_bf16 %s, %s, %s, %s" % (v(ACC + 4 * c, 4), a(112 + 4 * (8 * rr + q), 4), v(XF[rr & 1] + 4 * m, 4), srcc))
                    cnt += 1
                    if rr < 3 and cnt <= 8:
                        m2 = cnt - 1
                        self.lds("ds_read_b128 %s, %s offset:%d" % (v(XF[(rr + 1) & 1] + 4 * m2, 4), v(vXB), 512 * (7 - m2) + 64 * (rr + 1)), "x%d" % (rr + 1))
                    elif rr >= 1 or cnt > 20:
                        filler()
        while fi < len(fill):
            filler()
        self.stamp(6)
        e("s_nop 7")
        lab1, lab2 = self.newlabel("h1"), self.newlabel("hj")
        TMP = XF[0]
        e("s_cmp_eq_u32 s%d, 0" % sHALF)
        e("s_cbranch_scc0 %s" % lab1)
        for cc in range(4):
            e("ds_write_b128 %s, %s offset:%d" % (v(vEW), v(ACC + 16 + 4 * cc, 4), 1024 * cc))
        for x in range(16):
            e("v_add_f32 %s, %s, %s" % (v(Y + x), v(ACC + x), v(KD + x)))
        e("s_branch %s" % lab2)
        self.label(lab1)
        for cc in range(4):
            e("ds_write_b128 %s, %s offset:%d" % (v(vEW), v(ACC + 4 * cc, 4), 1024 * cc))
        for x in range(16):
            e("v_add_f32 %s, %s, %s" % (v(Y + x), v(ACC + 16 + x), v(KD + x)))
        self.label(lab2)
        e("s_waitcnt lgkmcnt(0)")
        self.lg = []
        e("s_barrier")
        for cc in range(4):
            self.lds("ds_read_b128 %s, %s offset:%d" % (v(TMP + 4 * cc, 4), v(vER), 1024 * cc), "ex%d" % cc)
        P = XF[0] + 16
        for cc in range(4):
            self.wait_lg("ex%d" % cc)
            for i in range(4):
                x = 4 * cc + i
                e("v_add_f32 %s, %s, %s" % (v(Y + x), v(Y + x), v(TMP + x)))
            for i in range(4):
                x = 4 * cc + i
                e("v_fma_f32 %s, %s, %s, %s" % (v(Y + x), v(LN + x), v(Y + x), v(QF + x)))
            e("v_cvt_pk_bf16_f32 %s, %s, %s" % (v(P + 2 * cc), v(Y + 4 * cc), v(Y + 4 * cc + 1)))
            e("v_cvt_pk_bf16_f32 %s, %s, %s" % (v(P + 2 * cc + 1), v(Y + 4 * cc + 2), v(Y + 4 * cc + 3)))
            if cc & 1:
                b = P + 2 * (cc - 1)
                e("s_nop 1")
                e("v_permlane16_swap_b32 %s, %s" % (v(b), v(b + 2)))
                e("v_permlane16_swap_b32 %s, %s" % (v(b + 1), v(b + 3)))
                self.vmem("buffer_store_dwordx4 %s, %s, %s, s%d offen sc1" % (v(b, 4), v(vHO), srd(SRD_WS), sT6 if cc == 1 else sT7), "hst")
        self.stamp(7)

    def helper(self):
        e = self.e
        self.label("L_helper")
        self.vm = []
        self.lg = []
        self.c("==== helper ====")
        sH = sRB
        e("s_sub_u32 s%d, s2, 224" % sH)
        vT, vU, vZ = 7, 4, 5
        e("v_mov_b32 %s, 0" % v(vZ))
        FR = 32
        vQ = 6
        e("s_lshl_b32 s%d, s%d, 6" % (sT0, sH))
        e("s_lshl_b32 s%d, s%d, 4" % (sT1, sWAVE))
        e("s_add_u32 s%d, s%d, s%d" % (sT0, sT0, sT1))
        e("v_and_b32 %s, 15, v1" % v(vT))
        e("v_add_u32 %s, s%d, %s" % (v(8), sT0, v(vT)))
        e("v_mul_u32_u24 %s, 896, %s" % (v(vQ), v(8)))
        e("v_lshrrev_b32 %s, 4, v1" % v(vU))
        e("v_lshl_add_u32 %s, %s, 4, %s" % (v(vQ), v(vU), v(vQ)))
        for s in range(14):
            self.vmem("buffer_load_dwordx4 %s, %s, %s, 0 offen offset:%d" % (v(FR + 4 * s, 4), v(vQ), srd(SRD_Q), 64 * s), "q")
        lab = self.newlabel("hz")
        e("s_cmp_eq_u32 s%d, 0" % sWAVE)
        e("s_cbranch_scc0 %s" % lab)
        e("s_lshl_b32 s%d, s%d, 8" % (sT0, sH))
        e("s_add_u32 s%d, s%d, %d" % (sT0, sT0, WS_ST2))
        e("v_lshl_add_u32 %s, v1, 2, s%d" % (v(vT), sT0))
        e("buffer_store_dword %s, %s, %s, 0 offen sc1" % (v(vZ), v(vT), srd(SRD_WS)))
        self.label(lab)
        lab = self.newlabel("hc")
        e("s_cmp_eq_u32 s%d, 0" % sH)
        e("s_cbranch_scc0 %s" % lab)
        e("v_lshlrev_b32 %s, 8, v0" % v(vT))
        e("v_add_u32 %s, %d, %s" % (v(vT), WS_CNT, v(vT)))
        e("v_cmp_gt_u32 vcc, %d, v0" % N_CNT)
        e("s_and_saveexec_b64 s[%d:%d], vcc" % (sEX, sEX + 1))
        lab2 = self.newlabel("hc2")
        e("s_cbranch_execz %s" % lab2)
        e("buffer_store_dword %s, %s, %s, 0 offen sc1" % (v(vZ), v(vT), srd(SRD_WS)))
        self.label(lab2)
        e("s_mov_b64 exec, s[%d:%d]" % (sEX, sEX + 1))
        e("s_waitcnt vmcnt(0)")
        e("s_barrier")
        e("v_mov_b32 %s, 1" % v(vU))
        lab3 = self.newlabel("hc3")
        e("s_cmp_eq_u32 s%d, 0" % sWAVE)
        e("s_cbranch_scc0 %s" % lab3)
        e("s_mov_b64 exec, 1")
        e("buffer_store_dword %s, %s, %s, 0 offen sc1" % (v(vU), v(vZ), srd(SRD_DBG)))
        e("s_mov_b64 exec, -1")
        self.label(lab3)
        self.label(lab)
        ONES = 16
        for i in range(4):
            e("v_mov_b32 %s, 0x3f803f80" % v(ONES + i))
        self.wait_vm("q")
        GR, SM = 20, 24
        self.stats_mfma(lambda s: FR + 4 * s, ONES, GR, SM, None)
        A_, B_ = 28, 29
        self.stats_finish(GR, SM, A_, B_, None)
        e("v_lshlrev_b32 %s, 2, %s" % (v(vT), v(8)))
        e("s_mov_b32 s%d, %d" % (sT4, WS_ST1))
        e("s_mov_b32 s%d, %d" % (sT5, WS_ST1 + 8192))
        e("s_mov_b32 exec_lo, 0x00f0000f")
        e("s_mov_b32 exec_hi, 0xf0000f00")
        self.vmem("buffer_store_dword %s, %s, %s, s%d offen sc1" % (v(A_), v(vT), srd(SRD_WS), sT4), "st")
        self.vmem("buffer_store_dword %s, %s, %s, s%d offen sc1" % (v(B_), v(vT), srd(SRD_WS), sT5), "st")
        e("s_mov_b64 exec, -1")
        vGO = 30
        loop, done = self.newlabel("go"), self.newlabel("god")
        e("s_mov_b32 s%d, %d" % (sSPIN, SPIN_LIMIT))
        self.label(loop)
        e("buffer_load_dword %s, %s, %s, 0 offen sc1" % (v(vGO), v(vZ), srd(SRD_DBG)))
        e("s_waitcnt vmcnt(0)")
        self.vm = []
        e("v_cmp_eq_u32 vcc, 0, %s" % v(vGO))
        e("s_nop 4")
        e("s_cbranch_vccz %s" % done)
        e("s_sub_u32 s%d, s%d, 1" % (sSPIN, sSPIN))
        e("s_cmp_lg_u32 s%d, 0" % sSPIN)
        e("s_cbranch_scc1 %s" % loop)
        self.label(done)
        e("s_barrier")
        e("v_lshlrev_b32 %s, 8, v1" % v(vT))
        e("v_add_u32 %s, %d, %s" % (v(vT), WS_CNT + 256 * C_SL1, v(vT)))
        e("v_mov_b32 %s, 1" % v(vU))
        self.signal(vT, vU, 8)
        self.stamp(3)
        if self.stop in ("a0", "a1"):
            self.wait_all()
            e("s_endpgm")
            return
        e("v_and_b32 %s, 15, v1" % v(vT))
        e("v_lshlrev_b32 %s, 8, %s" % (v(vT), v(vT)))
        e("v_add_u32 %s, %d, %s" % (v(vT), WS_CNT + 256 * C_S2, v(vT)))
        e("v_mov_b32 %s, 14" % v(vU))
        self.poll(vT, vU, vGO)
        self.stamp(8)
        e("s_lshr_b32 s%d, s%d, 1" % (sT0, sH))
        e("s_lshl_b32 s%d, s%d, 2" % (sT0, sT0))
        e("s_and_b32 s%d, s%d, 1" % (sT1, sH))
        e("s_add_u32 s%d, s%d, s%d" % (sT0, sT0, sT1))
        e("s_mul_i32 s%d, s%d, 28672" % (sT2, sT0))
        e("s_add_u32 s%d, s%d, %d" % (sT2, sT2, WS_HB))
        vL16 = 9
        e("v_lshlrev_b32 %s, 4, v1" % v(vL16))
        e("s_mul_i32 s%d, s%d, 7168" % (sT3, sWAVE))
        for blk in range(2):
            e("s_add_u32 s%d, s%d, s%d" % (sT4, sT2, sT3))
            if blk:
                e("s_add_u32 s%d, s%d, %d" % (sT4, sT4, 2 * 28672))
            e("s_add_u32 m0, s%d, %d" % (sT3, 28672 * blk))
            e("s_nop 0")
            for i in range(4):
                self.vmem("buffer_load_dwordx4 %s, %s, s%d offen offset:%d sc1 lds" % (v(vL16), srd(SRD_WS), sT4, 1024 * i), "hb")
            e("s_add_u32 s%d, s%d, 4096" % (sT4, sT4))
            e("s_add_u32 m0, s%d, %d" % (sT3, 28672 * blk + 4096))
            e("s_nop 0")
            for i in range(3):
                self.vmem("buffer_load_dwordx4 %s, %s, s%d offen offset:%d sc1 lds" % (v(vL16), srd(SRD_WS), sT4, 1024 * i), "hb")
        vA = 10
        e("v_lshrrev_b32 %s, 4, v1" % v(vT))
        e("v_bfe_u32 %s, v1, 2, 2" % v(vU))
        e("v_lshl_add_u32 %s, %s, 3, %s" % (v(vT), v(vT), v(vU)))
        e("v_lshlrev_b32 %s, 6, %s" % (v(vT), v(vT)))
        e("v_and_b32 %s, 3, v1" % v(vU))
        e("v_lshl_add_u32 %s, %s, 3, %s" % (v(vA), v(vU), v(vT)))
        e("s_lshr_b32 s%d, s%d, 1" % (sT4, sWAVE))
        e("s_mul_i32 s%d, s%d, 28672" % (sT4, sT4))
        e("s_and_b32 s%d, s%d, 1" % (sT5, sWAVE))
        e("s_lshl_b32 s%d, s%d, 5" % (sT5, sT5))
        e("s_add_u32 s%d, s%d, s%d" % (sT4, sT4, sT5))
        e("v_add_u32 %s, s%d, %s" % (v(vA), sT4, v(vA)))
        self.wait_vm("hb")
        e("s_barrier")
        for s in range(14):
            for ee in range(2):
                self.lds("ds_read_b64_tr_b16 %s, %s offset:%d" % (v(FR + 4 * s + 2 * ee, 2), v(vA), 2048 * s + 256 * ee), "f%d" % s)
        self.stats_mfma(lambda s: FR + 4 * s, ONES, GR, SM, lambda s: self.wait_lg("f%d" % s))
        PK = 28
        self.stats_finish(GR, SM, None, None, PK)
        e("s_lshr_b32 s%d, s%d, 1" % (sT4, sWAVE))
        e("s_lshl_b32 s%d, s%d, 1" % (sT4, sT4))
        e("s_add_u32 s%d, s%d, s%d" % (sT4, sT4, sT0))
        e("s_lshl_b32 s%d, s%d, 5" % (sT4, sT4))
        e("s_and_b32 s%d, s%d, 1" % (sT5, sWAVE))
        e("s_lshl_b32 s%d, s%d, 4" % (sT5, sT5))
        e("s_add_u32 s%d, s%d, s%d" % (sT4, sT4, sT5))
        e("s_lshl_b32 s%d, s%d, 2" % (sT4, sT4))
        e("s_add_u32 s%d, s%d, %d" % (sT4, sT4, WS_ST2))
        e("v_and_b32 %s, 15, v1" % v(vT))
        e("v_lshl_add_u32 %s, %s, 2, s%d" % (v(vT), v(vT), sT4))
        e("s_mov_b32 exec_lo, 0x00f0000f")
        e("s_mov_b32 exec_hi, 0xf0000f00")
        self.vmem("buffer_store_dword %s, %s, %s, 0 offen sc1" % (v(PK), v(vT), srd(SRD_WS)), "st")
        e("s_mov_b64 exec, -1")
        self.stamp(9)
        self.wait_all()
        e("s_endpgm")

    def stats_mfma(self, frag, ONES, GR, SM, pre):
        e = self.e
        for s in range(14):
            if pre:
                pre(s)
            f = frag(s)
            e("v_mfma_f32_16x16x32_bf16 %s, %s, %s, %s" % (v(GR, 4), v(f, 4), v(f, 4), "0" if s == 0 else v(GR, 4)))
            e("v_mfma_f32_16x16x32_bf16 %s, %s, %s, %s" % (v(SM, 4), v(ONES, 4), v(f, 4), "0" if s == 0 else v(SM, 4)))
        e("s_nop 7")

    def stats_finish(self, GR, SM, A_, B_, PK):
        e = self.e
        t0, t1, t2 = 11, 12, 13
        e("s_mov_b32 s%d, 0x22222222" % sT6)
        e("s_mov_b32 s%d, 0x22222222" % sT7)
        e("v_cndmask_b32 %s, %s, %s, s[%d:%d]" % (v(t0), v(GR), v(GR + 1), sT6, sT7))
        e("s_mov_b32 s%d, 0x44444444" % sT6)
        e("s_mov_b32 s%d, 0x44444444" % sT7)
        e("v_cndmask_b32 %s, %s, %s, s[%d:%d]" % (v(t0), v(t0), v(GR + 2), sT6, sT7))
        e("s_mov_b32 s%d, 0x88888888" % sT6)
        e("s_mov_b32 s%d, 0x88888888" % sT7)
        e("v_cndmask_b32 %s, %s, %s, s[%d:%d]" % (v(t0), v(t0), v(GR + 3), sT6, sT7))
        e("s_mov_b32 s%d, 0x3b124925" % sT6)
        e("v_mul_f32 %s, s%d, %s" % (v(t1), sT6, v(SM)))
        e("v_mul_f32 %s, s%d, %s" % (v(t0), sT6, v(t0)))
        e("v_fma_f32 %s, -%s, %s, %s" % (v(t0), v(t1), v(t1), v(t0)))
        e("v_max_f32 %s, 0, %s" % (v(t0), v(t0)))
        e("v_cvt_pk_bf16_f32 %s, %s, %s" % (v(t0), v(t0), v(t1)))
        e("v_and_b32 %s, 0xffff0000, %s" % (v(t1), v(t0)))
        e("v_lshlrev_b32 %s, 16, %s" % (v(t0), v(t0)))
        e("v_add_f32 %s, 0x3727c5ac, %s" % (v(t0), v(t0)))
        e("v_cvt_pk_bf16_f32 %s, %s, %s" % (v(t0), v(t0), v(t0)))
        e("v_lshlrev_b32 %s, 16, %s" % (v(t0), v(t0)))
        e("v_sqrt_f32 %s, %s" % (v(t0), v(t0)))
        e("s_nop 0")
        e("v_cvt_pk_bf16_f32 %s, %s, %s" % (v(t0), v(t0), v(t0)))
        if PK is not None:
            e("v_lshrrev_b32 %s, 16, %s" % (v(t2), v(t1)))
            e("v_and_b32 %s, 0xffff0000, %s" % (v(t0), v(t0)))
            e("v_or_b32 %s, %s, %s" % (v(PK), v(t0), v(t2)))
        else:
            e("v_lshlrev_b32 %s, 16, %s" % (v(t0), v(t0)))
            e("v_rcp_f32 %s, %s" % (v(A_), v(t0)))
            e("s_nop 0")
            e("v_mul_f32 %s, -%s, %s" % (v(B_), v(t1), v(A_)))

    def decode_bc(self):
        e = self.e
        e("s_and_b32 s%d, s2, 7" % sT0)
        e("s_lshr_b32 s%d, s2, 3" % sT1)
        e("s_mul_i32 s%d, s%d, 37" % (sT2, sT1))
        e("s_lshr_b32 s%d, s%d, 8" % (sT2, sT2))
        e("s_mul_i32 s%d, s%d, 7" % (sT3, sT2))
        e("s_sub_u32 s%d, s%d, s%d" % (sT3, sT1, sT3))
        e("s_lshr_b32 s%d, s%d, 1" % (sT4, sT0))
        e("s_lshl_b32 s%d, s%d, 2" % (sT4, sT4))
        e("s_add_u32 s%d, s%d, s%d" % (sBI, sT4, sT2))
        e("s_and_b32 s%d, s%d, 1" % (sT4, sT0))
        e("s_mul_i32 s%d, s%d, 7" % (sT4, sT4))
        e("s_add_u32 s%d, s%d, s%d" % (sBJ, sT4, sT3))
        e("s_lshl_b32 s%d, s%d, 2" % (sT4, sT0))
        e("s_add_u32 s%d, s%d, s%d" % (sT4, sT4, sT2))
        e("s_lshr_b32 s%d, s%d, 1" % (sCI, sT4))
        e("s_and_b32 s%d, s%d, 1" % (sCS, sT4))
        e("s_mov_b32 s%d, s%d" % (sCJ, sT3))

    def main_path(self):
        e = self.e
        self.decode_bc()
        self.stamp(0)
        self.phase_a0()
        self.w_stage_dma(0)
        self.wait_vm("go")
        self.t_pad()
        vGO, vZERO = 23, 58
        loop, done = self.newlabel("go"), self.newlabel("god")
        e("s_mov_b32 s%d, %d" % (sSPIN, SPIN_LIMIT))
        self.label(loop)
        e("v_cmp_eq_u32 vcc, 0, %s" % v(vGO))
        e("s_nop 4")
        e("s_cbranch_vccz %s" % done)
        e("buffer_load_dword %s, %s, %s, 0 offen sc1" % (v(vGO), v(vZERO), srd(SRD_DBG)))
        e("s_waitcnt vmcnt(0)")
        e("s_sub_u32 s%d, s%d, 1" % (sSPIN, sSPIN))
        e("s_cmp_lg_u32 s%d, 0" % sSPIN)
        e("s_cbranch_scc1 %s" % loop)
        self.label(done)
        e("s_barrier")
        vA, vOne = 5, 6
        e("s_lshl_b32 s%d, s%d, 8" % (sT0, sG0))
        e("s_add_u32 s%d, s%d, %d" % (sT0, sT0, WS_CNT + 256 * C_S1))
        e("v_mov_b32 %s, s%d" % (v(vA), sT0))
        e("v_mov_b32 %s, 1" % v(vOne))
        self.signal(vA, vOne, 1)
        self.stamp(3)
        if self.endif_stop("a0"):
            return False
        self.t_read()
        vZ, vZA = 5, 6
        e("v_mov_b32 %s, 0" % v(vZ))
        e("s_mul_i32 s%d, s%d, 4608" % (sT0, sCHL))
        e("s_lshl_b32 s%d, s%d, 8" % (sT1, sHALF))
        e("s_add_u32 s%d, s%d, s%d" % (sT0, sT0, sT1))
        e("s_add_u32 s%d, s%d, %d" % (sT0, sT0, L_X + 4096))
        e("v_lshl_add_u32 %s, v1, 2, s%d" % (v(vZA), sT0))
        self.lds("ds_write_b32 %s, %s" % (v(vZA), v(vZ)), "z")
        self.w_stage_read(0)
        self.wait_lg0()
        vA, vTg, vTmp = 5, 6, 8
        e("s_lshr_b32 s%d, s2, 5" % sT0)
        e("s_lshl_b32 s%d, s%d, 8" % (sT0, sT0))
        e("s_add_u32 s%d, s%d, %d" % (sT0, sT0, WS_CNT + 256 * C_S1))
        e("s_and_b32 s%d, s2, 7" % sT1)
        e("s_lshl_b32 s%d, s%d, 8" % (sT1, sT1))
        e("s_add_u32 s%d, s%d, %d" % (sT1, sT1, WS_CNT + 256 * C_SL1))
        e("v_mov_b32 %s, s%d" % (v(vA), sT0))
        e("v_mov_b32 %s, s%d" % (v(vTmp), sT1))
        e("v_cmp_eq_u32 vcc, 1, v1")
        e("v_mov_b32 %s, 32" % v(vTg))
        e("s_nop 0")
        e("v_cndmask_b32 %s, %s, %s, vcc" % (v(vA), v(vA), v(vTmp)))
        self.poll(vA, vTg, vTmp)
        self.stamp(4)
        self.phase_a1()
        self.wait_vm("hst")
        e("s_barrier")
        vA, vOne = 5, 6
        e("s_and_b32 s%d, s2, 15" % sT0)
        e("s_lshl_b32 s%d, s%d, 8" % (sT0, sT0))
        e("s_add_u32 s%d, s%d, %d" % (sT0, sT0, WS_CNT + 256 * C_S2))
        e("v_mov_b32 %s, s%d" % (v(vA), sT0))
        e("v_mov_b32 %s, 1" % v(vOne))
        self.signal(vA, vOne, 1)
        self.stamp(8)
        if self.endif_stop("a1"):
            return False
        return True

    def build(self):
        self.prologue()
        cont = self.main_path()
        if cont:
            from gen_bc import phase_b, phase_c
            phase_b(self)
            if not self.endif_stop("b"):
                phase_c(self)
                self.wait_all()
                self.e("s_endpgm")
        self.helper()
        self.label("L_end")
        self.e("s_endpgm")
        self.label("L_codeend")
        body = self.text()
        hdr = HEADER
        hdr += "; @launch grid=(256,1,1) block=(256,1,1) lds=%d\n" % LDS_BYTES
        hdr += '.amdgcn_target "amdgcn-amd-amdhsa--gfx950"\n.text\n.globl %s\n.p2align 8\n.type %s,@function\n%s:\n' % (NAME, NAME, NAME)
        tail = """
.section .rodata,"a"
.p2align 6
.amdhsa_kernel %s
  .amdhsa_next_free_vgpr 512
  .amdhsa_next_free_sgpr 102
  .amdhsa_accum_offset 256
  .amdhsa_group_segment_fixed_size 0
  .amdhsa_kernarg_size 104
  .amdhsa_user_sgpr_count 2
  .amdhsa_user_sgpr_kernarg_segment_ptr 1
  .amdhsa_system_sgpr_workgroup_id_x 1
.end_amdhsa_kernel
""" % NAME
        return hdr + body + tail, body


HEADER = """; Fused preLN -> H3 (shift conv, k*v, long causal conv, gate) -> preLN -> GLU FFN, one persistent launch.
"""

if __name__ == "__main__":
    import argparse
    ap = argparse.ArgumentParser()
    ap.add_argument("--stop", default=None)
    ap.add_argument("--stamps", action="store_true")
    ap.add_argument("-o", default="out.s")
    args = ap.parse_args()
    g = Gen(stop=args.stop, stamps=args.stamps)
    txt, body = g.build()
    open(args.o, "w").write(txt)
    check_hazards(body)
    print("wrote", args.o, len(txt), "bytes")
```

```python
from collections import deque
from gen import *
import gen as G_

vHTR0, vHTR2, vL16, vHST, vSTA, vT = 2, 3, 4, 5, 6, 7
vWDB = 8
vST, vS, vC1 = 13, 14, 15
FOLD = 16
CS = 20
vU, vW = 28, 29
ACC = [32, 64]
HF = 96
PK = 108
vWDO = 116
vCS0 = 120
L_RES = 151552
L_RESP = 28672
PART_STRIDE = 4352
sF = 52
sWD0, sWD1 = 53, 54
sHS = 55
NREG_UNITS = 10


def wdf(ks, ct):
    i = 4 * ks + ct
    if i < 8:
        return ("a", 224 + 4 * i)
    if i < 32:
        return ("v", 160 + 4 * (i - 8))
    if i < 40:
        return ("v", 128 + 4 * (i - 32))
    return ("a", 4 * (i - 40))


def rname(reg, n, off=0):
    k, b = reg
    return (a if k == "a" else v)(b + off, n)


class Q:
    def __init__(self, g):
        self.g = g
        self.o = deque()

    def op(self, line, cost=4, nb=0):
        self.o.append((cost, lambda: self.g.e(line), nb))

    def fn(self, fn, cost=4, nb=0):
        self.o.append((cost, fn, nb))

    def gap(self, budget, step):
        fresh = True
        while self.o and self.o[0][2] <= step and (self.o[0][0] <= budget or fresh):
            c, f, _ = self.o.popleft()
            f()
            budget -= c
            fresh = False

    def flush(self):
        while self.o:
            self.o.popleft()[1]()


def wd_dma(g, unit, n):
    e = g.e
    if n == 0:
        e("s_mul_i32 s%d, s%d, 401408" % (sWD0, sWAVE))
        e("s_lshl_b32 s%d, s%d, 7" % (sWD1, sCJ))
        e("s_add_u32 s%d, s%d, s%d" % (sWD0, sWD0, sWD1))
        if unit:
            e("s_add_u32 s%d, s%d, %d" % (sWD0, sWD0, unit * 28672))
        e("s_lshl_b32 s%d, s%d, 14" % (sWD1, sWAVE))
        e("s_add_u32 s%d, s%d, %d" % (sWD1, sWD1, L_WD + 4096 * (unit % 4)))
    e("s_mov_b32 m0, s%d" % sWD1)
    e("s_nop 0")
    g.vmem("buffer_load_dwordx4 %s, %s, s%d offen offset:%d lds" % (v(vWDO + n), srd(SRD_WD), sWD0, 1024 * n), "wd%d" % unit)


def wd_read(g, unit, i):
    ct, ee = i >> 1, i & 1
    if i == 0:
        g.wait_vm("wd%d" % unit)
    g.lds("ds_read_b64_tr_b16 %s, %s offset:%d" % (rname(wdf(unit, ct), 2, 2 * ee), v(vWDB + ct), 4096 * (unit % 4) + 1024 * ee), "wr%d" % unit)


def hb_dma(g, blk, n):
    e = g.e
    if n in (0, 4):
        e("s_lshl_b32 s%d, s%d, 2" % (sT4, sBI))
        e("s_add_u32 s%d, s%d, %d" % (sT4, sT4, blk))
        e("s_mul_i32 s%d, s%d, 28672" % (sT4, sT4))
        e("s_mul_i32 s%d, s%d, 7168" % (sT5, sWAVE))
        e("s_add_u32 s%d, s%d, s%d" % (sT4, sT4, sT5))
        e("s_add_u32 s%d, s%d, %d" % (sT4, sT4, WS_HB + (4096 if n == 4 else 0)))
        e("s_add_u32 s%d, s%d, %d" % (sT5, sT5, L_HB + 28672 * (blk % 3) + (4096 if n == 4 else 0)))
    e("s_mov_b32 m0, s%d" % sT5)
    e("s_nop 0")
    g.vmem("buffer_load_dwordx4 %s, %s, s%d offen offset:%d sc1 lds" % (v(vL16), srd(SRD_WS), sT4, 1024 * (n & 3)), "hb%d" % blk)


def res_dma(g, n):
    e = g.e
    if n == 0:
        e("v_lshrrev_b32 %s, 1, v1" % v(vU))
        e("v_lshlrev_b32 %s, 6, %s" % (v(vU), v(vU)))
        e("v_and_b32 %s, 1, v1" % v(vW))
        e("v_lshl_add_u32 %s, %s, 4, %s" % (v(vU), v(vW), v(vU)))
        e("s_lshl_b32 s%d, s%d, 2" % (sT0, sCI))
        e("s_add_u32 s%d, s%d, s%d" % (sT0, sT0, sWAVE))
        e("s_mul_i32 s%d, s%d, 28672" % (sT0, sT0))
        e("s_lshl_b32 s%d, s%d, 12" % (sT1, sCJ))
        e("s_add_u32 s%d, s%d, s%d" % (sT0, sT0, sT1))
        e("s_lshl_b32 s%d, s%d, 5" % (sT1, sCS))
        e("s_add_u32 s%d, s%d, s%d" % (sT0, sT0, sT1))
        e("s_add_u32 s%d, s%d, %d" % (sT0, sT0, WS_HB))
        e("s_lshl_b32 s%d, s%d, 11" % (sT1, sWAVE))
        e("s_add_u32 m0, s%d, %d" % (sT1, L_RES))
    else:
        e("s_add_u32 s%d, s%d, 2048" % (sT0, sT0))
        e("s_add_u32 m0, s%d, %d" % (sT1, L_RES + 1024))
    e("s_nop 0")
    g.vmem("buffer_load_dwordx4 %s, %s, s%d offen sc1 lds" % (v(vU), srd(SRD_WS), sT0), "res")


def flag_load(g, u):
    e = g.e
    e("s_lshl_b32 s%d, s%d, 2" % (sT2, sCI))
    e("s_add_u32 s%d, s%d, %d" % (sT2, sT2, C_S3 + u))
    e("s_lshl_b32 s%d, s%d, 8" % (sT2, sT2))
    e("s_add_u32 s%d, s%d, %d" % (sT2, sT2, WS_CNT))
    e("s_load_dword s%d, s[%d:%d], s%d glc" % (sF, SRD_WS, SRD_WS + 1, sT2))


def flag_check(g, u):
    e = g.e
    loop, ok = g.newlabel("fl"), g.newlabel("fo")
    e("s_waitcnt lgkmcnt(0)")
    g.lg = []
    e("s_cmp_ge_u32 s%d, 14" % sF)
    e("s_cbranch_scc1 %s" % ok)
    e("s_mov_b32 s%d, %d" % (sSPIN, SPIN_LIMIT))
    g.label(loop)
    e("s_sleep 1")
    e("s_load_dword s%d, s[%d:%d], s%d glc" % (sF, SRD_WS, SRD_WS + 1, sT2))
    e("s_waitcnt lgkmcnt(0)")
    e("s_cmp_ge_u32 s%d, 14" % sF)
    e("s_cbranch_scc1 %s" % ok)
    e("s_sub_u32 s%d, s%d, 1" % (sSPIN, sSPIN))
    e("s_cmp_lg_u32 s%d, 0" % sSPIN)
    e("s_cbranch_scc1 %s" % loop)
    g.label(ok)


def s3_signal(g, u):
    e = g.e
    e("s_lshl_b32 s%d, s%d, 2" % (sT0, sBI))
    e("s_add_u32 s%d, s%d, %d" % (sT0, sT0, C_S3 + u))
    e("s_lshl_b32 s%d, s%d, 8" % (sT0, sT0))
    e("s_add_u32 s%d, s%d, %d" % (sT0, sT0, WS_CNT))
    e("v_mov_b32 %s, s%d" % (v(vU), sT0))
    e("v_mov_b32 %s, 1" % v(vW))
    g.signal(vU, vW, 1)


def epilogue_items(g, q, p, nb):
    e = g.e
    acc = ACC[p & 1]

    def stats():
        g.wait_vm("st%d" % p)
        loop, ok = g.newlabel("stl"), g.newlabel("sto")
        e("s_mov_b32 s%d, %d" % (sSPIN, SPIN_LIMIT))
        g.label(loop)
        e("v_cmp_eq_u32 vcc, 0, %s" % v(vST))
        e("s_nop 4")
        e("s_cbranch_vccz %s" % ok)
        e("buffer_load_dword %s, %s, %s, 0 offen offset:%d sc1" % (v(vST), v(vSTA), srd(SRD_WS), 128 * p))
        e("s_waitcnt vmcnt(0)")
        e("s_sub_u32 s%d, s%d, 1" % (sSPIN, sSPIN))
        e("s_cmp_lg_u32 s%d, 0" % sSPIN)
        e("s_cbranch_scc1 %s" % loop)
        g.label(ok)
    q.fn(stats, 24, nb)
    q.op("v_and_b32 %s, 0xffff0000, %s" % (v(vS), v(vST)), nb=nb)
    q.op("v_and_b32 %s, 0xffff, %s" % (v(FOLD + 1), v(vST)), nb=nb)
    q.op("v_rcp_f32 %s, %s" % (v(vC1), v(vS)), 8, nb)
    q.op("v_xor_b32 %s, 0x8000, %s" % (v(FOLD + 1), v(FOLD + 1)), nb=nb)
    q.op("v_cndmask_b32 %s, 0, %s, s[%d:%d]" % (v(FOLD + 1), v(FOLD + 1), sEX, sEX + 1), nb=nb)
    q.op("v_lshl_or_b32 %s, %s, 16, %s" % (v(FOLD), v(FOLD + 1), v(FOLD + 1)), nb=nb)
    q.op("v_mul_f32 %s, 0xbfb8aa3b, %s" % (v(vC1), v(vC1)), nb=nb)
    q.op("s_nop 0", nb=nb)

    def fold():
        for ft in range(2):
            e("v_mfma_f32_32x32x16_bf16 %s, %s, %s, %s" % (v(acc + 16 * ft, 16), v(CS + 4 * ft, 4), v(FOLD, 4), v(acc + 16 * ft, 16)))
    q.fn(fold, 0, nb)
    for _ in range(4):
        q.fn(lambda: None, 100, nb)


def epilogue_valu(g, q, p, nb, direct=False):
    acc = ACC[p & 1]

    def put(line, cost=4):
        if direct:
            g.e(line)
        else:
            q.op(line, cost, nb)
    for ft in range(2):
        b = acc + 16 * ft
        for x in range(8):
            put("v_mul_f32 %s, %s, %s" % (v(b + x), v(b + x), v(vC1)))
        for x in range(8):
            put("v_exp_f32 %s, %s" % (v(b + x), v(b + x)), 8)
        for x in range(8):
            put("v_fma_f32 %s, %s, %s, %s" % (v(b + x), v(b + x), v(vS), v(vS)))
        for x in range(8):
            put("v_rcp_f32 %s, %s" % (v(b + x), v(b + x)), 8)
        for x in range(8):
            put("v_mul_f32 %s, %s, %s" % (v(b + 8 + x), v(b + 8 + x), v(b + x)))
        for i in range(4):
            put("v_cvt_pk_bf16_f32 %s, %s, %s" % (v(PK + 4 * ft + i), v(b + 8 + 2 * i), v(b + 9 + 2 * i)))

        def st(ft=ft):
            g.vmem("buffer_store_dwordx4 %s, %s, %s, s%d offen offset:%d sc1" % (v(PK + 4 * ft, 4), v(vHST), srd(SRD_WS), sT6, 512 * ft), "hst%d" % p)
        if ft == 0:
            def so():
                g.e("s_lshl_b32 s%d, s%d, 2" % (sT6, sBI))
                g.e("s_add_u32 s%d, s%d, %d" % (sT6, sT6, p))
                g.e("s_mul_i32 s%d, s%d, 114688" % (sT6, sT6))
                g.e("s_lshl_b32 s%d, s%d, 2" % (sT7, sBJ))
                g.e("s_add_u32 s%d, s%d, s%d" % (sT7, sT7, sWAVE))
                g.e("s_lshl_b32 s%d, s%d, 10" % (sT7, sT7))
                g.e("s_add_u32 s%d, s%d, s%d" % (sT6, sT6, sT7))
                g.e("s_add_u32 s%d, s%d, %d" % (sT6, sT6, WS_HF))
            if direct:
                so()
            else:
                q.fn(so, 20, nb)
        if direct:
            st()
        else:
            q.fn(st, 4, nb)


def wd_bases(g, dst):
    e = g.e
    t0, t1, t2 = vT, vU, vW
    e("v_lshrrev_b32 %s, 5, v1" % v(t0))
    e("v_bfe_u32 %s, v1, 4, 1" % v(t1))
    e("v_lshlrev_b32 %s, 4, %s" % (v(t0), v(t0)))
    e("v_lshl_add_u32 %s, %s, 2, %s" % (v(t0), v(t1), v(t0)))
    e("v_bfe_u32 %s, v1, 2, 2" % v(t2))
    e("v_add_u32 %s, %s, %s" % (v(t0), v(t0), v(t2)))
    e("v_lshlrev_b32 %s, 7, %s" % (v(t0), v(t0)))
    e("v_lshrrev_b32 %s, 1, %s" % (v(t2), v(t2)))
    e("v_lshl_add_u32 %s, %s, 1, %s" % (v(t1), v(t1), v(t2)))
    e("v_and_b32 %s, 3, v1" % v(t2))
    e("v_lshl_add_u32 %s, %s, 3, %s" % (v(t0), v(t2), v(t0)))
    e("s_lshl_b32 s%d, s%d, 14" % (sT0, sWAVE))
    e("s_add_u32 s%d, s%d, %d" % (sT0, sT0, L_WD))
    e("v_add_u32 %s, s%d, %s" % (v(t0), sT0, v(t0)))
    for ct in range(4):
        e("v_xor_b32 %s, %d, %s" % (v(t2), ct, v(t1)))
        e("v_lshl_add_u32 %s, %s, 5, %s" % (v(dst + ct), v(t2), v(t0)))


def hslot(u, s):
    return a((64 if (u & 1) == 0 else 120) + 4 * s, 4)


vLO = [2, 3, 5, 6]


def hso(g, u):
    e = g.e
    e("s_lshl_b32 s%d, s%d, 2" % (sHS, sCI))
    e("s_add_u32 s%d, s%d, %d" % (sHS, sHS, u))
    e("s_lshl_b32 s%d, s%d, 1" % (sHS, sHS))
    e("s_add_u32 s%d, s%d, s%d" % (sHS, sHS, sCS))
    e("s_mul_i32 s%d, s%d, 57344" % (sHS, sHS))
    e("s_mul_i32 s%d, s%d, 14336" % (sT3, sWAVE))
    e("s_add_u32 s%d, s%d, s%d" % (sHS, sHS, sT3))
    e("s_add_u32 s%d, s%d, %d" % (sHS, sHS, WS_HF))


def hload(g, u, s):
    g.vmem("buffer_load_dwordx4 %s, %s, %s, s%d offen offset:%d sc1" % (hslot(u, s), v(vLO[s >> 2]), srd(SRD_WS), sHS, 1024 * (s & 3)), "hf%d_%d" % (u, s))


def colsum(g, s0, s1, ONES):
    for s in range(s0, s1):
        for ft in range(2):
            g.e("v_mfma_f32_32x32x16_bf16 %s, %s, %s, %s" % (v(ACC[0] + 16 * ft, 16), v(ONES, 4), a(8 * s + 4 * ft, 4), "0" if s == s0 else v(ACC[0] + 16 * ft, 16)))


def phase_b(g):
    e = g.e
    g.c("==== B prologue ====")
    ONES = PK
    for i in range(4):
        e("v_mov_b32 %s, 0x3f803f80" % v(ONES + i))
    e("s_nop 1")
    w1 = g.w_stage_items(1)
    k = 0
    for s in range(14):
        for ft in range(2):
            e("v_mfma_f32_32x32x16_bf16 %s, %s, %s, %s" % (v(ACC[0] + 16 * ft, 16), v(ONES, 4), a(8 * s + 4 * ft, 4), "0" if s == 0 else v(ACC[0] + 16 * ft, 16)))
            w1[k]()
            k += 1
    e("v_lshlrev_b32 %s, 4, v1" % v(vL16))
    e("v_lshrrev_b32 %s, 5, v1" % v(vT))
    e("v_bfe_u32 %s, v1, 2, 2" % v(vU))
    e("v_lshl_add_u32 %s, %s, 3, %s" % (v(vT), v(vT), v(vU)))
    e("v_lshlrev_b32 %s, 6, %s" % (v(vHTR0), v(vT)))
    e("v_bfe_u32 %s, v1, 4, 1" % v(vT))
    e("v_lshl_add_u32 %s, %s, 5, %s" % (v(vHTR0), v(vT), v(vHTR0)))
    e("v_and_b32 %s, 3, v1" % v(vT))
    e("v_lshl_add_u32 %s, %s, 3, %s" % (v(vHTR0), v(vT), v(vHTR0)))
    e("v_bfe_u32 %s, v1, 4, 1" % v(vT))
    e("v_mul_u32_u24 %s, 57344, %s" % (v(vHST), v(vT)))
    e("v_lshrrev_b32 %s, 5, v1" % v(vT))
    e("v_lshl_add_u32 %s, %s, 8, %s" % (v(vHST), v(vT), v(vHST)))
    e("v_and_b32 %s, 15, v1" % v(vT))
    e("v_lshl_add_u32 %s, %s, 4, %s" % (v(vHST), v(vT), v(vHST)))
    e("v_and_b32 %s, 31, v1" % v(vT))
    e("s_lshl_b32 s%d, s%d, 9" % (sT0, sBI))
    e("s_add_u32 s%d, s%d, %d" % (sT0, sT0, WS_ST2))
    e("v_lshl_add_u32 %s, %s, 2, s%d" % (v(vSTA), v(vT), sT0))
    e("v_lshrrev_b32 %s, 3, v1" % v(vT))
    e("v_mul_u32_u24 %s, 896, %s" % (v(vWDO), v(vT)))
    e("v_lshrrev_b32 %s, 1, %s" % (v(vT), v(vT)))
    e("v_lshlrev_b32 %s, 1, %s" % (v(vT), v(vT)))
    e("v_and_b32 %s, 7, v1" % v(vU))
    e("v_xor_b32 %s, %s, %s" % (v(vU), v(vU), v(vT)))
    e("v_lshl_add_u32 %s, %s, 4, %s" % (v(vWDO), v(vU), v(vWDO)))
    for n in range(1, 4):
        e("v_add_u32 %s, %d, %s" % (v(vWDO + n), n * 6144, v(vWDO)))
    wd_bases(g, vWDB)
    e("s_mov_b32 s%d, -1" % sEX)
    e("s_mov_b32 s%d, 0" % (sEX + 1))
    e("v_mov_b32 %s, 0" % v(FOLD + 2))
    e("v_mov_b32 %s, 0" % v(FOLD + 3))
    e("v_mov_b32 %s, %s" % (v(vCS0), v(ACC[0])))
    e("v_mov_b32 %s, %s" % (v(vCS0 + 1), v(ACC[0] + 16)))
    e("v_mov_b32 %s, %s" % (v(122), v(vHTR0)))
    g.w_stage_read(1)
    e("v_mov_b32 %s, %s" % (v(vHTR0), v(122)))
    e("v_add_u32 %s, %d, %s" % (v(vHTR2), 57344, v(vHTR0)))
    e("v_lshlrev_b32 %s, 4, v1" % v(vL16))
    e("v_and_b32 %s, 15, v1" % v(vT))
    e("v_lshlrev_b32 %s, 8, %s" % (v(vT), v(vT)))
    e("v_add_u32 %s, %d, %s" % (v(vT), WS_CNT + 256 * C_S2, v(vT)))
    e("v_mov_b32 %s, 14" % v(vU))
    lab = g.newlabel("hb0")
    e("s_cmp_eq_u32 s%d, 0" % sWAVE)
    e("s_cbranch_scc0 %s" % lab)
    g.spin(vT, vU, vW)
    g.stamp(9)
    e("s_lshl_b32 s%d, s%d, 2" % (sT4, sBI))
    e("s_mul_i32 s%d, s%d, 28672" % (sT4, sT4))
    e("s_add_u32 s%d, s%d, %d" % (sT4, sT4, WS_HB))
    for grp in range(7):
        e("s_mov_b32 m0, %d" % (L_HB + 4096 * grp))
        e("s_nop 0")
        for i in range(4):
            e("buffer_load_dwordx4 %s, %s, s%d offen offset:%d sc1 lds" % (v(vL16), srd(SRD_WS), sT4, 1024 * i))
        if grp != 6:
            e("s_add_u32 s%d, s%d, 4096" % (sT4, sT4))
    g.label(lab)
    g.wait_lg("wr")
    colsum(g, 14, 28, ONES)
    e("s_nop 7")
    e("s_nop 3")
    for ft in range(2):
        cs = ACC[0] + 16 * ft
        d = CS + 4 * ft
        e("v_add_f32 %s, %s, %s" % (v(cs), v(cs), v(vCS0 + ft)))
        e("v_cvt_pk_bf16_f32 %s, %s, %s" % (v(vT), v(cs), v(cs)))
        e("v_lshlrev_b32 %s, 16, %s" % (v(vT), v(vT)))
        e("v_sub_f32 %s, %s, %s" % (v(vU), v(cs), v(vT)))
        e("v_cvt_pk_bf16_f32 %s, %s, %s" % (v(d), v(cs), v(vU)))
        e("v_and_b32 %s, 0xffff0000, %s" % (v(vT), v(d)))
        e("v_sub_f32 %s, %s, %s" % (v(vU), v(vU), v(vT)))
        e("v_cvt_pk_bf16_f32 %s, %s, 0" % (v(d + 1), v(vU)))
        e("v_cndmask_b32 %s, 0, %s, s[%d:%d]" % (v(d), v(d), sEX, sEX + 1))
        e("v_cndmask_b32 %s, 0, %s, s[%d:%d]" % (v(d + 1), v(d + 1), sEX, sEX + 1))
        e("v_mov_b32 %s, 0" % v(d + 2))
        e("v_mov_b32 %s, 0" % v(d + 3))
    g.wait_vm0()
    e("s_barrier")
    g.stamp(10)

    vm_ev = {}
    ld_ev = {}

    def put_vm(step, fn):
        while step in vm_ev:
            step += 1
        vm_ev[step] = fn
        return step
    for n in range(7):
        put_vm(0 + n, lambda n=n: hb_dma(g, 1, n))
    D = {0: 7, 1: 11, 2: 15, 3: 19, 4: 33, 5: 37, 6: 41, 7: 45, 8: 61, 9: 65, 10: 69, 11: 73, 12: 84, 13: 88}
    R = {0: 28, 1: 32, 2: 36, 3: 40, 4: 50, 5: 56, 6: 60, 7: 64, 8: 78, 9: 82}
    for n in range(7):
        put_vm(23 + n, lambda n=n: hb_dma(g, 2, n))
    for n in range(7):
        put_vm(54 + n, lambda n=n: hb_dma(g, 3, n))
    for unit in range(14):
        for n in range(4):
            def f(unit=unit, n=n):
                if n == 0 and unit >= 4:
                    g.wait_lg("wr%d" % (unit - 4))
                wd_dma(g, unit, n)
            st = put_vm(D[unit] + n, f)
            assert st == D[unit] + n, (unit, n, st)
    for unit in range(NREG_UNITS):
        for i in range(8):
            ld_ev.setdefault(R[unit] + (i >> 1), []).append(lambda unit=unit, i=i: wd_read(g, unit, i))
    for n in range(2):
        put_vm(94 + n, lambda n=n: res_dma(g, n))

    def hread(gs):
        u, s = divmod(gs, 28)
        if u > 3:
            return
        buf = u % 3
        base = vHTR2 if buf == 2 else vHTR0
        off = (28672 * buf if buf < 2 else 0) + 1024 * s
        for ee in range(2):
            g.lds("ds_read_b64_tr_b16 %s, %s offset:%d" % (v(HF + 4 * (gs % 3) + 2 * ee, 2), v(base), L_HB + off + 256 * ee), "h%d" % gs)

    hread(0)
    hread(1)
    for u in range(4):
        g.c("---- B block %d" % u)
        q = Q(g)
        acc = ACC[u & 1]
        if u >= 1:
            epilogue_items(g, q, u - 1, 3)
            epilogue_valu(g, q, u - 1, 3)
        for s in range(28):
            gs = 28 * u + s
            g.wait_lg("h%d" % gs)
            srcc = lambda ft: "0" if s == 0 else v(acc + 16 * ft, 16)
            e("v_mfma_f32_32x32x16_bf16 %s, %s, %s, %s" % (v(acc, 16), a(8 * s, 4), v(HF + 4 * (gs % 3), 4), srcc(0)))
            hread(gs + 2)
            q.gap(16, s)
            e("v_mfma_f32_32x32x16_bf16 %s, %s, %s, %s" % (v(acc + 16, 16), a(8 * s + 4, 4), v(HF + 4 * (gs % 3), 4), srcc(1)))
            budget = 20
            for f in ld_ev.get(gs, []):
                f()
                budget -= 4
            if gs in vm_ev:
                vm_ev[gs]()
                budget -= 12
            q.gap(budget, s) if budget > 0 else None
            if s == 21:
                g.vmem("buffer_load_dword %s, %s, %s, 0 offen offset:%d sc1" % (v(vST), v(vSTA), srd(SRD_WS), 128 * u), "st%d" % u)
            if u == 3 and s == 16:
                flag_load(g, 0)
            if s == 25:
                tags = []
                if u <= 2:
                    tags.append("hb%d" % (u + 1))
                if u >= 2:
                    tags.append("hst%d" % (u - 2))
                g.wait_vm(tags)
                e("s_barrier")
                if u >= 2:
                    s3_signal(g, u - 2)
        q.flush()
        g.stamp(11 + u)
    g.c("---- B tail / C head")
    for k in range(2):
        e("v_add_u32 %s, %d, %s" % (v(vLO[k]), 4096 * k, v(vL16)))
    flag_check(g, 0)
    hso(g, 0)
    e("v_add_u32 %s, %d, %s" % (v(123), 8192, v(vL16)))
    e("v_add_u32 %s, %d, %s" % (v(124), 12288, v(vL16)))
    for s in range(14):
        voff = [vLO[0], vLO[1], 123, 124][s >> 2]
        g.vmem("buffer_load_dwordx4 %s, %s, %s, s%d offen offset:%d sc1" % (hslot(0, s), v(voff), srd(SRD_WS), sHS, 1024 * (s & 3)), "hf0_%d" % s)
    for unit in range(NREG_UNITS, 14):
        for i in range(8):
            wd_read(g, unit, i)
    g.wait_vm(["hst2", "res"])
    e("s_barrier")
    s3_signal(g, 2)
    q = Q(g)
    epilogue_items(g, q, 3, 0)
    q.flush()
    e("s_nop 7")
    e("s_nop 3")
    epilogue_valu(g, q, 3, 0, direct=True)
    flag_load(g, 1)
    c_setup(g)
    g.wait_vm("hst3")
    e("s_barrier")
    s3_signal(g, 3)
    g.stamp(15)


vPW, vPR, vRW, vRR, vOUT, vRES = 13, 14, 15, 16, 17, 18
SUM = 64
RS = 84


def c_setup(g):
    e = g.e
    for k in range(4):
        e("v_add_u32 %s, %d, %s" % (v(vLO[k]), 4096 * k, v(vL16)))
    e("v_lshrrev_b32 %s, 4, v1" % v(vT))
    e("v_and_b32 %s, 15, v1" % v(vU))
    e("v_mul_u32_u24 %s, 272, %s" % (v(vW), v(vT)))
    e("v_lshl_add_u32 %s, %s, 4, %s" % (v(vW), v(vU), v(vW)))
    e("s_lshl_b32 s%d, s%d, 14" % (sT0, sWAVE))
    e("s_add_u32 s%d, s%d, %d" % (sT0, sT0, L_WD))
    e("v_add_u32 %s, s%d, %s" % (v(vPW), sT0, v(vW)))
    e("s_mul_i32 s%d, s%d, 1088" % (sT0, sWAVE))
    e("s_add_u32 s%d, s%d, %d" % (sT0, sT0, L_RESP))
    e("v_add_u32 %s, s%d, %s" % (v(vRW), sT0, v(vW)))
    e("v_mul_u32_u24 %s, 272, %s" % (v(vW), v(vU)))
    e("s_lshl_b32 s%d, s%d, 2" % (sT0, sWAVE))
    e("v_add_u32 %s, s%d, %s" % (v(vPR), sT0, v(vT)))
    e("v_lshl_add_u32 %s, %s, 4, %s" % (v(vW), v(vPR), v(vW)))
    e("s_lshl_b32 s%d, s%d, 7" % (sT0, sCI))
    e("s_lshl_b32 s%d, s%d, 4" % (sT1, sCS))
    e("s_add_u32 s%d, s%d, s%d" % (sT0, sT0, sT1))
    e("v_add_u32 %s, s%d, %s" % (v(vOUT), sT0, v(vPR)))
    e("v_mul_u32_u24 %s, 896, %s" % (v(vOUT), v(vOUT)))
    e("v_lshl_add_u32 %s, %s, 3, %s" % (v(vOUT), v(vU), v(vOUT)))
    e("s_lshl_b32 s%d, s%d, 7" % (sT0, sCJ))
    e("v_add_u32 %s, s%d, %s" % (v(vOUT), sT0, v(vOUT)))
    e("v_add_u32 %s, %d, %s" % (v(vPR), L_WD, v(vW)))
    e("v_add_u32 %s, %d, %s" % (v(vRR), L_RESP, v(vW)))
    e("v_lshrrev_b32 %s, 4, v1" % v(vT))
    e("v_bfe_u32 %s, v1, 2, 2" % v(vU))
    e("v_lshl_add_u32 %s, %s, 2, %s" % (v(vT), v(vT), v(vU)))
    e("s_lshl_b32 s%d, s%d, 4" % (sT0, sWAVE))
    e("v_add_u32 %s, s%d, %s" % (v(vT), sT0, v(vT)))
    e("v_lshlrev_b32 %s, 5, %s" % (v(vT), v(vT)))
    e("v_and_b32 %s, 3, v1" % v(vU))
    e("v_lshl_add_u32 %s, %s, 3, %s" % (v(vT), v(vU), v(vT)))
    e("v_add_u32 %s, %d, %s" % (v(vRES), L_RES, v(vT)))
    for u in range(4):
        g.lds("ds_read_b64_tr_b16 %s, %s offset:%d" % (v(RS + 2 * u, 2), v(vRES), 2048 * u), "rs%d" % u)
    for u in range(4):
        g.wait_lg("rs%d" % u)
        t = SUM + 4 * u
        e("v_lshlrev_b32 %s, 16, %s" % (v(t), v(RS + 2 * u)))
        e("v_and_b32 %s, 0xffff0000, %s" % (v(t + 1), v(RS + 2 * u)))
        e("v_lshlrev_b32 %s, 16, %s" % (v(t + 2), v(RS + 2 * u + 1)))
        e("v_and_b32 %s, 0xffff0000, %s" % (v(t + 3), v(RS + 2 * u + 1)))
        g.lds("ds_write_b128 %s, %s offset:%d" % (v(vRW), v(t, 4), PART_STRIDE * u), "rw")


def phase_c(g):
    e = g.e
    g.c("==== C ====")
    CACC = [32, 48]

    def finish_items(q, u, nb):
        buf = u & 1
        for w in range(4):
            q.fn(lambda w=w: g.lds("ds_read_b128 %s, %s offset:%d" % (v(SUM + 4 * w, 4), v(vPR), 16384 * w + PART_STRIDE * buf), "p%d" % w), 4, nb)
        q.fn(lambda: g.lds("ds_read_b128 %s, %s offset:%d" % (v(SUM + 16, 4), v(vRR), PART_STRIDE * u), "p4"), 4, nb)
        q.fn(lambda: g.wait_lg("p1"), 4, nb + 1)
        for i in range(4):
            q.op("v_add_f32 %s, %s, %s" % (v(SUM + i), v(SUM + i), v(SUM + 4 + i)), 4, nb)
        q.fn(lambda: g.wait_lg("p3"), 4, nb)
        for i in range(4):
            q.op("v_add_f32 %s, %s, %s" % (v(SUM + 8 + i), v(SUM + 8 + i), v(SUM + 12 + i)), 4, nb)
        q.fn(lambda: g.wait_lg("p4"), 4, nb)
        for i in range(4):
            q.op("v_add_f32 %s, %s, %s" % (v(SUM + i), v(SUM + i), v(SUM + 16 + i)), 4, nb)
        for i in range(4):
            q.op("v_add_f32 %s, %s, %s" % (v(SUM + i), v(SUM + i), v(SUM + 8 + i)), 4, nb)
        q.op("v_cvt_pk_bf16_f32 %s, %s, %s" % (v(SUM + 20), v(SUM), v(SUM + 1)), 4, nb)
        q.op("v_cvt_pk_bf16_f32 %s, %s, %s" % (v(SUM + 21), v(SUM + 2), v(SUM + 3)), 4, nb)
        q.op("s_mov_b32 s%d, %d" % (sT4, 32 * 896 * u), 4, nb)
        q.fn(lambda: g.vmem("buffer_store_dwordx2 %s, %s, %s, s%d offen" % (v(SUM + 20, 2), v(vOUT), srd(SRD_OUT), sT4), "out"), 4, nb)

    def pwrite(u, ct):
        g.lds("ds_write_b128 %s, %s offset:%d" % (v(vPW), v(CACC[u & 1] + 4 * ct, 4), 1088 * ct + PART_STRIDE * (u & 1)), "pw")

    for u in range(4):
        g.c("---- C chunk %d" % u)
        acc = CACC[u & 1]
        q = Q(g)
        if u < 3:
            flag_check(g, u + 1)
            hso(g, u + 1)
        if u >= 1:
            for ct in range(4):
                q.fn(lambda ct=ct: pwrite(u - 1, ct), 8, 1)

            def bar():
                g.wait_lg("pw")
                e("s_barrier")
            q.fn(bar, 8, 2)
            finish_items(q, u - 1, 3)
        for s in range(14):
            g.wait_vm("hf%d_%d" % (u, s))
            for ct in range(4):
                e("v_mfma_f32_16x16x32_bf16 %s, %s, %s, %s" % (v(acc + 4 * ct, 4), rname(wdf(s, ct), 4), hslot(u, s), "0" if s == 0 else v(acc + 4 * ct, 4)))
                if ct == 0 and u < 3:
                    hload(g, u + 1, s)
                else:
                    q.gap(8, s)
            if s == 9 and u < 2:
                flag_load(g, u + 2)
        q.flush()
        g.stamp(17 + u)
    e("s_nop 7")
    for ct in range(4):
        pwrite(3, ct)
    g.wait_lg0()
    e("s_barrier")
    q = Q(g)
    finish_items(q, 3, 0)
    q.flush()
```

```python
import sys, os
sys.path.insert(0, os.path.dirname(os.path.abspath(__file__)))
from asmlib import Asm, check_hazards

NAME = "sequential_preLN__ssm_conv_h3__glu_gated_glu__prompt_kernel"
S, D, F = 2048, 448, 1792

WS_KVT = 0x000000
WS_QT = 0x200000
WS_HB = 0x400000
WS_HF = 0x600000
WS_ST1 = 0xE00000
WS_ST2 = 0xE08000
WS_CNT = 0xE10000
WS_TS = 0xF00000
WS_SIZE = 0x1000000
C_S1, C_SL1, C_S2, C_S3 = 0, 8, 16, 32
N_CNT = 96

L_WST = 0
L_K = 114688
L_V = L_K + 9216
L_Q = L_V + 8192
L_TS = L_Q + 8192
L_X = L_K
L_EX = L_V
L_HB = 0
L_WD = 86016
LDS_BYTES = 163840

sWAVE = 3
SRD_WS, SRD_Q, SRD_K, SRD_V, SRD_SK, SRD_SH, SRD_WG, SRD_WU, SRD_WD, SRD_OUT, SRD_DBG = 4, 8, 12, 16, 20, 24, 28, 32, 36, 40, 44
sPC = 48
sD = 50
sT0, sT1, sT2, sT3, sT4, sT5, sT6, sT7 = 76, 77, 78, 79, 80, 81, 82, 83
sA0BASE = 84
sG0 = 85
sRB = 86
sBI, sBJ = 87, 88
sCI, sCS, sCJ = 89, 90, 91
sSPIN = 92
sM = 93
sEX = 94
sTS = 96
sHALF = 98
sCHL = 99
sWSO, sWM = 51, 75
vWS = 248


def srd(n):
    return "s[%d:%d]" % (n, n + 3)


def v(a, n=1):
    return "v%d" % a if n == 1 else "v[%d:%d]" % (a, a + n - 1)


def a(i, n=1):
    return "a%d" % i if n == 1 else "a[%d:%d]" % (i, i + n - 1)


SPIN_LIMIT = 40000


class Gen(Asm):
    def __init__(self, stop=None, stamps=False, tlbwarm=True, prefetch=True):
        super().__init__()
        self.stop = stop
        self.stamps = stamps
        self.tlbwarm = tlbwarm
        self.prefetch = prefetch

    def stamp(self, idx):
        if not self.stamps:
            return
        lab = self.newlabel("st")
        self.e("s_cmp_eq_u32 s%d, 0" % sWAVE)
        self.e("s_cbranch_scc0 %s" % lab)
        self.e("s_memrealtime s[%d:%d]" % (sTS, sTS + 1))
        self.e("s_memtime s[100:101]")
        self.e("s_waitcnt lgkmcnt(0)")
        self.e("v_mov_b32 v30, s%d" % sTS)
        self.e("s_lshl_b32 s%d, s2, 8" % (sTS + 1))
        self.e("s_add_u32 s%d, s%d, %d" % (sTS + 1, sTS + 1, WS_TS + 4 * idx))
        self.e("v_mov_b32 v31, s%d" % (sTS + 1))
        self.e("s_mov_b64 exec, 1")
        self.e("buffer_store_dword v30, v31, %s, 0 offen" % srd(SRD_WS))
        self.e("v_mov_b32 v30, s100")
        self.e("s_nop 1")
        self.e("buffer_store_dword v30, v31, %s, 0 offen offset:128" % srd(SRD_WS))
        self.e("s_mov_b64 exec, -1")
        self.label(lab)

    def spin(self, vaddr, vtarget, vtmp):
        loop = self.newlabel("ploop")
        done = self.newlabel("pdone")
        self.e("s_mov_b32 s%d, %d" % (sSPIN, SPIN_LIMIT))
        self.label(loop)
        self.e("buffer_load_dword %s, %s, %s, 0 offen sc1" % (v(vtmp), v(vaddr), srd(SRD_WS)))
        self.e("s_waitcnt vmcnt(0)")
        self.e("v_cmp_lt_u32 vcc, %s, %s" % (v(vtmp), v(vtarget)))
        self.e("s_nop 4")
        self.e("s_cbranch_vccz %s" % done)
        self.e("s_sub_u32 s%d, s%d, 1" % (sSPIN, sSPIN))
        self.e("s_cmp_lg_u32 s%d, 0" % sSPIN)
        self.e("s_cbranch_scc0 %s" % done)
        self.e("s_sleep 1")
        self.e("s_branch %s" % loop)
        self.label(done)

    def poll(self, vaddr, vtarget, vtmp):
        skip = self.newlabel("pskip")
        self.e("s_cmp_eq_u32 s%d, 0" % sWAVE)
        self.e("s_cbranch_scc0 %s" % skip)
        self.spin(vaddr, vtarget, vtmp)
        self.label(skip)
        self.e("s_barrier")

    def signal(self, vaddr, vone, nlanes):
        skip = self.newlabel("sig")
        self.e("s_cmp_eq_u32 s%d, 0" % sWAVE)
        self.e("s_cbranch_scc0 %s" % skip)
        self.e("s_mov_b64 exec, %d" % ((1 << nlanes) - 1))
        self.e("buffer_atomic_add %s, %s, %s, 0 offen sc1" % (v(vone), v(vaddr), srd(SRD_WS)))
        self.e("s_mov_b64 exec, -1")
        self.label(skip)

    def endif_stop(self, name):
        if self.stop == name:
            self.wait_all()
            self.e("s_endpgm")
            return True
        return False

    def prologue(self):
        e = self.e
        e("s_cmp_ge_u32 s2, 256")
        e("s_cbranch_scc1 L_end")
        e("s_load_dwordx4 s[52:55], s[0:1], 0")
        e("s_load_dwordx4 s[56:59], s[0:1], 16")
        e("s_load_dwordx4 s[60:63], s[0:1], 32")
        e("s_load_dwordx4 s[64:67], s[0:1], 56")
        e("s_load_dwordx4 s[68:71], s[0:1], 72")
        e("s_load_dwordx4 s[72:75], s[0:1], 88")
        e("s_getpc_b64 s[%d:%d]" % (sPC, sPC + 1))
        self.label("L_pc")
        e("v_and_b32 v1, 63, v0")
        e("v_lshrrev_b32 v2, 6, v0")
        e("s_nop 0")
        e("v_readfirstlane_b32 s%d, v2" % sWAVE)
        e("s_waitcnt lgkmcnt(0)")

        def mk(dst, src, size):
            e("s_mov_b32 s%d, s%d" % (dst, src))
            e("s_mov_b32 s%d, s%d" % (dst + 1, src + 1))
            e("s_mov_b32 s%d, %d" % (dst + 2, size))
            e("s_mov_b32 s%d, 0x20000" % (dst + 3))
        mk(SRD_Q, 52, S * D * 2)
        mk(SRD_K, 54, S * D * 2)
        mk(SRD_V, 56, S * D * 2)
        mk(SRD_SH, 58, D * 4 * 2)
        mk(SRD_SK, 60, S * D * 2)
        mk(SRD_WG, 64, D * F * 2)
        mk(SRD_WU, 66, D * F * 2)
        mk(SRD_WD, 68, D * F * 2)
        e("s_sub_u32 s%d, s%d, 1024" % (SRD_WU, SRD_WU))
        e("s_subb_u32 s%d, s%d, 0" % (SRD_WU + 1, SRD_WU + 1))
        e("s_add_u32 s%d, s%d, 1024" % (SRD_WU + 2, SRD_WU + 2))
        mk(SRD_OUT, 70, S * D * 2)
        mk(SRD_DBG, 72, 256)
        mk(SRD_WS, 74, WS_SIZE)
        lab = self.newlabel("nowarm")
        e("s_lshr_b32 s%d, s2, 3" % sT0)
        e("s_cmp_lt_u32 s%d, 4" % sT0)
        e("s_cbranch_scc0 %s" % lab)
        e("s_lshl_b32 s%d, s%d, 2" % (sT0, sT0))
        e("s_add_u32 s%d, s%d, s%d" % (sT0, sT0, sWAVE))
        e("s_mul_i32 s%d, s%d, (L_codeend-L_pc+15)/16" % (sT0, sT0))
        e("v_lshlrev_b32 v2, 5, v1")
        e("v_add_u32 v2, s%d, v2" % sT0)
        e("v_min_u32 v2, L_codeend-L_pc-4, v2")
        e("v_and_b32 v2, -4, v2")
        e("global_load_dword v253, v2, s[%d:%d]" % (sPC, sPC + 1))
        self.label(lab)
        e("s_cmp_ge_u32 s2, 224")
        e("s_cbranch_scc1 L_helper")

    def phase_a0(self):
        e = self.e
        self.c("==== A0 ====")
        e("s_mul_i32 s%d, s2, 293" % sRB)
        e("s_lshr_b32 s%d, s%d, 11" % (sRB, sRB))
        e("s_mul_i32 s%d, s%d, 7" % (sT0, sRB))
        e("s_sub_u32 s%d, s2, s%d" % (sG0, sT0))
        e("s_mul_i32 s%d, s%d, %d" % (sA0BASE, sRB, 64 * 896))
        e("s_lshl_b32 s%d, s%d, 7" % (sT0, sG0))
        e("s_add_u32 s%d, s%d, s%d" % (sA0BASE, sA0BASE, sT0))
        vP, vOff, vOffH, vT = 4, 5, 6, 7
        e("v_lshrrev_b32 %s, 4, v1" % v(vT))
        e("v_and_b32 %s, 1, %s" % (v(vT), v(vT)))
        e("v_lshlrev_b32 %s, 1, %s" % (v(vT), v(vT)))
        e("v_and_b32 %s, 7, v1" % v(vP))
        e("v_xor_b32 %s, %s, %s" % (v(vP), v(vP), v(vT)))
        e("v_lshlrev_b32 %s, 4, %s" % (v(vP), v(vP)))
        e("v_lshrrev_b32 %s, 3, v1" % v(vT))
        e("v_mul_u32_u24 %s, 896, %s" % (v(vT), v(vT)))
        e("v_add_u32 %s, %s, %s" % (v(vP), v(vP), v(vT)))
        e("s_and_b32 s%d, s%d, 1" % (sT0, sWAVE))
        e("s_lshl_b32 s%d, s%d, 6" % (sT0, sT0))
        e("v_xor_b32 %s, s%d, %s" % (v(vOff), sT0, v(vP)))
        e("v_xor_b32 %s, 64, %s" % (v(vOffH), v(vP)))
        e("s_cmp_eq_u32 s%d, 0" % sRB)
        e("s_cselect_b32 s%d, 0x80000000, 0" % sT1)
        e("v_add_u32 %s, s%d, %s" % (v(vOffH), sT1, v(vOffH)))
        e("s_sub_u32 s%d, s%d, 7168" % (sT2, sA0BASE))
        e("s_cmp_eq_u32 s%d, 0" % sRB)
        e("s_cselect_b32 s%d, 0, s%d" % (sT2, sT2))
        e("s_mul_i32 s%d, s%d, 7168" % (sT3, sWAVE))
        e("s_add_u32 s%d, s%d, s%d" % (sT3, sT3, sA0BASE))
        e("s_add_u32 s%d, s%d, %d" % (sT4, sT3, 4 * 7168))
        e("s_lshl_b32 s%d, s%d, 10" % (sT5, sWAVE))

        def dma(srdn, voff, soff, ldsbase, addw=True):
            if addw:
                e("s_add_u32 m0, s%d, %d" % (sT5, ldsbase))
            else:
                e("s_mov_b32 m0, %d" % ldsbase)
            e("s_nop 0")
            self.vmem("buffer_load_dwordx4 %s, %s, s%d offen lds" % (v(voff), srd(srdn), soff), "a0")
        dma(SRD_K, vOffH, sT2, L_K, addw=False)
        dma(SRD_K, vOff, sT3, L_K + 1024)
        dma(SRD_K, vOff, sT4, L_K + 5 * 1024)
        dma(SRD_V, vOff, sT3, L_V)
        dma(SRD_V, vOff, sT4, L_V + 4 * 1024)
        dma(SRD_Q, vOff, sT3, L_Q)
        dma(SRD_Q, vOff, sT4, L_Q + 4 * 1024)
        vCH, vSK = 8, 10
        e("s_lshl_b32 s%d, s%d, 6" % (sT0, sG0))
        e("s_lshl_b32 s%d, s%d, 4" % (sT1, sWAVE))
        e("s_add_u32 s%d, s%d, s%d" % (sT0, sT0, sT1))
        e("v_and_b32 %s, 15, v1" % v(vCH))
        e("v_add_u32 %s, s%d, %s" % (v(vCH), sT0, v(vCH)))
        e("v_lshlrev_b32 %s, 3, %s" % (v(vT), v(vCH)))
        self.vmem("buffer_load_dwordx2 %s, %s, %s, 0 offen" % (v(vSK, 2), v(vT), srd(SRD_SH)), "a0")

        if self.tlbwarm:
            self.c("touch every page that is used later (address translation warm-up)")
            vZ = 59
            e("v_mov_b32 %s, 0" % v(vZ))
            e("s_mov_b64 exec, 1")
            for r in (SRD_WG, SRD_WD, SRD_OUT):
                e("buffer_load_dword v252, %s, %s, 0 offen" % (v(vZ), srd(r)))
            e("v_mov_b32 %s, 1024" % v(vZ))
            e("buffer_load_dword v252, %s, %s, 0 offen" % (v(vZ), srd(SRD_WU)))
            e("s_mov_b64 exec, 0xff")
            e("v_lshlrev_b32 %s, 21, v1" % v(vZ))
            e("buffer_load_dword v252, %s, %s, 0 offen" % (v(vZ), srd(SRD_WS)))
            e("s_mov_b64 exec, -1")
            self.vm += ["tlb"] * 5
        self.c("T staging DMA: wave w -> channel 2*id + (w>>1), copy w&1")
        e("s_lshr_b32 s%d, s%d, 1" % (sCHL, sWAVE))
        e("s_and_b32 s%d, s%d, 1" % (sHALF, sWAVE))
        e("s_lshl_b32 s%d, s2, 1" % sT0)
        e("s_add_u32 s%d, s%d, s%d" % (sT0, sT0, sCHL))
        e("s_lshl_b32 s%d, s%d, 12" % (sT0, sT0))
        e("s_lshl_b32 s%d, s%d, 1" % (sT1, sHALF))
        e("s_add_u32 s%d, s%d, s%d" % (sT1, sT0, sT1))
        e("s_mul_i32 s%d, s%d, 4160" % (sT2, sWAVE))
        e("s_add_u32 s%d, s%d, %d" % (sT2, sT2, L_TS + 32))
        e("s_mov_b32 m0, s%d" % sT2)
        vL16 = 9
        e("v_lshlrev_b32 %s, 4, v1" % v(vL16))
        for i in range(4):
            self.vmem("buffer_load_dwordx4 %s, %s, s%d offen offset:%d lds" % (v(vL16), srd(SRD_SK), sT1, 1024 * i), "ts")
        vH0 = 12
        e("v_mov_b32 %s, s%d" % (v(vT), sT0))
        self.vmem("buffer_load_ushort %s, %s, %s, 0 offen" % (v(vH0), v(vT), srd(SRD_SK)), "ts")
        e("s_lshl_b32 s%d, s2, 2" % sT3)
        e("s_load_dword s%d, s[62:63], s%d" % (sD, sT3))

        vTR, vTRH, vG, vR = 13, 14, 15, 16
        e("v_lshrrev_b32 %s, 4, v1" % v(vG))
        e("v_bfe_u32 %s, v1, 2, 2" % v(vR))
        e("v_lshrrev_b32 %s, 1, %s" % (v(vT), v(vR)))
        e("v_and_b32 %s, 1, %s" % (v(vTR), v(vG)))
        e("v_lshl_or_b32 %s, %s, 1, %s" % (v(vT), v(vTR), v(vT)))
        e("v_xor_b32 %s, s%d, %s" % (v(vT), sWAVE, v(vT)))
        e("v_lshlrev_b32 %s, 5, %s" % (v(vT), v(vT)))
        e("v_lshl_add_u32 %s, %s, 3, %s" % (v(vTR), v(vG), v(vR)))
        e("v_lshl_add_u32 %s, %s, 7, %s" % (v(vTR), v(vTR), v(vT)))
        e("v_and_b32 %s, 3, v1" % v(vT))
        e("v_lshl_add_u32 %s, %s, 3, %s" % (v(vTR), v(vT), v(vTR)))
        e("v_add_u32 %s, %d, %s" % (v(vTR), L_K, v(vTR)))
        e("v_xor_b32 %s, 64, %s" % (v(vTRH), v(vTR)))
        vSKV, vSQ = 17, 18
        e("s_lshl_b32 s%d, s%d, 7" % (sT0, sRB))
        e("v_lshlrev_b32 %s, 12, %s" % (v(vSQ), v(vCH)))
        e("v_lshlrev_b32 %s, 4, %s" % (v(vT), v(vG)))
        e("s_sub_u32 s%d, %d, s%d" % (sT1, WS_KVT + 4080 - 64, sT0))
        e("v_add_u32 %s, s%d, %s" % (v(vSKV), sT1, v(vSQ)))
        e("v_sub_u32 %s, %s, %s" % (v(vSKV), v(vSKV), v(vT)))
        e("s_add_u32 s%d, s%d, %d" % (sT1, sT0, WS_QT))
        e("v_add3_u32 %s, %s, %s, s%d" % (v(vSQ), v(vSQ), v(vT), sT1))
        self.wait_vm("a0")
        e("s_waitcnt lgkmcnt(0)")
        self.lg = []
        e("s_lshl_b32 s%d, s%d, 16" % (sT0, sD))
        e("s_and_b32 s%d, s%d, 0xffff0000" % (sT1, sD))
        e("s_cmp_eq_u32 s%d, 0" % sCHL)
        e("s_cselect_b32 s%d, s%d, s%d" % (sD, sT0, sT1))
        e("s_barrier")
        self.stamp(1)

        KH = [24, 34]
        KM = [26, 36]
        VV = [40, 44]
        QQ = [48, 52]
        for rho in range(2):
            self.lds("ds_read_b64_tr_b16 %s, %s offset:%d" % (v(KH[rho], 2), v(vTRH), 512 + 4096 * rho), "k%d" % rho)
            self.lds("ds_read_b64_tr_b16 %s, %s offset:%d" % (v(KM[rho], 2), v(vTR), 1024 + 4096 * rho), "k%d" % rho)
            self.lds("ds_read_b64_tr_b16 %s, %s offset:%d" % (v(KM[rho] + 2, 2), v(vTR), 1024 + 512 + 4096 * rho), "k%d" % rho)
            self.lds("ds_read_b64_tr_b16 %s, %s offset:%d" % (v(VV[rho], 2), v(vTR), L_V - L_K + 4096 * rho), "v%d" % rho)
            self.lds("ds_read_b64_tr_b16 %s, %s offset:%d" % (v(VV[rho] + 2, 2), v(vTR), L_V - L_K + 512 + 4096 * rho), "v%d" % rho)
        for rho in range(2):
            self.lds("ds_read_b64_tr_b16 %s, %s offset:%d" % (v(QQ[rho], 2), v(vTR), L_Q - L_K + 4096 * rho), "q")
            self.lds("ds_read_b64_tr_b16 %s, %s offset:%d" % (v(QQ[rho] + 2, 2), v(vTR), L_Q - L_K + 512 + 4096 * rho), "q")
        CA, CB = 21, 22
        e("v_alignbit_b32 %s, %s, %s, 16" % (v(CA), v(vSK), v(vSK)))
        e("v_alignbit_b32 %s, %s, %s, 16" % (v(CB), v(vSK + 1), v(vSK + 1)))
        MM = 56
        KS = 64
        VF = 72
        OUTR = [80, 84]
        for rho in range(2):
            self.wait_lg("v%d" % rho)
            Dw = [KH[rho], KH[rho] + 1, KM[rho], KM[rho] + 1, KM[rho] + 2, KM[rho] + 3]
            for i in range(5):
                e("v_alignbit_b32 %s, %s, %s, 16" % (v(MM + i), v(Dw[i + 1]), v(Dw[i])))
            for t in range(8):
                if t & 1:
                    p0, p1 = Dw[2 + (t >> 1)], Dw[1 + (t >> 1)]
                else:
                    p0, p1 = MM + 1 + (t >> 1), MM + (t >> 1)
                e("v_dot2_f32_bf16 %s, %s, %s, 0" % (v(KS + t), v(p1), v(CB)))
            for t in range(8):
                if t & 1:
                    p0 = Dw[2 + (t >> 1)]
                else:
                    p0 = MM + 1 + (t >> 1)
                e("v_dot2_f32_bf16 %s, %s, %s, %s" % (v(KS + t), v(p0), v(CA), v(KS + t)))
            for t in range(8):
                src = VV[rho] + (t >> 1)
                if t & 1:
                    e("v_and_b32 %s, 0xffff0000, %s" % (v(VF + t), v(src)))
                else:
                    e("v_lshlrev_b32 %s, 16, %s" % (v(VF + t), v(src)))
            for t in range(8):
                e("v_mul_f32 %s, %s, %s" % (v(KS + t), v(KS + t), v(VF + t)))
            for i in range(4):
                e("v_cvt_pk_bf16_f32 %s, %s, %s" % (v(OUTR[rho] + i), v(KS + 7 - 2 * i), v(KS + 6 - 2 * i)))
            self.vmem("buffer_store_dwordx4 %s, %s, %s, 0 offen offset:%d sc1" % (v(OUTR[rho], 4), v(vSKV), srd(SRD_WS), 64 if rho == 0 else 0), "a0st")
        self.wait_lg("q")
        for rho in range(2):
            self.vmem("buffer_store_dwordx4 %s, %s, %s, 0 offen offset:%d sc1" % (v(QQ[rho], 4), v(vSQ), srd(SRD_WS), 64 * rho), "a0st")
        vGO, vZERO = 23, 58
        e("v_mov_b32 %s, 0" % v(vZERO))
        self.vmem("buffer_load_dword %s, %s, %s, 0 offen sc1" % (v(vGO), v(vZERO), srd(SRD_DBG)), "go")
        self.stamp(2)

    def t_pad(self):
        e = self.e
        vH0, vZ, vZA = 12, 19, 20
        e("v_lshlrev_b32 %s, 16, %s" % (v(vH0), v(vH0)))
        e("v_cmp_eq_u32 vcc, 7, v1")
        e("s_nop 3")
        e("s_cmp_eq_u32 s%d, 1" % sHALF)
        e("s_cselect_b64 s[%d:%d], vcc, 0" % (sEX, sEX + 1))
        e("v_mov_b32 %s, 0" % v(vZ))
        e("s_nop 1")
        e("v_cndmask_b32 %s, %s, %s, s[%d:%d]" % (v(vZ), v(vZ), v(vH0), sEX, sEX + 1))
        e("s_mul_i32 s%d, s%d, 4160" % (sT2, sWAVE))
        e("s_add_u32 s%d, s%d, %d" % (sT2, sT2, L_TS))
        e("v_lshl_add_u32 %s, v1, 2, s%d" % (v(vZA), sT2))
        e("s_mov_b64 exec, 0xff")
        self.lds("ds_write_b32 %s, %s" % (v(vZA), v(vZ)), "z")
        e("s_mov_b64 exec, -1")
        self.wait_lg0()

    def w_stage_setup(self):
        e = self.e
        vT = 7
        e("v_lshrrev_b32 %s, 2, v1" % v(vT))
        e("v_mul_u32_u24 %s, 3584, %s" % (v(vT), v(vT)))
        e("v_and_b32 %s, 3, v1" % v(vWS))
        e("v_xor_b32 %s, 2, %s" % (v(vWS + 1), v(vWS)))
        e("v_lshl_add_u32 %s, %s, 4, %s" % (v(vWS), v(vWS), v(vT)))
        e("v_lshl_add_u32 %s, %s, 4, %s" % (v(vWS + 1), v(vWS + 1), v(vT)))
        e("v_add_u32 %s, %d, %s" % (v(vWS + 2), 57344 - 2048, v(vWS)))
        e("v_add_u32 %s, %d, %s" % (v(vWS + 3), 57344 - 2048, v(vWS + 1)))

    def w_stage_items(self, rnd):
        e = self.e
        items = []

        def setup():
            e("s_lshl_b32 s%d, s%d, 8" % (sWSO, sBJ))
            e("s_lshl_b32 s%d, s%d, 6" % (sWM, sWAVE))
            e("s_add_u32 s%d, s%d, s%d" % (sWSO, sWSO, sWM))
            if rnd:
                e("s_add_u32 s%d, s%d, %d" % (sWSO, sWSO, 14 * rnd * 57344))
            e("s_mul_i32 s%d, s%d, 28672" % (sWM, sWAVE))
            if L_WST:
                e("s_add_u32 s%d, s%d, %d" % (sWM, sWM, L_WST))
            e("s_mov_b32 m0, s%d" % sWM)
        for grp in range(7):
            for n in range(4):
                def one(grp=grp, n=n):
                    if grp == 0 and n == 0:
                        setup()
                        e("s_nop 0")
                    elif n == 0:
                        e("s_add_u32 s%d, s%d, 4096" % (sWM, sWM))
                        e("s_mov_b32 m0, s%d" % sWM)
                        e("s_add_u32 s%d, s%d, %d" % (sWSO, sWSO, 2 * 57344))
                    else:
                        pass
                    self.vmem("buffer_load_dwordx4 %s, %s, s%d offen offset:%d lds" % (v(vWS + (n & 1) + 2 * (n >> 1)), srd(SRD_WG if (n & 1) == 0 else SRD_WU), sWSO, 1024 * n), "w%d" % rnd)
                items.append(one)
        return items

    def w_stage_read(self, rnd):
        e = self.e
        self.c("W staging -> AGPR round %d" % rnd)
        vB0, vB1, vT, vU = 2, 3, 7, 4
        e("v_bfe_u32 %s, v1, 4, 1" % v(vT))
        e("v_lshrrev_b32 %s, 5, v1" % v(vU))
        e("v_lshlrev_b32 %s, 3, %s" % (v(vU), v(vU)))
        e("v_bfe_u32 %s, v1, 2, 2" % v(vB0))
        e("v_add_u32 %s, %s, %s" % (v(vU), v(vU), v(vB0)))
        e("v_lshlrev_b32 %s, 6, %s" % (v(vU), v(vU)))
        e("v_and_b32 %s, 3, v1" % v(vB0))
        e("v_lshl_add_u32 %s, %s, 3, %s" % (v(vU), v(vB0), v(vU)))
        e("v_mul_u32_u24 %s, 1056, %s" % (v(vT), v(vT)))
        e("s_mul_i32 s%d, s%d, 28672" % (sT0, sWAVE))
        e("v_add3_u32 %s, %s, %s, s%d" % (v(vB0), v(vU), v(vT), sT0))
        e("v_xor_b32 %s, 32, %s" % (v(vB1), v(vB0)))
        self.wait_vm("w%d" % rnd)
        for s in range(14):
            for ft in range(2):
                base = 8 * (14 * rnd + s) + 4 * ft
                for ee in range(2):
                    self.lds("ds_read_b64_tr_b16 %s, %s offset:%d" % (a(base + 2 * ee, 2), v(vB0 if ft == 0 else vB1), L_WST + 2048 * s + 256 * ee), "wr")

    def t_read(self):
        e = self.e
        self.c("T fragments -> a112..a239")
        vB, vT, vU = 8, 7, 4
        e("v_and_b32 %s, 15, v1" % v(vT))
        e("v_and_b32 %s, 1, %s" % (v(vU), v(vT)))
        e("v_add_u32 %s, %s, %s" % (v(vT), v(vT), v(vU)))
        e("v_lshrrev_b32 %s, 4, v1" % v(vB))
        e("v_lshl_add_u32 %s, %s, 3, %s" % (v(vT), v(vB), v(vT)))
        e("v_lshlrev_b32 %s, 1, %s" % (v(vT), v(vT)))
        e("v_xor_b32 %s, 1, %s" % (v(vU), v(vU)))
        e("v_mul_u32_u24 %s, 4160, %s" % (v(vU), v(vU)))
        e("s_mul_i32 s%d, s%d, 8320" % (sT0, sCHL))
        e("s_lshl_b32 s%d, s%d, 8" % (sT1, sHALF))
        e("s_add_u32 s%d, s%d, s%d" % (sT0, sT0, sT1))
        e("s_add_u32 s%d, s%d, %d" % (sT0, sT0, L_TS))
        e("v_add3_u32 %s, %s, %s, s%d" % (v(vB), v(vT), v(vU), sT0))
        for i in range(1, 4):
            e("v_add_u32 %s, %d, %s" % (v(vB + i), 1024 * i, v(vB)))
        for rr in range(4):
            for q in range(8):
                base = 112 + 4 * (8 * rr + q)
                o = 128 * (q & 1) + 16 * rr
                for hh in range(2):
                    self.lds("ds_read2_b32 %s, %s offset0:%d offset1:%d" % (a(base + 2 * hh, 2), v(vB + (q >> 1)), o + 2 * hh, o + 2 * hh + 1), "t")

    def phase_a1(self):
        e = self.e
        self.c("==== A1 ====")
        ACC = 32
        XF = [64, 96]
        QR, KVR, AR, BR = 128, 136, 144, 160
        LN, KD, QF = 176, 192, 208
        Y = 224
        vT, vU = 7, 4
        vL16 = 9
        e("v_lshlrev_b32 %s, 4, v1" % v(vL16))
        e("s_lshl_b32 s%d, s2, 1" % sT0)
        e("s_add_u32 s%d, s%d, s%d" % (sT0, sT0, sCHL))
        e("s_lshl_b32 s%d, s%d, 12" % (sT0, sT0))
        vTL = 5
        e("v_and_b32 %s, 15, v1" % v(vT))
        e("v_lshrrev_b32 %s, 4, v1" % v(vU))
        e("v_lshlrev_b32 %s, 2, %s" % (v(vU), v(vU)))
        e("v_lshl_add_u32 %s, %s, 4, %s" % (v(vTL), v(vT), v(vU)))
        e("s_lshl_b32 s%d, s%d, 10" % (sT1, sHALF))
        e("v_add_u32 %s, s%d, %s" % (v(vTL), sT1, v(vTL)))
        vQA, vSA = 6, 8
        e("s_add_u32 s%d, s%d, %d" % (sT2, sT0, WS_QT))
        e("v_lshl_add_u32 %s, %s, 1, s%d" % (v(vQA), v(vTL), sT2))
        e("v_lshlrev_b32 %s, 2, %s" % (v(vSA), v(vTL)))
        e("s_mov_b32 s%d, %d" % (sT4, WS_ST1))
        e("s_mov_b32 s%d, %d" % (sT5, WS_ST1 + 8192))
        vXB, vKVA, vEW, vER = 10, 11, 12, 13
        e("v_and_b32 %s, 15, v1" % v(vT))
        e("v_lshrrev_b32 %s, 4, v1" % v(vU))
        e("v_lshlrev_b32 %s, 4, %s" % (v(vU), v(vU)))
        e("v_lshlrev_b32 %s, 5, %s" % (v(vT), v(vT)))
        e("v_sub_u32 %s, %s, %s" % (v(vXB), v(vU), v(vT)))
        e("s_mul_i32 s%d, s%d, 4608" % (sT0, sCHL))
        e("s_lshl_b32 s%d, s%d, 8" % (sT1, sHALF))
        e("s_add_u32 s%d, s%d, s%d" % (sT1, sT1, sT0))
        e("s_add_u32 s%d, s%d, %d" % (sT1, sT1, L_X + 480))
        e("v_add_u32 %s, s%d, %s" % (v(vXB), sT1, v(vXB)))
        e("s_add_u32 s%d, s%d, %d" % (sT1, sT0, L_X + 4088 - 1536))
        e("v_lshlrev_b32 %s, 1, %s" % (v(vT), v(vTL)))
        e("v_sub_u32 %s, s%d, %s" % (v(vKVA), sT1, v(vT)))
        e("s_lshl_b32 s%d, s%d, 12" % (sT0, sWAVE))
        e("s_add_u32 s%d, s%d, %d" % (sT1, sT0, L_EX))
        e("v_add_u32 %s, s%d, %s" % (v(vEW), sT1, v(vL16)))
        e("s_xor_b32 s%d, s%d, 0x1000" % (sT0, sT0))
        e("s_add_u32 s%d, s%d, %d" % (sT1, sT0, L_EX))
        e("v_add_u32 %s, s%d, %s" % (v(vER), sT1, v(vL16)))
        vHO = 14
        vRow = 15
        e("v_lshrrev_b32 %s, 4, v1" % v(vRow))
        e("v_and_b32 %s, 15, v1" % v(vT))
        e("v_lshrrev_b32 %s, 1, %s" % (v(vU), v(vT)))
        e("v_and_b32 %s, 1, %s" % (v(vHO), v(vRow)))
        e("v_lshl_add_u32 %s, %s, 3, %s" % (v(vU), v(vHO), v(vU)))
        e("v_mul_u32_u24 %s, 28672, %s" % (v(vHO), v(vU)))
        e("v_and_b32 %s, 1, %s" % (v(vT), v(vT)))
        e("v_lshl_add_u32 %s, %s, 5, %s" % (v(vHO), v(vT), v(vHO)))
        e("v_lshrrev_b32 %s, 1, %s" % (v(vRow), v(vRow)))
        e("v_lshl_add_u32 %s, %s, 4, %s" % (v(vHO), v(vRow), v(vHO)))
        e("s_lshl_b32 s%d, s2, 1" % sT0)
        e("s_add_u32 s%d, s%d, s%d" % (sT0, sT0, sCHL))
        e("s_lshl_b32 s%d, s%d, 6" % (sT0, sT0))
        e("s_mul_i32 s%d, s%d, %d" % (sT1, sHALF, 32 * 28672))
        e("s_add_u32 s%d, s%d, s%d" % (sT0, sT0, sT1))
        e("s_add_u32 s%d, s%d, %d" % (sT6, sT0, WS_HB))
        e("s_add_u32 s%d, s%d, %d" % (sT7, sT6, 16 * 28672))
        lab = self.newlabel("x0")
        e("s_cmp_eq_u32 s%d, 0" % sWAVE)
        e("s_cbranch_scc0 %s" % lab)
        self.spin(*self.a1_poll)
        self.stamp(4)
        e("s_lshl_b32 s%d, s2, 13" % sT0)
        if WS_KVT:
            e("s_add_u32 s%d, s%d, %d" % (sT0, sT0, WS_KVT))
        e("s_mov_b32 m0, %d" % L_X)
        e("s_nop 0")
        for i in range(4):
            e("buffer_load_dwordx4 %s, %s, s%d offen offset:%d sc1 lds" % (v(vL16), srd(SRD_WS), sT0, 1024 * i))
        e("s_add_u32 s%d, s%d, 4096" % (sT0, sT0))
        e("s_mov_b32 m0, %d" % (L_X + 4608))
        e("s_nop 0")
        for i in range(4):
            e("buffer_load_dwordx4 %s, %s, s%d offen offset:%d sc1 lds" % (v(vL16), srd(SRD_WS), sT0, 1024 * i))
        save = list(self.vm)
        for it in self.w0_early:
            it()
        self.vm = save
        e("s_waitcnt vmcnt(%d)" % len(self.w0_early))
        self.label(lab)
        self.vm += ["w0"] * len(self.w0_early)
        e("s_barrier")
        self.stamp(5)

        def xread(rr):
            for m in range(8):
                self.lds("ds_read_b128 %s, %s offset:%d" % (v(XF[rr & 1] + 4 * m, 4), v(vXB), 512 * (7 - m) + 64 * rr), "x%d" % rr)

        fill = []
        for cc in range(4):
            fill.append(("vm", "buffer_load_dwordx2 %s, %s, %s, 0 offen offset:%d sc1" % (v(QR + 2 * cc, 2), v(vQA), srd(SRD_WS), 512 * cc), "q"))
        for cc in range(4):
            fill.append(("vm", "buffer_load_dwordx4 %s, %s, %s, s%d offen offset:%d sc1" % (v(AR + 4 * cc, 4), v(vSA), srd(SRD_WS), sT4, 1024 * cc), "ab"))
            fill.append(("vm", "buffer_load_dwordx4 %s, %s, %s, s%d offen offset:%d sc1" % (v(BR + 4 * cc, 4), v(vSA), srd(SRD_WS), sT5, 1024 * cc), "ab"))
        for it in self.w0_rest:
            fill.append(("fn", it))
            fill.append(("skip",))
            fill.append(("skip",))
        for cc in range(4):
            fill.append(("lds", "ds_read_b64 %s, %s offset:%d" % (v(KVR + 2 * cc, 2), v(vKVA), 512 * (3 - cc)), "kv"))
        fill.append(("waitvm", ["q", "ab"]))
        for cc in range(4):
            for i in range(4):
                src = QR + 2 * cc + (i >> 1)
                if i & 1:
                    fill.append(("v", "v_and_b32 %s, 0xffff0000, %s" % (v(QF + 4 * cc + i), v(src))))
                else:
                    fill.append(("v", "v_lshlrev_b32 %s, 16, %s" % (v(QF + 4 * cc + i), v(src))))
        for x in range(16):
            fill.append(("v", "v_fma_f32 %s, %s, %s, %s" % (v(LN + x), v(QF + x), v(AR + x), v(BR + x))))
        fill.append(("waitlg", "kv"))
        for cc in range(4):
            for i in range(4):
                src = KVR + 2 * cc + (1 - (i >> 1))
                if i & 1:
                    fill.append(("v", "v_lshlrev_b32 %s, 16, %s" % (v(KD + 4 * cc + i), v(src))))
                else:
                    fill.append(("v", "v_and_b32 %s, 0xffff0000, %s" % (v(KD + 4 * cc + i), v(src))))
        for x in range(16):
            fill.append(("v", "v_mul_f32 %s, s%d, %s" % (v(KD + x), sD, v(KD + x))))
        fi = 0
        nslow = 12 + 3 * len(self.w0_rest)

        def filler():
            nonlocal fi
            while fi < len(fill):
                k = fill[fi]
                fi += 1
                if k[0] == "v":
                    e(k[1])
                    return
                if k[0] == "lds":
                    self.lds(k[1], k[2])
                    return
                if k[0] == "vm":
                    self.vmem(k[1], k[2])
                    return
                if k[0] == "fn":
                    k[1]()
                    return
                if k[0] == "skip":
                    return
                if k[0] == "waitvm":
                    self.wait_vm(k[1])
                    return
                if k[0] == "waitlg":
                    self.wait_lg(k[1])
                    return

        xread(0)
        for rr in range(4):
            self.wait_lg("x%d" % rr)
            cnt = 0
            for q in range(8):
                for c in range(q, 8):
                    m = c - q
                    srcc = "0" if (rr == 0 and q == 0) else v(ACC + 4 * c, 4)
                    e("v_mfma_f32_16x16x32_bf16 %s, %s, %s, %s" % (v(ACC + 4 * c, 4), a(112 + 4 * (8 * rr + q), 4), v(XF[rr & 1] + 4 * m, 4), srcc))
                    cnt += 1
                    if rr < 3 and cnt <= 8:
                        m2 = cnt - 1
                        self.lds("ds_read_b128 %s, %s offset:%d" % (v(XF[(rr + 1) & 1] + 4 * m2, 4), v(vXB), 512 * (7 - m2) + 64 * (rr + 1)), "x%d" % (rr + 1))
                    else:
                        filler()
                        if fi > nslow:
                            filler()
        while fi < len(fill):
            filler()
        self.stamp(6)
        e("s_nop 7")
        lab1, lab2 = self.newlabel("h1"), self.newlabel("hj")
        TMP = XF[0]
        e("s_cmp_eq_u32 s%d, 0" % sHALF)
        e("s_cbranch_scc0 %s" % lab1)
        for cc in range(4):
            e("ds_write_b128 %s, %s offset:%d" % (v(vEW), v(ACC + 16 + 4 * cc, 4), 1024 * cc))
        for x in range(16):
            e("v_add_f32 %s, %s, %s" % (v(Y + x), v(ACC + x), v(KD + x)))
        e("s_branch %s" % lab2)
        self.label(lab1)
        for cc in range(4):
            e("ds_write_b128 %s, %s offset:%d" % (v(vEW), v(ACC + 4 * cc, 4), 1024 * cc))
        for x in range(16):
            e("v_add_f32 %s, %s, %s" % (v(Y + x), v(ACC + 16 + x), v(KD + x)))
        self.label(lab2)
        e("s_waitcnt lgkmcnt(0)")
        self.lg = []
        e("s_barrier")
        for cc in range(4):
            self.lds("ds_read_b128 %s, %s offset:%d" % (v(TMP + 4 * cc, 4), v(vER), 1024 * cc), "ex%d" % cc)
        P = XF[0] + 16
        for cc in range(4):
            self.wait_lg("ex%d" % cc)
            for i in range(4):
                x = 4 * cc + i
                e("v_add_f32 %s, %s, %s" % (v(Y + x), v(Y + x), v(TMP + x)))
            for i in range(4):
                x = 4 * cc + i
                e("v_fma_f32 %s, %s, %s, %s" % (v(Y + x), v(LN + x), v(Y + x), v(QF + x)))
            e("v_cvt_pk_bf16_f32 %s, %s, %s" % (v(P + 2 * cc), v(Y + 4 * cc), v(Y + 4 * cc + 1)))
            e("v_cvt_pk_bf16_f32 %s, %s, %s" % (v(P + 2 * cc + 1), v(Y + 4 * cc + 2), v(Y + 4 * cc + 3)))
            if cc & 1:
                b = P + 2 * (cc - 1)
                e("s_nop 1")
                e("v_permlane16_swap_b32 %s, %s" % (v(b), v(b + 2)))
                e("v_permlane16_swap_b32 %s, %s" % (v(b + 1), v(b + 3)))
                self.vmem("buffer_store_dwordx4 %s, %s, %s, s%d offen sc1" % (v(b, 4), v(vHO), srd(SRD_WS), sT6 if cc == 1 else sT7), "hst")
        self.stamp(7)

    def helper(self):
        e = self.e
        self.label("L_helper")
        self.vm = []
        self.lg = []
        self.c("==== helper ====")
        sH = sRB
        e("s_sub_u32 s%d, s2, 224" % sH)
        vT, vU, vZ = 7, 4, 5
        e("v_mov_b32 %s, 0" % v(vZ))
        FR = 32
        vQ = 6
        e("s_lshl_b32 s%d, s%d, 6" % (sT0, sH))
        e("s_lshl_b32 s%d, s%d, 4" % (sT1, sWAVE))
        e("s_add_u32 s%d, s%d, s%d" % (sT0, sT0, sT1))
        e("v_and_b32 %s, 15, v1" % v(vT))
        e("v_add_u32 %s, s%d, %s" % (v(8), sT0, v(vT)))
        e("v_mul_u32_u24 %s, 896, %s" % (v(vQ), v(8)))
        e("v_lshrrev_b32 %s, 4, v1" % v(vU))
        e("v_lshl_add_u32 %s, %s, 4, %s" % (v(vQ), v(vU), v(vQ)))
        for s in range(14):
            self.vmem("buffer_load_dwordx4 %s, %s, %s, 0 offen offset:%d" % (v(FR + 4 * s, 4), v(vQ), srd(SRD_Q), 64 * s), "q")
        lab = self.newlabel("hz")
        e("s_cmp_eq_u32 s%d, 0" % sWAVE)
        e("s_cbranch_scc0 %s" % lab)
        e("s_lshl_b32 s%d, s%d, 8" % (sT0, sH))
        e("s_add_u32 s%d, s%d, %d" % (sT0, sT0, WS_ST2))
        e("v_lshl_add_u32 %s, v1, 2, s%d" % (v(vT), sT0))
        e("buffer_store_dword %s, %s, %s, 0 offen sc1" % (v(vZ), v(vT), srd(SRD_WS)))
        self.label(lab)
        lab = self.newlabel("hc")
        e("s_cmp_eq_u32 s%d, 0" % sH)
        e("s_cbranch_scc0 %s" % lab)
        e("v_lshlrev_b32 %s, 8, v0" % v(vT))
        e("v_add_u32 %s, %d, %s" % (v(vT), WS_CNT, v(vT)))
        e("v_cmp_gt_u32 vcc, %d, v0" % N_CNT)
        e("s_and_saveexec_b64 s[%d:%d], vcc" % (sEX, sEX + 1))
        lab2 = self.newlabel("hc2")
        e("s_cbranch_execz %s" % lab2)
        e("buffer_store_dword %s, %s, %s, 0 offen sc1" % (v(vZ), v(vT), srd(SRD_WS)))
        self.label(lab2)
        e("s_mov_b64 exec, s[%d:%d]" % (sEX, sEX + 1))
        e("s_waitcnt vmcnt(0)")
        e("s_barrier")
        e("v_mov_b32 %s, 1" % v(vU))
        lab3 = self.newlabel("hc3")
        e("s_cmp_eq_u32 s%d, 0" % sWAVE)
        e("s_cbranch_scc0 %s" % lab3)
        e("s_mov_b64 exec, 1")
        e("buffer_store_dword %s, %s, %s, 0 offen sc1" % (v(vU), v(vZ), srd(SRD_DBG)))
        e("s_mov_b64 exec, -1")
        self.label(lab3)
        self.label(lab)
        ONES = 16
        for i in range(4):
            e("v_mov_b32 %s, 0x3f803f80" % v(ONES + i))
        self.wait_vm("q")
        GR, SM = 20, 24
        self.stats_mfma(lambda s: FR + 4 * s, ONES, GR, SM, None)
        A_, B_ = 28, 29
        self.stats_finish(GR, SM, A_, B_, None)
        e("v_lshlrev_b32 %s, 2, %s" % (v(vT), v(8)))
        e("s_mov_b32 s%d, %d" % (sT4, WS_ST1))
        e("s_mov_b32 s%d, %d" % (sT5, WS_ST1 + 8192))
        e("s_mov_b32 exec_lo, 0x00f0000f")
        e("s_mov_b32 exec_hi, 0xf0000f00")
        self.vmem("buffer_store_dword %s, %s, %s, s%d offen sc1" % (v(A_), v(vT), srd(SRD_WS), sT4), "st")
        self.vmem("buffer_store_dword %s, %s, %s, s%d offen sc1" % (v(B_), v(vT), srd(SRD_WS), sT5), "st")
        e("s_mov_b64 exec, -1")
        vGO = 30
        loop, done = self.newlabel("go"), self.newlabel("god")
        e("s_mov_b32 s%d, %d" % (sSPIN, SPIN_LIMIT))
        self.label(loop)
        e("buffer_load_dword %s, %s, %s, 0 offen sc1" % (v(vGO), v(vZ), srd(SRD_DBG)))
        e("s_waitcnt vmcnt(0)")
        self.vm = []
        e("v_cmp_eq_u32 vcc, 0, %s" % v(vGO))
        e("s_nop 4")
        e("s_cbranch_vccz %s" % done)
        e("s_sub_u32 s%d, s%d, 1" % (sSPIN, sSPIN))
        e("s_cmp_lg_u32 s%d, 0" % sSPIN)
        e("s_cbranch_scc1 %s" % loop)
        self.label(done)
        e("s_barrier")
        e("v_lshlrev_b32 %s, 8, v1" % v(vT))
        e("v_add_u32 %s, %d, %s" % (v(vT), WS_CNT + 256 * C_SL1, v(vT)))
        e("v_mov_b32 %s, 1" % v(vU))
        self.signal(vT, vU, 8)
        self.stamp(3)
        if self.stop in ("a0", "a1"):
            self.wait_all()
            e("s_endpgm")
            return
        e("v_and_b32 %s, 15, v1" % v(vT))
        e("v_lshlrev_b32 %s, 8, %s" % (v(vT), v(vT)))
        e("v_add_u32 %s, %d, %s" % (v(vT), WS_CNT + 256 * C_S2, v(vT)))
        e("v_mov_b32 %s, 14" % v(vU))
        self.poll(vT, vU, vGO)
        self.stamp(8)
        e("s_lshr_b32 s%d, s%d, 1" % (sT0, sH))
        e("s_lshl_b32 s%d, s%d, 2" % (sT0, sT0))
        e("s_and_b32 s%d, s%d, 1" % (sT1, sH))
        e("s_add_u32 s%d, s%d, s%d" % (sT0, sT0, sT1))
        e("s_mul_i32 s%d, s%d, 28672" % (sT2, sT0))
        e("s_add_u32 s%d, s%d, %d" % (sT2, sT2, WS_HB))
        vL16 = 9
        e("v_lshlrev_b32 %s, 4, v1" % v(vL16))
        e("s_mul_i32 s%d, s%d, 7168" % (sT3, sWAVE))
        for blk in range(2):
            e("s_add_u32 s%d, s%d, s%d" % (sT4, sT2, sT3))
            if blk:
                e("s_add_u32 s%d, s%d, %d" % (sT4, sT4, 2 * 28672))
            e("s_add_u32 m0, s%d, %d" % (sT3, 28672 * blk))
            e("s_nop 0")
            for i in range(4):
                self.vmem("buffer_load_dwordx4 %s, %s, s%d offen offset:%d sc1 lds" % (v(vL16), srd(SRD_WS), sT4, 1024 * i), "hb")
            e("s_add_u32 s%d, s%d, 4096" % (sT4, sT4))
            e("s_add_u32 m0, s%d, %d" % (sT3, 28672 * blk + 4096))
            e("s_nop 0")
            for i in range(3):
                self.vmem("buffer_load_dwordx4 %s, %s, s%d offen offset:%d sc1 lds" % (v(vL16), srd(SRD_WS), sT4, 1024 * i), "hb")
        vA = 10
        e("v_lshrrev_b32 %s, 4, v1" % v(vT))
        e("v_bfe_u32 %s, v1, 2, 2" % v(vU))
        e("v_lshl_add_u32 %s, %s, 3, %s" % (v(vT), v(vT), v(vU)))
        e("v_lshlrev_b32 %s, 6, %s" % (v(vT), v(vT)))
        e("v_and_b32 %s, 3, v1" % v(vU))
        e("v_lshl_add_u32 %s, %s, 3, %s" % (v(vA), v(vU), v(vT)))
        e("s_lshr_b32 s%d, s%d, 1" % (sT4, sWAVE))
        e("s_mul_i32 s%d, s%d, 28672" % (sT4, sT4))
        e("s_and_b32 s%d, s%d, 1" % (sT5, sWAVE))
        e("s_lshl_b32 s%d, s%d, 5" % (sT5, sT5))
        e("s_add_u32 s%d, s%d, s%d" % (sT4, sT4, sT5))
        e("v_add_u32 %s, s%d, %s" % (v(vA), sT4, v(vA)))
        self.wait_vm("hb")
        e("s_barrier")
        for s in range(14):
            for ee in range(2):
                self.lds("ds_read_b64_tr_b16 %s, %s offset:%d" % (v(FR + 4 * s + 2 * ee, 2), v(vA), 2048 * s + 256 * ee), "f%d" % s)
        self.stats_mfma(lambda s: FR + 4 * s, ONES, GR, SM, lambda s: self.wait_lg("f%d" % s))
        PK = 28
        self.stats_finish(GR, SM, None, None, PK)
        e("s_lshr_b32 s%d, s%d, 1" % (sT4, sWAVE))
        e("s_lshl_b32 s%d, s%d, 1" % (sT4, sT4))
        e("s_add_u32 s%d, s%d, s%d" % (sT4, sT4, sT0))
        e("s_lshl_b32 s%d, s%d, 5" % (sT4, sT4))
        e("s_and_b32 s%d, s%d, 1" % (sT5, sWAVE))
        e("s_lshl_b32 s%d, s%d, 4" % (sT5, sT5))
        e("s_add_u32 s%d, s%d, s%d" % (sT4, sT4, sT5))
        e("s_lshl_b32 s%d, s%d, 2" % (sT4, sT4))
        e("s_add_u32 s%d, s%d, %d" % (sT4, sT4, WS_ST2))
        e("v_and_b32 %s, 15, v1" % v(vT))
        e("v_lshl_add_u32 %s, %s, 2, s%d" % (v(vT), v(vT), sT4))
        e("s_mov_b32 exec_lo, 0x00f0000f")
        e("s_mov_b32 exec_hi, 0xf0000f00")
        self.vmem("buffer_store_dword %s, %s, %s, 0 offen sc1" % (v(PK), v(vT), srd(SRD_WS)), "st")
        e("s_mov_b64 exec, -1")
        self.stamp(9)
        self.wait_all()
        e("s_endpgm")

    def stats_mfma(self, frag, ONES, GR, SM, pre):
        e = self.e
        for s in range(14):
            if pre:
                pre(s)
            f = frag(s)
            e("v_mfma_f32_16x16x32_bf16 %s, %s, %s, %s" % (v(GR, 4), v(f, 4), v(f, 4), "0" if s == 0 else v(GR, 4)))
            e("v_mfma_f32_16x16x32_bf16 %s, %s, %s, %s" % (v(SM, 4), v(ONES, 4), v(f, 4), "0" if s == 0 else v(SM, 4)))
        e("s_nop 7")

    def stats_finish(self, GR, SM, A_, B_, PK):
        e = self.e
        t0, t1, t2 = 11, 12, 13
        e("s_mov_b32 s%d, 0x22222222" % sT6)
        e("s_mov_b32 s%d, 0x22222222" % sT7)
        e("v_cndmask_b32 %s, %s, %s, s[%d:%d]" % (v(t0), v(GR), v(GR + 1), sT6, sT7))
        e("s_mov_b32 s%d, 0x44444444" % sT6)
        e("s_mov_b32 s%d, 0x44444444" % sT7)
        e("v_cndmask_b32 %s, %s, %s, s[%d:%d]" % (v(t0), v(t0), v(GR + 2), sT6, sT7))
        e("s_mov_b32 s%d, 0x88888888" % sT6)
        e("s_mov_b32 s%d, 0x88888888" % sT7)
        e("v_cndmask_b32 %s, %s, %s, s[%d:%d]" % (v(t0), v(t0), v(GR + 3), sT6, sT7))
        e("s_mov_b32 s%d, 0x3b124925" % sT6)
        e("v_mul_f32 %s, s%d, %s" % (v(t1), sT6, v(SM)))
        e("v_mul_f32 %s, s%d, %s" % (v(t0), sT6, v(t0)))
        e("v_fma_f32 %s, -%s, %s, %s" % (v(t0), v(t1), v(t1), v(t0)))
        e("v_max_f32 %s, 0, %s" % (v(t0), v(t0)))
        e("v_cvt_pk_bf16_f32 %s, %s, %s" % (v(t0), v(t0), v(t1)))
        e("v_and_b32 %s, 0xffff0000, %s" % (v(t1), v(t0)))
        e("v_lshlrev_b32 %s, 16, %s" % (v(t0), v(t0)))
        e("v_add_f32 %s, 0x3727c5ac, %s" % (v(t0), v(t0)))
        e("v_cvt_pk_bf16_f32 %s, %s, %s" % (v(t0), v(t0), v(t0)))
        e("v_lshlrev_b32 %s, 16, %s" % (v(t0), v(t0)))
        e("v_sqrt_f32 %s, %s" % (v(t0), v(t0)))
        e("s_nop 0")
        e("v_cvt_pk_bf16_f32 %s, %s, %s" % (v(t0), v(t0), v(t0)))
        if PK is not None:
            e("v_lshrrev_b32 %s, 16, %s" % (v(t2), v(t1)))
            e("v_and_b32 %s, 0xffff0000, %s" % (v(t0), v(t0)))
            e("v_or_b32 %s, %s, %s" % (v(PK), v(t0), v(t2)))
        else:
            e("v_lshlrev_b32 %s, 16, %s" % (v(t0), v(t0)))
            e("v_rcp_f32 %s, %s" % (v(A_), v(t0)))
            e("s_nop 0")
            e("v_mul_f32 %s, -%s, %s" % (v(B_), v(t1), v(A_)))

    def decode_bc(self):
        e = self.e
        e("s_and_b32 s%d, s2, 7" % sT0)
        e("s_lshr_b32 s%d, s2, 3" % sT1)
        e("s_mul_i32 s%d, s%d, 37" % (sT2, sT1))
        e("s_lshr_b32 s%d, s%d, 8" % (sT2, sT2))
        e("s_mul_i32 s%d, s%d, 7" % (sT3, sT2))
        e("s_sub_u32 s%d, s%d, s%d" % (sT3, sT1, sT3))
        e("s_lshr_b32 s%d, s%d, 1" % (sT4, sT0))
        e("s_lshl_b32 s%d, s%d, 2" % (sT4, sT4))
        e("s_add_u32 s%d, s%d, s%d" % (sBI, sT4, sT2))
        e("s_and_b32 s%d, s%d, 1" % (sT4, sT0))
        e("s_mul_i32 s%d, s%d, 7" % (sT4, sT4))
        e("s_add_u32 s%d, s%d, s%d" % (sBJ, sT4, sT3))
        e("s_lshl_b32 s%d, s%d, 2" % (sT4, sT0))
        e("s_add_u32 s%d, s%d, s%d" % (sT4, sT4, sT2))
        e("s_lshr_b32 s%d, s%d, 1" % (sCI, sT4))
        e("s_and_b32 s%d, s%d, 1" % (sCS, sT4))
        e("s_mov_b32 s%d, s%d" % (sCJ, sT3))

    def main_path(self):
        e = self.e
        self.decode_bc()
        self.stamp(0)
        self.phase_a0()
        self.wait_vm("go")
        self.t_pad()
        vGO, vZERO = 23, 58
        loop, done = self.newlabel("go"), self.newlabel("god")
        e("s_mov_b32 s%d, %d" % (sSPIN, SPIN_LIMIT))
        self.label(loop)
        e("v_cmp_eq_u32 vcc, 0, %s" % v(vGO))
        e("s_nop 4")
        e("s_cbranch_vccz %s" % done)
        e("buffer_load_dword %s, %s, %s, 0 offen sc1" % (v(vGO), v(vZERO), srd(SRD_DBG)))
        e("s_waitcnt vmcnt(0)")
        e("s_sub_u32 s%d, s%d, 1" % (sSPIN, sSPIN))
        e("s_cmp_lg_u32 s%d, 0" % sSPIN)
        e("s_cbranch_scc1 %s" % loop)
        self.label(done)
        e("s_barrier")
        vA, vOne = 5, 6
        e("s_lshl_b32 s%d, s%d, 8" % (sT0, sG0))
        e("s_add_u32 s%d, s%d, %d" % (sT0, sT0, WS_CNT + 256 * C_S1))
        e("v_mov_b32 %s, s%d" % (v(vA), sT0))
        e("v_mov_b32 %s, 1" % v(vOne))
        self.signal(vA, vOne, 1)
        self.stamp(3)
        if self.endif_stop("a0"):
            return False
        self.w_stage_setup()
        w0 = self.w_stage_items(0)
        self.w0_early, self.w0_rest = w0[:8], w0[8:]
        lab = self.newlabel("w1")
        e("s_cmp_eq_u32 s%d, 0" % sWAVE)
        e("s_cbranch_scc1 %s" % lab)
        if self.prefetch:
            vP = 59
            e("s_mul_i32 s%d, s2, 7168" % sT0)
            e("s_sub_u32 s%d, s%d, 1" % (sT1, sWAVE))
            e("s_mul_i32 s%d, s%d, %d" % (sT1, sT1, 19 * 128))
            e("s_add_u32 s%d, s%d, s%d" % (sT0, sT0, sT1))
            e("v_lshl_add_u32 %s, v1, 7, s%d" % (v(vP), sT0))
            e("s_mov_b64 exec, 0x7ffff")
            e("buffer_load_dword v252, %s, %s, 0 offen" % (v(vP), srd(SRD_WG)))
            e("buffer_load_dword v252, %s, %s, 0 offen offset:1024" % (v(vP), srd(SRD_WU)))
            e("buffer_load_dword v252, %s, %s, 0 offen" % (v(vP), srd(SRD_WD)))
            e("s_mov_b64 exec, -1")
        save = list(self.vm)
        for it in self.w0_early:
            it()
        self.vm = save
        self.label(lab)
        self.t_read()
        vZ, vZA = 5, 6
        e("v_mov_b32 %s, 0" % v(vZ))
        e("s_mul_i32 s%d, s%d, 4608" % (sT0, sCHL))
        e("s_lshl_b32 s%d, s%d, 8" % (sT1, sHALF))
        e("s_add_u32 s%d, s%d, s%d" % (sT0, sT0, sT1))
        e("s_add_u32 s%d, s%d, %d" % (sT0, sT0, L_X + 4096))
        e("v_lshl_add_u32 %s, v1, 2, s%d" % (v(vZA), sT0))
        self.lds("ds_write_b32 %s, %s" % (v(vZA), v(vZ)), "z")
        self.wait_lg0()
        vA, vTg, vTmp = 16, 17, 18
        e("s_lshr_b32 s%d, s2, 5" % sT0)
        e("s_lshl_b32 s%d, s%d, 8" % (sT0, sT0))
        e("s_add_u32 s%d, s%d, %d" % (sT0, sT0, WS_CNT + 256 * C_S1))
        e("s_and_b32 s%d, s2, 7" % sT1)
        e("s_lshl_b32 s%d, s%d, 8" % (sT1, sT1))
        e("s_add_u32 s%d, s%d, %d" % (sT1, sT1, WS_CNT + 256 * C_SL1))
        e("v_mov_b32 %s, s%d" % (v(vA), sT0))
        e("v_mov_b32 %s, s%d" % (v(vTmp), sT1))
        e("v_cmp_eq_u32 vcc, 1, v1")
        e("v_mov_b32 %s, 32" % v(vTg))
        e("s_nop 0")
        e("v_cndmask_b32 %s, %s, %s, vcc" % (v(vA), v(vA), v(vTmp)))
        self.a1_poll = (vA, vTg, vTmp)
        self.phase_a1()
        self.w_stage_read(0)
        self.wait_vm("hst")
        self.wait_lg0()
        e("s_barrier")
        vA, vOne = 5, 6
        e("s_and_b32 s%d, s2, 15" % sT0)
        e("s_lshl_b32 s%d, s%d, 8" % (sT0, sT0))
        e("s_add_u32 s%d, s%d, %d" % (sT0, sT0, WS_CNT + 256 * C_S2))
        e("v_mov_b32 %s, s%d" % (v(vA), sT0))
        e("v_mov_b32 %s, 1" % v(vOne))
        self.signal(vA, vOne, 1)
        self.stamp(8)
        if self.endif_stop("a1"):
            return False
        return True

    def build(self):
        self.prologue()
        cont = self.main_path()
        if cont:
            from gen_bc import phase_b, phase_c
            phase_b(self)
            if not self.endif_stop("b"):
                phase_c(self)
                self.wait_all()
                self.e("s_endpgm")
        self.helper()
        self.label("L_end")
        self.e("s_endpgm")
        self.label("L_codeend")
        body = self.text()
        hdr = HEADER
        hdr += "; @launch grid=(256,1,1) block=(256,1,1) lds=%d\n" % LDS_BYTES
        hdr += '.amdgcn_target "amdgcn-amd-amdhsa--gfx950"\n.text\n.globl %s\n.p2align 8\n.type %s,@function\n%s:\n' % (NAME, NAME, NAME)
        tail = """
.section .rodata,"a"
.p2align 6
.amdhsa_kernel %s
  .amdhsa_next_free_vgpr 512
  .amdhsa_next_free_sgpr 102
  .amdhsa_accum_offset 256
  .amdhsa_group_segment_fixed_size 0
  .amdhsa_kernarg_size 104
  .amdhsa_user_sgpr_count 2
  .amdhsa_user_sgpr_kernarg_segment_ptr 1
  .amdhsa_system_sgpr_workgroup_id_x 1
.end_amdhsa_kernel
""" % NAME
        return hdr + body + tail, body


HEADER = """; Fused preLN -> H3 (shift conv, k*v, long causal conv, gate) -> preLN -> GLU FFN, one persistent launch.
"""

if __name__ == "__main__":
    import argparse
    ap = argparse.ArgumentParser()
    ap.add_argument("--stop", default=None)
    ap.add_argument("--stamps", action="store_true")
    ap.add_argument("--no-tlbwarm", action="store_true")
    ap.add_argument("--no-prefetch", action="store_true")
    ap.add_argument("-o", default="out.s")
    args = ap.parse_args()
    g = Gen(stop=args.stop, stamps=args.stamps, tlbwarm=not args.no_tlbwarm, prefetch=not args.no_prefetch)
    txt, body = g.build()
    open(args.o, "w").write(txt)
    check_hazards(body)
    print("wrote", args.o, len(txt), "bytes")
```

```python
import sys, os
sys.path.insert(0, os.path.dirname(os.path.abspath(__file__)))
from asmlib import Asm, check_hazards

NAME = "sequential_preLN__ssm_conv_h3__glu_gated_glu__prompt_kernel"
S, D, F = 2048, 448, 1792

WS_KVT = 0x000000
WS_QT = 0x200000
WS_HB = 0x400000
WS_HF = 0x600000
WS_ST1 = 0xE00000
WS_ST2 = 0xE08000
WS_CNT = 0xE10000
WS_TS = 0xF00000
WS_SIZE = 0x1000000
C_S1, C_SL1, C_S2, C_S3 = 0, 8, 16, 32
N_CNT = 96

L_WST = 0
L_K = 114688
L_V = L_K + 9216
L_Q = L_V + 8192
L_TS = L_Q + 8192
L_X = L_K
L_EX = L_V
L_HB = 0
L_WD = 86016
LDS_BYTES = 163840

sWAVE = 3
SRD_WS, SRD_Q, SRD_K, SRD_V, SRD_SK, SRD_SH, SRD_WG, SRD_WU, SRD_WD, SRD_OUT, SRD_DBG = 4, 8, 12, 16, 20, 24, 28, 32, 36, 40, 44
sPC = 48
sD = 50
sT0, sT1, sT2, sT3, sT4, sT5, sT6, sT7 = 76, 77, 78, 79, 80, 81, 82, 83
sA0BASE = 84
sG0 = 85
sRB = 86
sBI, sBJ = 87, 88
sCI, sCS, sCJ = 89, 90, 91
sSPIN = 92
sM = 93
sEX = 94
sTS = 96
sHALF = 98
sCHL = 99
sWSO, sWM = 51, 75
vWS = 248


def srd(n):
    return "s[%d:%d]" % (n, n + 3)


def v(a, n=1):
    return "v%d" % a if n == 1 else "v[%d:%d]" % (a, a + n - 1)


def a(i, n=1):
    return "a%d" % i if n == 1 else "a[%d:%d]" % (i, i + n - 1)


SPIN_LIMIT = 40000
DBG_IDX = [0, 1, 3, 4, 5, 6, 8, 9, 10, 11, 12, 13, 14, 15, 17, 20]


class Gen(Asm):
    def __init__(self, stop=None, stamps=False, tlbwarm=True, prefetch=True, dbgst=False):
        super().__init__()
        self.stop = stop
        self.stamps = stamps
        self.tlbwarm = tlbwarm
        self.prefetch = prefetch
        self.dbgst = dbgst
        self.go_off = 128 if dbgst else 0

    def stamp(self, idx):
        if self.dbgst:
            if idx not in DBG_IDX or getattr(self, "in_helper", False):
                return
            lab = self.newlabel("st")
            self.e("s_cmp_eq_u32 s%d, 0" % sWAVE)
            self.e("s_cbranch_scc0 %s" % lab)
            self.e("s_and_b32 s%d, s2, 31" % sTS)
            self.e("s_cmp_eq_u32 s%d, %d" % (sTS, 5))
            self.e("s_cbranch_scc0 %s" % lab)
            self.e("s_memrealtime s[%d:%d]" % (sTS, sTS + 1))
            self.e("s_waitcnt lgkmcnt(0)")
            if idx == 0:
                self.e("s_not_b32 s%d, s%d" % (sTS, sTS))
            self.e("v_mov_b32 v30, s%d" % sTS)
            self.e("v_mov_b32 v31, %d" % (4 * DBG_IDX.index(idx)))
            self.e("s_mov_b64 exec, 1")
            self.e("buffer_atomic_umax v30, v31, %s, 0 offen sc1" % srd(SRD_DBG))
            self.e("s_mov_b64 exec, -1")
            self.label(lab)
            return
        if not self.stamps:
            return
        lab = self.newlabel("st")
        self.e("s_cmp_eq_u32 s%d, 0" % sWAVE)
        self.e("s_cbranch_scc0 %s" % lab)
        self.e("s_memrealtime s[%d:%d]" % (sTS, sTS + 1))
        self.e("s_memtime s[100:101]")
        self.e("s_waitcnt lgkmcnt(0)")
        self.e("v_mov_b32 v30, s%d" % sTS)
        self.e("s_lshl_b32 s%d, s2, 8" % (sTS + 1))
        self.e("s_add_u32 s%d, s%d, %d" % (sTS + 1, sTS + 1, WS_TS + 4 * idx))
        self.e("v_mov_b32 v31, s%d" % (sTS + 1))
        self.e("s_mov_b64 exec, 1")
        self.e("buffer_store_dword v30, v31, %s, 0 offen" % srd(SRD_WS))
        self.e("v_mov_b32 v30, s100")
        self.e("s_nop 1")
        self.e("buffer_store_dword v30, v31, %s, 0 offen offset:128" % srd(SRD_WS))
        self.e("s_mov_b64 exec, -1")
        self.label(lab)

    def spin(self, vaddr, vtarget, vtmp):
        loop = self.newlabel("ploop")
        done = self.newlabel("pdone")
        self.e("s_mov_b32 s%d, %d" % (sSPIN, SPIN_LIMIT))
        self.label(loop)
        self.e("buffer_load_dword %s, %s, %s, 0 offen sc1" % (v(vtmp), v(vaddr), srd(SRD_WS)))
        self.e("s_waitcnt vmcnt(0)")
        self.e("v_cmp_lt_u32 vcc, %s, %s" % (v(vtmp), v(vtarget)))
        self.e("s_nop 4")
        self.e("s_cbranch_vccz %s" % done)
        self.e("s_sub_u32 s%d, s%d, 1" % (sSPIN, sSPIN))
        self.e("s_cmp_lg_u32 s%d, 0" % sSPIN)
        self.e("s_cbranch_scc0 %s" % done)
        self.e("s_sleep 1")
        self.e("s_branch %s" % loop)
        self.label(done)

    def poll(self, vaddr, vtarget, vtmp):
        skip = self.newlabel("pskip")
        self.e("s_cmp_eq_u32 s%d, 0" % sWAVE)
        self.e("s_cbranch_scc0 %s" % skip)
        self.spin(vaddr, vtarget, vtmp)
        self.label(skip)
        self.e("s_barrier")

    def signal(self, vaddr, vone, nlanes):
        skip = self.newlabel("sig")
        self.e("s_cmp_eq_u32 s%d, 0" % sWAVE)
        self.e("s_cbranch_scc0 %s" % skip)
        self.e("s_mov_b64 exec, %d" % ((1 << nlanes) - 1))
        self.e("buffer_atomic_add %s, %s, %s, 0 offen sc1" % (v(vone), v(vaddr), srd(SRD_WS)))
        self.e("s_mov_b64 exec, -1")
        self.label(skip)

    def endif_stop(self, name):
        if self.stop == name:
            self.wait_all()
            self.e("s_endpgm")
            return True
        return False

    def prologue(self):
        e = self.e
        e("s_cmp_ge_u32 s2, 256")
        e("s_cbranch_scc1 L_end")
        e("s_load_dwordx4 s[52:55], s[0:1], 0")
        e("s_load_dwordx4 s[56:59], s[0:1], 16")
        e("s_load_dwordx4 s[60:63], s[0:1], 32")
        e("s_load_dwordx4 s[64:67], s[0:1], 56")
        e("s_load_dwordx4 s[68:71], s[0:1], 72")
        e("s_load_dwordx4 s[72:75], s[0:1], 88")
        e("s_getpc_b64 s[%d:%d]" % (sPC, sPC + 1))
        self.label("L_pc")
        e("v_and_b32 v1, 63, v0")
        e("v_lshrrev_b32 v2, 6, v0")
        e("s_nop 0")
        e("v_readfirstlane_b32 s%d, v2" % sWAVE)
        e("s_waitcnt lgkmcnt(0)")

        def mk(dst, src, size):
            e("s_mov_b32 s%d, s%d" % (dst, src))
            e("s_mov_b32 s%d, s%d" % (dst + 1, src + 1))
            e("s_mov_b32 s%d, %d" % (dst + 2, size))
            e("s_mov_b32 s%d, 0x20000" % (dst + 3))
        mk(SRD_Q, 52, S * D * 2)
        mk(SRD_K, 54, S * D * 2)
        mk(SRD_V, 56, S * D * 2)
        mk(SRD_SH, 58, D * 4 * 2)
        mk(SRD_SK, 60, S * D * 2)
        mk(SRD_WG, 64, D * F * 2)
        mk(SRD_WU, 66, D * F * 2)
        mk(SRD_WD, 68, D * F * 2)
        e("s_sub_u32 s%d, s%d, 1024" % (SRD_WU, SRD_WU))
        e("s_subb_u32 s%d, s%d, 0" % (SRD_WU + 1, SRD_WU + 1))
        e("s_add_u32 s%d, s%d, 1024" % (SRD_WU + 2, SRD_WU + 2))
        mk(SRD_OUT, 70, S * D * 2)
        mk(SRD_DBG, 72, 256)
        mk(SRD_WS, 74, WS_SIZE)
        lab = self.newlabel("nowarm")
        e("s_lshr_b32 s%d, s2, 3" % sT0)
        e("s_cmp_lt_u32 s%d, 4" % sT0)
        e("s_cbranch_scc0 %s" % lab)
        e("s_lshl_b32 s%d, s%d, 2" % (sT0, sT0))
        e("s_add_u32 s%d, s%d, s%d" % (sT0, sT0, sWAVE))
        e("s_mul_i32 s%d, s%d, (L_codeend-L_pc+15)/16" % (sT0, sT0))
        e("v_lshlrev_b32 v2, 5, v1")
        e("v_add_u32 v2, s%d, v2" % sT0)
        e("v_min_u32 v2, L_codeend-L_pc-4, v2")
        e("v_and_b32 v2, -4, v2")
        e("global_load_dword v253, v2, s[%d:%d]" % (sPC, sPC + 1))
        self.label(lab)
        e("s_cmp_ge_u32 s2, 224")
        e("s_cbranch_scc1 L_helper")

    def phase_a0(self):
        e = self.e
        self.c("==== A0 ====")
        e("s_mul_i32 s%d, s2, 293" % sRB)
        e("s_lshr_b32 s%d, s%d, 11" % (sRB, sRB))
        e("s_mul_i32 s%d, s%d, 7" % (sT0, sRB))
        e("s_sub_u32 s%d, s2, s%d" % (sG0, sT0))
        e("s_mul_i32 s%d, s%d, %d" % (sA0BASE, sRB, 64 * 896))
        e("s_lshl_b32 s%d, s%d, 7" % (sT0, sG0))
        e("s_add_u32 s%d, s%d, s%d" % (sA0BASE, sA0BASE, sT0))
        vP, vOff, vOffH, vT = 4, 5, 6, 7
        e("v_lshrrev_b32 %s, 4, v1" % v(vT))
        e("v_and_b32 %s, 1, %s" % (v(vT), v(vT)))
        e("v_lshlrev_b32 %s, 1, %s" % (v(vT), v(vT)))
        e("v_and_b32 %s, 7, v1" % v(vP))
        e("v_xor_b32 %s, %s, %s" % (v(vP), v(vP), v(vT)))
        e("v_lshlrev_b32 %s, 4, %s" % (v(vP), v(vP)))
        e("v_lshrrev_b32 %s, 3, v1" % v(vT))
        e("v_mul_u32_u24 %s, 896, %s" % (v(vT), v(vT)))
        e("v_add_u32 %s, %s, %s" % (v(vP), v(vP), v(vT)))
        e("s_and_b32 s%d, s%d, 1" % (sT0, sWAVE))
        e("s_lshl_b32 s%d, s%d, 6" % (sT0, sT0))
        e("v_xor_b32 %s, s%d, %s" % (v(vOff), sT0, v(vP)))
        e("v_xor_b32 %s, 64, %s" % (v(vOffH), v(vP)))
        e("s_cmp_eq_u32 s%d, 0" % sRB)
        e("s_cselect_b32 s%d, 0x80000000, 0" % sT1)
        e("v_add_u32 %s, s%d, %s" % (v(vOffH), sT1, v(vOffH)))
        e("s_sub_u32 s%d, s%d, 7168" % (sT2, sA0BASE))
        e("s_cmp_eq_u32 s%d, 0" % sRB)
        e("s_cselect_b32 s%d, 0, s%d" % (sT2, sT2))
        e("s_mul_i32 s%d, s%d, 7168" % (sT3, sWAVE))
        e("s_add_u32 s%d, s%d, s%d" % (sT3, sT3, sA0BASE))
        e("s_add_u32 s%d, s%d, %d" % (sT4, sT3, 4 * 7168))
        e("s_lshl_b32 s%d, s%d, 10" % (sT5, sWAVE))

        def dma(srdn, voff, soff, ldsbase, addw=True):
            if addw:
                e("s_add_u32 m0, s%d, %d" % (sT5, ldsbase))
            else:
                e("s_mov_b32 m0, %d" % ldsbase)
            e("s_nop 0")
            self.vmem("buffer_load_dwordx4 %s, %s, s%d offen lds" % (v(voff), srd(srdn), soff), "a0")
        dma(SRD_K, vOffH, sT2, L_K, addw=False)
        dma(SRD_K, vOff, sT3, L_K + 1024)
        dma(SRD_K, vOff, sT4, L_K + 5 * 1024)
        dma(SRD_V, vOff, sT3, L_V)
        dma(SRD_V, vOff, sT4, L_V + 4 * 1024)
        dma(SRD_Q, vOff, sT3, L_Q)
        dma(SRD_Q, vOff, sT4, L_Q + 4 * 1024)
        vCH, vSK = 8, 10
        e("s_lshl_b32 s%d, s%d, 6" % (sT0, sG0))
        e("s_lshl_b32 s%d, s%d, 4" % (sT1, sWAVE))
        e("s_add_u32 s%d, s%d, s%d" % (sT0, sT0, sT1))
        e("v_and_b32 %s, 15, v1" % v(vCH))
        e("v_add_u32 %s, s%d, %s" % (v(vCH), sT0, v(vCH)))
        e("v_lshlrev_b32 %s, 3, %s" % (v(vT), v(vCH)))
        self.vmem("buffer_load_dwordx2 %s, %s, %s, 0 offen" % (v(vSK, 2), v(vT), srd(SRD_SH)), "a0")

        if self.tlbwarm:
            self.c("touch every page that is used later (address translation warm-up)")
            vZ = 59
            e("v_mov_b32 %s, 0" % v(vZ))
            e("s_mov_b64 exec, 1")
            for r in (SRD_WG, SRD_WD, SRD_OUT):
                e("buffer_load_dword v252, %s, %s, 0 offen" % (v(vZ), srd(r)))
            e("v_mov_b32 %s, 1024" % v(vZ))
            e("buffer_load_dword v252, %s, %s, 0 offen" % (v(vZ), srd(SRD_WU)))
            e("s_mov_b64 exec, 0xff")
            e("v_lshlrev_b32 %s, 21, v1" % v(vZ))
            e("buffer_load_dword v252, %s, %s, 0 offen" % (v(vZ), srd(SRD_WS)))
            e("s_mov_b64 exec, -1")
            self.vm += ["tlb"] * 5
        self.c("T staging DMA: wave w -> channel 2*id + (w>>1), copy w&1")
        e("s_lshr_b32 s%d, s%d, 1" % (sCHL, sWAVE))
        e("s_and_b32 s%d, s%d, 1" % (sHALF, sWAVE))
        e("s_lshl_b32 s%d, s2, 1" % sT0)
        e("s_add_u32 s%d, s%d, s%d" % (sT0, sT0, sCHL))
        e("s_lshl_b32 s%d, s%d, 12" % (sT0, sT0))
        e("s_lshl_b32 s%d, s%d, 1" % (sT1, sHALF))
        e("s_add_u32 s%d, s%d, s%d" % (sT1, sT0, sT1))
        e("s_mul_i32 s%d, s%d, 4160" % (sT2, sWAVE))
        e("s_add_u32 s%d, s%d, %d" % (sT2, sT2, L_TS + 32))
        e("s_mov_b32 m0, s%d" % sT2)
        vL16 = 9
        e("v_lshlrev_b32 %s, 4, v1" % v(vL16))
        for i in range(4):
            self.vmem("buffer_load_dwordx4 %s, %s, s%d offen offset:%d lds" % (v(vL16), srd(SRD_SK), sT1, 1024 * i), "ts")
        vH0 = 12
        e("v_mov_b32 %s, s%d" % (v(vT), sT0))
        self.vmem("buffer_load_ushort %s, %s, %s, 0 offen" % (v(vH0), v(vT), srd(SRD_SK)), "ts")
        e("s_lshl_b32 s%d, s2, 2" % sT3)
        e("s_load_dword s%d, s[62:63], s%d" % (sD, sT3))

        vTR, vTRH, vG, vR = 13, 14, 15, 16
        e("v_lshrrev_b32 %s, 4, v1" % v(vG))
        e("v_bfe_u32 %s, v1, 2, 2" % v(vR))
        e("v_lshrrev_b32 %s, 1, %s" % (v(vT), v(vR)))
        e("v_and_b32 %s, 1, %s" % (v(vTR), v(vG)))
        e("v_lshl_or_b32 %s, %s, 1, %s" % (v(vT), v(vTR), v(vT)))
        e("v_xor_b32 %s, s%d, %s" % (v(vT), sWAVE, v(vT)))
        e("v_lshlrev_b32 %s, 5, %s" % (v(vT), v(vT)))
        e("v_lshl_add_u32 %s, %s, 3, %s" % (v(vTR), v(vG), v(vR)))
        e("v_lshl_add_u32 %s, %s, 7, %s" % (v(vTR), v(vTR), v(vT)))
        e("v_and_b32 %s, 3, v1" % v(vT))
        e("v_lshl_add_u32 %s, %s, 3, %s" % (v(vTR), v(vT), v(vTR)))
        e("v_add_u32 %s, %d, %s" % (v(vTR), L_K, v(vTR)))
        e("v_xor_b32 %s, 64, %s" % (v(vTRH), v(vTR)))
        vSKV, vSQ = 17, 18
        e("s_lshl_b32 s%d, s%d, 7" % (sT0, sRB))
        e("v_lshlrev_b32 %s, 12, %s" % (v(vSQ), v(vCH)))
        e("v_lshlrev_b32 %s, 4, %s" % (v(vT), v(vG)))
        e("s_sub_u32 s%d, %d, s%d" % (sT1, WS_KVT + 4080 - 64, sT0))
        e("v_add_u32 %s, s%d, %s" % (v(vSKV), sT1, v(vSQ)))
        e("v_sub_u32 %s, %s, %s" % (v(vSKV), v(vSKV), v(vT)))
        e("s_add_u32 s%d, s%d, %d" % (sT1, sT0, WS_QT))
        e("v_add3_u32 %s, %s, %s, s%d" % (v(vSQ), v(vSQ), v(vT), sT1))
        self.wait_vm("a0")
        e("s_waitcnt lgkmcnt(0)")
        self.lg = []
        e("s_lshl_b32 s%d, s%d, 16" % (sT0, sD))
        e("s_and_b32 s%d, s%d, 0xffff0000" % (sT1, sD))
        e("s_cmp_eq_u32 s%d, 0" % sCHL)
        e("s_cselect_b32 s%d, s%d, s%d" % (sD, sT0, sT1))
        e("s_barrier")
        self.stamp(1)

        KH = [24, 34]
        KM = [26, 36]
        VV = [40, 44]
        QQ = [48, 52]
        for rho in range(2):
            self.lds("ds_read_b64_tr_b16 %s, %s offset:%d" % (v(KH[rho], 2), v(vTRH), 512 + 4096 * rho), "k%d" % rho)
            self.lds("ds_read_b64_tr_b16 %s, %s offset:%d" % (v(KM[rho], 2), v(vTR), 1024 + 4096 * rho), "k%d" % rho)
            self.lds("ds_read_b64_tr_b16 %s, %s offset:%d" % (v(KM[rho] + 2, 2), v(vTR), 1024 + 512 + 4096 * rho), "k%d" % rho)
            self.lds("ds_read_b64_tr_b16 %s, %s offset:%d" % (v(VV[rho], 2), v(vTR), L_V - L_K + 4096 * rho), "v%d" % rho)
            self.lds("ds_read_b64_tr_b16 %s, %s offset:%d" % (v(VV[rho] + 2, 2), v(vTR), L_V - L_K + 512 + 4096 * rho), "v%d" % rho)
        for rho in range(2):
            self.lds("ds_read_b64_tr_b16 %s, %s offset:%d" % (v(QQ[rho], 2), v(vTR), L_Q - L_K + 4096 * rho), "q")
            self.lds("ds_read_b64_tr_b16 %s, %s offset:%d" % (v(QQ[rho] + 2, 2), v(vTR), L_Q - L_K + 512 + 4096 * rho), "q")
        CA, CB = 21, 22
        e("v_alignbit_b32 %s, %s, %s, 16" % (v(CA), v(vSK), v(vSK)))
        e("v_alignbit_b32 %s, %s, %s, 16" % (v(CB), v(vSK + 1), v(vSK + 1)))
        MM = 56
        KS = 64
        VF = 72
        OUTR = [80, 84]
        for rho in range(2):
            self.wait_lg("v%d" % rho)
            Dw = [KH[rho], KH[rho] + 1, KM[rho], KM[rho] + 1, KM[rho] + 2, KM[rho] + 3]
            for i in range(5):
                e("v_alignbit_b32 %s, %s, %s, 16" % (v(MM + i), v(Dw[i + 1]), v(Dw[i])))
            for t in range(8):
                if t & 1:
                    p0, p1 = Dw[2 + (t >> 1)], Dw[1 + (t >> 1)]
                else:
                    p0, p1 = MM + 1 + (t >> 1), MM + (t >> 1)
                e("v_dot2_f32_bf16 %s, %s, %s, 0" % (v(KS + t), v(p1), v(CB)))
            for t in range(8):
                if t & 1:
                    p0 = Dw[2 + (t >> 1)]
                else:
                    p0 = MM + 1 + (t >> 1)
                e("v_dot2_f32_bf16 %s, %s, %s, %s" % (v(KS + t), v(p0), v(CA), v(KS + t)))
            for t in range(8):
                src = VV[rho] + (t >> 1)
                if t & 1:
                    e("v_and_b32 %s, 0xffff0000, %s" % (v(VF + t), v(src)))
                else:
                    e("v_lshlrev_b32 %s, 16, %s" % (v(VF + t), v(src)))
            for t in range(8):
                e("v_mul_f32 %s, %s, %s" % (v(KS + t), v(KS + t), v(VF + t)))
            for i in range(4):
                e("v_cvt_pk_bf16_f32 %s, %s, %s" % (v(OUTR[rho] + i), v(KS + 7 - 2 * i), v(KS + 6 - 2 * i)))
            self.vmem("buffer_store_dwordx4 %s, %s, %s, 0 offen offset:%d sc1" % (v(OUTR[rho], 4), v(vSKV), srd(SRD_WS), 64 if rho == 0 else 0), "a0st")
        self.wait_lg("q")
        for rho in range(2):
            self.vmem("buffer_store_dwordx4 %s, %s, %s, 0 offen offset:%d sc1" % (v(QQ[rho], 4), v(vSQ), srd(SRD_WS), 64 * rho), "a0st")
        vGO, vZERO = 23, 58
        e("v_mov_b32 %s, 0" % v(vZERO))
        self.vmem("buffer_load_dword %s, %s, %s, 0 offen offset:%d sc1" % (v(vGO), v(vZERO), srd(SRD_DBG), self.go_off), "go")
        self.stamp(2)

    def t_pad(self):
        e = self.e
        vH0, vZ, vZA = 12, 19, 20
        e("v_lshlrev_b32 %s, 16, %s" % (v(vH0), v(vH0)))
        e("v_cmp_eq_u32 vcc, 7, v1")
        e("s_nop 3")
        e("s_cmp_eq_u32 s%d, 1" % sHALF)
        e("s_cselect_b64 s[%d:%d], vcc, 0" % (sEX, sEX + 1))
        e("v_mov_b32 %s, 0" % v(vZ))
        e("s_nop 1")
        e("v_cndmask_b32 %s, %s, %s, s[%d:%d]" % (v(vZ), v(vZ), v(vH0), sEX, sEX + 1))
        e("s_mul_i32 s%d, s%d, 4160" % (sT2, sWAVE))
        e("s_add_u32 s%d, s%d, %d" % (sT2, sT2, L_TS))
        e("v_lshl_add_u32 %s, v1, 2, s%d" % (v(vZA), sT2))
        e("s_mov_b64 exec, 0xff")
        self.lds("ds_write_b32 %s, %s" % (v(vZA), v(vZ)), "z")
        e("s_mov_b64 exec, -1")
        self.wait_lg0()

    def w_stage_setup(self):
        e = self.e
        vT = 7
        e("v_lshrrev_b32 %s, 2, v1" % v(vT))
        e("v_mul_u32_u24 %s, 3584, %s" % (v(vT), v(vT)))
        e("v_and_b32 %s, 3, v1" % v(vWS))
        e("v_xor_b32 %s, 2, %s" % (v(vWS + 1), v(vWS)))
        e("v_lshl_add_u32 %s, %s, 4, %s" % (v(vWS), v(vWS), v(vT)))
        e("v_lshl_add_u32 %s, %s, 4, %s" % (v(vWS + 1), v(vWS + 1), v(vT)))
        e("v_add_u32 %s, %d, %s" % (v(vWS + 2), 57344 - 2048, v(vWS)))
        e("v_add_u32 %s, %d, %s" % (v(vWS + 3), 57344 - 2048, v(vWS + 1)))

    def w_stage_items(self, rnd):
        e = self.e
        items = []

        def setup():
            e("s_lshl_b32 s%d, s%d, 8" % (sWSO, sBJ))
            e("s_lshl_b32 s%d, s%d, 6" % (sWM, sWAVE))
            e("s_add_u32 s%d, s%d, s%d" % (sWSO, sWSO, sWM))
            if rnd:
                e("s_add_u32 s%d, s%d, %d" % (sWSO, sWSO, 14 * rnd * 57344))
            e("s_mul_i32 s%d, s%d, 28672" % (sWM, sWAVE))
            if L_WST:
                e("s_add_u32 s%d, s%d, %d" % (sWM, sWM, L_WST))
            e("s_mov_b32 m0, s%d" % sWM)
        for grp in range(7):
            for n in range(4):
                def one(grp=grp, n=n):
                    if grp == 0 and n == 0:
                        setup()
                        e("s_nop 0")
                    elif n == 0:
                        e("s_add_u32 s%d, s%d, 4096" % (sWM, sWM))
                        e("s_mov_b32 m0, s%d" % sWM)
                        e("s_add_u32 s%d, s%d, %d" % (sWSO, sWSO, 2 * 57344))
                    else:
                        pass
                    self.vmem("buffer_load_dwordx4 %s, %s, s%d offen offset:%d lds" % (v(vWS + (n & 1) + 2 * (n >> 1)), srd(SRD_WG if (n & 1) == 0 else SRD_WU), sWSO, 1024 * n), "w%d" % rnd)
                items.append(one)
        return items

    def w_stage_read(self, rnd):
        e = self.e
        self.c("W staging -> AGPR round %d" % rnd)
        vB0, vB1, vT, vU = 2, 3, 7, 4
        e("v_bfe_u32 %s, v1, 4, 1" % v(vT))
        e("v_lshrrev_b32 %s, 5, v1" % v(vU))
        e("v_lshlrev_b32 %s, 3, %s" % (v(vU), v(vU)))
        e("v_bfe_u32 %s, v1, 2, 2" % v(vB0))
        e("v_add_u32 %s, %s, %s" % (v(vU), v(vU), v(vB0)))
        e("v_lshlrev_b32 %s, 6, %s" % (v(vU), v(vU)))
        e("v_and_b32 %s, 3, v1" % v(vB0))
        e("v_lshl_add_u32 %s, %s, 3, %s" % (v(vU), v(vB0), v(vU)))
        e("v_mul_u32_u24 %s, 1056, %s" % (v(vT), v(vT)))
        e("s_mul_i32 s%d, s%d, 28672" % (sT0, sWAVE))
        e("v_add3_u32 %s, %s, %s, s%d" % (v(vB0), v(vU), v(vT), sT0))
        e("v_xor_b32 %s, 32, %s" % (v(vB1), v(vB0)))
        self.wait_vm("w%d" % rnd)
        for s in range(14):
            for ft in range(2):
                base = 8 * (14 * rnd + s) + 4 * ft
                for ee in range(2):
                    self.lds("ds_read_b64_tr_b16 %s, %s offset:%d" % (a(base + 2 * ee, 2), v(vB0 if ft == 0 else vB1), L_WST + 2048 * s + 256 * ee), "wr")

    def t_read(self):
        e = self.e
        self.c("T fragments -> a112..a239")
        vB, vT, vU = 8, 7, 4
        e("v_and_b32 %s, 15, v1" % v(vT))
        e("v_and_b32 %s, 1, %s" % (v(vU), v(vT)))
        e("v_add_u32 %s, %s, %s" % (v(vT), v(vT), v(vU)))
        e("v_lshrrev_b32 %s, 4, v1" % v(vB))
        e("v_lshl_add_u32 %s, %s, 3, %s" % (v(vT), v(vB), v(vT)))
        e("v_lshlrev_b32 %s, 1, %s" % (v(vT), v(vT)))
        e("v_xor_b32 %s, 1, %s" % (v(vU), v(vU)))
        e("v_mul_u32_u24 %s, 4160, %s" % (v(vU), v(vU)))
        e("s_mul_i32 s%d, s%d, 8320" % (sT0, sCHL))
        e("s_lshl_b32 s%d, s%d, 8" % (sT1, sHALF))
        e("s_add_u32 s%d, s%d, s%d" % (sT0, sT0, sT1))
        e("s_add_u32 s%d, s%d, %d" % (sT0, sT0, L_TS))
        e("v_add3_u32 %s, %s, %s, s%d" % (v(vB), v(vT), v(vU), sT0))
        for i in range(1, 4):
            e("v_add_u32 %s, %d, %s" % (v(vB + i), 1024 * i, v(vB)))
        for rr in range(4):
            for q in range(8):
                base = 112 + 4 * (8 * rr + q)
                o = 128 * (q & 1) + 16 * rr
                for hh in range(2):
                    self.lds("ds_read2_b32 %s, %s offset0:%d offset1:%d" % (a(base + 2 * hh, 2), v(vB + (q >> 1)), o + 2 * hh, o + 2 * hh + 1), "t")

    def phase_a1(self):
        e = self.e
        self.c("==== A1 ====")
        ACC = 32
        XF = [64, 96]
        QR, KVR, AR, BR = 128, 136, 144, 160
        LN, KD, QF = 176, 192, 208
        Y = 224
        vT, vU = 7, 4
        vL16 = 9
        e("v_lshlrev_b32 %s, 4, v1" % v(vL16))
        e("s_lshl_b32 s%d, s2, 1" % sT0)
        e("s_add_u32 s%d, s%d, s%d" % (sT0, sT0, sCHL))
        e("s_lshl_b32 s%d, s%d, 12" % (sT0, sT0))
        vTL = 5
        e("v_and_b32 %s, 15, v1" % v(vT))
        e("v_lshrrev_b32 %s, 4, v1" % v(vU))
        e("v_lshlrev_b32 %s, 2, %s" % (v(vU), v(vU)))
        e("v_lshl_add_u32 %s, %s, 4, %s" % (v(vTL), v(vT), v(vU)))
        e("s_lshl_b32 s%d, s%d, 10" % (sT1, sHALF))
        e("v_add_u32 %s, s%d, %s" % (v(vTL), sT1, v(vTL)))
        vQA, vSA = 6, 8
        e("s_add_u32 s%d, s%d, %d" % (sT2, sT0, WS_QT))
        e("v_lshl_add_u32 %s, %s, 1, s%d" % (v(vQA), v(vTL), sT2))
        e("v_lshlrev_b32 %s, 2, %s" % (v(vSA), v(vTL)))
        e("s_mov_b32 s%d, %d" % (sT4, WS_ST1))
        e("s_mov_b32 s%d, %d" % (sT5, WS_ST1 + 8192))
        vXB, vKVA, vEW, vER = 10, 11, 12, 13
        e("v_and_b32 %s, 15, v1" % v(vT))
        e("v_lshrrev_b32 %s, 4, v1" % v(vU))
        e("v_lshlrev_b32 %s, 4, %s" % (v(vU), v(vU)))
        e("v_lshlrev_b32 %s, 5, %s" % (v(vT), v(vT)))
        e("v_sub_u32 %s, %s, %s" % (v(vXB), v(vU), v(vT)))
        e("s_mul_i32 s%d, s%d, 4608" % (sT0, sCHL))
        e("s_lshl_b32 s%d, s%d, 8" % (sT1, sHALF))
        e("s_add_u32 s%d, s%d, s%d" % (sT1, sT1, sT0))
        e("s_add_u32 s%d, s%d, %d" % (sT1, sT1, L_X + 480))
        e("v_add_u32 %s, s%d, %s" % (v(vXB), sT1, v(vXB)))
        e("s_add_u32 s%d, s%d, %d" % (sT1, sT0, L_X + 4088 - 1536))
        e("v_lshlrev_b32 %s, 1, %s" % (v(vT), v(vTL)))
        e("v_sub_u32 %s, s%d, %s" % (v(vKVA), sT1, v(vT)))
        e("s_lshl_b32 s%d, s%d, 12" % (sT0, sWAVE))
        e("s_add_u32 s%d, s%d, %d" % (sT1, sT0, L_EX))
        e("v_add_u32 %s, s%d, %s" % (v(vEW), sT1, v(vL16)))
        e("s_xor_b32 s%d, s%d, 0x1000" % (sT0, sT0))
        e("s_add_u32 s%d, s%d, %d" % (sT1, sT0, L_EX))
        e("v_add_u32 %s, s%d, %s" % (v(vER), sT1, v(vL16)))
        vHO = 14
        vRow = 15
        e("v_lshrrev_b32 %s, 4, v1" % v(vRow))
        e("v_and_b32 %s, 15, v1" % v(vT))
        e("v_lshrrev_b32 %s, 1, %s" % (v(vU), v(vT)))
        e("v_and_b32 %s, 1, %s" % (v(vHO), v(vRow)))
        e("v_lshl_add_u32 %s, %s, 3, %s" % (v(vU), v(vHO), v(vU)))
        e("v_mul_u32_u24 %s, 28672, %s" % (v(vHO), v(vU)))
        e("v_and_b32 %s, 1, %s" % (v(vT), v(vT)))
        e("v_lshl_add_u32 %s, %s, 5, %s" % (v(vHO), v(vT), v(vHO)))
        e("v_lshrrev_b32 %s, 1, %s" % (v(vRow), v(vRow)))
        e("v_lshl_add_u32 %s, %s, 4, %s" % (v(vHO), v(vRow), v(vHO)))
        e("s_lshl_b32 s%d, s2, 1" % sT0)
        e("s_add_u32 s%d, s%d, s%d" % (sT0, sT0, sCHL))
        e("s_lshl_b32 s%d, s%d, 6" % (sT0, sT0))
        e("s_mul_i32 s%d, s%d, %d" % (sT1, sHALF, 32 * 28672))
        e("s_add_u32 s%d, s%d, s%d" % (sT0, sT0, sT1))
        e("s_add_u32 s%d, s%d, %d" % (sT6, sT0, WS_HB))
        e("s_add_u32 s%d, s%d, %d" % (sT7, sT6, 16 * 28672))
        lab = self.newlabel("x0")
        e("s_cmp_eq_u32 s%d, 0" % sWAVE)
        e("s_cbranch_scc0 %s" % lab)
        self.spin(*self.a1_poll)
        self.stamp(4)
        e("s_lshl_b32 s%d, s2, 13" % sT0)
        if WS_KVT:
            e("s_add_u32 s%d, s%d, %d" % (sT0, sT0, WS_KVT))
        e("s_mov_b32 m0, %d" % L_X)
        e("s_nop 0")
        for i in range(4):
            e("buffer_load_dwordx4 %s, %s, s%d offen offset:%d sc1 lds" % (v(vL16), srd(SRD_WS), sT0, 1024 * i))
        e("s_add_u32 s%d, s%d, 4096" % (sT0, sT0))
        e("s_mov_b32 m0, %d" % (L_X + 4608))
        e("s_nop 0")
        for i in range(4):
            e("buffer_load_dwordx4 %s, %s, s%d offen offset:%d sc1 lds" % (v(vL16), srd(SRD_WS), sT0, 1024 * i))
        save = list(self.vm)
        for it in self.w0_early:
            it()
        self.vm = save
        e("s_waitcnt vmcnt(%d)" % len(self.w0_early))
        self.label(lab)
        self.vm += ["w0"] * len(self.w0_early)
        e("s_barrier")
        self.stamp(5)

        def xread(rr):
            for m in range(8):
                self.lds("ds_read_b128 %s, %s offset:%d" % (v(XF[rr & 1] + 4 * m, 4), v(vXB), 512 * (7 - m) + 64 * rr), "x%d" % rr)

        fill = []
        for cc in range(4):
            fill.append(("vm", "buffer_load_dwordx2 %s, %s, %s, 0 offen offset:%d sc1" % (v(QR + 2 * cc, 2), v(vQA), srd(SRD_WS), 512 * cc), "q"))
        for cc in range(4):
            fill.append(("vm", "buffer_load_dwordx4 %s, %s, %s, s%d offen offset:%d sc1" % (v(AR + 4 * cc, 4), v(vSA), srd(SRD_WS), sT4, 1024 * cc), "ab"))
            fill.append(("vm", "buffer_load_dwordx4 %s, %s, %s, s%d offen offset:%d sc1" % (v(BR + 4 * cc, 4), v(vSA), srd(SRD_WS), sT5, 1024 * cc), "ab"))
        for it in self.w0_rest:
            fill.append(("fn", it))
            fill.append(("skip",))
            fill.append(("skip",))
        for cc in range(4):
            fill.append(("lds", "ds_read_b64 %s, %s offset:%d" % (v(KVR + 2 * cc, 2), v(vKVA), 512 * (3 - cc)), "kv"))
        fill.append(("waitvm", ["q", "ab"]))
        for cc in range(4):
            for i in range(4):
                src = QR + 2 * cc + (i >> 1)
                if i & 1:
                    fill.append(("v", "v_and_b32 %s, 0xffff0000, %s" % (v(QF + 4 * cc + i), v(src))))
                else:
                    fill.append(("v", "v_lshlrev_b32 %s, 16, %s" % (v(QF + 4 * cc + i), v(src))))
        for x in range(16):
            fill.append(("v", "v_fma_f32 %s, %s, %s, %s" % (v(LN + x), v(QF + x), v(AR + x), v(BR + x))))
        fill.append(("waitlg", "kv"))
        for cc in range(4):
            for i in range(4):
                src = KVR + 2 * cc + (1 - (i >> 1))
                if i & 1:
                    fill.append(("v", "v_lshlrev_b32 %s, 16, %s" % (v(KD + 4 * cc + i), v(src))))
                else:
                    fill.append(("v", "v_and_b32 %s, 0xffff0000, %s" % (v(KD + 4 * cc + i), v(src))))
        for x in range(16):
            fill.append(("v", "v_mul_f32 %s, s%d, %s" % (v(KD + x), sD, v(KD + x))))
        fi = 0
        nslow = 12 + 3 * len(self.w0_rest)

        def filler():
            nonlocal fi
            while fi < len(fill):
                k = fill[fi]
                fi += 1
                if k[0] == "v":
                    e(k[1])
                    return
                if k[0] == "lds":
                    self.lds(k[1], k[2])
                    return
                if k[0] == "vm":
                    self.vmem(k[1], k[2])
                    return
                if k[0] == "fn":
                    k[1]()
                    return
                if k[0] == "skip":
                    return
                if k[0] == "waitvm":
                    self.wait_vm(k[1])
                    return
                if k[0] == "waitlg":
                    self.wait_lg(k[1])
                    return

        xread(0)
        for rr in range(4):
            self.wait_lg("x%d" % rr)
            cnt = 0
            for q in range(8):
                for c in range(q, 8):
                    m = c - q
                    srcc = "0" if (rr == 0 and q == 0) else v(ACC + 4 * c, 4)
                    e("v_mfma_f32_16x16x32_bf16 %s, %s, %s, %s" % (v(ACC + 4 * c, 4), a(112 + 4 * (8 * rr + q), 4), v(XF[rr & 1] + 4 * m, 4), srcc))
                    cnt += 1
                    if rr < 3 and cnt <= 8:
                        m2 = cnt - 1
                        self.lds("ds_read_b128 %s, %s offset:%d" % (v(XF[(rr + 1) & 1] + 4 * m2, 4), v(vXB), 512 * (7 - m2) + 64 * (rr + 1)), "x%d" % (rr + 1))
                    else:
                        filler()
                        if fi > nslow:
                            filler()
        while fi < len(fill):
            filler()
        self.stamp(6)
        e("s_nop 7")
        lab1, lab2 = self.newlabel("h1"), self.newlabel("hj")
        TMP = XF[0]
        e("s_cmp_eq_u32 s%d, 0" % sHALF)
        e("s_cbranch_scc0 %s" % lab1)
        for cc in range(4):
            e("ds_write_b128 %s, %s offset:%d" % (v(vEW), v(ACC + 16 + 4 * cc, 4), 1024 * cc))
        for x in range(16):
            e("v_add_f32 %s, %s, %s" % (v(Y + x), v(ACC + x), v(KD + x)))
        e("s_branch %s" % lab2)
        self.label(lab1)
        for cc in range(4):
            e("ds_write_b128 %s, %s offset:%d" % (v(vEW), v(ACC + 4 * cc, 4), 1024 * cc))
        for x in range(16):
            e("v_add_f32 %s, %s, %s" % (v(Y + x), v(ACC + 16 + x), v(KD + x)))
        self.label(lab2)
        e("s_waitcnt lgkmcnt(0)")
        self.lg = []
        e("s_barrier")
        for cc in range(4):
            self.lds("ds_read_b128 %s, %s offset:%d" % (v(TMP + 4 * cc, 4), v(vER), 1024 * cc), "ex%d" % cc)
        P = XF[0] + 16
        for cc in range(4):
            self.wait_lg("ex%d" % cc)
            for i in range(4):
                x = 4 * cc + i
                e("v_add_f32 %s, %s, %s" % (v(Y + x), v(Y + x), v(TMP + x)))
            for i in range(4):
                x = 4 * cc + i
                e("v_fma_f32 %s, %s, %s, %s" % (v(Y + x), v(LN + x), v(Y + x), v(QF + x)))
            e("v_cvt_pk_bf16_f32 %s, %s, %s" % (v(P + 2 * cc), v(Y + 4 * cc), v(Y + 4 * cc + 1)))
            e("v_cvt_pk_bf16_f32 %s, %s, %s" % (v(P + 2 * cc + 1), v(Y + 4 * cc + 2), v(Y + 4 * cc + 3)))
            if cc & 1:
                b = P + 2 * (cc - 1)
                e("s_nop 1")
                e("v_permlane16_swap_b32 %s, %s" % (v(b), v(b + 2)))
                e("v_permlane16_swap_b32 %s, %s" % (v(b + 1), v(b + 3)))
                self.vmem("buffer_store_dwordx4 %s, %s, %s, s%d offen sc1" % (v(b, 4), v(vHO), srd(SRD_WS), sT6 if cc == 1 else sT7), "hst")
        self.stamp(7)

    def helper(self):
        e = self.e
        self.label("L_helper")
        self.in_helper = True
        self.vm = []
        self.lg = []
        self.c("==== helper ====")
        sH = sRB
        e("s_sub_u32 s%d, s2, 224" % sH)
        vT, vU, vZ = 7, 4, 5
        e("v_mov_b32 %s, 0" % v(vZ))
        FR = 32
        vQ = 6
        e("s_lshl_b32 s%d, s%d, 6" % (sT0, sH))
        e("s_lshl_b32 s%d, s%d, 4" % (sT1, sWAVE))
        e("s_add_u32 s%d, s%d, s%d" % (sT0, sT0, sT1))
        e("v_and_b32 %s, 15, v1" % v(vT))
        e("v_add_u32 %s, s%d, %s" % (v(8), sT0, v(vT)))
        e("v_mul_u32_u24 %s, 896, %s" % (v(vQ), v(8)))
        e("v_lshrrev_b32 %s, 4, v1" % v(vU))
        e("v_lshl_add_u32 %s, %s, 4, %s" % (v(vQ), v(vU), v(vQ)))
        for s in range(14):
            self.vmem("buffer_load_dwordx4 %s, %s, %s, 0 offen offset:%d" % (v(FR + 4 * s, 4), v(vQ), srd(SRD_Q), 64 * s), "q")
        lab = self.newlabel("hz")
        e("s_cmp_eq_u32 s%d, 0" % sWAVE)
        e("s_cbranch_scc0 %s" % lab)
        e("s_lshl_b32 s%d, s%d, 8" % (sT0, sH))
        e("s_add_u32 s%d, s%d, %d" % (sT0, sT0, WS_ST2))
        e("v_lshl_add_u32 %s, v1, 2, s%d" % (v(vT), sT0))
        e("buffer_store_dword %s, %s, %s, 0 offen sc1" % (v(vZ), v(vT), srd(SRD_WS)))
        self.label(lab)
        lab = self.newlabel("hc")
        e("s_cmp_eq_u32 s%d, 0" % sH)
        e("s_cbranch_scc0 %s" % lab)
        e("v_lshlrev_b32 %s, 8, v0" % v(vT))
        e("v_add_u32 %s, %d, %s" % (v(vT), WS_CNT, v(vT)))
        e("v_cmp_gt_u32 vcc, %d, v0" % N_CNT)
        e("s_and_saveexec_b64 s[%d:%d], vcc" % (sEX, sEX + 1))
        lab2 = self.newlabel("hc2")
        e("s_cbranch_execz %s" % lab2)
        e("buffer_store_dword %s, %s, %s, 0 offen sc1" % (v(vZ), v(vT), srd(SRD_WS)))
        self.label(lab2)
        e("s_mov_b64 exec, s[%d:%d]" % (sEX, sEX + 1))
        e("s_waitcnt vmcnt(0)")
        e("s_barrier")
        e("v_mov_b32 %s, 1" % v(vU))
        lab3 = self.newlabel("hc3")
        e("s_cmp_eq_u32 s%d, 0" % sWAVE)
        e("s_cbranch_scc0 %s" % lab3)
        e("s_mov_b64 exec, 1")
        e("buffer_store_dword %s, %s, %s, 0 offen offset:%d sc1" % (v(vU), v(vZ), srd(SRD_DBG), self.go_off))
        e("s_mov_b64 exec, -1")
        self.label(lab3)
        self.label(lab)
        ONES = 16
        for i in range(4):
            e("v_mov_b32 %s, 0x3f803f80" % v(ONES + i))
        self.wait_vm("q")
        GR, SM = 20, 24
        self.stats_mfma(lambda s: FR + 4 * s, ONES, GR, SM, None)
        A_, B_ = 28, 29
        self.stats_finish(GR, SM, A_, B_, None)
        e("v_lshlrev_b32 %s, 2, %s" % (v(vT), v(8)))
        e("s_mov_b32 s%d, %d" % (sT4, WS_ST1))
        e("s_mov_b32 s%d, %d" % (sT5, WS_ST1 + 8192))
        e("s_mov_b32 exec_lo, 0x00f0000f")
        e("s_mov_b32 exec_hi, 0xf0000f00")
        self.vmem("buffer_store_dword %s, %s, %s, s%d offen sc1" % (v(A_), v(vT), srd(SRD_WS), sT4), "st")
        self.vmem("buffer_store_dword %s, %s, %s, s%d offen sc1" % (v(B_), v(vT), srd(SRD_WS), sT5), "st")
        e("s_mov_b64 exec, -1")
        vGO = 30
        loop, done = self.newlabel("go"), self.newlabel("god")
        e("s_mov_b32 s%d, %d" % (sSPIN, SPIN_LIMIT))
        self.label(loop)
        e("buffer_load_dword %s, %s, %s, 0 offen offset:%d sc1" % (v(vGO), v(vZ), srd(SRD_DBG), self.go_off))
        e("s_waitcnt vmcnt(0)")
        self.vm = []
        e("v_cmp_eq_u32 vcc, 0, %s" % v(vGO))
        e("s_nop 4")
        e("s_cbranch_vccz %s" % done)
        e("s_sub_u32 s%d, s%d, 1" % (sSPIN, sSPIN))
        e("s_cmp_lg_u32 s%d, 0" % sSPIN)
        e("s_cbranch_scc1 %s" % loop)
        self.label(done)
        e("s_barrier")
        e("v_lshlrev_b32 %s, 8, v1" % v(vT))
        e("v_add_u32 %s, %d, %s" % (v(vT), WS_CNT + 256 * C_SL1, v(vT)))
        e("v_mov_b32 %s, 1" % v(vU))
        self.signal(vT, vU, 8)
        self.stamp(3)
        if self.stop in ("a0", "a1"):
            self.wait_all()
            e("s_endpgm")
            return
        e("v_and_b32 %s, 15, v1" % v(vT))
        e("v_lshlrev_b32 %s, 8, %s" % (v(vT), v(vT)))
        e("v_add_u32 %s, %d, %s" % (v(vT), WS_CNT + 256 * C_S2, v(vT)))
        e("v_mov_b32 %s, 14" % v(vU))
        self.poll(vT, vU, vGO)
        self.stamp(8)
        e("s_lshr_b32 s%d, s%d, 1" % (sT0, sH))
        e("s_lshl_b32 s%d, s%d, 2" % (sT0, sT0))
        e("s_and_b32 s%d, s%d, 1" % (sT1, sH))
        e("s_add_u32 s%d, s%d, s%d" % (sT0, sT0, sT1))
        e("s_mul_i32 s%d, s%d, 28672" % (sT2, sT0))
        e("s_add_u32 s%d, s%d, %d" % (sT2, sT2, WS_HB))
        vL16 = 9
        e("v_lshlrev_b32 %s, 4, v1" % v(vL16))
        e("s_mul_i32 s%d, s%d, 7168" % (sT3, sWAVE))
        for blk in range(2):
            e("s_add_u32 s%d, s%d, s%d" % (sT4, sT2, sT3))
            if blk:
                e("s_add_u32 s%d, s%d, %d" % (sT4, sT4, 2 * 28672))
            e("s_add_u32 m0, s%d, %d" % (sT3, 28672 * blk))
            e("s_nop 0")
            for i in range(4):
                self.vmem("buffer_load_dwordx4 %s, %s, s%d offen offset:%d sc1 lds" % (v(vL16), srd(SRD_WS), sT4, 1024 * i), "hb")
            e("s_add_u32 s%d, s%d, 4096" % (sT4, sT4))
            e("s_add_u32 m0, s%d, %d" % (sT3, 28672 * blk + 4096))
            e("s_nop 0")
            for i in range(3):
                self.vmem("buffer_load_dwordx4 %s, %s, s%d offen offset:%d sc1 lds" % (v(vL16), srd(SRD_WS), sT4, 1024 * i), "hb")
        vA = 10
        e("v_lshrrev_b32 %s, 4, v1" % v(vT))
        e("v_bfe_u32 %s, v1, 2, 2" % v(vU))
        e("v_lshl_add_u32 %s, %s, 3, %s" % (v(vT), v(vT), v(vU)))
        e("v_lshlrev_b32 %s, 6, %s" % (v(vT), v(vT)))
        e("v_and_b32 %s, 3, v1" % v(vU))
        e("v_lshl_add_u32 %s, %s, 3, %s" % (v(vA), v(vU), v(vT)))
        e("s_lshr_b32 s%d, s%d, 1" % (sT4, sWAVE))
        e("s_mul_i32 s%d, s%d, 28672" % (sT4, sT4))
        e("s_and_b32 s%d, s%d, 1" % (sT5, sWAVE))
        e("s_lshl_b32 s%d, s%d, 5" % (sT5, sT5))
        e("s_add_u32 s%d, s%d, s%d" % (sT4, sT4, sT5))
        e("v_add_u32 %s, s%d, %s" % (v(vA), sT4, v(vA)))
        self.wait_vm("hb")
        e("s_barrier")
        for s in range(14):
            for ee in range(2):
                self.lds("ds_read_b64_tr_b16 %s, %s offset:%d" % (v(FR + 4 * s + 2 * ee, 2), v(vA), 2048 * s + 256 * ee), "f%d" % s)
        self.stats_mfma(lambda s: FR + 4 * s, ONES, GR, SM, lambda s: self.wait_lg("f%d" % s))
        PK = 28
        self.stats_finish(GR, SM, None, None, PK)
        e("s_lshr_b32 s%d, s%d, 1" % (sT4, sWAVE))
        e("s_lshl_b32 s%d, s%d, 1" % (sT4, sT4))
        e("s_add_u32 s%d, s%d, s%d" % (sT4, sT4, sT0))
        e("s_lshl_b32 s%d, s%d, 5" % (sT4, sT4))
        e("s_and_b32 s%d, s%d, 1" % (sT5, sWAVE))
        e("s_lshl_b32 s%d, s%d, 4" % (sT5, sT5))
        e("s_add_u32 s%d, s%d, s%d" % (sT4, sT4, sT5))
        e("s_lshl_b32 s%d, s%d, 2" % (sT4, sT4))
        e("s_add_u32 s%d, s%d, %d" % (sT4, sT4, WS_ST2))
        e("v_and_b32 %s, 15, v1" % v(vT))
        e("v_lshl_add_u32 %s, %s, 2, s%d" % (v(vT), v(vT), sT4))
        e("s_mov_b32 exec_lo, 0x00f0000f")
        e("s_mov_b32 exec_hi, 0xf0000f00")
        self.vmem("buffer_store_dword %s, %s, %s, 0 offen sc1" % (v(PK), v(vT), srd(SRD_WS)), "st")
        e("s_mov_b64 exec, -1")
        self.stamp(9)
        self.wait_all()
        e("s_endpgm")

    def stats_mfma(self, frag, ONES, GR, SM, pre):
        e = self.e
        for s in range(14):
            if pre:
                pre(s)
            f = frag(s)
            e("v_mfma_f32_16x16x32_bf16 %s, %s, %s, %s" % (v(GR, 4), v(f, 4), v(f, 4), "0" if s == 0 else v(GR, 4)))
            e("v_mfma_f32_16x16x32_bf16 %s, %s, %s, %s" % (v(SM, 4), v(ONES, 4), v(f, 4), "0" if s == 0 else v(SM, 4)))
        e("s_nop 7")

    def stats_finish(self, GR, SM, A_, B_, PK):
        e = self.e
        t0, t1, t2 = 11, 12, 13
        e("s_mov_b32 s%d, 0x22222222" % sT6)
        e("s_mov_b32 s%d, 0x22222222" % sT7)
        e("v_cndmask_b32 %s, %s, %s, s[%d:%d]" % (v(t0), v(GR), v(GR + 1), sT6, sT7))
        e("s_mov_b32 s%d, 0x44444444" % sT6)
        e("s_mov_b32 s%d, 0x44444444" % sT7)
        e("v_cndmask_b32 %s, %s, %s, s[%d:%d]" % (v(t0), v(t0), v(GR + 2), sT6, sT7))
        e("s_mov_b32 s%d, 0x88888888" % sT6)
        e("s_mov_b32 s%d, 0x88888888" % sT7)
        e("v_cndmask_b32 %s, %s, %s, s[%d:%d]" % (v(t0), v(t0), v(GR + 3), sT6, sT7))
        e("s_mov_b32 s%d, 0x3b124925" % sT6)
        e("v_mul_f32 %s, s%d, %s" % (v(t1), sT6, v(SM)))
        e("v_mul_f32 %s, s%d, %s" % (v(t0), sT6, v(t0)))
        e("v_fma_f32 %s, -%s, %s, %s" % (v(t0), v(t1), v(t1), v(t0)))
        e("v_max_f32 %s, 0, %s" % (v(t0), v(t0)))
        e("v_cvt_pk_bf16_f32 %s, %s, %s" % (v(t0), v(t0), v(t1)))
        e("v_and_b32 %s, 0xffff0000, %s" % (v(t1), v(t0)))
        e("v_lshlrev_b32 %s, 16, %s" % (v(t0), v(t0)))
        e("v_add_f32 %s, 0x3727c5ac, %s" % (v(t0), v(t0)))
        e("v_cvt_pk_bf16_f32 %s, %s, %s" % (v(t0), v(t0), v(t0)))
        e("v_lshlrev_b32 %s, 16, %s" % (v(t0), v(t0)))
        e("v_sqrt_f32 %s, %s" % (v(t0), v(t0)))
        e("s_nop 0")
        e("v_cvt_pk_bf16_f32 %s, %s, %s" % (v(t0), v(t0), v(t0)))
        if PK is not None:
            e("v_lshrrev_b32 %s, 16, %s" % (v(t2), v(t1)))
            e("v_and_b32 %s, 0xffff0000, %s" % (v(t0), v(t0)))
            e("v_or_b32 %s, %s, %s" % (v(PK), v(t0), v(t2)))
        else:
            e("v_lshlrev_b32 %s, 16, %s" % (v(t0), v(t0)))
            e("v_rcp_f32 %s, %s" % (v(A_), v(t0)))
            e("s_nop 0")
            e("v_mul_f32 %s, -%s, %s" % (v(B_), v(t1), v(A_)))

    def decode_bc(self):
        e = self.e
        e("s_and_b32 s%d, s2, 7" % sT0)
        e("s_lshr_b32 s%d, s2, 3" % sT1)
        e("s_mul_i32 s%d, s%d, 37" % (sT2, sT1))
        e("s_lshr_b32 s%d, s%d, 8" % (sT2, sT2))
        e("s_mul_i32 s%d, s%d, 7" % (sT3, sT2))
        e("s_sub_u32 s%d, s%d, s%d" % (sT3, sT1, sT3))
        e("s_lshr_b32 s%d, s%d, 1" % (sT4, sT0))
        e("s_lshl_b32 s%d, s%d, 2" % (sT4, sT4))
        e("s_add_u32 s%d, s%d, s%d" % (sBI, sT4, sT2))
        e("s_and_b32 s%d, s%d, 1" % (sT4, sT0))
        e("s_mul_i32 s%d, s%d, 7" % (sT4, sT4))
        e("s_add_u32 s%d, s%d, s%d" % (sBJ, sT4, sT3))
        e("s_lshl_b32 s%d, s%d, 2" % (sT4, sT0))
        e("s_add_u32 s%d, s%d, s%d" % (sT4, sT4, sT2))
        e("s_lshr_b32 s%d, s%d, 1" % (sCI, sT4))
        e("s_and_b32 s%d, s%d, 1" % (sCS, sT4))
        e("s_mov_b32 s%d, s%d" % (sCJ, sT3))

    def main_path(self):
        e = self.e
        self.decode_bc()
        self.stamp(0)
        self.phase_a0()
        self.wait_vm("go")
        self.t_pad()
        vGO, vZERO = 23, 58
        loop, done = self.newlabel("go"), self.newlabel("god")
        e("s_mov_b32 s%d, %d" % (sSPIN, SPIN_LIMIT))
        self.label(loop)
        e("v_cmp_eq_u32 vcc, 0, %s" % v(vGO))
        e("s_nop 4")
        e("s_cbranch_vccz %s" % done)
        e("buffer_load_dword %s, %s, %s, 0 offen offset:%d sc1" % (v(vGO), v(vZERO), srd(SRD_DBG), self.go_off))
        e("s_waitcnt vmcnt(0)")
        e("s_sub_u32 s%d, s%d, 1" % (sSPIN, sSPIN))
        e("s_cmp_lg_u32 s%d, 0" % sSPIN)
        e("s_cbranch_scc1 %s" % loop)
        self.label(done)
        e("s_barrier")
        vA, vOne = 5, 6
        e("s_lshl_b32 s%d, s%d, 8" % (sT0, sG0))
        e("s_add_u32 s%d, s%d, %d" % (sT0, sT0, WS_CNT + 256 * C_S1))
        e("v_mov_b32 %s, s%d" % (v(vA), sT0))
        e("v_mov_b32 %s, 1" % v(vOne))
        self.signal(vA, vOne, 1)
        self.stamp(3)
        if self.endif_stop("a0"):
            return False
        self.w_stage_setup()
        w0 = self.w_stage_items(0)
        self.w0_early, self.w0_rest = w0[:8], w0[8:]
        lab = self.newlabel("w1")
        e("s_cmp_eq_u32 s%d, 0" % sWAVE)
        e("s_cbranch_scc1 %s" % lab)
        if self.prefetch:
            vP = 59
            e("s_mul_i32 s%d, s2, 7168" % sT0)
            e("s_sub_u32 s%d, s%d, 1" % (sT1, sWAVE))
            e("s_mul_i32 s%d, s%d, %d" % (sT1, sT1, 19 * 128))
            e("s_add_u32 s%d, s%d, s%d" % (sT0, sT0, sT1))
            e("v_lshl_add_u32 %s, v1, 7, s%d" % (v(vP), sT0))
            e("s_mov_b64 exec, 0x7ffff")
            e("buffer_load_dword v252, %s, %s, 0 offen" % (v(vP), srd(SRD_WG)))
            e("buffer_load_dword v252, %s, %s, 0 offen offset:1024" % (v(vP), srd(SRD_WU)))
            e("buffer_load_dword v252, %s, %s, 0 offen" % (v(vP), srd(SRD_WD)))
            e("s_mov_b64 exec, -1")
        save = list(self.vm)
        for it in self.w0_early:
            it()
        self.vm = save
        self.label(lab)
        self.t_read()
        vZ, vZA = 5, 6
        e("v_mov_b32 %s, 0" % v(vZ))
        e("s_mul_i32 s%d, s%d, 4608" % (sT0, sCHL))
        e("s_lshl_b32 s%d, s%d, 8" % (sT1, sHALF))
        e("s_add_u32 s%d, s%d, s%d" % (sT0, sT0, sT1))
        e("s_add_u32 s%d, s%d, %d" % (sT0, sT0, L_X + 4096))
        e("v_lshl_add_u32 %s, v1, 2, s%d" % (v(vZA), sT0))
        self.lds("ds_write_b32 %s, %s" % (v(vZA), v(vZ)), "z")
        self.wait_lg0()
        vA, vTg, vTmp = 16, 17, 18
        e("s_lshr_b32 s%d, s2, 5" % sT0)
        e("s_lshl_b32 s%d, s%d, 8" % (sT0, sT0))
        e("s_add_u32 s%d, s%d, %d" % (sT0, sT0, WS_CNT + 256 * C_S1))
        e("s_and_b32 s%d, s2, 7" % sT1)
        e("s_lshl_b32 s%d, s%d, 8" % (sT1, sT1))
        e("s_add_u32 s%d, s%d, %d" % (sT1, sT1, WS_CNT + 256 * C_SL1))
        e("v_mov_b32 %s, s%d" % (v(vA), sT0))
        e("v_mov_b32 %s, s%d" % (v(vTmp), sT1))
        e("v_cmp_eq_u32 vcc, 1, v1")
        e("v_mov_b32 %s, 32" % v(vTg))
        e("s_nop 0")
        e("v_cndmask_b32 %s, %s, %s, vcc" % (v(vA), v(vA), v(vTmp)))
        self.a1_poll = (vA, vTg, vTmp)
        self.phase_a1()
        self.w_stage_read(0)
        self.wait_vm("hst")
        self.wait_lg0()
        e("s_barrier")
        vA, vOne = 5, 6
        e("s_and_b32 s%d, s2, 15" % sT0)
        e("s_lshl_b32 s%d, s%d, 8" % (sT0, sT0))
        e("s_add_u32 s%d, s%d, %d" % (sT0, sT0, WS_CNT + 256 * C_S2))
        e("v_mov_b32 %s, s%d" % (v(vA), sT0))
        e("v_mov_b32 %s, 1" % v(vOne))
        self.signal(vA, vOne, 1)
        self.stamp(8)
        if self.endif_stop("a1"):
            return False
        return True

    def build(self):
        self.prologue()
        cont = self.main_path()
        if cont:
            from gen_bc import phase_b, phase_c
            phase_b(self)
            if not self.endif_stop("b"):
                phase_c(self)
                self.wait_all()
                self.e("s_endpgm")
        self.helper()
        self.label("L_end")
        self.e("s_endpgm")
        self.label("L_codeend")
        body = self.text()
        hdr = HEADER
        hdr += "; @launch grid=(256,1,1) block=(256,1,1) lds=%d\n" % LDS_BYTES
        hdr += '.amdgcn_target "amdgcn-amd-amdhsa--gfx950"\n.text\n.globl %s\n.p2align 8\n.type %s,@function\n%s:\n' % (NAME, NAME, NAME)
        tail = """
.section .rodata,"a"
.p2align 6
.amdhsa_kernel %s
  .amdhsa_next_free_vgpr 512
  .amdhsa_next_free_sgpr 102
  .amdhsa_accum_offset 256
  .amdhsa_group_segment_fixed_size 0
  .amdhsa_kernarg_size 104
  .amdhsa_user_sgpr_count 2
  .amdhsa_user_sgpr_kernarg_segment_ptr 1
  .amdhsa_system_sgpr_workgroup_id_x 1
.end_amdhsa_kernel
""" % NAME
        return hdr + body + tail, body


HEADER = """; Fused preLN -> H3 (shift conv, k*v, long causal conv, gate) -> preLN -> GLU FFN, one persistent launch.
"""

if __name__ == "__main__":
    import argparse
    ap = argparse.ArgumentParser()
    ap.add_argument("--stop", default=None)
    ap.add_argument("--stamps", action="store_true")
    ap.add_argument("--dbgst", action="store_true")
    ap.add_argument("--no-tlbwarm", action="store_true")
    ap.add_argument("--no-prefetch", action="store_true")
    ap.add_argument("-o", default="out.s")
    args = ap.parse_args()
    g = Gen(stop=args.stop, stamps=args.stamps, tlbwarm=not args.no_tlbwarm, prefetch=not args.no_prefetch, dbgst=args.dbgst)
    txt, body = g.build()
    open(args.o, "w").write(txt)
    check_hazards(body)
    print("wrote", args.o, len(txt), "bytes")
```

```python
import sys, os
sys.path.insert(0, os.path.dirname(os.path.abspath(__file__)))
from asmlib import Asm, check_hazards

NAME = "sequential_preLN__ssm_conv_h3__glu_gated_glu__prompt_kernel"
S, D, F = 2048, 448, 1792

WS_KVT = 0x000000
WS_QT = 0x200000
WS_HB = 0x400000
WS_HF = 0x600000
WS_ST1 = 0xE00000
WS_ST2 = 0xE08000
WS_CNT = 0xE10000
WS_TS = 0xF00000
WS_SIZE = 0x1000000
C_S1, C_SL1, C_S2, C_S3 = 0, 8, 16, 32
N_CNT = 96

L_WST = 0
L_K = 114688
L_V = L_K + 9216
L_Q = L_V + 8192
L_TS = L_Q + 8192
L_X = L_K
L_EX = L_V
L_HB = 0
L_WD = 86016
LDS_BYTES = 163840

sWAVE = 3
SRD_WS, SRD_Q, SRD_K, SRD_V, SRD_SK, SRD_SH, SRD_WG, SRD_WU, SRD_WD, SRD_OUT, SRD_DBG = 4, 8, 12, 16, 20, 24, 28, 32, 36, 40, 44
sPC = 48
sD = 50
sT0, sT1, sT2, sT3, sT4, sT5, sT6, sT7 = 76, 77, 78, 79, 80, 81, 82, 83
sA0BASE = 84
sG0 = 85
sRB = 86
sBI, sBJ = 87, 88
sCI, sCS, sCJ = 89, 90, 91
sSPIN = 92
sM = 93
sEX = 94
sTS = 96
sHALF = 98
sCHL = 99
sWSO, sWM = 51, 75
vWS = 248


def srd(n):
    return "s[%d:%d]" % (n, n + 3)


def v(a, n=1):
    return "v%d" % a if n == 1 else "v[%d:%d]" % (a, a + n - 1)


def a(i, n=1):
    return "a%d" % i if n == 1 else "a[%d:%d]" % (i, i + n - 1)


SPIN_LIMIT = 40000
DBG_IDX = [0, 1, 3, 4, 5, 6, 8, 9, 10, 11, 12, 13, 14, 15, 17, 20]


class Gen(Asm):
    def __init__(self, stop=None, stamps=False, tlbwarm=True, prefetch=True, dbgst=False):
        super().__init__()
        self.stop = stop
        self.stamps = stamps
        self.tlbwarm = tlbwarm
        self.prefetch = prefetch
        self.spin_us = 0
        self.dbgst = dbgst
        self.go_off = 128 if dbgst else 0

    def stamp(self, idx):
        if self.dbgst:
            if idx not in DBG_IDX or getattr(self, "in_helper", False):
                return
            lab = self.newlabel("st")
            self.e("s_cmp_eq_u32 s%d, 0" % sWAVE)
            self.e("s_cbranch_scc0 %s" % lab)
            self.e("s_and_b32 s%d, s2, 31" % sTS)
            self.e("s_cmp_eq_u32 s%d, %d" % (sTS, 5))
            self.e("s_cbranch_scc0 %s" % lab)
            self.e("s_memrealtime s[%d:%d]" % (sTS, sTS + 1))
            self.e("s_waitcnt lgkmcnt(0)")
            if idx == 0:
                self.e("s_not_b32 s%d, s%d" % (sTS, sTS))
            self.e("v_mov_b32 v30, s%d" % sTS)
            self.e("v_mov_b32 v31, %d" % (4 * DBG_IDX.index(idx)))
            self.e("s_mov_b64 exec, 1")
            self.e("buffer_atomic_umax v30, v31, %s, 0 offen sc1" % srd(SRD_DBG))
            self.e("s_mov_b64 exec, -1")
            self.label(lab)
            return
        if not self.stamps:
            return
        lab = self.newlabel("st")
        self.e("s_cmp_eq_u32 s%d, 0" % sWAVE)
        self.e("s_cbranch_scc0 %s" % lab)
        self.e("s_memrealtime s[%d:%d]" % (sTS, sTS + 1))
        self.e("s_memtime s[100:101]")
        self.e("s_waitcnt lgkmcnt(0)")
        self.e("v_mov_b32 v30, s%d" % sTS)
        self.e("s_lshl_b32 s%d, s2, 8" % (sTS + 1))
        self.e("s_add_u32 s%d, s%d, %d" % (sTS + 1, sTS + 1, WS_TS + 4 * idx))
        self.e("v_mov_b32 v31, s%d" % (sTS + 1))
        self.e("s_mov_b64 exec, 1")
        self.e("buffer_store_dword v30, v31, %s, 0 offen" % srd(SRD_WS))
        self.e("v_mov_b32 v30, s100")
        self.e("s_nop 1")
        self.e("buffer_store_dword v30, v31, %s, 0 offen offset:128" % srd(SRD_WS))
        self.e("s_mov_b64 exec, -1")
        self.label(lab)

    def spin(self, vaddr, vtarget, vtmp):
        loop = self.newlabel("ploop")
        done = self.newlabel("pdone")
        self.e("s_mov_b32 s%d, %d" % (sSPIN, SPIN_LIMIT))
        self.label(loop)
        self.e("buffer_load_dword %s, %s, %s, 0 offen sc1" % (v(vtmp), v(vaddr), srd(SRD_WS)))
        self.e("s_waitcnt vmcnt(0)")
        self.e("v_cmp_lt_u32 vcc, %s, %s" % (v(vtmp), v(vtarget)))
        self.e("s_nop 4")
        self.e("s_cbranch_vccz %s" % done)
        self.e("s_sub_u32 s%d, s%d, 1" % (sSPIN, sSPIN))
        self.e("s_cmp_lg_u32 s%d, 0" % sSPIN)
        self.e("s_cbranch_scc0 %s" % done)
        self.e("s_sleep 1")
        self.e("s_branch %s" % loop)
        self.label(done)

    def poll(self, vaddr, vtarget, vtmp):
        skip = self.newlabel("pskip")
        self.e("s_cmp_eq_u32 s%d, 0" % sWAVE)
        self.e("s_cbranch_scc0 %s" % skip)
        self.spin(vaddr, vtarget, vtmp)
        self.label(skip)
        self.e("s_barrier")

    def signal(self, vaddr, vone, nlanes):
        skip = self.newlabel("sig")
        self.e("s_cmp_eq_u32 s%d, 0" % sWAVE)
        self.e("s_cbranch_scc0 %s" % skip)
        self.e("s_mov_b64 exec, %d" % ((1 << nlanes) - 1))
        self.e("buffer_atomic_add %s, %s, %s, 0 offen sc1" % (v(vone), v(vaddr), srd(SRD_WS)))
        self.e("s_mov_b64 exec, -1")
        self.label(skip)

    def endif_stop(self, name):
        if self.stop == name:
            self.wait_all()
            self.e("s_endpgm")
            return True
        return False

    def prologue(self):
        e = self.e
        e("s_cmp_ge_u32 s2, 256")
        e("s_cbranch_scc1 L_end")
        e("s_load_dwordx4 s[52:55], s[0:1], 0")
        e("s_load_dwordx4 s[56:59], s[0:1], 16")
        e("s_load_dwordx4 s[60:63], s[0:1], 32")
        e("s_load_dwordx4 s[64:67], s[0:1], 56")
        e("s_load_dwordx4 s[68:71], s[0:1], 72")
        e("s_load_dwordx4 s[72:75], s[0:1], 88")
        if self.spin_us:
            e("s_memrealtime s[100:101]")
        e("s_getpc_b64 s[%d:%d]" % (sPC, sPC + 1))
        self.label("L_pc")
        e("v_and_b32 v1, 63, v0")
        e("v_lshrrev_b32 v2, 6, v0")
        e("s_nop 0")
        e("v_readfirstlane_b32 s%d, v2" % sWAVE)
        e("s_waitcnt lgkmcnt(0)")

        def mk(dst, src, size):
            e("s_mov_b32 s%d, s%d" % (dst, src))
            e("s_mov_b32 s%d, s%d" % (dst + 1, src + 1))
            e("s_mov_b32 s%d, %d" % (dst + 2, size))
            e("s_mov_b32 s%d, 0x20000" % (dst + 3))
        mk(SRD_Q, 52, S * D * 2)
        mk(SRD_K, 54, S * D * 2)
        mk(SRD_V, 56, S * D * 2)
        mk(SRD_SH, 58, D * 4 * 2)
        mk(SRD_SK, 60, S * D * 2)
        mk(SRD_WG, 64, D * F * 2)
        mk(SRD_WU, 66, D * F * 2)
        mk(SRD_WD, 68, D * F * 2)
        e("s_sub_u32 s%d, s%d, 1024" % (SRD_WU, SRD_WU))
        e("s_subb_u32 s%d, s%d, 0" % (SRD_WU + 1, SRD_WU + 1))
        e("s_add_u32 s%d, s%d, 1024" % (SRD_WU + 2, SRD_WU + 2))
        mk(SRD_OUT, 70, S * D * 2)
        mk(SRD_DBG, 72, 256)
        mk(SRD_WS, 74, WS_SIZE)
        lab = self.newlabel("nowarm")
        e("s_lshr_b32 s%d, s2, 3" % sT0)
        e("s_cmp_lt_u32 s%d, 4" % sT0)
        e("s_cbranch_scc0 %s" % lab)
        e("s_lshl_b32 s%d, s%d, 2" % (sT0, sT0))
        e("s_add_u32 s%d, s%d, s%d" % (sT0, sT0, sWAVE))
        e("s_mul_i32 s%d, s%d, (L_codeend-L_pc+15)/16" % (sT0, sT0))
        e("v_lshlrev_b32 v2, 5, v1")
        e("v_add_u32 v2, s%d, v2" % sT0)
        e("v_min_u32 v2, L_codeend-L_pc-4, v2")
        e("v_and_b32 v2, -4, v2")
        e("global_load_dword v253, v2, s[%d:%d]" % (sPC, sPC + 1))
        self.label(lab)
        e("s_cmp_ge_u32 s2, 224")
        e("s_cbranch_scc1 L_helper")

    def phase_a0(self):
        e = self.e
        self.c("==== A0 ====")
        e("s_mul_i32 s%d, s2, 293" % sRB)
        e("s_lshr_b32 s%d, s%d, 11" % (sRB, sRB))
        e("s_mul_i32 s%d, s%d, 7" % (sT0, sRB))
        e("s_sub_u32 s%d, s2, s%d" % (sG0, sT0))
        e("s_mul_i32 s%d, s%d, %d" % (sA0BASE, sRB, 64 * 896))
        e("s_lshl_b32 s%d, s%d, 7" % (sT0, sG0))
        e("s_add_u32 s%d, s%d, s%d" % (sA0BASE, sA0BASE, sT0))
        vP, vOff, vOffH, vT = 4, 5, 6, 7
        e("v_lshrrev_b32 %s, 4, v1" % v(vT))
        e("v_and_b32 %s, 1, %s" % (v(vT), v(vT)))
        e("v_lshlrev_b32 %s, 1, %s" % (v(vT), v(vT)))
        e("v_and_b32 %s, 7, v1" % v(vP))
        e("v_xor_b32 %s, %s, %s" % (v(vP), v(vP), v(vT)))
        e("v_lshlrev_b32 %s, 4, %s" % (v(vP), v(vP)))
        e("v_lshrrev_b32 %s, 3, v1" % v(vT))
        e("v_mul_u32_u24 %s, 896, %s" % (v(vT), v(vT)))
        e("v_add_u32 %s, %s, %s" % (v(vP), v(vP), v(vT)))
        e("s_and_b32 s%d, s%d, 1" % (sT0, sWAVE))
        e("s_lshl_b32 s%d, s%d, 6" % (sT0, sT0))
        e("v_xor_b32 %s, s%d, %s" % (v(vOff), sT0, v(vP)))
        e("v_xor_b32 %s, 64, %s" % (v(vOffH), v(vP)))
        e("s_cmp_eq_u32 s%d, 0" % sRB)
        e("s_cselect_b32 s%d, 0x80000000, 0" % sT1)
        e("v_add_u32 %s, s%d, %s" % (v(vOffH), sT1, v(vOffH)))
        e("s_sub_u32 s%d, s%d, 7168" % (sT2, sA0BASE))
        e("s_cmp_eq_u32 s%d, 0" % sRB)
        e("s_cselect_b32 s%d, 0, s%d" % (sT2, sT2))
        e("s_mul_i32 s%d, s%d, 7168" % (sT3, sWAVE))
        e("s_add_u32 s%d, s%d, s%d" % (sT3, sT3, sA0BASE))
        e("s_add_u32 s%d, s%d, %d" % (sT4, sT3, 4 * 7168))
        e("s_lshl_b32 s%d, s%d, 10" % (sT5, sWAVE))

        def dma(srdn, voff, soff, ldsbase, addw=True):
            if addw:
                e("s_add_u32 m0, s%d, %d" % (sT5, ldsbase))
            else:
                e("s_mov_b32 m0, %d" % ldsbase)
            e("s_nop 0")
            self.vmem("buffer_load_dwordx4 %s, %s, s%d offen lds" % (v(voff), srd(srdn), soff), "a0")
        dma(SRD_K, vOffH, sT2, L_K, addw=False)
        dma(SRD_K, vOff, sT3, L_K + 1024)
        dma(SRD_K, vOff, sT4, L_K + 5 * 1024)
        dma(SRD_V, vOff, sT3, L_V)
        dma(SRD_V, vOff, sT4, L_V + 4 * 1024)
        dma(SRD_Q, vOff, sT3, L_Q)
        dma(SRD_Q, vOff, sT4, L_Q + 4 * 1024)
        vCH, vSK = 8, 10
        e("s_lshl_b32 s%d, s%d, 6" % (sT0, sG0))
        e("s_lshl_b32 s%d, s%d, 4" % (sT1, sWAVE))
        e("s_add_u32 s%d, s%d, s%d" % (sT0, sT0, sT1))
        e("v_and_b32 %s, 15, v1" % v(vCH))
        e("v_add_u32 %s, s%d, %s" % (v(vCH), sT0, v(vCH)))
        e("v_lshlrev_b32 %s, 3, %s" % (v(vT), v(vCH)))
        self.vmem("buffer_load_dwordx2 %s, %s, %s, 0 offen" % (v(vSK, 2), v(vT), srd(SRD_SH)), "a0")

        if self.tlbwarm:
            self.c("touch every page that is used later (address translation warm-up)")
            vZ = 59
            e("v_mov_b32 %s, 0" % v(vZ))
            e("s_mov_b64 exec, 1")
            for r in (SRD_WG, SRD_WD, SRD_OUT):
                e("buffer_load_dword v252, %s, %s, 0 offen" % (v(vZ), srd(r)))
            e("v_mov_b32 %s, 1024" % v(vZ))
            e("buffer_load_dword v252, %s, %s, 0 offen" % (v(vZ), srd(SRD_WU)))
            e("s_mov_b64 exec, 0xff")
            e("v_lshlrev_b32 %s, 21, v1" % v(vZ))
            e("buffer_load_dword v252, %s, %s, 0 offen" % (v(vZ), srd(SRD_WS)))
            e("s_mov_b64 exec, -1")
            self.vm += ["tlb"] * 5
        self.c("T staging DMA: wave w -> channel 2*id + (w>>1), copy w&1")
        e("s_lshr_b32 s%d, s%d, 1" % (sCHL, sWAVE))
        e("s_and_b32 s%d, s%d, 1" % (sHALF, sWAVE))
        e("s_lshl_b32 s%d, s2, 1" % sT0)
        e("s_add_u32 s%d, s%d, s%d" % (sT0, sT0, sCHL))
        e("s_lshl_b32 s%d, s%d, 12" % (sT0, sT0))
        e("s_lshl_b32 s%d, s%d, 1" % (sT1, sHALF))
        e("s_add_u32 s%d, s%d, s%d" % (sT1, sT0, sT1))
        e("s_mul_i32 s%d, s%d, 4160" % (sT2, sWAVE))
        e("s_add_u32 s%d, s%d, %d" % (sT2, sT2, L_TS + 32))
        e("s_mov_b32 m0, s%d" % sT2)
        vL16 = 9
        e("v_lshlrev_b32 %s, 4, v1" % v(vL16))
        for i in range(4):
            self.vmem("buffer_load_dwordx4 %s, %s, s%d offen offset:%d lds" % (v(vL16), srd(SRD_SK), sT1, 1024 * i), "ts")
        vH0 = 12
        e("v_mov_b32 %s, s%d" % (v(vT), sT0))
        self.vmem("buffer_load_ushort %s, %s, %s, 0 offen" % (v(vH0), v(vT), srd(SRD_SK)), "ts")
        e("s_lshl_b32 s%d, s2, 2" % sT3)
        e("s_load_dword s%d, s[62:63], s%d" % (sD, sT3))

        vTR, vTRH, vG, vR = 13, 14, 15, 16
        e("v_lshrrev_b32 %s, 4, v1" % v(vG))
        e("v_bfe_u32 %s, v1, 2, 2" % v(vR))
        e("v_lshrrev_b32 %s, 1, %s" % (v(vT), v(vR)))
        e("v_and_b32 %s, 1, %s" % (v(vTR), v(vG)))
        e("v_lshl_or_b32 %s, %s, 1, %s" % (v(vT), v(vTR), v(vT)))
        e("v_xor_b32 %s, s%d, %s" % (v(vT), sWAVE, v(vT)))
        e("v_lshlrev_b32 %s, 5, %s" % (v(vT), v(vT)))
        e("v_lshl_add_u32 %s, %s, 3, %s" % (v(vTR), v(vG), v(vR)))
        e("v_lshl_add_u32 %s, %s, 7, %s" % (v(vTR), v(vTR), v(vT)))
        e("v_and_b32 %s, 3, v1" % v(vT))
        e("v_lshl_add_u32 %s, %s, 3, %s" % (v(vTR), v(vT), v(vTR)))
        e("v_add_u32 %s, %d, %s" % (v(vTR), L_K, v(vTR)))
        e("v_xor_b32 %s, 64, %s" % (v(vTRH), v(vTR)))
        vSKV, vSQ = 17, 18
        e("s_lshl_b32 s%d, s%d, 7" % (sT0, sRB))
        e("v_lshlrev_b32 %s, 12, %s" % (v(vSQ), v(vCH)))
        e("v_lshlrev_b32 %s, 4, %s" % (v(vT), v(vG)))
        e("s_sub_u32 s%d, %d, s%d" % (sT1, WS_KVT + 4080 - 64, sT0))
        e("v_add_u32 %s, s%d, %s" % (v(vSKV), sT1, v(vSQ)))
        e("v_sub_u32 %s, %s, %s" % (v(vSKV), v(vSKV), v(vT)))
        e("s_add_u32 s%d, s%d, %d" % (sT1, sT0, WS_QT))
        e("v_add3_u32 %s, %s, %s, s%d" % (v(vSQ), v(vSQ), v(vT), sT1))
        self.wait_vm("a0")
        e("s_waitcnt lgkmcnt(0)")
        self.lg = []
        e("s_lshl_b32 s%d, s%d, 16" % (sT0, sD))
        e("s_and_b32 s%d, s%d, 0xffff0000" % (sT1, sD))
        e("s_cmp_eq_u32 s%d, 0" % sCHL)
        e("s_cselect_b32 s%d, s%d, s%d" % (sD, sT0, sT1))
        e("s_barrier")
        self.stamp(1)

        KH = [24, 34]
        KM = [26, 36]
        VV = [40, 44]
        QQ = [48, 52]
        for rho in range(2):
            self.lds("ds_read_b64_tr_b16 %s, %s offset:%d" % (v(KH[rho], 2), v(vTRH), 512 + 4096 * rho), "k%d" % rho)
            self.lds("ds_read_b64_tr_b16 %s, %s offset:%d" % (v(KM[rho], 2), v(vTR), 1024 + 4096 * rho), "k%d" % rho)
            self.lds("ds_read_b64_tr_b16 %s, %s offset:%d" % (v(KM[rho] + 2, 2), v(vTR), 1024 + 512 + 4096 * rho), "k%d" % rho)
            self.lds("ds_read_b64_tr_b16 %s, %s offset:%d" % (v(VV[rho], 2), v(vTR), L_V - L_K + 4096 * rho), "v%d" % rho)
            self.lds("ds_read_b64_tr_b16 %s, %s offset:%d" % (v(VV[rho] + 2, 2), v(vTR), L_V - L_K + 512 + 4096 * rho), "v%d" % rho)
        for rho in range(2):
            self.lds("ds_read_b64_tr_b16 %s, %s offset:%d" % (v(QQ[rho], 2), v(vTR), L_Q - L_K + 4096 * rho), "q")
            self.lds("ds_read_b64_tr_b16 %s, %s offset:%d" % (v(QQ[rho] + 2, 2), v(vTR), L_Q - L_K + 512 + 4096 * rho), "q")
        CA, CB = 21, 22
        e("v_alignbit_b32 %s, %s, %s, 16" % (v(CA), v(vSK), v(vSK)))
        e("v_alignbit_b32 %s, %s, %s, 16" % (v(CB), v(vSK + 1), v(vSK + 1)))
        MM = 56
        KS = 64
        VF = 72
        OUTR = [80, 84]
        for rho in range(2):
            self.wait_lg("v%d" % rho)
            Dw = [KH[rho], KH[rho] + 1, KM[rho], KM[rho] + 1, KM[rho] + 2, KM[rho] + 3]
            for i in range(5):
                e("v_alignbit_b32 %s, %s, %s, 16" % (v(MM + i), v(Dw[i + 1]), v(Dw[i])))
            for t in range(8):
                if t & 1:
                    p0, p1 = Dw[2 + (t >> 1)], Dw[1 + (t >> 1)]
                else:
                    p0, p1 = MM + 1 + (t >> 1), MM + (t >> 1)
                e("v_dot2_f32_bf16 %s, %s, %s, 0" % (v(KS + t), v(p1), v(CB)))
            for t in range(8):
                if t & 1:
                    p0 = Dw[2 + (t >> 1)]
                else:
                    p0 = MM + 1 + (t >> 1)
                e("v_dot2_f32_bf16 %s, %s, %s, %s" % (v(KS + t), v(p0), v(CA), v(KS + t)))
            for t in range(8):
                src = VV[rho] + (t >> 1)
                if t & 1:
                    e("v_and_b32 %s, 0xffff0000, %s" % (v(VF + t), v(src)))
                else:
                    e("v_lshlrev_b32 %s, 16, %s" % (v(VF + t), v(src)))
            for t in range(8):
                e("v_mul_f32 %s, %s, %s" % (v(KS + t), v(KS + t), v(VF + t)))
            for i in range(4):
                e("v_cvt_pk_bf16_f32 %s, %s, %s" % (v(OUTR[rho] + i), v(KS + 7 - 2 * i), v(KS + 6 - 2 * i)))
            self.vmem("buffer_store_dwordx4 %s, %s, %s, 0 offen offset:%d sc1" % (v(OUTR[rho], 4), v(vSKV), srd(SRD_WS), 64 if rho == 0 else 0), "a0st")
        self.wait_lg("q")
        for rho in range(2):
            self.vmem("buffer_store_dwordx4 %s, %s, %s, 0 offen offset:%d sc1" % (v(QQ[rho], 4), v(vSQ), srd(SRD_WS), 64 * rho), "a0st")
        vGO, vZERO = 23, 58
        e("v_mov_b32 %s, 0" % v(vZERO))
        self.vmem("buffer_load_dword %s, %s, %s, 0 offen offset:%d sc1" % (v(vGO), v(vZERO), srd(SRD_DBG), self.go_off), "go")
        self.stamp(2)

    def t_pad(self):
        e = self.e
        vH0, vZ, vZA = 12, 19, 20
        e("v_lshlrev_b32 %s, 16, %s" % (v(vH0), v(vH0)))
        e("v_cmp_eq_u32 vcc, 7, v1")
        e("s_nop 3")
        e("s_cmp_eq_u32 s%d, 1" % sHALF)
        e("s_cselect_b64 s[%d:%d], vcc, 0" % (sEX, sEX + 1))
        e("v_mov_b32 %s, 0" % v(vZ))
        e("s_nop 1")
        e("v_cndmask_b32 %s, %s, %s, s[%d:%d]" % (v(vZ), v(vZ), v(vH0), sEX, sEX + 1))
        e("s_mul_i32 s%d, s%d, 4160" % (sT2, sWAVE))
        e("s_add_u32 s%d, s%d, %d" % (sT2, sT2, L_TS))
        e("v_lshl_add_u32 %s, v1, 2, s%d" % (v(vZA), sT2))
        e("s_mov_b64 exec, 0xff")
        self.lds("ds_write_b32 %s, %s" % (v(vZA), v(vZ)), "z")
        e("s_mov_b64 exec, -1")
        self.wait_lg0()

    def w_stage_setup(self):
        e = self.e
        vT = 7
        e("v_lshrrev_b32 %s, 2, v1" % v(vT))
        e("v_mul_u32_u24 %s, 3584, %s" % (v(vT), v(vT)))
        e("v_and_b32 %s, 3, v1" % v(vWS))
        e("v_xor_b32 %s, 2, %s" % (v(vWS + 1), v(vWS)))
        e("v_lshl_add_u32 %s, %s, 4, %s" % (v(vWS), v(vWS), v(vT)))
        e("v_lshl_add_u32 %s, %s, 4, %s" % (v(vWS + 1), v(vWS + 1), v(vT)))
        e("v_add_u32 %s, %d, %s" % (v(vWS + 2), 57344 - 2048, v(vWS)))
        e("v_add_u32 %s, %d, %s" % (v(vWS + 3), 57344 - 2048, v(vWS + 1)))

    def w_stage_items(self, rnd):
        e = self.e
        items = []

        def setup():
            e("s_lshl_b32 s%d, s%d, 8" % (sWSO, sBJ))
            e("s_lshl_b32 s%d, s%d, 6" % (sWM, sWAVE))
            e("s_add_u32 s%d, s%d, s%d" % (sWSO, sWSO, sWM))
            if rnd:
                e("s_add_u32 s%d, s%d, %d" % (sWSO, sWSO, 14 * rnd * 57344))
            e("s_mul_i32 s%d, s%d, 28672" % (sWM, sWAVE))
            if L_WST:
                e("s_add_u32 s%d, s%d, %d" % (sWM, sWM, L_WST))
            e("s_mov_b32 m0, s%d" % sWM)
        for grp in range(7):
            for n in range(4):
                def one(grp=grp, n=n):
                    if grp == 0 and n == 0:
                        setup()
                        e("s_nop 0")
                    elif n == 0:
                        e("s_add_u32 s%d, s%d, 4096" % (sWM, sWM))
                        e("s_mov_b32 m0, s%d" % sWM)
                        e("s_add_u32 s%d, s%d, %d" % (sWSO, sWSO, 2 * 57344))
                    else:
                        pass
                    self.vmem("buffer_load_dwordx4 %s, %s, s%d offen offset:%d lds" % (v(vWS + (n & 1) + 2 * (n >> 1)), srd(SRD_WG if (n & 1) == 0 else SRD_WU), sWSO, 1024 * n), "w%d" % rnd)
                items.append(one)
        return items

    def w_stage_read(self, rnd):
        e = self.e
        self.c("W staging -> AGPR round %d" % rnd)
        vB0, vB1, vT, vU = 2, 3, 7, 4
        e("v_bfe_u32 %s, v1, 4, 1" % v(vT))
        e("v_lshrrev_b32 %s, 5, v1" % v(vU))
        e("v_lshlrev_b32 %s, 3, %s" % (v(vU), v(vU)))
        e("v_bfe_u32 %s, v1, 2, 2" % v(vB0))
        e("v_add_u32 %s, %s, %s" % (v(vU), v(vU), v(vB0)))
        e("v_lshlrev_b32 %s, 6, %s" % (v(vU), v(vU)))
        e("v_and_b32 %s, 3, v1" % v(vB0))
        e("v_lshl_add_u32 %s, %s, 3, %s" % (v(vU), v(vB0), v(vU)))
        e("v_mul_u32_u24 %s, 1056, %s" % (v(vT), v(vT)))
        e("s_mul_i32 s%d, s%d, 28672" % (sT0, sWAVE))
        e("v_add3_u32 %s, %s, %s, s%d" % (v(vB0), v(vU), v(vT), sT0))
        e("v_xor_b32 %s, 32, %s" % (v(vB1), v(vB0)))
        self.wait_vm("w%d" % rnd)
        for s in range(14):
            for ft in range(2):
                base = 8 * (14 * rnd + s) + 4 * ft
                for ee in range(2):
                    self.lds("ds_read_b64_tr_b16 %s, %s offset:%d" % (a(base + 2 * ee, 2), v(vB0 if ft == 0 else vB1), L_WST + 2048 * s + 256 * ee), "wr")

    def t_read(self):
        e = self.e
        self.c("T fragments -> a112..a239")
        vB, vT, vU = 8, 7, 4
        e("v_and_b32 %s, 15, v1" % v(vT))
        e("v_and_b32 %s, 1, %s" % (v(vU), v(vT)))
        e("v_add_u32 %s, %s, %s" % (v(vT), v(vT), v(vU)))
        e("v_lshrrev_b32 %s, 4, v1" % v(vB))
        e("v_lshl_add_u32 %s, %s, 3, %s" % (v(vT), v(vB), v(vT)))
        e("v_lshlrev_b32 %s, 1, %s" % (v(vT), v(vT)))
        e("v_xor_b32 %s, 1, %s" % (v(vU), v(vU)))
        e("v_mul_u32_u24 %s, 4160, %s" % (v(vU), v(vU)))
        e("s_mul_i32 s%d, s%d, 8320" % (sT0, sCHL))
        e("s_lshl_b32 s%d, s%d, 8" % (sT1, sHALF))
        e("s_add_u32 s%d, s%d, s%d" % (sT0, sT0, sT1))
        e("s_add_u32 s%d, s%d, %d" % (sT0, sT0, L_TS))
        e("v_add3_u32 %s, %s, %s, s%d" % (v(vB), v(vT), v(vU), sT0))
        for i in range(1, 4):
            e("v_add_u32 %s, %d, %s" % (v(vB + i), 1024 * i, v(vB)))
        for rr in range(4):
            for q in range(8):
                base = 112 + 4 * (8 * rr + q)
                o = 128 * (q & 1) + 16 * rr
                for hh in range(2):
                    self.lds("ds_read2_b32 %s, %s offset0:%d offset1:%d" % (a(base + 2 * hh, 2), v(vB + (q >> 1)), o + 2 * hh, o + 2 * hh + 1), "t")

    def phase_a1(self):
        e = self.e
        self.c("==== A1 ====")
        ACC = 32
        XF = [64, 96]
        QR, KVR, AR, BR = 128, 136, 144, 160
        LN, KD, QF = 176, 192, 208
        Y = 224
        vT, vU = 7, 4
        vL16 = 9
        e("v_lshlrev_b32 %s, 4, v1" % v(vL16))
        e("s_lshl_b32 s%d, s2, 1" % sT0)
        e("s_add_u32 s%d, s%d, s%d" % (sT0, sT0, sCHL))
        e("s_lshl_b32 s%d, s%d, 12" % (sT0, sT0))
        vTL = 5
        e("v_and_b32 %s, 15, v1" % v(vT))
        e("v_lshrrev_b32 %s, 4, v1" % v(vU))
        e("v_lshlrev_b32 %s, 2, %s" % (v(vU), v(vU)))
        e("v_lshl_add_u32 %s, %s, 4, %s" % (v(vTL), v(vT), v(vU)))
        e("s_lshl_b32 s%d, s%d, 10" % (sT1, sHALF))
        e("v_add_u32 %s, s%d, %s" % (v(vTL), sT1, v(vTL)))
        vQA, vSA = 6, 8
        e("s_add_u32 s%d, s%d, %d" % (sT2, sT0, WS_QT))
        e("v_lshl_add_u32 %s, %s, 1, s%d" % (v(vQA), v(vTL), sT2))
        e("v_lshlrev_b32 %s, 2, %s" % (v(vSA), v(vTL)))
        e("s_mov_b32 s%d, %d" % (sT4, WS_ST1))
        e("s_mov_b32 s%d, %d" % (sT5, WS_ST1 + 8192))
        vXB, vKVA, vEW, vER = 10, 11, 12, 13
        e("v_and_b32 %s, 15, v1" % v(vT))
        e("v_lshrrev_b32 %s, 4, v1" % v(vU))
        e("v_lshlrev_b32 %s, 4, %s" % (v(vU), v(vU)))
        e("v_lshlrev_b32 %s, 5, %s" % (v(vT), v(vT)))
        e("v_sub_u32 %s, %s, %s" % (v(vXB), v(vU), v(vT)))
        e("s_mul_i32 s%d, s%d, 4608" % (sT0, sCHL))
        e("s_lshl_b32 s%d, s%d, 8" % (sT1, sHALF))
        e("s_add_u32 s%d, s%d, s%d" % (sT1, sT1, sT0))
        e("s_add_u32 s%d, s%d, %d" % (sT1, sT1, L_X + 480))
        e("v_add_u32 %s, s%d, %s" % (v(vXB), sT1, v(vXB)))
        e("s_add_u32 s%d, s%d, %d" % (sT1, sT0, L_X + 4088 - 1536))
        e("v_lshlrev_b32 %s, 1, %s" % (v(vT), v(vTL)))
        e("v_sub_u32 %s, s%d, %s" % (v(vKVA), sT1, v(vT)))
        e("s_lshl_b32 s%d, s%d, 12" % (sT0, sWAVE))
        e("s_add_u32 s%d, s%d, %d" % (sT1, sT0, L_EX))
        e("v_add_u32 %s, s%d, %s" % (v(vEW), sT1, v(vL16)))
        e("s_xor_b32 s%d, s%d, 0x1000" % (sT0, sT0))
        e("s_add_u32 s%d, s%d, %d" % (sT1, sT0, L_EX))
        e("v_add_u32 %s, s%d, %s" % (v(vER), sT1, v(vL16)))
        vHO = 14
        vRow = 15
        e("v_lshrrev_b32 %s, 4, v1" % v(vRow))
        e("v_and_b32 %s, 15, v1" % v(vT))
        e("v_lshrrev_b32 %s, 1, %s" % (v(vU), v(vT)))
        e("v_and_b32 %s, 1, %s" % (v(vHO), v(vRow)))
        e("v_lshl_add_u32 %s, %s, 3, %s" % (v(vU), v(vHO), v(vU)))
        e("v_mul_u32_u24 %s, 28672, %s" % (v(vHO), v(vU)))
        e("v_and_b32 %s, 1, %s" % (v(vT), v(vT)))
        e("v_lshl_add_u32 %s, %s, 5, %s" % (v(vHO), v(vT), v(vHO)))
        e("v_lshrrev_b32 %s, 1, %s" % (v(vRow), v(vRow)))
        e("v_lshl_add_u32 %s, %s, 4, %s" % (v(vHO), v(vRow), v(vHO)))
        e("s_lshl_b32 s%d, s2, 1" % sT0)
        e("s_add_u32 s%d, s%d, s%d" % (sT0, sT0, sCHL))
        e("s_lshl_b32 s%d, s%d, 6" % (sT0, sT0))
        e("s_mul_i32 s%d, s%d, %d" % (sT1, sHALF, 32 * 28672))
        e("s_add_u32 s%d, s%d, s%d" % (sT0, sT0, sT1))
        e("s_add_u32 s%d, s%d, %d" % (sT6, sT0, WS_HB))
        e("s_add_u32 s%d, s%d, %d" % (sT7, sT6, 16 * 28672))
        lab = self.newlabel("x0")
        e("s_cmp_eq_u32 s%d, 0" % sWAVE)
        e("s_cbranch_scc0 %s" % lab)
        self.spin(*self.a1_poll)
        self.stamp(4)
        e("s_lshl_b32 s%d, s2, 13" % sT0)
        if WS_KVT:
            e("s_add_u32 s%d, s%d, %d" % (sT0, sT0, WS_KVT))
        e("s_mov_b32 m0, %d" % L_X)
        e("s_nop 0")
        for i in range(4):
            e("buffer_load_dwordx4 %s, %s, s%d offen offset:%d sc1 lds" % (v(vL16), srd(SRD_WS), sT0, 1024 * i))
        e("s_add_u32 s%d, s%d, 4096" % (sT0, sT0))
        e("s_mov_b32 m0, %d" % (L_X + 4608))
        e("s_nop 0")
        for i in range(4):
            e("buffer_load_dwordx4 %s, %s, s%d offen offset:%d sc1 lds" % (v(vL16), srd(SRD_WS), sT0, 1024 * i))
        save = list(self.vm)
        for it in self.w0_early:
            it()
        self.vm = save
        e("s_waitcnt vmcnt(%d)" % len(self.w0_early))
        self.label(lab)
        self.vm += ["w0"] * len(self.w0_early)
        e("s_barrier")
        self.stamp(5)

        def xread(rr):
            for m in range(8):
                self.lds("ds_read_b128 %s, %s offset:%d" % (v(XF[rr & 1] + 4 * m, 4), v(vXB), 512 * (7 - m) + 64 * rr), "x%d" % rr)

        fill = []
        for cc in range(4):
            fill.append(("vm", "buffer_load_dwordx2 %s, %s, %s, 0 offen offset:%d sc1" % (v(QR + 2 * cc, 2), v(vQA), srd(SRD_WS), 512 * cc), "q"))
        for cc in range(4):
            fill.append(("vm", "buffer_load_dwordx4 %s, %s, %s, s%d offen offset:%d sc1" % (v(AR + 4 * cc, 4), v(vSA), srd(SRD_WS), sT4, 1024 * cc), "ab"))
            fill.append(("vm", "buffer_load_dwordx4 %s, %s, %s, s%d offen offset:%d sc1" % (v(BR + 4 * cc, 4), v(vSA), srd(SRD_WS), sT5, 1024 * cc), "ab"))
        for it in self.w0_rest:
            fill.append(("fn", it))
            fill.append(("skip",))
            fill.append(("skip",))
        for cc in range(4):
            fill.append(("lds", "ds_read_b64 %s, %s offset:%d" % (v(KVR + 2 * cc, 2), v(vKVA), 512 * (3 - cc)), "kv"))
        fill.append(("waitvm", ["q", "ab"]))
        for cc in range(4):
            for i in range(4):
                src = QR + 2 * cc + (i >> 1)
                if i & 1:
                    fill.append(("v", "v_and_b32 %s, 0xffff0000, %s" % (v(QF + 4 * cc + i), v(src))))
                else:
                    fill.append(("v", "v_lshlrev_b32 %s, 16, %s" % (v(QF + 4 * cc + i), v(src))))
        for x in range(16):
            fill.append(("v", "v_fma_f32 %s, %s, %s, %s" % (v(LN + x), v(QF + x), v(AR + x), v(BR + x))))
        fill.append(("waitlg", "kv"))
        for cc in range(4):
            for i in range(4):
                src = KVR + 2 * cc + (1 - (i >> 1))
                if i & 1:
                    fill.append(("v", "v_lshlrev_b32 %s, 16, %s" % (v(KD + 4 * cc + i), v(src))))
                else:
                    fill.append(("v", "v_and_b32 %s, 0xffff0000, %s" % (v(KD + 4 * cc + i), v(src))))
        for x in range(16):
            fill.append(("v", "v_mul_f32 %s, s%d, %s" % (v(KD + x), sD, v(KD + x))))
        fi = 0
        nslow = 12 + 3 * len(self.w0_rest)

        def filler():
            nonlocal fi
            while fi < len(fill):
                k = fill[fi]
                fi += 1
                if k[0] == "v":
                    e(k[1])
                    return
                if k[0] == "lds":
                    self.lds(k[1], k[2])
                    return
                if k[0] == "vm":
                    self.vmem(k[1], k[2])
                    return
                if k[0] == "fn":
                    k[1]()
                    return
                if k[0] == "skip":
                    return
                if k[0] == "waitvm":
                    self.wait_vm(k[1])
                    return
                if k[0] == "waitlg":
                    self.wait_lg(k[1])
                    return

        xread(0)
        for rr in range(4):
            self.wait_lg("x%d" % rr)
            cnt = 0
            for q in range(8):
                for c in range(q, 8):
                    m = c - q
                    srcc = "0" if (rr == 0 and q == 0) else v(ACC + 4 * c, 4)
                    e("v_mfma_f32_16x16x32_bf16 %s, %s, %s, %s" % (v(ACC + 4 * c, 4), a(112 + 4 * (8 * rr + q), 4), v(XF[rr & 1] + 4 * m, 4), srcc))
                    cnt += 1
                    if rr < 3 and cnt <= 8:
                        m2 = cnt - 1
                        self.lds("ds_read_b128 %s, %s offset:%d" % (v(XF[(rr + 1) & 1] + 4 * m2, 4), v(vXB), 512 * (7 - m2) + 64 * (rr + 1)), "x%d" % (rr + 1))
                    else:
                        filler()
                        if fi > nslow:
                            filler()
        while fi < len(fill):
            filler()
        self.stamp(6)
        e("s_nop 7")
        lab1, lab2 = self.newlabel("h1"), self.newlabel("hj")
        TMP = XF[0]
        e("s_cmp_eq_u32 s%d, 0" % sHALF)
        e("s_cbranch_scc0 %s" % lab1)
        for cc in range(4):
            e("ds_write_b128 %s, %s offset:%d" % (v(vEW), v(ACC + 16 + 4 * cc, 4), 1024 * cc))
        for x in range(16):
            e("v_add_f32 %s, %s, %s" % (v(Y + x), v(ACC + x), v(KD + x)))
        e("s_branch %s" % lab2)
        self.label(lab1)
        for cc in range(4):
            e("ds_write_b128 %s, %s offset:%d" % (v(vEW), v(ACC + 4 * cc, 4), 1024 * cc))
        for x in range(16):
            e("v_add_f32 %s, %s, %s" % (v(Y + x), v(ACC + 16 + x), v(KD + x)))
        self.label(lab2)
        e("s_waitcnt lgkmcnt(0)")
        self.lg = []
        e("s_barrier")
        for cc in range(4):
            self.lds("ds_read_b128 %s, %s offset:%d" % (v(TMP + 4 * cc, 4), v(vER), 1024 * cc), "ex%d" % cc)
        P = XF[0] + 16
        for cc in range(4):
            self.wait_lg("ex%d" % cc)
            for i in range(4):
                x = 4 * cc + i
                e("v_add_f32 %s, %s, %s" % (v(Y + x), v(Y + x), v(TMP + x)))
            for i in range(4):
                x = 4 * cc + i
                e("v_fma_f32 %s, %s, %s, %s" % (v(Y + x), v(LN + x), v(Y + x), v(QF + x)))
            e("v_cvt_pk_bf16_f32 %s, %s, %s" % (v(P + 2 * cc), v(Y + 4 * cc), v(Y + 4 * cc + 1)))
            e("v_cvt_pk_bf16_f32 %s, %s, %s" % (v(P + 2 * cc + 1), v(Y + 4 * cc + 2), v(Y + 4 * cc + 3)))
            if cc & 1:
                b = P + 2 * (cc - 1)
                e("s_nop 1")
                e("v_permlane16_swap_b32 %s, %s" % (v(b), v(b + 2)))
                e("v_permlane16_swap_b32 %s, %s" % (v(b + 1), v(b + 3)))
                self.vmem("buffer_store_dwordx4 %s, %s, %s, s%d offen sc1" % (v(b, 4), v(vHO), srd(SRD_WS), sT6 if cc == 1 else sT7), "hst")
        self.stamp(7)

    def helper(self):
        e = self.e
        self.label("L_helper")
        self.in_helper = True
        self.vm = []
        self.lg = []
        self.c("==== helper ====")
        sH = sRB
        e("s_sub_u32 s%d, s2, 224" % sH)
        vT, vU, vZ = 7, 4, 5
        e("v_mov_b32 %s, 0" % v(vZ))
        FR = 32
        vQ = 6
        e("s_lshl_b32 s%d, s%d, 6" % (sT0, sH))
        e("s_lshl_b32 s%d, s%d, 4" % (sT1, sWAVE))
        e("s_add_u32 s%d, s%d, s%d" % (sT0, sT0, sT1))
        e("v_and_b32 %s, 15, v1" % v(vT))
        e("v_add_u32 %s, s%d, %s" % (v(8), sT0, v(vT)))
        e("v_mul_u32_u24 %s, 896, %s" % (v(vQ), v(8)))
        e("v_lshrrev_b32 %s, 4, v1" % v(vU))
        e("v_lshl_add_u32 %s, %s, 4, %s" % (v(vQ), v(vU), v(vQ)))
        for s in range(14):
            self.vmem("buffer_load_dwordx4 %s, %s, %s, 0 offen offset:%d" % (v(FR + 4 * s, 4), v(vQ), srd(SRD_Q), 64 * s), "q")
        lab = self.newlabel("hz")
        e("s_cmp_eq_u32 s%d, 0" % sWAVE)
        e("s_cbranch_scc0 %s" % lab)
        e("s_lshl_b32 s%d, s%d, 8" % (sT0, sH))
        e("s_add_u32 s%d, s%d, %d" % (sT0, sT0, WS_ST2))
        e("v_lshl_add_u32 %s, v1, 2, s%d" % (v(vT), sT0))
        e("buffer_store_dword %s, %s, %s, 0 offen sc1" % (v(vZ), v(vT), srd(SRD_WS)))
        self.label(lab)
        lab = self.newlabel("hc")
        e("s_cmp_eq_u32 s%d, 0" % sH)
        e("s_cbranch_scc0 %s" % lab)
        e("v_lshlrev_b32 %s, 8, v0" % v(vT))
        e("v_add_u32 %s, %d, %s" % (v(vT), WS_CNT, v(vT)))
        e("v_cmp_gt_u32 vcc, %d, v0" % N_CNT)
        e("s_and_saveexec_b64 s[%d:%d], vcc" % (sEX, sEX + 1))
        lab2 = self.newlabel("hc2")
        e("s_cbranch_execz %s" % lab2)
        e("buffer_store_dword %s, %s, %s, 0 offen sc1" % (v(vZ), v(vT), srd(SRD_WS)))
        self.label(lab2)
        e("s_mov_b64 exec, s[%d:%d]" % (sEX, sEX + 1))
        e("s_waitcnt vmcnt(0)")
        e("s_barrier")
        e("v_mov_b32 %s, 1" % v(vU))
        lab3 = self.newlabel("hc3")
        e("s_cmp_eq_u32 s%d, 0" % sWAVE)
        e("s_cbranch_scc0 %s" % lab3)
        e("s_mov_b64 exec, 1")
        e("buffer_store_dword %s, %s, %s, 0 offen offset:%d sc1" % (v(vU), v(vZ), srd(SRD_DBG), self.go_off))
        e("s_mov_b64 exec, -1")
        self.label(lab3)
        self.label(lab)
        ONES = 16
        for i in range(4):
            e("v_mov_b32 %s, 0x3f803f80" % v(ONES + i))
        self.wait_vm("q")
        GR, SM = 20, 24
        self.stats_mfma(lambda s: FR + 4 * s, ONES, GR, SM, None)
        A_, B_ = 28, 29
        self.stats_finish(GR, SM, A_, B_, None)
        e("v_lshlrev_b32 %s, 2, %s" % (v(vT), v(8)))
        e("s_mov_b32 s%d, %d" % (sT4, WS_ST1))
        e("s_mov_b32 s%d, %d" % (sT5, WS_ST1 + 8192))
        e("s_mov_b32 exec_lo, 0x00f0000f")
        e("s_mov_b32 exec_hi, 0xf0000f00")
        self.vmem("buffer_store_dword %s, %s, %s, s%d offen sc1" % (v(A_), v(vT), srd(SRD_WS), sT4), "st")
        self.vmem("buffer_store_dword %s, %s, %s, s%d offen sc1" % (v(B_), v(vT), srd(SRD_WS), sT5), "st")
        e("s_mov_b64 exec, -1")
        vGO = 30
        loop, done = self.newlabel("go"), self.newlabel("god")
        e("s_mov_b32 s%d, %d" % (sSPIN, SPIN_LIMIT))
        self.label(loop)
        e("buffer_load_dword %s, %s, %s, 0 offen offset:%d sc1" % (v(vGO), v(vZ), srd(SRD_DBG), self.go_off))
        e("s_waitcnt vmcnt(0)")
        self.vm = []
        e("v_cmp_eq_u32 vcc, 0, %s" % v(vGO))
        e("s_nop 4")
        e("s_cbranch_vccz %s" % done)
        e("s_sub_u32 s%d, s%d, 1" % (sSPIN, sSPIN))
        e("s_cmp_lg_u32 s%d, 0" % sSPIN)
        e("s_cbranch_scc1 %s" % loop)
        self.label(done)
        e("s_barrier")
        e("v_lshlrev_b32 %s, 8, v1" % v(vT))
        e("v_add_u32 %s, %d, %s" % (v(vT), WS_CNT + 256 * C_SL1, v(vT)))
        e("v_mov_b32 %s, 1" % v(vU))
        self.signal(vT, vU, 8)
        self.stamp(3)
        if self.stop in ("a0", "a1"):
            self.wait_all()
            e("s_endpgm")
            return
        e("v_and_b32 %s, 15, v1" % v(vT))
        e("v_lshlrev_b32 %s, 8, %s" % (v(vT), v(vT)))
        e("v_add_u32 %s, %d, %s" % (v(vT), WS_CNT + 256 * C_S2, v(vT)))
        e("v_mov_b32 %s, 14" % v(vU))
        self.poll(vT, vU, vGO)
        self.stamp(8)
        e("s_lshr_b32 s%d, s%d, 1" % (sT0, sH))
        e("s_lshl_b32 s%d, s%d, 2" % (sT0, sT0))
        e("s_and_b32 s%d, s%d, 1" % (sT1, sH))
        e("s_add_u32 s%d, s%d, s%d" % (sT0, sT0, sT1))
        e("s_mul_i32 s%d, s%d, 28672" % (sT2, sT0))
        e("s_add_u32 s%d, s%d, %d" % (sT2, sT2, WS_HB))
        vL16 = 9
        e("v_lshlrev_b32 %s, 4, v1" % v(vL16))
        e("s_mul_i32 s%d, s%d, 7168" % (sT3, sWAVE))
        for blk in range(2):
            e("s_add_u32 s%d, s%d, s%d" % (sT4, sT2, sT3))
            if blk:
                e("s_add_u32 s%d, s%d, %d" % (sT4, sT4, 2 * 28672))
            e("s_add_u32 m0, s%d, %d" % (sT3, 28672 * blk))
            e("s_nop 0")
            for i in range(4):
                self.vmem("buffer_load_dwordx4 %s, %s, s%d offen offset:%d sc1 lds" % (v(vL16), srd(SRD_WS), sT4, 1024 * i), "hb")
            e("s_add_u32 s%d, s%d, 4096" % (sT4, sT4))
            e("s_add_u32 m0, s%d, %d" % (sT3, 28672 * blk + 4096))
            e("s_nop 0")
            for i in range(3):
                self.vmem("buffer_load_dwordx4 %s, %s, s%d offen offset:%d sc1 lds" % (v(vL16), srd(SRD_WS), sT4, 1024 * i), "hb")
        vA = 10
        e("v_lshrrev_b32 %s, 4, v1" % v(vT))
        e("v_bfe_u32 %s, v1, 2, 2" % v(vU))
        e("v_lshl_add_u32 %s, %s, 3, %s" % (v(vT), v(vT), v(vU)))
        e("v_lshlrev_b32 %s, 6, %s" % (v(vT), v(vT)))
        e("v_and_b32 %s, 3, v1" % v(vU))
        e("v_lshl_add_u32 %s, %s, 3, %s" % (v(vA), v(vU), v(vT)))
        e("s_lshr_b32 s%d, s%d, 1" % (sT4, sWAVE))
        e("s_mul_i32 s%d, s%d, 28672" % (sT4, sT4))
        e("s_and_b32 s%d, s%d, 1" % (sT5, sWAVE))
        e("s_lshl_b32 s%d, s%d, 5" % (sT5, sT5))
        e("s_add_u32 s%d, s%d, s%d" % (sT4, sT4, sT5))
        e("v_add_u32 %s, s%d, %s" % (v(vA), sT4, v(vA)))
        self.wait_vm("hb")
        e("s_barrier")
        for s in range(14):
            for ee in range(2):
                self.lds("ds_read_b64_tr_b16 %s, %s offset:%d" % (v(FR + 4 * s + 2 * ee, 2), v(vA), 2048 * s + 256 * ee), "f%d" % s)
        self.stats_mfma(lambda s: FR + 4 * s, ONES, GR, SM, lambda s: self.wait_lg("f%d" % s))
        PK = 28
        self.stats_finish(GR, SM, None, None, PK)
        e("s_lshr_b32 s%d, s%d, 1" % (sT4, sWAVE))
        e("s_lshl_b32 s%d, s%d, 1" % (sT4, sT4))
        e("s_add_u32 s%d, s%d, s%d" % (sT4, sT4, sT0))
        e("s_lshl_b32 s%d, s%d, 5" % (sT4, sT4))
        e("s_and_b32 s%d, s%d, 1" % (sT5, sWAVE))
        e("s_lshl_b32 s%d, s%d, 4" % (sT5, sT5))
        e("s_add_u32 s%d, s%d, s%d" % (sT4, sT4, sT5))
        e("s_lshl_b32 s%d, s%d, 2" % (sT4, sT4))
        e("s_add_u32 s%d, s%d, %d" % (sT4, sT4, WS_ST2))
        e("v_and_b32 %s, 15, v1" % v(vT))
        e("v_lshl_add_u32 %s, %s, 2, s%d" % (v(vT), v(vT), sT4))
        e("s_mov_b32 exec_lo, 0x00f0000f")
        e("s_mov_b32 exec_hi, 0xf0000f00")
        self.vmem("buffer_store_dword %s, %s, %s, 0 offen sc1" % (v(PK), v(vT), srd(SRD_WS)), "st")
        e("s_mov_b64 exec, -1")
        self.stamp(9)
        self.wait_all()
        e("s_endpgm")

    def stats_mfma(self, frag, ONES, GR, SM, pre):
        e = self.e
        for s in range(14):
            if pre:
                pre(s)
            f = frag(s)
            e("v_mfma_f32_16x16x32_bf16 %s, %s, %s, %s" % (v(GR, 4), v(f, 4), v(f, 4), "0" if s == 0 else v(GR, 4)))
            e("v_mfma_f32_16x16x32_bf16 %s, %s, %s, %s" % (v(SM, 4), v(ONES, 4), v(f, 4), "0" if s == 0 else v(SM, 4)))
        e("s_nop 7")

    def stats_finish(self, GR, SM, A_, B_, PK):
        e = self.e
        t0, t1, t2 = 11, 12, 13
        e("s_mov_b32 s%d, 0x22222222" % sT6)
        e("s_mov_b32 s%d, 0x22222222" % sT7)
        e("v_cndmask_b32 %s, %s, %s, s[%d:%d]" % (v(t0), v(GR), v(GR + 1), sT6, sT7))
        e("s_mov_b32 s%d, 0x44444444" % sT6)
        e("s_mov_b32 s%d, 0x44444444" % sT7)
        e("v_cndmask_b32 %s, %s, %s, s[%d:%d]" % (v(t0), v(t0), v(GR + 2), sT6, sT7))
        e("s_mov_b32 s%d, 0x88888888" % sT6)
        e("s_mov_b32 s%d, 0x88888888" % sT7)
        e("v_cndmask_b32 %s, %s, %s, s[%d:%d]" % (v(t0), v(t0), v(GR + 3), sT6, sT7))
        e("s_mov_b32 s%d, 0x3b124925" % sT6)
        e("v_mul_f32 %s, s%d, %s" % (v(t1), sT6, v(SM)))
        e("v_mul_f32 %s, s%d, %s" % (v(t0), sT6, v(t0)))
        e("v_fma_f32 %s, -%s, %s, %s" % (v(t0), v(t1), v(t1), v(t0)))
        e("v_max_f32 %s, 0, %s" % (v(t0), v(t0)))
        e("v_cvt_pk_bf16_f32 %s, %s, %s" % (v(t0), v(t0), v(t1)))
        e("v_and_b32 %s, 0xffff0000, %s" % (v(t1), v(t0)))
        e("v_lshlrev_b32 %s, 16, %s" % (v(t0), v(t0)))
        e("v_add_f32 %s, 0x3727c5ac, %s" % (v(t0), v(t0)))
        e("v_cvt_pk_bf16_f32 %s, %s, %s" % (v(t0), v(t0), v(t0)))
        e("v_lshlrev_b32 %s, 16, %s" % (v(t0), v(t0)))
        e("v_sqrt_f32 %s, %s" % (v(t0), v(t0)))
        e("s_nop 0")
        e("v_cvt_pk_bf16_f32 %s, %s, %s" % (v(t0), v(t0), v(t0)))
        if PK is not None:
            e("v_lshrrev_b32 %s, 16, %s" % (v(t2), v(t1)))
            e("v_and_b32 %s, 0xffff0000, %s" % (v(t0), v(t0)))
            e("v_or_b32 %s, %s, %s" % (v(PK), v(t0), v(t2)))
        else:
            e("v_lshlrev_b32 %s, 16, %s" % (v(t0), v(t0)))
            e("v_rcp_f32 %s, %s" % (v(A_), v(t0)))
            e("s_nop 0")
            e("v_mul_f32 %s, -%s, %s" % (v(B_), v(t1), v(A_)))

    def decode_bc(self):
        e = self.e
        e("s_and_b32 s%d, s2, 7" % sT0)
        e("s_lshr_b32 s%d, s2, 3" % sT1)
        e("s_mul_i32 s%d, s%d, 37" % (sT2, sT1))
        e("s_lshr_b32 s%d, s%d, 8" % (sT2, sT2))
        e("s_mul_i32 s%d, s%d, 7" % (sT3, sT2))
        e("s_sub_u32 s%d, s%d, s%d" % (sT3, sT1, sT3))
        e("s_lshr_b32 s%d, s%d, 1" % (sT4, sT0))
        e("s_lshl_b32 s%d, s%d, 2" % (sT4, sT4))
        e("s_add_u32 s%d, s%d, s%d" % (sBI, sT4, sT2))
        e("s_and_b32 s%d, s%d, 1" % (sT4, sT0))
        e("s_mul_i32 s%d, s%d, 7" % (sT4, sT4))
        e("s_add_u32 s%d, s%d, s%d" % (sBJ, sT4, sT3))
        e("s_lshl_b32 s%d, s%d, 2" % (sT4, sT0))
        e("s_add_u32 s%d, s%d, s%d" % (sT4, sT4, sT2))
        e("s_lshr_b32 s%d, s%d, 1" % (sCI, sT4))
        e("s_and_b32 s%d, s%d, 1" % (sCS, sT4))
        e("s_mov_b32 s%d, s%d" % (sCJ, sT3))

    def main_path(self):
        e = self.e
        self.decode_bc()
        self.stamp(0)
        self.phase_a0()
        self.wait_vm("go")
        self.t_pad()
        vGO, vZERO = 23, 58
        loop, done = self.newlabel("go"), self.newlabel("god")
        e("s_mov_b32 s%d, %d" % (sSPIN, SPIN_LIMIT))
        self.label(loop)
        e("v_cmp_eq_u32 vcc, 0, %s" % v(vGO))
        e("s_nop 4")
        e("s_cbranch_vccz %s" % done)
        e("buffer_load_dword %s, %s, %s, 0 offen offset:%d sc1" % (v(vGO), v(vZERO), srd(SRD_DBG), self.go_off))
        e("s_waitcnt vmcnt(0)")
        e("s_sub_u32 s%d, s%d, 1" % (sSPIN, sSPIN))
        e("s_cmp_lg_u32 s%d, 0" % sSPIN)
        e("s_cbranch_scc1 %s" % loop)
        self.label(done)
        e("s_barrier")
        vA, vOne = 5, 6
        e("s_lshl_b32 s%d, s%d, 8" % (sT0, sG0))
        e("s_add_u32 s%d, s%d, %d" % (sT0, sT0, WS_CNT + 256 * C_S1))
        e("v_mov_b32 %s, s%d" % (v(vA), sT0))
        e("v_mov_b32 %s, 1" % v(vOne))
        self.signal(vA, vOne, 1)
        self.stamp(3)
        if self.endif_stop("a0"):
            return False
        self.w_stage_setup()
        w0 = self.w_stage_items(0)
        self.w0_early, self.w0_rest = w0[:8], w0[8:]
        lab = self.newlabel("w1")
        e("s_cmp_eq_u32 s%d, 0" % sWAVE)
        e("s_cbranch_scc1 %s" % lab)
        if self.prefetch:
            vP = 59
            e("s_mul_i32 s%d, s2, 7168" % sT0)
            e("s_sub_u32 s%d, s%d, 1" % (sT1, sWAVE))
            e("s_mul_i32 s%d, s%d, %d" % (sT1, sT1, 19 * 128))
            e("s_add_u32 s%d, s%d, s%d" % (sT0, sT0, sT1))
            e("v_lshl_add_u32 %s, v1, 7, s%d" % (v(vP), sT0))
            e("s_mov_b64 exec, 0x7ffff")
            e("buffer_load_dword v252, %s, %s, 0 offen" % (v(vP), srd(SRD_WG)))
            e("buffer_load_dword v252, %s, %s, 0 offen offset:1024" % (v(vP), srd(SRD_WU)))
            e("buffer_load_dword v252, %s, %s, 0 offen" % (v(vP), srd(SRD_WD)))
            e("s_mov_b64 exec, -1")
        save = list(self.vm)
        for it in self.w0_early:
            it()
        self.vm = save
        self.label(lab)
        self.t_read()
        vZ, vZA = 5, 6
        e("v_mov_b32 %s, 0" % v(vZ))
        e("s_mul_i32 s%d, s%d, 4608" % (sT0, sCHL))
        e("s_lshl_b32 s%d, s%d, 8" % (sT1, sHALF))
        e("s_add_u32 s%d, s%d, s%d" % (sT0, sT0, sT1))
        e("s_add_u32 s%d, s%d, %d" % (sT0, sT0, L_X + 4096))
        e("v_lshl_add_u32 %s, v1, 2, s%d" % (v(vZA), sT0))
        self.lds("ds_write_b32 %s, %s" % (v(vZA), v(vZ)), "z")
        self.wait_lg0()
        vA, vTg, vTmp = 16, 17, 18
        e("s_lshr_b32 s%d, s2, 5" % sT0)
        e("s_lshl_b32 s%d, s%d, 8" % (sT0, sT0))
        e("s_add_u32 s%d, s%d, %d" % (sT0, sT0, WS_CNT + 256 * C_S1))
        e("s_and_b32 s%d, s2, 7" % sT1)
        e("s_lshl_b32 s%d, s%d, 8" % (sT1, sT1))
        e("s_add_u32 s%d, s%d, %d" % (sT1, sT1, WS_CNT + 256 * C_SL1))
        e("v_mov_b32 %s, s%d" % (v(vA), sT0))
        e("v_mov_b32 %s, s%d" % (v(vTmp), sT1))
        e("v_cmp_eq_u32 vcc, 1, v1")
        e("v_mov_b32 %s, 32" % v(vTg))
        e("s_nop 0")
        e("v_cndmask_b32 %s, %s, %s, vcc" % (v(vA), v(vA), v(vTmp)))
        self.a1_poll = (vA, vTg, vTmp)
        self.phase_a1()
        self.w_stage_read(0)
        self.wait_vm("hst")
        self.wait_lg0()
        e("s_barrier")
        vA, vOne = 5, 6
        e("s_and_b32 s%d, s2, 15" % sT0)
        e("s_lshl_b32 s%d, s%d, 8" % (sT0, sT0))
        e("s_add_u32 s%d, s%d, %d" % (sT0, sT0, WS_CNT + 256 * C_S2))
        e("v_mov_b32 %s, s%d" % (v(vA), sT0))
        e("v_mov_b32 %s, 1" % v(vOne))
        self.signal(vA, vOne, 1)
        self.stamp(8)
        if self.endif_stop("a1"):
            return False
        return True

    def build(self):
        self.prologue()
        cont = self.main_path()
        if cont:
            from gen_bc import phase_b, phase_c
            phase_b(self)
            if not self.endif_stop("b"):
                phase_c(self)
                self.wait_all()
                if self.spin_us:
                    self.e("L_diag:")
                    self.e("s_memrealtime s[96:97]")
                    self.e("s_waitcnt lgkmcnt(0)")
                    self.e("s_sub_u32 s96, s96, s100")
                    self.e("s_cmp_lt_u32 s96, %d" % (self.spin_us * 100))
                    self.e("s_cbranch_scc1 L_diag")
                self.e("s_endpgm")
        self.helper()
        self.label("L_end")
        self.e("s_endpgm")
        self.label("L_codeend")
        body = self.text()
        hdr = HEADER
        hdr += "; @launch grid=(256,1,1) block=(256,1,1) lds=%d\n" % LDS_BYTES
        hdr += '.amdgcn_target "amdgcn-amd-amdhsa--gfx950"\n.text\n.globl %s\n.p2align 8\n.type %s,@function\n%s:\n' % (NAME, NAME, NAME)
        tail = """
.section .rodata,"a"
.p2align 6
.amdhsa_kernel %s
  .amdhsa_next_free_vgpr 512
  .amdhsa_next_free_sgpr 102
  .amdhsa_accum_offset 256
  .amdhsa_group_segment_fixed_size 0
  .amdhsa_kernarg_size 104
  .amdhsa_user_sgpr_count 2
  .amdhsa_user_sgpr_kernarg_segment_ptr 1
  .amdhsa_system_sgpr_workgroup_id_x 1
.end_amdhsa_kernel
""" % NAME
        return hdr + body + tail, body


HEADER = """; Fused preLN -> H3 (shift conv, k*v, long causal conv, gate) -> preLN -> GLU FFN, one persistent launch.
"""

if __name__ == "__main__":
    import argparse
    ap = argparse.ArgumentParser()
    ap.add_argument("--stop", default=None)
    ap.add_argument("--stamps", action="store_true")
    ap.add_argument("--dbgst", action="store_true")
    ap.add_argument("--spin", type=int, default=0)
    ap.add_argument("--no-tlbwarm", action="store_true")
    ap.add_argument("--no-prefetch", action="store_true")
    ap.add_argument("-o", default="out.s")
    args = ap.parse_args()
    g = Gen(stop=args.stop, stamps=args.stamps, tlbwarm=not args.no_tlbwarm, prefetch=not args.no_prefetch, dbgst=args.dbgst)
    g.spin_us = args.spin
    txt, body = g.build()
    open(args.o, "w").write(txt)
    check_hazards(body)
    print("wrote", args.o, len(txt), "bytes")
```

```python
from collections import deque
from gen import *
import gen as G_

vHTR0, vHTR2, vL16, vHST, vSTA, vT = 2, 3, 4, 5, 6, 7
vWDB = 8
vS, vC1 = 14, 15
vSTB = [13, 12, 123, 124]
FOLD = 16
CS = 20
vU, vW = 28, 29
ACC = [32, 64]
HF = 96
PK = 108
vWDO = 116
vCS0 = 120
L_RES = 151552
L_RESP = 28672
PART_STRIDE = 4352
sF = 52
sWD0, sWD1 = 53, 54
sHS = 55
NREG_UNITS = 10


def wdf(ks, ct):
    i = 4 * ks + ct
    if i < 8:
        return ("a", 224 + 4 * i)
    if i < 32:
        return ("v", 160 + 4 * (i - 8))
    if i < 40:
        return ("v", 128 + 4 * (i - 32))
    return ("a", 4 * (i - 40))


def rname(reg, n, off=0):
    k, b = reg
    return (a if k == "a" else v)(b + off, n)


class Q:
    def __init__(self, g):
        self.g = g
        self.o = deque()

    def op(self, line, cost=4, nb=0):
        self.o.append((cost, lambda: self.g.e(line), nb))

    def fn(self, fn, cost=4, nb=0):
        self.o.append((cost, fn, nb))

    def gap(self, budget, step):
        fresh = True
        while self.o and self.o[0][2] <= step and (self.o[0][0] <= budget or fresh):
            c, f, _ = self.o.popleft()
            f()
            budget -= c
            fresh = False

    def flush(self):
        while self.o:
            self.o.popleft()[1]()


def wd_dma(g, unit, n):
    e = g.e
    if n == 0:
        e("s_mul_i32 s%d, s%d, 401408" % (sWD0, sWAVE))
        e("s_lshl_b32 s%d, s%d, 7" % (sWD1, sCJ))
        e("s_add_u32 s%d, s%d, s%d" % (sWD0, sWD0, sWD1))
        e("s_mul_i32 s%d, s%d, 28" % (sWD1, sOFF + unit))
        e("s_add_u32 s%d, s%d, s%d" % (sWD0, sWD0, sWD1))
        e("s_lshl_b32 s%d, s%d, 14" % (sWD1, sWAVE))
        e("s_add_u32 s%d, s%d, %d" % (sWD1, sWD1, L_WD + 4096 * (unit % 4)))
        e("s_mov_b32 m0, s%d" % sWD1)
        e("s_nop 0")
    g.vmem("buffer_load_dwordx4 %s, %s, s%d offen offset:%d lds" % (v(vWDO + n), srd(SRD_WD), sWD0, 1024 * n), "wd%d" % unit)


def wd_read(g, unit, i):
    ct, ee = i >> 1, i & 1
    if i == 0:
        g.wait_vm("wd%d" % unit)
    g.lds("ds_read_b64_tr_b16 %s, %s offset:%d" % (rname(wdf(unit, ct), 2, 2 * ee), v(vWDB + ct), 4096 * (unit % 4) + 1024 * ee), "wr%d" % unit)


def hb_dma(g, blk, n):
    e = g.e
    if n in (0, 4):
        e("s_lshl_b32 s%d, s%d, 2" % (sT4, sBI))
        e("s_add_u32 s%d, s%d, %d" % (sT4, sT4, blk))
        e("s_mul_i32 s%d, s%d, 28672" % (sT4, sT4))
        e("s_mul_i32 s%d, s%d, 7168" % (sT5, sWAVE))
        e("s_add_u32 s%d, s%d, s%d" % (sT4, sT4, sT5))
        e("s_add_u32 s%d, s%d, %d" % (sT4, sT4, WS_HB + (4096 if n == 4 else 0)))
        e("s_add_u32 m0, s%d, %d" % (sT5, L_HB + 28672 * (blk % 3) + (4096 if n == 4 else 0)))
        e("s_nop 0")
    g.vmem("buffer_load_dwordx4 %s, %s, s%d offen offset:%d sc1 lds" % (v(vL16), srd(SRD_WS), sT4, 1024 * (n & 3)), "hb%d" % blk)


def res_dma(g, n):
    e = g.e
    if n == 0:
        e("v_lshrrev_b32 %s, 1, v1" % v(vU))
        e("v_lshlrev_b32 %s, 6, %s" % (v(vU), v(vU)))
        e("v_and_b32 %s, 1, v1" % v(vW))
        e("v_lshl_add_u32 %s, %s, 4, %s" % (v(vU), v(vW), v(vU)))
        e("s_lshl_b32 s%d, s%d, 2" % (sT0, sCI))
        e("s_add_u32 s%d, s%d, s%d" % (sT0, sT0, sWAVE))
        e("s_mul_i32 s%d, s%d, 28672" % (sT0, sT0))
        e("s_lshl_b32 s%d, s%d, 12" % (sT1, sCJ))
        e("s_add_u32 s%d, s%d, s%d" % (sT0, sT0, sT1))
        e("s_lshl_b32 s%d, s%d, 5" % (sT1, sCS))
        e("s_add_u32 s%d, s%d, s%d" % (sT0, sT0, sT1))
        e("s_add_u32 s%d, s%d, %d" % (sT0, sT0, WS_HB))
        e("s_lshl_b32 s%d, s%d, 11" % (sT1, sWAVE))
        e("s_add_u32 m0, s%d, %d" % (sT1, L_RES))
    else:
        e("s_add_u32 s%d, s%d, 2048" % (sT0, sT0))
        e("s_add_u32 m0, s%d, %d" % (sT1, L_RES + 1024))
    e("s_nop 0")
    g.vmem("buffer_load_dwordx4 %s, %s, s%d offen sc1 lds" % (v(vU), srd(SRD_WS), sT0), "res")


def flag_load(g, u):
    e = g.e
    e("s_lshl_b32 s%d, s%d, 2" % (sT2, sCI))
    e("s_add_u32 s%d, s%d, %d" % (sT2, sT2, C_S3 + u))
    e("s_lshl_b32 s%d, s%d, 8" % (sT2, sT2))
    e("s_add_u32 s%d, s%d, %d" % (sT2, sT2, WS_CNT))
    e("s_load_dword s%d, s[%d:%d], s%d glc" % (sF, SRD_WS, SRD_WS + 1, sT2))


def flag_check(g, u):
    e = g.e
    loop, ok = g.newlabel("fl"), g.newlabel("fo")
    e("s_waitcnt lgkmcnt(0)")
    e("s_cmp_ge_u32 s%d, 14" % sF)
    e("s_cbranch_scc1 %s" % ok)
    e("s_mov_b32 s%d, %d" % (sSPIN, SPIN_LIMIT))
    g.label(loop)
    e("s_sleep 1")
    e("s_load_dword s%d, s[%d:%d], s%d glc" % (sF, SRD_WS, SRD_WS + 1, sT2))
    e("s_waitcnt lgkmcnt(0)")
    e("s_cmp_ge_u32 s%d, 14" % sF)
    e("s_cbranch_scc1 %s" % ok)
    e("s_sub_u32 s%d, s%d, 1" % (sSPIN, sSPIN))
    e("s_cmp_lg_u32 s%d, 0" % sSPIN)
    e("s_cbranch_scc1 %s" % loop)
    g.label(ok)


vFL, vFA = 125, 126


def flagv_load(g, u):
    e = g.e
    e("s_lshl_b32 s%d, s%d, 2" % (sT2, sCI))
    e("s_add_u32 s%d, s%d, %d" % (sT2, sT2, C_S3 + u))
    e("s_lshl_b32 s%d, s%d, 8" % (sT2, sT2))
    e("s_add_u32 s%d, s%d, %d" % (sT2, sT2, WS_CNT))
    e("v_mov_b32 %s, s%d" % (v(vFA), sT2))
    g.vmem("buffer_load_dword %s, %s, %s, 0 offen sc1" % (v(vFL), v(vFA), srd(SRD_WS)), "flag")


def flagv_check(g):
    e = g.e
    g.wait_vm("flag")
    loop, ok = g.newlabel("fvl"), g.newlabel("fvo")
    e("s_mov_b32 s%d, %d" % (sSPIN, SPIN_LIMIT))
    g.label(loop)
    e("v_cmp_gt_u32 vcc, 14, %s" % v(vFL))
    e("s_nop 4")
    e("s_cbranch_vccz %s" % ok)
    e("s_sleep 1")
    e("buffer_load_dword %s, %s, %s, 0 offen sc1" % (v(vFL), v(vFA), srd(SRD_WS)))
    e("s_waitcnt vmcnt(0)")
    e("s_sub_u32 s%d, s%d, 1" % (sSPIN, sSPIN))
    e("s_cmp_lg_u32 s%d, 0" % sSPIN)
    e("s_cbranch_scc1 %s" % loop)
    g.label(ok)


def s3_signal(g, u):
    e = g.e
    e("s_lshl_b32 s%d, s%d, 2" % (sT0, sBI))
    e("s_add_u32 s%d, s%d, %d" % (sT0, sT0, C_S3 + u))
    e("s_lshl_b32 s%d, s%d, 8" % (sT0, sT0))
    e("s_add_u32 s%d, s%d, %d" % (sT0, sT0, WS_CNT))
    e("v_mov_b32 %s, s%d" % (v(vU), sT0))
    e("v_mov_b32 %s, 1" % v(vW))
    g.signal(vU, vW, 1)


def epilogue_items(g, q, p, nb):
    e = g.e
    acc = ACC[p & 1]

    def stats():
        vST = vSTB[p]
        g.wait_vm("st%d" % p)
        loop, ok = g.newlabel("stl"), g.newlabel("sto")
        e("s_mov_b32 s%d, %d" % (sSPIN, SPIN_LIMIT))
        g.label(loop)
        e("v_cmp_eq_u32 vcc, 0, %s" % v(vST))
        e("s_nop 4")
        e("s_cbranch_vccz %s" % ok)
        e("buffer_load_dword %s, %s, %s, 0 offen offset:%d sc1" % (v(vST), v(vSTA), srd(SRD_WS), 128 * p))
        e("s_waitcnt vmcnt(0)")
        e("s_sub_u32 s%d, s%d, 1" % (sSPIN, sSPIN))
        e("s_cmp_lg_u32 s%d, 0" % sSPIN)
        e("s_cbranch_scc1 %s" % loop)
        g.label(ok)
    q.fn(stats, 24, nb)
    q.op("v_and_b32 %s, 0xffff0000, %s" % (v(vS), v(vSTB[p])), nb=nb)
    q.op("v_and_b32 %s, 0xffff, %s" % (v(FOLD + 1), v(vSTB[p])), nb=nb)
    q.op("v_rcp_f32 %s, %s" % (v(vC1), v(vS)), 8, nb)
    q.op("v_xor_b32 %s, 0x8000, %s" % (v(FOLD + 1), v(FOLD + 1)), nb=nb)
    q.op("v_cndmask_b32 %s, 0, %s, s[%d:%d]" % (v(FOLD + 1), v(FOLD + 1), sEX, sEX + 1), nb=nb)
    q.op("v_lshl_or_b32 %s, %s, 16, %s" % (v(FOLD), v(FOLD + 1), v(FOLD + 1)), nb=nb)
    q.op("v_mul_f32 %s, 0xbfb8aa3b, %s" % (v(vC1), v(vC1)), nb=nb)
    q.op("s_nop 0", nb=nb)

    def fold():
        for ft in range(2):
            e("v_mfma_f32_32x32x16_bf16 %s, %s, %s, %s" % (v(acc + 16 * ft, 16), v(CS + 4 * ft, 4), v(FOLD, 4), v(acc + 16 * ft, 16)))
    q.fn(fold, 0, nb)
    for _ in range(4):
        q.fn(lambda: None, 100, nb)


def epilogue_valu(g, q, p, nb, direct=False, nostore=False):
    acc = ACC[p & 1]

    def put(line, cost=4):
        if direct:
            g.e(line)
        else:
            q.op(line, cost, nb)
    for ft in range(2):
        b = acc + 16 * ft
        for x in range(8):
            put("v_mul_f32 %s, %s, %s" % (v(b + x), v(b + x), v(vC1)))
        for x in range(8):
            put("v_exp_f32 %s, %s" % (v(b + x), v(b + x)), 8)
        for x in range(8):
            put("v_fma_f32 %s, %s, %s, %s" % (v(b + x), v(b + x), v(vS), v(vS)))
        for x in range(8):
            put("v_rcp_f32 %s, %s" % (v(b + x), v(b + x)), 8)
        for x in range(8):
            put("v_mul_f32 %s, %s, %s" % (v(b + 8 + x), v(b + 8 + x), v(b + x)))
        for i in range(4):
            put("v_cvt_pk_bf16_f32 %s, %s, %s" % (v(PK + 4 * ft + i), v(b + 8 + 2 * i), v(b + 9 + 2 * i)))


    if nostore:
        return
    if direct:
        h_store(g, p)
    else:
        q.fn(lambda: h_store(g, p), 40, max(nb, 24))


def h_store(g, p):
    g.e("s_lshl_b32 s%d, s%d, 2" % (sT6, sBI))
    g.e("s_add_u32 s%d, s%d, %d" % (sT6, sT6, p))
    g.e("s_mul_i32 s%d, s%d, 114688" % (sT6, sT6))
    g.e("s_lshl_b32 s%d, s%d, 2" % (sT7, sBJ))
    g.e("s_add_u32 s%d, s%d, s%d" % (sT7, sT7, sWAVE))
    g.e("s_lshl_b32 s%d, s%d, 10" % (sT7, sT7))
    g.e("s_add_u32 s%d, s%d, s%d" % (sT6, sT6, sT7))
    g.e("s_add_u32 s%d, s%d, %d" % (sT6, sT6, WS_HF))
    for ft in range(2):
        g.vmem("buffer_store_dwordx4 %s, %s, %s, s%d offen offset:%d sc1" % (v(PK + 4 * ft, 4), v(vHST), srd(SRD_WS), sT6, 512 * ft), "hst%d" % p)


def wd_bases(g, dst):
    e = g.e
    t0, t1, t2 = vT, vU, vW
    e("v_lshrrev_b32 %s, 5, v1" % v(t0))
    e("v_bfe_u32 %s, v1, 4, 1" % v(t1))
    e("v_lshlrev_b32 %s, 4, %s" % (v(t0), v(t0)))
    e("v_lshl_add_u32 %s, %s, 2, %s" % (v(t0), v(t1), v(t0)))
    e("v_bfe_u32 %s, v1, 2, 2" % v(t2))
    e("v_add_u32 %s, %s, %s" % (v(t0), v(t0), v(t2)))
    e("v_lshlrev_b32 %s, 7, %s" % (v(t0), v(t0)))
    e("v_lshrrev_b32 %s, 1, %s" % (v(t2), v(t2)))
    e("v_lshl_add_u32 %s, %s, 1, %s" % (v(t1), v(t1), v(t2)))
    e("v_and_b32 %s, 3, v1" % v(t2))
    e("v_lshl_add_u32 %s, %s, 3, %s" % (v(t0), v(t2), v(t0)))
    e("s_lshl_b32 s%d, s%d, 14" % (sT0, sWAVE))
    e("s_add_u32 s%d, s%d, %d" % (sT0, sT0, L_WD))
    e("v_add_u32 %s, s%d, %s" % (v(t0), sT0, v(t0)))
    for ct in range(4):
        e("v_xor_b32 %s, %d, %s" % (v(t2), ct, v(t1)))
        e("v_lshl_add_u32 %s, %s, 5, %s" % (v(dst + ct), v(t2), v(t0)))


def hslot(u, s):
    return a((64 if (u & 1) == 0 else 120) + 4 * s, 4)


vHA = 2


def rot_table(g):
    e = g.e
    e("s_lshl_b32 s%d, s%d, 1" % (sT0, sCI))
    e("s_add_u32 s%d, s%d, s%d" % (sT0, sT0, sCS))
    e("s_and_b32 s%d, s%d, 3" % (sT0, sT0))
    e("s_lshl_b32 s%d, s%d, 1" % (sT0, sT0))
    e("s_add_u32 s%d, s%d, s%d" % (sT0, sT0, sCJ))
    e("s_lshl_b32 s%d, s%d, 1" % (sT0, sT0))
    e("s_cmp_ge_u32 s%d, 14" % sT0)
    e("s_cselect_b32 s%d, 14, 0" % sT1)
    e("s_sub_u32 s%d, s%d, s%d" % (sT0, sT0, sT1))
    for i in range(14):
        e("s_lshl_b32 s%d, s%d, 10" % (sOFF + i, sT0))
        if i != 13:
            e("s_add_u32 s%d, s%d, 1" % (sT0, sT0))
            e("s_cmp_eq_u32 s%d, 14" % sT0)
            e("s_cselect_b32 s%d, 0, s%d" % (sT0, sT0))


def hso(g, u):
    e = g.e
    e("s_lshl_b32 s%d, s%d, 2" % (sHS, sCI))
    e("s_add_u32 s%d, s%d, %d" % (sHS, sHS, u))
    e("s_lshl_b32 s%d, s%d, 1" % (sHS, sHS))
    e("s_add_u32 s%d, s%d, s%d" % (sHS, sHS, sCS))
    e("s_mul_i32 s%d, s%d, 57344" % (sHS, sHS))
    e("s_mul_i32 s%d, s%d, 14336" % (sT3, sWAVE))
    e("s_add_u32 s%d, s%d, s%d" % (sHS, sHS, sT3))
    e("s_add_u32 s%d, s%d, %d" % (sHS, sHS, WS_HF))
    e("v_add_u32 %s, s%d, %s" % (v(vHA), sHS, v(vL16)))


vHA0 = 127


def hso3(g, u):
    global vHA
    save = vHA
    vHA = vHA0
    hso(g, u)
    vHA = save


def hload(g, u, s, vaddr=None):
    g.vmem("buffer_load_dwordx4 %s, %s, %s, s%d offen sc1" % (hslot(u, s), v(vHA if vaddr is None else vaddr), srd(SRD_WS), sOFF + s), "hf%d_%d" % (u, s))


def colsum(g, s0, s1, ONES):
    for s in range(s0, s1):
        for ft in range(2):
            g.e("v_mfma_f32_32x32x16_bf16 %s, %s, %s, %s" % (v(ACC[0] + 16 * ft, 16), v(ONES, 4), a(8 * s + 4 * ft, 4), "0" if s == s0 else v(ACC[0] + 16 * ft, 16)))


def phase_b(g):
    e = g.e
    g.c("==== B prologue ====")
    ONES = PK
    e("v_lshlrev_b32 %s, 4, v1" % v(vL16))
    e("v_lshrrev_b32 %s, 5, v1" % v(vT))
    e("v_bfe_u32 %s, v1, 2, 2" % v(vU))
    e("v_lshl_add_u32 %s, %s, 3, %s" % (v(vT), v(vT), v(vU)))
    e("v_lshlrev_b32 %s, 6, %s" % (v(vHTR0), v(vT)))
    e("v_bfe_u32 %s, v1, 4, 1" % v(vT))
    e("v_lshl_add_u32 %s, %s, 5, %s" % (v(vHTR0), v(vT), v(vHTR0)))
    e("v_and_b32 %s, 3, v1" % v(vT))
    e("v_lshl_add_u32 %s, %s, 3, %s" % (v(vHTR0), v(vT), v(vHTR0)))
    e("v_bfe_u32 %s, v1, 4, 1" % v(vT))
    e("v_mul_u32_u24 %s, 57344, %s" % (v(vHST), v(vT)))
    e("v_lshrrev_b32 %s, 5, v1" % v(vT))
    e("v_lshl_add_u32 %s, %s, 8, %s" % (v(vHST), v(vT), v(vHST)))
    e("v_and_b32 %s, 15, v1" % v(vT))
    e("v_lshl_add_u32 %s, %s, 4, %s" % (v(vHST), v(vT), v(vHST)))
    e("v_and_b32 %s, 31, v1" % v(vT))
    e("s_lshl_b32 s%d, s%d, 9" % (sT0, sBI))
    e("s_add_u32 s%d, s%d, %d" % (sT0, sT0, WS_ST2))
    e("v_lshl_add_u32 %s, %s, 2, s%d" % (v(vSTA), v(vT), sT0))
    e("v_lshrrev_b32 %s, 3, v1" % v(vT))
    e("v_mul_u32_u24 %s, 896, %s" % (v(vWDO), v(vT)))
    e("v_lshrrev_b32 %s, 1, %s" % (v(vT), v(vT)))
    e("v_lshlrev_b32 %s, 1, %s" % (v(vT), v(vT)))
    e("v_and_b32 %s, 7, v1" % v(vU))
    e("v_xor_b32 %s, %s, %s" % (v(vU), v(vU), v(vT)))
    e("v_lshl_add_u32 %s, %s, 4, %s" % (v(vWDO), v(vU), v(vWDO)))
    for n in range(1, 4):
        e("v_add_u32 %s, %d, %s" % (v(vWDO + n), n * 6144, v(vWDO)))
    wd_bases(g, vWDB)
    rot_table(g)
    e("s_mov_b32 s%d, -1" % sEX)
    e("s_mov_b32 s%d, 0" % (sEX + 1))
    e("v_mov_b32 %s, 0" % v(FOLD + 2))
    e("v_mov_b32 %s, 0" % v(FOLD + 3))
    e("v_mov_b32 %s, %s" % (v(vCS0), v(ACC[0])))
    e("v_mov_b32 %s, %s" % (v(vCS0 + 1), v(ACC[0] + 16)))
    g.w_stage_read(1)
    e("v_add_u32 %s, %d, %s" % (v(vHTR2), 57344, v(vHTR0)))
    e("v_and_b32 %s, 15, v1" % v(vT))
    e("v_lshlrev_b32 %s, 8, %s" % (v(vT), v(vT)))
    e("s_and_b32 s%d, s2, 7" % sT0)
    e("s_lshl_b32 s%d, s%d, 12" % (sT0, sT0))
    e("s_add_u32 s%d, s%d, %d" % (sT0, sT0, WS_CNT + 256 * C_S2))
    e("v_add_u32 %s, s%d, %s" % (v(vT), sT0, v(vT)))
    e("v_mov_b32 %s, 14" % v(vU))
    lab = g.newlabel("hb0")
    e("s_cmp_eq_u32 s%d, 0" % sWAVE)
    e("s_cbranch_scc0 %s" % lab)
    g.spin(vT, vU, vW)
    g.stamp(9)
    e("s_lshl_b32 s%d, s%d, 2" % (sT4, sBI))
    e("s_mul_i32 s%d, s%d, 28672" % (sT4, sT4))
    e("s_add_u32 s%d, s%d, %d" % (sT4, sT4, WS_HB))
    for grp in range(7):
        e("s_mov_b32 m0, %d" % (L_HB + 4096 * grp))
        e("s_nop 0")
        for i in range(4):
            e("buffer_load_dwordx4 %s, %s, s%d offen offset:%d sc1 lds" % (v(vL16), srd(SRD_WS), sT4, 1024 * i))
        if grp != 6:
            e("s_add_u32 s%d, s%d, 4096" % (sT4, sT4))
    g.label(lab)
    g.wait_lg("wr")
    colsum(g, 14, 28, ONES)
    e("s_nop 7")
    e("s_nop 3")
    for ft in range(2):
        cs = ACC[0] + 16 * ft
        d = CS + 4 * ft
        e("v_add_f32 %s, %s, %s" % (v(cs), v(cs), v(vCS0 + ft)))
        e("v_cvt_pk_bf16_f32 %s, %s, %s" % (v(vT), v(cs), v(cs)))
        e("v_lshlrev_b32 %s, 16, %s" % (v(vT), v(vT)))
        e("v_sub_f32 %s, %s, %s" % (v(vU), v(cs), v(vT)))
        e("v_cvt_pk_bf16_f32 %s, %s, %s" % (v(d), v(cs), v(vU)))
        e("v_and_b32 %s, 0xffff0000, %s" % (v(vT), v(d)))
        e("v_sub_f32 %s, %s, %s" % (v(vU), v(vU), v(vT)))
        e("v_cvt_pk_bf16_f32 %s, %s, 0" % (v(d + 1), v(vU)))
        e("v_cndmask_b32 %s, 0, %s, s[%d:%d]" % (v(d), v(d), sEX, sEX + 1))
        e("v_cndmask_b32 %s, 0, %s, s[%d:%d]" % (v(d + 1), v(d + 1), sEX, sEX + 1))
        e("v_mov_b32 %s, 0" % v(d + 2))
        e("v_mov_b32 %s, 0" % v(d + 3))
    g.wait_vm0()
    e("s_barrier")
    g.stamp(10)

    vm_ev = {}
    ld_ev = {}

    def put_vm(step, fn):
        while step in vm_ev:
            step += 1
        vm_ev[step] = fn
        return step
    for n in range(7):
        put_vm(0 + n, lambda n=n: hb_dma(g, 1, n))
    D = {0: 7, 1: 11, 2: 15, 3: 26, 4: 35, 5: 39, 6: 43, 7: 47, 8: 63, 9: 67, 10: 71, 11: 75, 12: 91, 13: 95}
    R = {0: 30, 1: 34, 2: 38, 3: 42, 4: 58, 5: 62, 6: 66, 7: 70, 8: 86, 9: 90}
    for n in range(7):
        put_vm(19 + n, lambda n=n: hb_dma(g, 2, n))
    for n in range(7):
        put_vm(54 + n, lambda n=n: hb_dma(g, 3, n))
    for unit in range(14):
        for n in range(4):
            def f(unit=unit, n=n):
                if n == 0 and unit >= 4:
                    g.wait_lg("wr%d" % (unit - 4))
                wd_dma(g, unit, n)
            st = put_vm(D[unit] + n, f)
            assert st == D[unit] + n, (unit, n, st)
    for unit in range(NREG_UNITS):
        for i in range(8):
            ld_ev.setdefault(R[unit] + (i >> 1), []).append(lambda unit=unit, i=i: wd_read(g, unit, i))
    for n in range(2):
        put_vm(84 + n, lambda n=n: res_dma(g, n))
    for p in range(1, 4):
        put_vm(30 + p, lambda p=p: g.vmem("buffer_load_dword %s, %s, %s, 0 offen offset:%d sc1" % (v(vSTB[p]), v(vSTA), srd(SRD_WS), 128 * p), "st%d" % p))
    for unit, r0 in ((10, 94), (11, 98)):
        for i in range(8):
            ld_ev.setdefault(r0 + (i >> 1), []).append(lambda unit=unit, i=i: wd_read(g, unit, i))
    put_vm(88, lambda: flagv_load(g, 0))

    def first_h():
        flagv_check(g)
        hso3(g, 0)
        hload(g, 0, 0, vaddr=vHA0)
    put_vm(99, first_h)
    nxt0 = list(range(1, 14))
    for st_ in (100, 101, 102, 103, 104, 105, 106, 107, 109, 110, 111):
        put_vm(st_, lambda s_=nxt0.pop(0): hload(g, 0, s_, vaddr=vHA0))
    tail_h = nxt0

    def hread(gs):
        u, s = divmod(gs, 28)
        if u > 3:
            return
        buf = u % 3
        base = vHTR2 if buf == 2 else vHTR0
        off = (28672 * buf if buf < 2 else 0) + 1024 * s
        for ee in range(2):
            g.lds("ds_read_b64_tr_b16 %s, %s offset:%d" % (v(HF + 4 * (gs % 3) + 2 * ee, 2), v(base), L_HB + off + 256 * ee), "h%d" % gs)

    hread(0)
    hread(1)
    for u in range(4):
        g.c("---- B block %d" % u)
        q = Q(g)
        acc = ACC[u & 1]
        if u >= 1:
            epilogue_items(g, q, u - 1, 0)
            epilogue_valu(g, q, u - 1, 0)
        for s in range(28):
            gs = 28 * u + s
            g.wait_lg("h%d" % gs)
            srcc = lambda ft: "0" if s == 0 else v(acc + 16 * ft, 16)
            e("v_mfma_f32_32x32x16_bf16 %s, %s, %s, %s" % (v(acc, 16), a(8 * s, 4), v(HF + 4 * (gs % 3), 4), srcc(0)))
            hread(gs + 2)
            q.gap(16, s)
            e("v_mfma_f32_32x32x16_bf16 %s, %s, %s, %s" % (v(acc + 16, 16), a(8 * s + 4, 4), v(HF + 4 * (gs % 3), 4), srcc(1)))
            budget = 20
            for f in ld_ev.get(gs, []):
                f()
                budget -= 4
            if gs in vm_ev:
                vm_ev[gs]()
                budget -= 4
            q.gap(budget, s) if budget > 0 else None
            if u == 0 and s == 18:
                g.vmem("buffer_load_dword %s, %s, %s, 0 offen sc1" % (v(vSTB[0]), v(vSTA), srd(SRD_WS)), "st0")
            if s == 25:
                tags = []
                if u <= 2:
                    tags.append("hb%d" % (u + 1))
                if u >= 2:
                    tags.append("hst%d" % (u - 2))
                if u == 3:
                    tags.append("res")
                g.wait_vm(tags)
                e("s_barrier")
                if u >= 2:
                    s3_signal(g, u - 2)
        q.flush()
        g.stamp(11 + u)
    g.c("---- B tail / C head")
    q = Q(g)
    epilogue_items(g, q, 3, 0)
    while q.o and q.o[-1][0] == 100:
        q.o.pop()
    q.flush()
    for s_ in tail_h:
        hload(g, 0, s_, vaddr=vHA0)
    side = []
    for unit in (12, 13):
        for i in range(8):
            side.append(lambda unit=unit, i=i: wd_read(g, unit, i))
    for k in range(10):
        side.pop(0)()
    q2 = Q(g)
    epilogue_valu(g, q2, 3, 0, nostore=True)
    k = 0
    while q2.o:
        q2.o.popleft()[1]()
        k += 1
        if k % 4 == 2 and side:
            side.pop(0)()
    h_store(g, 3)
    c_setup(g)
    g.stamp(15)


vPW, vPR, vRW, vRR, vOUT, vRES = 13, 14, 15, 16, 17, 18
SUM = 64
RS = 84
OUTP = 92


def c_setup(g):
    e = g.e
    e("v_lshrrev_b32 %s, 4, v1" % v(vT))
    e("v_and_b32 %s, 15, v1" % v(vU))
    e("v_mul_u32_u24 %s, 272, %s" % (v(vW), v(vT)))
    e("v_lshl_add_u32 %s, %s, 4, %s" % (v(vW), v(vU), v(vW)))
    e("s_lshl_b32 s%d, s%d, 14" % (sT0, sWAVE))
    e("s_add_u32 s%d, s%d, %d" % (sT0, sT0, L_WD))
    e("v_add_u32 %s, s%d, %s" % (v(vPW), sT0, v(vW)))
    e("s_mul_i32 s%d, s%d, 1088" % (sT0, sWAVE))
    e("s_add_u32 s%d, s%d, %d" % (sT0, sT0, L_RESP))
    e("v_add_u32 %s, s%d, %s" % (v(vRW), sT0, v(vW)))
    e("v_mul_u32_u24 %s, 272, %s" % (v(vW), v(vU)))
    e("s_lshl_b32 s%d, s%d, 2" % (sT0, sWAVE))
    e("v_add_u32 %s, s%d, %s" % (v(vPR), sT0, v(vT)))
    e("v_lshl_add_u32 %s, %s, 4, %s" % (v(vW), v(vPR), v(vW)))
    e("s_lshl_b32 s%d, s%d, 7" % (sT0, sCI))
    e("s_lshl_b32 s%d, s%d, 4" % (sT1, sCS))
    e("s_add_u32 s%d, s%d, s%d" % (sT0, sT0, sT1))
    e("v_add_u32 %s, s%d, %s" % (v(vOUT), sT0, v(vPR)))
    e("v_mul_u32_u24 %s, 896, %s" % (v(vOUT), v(vOUT)))
    e("v_lshl_add_u32 %s, %s, 3, %s" % (v(vOUT), v(vU), v(vOUT)))
    e("s_lshl_b32 s%d, s%d, 7" % (sT0, sCJ))
    e("v_add_u32 %s, s%d, %s" % (v(vOUT), sT0, v(vOUT)))
    e("v_add_u32 %s, %d, %s" % (v(vPR), L_WD, v(vW)))
    e("v_add_u32 %s, %d, %s" % (v(vRR), L_RESP, v(vW)))
    e("v_lshrrev_b32 %s, 4, v1" % v(vT))
    e("v_bfe_u32 %s, v1, 2, 2" % v(vU))
    e("v_lshl_add_u32 %s, %s, 2, %s" % (v(vT), v(vT), v(vU)))
    e("s_lshl_b32 s%d, s%d, 4" % (sT0, sWAVE))
    e("v_add_u32 %s, s%d, %s" % (v(vT), sT0, v(vT)))
    e("v_lshlrev_b32 %s, 5, %s" % (v(vT), v(vT)))
    e("v_and_b32 %s, 3, v1" % v(vU))
    e("v_lshl_add_u32 %s, %s, 3, %s" % (v(vT), v(vU), v(vT)))
    e("v_add_u32 %s, %d, %s" % (v(vRES), L_RES, v(vT)))
    for u in range(4):
        g.lds("ds_read_b64_tr_b16 %s, %s offset:%d" % (v(RS + 2 * u, 2), v(vRES), 2048 * u), "rs%d" % u)
    for u in range(4):
        g.wait_lg("rs%d" % u)
        t = SUM + 4 * u
        e("v_lshlrev_b32 %s, 16, %s" % (v(t), v(RS + 2 * u)))
        e("v_and_b32 %s, 0xffff0000, %s" % (v(t + 1), v(RS + 2 * u)))
        e("v_lshlrev_b32 %s, 16, %s" % (v(t + 2), v(RS + 2 * u + 1)))
        e("v_and_b32 %s, 0xffff0000, %s" % (v(t + 3), v(RS + 2 * u + 1)))
        g.lds("ds_write_b128 %s, %s offset:%d" % (v(vRW), v(t, 4), PART_STRIDE * u), "rw")


def phase_c(g):
    e = g.e
    g.c("==== C ====")
    CACC = [32, 48]

    def finish_items(q, u, nb):
        buf = u & 1
        for w in range(4):
            q.fn(lambda w=w: g.lds("ds_read_b128 %s, %s offset:%d" % (v(SUM + 4 * w, 4), v(vPR), 16384 * w + PART_STRIDE * buf), "p%d" % w), 4, nb)
        q.fn(lambda: g.lds("ds_read_b128 %s, %s offset:%d" % (v(SUM + 16, 4), v(vRR), PART_STRIDE * u), "p4"), 4, nb)
        q.fn(lambda: g.wait_lg("p1"), 4, nb + 1)
        for i in range(4):
            q.op("v_add_f32 %s, %s, %s" % (v(SUM + i), v(SUM + i), v(SUM + 4 + i)), 4, nb)
        q.fn(lambda: g.wait_lg("p3"), 4, nb)
        for i in range(4):
            q.op("v_add_f32 %s, %s, %s" % (v(SUM + 8 + i), v(SUM + 8 + i), v(SUM + 12 + i)), 4, nb)
        q.fn(lambda: g.wait_lg("p4"), 4, nb)
        for i in range(4):
            q.op("v_add_f32 %s, %s, %s" % (v(SUM + i), v(SUM + i), v(SUM + 16 + i)), 4, nb)
        for i in range(4):
            q.op("v_add_f32 %s, %s, %s" % (v(SUM + i), v(SUM + i), v(SUM + 8 + i)), 4, nb)
        q.op("v_cvt_pk_bf16_f32 %s, %s, %s" % (v(OUTP + 2 * u), v(SUM), v(SUM + 1)), 4, nb)
        q.op("v_cvt_pk_bf16_f32 %s, %s, %s" % (v(OUTP + 2 * u + 1), v(SUM + 2), v(SUM + 3)), 4, nb)

    def pwrite(u, ct):
        g.lds("ds_write_b128 %s, %s offset:%d" % (v(vPW), v(CACC[u & 1] + 4 * ct, 4), 1088 * ct + PART_STRIDE * (u & 1)), "pw")

    def mfmas(u, s):
        acc = CACC[u & 1]
        return [lambda ct=ct: e("v_mfma_f32_16x16x32_bf16 %s, %s, %s, %s" % (v(acc + 4 * ct, 4), rname(wdf(s, ct), 4), hslot(u, s), "0" if s == 0 else v(acc + 4 * ct, 4))) for ct in range(4)]

    def reduce_items(q, u):
        for ct in range(4):
            q.fn(lambda ct=ct: pwrite(u, ct), 8, 1)

        def bar():
            g.wait_lg("pw")
            e("s_barrier")
        q.fn(bar, 8, 2)
        finish_items(q, u, 3)

    g.c("---- C chunk 0")
    g.wait_lg0()
    for s in range(14):
        g.wait_vm("hf0_%d" % s)
        for m in mfmas(0, s):
            m()
        if s == 7:
            g.wait_vm("hst2")
            e("s_barrier")
            s3_signal(g, 2)
    flagv_load(g, 1)
    g.wait_vm("hst3")
    e("s_barrier")
    s3_signal(g, 3)
    g.stamp(17)
    flagv_check(g)
    hso(g, 1)
    for s in range(14):
        hload(g, 1, s)
        if s == 6:
            flagv_load(g, 2)
    for u in range(1, 4):
        g.c("---- C chunk %d" % u)
        q = Q(g)
        reduce_items(q, u - 1)
        first = 5
        nxt = list(range(14)) if u < 3 else []
        for s in range(14):
            g.wait_vm("hf%d_%d" % (u, s))
            if u < 3 and s == first:
                flagv_check(g)
                hso(g, u + 1)
            ms = mfmas(u, s)
            for ct in range(4):
                ms[ct]()
                if nxt and s >= first and (ct == 0 or (ct == 2 and s >= 9)):
                    hload(g, u + 1, nxt.pop(0))
                    if u == 1 and len(nxt) == 7:
                        flagv_load(g, 3)
                else:
                    q.gap(8, s)
        q.flush()
        while nxt:
            hload(g, u + 1, nxt.pop(0))
        g.stamp(17 + u)
    e("s_nop 7")
    for ct in range(4):
        pwrite(3, ct)
    g.wait_lg0()
    e("s_barrier")
    for u in range(3):
        e("s_mov_b32 s%d, %d" % (sT4, 32 * 896 * u))
        g.vmem("buffer_store_dwordx2 %s, %s, %s, s%d offen" % (v(OUTP + 2 * u, 2), v(vOUT), srd(SRD_OUT), sT4), "out")
    q = Q(g)
    finish_items(q, 3, 0)
    q.flush()
    e("s_mov_b32 s%d, %d" % (sT4, 32 * 896 * 3))
    g.vmem("buffer_store_dwordx2 %s, %s, %s, s%d offen" % (v(OUTP + 6, 2), v(vOUT), srd(SRD_OUT), sT4), "out")
```

```python
import sys, os
sys.path.insert(0, os.path.dirname(os.path.abspath(__file__)))
from asmlib import Asm, check_hazards

NAME = "sequential_preLN__ssm_conv_h3__glu_gated_glu__prompt_kernel"
S, D, F = 2048, 448, 1792

WS_KVT = 0x000000
WS_QT = 0x200000
WS_HB = 0x400000
WS_HF = 0x600000
WS_ST1 = 0xE00000
WS_ST2 = 0xE08000
WS_CNT = 0xE10000
WS_TS = 0xF00000
WS_SIZE = 0x1000000
C_S1, C_SL1, C_S3, C_S2 = 0, 8, 32, 96
N_CNT = 224

L_WST = 0
L_K = 114688
L_V = L_K + 9216
L_Q = L_V + 8192
L_TS = L_Q + 8192
L_X = L_K
L_EX = L_V
L_HB = 0
L_WD = 86016
LDS_BYTES = 163840

sWAVE = 3
SRD_WS, SRD_Q, SRD_K, SRD_V, SRD_SK, SRD_SH, SRD_WG, SRD_WU, SRD_WD, SRD_OUT, SRD_DBG = 4, 8, 12, 16, 20, 24, 28, 32, 36, 40, 44
sPC = 48
sD = 50
sT0, sT1, sT2, sT3, sT4, sT5, sT6, sT7 = 76, 77, 78, 79, 80, 81, 82, 83
sA0BASE = 84
sG0 = 85
sRB = 86
sBI, sBJ = 87, 88
sCI, sCS, sCJ = 89, 90, 91
sSPIN = 92
sM = 93
sEX = 94
sTS = 96
sHALF = 98
sCHL = 99
sWSO, sWM, sWB, sWG, sWX = 51, 75, 56, 57, 74
sOFF = 58
vWS = 248
vWRD = 246


def srd(n):
    return "s[%d:%d]" % (n, n + 3)


def v(a, n=1):
    return "v%d" % a if n == 1 else "v[%d:%d]" % (a, a + n - 1)


def a(i, n=1):
    return "a%d" % i if n == 1 else "a[%d:%d]" % (i, i + n - 1)


SPIN_LIMIT = 40000
DBG_IDX = [0, 1, 3, 4, 5, 6, 8, 9, 10, 11, 12, 13, 14, 15, 17, 20]


class Gen(Asm):
    def __init__(self, stop=None, stamps=False, tlbwarm=True, prefetch=True, dbgst=False):
        super().__init__()
        self.stop = stop
        self.stamps = stamps
        self.tlbwarm = tlbwarm
        self.prefetch = prefetch
        self.exp = set()
        self.spin_us = 0
        self.dbgst = dbgst
        self.go_off = 128 if dbgst else 0
        self.npre = 8
        self.nw1 = 28

    def stamp(self, idx):
        if self.dbgst:
            if idx not in DBG_IDX or getattr(self, "in_helper", False):
                return
            lab = self.newlabel("st")
            self.e("s_cmp_eq_u32 s%d, 0" % sWAVE)
            self.e("s_cbranch_scc0 %s" % lab)
            self.e("s_and_b32 s%d, s2, 31" % sTS)
            self.e("s_cmp_eq_u32 s%d, %d" % (sTS, 5))
            self.e("s_cbranch_scc0 %s" % lab)
            self.e("s_memrealtime s[%d:%d]" % (sTS, sTS + 1))
            self.e("s_waitcnt lgkmcnt(0)")
            if idx == 0:
                self.e("s_not_b32 s%d, s%d" % (sTS, sTS))
            self.e("v_mov_b32 v30, s%d" % sTS)
            self.e("v_mov_b32 v31, %d" % (4 * DBG_IDX.index(idx)))
            self.e("s_mov_b64 exec, 1")
            self.e("buffer_atomic_umax v30, v31, %s, 0 offen sc1" % srd(SRD_DBG))
            self.e("s_mov_b64 exec, -1")
            self.label(lab)
            return
        if not self.stamps:
            return
        lab = self.newlabel("st")
        self.e("s_cmp_eq_u32 s%d, 0" % sWAVE)
        self.e("s_cbranch_scc0 %s" % lab)
        self.e("s_memrealtime s[%d:%d]" % (sTS, sTS + 1))
        self.e("s_memtime s[100:101]")
        self.e("s_waitcnt lgkmcnt(0)")
        self.e("v_mov_b32 v30, s%d" % sTS)
        self.e("s_lshl_b32 s%d, s2, 8" % (sTS + 1))
        self.e("s_add_u32 s%d, s%d, %d" % (sTS + 1, sTS + 1, WS_TS + 4 * idx))
        self.e("v_mov_b32 v31, s%d" % (sTS + 1))
        self.e("s_mov_b64 exec, 1")
        self.e("buffer_store_dword v30, v31, %s, 0 offen" % srd(SRD_WS))
        self.e("v_mov_b32 v30, s100")
        self.e("s_nop 1")
        self.e("buffer_store_dword v30, v31, %s, 0 offen offset:128" % srd(SRD_WS))
        self.e("s_mov_b64 exec, -1")
        self.label(lab)

    def spin(self, vaddr, vtarget, vtmp):
        loop = self.newlabel("ploop")
        done = self.newlabel("pdone")
        self.e("s_mov_b32 s%d, %d" % (sSPIN, SPIN_LIMIT))
        self.label(loop)
        self.e("buffer_load_dword %s, %s, %s, 0 offen sc1" % (v(vtmp), v(vaddr), srd(SRD_WS)))
        self.e("s_waitcnt vmcnt(0)")
        self.e("v_cmp_lt_u32 vcc, %s, %s" % (v(vtmp), v(vtarget)))
        self.e("s_nop 4")
        self.e("s_cbranch_vccz %s" % done)
        self.e("s_sub_u32 s%d, s%d, 1" % (sSPIN, sSPIN))
        self.e("s_cmp_lg_u32 s%d, 0" % sSPIN)
        self.e("s_cbranch_scc0 %s" % done)
        self.e("s_sleep 1")
        self.e("s_branch %s" % loop)
        self.label(done)

    def poll(self, vaddr, vtarget, vtmp):
        skip = self.newlabel("pskip")
        self.e("s_cmp_eq_u32 s%d, 0" % sWAVE)
        self.e("s_cbranch_scc0 %s" % skip)
        self.spin(vaddr, vtarget, vtmp)
        self.label(skip)
        self.e("s_barrier")

    def signal(self, vaddr, vone, nlanes):
        skip = self.newlabel("sig")
        self.e("s_cmp_eq_u32 s%d, 0" % sWAVE)
        self.e("s_cbranch_scc0 %s" % skip)
        self.e("s_mov_b64 exec, %d" % ((1 << nlanes) - 1))
        self.e("buffer_atomic_add %s, %s, %s, 0 offen sc1" % (v(vone), v(vaddr), srd(SRD_WS)))
        self.e("s_mov_b64 exec, -1")
        self.label(skip)

    def endif_stop(self, name):
        if self.stop == name:
            self.wait_all()
            self.e("s_endpgm")
            return True
        return False

    def prologue(self):
        e = self.e
        e("s_cmp_ge_u32 s2, 256")
        e("s_cbranch_scc1 L_end")
        e("s_load_dwordx4 s[52:55], s[0:1], 0")
        e("s_load_dwordx4 s[56:59], s[0:1], 16")
        e("s_load_dwordx4 s[60:63], s[0:1], 32")
        e("s_load_dwordx4 s[64:67], s[0:1], 56")
        e("s_load_dwordx4 s[68:71], s[0:1], 72")
        e("s_load_dwordx4 s[72:75], s[0:1], 88")
        if self.spin_us:
            e("s_memrealtime s[100:101]")
        e("s_getpc_b64 s[%d:%d]" % (sPC, sPC + 1))
        self.label("L_pc")
        e("v_and_b32 v1, 63, v0")
        e("v_lshrrev_b32 v2, 6, v0")
        e("s_nop 0")
        e("v_readfirstlane_b32 s%d, v2" % sWAVE)
        e("s_waitcnt lgkmcnt(0)")

        def mk(dst, src, size):
            e("s_mov_b32 s%d, s%d" % (dst, src))
            e("s_mov_b32 s%d, s%d" % (dst + 1, src + 1))
            e("s_mov_b32 s%d, %d" % (dst + 2, size))
            e("s_mov_b32 s%d, 0x20000" % (dst + 3))
        mk(SRD_Q, 52, S * D * 2)
        mk(SRD_K, 54, S * D * 2)
        mk(SRD_V, 56, S * D * 2)
        mk(SRD_SH, 58, D * 4 * 2)
        mk(SRD_SK, 60, S * D * 2)
        mk(SRD_WG, 64, D * F * 2)
        mk(SRD_WU, 66, D * F * 2)
        mk(SRD_WD, 68, D * F * 2)
        e("s_sub_u32 s%d, s%d, 1024" % (SRD_WU, SRD_WU))
        e("s_subb_u32 s%d, s%d, 0" % (SRD_WU + 1, SRD_WU + 1))
        e("s_add_u32 s%d, s%d, 1024" % (SRD_WU + 2, SRD_WU + 2))
        mk(SRD_OUT, 70, S * D * 2)
        mk(SRD_DBG, 72, 256)
        mk(SRD_WS, 74, WS_SIZE)
        lab = self.newlabel("nowarm")
        e("s_lshr_b32 s%d, s2, 3" % sT0)
        e("s_cmp_lt_u32 s%d, 4" % sT0)
        e("s_cbranch_scc0 %s" % lab)
        e("s_lshl_b32 s%d, s%d, 2" % (sT0, sT0))
        e("s_add_u32 s%d, s%d, s%d" % (sT0, sT0, sWAVE))
        e("s_mul_i32 s%d, s%d, (L_codeend-L_pc+15)/16" % (sT0, sT0))
        e("v_lshlrev_b32 v2, 5, v1")
        e("v_add_u32 v2, s%d, v2" % sT0)
        e("v_min_u32 v2, L_codeend-L_pc-4, v2")
        e("v_and_b32 v2, -4, v2")
        e("global_load_dword v253, v2, s[%d:%d]" % (sPC, sPC + 1))
        self.label(lab)
        e("s_cmp_ge_u32 s2, 224")
        e("s_cbranch_scc1 L_helper")

    def phase_a0(self):
        e = self.e
        self.c("==== A0 ====")
        e("s_mul_i32 s%d, s2, 293" % sRB)
        e("s_lshr_b32 s%d, s%d, 11" % (sRB, sRB))
        e("s_mul_i32 s%d, s%d, 7" % (sT0, sRB))
        e("s_sub_u32 s%d, s2, s%d" % (sG0, sT0))
        e("s_mul_i32 s%d, s%d, %d" % (sA0BASE, sRB, 64 * 896))
        e("s_lshl_b32 s%d, s%d, 7" % (sT0, sG0))
        e("s_add_u32 s%d, s%d, s%d" % (sA0BASE, sA0BASE, sT0))
        vP, vOff, vOffH, vT = 4, 5, 6, 7
        e("v_lshrrev_b32 %s, 4, v1" % v(vT))
        e("v_and_b32 %s, 1, %s" % (v(vT), v(vT)))
        e("v_lshlrev_b32 %s, 1, %s" % (v(vT), v(vT)))
        e("v_and_b32 %s, 7, v1" % v(vP))
        e("v_xor_b32 %s, %s, %s" % (v(vP), v(vP), v(vT)))
        e("v_lshlrev_b32 %s, 4, %s" % (v(vP), v(vP)))
        e("v_lshrrev_b32 %s, 3, v1" % v(vT))
        e("v_mul_u32_u24 %s, 896, %s" % (v(vT), v(vT)))
        e("v_add_u32 %s, %s, %s" % (v(vP), v(vP), v(vT)))
        e("s_and_b32 s%d, s%d, 1" % (sT0, sWAVE))
        e("s_lshl_b32 s%d, s%d, 6" % (sT0, sT0))
        e("v_xor_b32 %s, s%d, %s" % (v(vOff), sT0, v(vP)))
        e("v_xor_b32 %s, 64, %s" % (v(vOffH), v(vP)))
        e("s_cmp_eq_u32 s%d, 0" % sRB)
        e("s_cselect_b32 s%d, 0x80000000, 0" % sT1)
        e("v_add_u32 %s, s%d, %s" % (v(vOffH), sT1, v(vOffH)))
        e("s_sub_u32 s%d, s%d, 7168" % (sT2, sA0BASE))
        e("s_cmp_eq_u32 s%d, 0" % sRB)
        e("s_cselect_b32 s%d, 0, s%d" % (sT2, sT2))
        e("s_mul_i32 s%d, s%d, 7168" % (sT3, sWAVE))
        e("s_add_u32 s%d, s%d, s%d" % (sT3, sT3, sA0BASE))
        e("s_add_u32 s%d, s%d, %d" % (sT4, sT3, 4 * 7168))
        e("s_lshl_b32 s%d, s%d, 10" % (sT5, sWAVE))

        def dma(srdn, voff, soff, ldsbase, addw=True):
            if addw:
                e("s_add_u32 m0, s%d, %d" % (sT5, ldsbase))
            else:
                e("s_mov_b32 m0, %d" % ldsbase)
            e("s_nop 0")
            self.vmem("buffer_load_dwordx4 %s, %s, s%d offen lds" % (v(voff), srd(srdn), soff), "a0")
        dma(SRD_K, vOffH, sT2, L_K, addw=False)
        dma(SRD_K, vOff, sT3, L_K + 1024)
        dma(SRD_K, vOff, sT4, L_K + 5 * 1024)
        dma(SRD_V, vOff, sT3, L_V)
        dma(SRD_V, vOff, sT4, L_V + 4 * 1024)
        dma(SRD_Q, vOff, sT3, L_Q)
        dma(SRD_Q, vOff, sT4, L_Q + 4 * 1024)
        vCH, vSK = 8, 10
        e("s_lshl_b32 s%d, s%d, 6" % (sT0, sG0))
        e("s_lshl_b32 s%d, s%d, 4" % (sT1, sWAVE))
        e("s_add_u32 s%d, s%d, s%d" % (sT0, sT0, sT1))
        e("v_and_b32 %s, 15, v1" % v(vCH))
        e("v_add_u32 %s, s%d, %s" % (v(vCH), sT0, v(vCH)))
        e("v_lshlrev_b32 %s, 3, %s" % (v(vT), v(vCH)))
        self.vmem("buffer_load_dwordx2 %s, %s, %s, 0 offen" % (v(vSK, 2), v(vT), srd(SRD_SH)), "a0")

        e("s_lshr_b32 s%d, s%d, 1" % (sCHL, sWAVE))
        e("s_and_b32 s%d, s%d, 1" % (sHALF, sWAVE))
        vL16 = 9
        e("v_lshlrev_b32 %s, 4, v1" % v(vL16))
        e("s_lshl_b32 s%d, s2, 1" % sT0)
        e("s_add_u32 s%d, s%d, s%d" % (sT0, sT0, sCHL))
        e("s_lshl_b32 s%d, s%d, 12" % (sT0, sT0))
        e("s_lshl_b32 s%d, s%d, 11" % (sT1, sHALF))
        e("s_add_u32 s%d, s%d, s%d" % (sT0, sT0, sT1))
        e("s_mul_i32 s%d, s%d, 8320" % (sT2, sCHL))
        e("s_add_u32 s%d, s%d, s%d" % (sT2, sT2, sT1))
        e("s_add_u32 m0, s%d, %d" % (sT2, L_TS + 32))
        e("s_nop 0")
        for i in range(2):
            self.vmem("buffer_load_dwordx4 %s, %s, s%d offen offset:%d lds" % (v(vL16), srd(SRD_SK), sT0, 1024 * i), "ts")
        if self.tlbwarm:
            self.c("touch every page that is used later (address translation warm-up)")
            vZ = 59
            e("v_mov_b32 %s, 0" % v(vZ))
            e("s_mov_b64 exec, 1")
            for r in (SRD_SK, SRD_WG, SRD_WD, SRD_OUT):
                e("buffer_load_dword v252, %s, %s, 0 offen" % (v(vZ), srd(r)))
            e("v_mov_b32 %s, 1024" % v(vZ))
            e("buffer_load_dword v252, %s, %s, 0 offen" % (v(vZ), srd(SRD_WU)))
            e("s_mov_b64 exec, 0xff")
            e("v_lshlrev_b32 %s, 21, v1" % v(vZ))
            e("buffer_load_dword v252, %s, %s, 0 offen" % (v(vZ), srd(SRD_WS)))
            e("s_mov_b64 exec, -1")
            self.vm += ["tlb"] * 6
        e("s_lshl_b32 s%d, s2, 2" % sT3)
        e("s_load_dword s%d, s[62:63], s%d" % (sD, sT3))

        vTR, vTRH, vG, vR = 13, 14, 15, 16
        e("v_lshrrev_b32 %s, 4, v1" % v(vG))
        e("v_bfe_u32 %s, v1, 2, 2" % v(vR))
        e("v_lshrrev_b32 %s, 1, %s" % (v(vT), v(vR)))
        e("v_and_b32 %s, 1, %s" % (v(vTR), v(vG)))
        e("v_lshl_or_b32 %s, %s, 1, %s" % (v(vT), v(vTR), v(vT)))
        e("v_xor_b32 %s, s%d, %s" % (v(vT), sWAVE, v(vT)))
        e("v_lshlrev_b32 %s, 5, %s" % (v(vT), v(vT)))
        e("v_lshl_add_u32 %s, %s, 3, %s" % (v(vTR), v(vG), v(vR)))
        e("v_lshl_add_u32 %s, %s, 7, %s" % (v(vTR), v(vTR), v(vT)))
        e("v_and_b32 %s, 3, v1" % v(vT))
        e("v_lshl_add_u32 %s, %s, 3, %s" % (v(vTR), v(vT), v(vTR)))
        e("v_add_u32 %s, %d, %s" % (v(vTR), L_K, v(vTR)))
        e("v_xor_b32 %s, 64, %s" % (v(vTRH), v(vTR)))
        vSKV, vSQ = 17, 18
        e("s_lshl_b32 s%d, s%d, 7" % (sT0, sRB))
        e("v_lshlrev_b32 %s, 12, %s" % (v(vSQ), v(vCH)))
        e("v_lshlrev_b32 %s, 4, %s" % (v(vT), v(vG)))
        e("s_sub_u32 s%d, %d, s%d" % (sT1, WS_KVT + 4080 - 64, sT0))
        e("v_add_u32 %s, s%d, %s" % (v(vSKV), sT1, v(vSQ)))
        e("v_sub_u32 %s, %s, %s" % (v(vSKV), v(vSKV), v(vT)))
        e("s_add_u32 s%d, s%d, %d" % (sT1, sT0, WS_QT))
        e("v_add3_u32 %s, %s, %s, s%d" % (v(vSQ), v(vSQ), v(vT), sT1))
        self.wait_vm("a0")
        e("s_waitcnt lgkmcnt(0)")
        self.lg = []
        e("s_lshl_b32 s%d, s%d, 16" % (sT0, sD))
        e("s_and_b32 s%d, s%d, 0xffff0000" % (sT1, sD))
        e("s_cmp_eq_u32 s%d, 0" % sCHL)
        e("s_cselect_b32 s%d, s%d, s%d" % (sD, sT0, sT1))
        e("s_barrier")
        self.stamp(1)

        KH = [24, 34]
        KM = [26, 36]
        VV = [40, 44]
        QQ = [48, 52]
        for rho in range(2):
            self.lds("ds_read_b64_tr_b16 %s, %s offset:%d" % (v(KH[rho], 2), v(vTRH), 512 + 4096 * rho), "k%d" % rho)
            self.lds("ds_read_b64_tr_b16 %s, %s offset:%d" % (v(KM[rho], 2), v(vTR), 1024 + 4096 * rho), "k%d" % rho)
            self.lds("ds_read_b64_tr_b16 %s, %s offset:%d" % (v(KM[rho] + 2, 2), v(vTR), 1024 + 512 + 4096 * rho), "k%d" % rho)
            self.lds("ds_read_b64_tr_b16 %s, %s offset:%d" % (v(VV[rho], 2), v(vTR), L_V - L_K + 4096 * rho), "v%d" % rho)
            self.lds("ds_read_b64_tr_b16 %s, %s offset:%d" % (v(VV[rho] + 2, 2), v(vTR), L_V - L_K + 512 + 4096 * rho), "v%d" % rho)
        for rho in range(2):
            self.lds("ds_read_b64_tr_b16 %s, %s offset:%d" % (v(QQ[rho], 2), v(vTR), L_Q - L_K + 4096 * rho), "q")
            self.lds("ds_read_b64_tr_b16 %s, %s offset:%d" % (v(QQ[rho] + 2, 2), v(vTR), L_Q - L_K + 512 + 4096 * rho), "q")
        CA, CB = 21, 22
        e("v_alignbit_b32 %s, %s, %s, 16" % (v(CA), v(vSK), v(vSK)))
        e("v_alignbit_b32 %s, %s, %s, 16" % (v(CB), v(vSK + 1), v(vSK + 1)))
        MM = 56
        KS = 64
        VF = 72
        OUTR = [80, 84]
        for rho in range(2):
            self.wait_lg("v%d" % rho)
            Dw = [KH[rho], KH[rho] + 1, KM[rho], KM[rho] + 1, KM[rho] + 2, KM[rho] + 3]
            for i in range(5):
                e("v_alignbit_b32 %s, %s, %s, 16" % (v(MM + i), v(Dw[i + 1]), v(Dw[i])))
            for t in range(8):
                if t & 1:
                    p0, p1 = Dw[2 + (t >> 1)], Dw[1 + (t >> 1)]
                else:
                    p0, p1 = MM + 1 + (t >> 1), MM + (t >> 1)
                e("v_dot2_f32_bf16 %s, %s, %s, 0" % (v(KS + t), v(p1), v(CB)))
            for t in range(8):
                if t & 1:
                    p0 = Dw[2 + (t >> 1)]
                else:
                    p0 = MM + 1 + (t >> 1)
                e("v_dot2_f32_bf16 %s, %s, %s, %s" % (v(KS + t), v(p0), v(CA), v(KS + t)))
            for t in range(8):
                src = VV[rho] + (t >> 1)
                if t & 1:
                    e("v_and_b32 %s, 0xffff0000, %s" % (v(VF + t), v(src)))
                else:
                    e("v_lshlrev_b32 %s, 16, %s" % (v(VF + t), v(src)))
            for t in range(8):
                e("v_mul_f32 %s, %s, %s" % (v(KS + t), v(KS + t), v(VF + t)))
            for i in range(4):
                e("v_cvt_pk_bf16_f32 %s, %s, %s" % (v(OUTR[rho] + i), v(KS + 7 - 2 * i), v(KS + 6 - 2 * i)))
            self.vmem("buffer_store_dwordx4 %s, %s, %s, 0 offen offset:%d sc1" % (v(OUTR[rho], 4), v(vSKV), srd(SRD_WS), 64 if rho == 0 else 0), "a0st")
        self.wait_lg("q")
        for rho in range(2):
            self.vmem("buffer_store_dwordx4 %s, %s, %s, 0 offen offset:%d sc1" % (v(QQ[rho], 4), v(vSQ), srd(SRD_WS), 64 * rho), "a0st")
        vGO, vZERO = 23, 58
        e("v_mov_b32 %s, 0" % v(vZERO))
        self.vmem("buffer_load_dword %s, %s, %s, 0 offen offset:%d sc1" % (v(vGO), v(vZERO), srd(SRD_DBG), self.go_off), "go")
        self.stamp(2)

    def t_build(self):
        e = self.e
        vZ, vZA, vRA, vPA = 19, 20, 21, 22
        D0 = 100
        e("v_mov_b32 %s, 0" % v(vZ))
        e("s_mul_i32 s%d, s%d, 8320" % (sT2, sCHL))
        e("s_add_u32 s%d, s%d, %d" % (sT2, sT2, L_TS))
        e("v_lshl_add_u32 %s, v1, 2, s%d" % (v(vPA), sT2))
        e("v_mov_b32 %s, s%d" % (v(vZA), sT2))
        e("v_add_u32 %s, %d, %s" % (v(vZA), 32 + 4096, v(vZA)))
        e("v_cmp_gt_u32 vcc, 8, v1")
        e("s_nop 1")
        e("v_cndmask_b32 %s, %s, %s, vcc" % (v(vZA), v(vZA), v(vPA)))
        e("s_mov_b64 exec, 0x1ff")
        e("ds_write_b32 %s, %s" % (v(vZA), v(vZ)))
        e("s_mov_b64 exec, -1")
        e("s_lshl_b32 s%d, s%d, 11" % (sT1, sHALF))
        e("s_add_u32 s%d, s%d, s%d" % (sT1, sT1, sT2))
        e("s_add_u32 s%d, s%d, 32" % (sT1, sT1))
        e("v_lshl_add_u32 %s, v1, 4, s%d" % (v(vRA), sT1))
        self.wait_vm("ts")
        self.wait_lg0()
        e("s_barrier")
        for c in range(2):
            e("ds_read_b128 %s, %s offset:%d" % (v(D0 + 6 * c, 4), v(vRA), 1024 * c))
            e("ds_read_b32 %s, %s offset:%d" % (v(D0 + 6 * c + 4), v(vRA), 1024 * c + 16))
        e("ds_read2_b32 %s, %s offset0:0 offset1:1" % (v(D0 + 12, 2), v(vPA)))
        e("s_mul_i32 s%d, s%d, 4608" % (sT0, sCHL))
        e("s_lshl_b32 s%d, s%d, 8" % (sT1, sHALF))
        e("s_add_u32 s%d, s%d, s%d" % (sT0, sT0, sT1))
        e("s_add_u32 s%d, s%d, %d" % (sT0, sT0, L_X + 4096))
        e("v_lshl_add_u32 %s, v1, 2, s%d" % (v(vZA), sT0))
        e("ds_write_b32 %s, %s" % (v(vZA), v(vZ)))
        self.wait_lg0()
        O = D0 + 16
        for c in range(2):
            for i in range(4):
                e("v_alignbit_b32 %s, %s, %s, 16" % (v(O + 4 * c + i), v(D0 + 6 * c + i + 1), v(D0 + 6 * c + i)))
        e("v_alignbit_b32 %s, %s, %s, 16" % (v(O + 8), v(D0 + 13), v(D0 + 12)))
        for c in range(2):
            e("ds_write_b128 %s, %s offset:%d" % (v(vRA), v(O + 4 * c, 4), 4160 + 1024 * c))
        e("s_mov_b64 exec, 0xff")
        e("ds_write_b32 %s, %s offset:4160" % (v(vPA), v(O + 8)))
        e("s_mov_b64 exec, -1")
        self.wait_lg0()
        e("s_barrier")

    def w_stage_setup(self):
        e = self.e
        vT = 7
        e("v_lshrrev_b32 %s, 2, v1" % v(vT))
        e("v_mul_u32_u24 %s, 3584, %s" % (v(vT), v(vT)))
        e("v_and_b32 %s, 3, v1" % v(vWS))
        e("v_xor_b32 %s, 2, %s" % (v(vWS + 1), v(vWS)))
        e("v_lshl_add_u32 %s, %s, 4, %s" % (v(vWS), v(vWS), v(vT)))
        e("v_lshl_add_u32 %s, %s, 4, %s" % (v(vWS + 1), v(vWS + 1), v(vT)))
        e("v_add_u32 %s, %d, %s" % (v(vWS + 2), 57344 - 2048, v(vWS)))
        e("v_add_u32 %s, %d, %s" % (v(vWS + 3), 57344 - 2048, v(vWS + 1)))

    def w_stage_items(self, rnd, spanel=None, gstart=0, ngroups=7, sgstart=None):
        e = self.e
        items = []
        sp = sWAVE if spanel is None else spanel

        def setup():
            e("s_lshl_b32 s%d, s%d, 8" % (sWB, sBJ))
            e("s_lshl_b32 s%d, s%d, 6" % (sWM, sp))
            e("s_add_u32 s%d, s%d, s%d" % (sWB, sWB, sWM))
            if rnd:
                e("s_add_u32 s%d, s%d, %d" % (sWB, sWB, 14 * rnd * 57344))
            e("s_mul_i32 s%d, s%d, 28672" % (sWM, sp))
            if L_WST:
                e("s_add_u32 s%d, s%d, %d" % (sWM, sWM, L_WST))
            e("s_and_b32 s%d, s%d, 3" % (sWG, sBI))
            e("s_lshl_b32 s%d, s%d, 1" % (sWG, sWG))
            if sgstart is not None:
                e("s_add_u32 s%d, s%d, s%d" % (sWG, sWG, sgstart))
                e("s_cmp_ge_u32 s%d, 7" % sWG)
                e("s_cselect_b32 s%d, 7, 0" % sWX)
                e("s_sub_u32 s%d, s%d, s%d" % (sWG, sWG, sWX))

        def addr():
            e("s_mul_i32 s%d, s%d, %d" % (sWSO, sWG, 2 * 57344))
            e("s_add_u32 s%d, s%d, s%d" % (sWSO, sWSO, sWB))
            e("s_lshl_b32 s%d, s%d, 12" % (sWX, sWG))
            e("s_add_u32 m0, s%d, s%d" % (sWX, sWM))
        for grp in range(ngroups):
            for n in range(4):
                def one(grp=grp, n=n):
                    if grp == 0 and n == 0:
                        setup()
                        addr()
                        e("s_nop 0")
                    elif n == 0:
                        e("s_add_u32 s%d, s%d, 1" % (sWG, sWG))
                        e("s_cmp_eq_u32 s%d, 7" % sWG)
                        e("s_cselect_b32 s%d, 0, s%d" % (sWG, sWG))
                        addr()
                        e("s_nop 0")
                    self.vmem("buffer_load_dwordx4 %s, %s, s%d offen offset:%d lds" % (v(vWS + (n & 1) + 2 * (n >> 1)), srd(SRD_WG if (n & 1) == 0 else SRD_WU), sWSO, 1024 * n), "w%d" % rnd)
                items.append(one)
        return items

    def w_stage_read_setup(self, vB0, vB1):
        e = self.e
        vT, vU = 7, 4
        e("v_bfe_u32 %s, v1, 4, 1" % v(vT))
        e("v_lshrrev_b32 %s, 5, v1" % v(vU))
        e("v_lshlrev_b32 %s, 3, %s" % (v(vU), v(vU)))
        e("v_bfe_u32 %s, v1, 2, 2" % v(vB0))
        e("v_add_u32 %s, %s, %s" % (v(vU), v(vU), v(vB0)))
        e("v_lshlrev_b32 %s, 6, %s" % (v(vU), v(vU)))
        e("v_and_b32 %s, 3, v1" % v(vB0))
        e("v_lshl_add_u32 %s, %s, 3, %s" % (v(vU), v(vB0), v(vU)))
        e("v_mul_u32_u24 %s, 1056, %s" % (v(vT), v(vT)))
        e("s_mul_i32 s%d, s%d, 28672" % (sT0, sWAVE))
        e("v_add3_u32 %s, %s, %s, s%d" % (v(vB0), v(vU), v(vT), sT0))
        e("v_xor_b32 %s, 32, %s" % (v(vB1), v(vB0)))

    def w_stage_read_items(self, rnd, vB0, vB1):
        items = []
        for s in range(14):
            for ft in range(2):
                base = 8 * (14 * rnd + s) + 4 * ft
                for ee in range(2):
                    items.append("ds_read_b64_tr_b16 %s, %s offset:%d" % (a(base + 2 * ee, 2), v(vB0 if ft == 0 else vB1), L_WST + 2048 * s + 256 * ee))
        return items

    def w_stage_read(self, rnd):
        self.c("W staging -> AGPR round %d" % rnd)
        self.wait_vm("w%d" % rnd)
        for line in self.w_stage_read_items(rnd, vWRD, vWRD + 1):
            self.lds(line, "wr")

    def t_read(self):
        e = self.e
        self.c("T fragments -> a112..a239")
        vB, vT, vU = 240, 7, 4
        e("v_and_b32 %s, 15, v1" % v(vT))
        e("v_and_b32 %s, 1, %s" % (v(vU), v(vT)))
        e("v_add_u32 %s, %s, %s" % (v(vT), v(vT), v(vU)))
        e("v_lshrrev_b32 %s, 4, v1" % v(vB))
        e("v_lshl_add_u32 %s, %s, 3, %s" % (v(vT), v(vB), v(vT)))
        e("v_lshlrev_b32 %s, 1, %s" % (v(vT), v(vT)))
        e("v_xor_b32 %s, 1, %s" % (v(vU), v(vU)))
        e("v_mul_u32_u24 %s, 4160, %s" % (v(vU), v(vU)))
        e("s_mul_i32 s%d, s%d, 8320" % (sT0, sCHL))
        e("s_lshl_b32 s%d, s%d, 8" % (sT1, sHALF))
        e("s_add_u32 s%d, s%d, s%d" % (sT0, sT0, sT1))
        e("s_add_u32 s%d, s%d, %d" % (sT0, sT0, L_TS))
        e("v_add3_u32 %s, %s, %s, s%d" % (v(vB), v(vT), v(vU), sT0))
        for i in range(1, 4):
            e("v_add_u32 %s, %d, %s" % (v(vB + i), 1024 * i, v(vB)))
        items = []
        for rr in range(4):
            for q in range(8):
                base = 112 + 4 * (8 * rr + q)
                o = 128 * (q & 1) + 16 * rr
                for hh in range(2):
                    items.append("ds_read2_b32 %s, %s offset0:%d offset1:%d" % (a(base + 2 * hh, 2), v(vB + (q >> 1)), o + 2 * hh, o + 2 * hh + 1))
        return items

    def pre_signal(self):
        e = self.e
        self.t_build()
        titems = self.t_read()
        lab0, labj = self.newlabel("p0"), self.newlabel("pj")
        e("s_cmp_eq_u32 s%d, 0" % sWAVE)
        e("s_cbranch_scc1 %s" % lab0)
        save = list(self.vm)
        self.w0_own = self.w_stage_items(0)
        t = list(titems)
        npre = self.npre
        for it in self.w0_own[:npre]:
            it()
            for _ in range(64 // npre):
                e(t.pop(0))
        while t:
            e(t.pop(0))
        self.wait_vm("go")
        self.vm = list(save)
        e("s_branch %s" % labj)
        self.label(lab0)
        for line in titems:
            e(line)
        self.wait_vm("go")
        self.label(labj)

    def window1(self, vL16):
        e = self.e
        lab0, labj = self.newlabel("w0"), self.newlabel("wj")
        e("s_cmp_eq_u32 s%d, 0" % sWAVE)
        e("s_cbranch_scc1 %s" % lab0)
        if self.prefetch:
            vP = 59
            e("s_mul_i32 s%d, s2, 7168" % sT0)
            e("s_sub_u32 s%d, s%d, 1" % (sT1, sWAVE))
            e("s_mul_i32 s%d, s%d, %d" % (sT1, sT1, 19 * 128))
            e("s_add_u32 s%d, s%d, s%d" % (sT0, sT0, sT1))
            e("v_lshl_add_u32 %s, v1, 7, s%d" % (v(vP), sT0))
            e("s_mov_b64 exec, 0x7ffff")
            e("buffer_load_dword v252, %s, %s, 0 offen" % (v(vP), srd(SRD_WG)))
            e("buffer_load_dword v252, %s, %s, 0 offen offset:1024" % (v(vP), srd(SRD_WU)))
            e("buffer_load_dword v252, %s, %s, 0 offen" % (v(vP), srd(SRD_WD)))
            e("s_mov_b64 exec, -1")
        save = list(self.vm)
        for it in self.w0_own[self.npre:]:
            it()
        sPAN, sGST = 72, 73
        e("s_mov_b32 s%d, 0" % sPAN)
        e("s_lshl_b32 s%d, s%d, 1" % (sGST, sWAVE))
        e("s_sub_u32 s%d, s%d, 1" % (sGST, sGST))
        e("s_cmp_eq_u32 s%d, 1" % sWAVE)
        e("s_cselect_b32 s%d, 0, s%d" % (sGST, sGST))
        sh = self.w_stage_items(0, spanel=sPAN, ngroups=3, sgstart=sGST)
        for it in sh[:8]:
            it()
        lab3 = self.newlabel("w3")
        e("s_cmp_eq_u32 s%d, 1" % sWAVE)
        e("s_cbranch_scc0 %s" % lab3)
        for it in sh[8:]:
            it()
        self.label(lab3)
        self.vm = save
        e("s_waitcnt vmcnt(0) lgkmcnt(0)")
        e("s_branch %s" % labj)
        self.label(lab0)
        vA, vTg, vTmp = 21, 22, 23
        e("s_and_b32 s%d, s2, 7" % sT1)
        e("s_lshl_b32 s%d, s%d, 8" % (sT1, sT1))
        e("s_add_u32 s%d, s%d, %d" % (sT1, sT1, WS_CNT + 256 * C_SL1))
        e("s_lshr_b32 s%d, s2, 5" % sT0)
        e("s_lshl_b32 s%d, s%d, 8" % (sT0, sT0))
        e("s_add_u32 s%d, s%d, %d" % (sT0, sT0, WS_CNT + 256 * C_S1))
        e("v_mov_b32 %s, s%d" % (v(vA), sT0))
        e("v_mov_b32 %s, s%d" % (v(vTmp), sT1))
        e("v_cmp_gt_u32 vcc, 32, v1")
        e("s_nop 1")
        e("v_cndmask_b32 %s, %s, %s, vcc" % (v(vA), v(vTmp), v(vA)))
        e("v_mov_b32 %s, 32" % v(vTg))
        self.spin(vA, vTg, vTmp)
        self.stamp(4)
        e("s_lshl_b32 s%d, s2, 13" % sT0)
        if WS_KVT:
            e("s_add_u32 s%d, s%d, %d" % (sT0, sT0, WS_KVT))
        e("s_mov_b32 m0, %d" % L_X)
        e("s_nop 0")
        for i in range(4):
            e("buffer_load_dwordx4 %s, %s, s%d offen offset:%d sc1 lds" % (v(vL16), srd(SRD_WS), sT0, 1024 * i))
        e("s_add_u32 s%d, s%d, 4096" % (sT0, sT0))
        e("s_mov_b32 m0, %d" % (L_X + 4608))
        e("s_nop 0")
        for i in range(4):
            e("buffer_load_dwordx4 %s, %s, s%d offen offset:%d sc1 lds" % (v(vL16), srd(SRD_WS), sT0, 1024 * i))
        e("s_mov_b32 s%d, %d" % (sT0, WS_ST1))
        for grp in range(4):
            e("s_mov_b32 m0, %d" % (L_EX + 4096 * grp))
            e("s_nop 0")
            for i in range(4):
                e("buffer_load_dwordx4 %s, %s, s%d offen offset:%d sc1 lds" % (v(vL16), srd(SRD_WS), sT0, 1024 * i))
            if grp != 3:
                e("s_add_u32 s%d, s%d, 4096" % (sT0, sT0))
        e("s_waitcnt vmcnt(16) lgkmcnt(0)")
        self.label(labj)
        self.vm = ["w0"]
        self.lg = []
        e("s_barrier")

    def phase_a1(self):
        e = self.e
        self.c("==== A1 ====")
        ACC = 32
        XF = [64, 96]
        QR, KVR, AR, BR = 128, 136, 144, 160
        LN, KD, QF = 176, 192, 208
        Y = 224
        vT, vU = 7, 4
        vL16 = 9
        e("v_lshlrev_b32 %s, 4, v1" % v(vL16))
        e("s_lshl_b32 s%d, s2, 1" % sT0)
        e("s_add_u32 s%d, s%d, s%d" % (sT0, sT0, sCHL))
        e("s_lshl_b32 s%d, s%d, 12" % (sT0, sT0))
        vTL = 5
        e("v_and_b32 %s, 15, v1" % v(vT))
        e("v_lshrrev_b32 %s, 4, v1" % v(vU))
        e("v_lshlrev_b32 %s, 2, %s" % (v(vU), v(vU)))
        e("v_lshl_add_u32 %s, %s, 4, %s" % (v(vTL), v(vT), v(vU)))
        e("s_lshl_b32 s%d, s%d, 10" % (sT1, sHALF))
        e("v_add_u32 %s, s%d, %s" % (v(vTL), sT1, v(vTL)))
        vQA, vSA = 6, 8
        e("s_add_u32 s%d, s%d, %d" % (sT2, sT0, WS_QT))
        e("v_lshl_add_u32 %s, %s, 1, s%d" % (v(vQA), v(vTL), sT2))
        e("v_lshlrev_b32 %s, 2, %s" % (v(vSA), v(vTL)))
        e("s_mov_b32 s%d, %d" % (sT4, WS_ST1))
        e("s_mov_b32 s%d, %d" % (sT5, WS_ST1 + 8192))
        vXB, vKVA, vEW, vER = 10, 11, 12, 13
        e("v_and_b32 %s, 15, v1" % v(vT))
        e("v_lshrrev_b32 %s, 4, v1" % v(vU))
        e("v_lshlrev_b32 %s, 4, %s" % (v(vU), v(vU)))
        e("v_lshlrev_b32 %s, 5, %s" % (v(vT), v(vT)))
        e("v_sub_u32 %s, %s, %s" % (v(vXB), v(vU), v(vT)))
        e("s_mul_i32 s%d, s%d, 4608" % (sT0, sCHL))
        e("s_lshl_b32 s%d, s%d, 8" % (sT1, sHALF))
        e("s_add_u32 s%d, s%d, s%d" % (sT1, sT1, sT0))
        e("s_add_u32 s%d, s%d, %d" % (sT1, sT1, L_X + 480))
        e("v_add_u32 %s, s%d, %s" % (v(vXB), sT1, v(vXB)))
        e("s_add_u32 s%d, s%d, %d" % (sT1, sT0, L_X + 4088 - 1536))
        e("v_lshlrev_b32 %s, 1, %s" % (v(vT), v(vTL)))
        e("v_sub_u32 %s, s%d, %s" % (v(vKVA), sT1, v(vT)))
        e("s_lshl_b32 s%d, s%d, 12" % (sT0, sWAVE))
        e("s_add_u32 s%d, s%d, %d" % (sT1, sT0, L_TS))
        e("v_add_u32 %s, s%d, %s" % (v(vEW), sT1, v(vL16)))
        e("s_xor_b32 s%d, s%d, 0x1000" % (sT0, sT0))
        e("s_add_u32 s%d, s%d, %d" % (sT1, sT0, L_TS))
        e("v_add_u32 %s, s%d, %s" % (v(vER), sT1, v(vL16)))
        vHO = 14
        vRow = 15
        e("v_lshrrev_b32 %s, 4, v1" % v(vRow))
        e("v_and_b32 %s, 15, v1" % v(vT))
        e("v_lshrrev_b32 %s, 1, %s" % (v(vU), v(vT)))
        e("v_and_b32 %s, 1, %s" % (v(vHO), v(vRow)))
        e("v_lshl_add_u32 %s, %s, 3, %s" % (v(vU), v(vHO), v(vU)))
        e("v_mul_u32_u24 %s, 28672, %s" % (v(vHO), v(vU)))
        e("v_and_b32 %s, 1, %s" % (v(vT), v(vT)))
        e("v_lshl_add_u32 %s, %s, 5, %s" % (v(vHO), v(vT), v(vHO)))
        e("v_lshrrev_b32 %s, 1, %s" % (v(vRow), v(vRow)))
        e("v_lshl_add_u32 %s, %s, 4, %s" % (v(vHO), v(vRow), v(vHO)))
        e("s_lshl_b32 s%d, s2, 1" % sT0)
        e("s_add_u32 s%d, s%d, s%d" % (sT0, sT0, sCHL))
        e("s_lshl_b32 s%d, s%d, 6" % (sT0, sT0))
        e("s_mul_i32 s%d, s%d, %d" % (sT1, sHALF, 32 * 28672))
        e("s_add_u32 s%d, s%d, s%d" % (sT0, sT0, sT1))
        e("s_add_u32 s%d, s%d, %d" % (sT6, sT0, WS_HB))
        e("s_add_u32 s%d, s%d, %d" % (sT7, sT6, 16 * 28672))
        vABR = 16
        e("v_lshl_add_u32 %s, %s, 2, 0" % (v(vABR), v(vTL)))
        e("v_add_u32 %s, %d, %s" % (v(vABR), L_EX, v(vABR)))
        self.window1(vL16)
        self.stamp(5)

        def xread(rr):
            for m in range(8):
                self.lds("ds_read_b128 %s, %s offset:%d" % (v(XF[rr & 1] + 4 * m, 4), v(vXB), 512 * (7 - m) + 64 * rr), "x%d" % rr)

        F = [[], [], [], []]

        def pair(lst, items):
            for i in range(0, len(items), 2):
                lst.append(items[i:i + 2])
        wr = [("lds", x, "wr") for x in self.w_stage_read_items(0, vWRD, vWRD + 1)]
        pair(F[0], wr)
        w1 = self.w_stage_items(1)
        NW1 = self.nw1
        self.w1_rest = w1[NW1:]
        rest = []
        for cc in range(4):
            rest.append([("lds", "ds_read_b64 %s, %s offset:%d" % (v(KVR + 2 * cc, 2), v(vKVA), 512 * (3 - cc)), "kv"),
                         ("vm", "buffer_load_dwordx2 %s, %s, %s, 0 offen offset:%d sc1" % (v(QR + 2 * cc, 2), v(vQA), srd(SRD_WS), 512 * cc), "q")])
        for cc in range(4):
            rest.append([("lds", "ds_read_b128 %s, %s offset:%d" % (v(AR + 4 * cc, 4), v(vABR), 1024 * cc), "ab"),
                         ("lds", "ds_read_b128 %s, %s offset:%d" % (v(BR + 4 * cc, 4), v(vABR), 8192 + 1024 * cc), "ab")])
        it = []
        for cc in range(4):
            for i in range(4):
                src = KVR + 2 * cc + (1 - (i >> 1))
                if i & 1:
                    it.append(("v", "v_lshlrev_b32 %s, 16, %s" % (v(KD + 4 * cc + i), v(src))))
                else:
                    it.append(("v", "v_and_b32 %s, 0xffff0000, %s" % (v(KD + 4 * cc + i), v(src))))
        it[0:0] = []
        rest.append([("waitlg", "kv"), it[0]])
        rest += [[x] for x in it[1:]]
        rest += [[("v", "v_mul_f32 %s, s%d, %s" % (v(KD + x), sD, v(KD + x)))] for x in range(16)]
        qf = []
        for cc in range(4):
            for i in range(4):
                src = QR + 2 * cc + (i >> 1)
                if i & 1:
                    qf.append(("v", "v_and_b32 %s, 0xffff0000, %s" % (v(QF + 4 * cc + i), v(src))))
                else:
                    qf.append(("v", "v_lshlrev_b32 %s, 16, %s" % (v(QF + 4 * cc + i), v(src))))
        rest.append([("waitvm", "q"), qf[0]])
        rest += [[x] for x in qf[1:]]
        ln = [("v", "v_fma_f32 %s, %s, %s, %s" % (v(LN + x), v(QF + x), v(AR + x), v(BR + x))) for x in range(16)]
        rest.append([("waitlg", "ab"), ln[0]])
        rest += [[x] for x in ln[1:]]
        slots = [(1, 28), (2, 28), (3, 36)]
        nslot = sum(n for _, n in slots)
        nrest = len(rest)
        k = 0
        gslot = 0
        first_w = 4
        for rnd_, n in slots:
            for slot in range(n):
                left = nslot - gslot
                want_w = k < NW1 and gslot >= first_w and (gslot - first_w) * NW1 >= k * (nslot - first_w - 6)
                entry = []
                if want_w:
                    if k == 0:
                        entry.append(("waitlg", "wr"))
                    entry.append(("fn", w1[k]))
                    k += 1
                if rest and (not want_w or len(rest) >= left):
                    entry += rest.pop(0)
                F[rnd_].append(entry)
                gslot += 1
        assert k == NW1 and not rest, (k, len(rest))

        def run(entry):
            for it in entry:
                if it[0] == "v":
                    e(it[1])
                elif it[0] == "lds":
                    self.lds(it[1], it[2])
                elif it[0] == "vm":
                    self.vmem(it[1], it[2])
                elif it[0] == "fn":
                    it[1]()
                elif it[0] == "waitvm":
                    self.wait_vm(it[1])
                elif it[0] == "waitlg":
                    self.wait_lg(it[1])

        xread(0)
        for rr in range(4):
            if rr == 1:
                self.wait_vm("w0")
                e("s_barrier")
            self.wait_lg("x%d" % rr)
            cnt = 0
            fl = list(F[rr])
            for q in range(8):
                for c in range(q, 8):
                    m = c - q
                    srcc = "0" if (rr == 0 and q == 0) else v(ACC + 4 * c, 4)
                    e("v_mfma_f32_16x16x32_bf16 %s, %s, %s, %s" % (v(ACC + 4 * c, 4), a(112 + 4 * (8 * rr + q), 4), v(XF[rr & 1] + 4 * m, 4), srcc))
                    cnt += 1
                    if rr < 3 and cnt <= 8:
                        m2 = cnt - 1
                        self.lds("ds_read_b128 %s, %s offset:%d" % (v(XF[(rr + 1) & 1] + 4 * m2, 4), v(vXB), 512 * (7 - m2) + 64 * (rr + 1)), "x%d" % (rr + 1))
                    elif fl:
                        run(fl.pop(0))
            for entry in fl:
                run(entry)
        self.stamp(6)
        e("s_nop 7")
        lab1, lab2 = self.newlabel("h1"), self.newlabel("hj")
        TMP = XF[0]
        e("s_cmp_eq_u32 s%d, 0" % sHALF)
        e("s_cbranch_scc0 %s" % lab1)
        for cc in range(4):
            e("ds_write_b128 %s, %s offset:%d" % (v(vEW), v(ACC + 16 + 4 * cc, 4), 1024 * cc))
        for x in range(16):
            e("v_add_f32 %s, %s, %s" % (v(Y + x), v(ACC + x), v(KD + x)))
        e("s_branch %s" % lab2)
        self.label(lab1)
        for cc in range(4):
            e("ds_write_b128 %s, %s offset:%d" % (v(vEW), v(ACC + 4 * cc, 4), 1024 * cc))
        for x in range(16):
            e("v_add_f32 %s, %s, %s" % (v(Y + x), v(ACC + 16 + x), v(KD + x)))
        self.label(lab2)
        e("s_waitcnt lgkmcnt(0)")
        self.lg = []
        e("s_barrier")
        for cc in range(4):
            self.lds("ds_read_b128 %s, %s offset:%d" % (v(TMP + 4 * cc, 4), v(vER), 1024 * cc), "ex%d" % cc)
        P = XF[0] + 16
        for cc in range(4):
            self.wait_lg("ex%d" % cc)
            for i in range(4):
                x = 4 * cc + i
                e("v_add_f32 %s, %s, %s" % (v(Y + x), v(Y + x), v(TMP + x)))
            for i in range(4):
                x = 4 * cc + i
                e("v_fma_f32 %s, %s, %s, %s" % (v(Y + x), v(LN + x), v(Y + x), v(QF + x)))
            e("v_cvt_pk_bf16_f32 %s, %s, %s" % (v(P + 2 * cc), v(Y + 4 * cc), v(Y + 4 * cc + 1)))
            e("v_cvt_pk_bf16_f32 %s, %s, %s" % (v(P + 2 * cc + 1), v(Y + 4 * cc + 2), v(Y + 4 * cc + 3)))
            if cc & 1:
                b = P + 2 * (cc - 1)
                e("s_nop 1")
                e("v_permlane16_swap_b32 %s, %s" % (v(b), v(b + 2)))
                e("v_permlane16_swap_b32 %s, %s" % (v(b + 1), v(b + 3)))
                self.vmem("buffer_store_dwordx4 %s, %s, %s, s%d offen sc1" % (v(b, 4), v(vHO), srd(SRD_WS), sT6 if cc == 1 else sT7), "hst")
        self.stamp(7)

    def helper(self):
        e = self.e
        self.label("L_helper")
        self.in_helper = True
        self.vm = []
        self.lg = []
        self.c("==== helper ====")
        sH = sRB
        e("s_sub_u32 s%d, s2, 224" % sH)
        vT, vU, vZ = 7, 4, 5
        e("v_mov_b32 %s, 0" % v(vZ))
        FR = 32
        vQ = 6
        e("s_lshl_b32 s%d, s%d, 6" % (sT0, sH))
        e("s_lshl_b32 s%d, s%d, 4" % (sT1, sWAVE))
        e("s_add_u32 s%d, s%d, s%d" % (sT0, sT0, sT1))
        e("v_and_b32 %s, 15, v1" % v(vT))
        e("v_add_u32 %s, s%d, %s" % (v(8), sT0, v(vT)))
        e("v_mul_u32_u24 %s, 896, %s" % (v(vQ), v(8)))
        e("v_lshrrev_b32 %s, 4, v1" % v(vU))
        e("v_lshl_add_u32 %s, %s, 4, %s" % (v(vQ), v(vU), v(vQ)))
        for s in range(14):
            self.vmem("buffer_load_dwordx4 %s, %s, %s, 0 offen offset:%d" % (v(FR + 4 * s, 4), v(vQ), srd(SRD_Q), 64 * s), "q")
        lab = self.newlabel("hz")
        e("s_cmp_eq_u32 s%d, 0" % sWAVE)
        e("s_cbranch_scc0 %s" % lab)
        e("s_lshl_b32 s%d, s%d, 8" % (sT0, sH))
        e("s_add_u32 s%d, s%d, %d" % (sT0, sT0, WS_ST2))
        e("v_lshl_add_u32 %s, v1, 2, s%d" % (v(vT), sT0))
        e("buffer_store_dword %s, %s, %s, 0 offen sc1" % (v(vZ), v(vT), srd(SRD_WS)))
        self.label(lab)
        lab = self.newlabel("hc")
        e("s_cmp_eq_u32 s%d, 0" % sH)
        e("s_cbranch_scc0 %s" % lab)
        e("v_lshlrev_b32 %s, 8, v0" % v(vT))
        e("v_add_u32 %s, %d, %s" % (v(vT), WS_CNT, v(vT)))
        e("v_cmp_gt_u32 vcc, %d, v0" % N_CNT)
        e("s_and_saveexec_b64 s[%d:%d], vcc" % (sEX, sEX + 1))
        lab2 = self.newlabel("hc2")
        e("s_cbranch_execz %s" % lab2)
        e("buffer_store_dword %s, %s, %s, 0 offen sc1" % (v(vZ), v(vT), srd(SRD_WS)))
        self.label(lab2)
        e("s_mov_b64 exec, s[%d:%d]" % (sEX, sEX + 1))
        e("s_waitcnt vmcnt(0)")
        e("s_barrier")
        e("v_mov_b32 %s, 1" % v(vU))
        lab3 = self.newlabel("hc3")
        e("s_cmp_eq_u32 s%d, 0" % sWAVE)
        e("s_cbranch_scc0 %s" % lab3)
        e("s_mov_b64 exec, 1")
        e("buffer_store_dword %s, %s, %s, 0 offen offset:%d sc1" % (v(vU), v(vZ), srd(SRD_DBG), self.go_off))
        e("s_mov_b64 exec, -1")
        self.label(lab3)
        self.label(lab)
        ONES = 16
        for i in range(4):
            e("v_mov_b32 %s, 0x3f803f80" % v(ONES + i))
        self.wait_vm("q")
        GR, SM = 20, 24
        self.stats_mfma(lambda s: FR + 4 * s, ONES, GR, SM, None)
        A_, B_ = 28, 29
        self.stats_finish(GR, SM, A_, B_, None)
        e("v_lshlrev_b32 %s, 2, %s" % (v(vT), v(8)))
        e("s_mov_b32 s%d, %d" % (sT4, WS_ST1))
        e("s_mov_b32 s%d, %d" % (sT5, WS_ST1 + 8192))
        e("s_mov_b32 exec_lo, 0x00f0000f")
        e("s_mov_b32 exec_hi, 0xf0000f00")
        self.vmem("buffer_store_dword %s, %s, %s, s%d offen sc1" % (v(A_), v(vT), srd(SRD_WS), sT4), "st")
        self.vmem("buffer_store_dword %s, %s, %s, s%d offen sc1" % (v(B_), v(vT), srd(SRD_WS), sT5), "st")
        e("s_mov_b64 exec, -1")
        vGO = 30
        loop, done = self.newlabel("go"), self.newlabel("god")
        e("s_mov_b32 s%d, %d" % (sSPIN, SPIN_LIMIT))
        self.label(loop)
        e("buffer_load_dword %s, %s, %s, 0 offen offset:%d sc1" % (v(vGO), v(vZ), srd(SRD_DBG), self.go_off))
        e("s_waitcnt vmcnt(0)")
        self.vm = []
        e("v_cmp_eq_u32 vcc, 0, %s" % v(vGO))
        e("s_nop 4")
        e("s_cbranch_vccz %s" % done)
        e("s_sub_u32 s%d, s%d, 1" % (sSPIN, sSPIN))
        e("s_cmp_lg_u32 s%d, 0" % sSPIN)
        e("s_cbranch_scc1 %s" % loop)
        self.label(done)
        e("s_barrier")
        e("v_lshlrev_b32 %s, 8, v1" % v(vT))
        e("v_add_u32 %s, %d, %s" % (v(vT), WS_CNT + 256 * C_SL1, v(vT)))
        e("v_mov_b32 %s, 1" % v(vU))
        self.signal(vT, vU, 8)
        self.stamp(3)
        if self.stop in ("a0", "a1"):
            self.wait_all()
            e("s_endpgm")
            return
        e("v_and_b32 %s, 15, v1" % v(vT))
        e("v_lshlrev_b32 %s, 8, %s" % (v(vT), v(vT)))
        e("s_and_b32 s%d, s2, 7" % sT0)
        e("s_lshl_b32 s%d, s%d, 12" % (sT0, sT0))
        e("s_add_u32 s%d, s%d, %d" % (sT0, sT0, WS_CNT + 256 * C_S2))
        e("v_add_u32 %s, s%d, %s" % (v(vT), sT0, v(vT)))
        e("v_mov_b32 %s, 14" % v(vU))
        self.poll(vT, vU, vGO)
        self.stamp(8)
        e("s_lshr_b32 s%d, s%d, 1" % (sT0, sH))
        e("s_lshl_b32 s%d, s%d, 2" % (sT0, sT0))
        e("s_and_b32 s%d, s%d, 1" % (sT1, sH))
        e("s_add_u32 s%d, s%d, s%d" % (sT0, sT0, sT1))
        e("s_mul_i32 s%d, s%d, 28672" % (sT2, sT0))
        e("s_add_u32 s%d, s%d, %d" % (sT2, sT2, WS_HB))
        vL16 = 9
        e("v_lshlrev_b32 %s, 4, v1" % v(vL16))
        e("s_mul_i32 s%d, s%d, 7168" % (sT3, sWAVE))
        for blk in range(2):
            e("s_add_u32 s%d, s%d, s%d" % (sT4, sT2, sT3))
            if blk:
                e("s_add_u32 s%d, s%d, %d" % (sT4, sT4, 2 * 28672))
            e("s_add_u32 m0, s%d, %d" % (sT3, 28672 * blk))
            e("s_nop 0")
            for i in range(4):
                self.vmem("buffer_load_dwordx4 %s, %s, s%d offen offset:%d sc1 lds" % (v(vL16), srd(SRD_WS), sT4, 1024 * i), "hb%d" % blk)
            e("s_add_u32 s%d, s%d, 4096" % (sT4, sT4))
            e("s_add_u32 m0, s%d, %d" % (sT3, 28672 * blk + 4096))
            e("s_nop 0")
            for i in range(3):
                self.vmem("buffer_load_dwordx4 %s, %s, s%d offen offset:%d sc1 lds" % (v(vL16), srd(SRD_WS), sT4, 1024 * i), "hb%d" % blk)
        vA, vPX = 10, 14
        e("v_lshrrev_b32 %s, 4, v1" % v(vT))
        e("v_bfe_u32 %s, v1, 2, 2" % v(vU))
        e("v_lshl_add_u32 %s, %s, 3, %s" % (v(vT), v(vT), v(vU)))
        e("v_lshlrev_b32 %s, 6, %s" % (v(vT), v(vT)))
        e("v_and_b32 %s, 3, v1" % v(vU))
        e("v_lshl_add_u32 %s, %s, 3, %s" % (v(vA), v(vU), v(vT)))
        e("s_lshr_b32 s%d, s%d, 1" % (sT4, sWAVE))
        e("s_mul_i32 s%d, s%d, %d" % (sT4, sT4, 7 * 2048))
        e("s_and_b32 s%d, s%d, 1" % (sT5, sWAVE))
        e("s_lshl_b32 s%d, s%d, 5" % (sT5, sT5))
        e("s_add_u32 s%d, s%d, s%d" % (sT4, sT4, sT5))
        e("v_add_u32 %s, s%d, %s" % (v(vA), sT4, v(vA)))
        e("s_lshl_b32 s%d, s%d, 9" % (sT4, sWAVE))
        e("s_add_u32 s%d, s%d, 57344" % (sT4, sT4))
        e("v_lshl_add_u32 %s, v1, 3, s%d" % (v(vPX), sT4))
        vRW = 15
        e("s_lshl_b32 s%d, s%d, 5" % (sT4, sT0))
        e("s_and_b32 s%d, s%d, 1" % (sT5, sWAVE))
        e("s_lshl_b32 s%d, s%d, 4" % (sT5, sT5))
        e("s_add_u32 s%d, s%d, s%d" % (sT4, sT4, sT5))
        e("s_lshl_b32 s%d, s%d, 2" % (sT4, sT4))
        e("s_add_u32 s%d, s%d, %d" % (sT4, sT4, WS_ST2))
        e("v_and_b32 %s, 15, v1" % v(vT))
        e("v_lshl_add_u32 %s, %s, 2, s%d" % (v(vRW), v(vT), sT4))
        PK = 28
        for blk in range(2):
            self.wait_vm("hb%d" % blk)
            e("s_barrier")
            for s_ in range(7):
                for ee in range(2):
                    self.lds("ds_read_b64_tr_b16 %s, %s offset:%d" % (v(FR + 4 * s_ + 2 * ee, 2), v(vA), 28672 * blk + 2048 * s_ + 256 * ee), "f%d" % s_)
            self.stats_mfma(lambda s_: FR + 4 * s_, ONES, GR, SM, lambda s_: self.wait_lg("f%d" % s_), n=7)
            self.stats_diag(GR, 11)
            e("v_mov_b32 %s, %s" % (v(12), v(SM)))
            e("v_mov_b32 v60, v11")
            e("v_mov_b32 v61, v12")
            self.lds("ds_write_b64 %s, v[60:61] offset:%d" % (v(vPX), 2048 * blk), "px")
            self.wait_lg0()
            e("s_barrier")
            e("v_xor_b32 %s, 1024, %s" % (v(13), v(vPX)))
            self.lds("ds_read_b64 v[62:63], %s offset:%d" % (v(13), 2048 * blk), "px")
            self.wait_lg0()
            e("v_add_f32 v11, v60, v62")
            e("v_add_f32 %s, v61, v63" % v(SM))
            self.stats_finish(None, SM, None, None, PK)
            lab = self.newlabel("hs")
            e("s_cmp_lt_u32 s%d, 2" % sWAVE)
            e("s_cbranch_scc0 %s" % lab)
            e("s_mov_b32 exec_lo, 0x00f0000f")
            e("s_mov_b32 exec_hi, 0xf0000f00")
            e("buffer_store_dword %s, %s, %s, 0 offen offset:%d sc1" % (v(PK), v(vRW), srd(SRD_WS), 256 * blk))
            e("s_mov_b64 exec, -1")
            self.label(lab)
        self.stamp(9)
        self.wait_all()
        e("s_endpgm")

    def stats_mfma(self, frag, ONES, GR, SM, pre, n=14):
        e = self.e
        for s in range(n):
            if pre:
                pre(s)
            f = frag(s)
            e("v_mfma_f32_16x16x32_bf16 %s, %s, %s, %s" % (v(GR, 4), v(f, 4), v(f, 4), "0" if s == 0 else v(GR, 4)))
            e("v_mfma_f32_16x16x32_bf16 %s, %s, %s, %s" % (v(SM, 4), v(ONES, 4), v(f, 4), "0" if s == 0 else v(SM, 4)))
        e("s_nop 7")

    def stats_diag(self, GR, t0):
        e = self.e
        e("s_mov_b32 s%d, 0x22222222" % sT6)
        e("s_mov_b32 s%d, 0x22222222" % sT7)
        e("v_cndmask_b32 %s, %s, %s, s[%d:%d]" % (v(t0), v(GR), v(GR + 1), sT6, sT7))
        e("s_mov_b32 s%d, 0x44444444" % sT6)
        e("s_mov_b32 s%d, 0x44444444" % sT7)
        e("v_cndmask_b32 %s, %s, %s, s[%d:%d]" % (v(t0), v(t0), v(GR + 2), sT6, sT7))
        e("s_mov_b32 s%d, 0x88888888" % sT6)
        e("s_mov_b32 s%d, 0x88888888" % sT7)
        e("v_cndmask_b32 %s, %s, %s, s[%d:%d]" % (v(t0), v(t0), v(GR + 3), sT6, sT7))

    def stats_finish(self, GR, SM, A_, B_, PK):
        e = self.e
        t0, t1, t2 = 11, 12, 13
        if GR is not None:
            self.stats_diag(GR, t0)
        e("s_mov_b32 s%d, 0x3b124925" % sT6)
        e("v_mul_f32 %s, s%d, %s" % (v(t1), sT6, v(SM)))
        e("v_mul_f32 %s, s%d, %s" % (v(t0), sT6, v(t0)))
        e("v_fma_f32 %s, -%s, %s, %s" % (v(t0), v(t1), v(t1), v(t0)))
        e("v_max_f32 %s, 0, %s" % (v(t0), v(t0)))
        e("v_cvt_pk_bf16_f32 %s, %s, %s" % (v(t0), v(t0), v(t1)))
        e("v_and_b32 %s, 0xffff0000, %s" % (v(t1), v(t0)))
        e("v_lshlrev_b32 %s, 16, %s" % (v(t0), v(t0)))
        e("v_add_f32 %s, 0x3727c5ac, %s" % (v(t0), v(t0)))
        e("v_cvt_pk_bf16_f32 %s, %s, %s" % (v(t0), v(t0), v(t0)))
        e("v_lshlrev_b32 %s, 16, %s" % (v(t0), v(t0)))
        e("v_sqrt_f32 %s, %s" % (v(t0), v(t0)))
        e("s_nop 0")
        e("v_cvt_pk_bf16_f32 %s, %s, %s" % (v(t0), v(t0), v(t0)))
        if PK is not None:
            e("v_lshrrev_b32 %s, 16, %s" % (v(t2), v(t1)))
            e("v_and_b32 %s, 0xffff0000, %s" % (v(t0), v(t0)))
            e("v_or_b32 %s, %s, %s" % (v(PK), v(t0), v(t2)))
        else:
            e("v_lshlrev_b32 %s, 16, %s" % (v(t0), v(t0)))
            e("v_rcp_f32 %s, %s" % (v(A_), v(t0)))
            e("s_nop 0")
            e("v_mul_f32 %s, -%s, %s" % (v(B_), v(t1), v(A_)))

    def decode_bc(self):
        e = self.e
        e("s_and_b32 s%d, s2, 7" % sT0)
        e("s_lshr_b32 s%d, s2, 3" % sT1)
        e("s_mul_i32 s%d, s%d, 37" % (sT2, sT1))
        e("s_lshr_b32 s%d, s%d, 8" % (sT2, sT2))
        e("s_mul_i32 s%d, s%d, 7" % (sT3, sT2))
        e("s_sub_u32 s%d, s%d, s%d" % (sT3, sT1, sT3))
        e("s_lshr_b32 s%d, s%d, 1" % (sT4, sT0))
        e("s_lshl_b32 s%d, s%d, 2" % (sT4, sT4))
        e("s_add_u32 s%d, s%d, s%d" % (sBI, sT4, sT2))
        e("s_and_b32 s%d, s%d, 1" % (sT4, sT0))
        e("s_mul_i32 s%d, s%d, 7" % (sT4, sT4))
        e("s_add_u32 s%d, s%d, s%d" % (sBJ, sT4, sT3))
        e("s_lshl_b32 s%d, s%d, 2" % (sT4, sT0))
        e("s_add_u32 s%d, s%d, s%d" % (sT4, sT4, sT2))
        e("s_lshr_b32 s%d, s%d, 1" % (sCI, sT4))
        e("s_and_b32 s%d, s%d, 1" % (sCS, sT4))
        e("s_mov_b32 s%d, s%d" % (sCJ, sT3))

    def main_path(self):
        e = self.e
        self.decode_bc()
        self.stamp(0)
        self.phase_a0()
        self.w_stage_setup()
        self.w_stage_read_setup(vWRD, vWRD + 1)
        self.pre_signal()
        vGO, vZERO = 23, 58
        loop, done = self.newlabel("go"), self.newlabel("god")
        e("s_mov_b32 s%d, %d" % (sSPIN, SPIN_LIMIT))
        self.label(loop)
        e("v_cmp_eq_u32 vcc, 0, %s" % v(vGO))
        e("s_nop 4")
        e("s_cbranch_vccz %s" % done)
        e("buffer_load_dword %s, %s, %s, 0 offen offset:%d sc1" % (v(vGO), v(vZERO), srd(SRD_DBG), self.go_off))
        e("s_waitcnt vmcnt(0)")
        e("s_sub_u32 s%d, s%d, 1" % (sSPIN, sSPIN))
        e("s_cmp_lg_u32 s%d, 0" % sSPIN)
        e("s_cbranch_scc1 %s" % loop)
        self.label(done)
        e("s_barrier")
        vA, vOne = 5, 6
        e("s_lshl_b32 s%d, s%d, 8" % (sT0, sG0))
        e("s_add_u32 s%d, s%d, %d" % (sT0, sT0, WS_CNT + 256 * C_S1))
        e("v_mov_b32 %s, s%d" % (v(vA), sT0))
        e("v_mov_b32 %s, 1" % v(vOne))
        self.signal(vA, vOne, 1)
        self.stamp(3)
        if self.endif_stop("a0"):
            return False
        self.phase_a1()
        ONES, CA = 108, 32
        for i in range(4):
            e("v_mov_b32 %s, 0x3f803f80" % v(ONES + i))
        e("s_nop 1")
        for s_ in range(14):
            for ft in range(2):
                e("v_mfma_f32_32x32x16_bf16 %s, %s, %s, %s" % (v(CA + 16 * ft, 16), v(ONES, 4), a(8 * s_ + 4 * ft, 4), "0" if s_ == 0 else v(CA + 16 * ft, 16)))
        self.wait_vm("hst")
        e("s_barrier")
        vA, vOne = 5, 6
        e("s_and_b32 s%d, s2, 15" % sT0)
        e("s_lshl_b32 s%d, s%d, 8" % (sT0, sT0))
        e("s_add_u32 s%d, s%d, %d" % (sT0, sT0, WS_CNT + 256 * C_S2))
        e("v_lshlrev_b32 %s, 12, v1" % v(vA))
        e("v_add_u32 %s, s%d, %s" % (v(vA), sT0, v(vA)))
        e("v_mov_b32 %s, 1" % v(vOne))
        self.signal(vA, vOne, 8)
        self.stamp(8)
        for it in self.w1_rest:
            it()
        if self.endif_stop("a1"):
            return False
        return True

    def build(self):
        self.prologue()
        cont = self.main_path()
        if cont:
            from gen_bc import phase_b, phase_c
            phase_b(self)
            if not self.endif_stop("b"):
                phase_c(self)
                self.wait_all()
                if self.spin_us:
                    self.e("L_diag:")
                    self.e("s_memrealtime s[96:97]")
                    self.e("s_waitcnt lgkmcnt(0)")
                    self.e("s_sub_u32 s96, s96, s100")
                    self.e("s_cmp_lt_u32 s96, %d" % (self.spin_us * 100))
                    self.e("s_cbranch_scc1 L_diag")
                self.e("s_endpgm")
        self.helper()
        self.label("L_end")
        self.e("s_endpgm")
        self.label("L_codeend")
        body = self.text()
        hdr = HEADER
        hdr += "; @launch grid=(256,1,1) block=(256,1,1) lds=%d\n" % LDS_BYTES
        hdr += '.amdgcn_target "amdgcn-amd-amdhsa--gfx950"\n.text\n.globl %s\n.p2align 8\n.type %s,@function\n%s:\n' % (NAME, NAME, NAME)
        tail = """
.section .rodata,"a"
.p2align 6
.amdhsa_kernel %s
  .amdhsa_next_free_vgpr 512
  .amdhsa_next_free_sgpr 102
  .amdhsa_accum_offset 256
  .amdhsa_group_segment_fixed_size 0
  .amdhsa_kernarg_size 104
  .amdhsa_user_sgpr_count 2
  .amdhsa_user_sgpr_kernarg_segment_ptr 1
  .amdhsa_system_sgpr_workgroup_id_x 1
.end_amdhsa_kernel
""" % NAME
        return hdr + body + tail, body


HEADER = """; Fused preLN -> H3 (shift conv, k*v, long causal conv, gate) -> preLN -> GLU FFN, one persistent launch.
"""

if __name__ == "__main__":
    import argparse
    ap = argparse.ArgumentParser()
    ap.add_argument("--stop", default=None)
    ap.add_argument("--stamps", action="store_true")
    ap.add_argument("--dbgst", action="store_true")
    ap.add_argument("--spin", type=int, default=0)
    ap.add_argument("--exp", default="")
    ap.add_argument("--no-tlbwarm", action="store_true")
    ap.add_argument("--no-prefetch", action="store_true")
    ap.add_argument("-o", default="out.s")
    args = ap.parse_args()
    g = Gen(stop=args.stop, stamps=args.stamps, tlbwarm=not args.no_tlbwarm, prefetch=not args.no_prefetch, dbgst=args.dbgst)
    g.spin_us = args.spin
    g.exp = set(args.exp.split(',')) if args.exp else set()
    txt, body = g.build()
    open(args.o, "w").write(txt)
    check_hazards(body)
    print("wrote", args.o, len(txt), "bytes")
```

```python
import re


class Asm:
    def __init__(self):
        self.L = []
        self.vm = []
        self.lg = []
        self.nlab = 0

    def e(self, line):
        for ln in line.strip("\n").split("\n"):
            ln = ln.strip()
            if ln:
                self.L.append("  " + ln)

    def c(self, text):
        self.L.append("  ; " + text)

    def label(self, name):
        self.L.append(name + ":")

    def newlabel(self, stem):
        self.nlab += 1
        return "L_%s_%d" % (stem, self.nlab)

    def vmem(self, line, tag):
        self.e(line)
        self.vm.append(tag)

    def lds(self, line, tag):
        self.e(line)
        self.lg.append(tag)

    def _need(self, q, tags):
        if isinstance(tags, str):
            tags = [tags]
        idx = -1
        for i, t in enumerate(q):
            if t in tags:
                idx = i
        return idx

    def wait_vm(self, tags, emit=True, dual=False):
        idx = self._need(self.vm, tags)
        if idx < 0:
            return None
        young = self.vm[idx + 1:]
        n = len([t for t in young if not t.endswith("@0")])
        n0 = len(young)
        self.vm = young
        s = "s_waitcnt vmcnt(%d)" % min(n, 63)
        if emit:
            if dual and n0 != n:
                lab = self.newlabel("dw")
                self.e("s_cmp_eq_u32 s3, 0")
                self.e("s_waitcnt vmcnt(%d)" % min(n0, 63))
                self.e("s_cbranch_scc1 %s" % lab)
                self.e(s)
                self.label(lab)
            else:
                self.e(s)
        return s

    def wait_lg(self, tags, emit=True):
        idx = self._need(self.lg, tags)
        if idx < 0:
            return None
        n = len(self.lg) - 1 - idx
        self.lg = self.lg[idx + 1:]
        s = "s_waitcnt lgkmcnt(%d)" % min(n, 15)
        if emit:
            self.e(s)
        return s

    def wait_all(self):
        self.e("s_waitcnt vmcnt(0) lgkmcnt(0)")
        self.vm = []
        self.lg = []

    def wait_vm0(self):
        self.e("s_waitcnt vmcnt(0)")
        self.vm = []

    def wait_lg0(self):
        self.e("s_waitcnt lgkmcnt(0)")
        self.lg = []

    def text(self):
        return "\n".join(self.L) + "\n"


REG = re.compile(r"\b([vas])(\d+)\b|\b([vas])\[(\d+):(\d+)\]")


def regs_of(op):
    out = []
    for m in REG.finditer(op):
        if m.group(1):
            out.append((m.group(1), int(m.group(2))))
        else:
            for r in range(int(m.group(4)), int(m.group(5)) + 1):
                out.append((m.group(3), r))
    return out


TRANS = ("v_exp_f32", "v_log_f32", "v_rcp_f32", "v_rsq_f32", "v_sqrt_f32", "v_sin_f32", "v_cos_f32")


def parse(line):
    line = line.split(";")[0].strip()
    if not line or line.endswith(":") or line.startswith("."):
        return None
    parts = line.split(None, 1)
    op = parts[0]
    ops = [x.strip() for x in parts[1].split(",")] if len(parts) > 1 else []
    d = dict(op=op, ops=ops, w=[], r=[], line=line)
    allr = [regs_of(o) for o in ops]
    if op.startswith("v_mfma"):
        d["cls"] = "mfma"
        d["w"] = allr[0]
        d["ra"] = allr[1]
        d["rb"] = allr[2]
        d["rc"] = allr[3] if len(allr) > 3 else []
        d["r"] = d["ra"] + d["rb"] + d["rc"]
        d["passes"] = 8 if "32x32" in op else 4
    elif op.startswith("v_cmp"):
        d["cls"] = "valu"
        d["w"] = allr[0]
        d["wvcc"] = ops[0] == "vcc"
        d["r"] = sum(allr[1:], [])
    elif op.startswith("v_permlane"):
        d["cls"] = "valu"
        d["perm"] = True
        d["w"] = allr[0] + allr[1]
        d["r"] = allr[0] + allr[1]
    elif op.startswith("v_readfirstlane") or op.startswith("v_readlane"):
        d["cls"] = "valu"
        d["rfl"] = True
        d["w"] = allr[0]
        d["r"] = sum(allr[1:], [])
    elif op.startswith("v_"):
        d["cls"] = "valu"
        d["w"] = allr[0]
        d["r"] = sum(allr[1:], [])
        if op.startswith(("v_fmac", "v_dot2c", "v_mac")) or "d16" in op:
            d["r"] = d["r"] + allr[0]
        if op.startswith("v_cndmask") and (len(ops) < 4 or ops[3].startswith("vcc")):
            d["rvcc"] = True
        if op.startswith(("v_add_co", "v_addc_co", "v_sub_co")):
            d["wvcc"] = True
        d["dpp"] = "dpp" in op or "row_" in line or "quad_perm" in line
    elif op.startswith("ds_"):
        d["cls"] = "ds"
        if op.startswith(("ds_read", "ds_bpermute", "ds_permute", "ds_swizzle")):
            d["w"] = allr[0]
            d["r"] = sum(allr[1:], [])
        else:
            d["r"] = sum(allr, [])
    elif op.startswith(("buffer_", "global_")):
        d["cls"] = "vmem"
        lds = " lds" in (" " + line)
        if op.startswith(("buffer_load", "global_load")) and not lds and "load_lds" not in op:
            d["w"] = allr[0]
            d["r"] = sum(allr[1:], [])
        else:
            d["r"] = sum(allr, [])
        d["ldsdma"] = lds or "load_lds" in op
        d["store"] = "store" in op or "atomic" in op
        d["wide"] = "x3" in op or "x4" in op
        if d["store"]:
            d["data"] = allr[0] if op.startswith("buffer_") else allr[1]
    elif op.startswith("s_"):
        d["cls"] = "salu"
        if op in ("s_nop",):
            d["nop"] = int(ops[0], 0) + 1
        if op.startswith(("s_cmp", "s_waitcnt", "s_barrier", "s_branch", "s_cbranch", "s_sleep", "s_nop", "s_endpgm", "s_setprio")):
            d["r"] = sum(allr, [])
        else:
            d["w"] = allr[0] if allr else []
            d["r"] = sum(allr[1:], [])
            if ops and ops[0] == "m0":
                d["wm0"] = True
            if ops and ops[0] == "exec":
                d["wexec"] = True
    else:
        d["cls"] = "other"
    return d


def check_hazards(text, verbose=True):
    ins = []
    for n, line in enumerate(text.split("\n")):
        d = parse(line)
        if d:
            d["n"] = n + 1
            ins.append(d)
    probs = []

    def states(i, j):
        s = 0
        for k in range(i + 1, j):
            s += ins[k].get("nop", 1)
        return s

    W = 24
    for j, cns in enumerate(ins):
        for i in range(max(0, j - W), j):
            p = ins[i]
            st = None
            need = 0
            why = ""
            pw = set(p["w"])
            cr = set(cns["r"])
            cw = set(cns["w"])
            if p["cls"] == "valu":
                vw = {x for x in pw if x[0] in "va"}
                sw = {x for x in pw if x[0] == "s"}
                if cns["cls"] == "mfma" and vw & cr:
                    need, why = 2, "VALU write -> MFMA read"
                elif cns.get("perm") and vw & cr:
                    need, why = 2, "VALU write -> permlane"
                elif cns.get("rfl") and vw & cr:
                    need, why = 1, "VALU write -> readlane"
                elif cns.get("dpp") and vw & cr:
                    need, why = 2, "VALU write -> DPP"
                if p["op"].startswith(TRANS) and cns["cls"] == "valu" and not cns["op"].startswith(TRANS) and vw & cr:
                    need, why = max(need, 1), why or "trans -> VALU"
                if p["op"].startswith(TRANS) and cns["cls"] == "valu" and cns["op"].startswith(TRANS) and vw & cr:
                    need, why = max(need, 1), why or "trans -> trans (padded too)"
                if sw and cns["cls"] == "vmem" and sw & cr:
                    need, why = 5, "VALU writes SGPR -> VMEM"
                if sw and cns["cls"] == "valu" and sw & cr:
                    need, why = max(need, 2), "VALU writes SGPR -> VALU const"
                if p.get("wvcc") and (cns.get("rvcc") or ("vcc" in cns["ops"][1:] and cns["cls"] == "valu")):
                    need, why = max(need, 2), "VALU writes VCC -> VALU reads vcc"
                if sw and cns["cls"] == "salu" and sw & cr:
                    need, why = max(need, 3), "VALU writes SGPR -> SALU read (padded)"
                if p["op"].startswith("v_cmpx") and cns["cls"] in ("valu",):
                    pass
            if p["cls"] == "mfma":
                d = set(p["w"])
                ps = p["passes"]
                if cns["cls"] == "mfma":
                    if d & (set(cns["ra"]) | set(cns["rb"])):
                        need, why = (8 if ps == 4 else 12), "MFMA D -> MFMA A/B"
                    elif d & set(cns["rc"]):
                        if not (set(cns["rc"]) == d and cns["passes"] == ps):
                            need, why = (6 if ps == 4 else 10), "MFMA D -> MFMA C overlap"
                    elif d & cw and not cns["rc"]:
                        need, why = 0, ""
                elif cns["cls"] in ("valu", "ds", "vmem"):
                    if d & (cr | cw):
                        need, why = (8 if ps == 4 else 12), "MFMA D -> VALU/mem access"
                if cns["cls"] == "valu" and set(p["rc"]) & cw and not (d & cw):
                    need, why = max(need, 3 if ps == 4 else 7), why or "MFMA C read -> VALU write"
            if p["cls"] == "salu" and p.get("wm0") and cns.get("ldsdma"):
                later = any(ins[k].get("wm0") for k in range(i + 1, j))
                if not later:
                    need, why = 1, "m0 write -> LDS DMA"
            if p["cls"] == "vmem" and p.get("store") and p.get("wide") and cns["cls"] == "valu" and set(p["data"]) & cw:
                need, why = 2, "wide store data WAR"
            if p["cls"] == "salu" and p.get("wexec") and False:
                pass
            if need:
                st = states(i, j)
                if st < need:
                    probs.append("line %d -> %d: %s needs %d has %d\n    %s\n    %s" % (p["n"], cns["n"], why, need, st, p["line"], cns["line"]))
    if verbose:
        for x in probs[:40]:
            print("HAZARD", x)
        print("hazard check: %d problem(s) in %d instructions" % (len(probs), len(ins)))
    return probs
```

```python
from collections import deque
from gen import *
import gen as G_

vHTR0, vHTR2, vL16, vHST, vSTA, vT = 2, 3, 4, 5, 6, 7
vWDB = 8
vS, vC1 = 14, 15
vSTB = [13, 12, 123, 124]
FOLD = 16
CS = 20
vU, vW = 28, 29
ACC = [32, 64]
HF = 96
PK = 108
vWDO = 116
vCS0 = 120
L_RES = 151552
L_RESP = 28672
PART_STRIDE = 4352
sF = 52
sWD0, sWD1 = 53, 54
sHS = 55
NREG_UNITS = 10
GAMMA = 14
HST_STEP = [24, 24, 18, 0]
C_SIG2 = 5
C_BAR = 4


def wdf(ks, ct):
    i = 4 * ks + ct
    if i < 8:
        return ("a", 224 + 4 * i)
    if i < 32:
        return ("v", 160 + 4 * (i - 8))
    if i < 40:
        return ("v", 128 + 4 * (i - 32))
    return ("a", 4 * (i - 40))


def rname(reg, n, off=0):
    k, b = reg
    return (a if k == "a" else v)(b + off, n)


class Q:
    def __init__(self, g):
        self.g = g
        self.o = deque()

    def op(self, line, cost=4, nb=0):
        self.o.append((cost, lambda: self.g.e(line), nb))

    def fn(self, fn, cost=4, nb=0):
        self.o.append((cost, fn, nb))

    def gap(self, budget, step):
        fresh = True
        while self.o and self.o[0][2] <= step and (self.o[0][0] <= budget or fresh):
            c, f, _ = self.o.popleft()
            f()
            budget -= c
            fresh = False

    def flush(self):
        while self.o:
            self.o.popleft()[1]()


def wd_dma(g, unit, n):
    e = g.e
    if n == 0:
        e("s_mul_i32 s%d, s%d, 401408" % (sWD0, sWAVE))
        e("s_lshl_b32 s%d, s%d, 7" % (sWD1, sCJ))
        e("s_add_u32 s%d, s%d, s%d" % (sWD0, sWD0, sWD1))
        e("s_mul_i32 s%d, s%d, 28" % (sWD1, sOFF + unit))
        e("s_add_u32 s%d, s%d, s%d" % (sWD0, sWD0, sWD1))
        e("s_lshl_b32 s%d, s%d, 14" % (sWD1, sWAVE))
        e("s_add_u32 s%d, s%d, %d" % (sWD1, sWD1, L_WD + 4096 * (unit % 4)))
        e("s_mov_b32 m0, s%d" % sWD1)
        e("s_nop 0")
    g.vmem("buffer_load_dwordx4 %s, %s, s%d offen offset:%d lds" % (v(vWDO + n), srd(SRD_WD), sWD0, 1024 * n), "wd%d" % unit)


def wd_read(g, unit, i):
    ct, ee = i >> 1, i & 1
    if i == 0:
        g.wait_vm("wd%d" % unit)
    g.lds("ds_read_b64_tr_b16 %s, %s offset:%d" % (rname(wdf(unit, ct), 2, 2 * ee), v(vWDB + ct), 4096 * (unit % 4) + 1024 * ee), "wr%d" % unit)


def hb_dma(g, blk, n):
    e = g.e
    if n in (0, 4):
        e("s_lshl_b32 s%d, s%d, 2" % (sT4, sBI))
        e("s_add_u32 s%d, s%d, %d" % (sT4, sT4, blk))
        e("s_mul_i32 s%d, s%d, 28672" % (sT4, sT4))
        e("s_mul_i32 s%d, s%d, 7168" % (sT5, sWAVE))
        e("s_add_u32 s%d, s%d, s%d" % (sT4, sT4, sT5))
        e("s_add_u32 s%d, s%d, %d" % (sT4, sT4, WS_HB + (4096 if n == 4 else 0)))
        e("s_add_u32 m0, s%d, %d" % (sT5, L_HB + 28672 * (blk % 3) + (4096 if n == 4 else 0)))
        e("s_nop 0")
    g.vmem("buffer_load_dwordx4 %s, %s, s%d offen offset:%d sc1 lds" % (v(vL16), srd(SRD_WS), sT4, 1024 * (n & 3)), "hb%d" % blk)


def res_dma(g, n):
    e = g.e
    if n == 0:
        e("v_lshrrev_b32 %s, 1, v1" % v(vU))
        e("v_lshlrev_b32 %s, 6, %s" % (v(vU), v(vU)))
        e("v_and_b32 %s, 1, v1" % v(vW))
        e("v_lshl_add_u32 %s, %s, 4, %s" % (v(vU), v(vW), v(vU)))
        e("s_lshl_b32 s%d, s%d, 2" % (sT0, sCI))
        e("s_add_u32 s%d, s%d, s%d" % (sT0, sT0, sWAVE))
        e("s_mul_i32 s%d, s%d, 28672" % (sT0, sT0))
        e("s_lshl_b32 s%d, s%d, 12" % (sT1, sCJ))
        e("s_add_u32 s%d, s%d, s%d" % (sT0, sT0, sT1))
        e("s_lshl_b32 s%d, s%d, 5" % (sT1, sCS))
        e("s_add_u32 s%d, s%d, s%d" % (sT0, sT0, sT1))
        e("s_add_u32 s%d, s%d, %d" % (sT0, sT0, WS_HB))
        e("s_lshl_b32 s%d, s%d, 11" % (sT1, sWAVE))
        e("s_add_u32 m0, s%d, %d" % (sT1, L_RES))
    else:
        e("s_add_u32 s%d, s%d, 2048" % (sT0, sT0))
        e("s_add_u32 m0, s%d, %d" % (sT1, L_RES + 1024))
    e("s_nop 0")
    g.vmem("buffer_load_dwordx4 %s, %s, s%d offen sc1 lds" % (v(vU), srd(SRD_WS), sT0), "res")


def flag_load(g, u):
    e = g.e
    e("s_lshl_b32 s%d, s%d, 2" % (sT2, sCI))
    e("s_add_u32 s%d, s%d, %d" % (sT2, sT2, C_S3 + u))
    e("s_lshl_b32 s%d, s%d, 8" % (sT2, sT2))
    e("s_add_u32 s%d, s%d, %d" % (sT2, sT2, WS_CNT))
    e("s_load_dword s%d, s[%d:%d], s%d glc" % (sF, SRD_WS, SRD_WS + 1, sT2))


def flag_check(g, u):
    e = g.e
    loop, ok = g.newlabel("fl"), g.newlabel("fo")
    e("s_waitcnt lgkmcnt(0)")
    e("s_cmp_ge_u32 s%d, 14" % sF)
    e("s_cbranch_scc1 %s" % ok)
    e("s_mov_b32 s%d, %d" % (sSPIN, SPIN_LIMIT))
    g.label(loop)
    e("s_sleep 1")
    e("s_load_dword s%d, s[%d:%d], s%d glc" % (sF, SRD_WS, SRD_WS + 1, sT2))
    e("s_waitcnt lgkmcnt(0)")
    e("s_cmp_ge_u32 s%d, 14" % sF)
    e("s_cbranch_scc1 %s" % ok)
    e("s_sub_u32 s%d, s%d, 1" % (sSPIN, sSPIN))
    e("s_cmp_lg_u32 s%d, 0" % sSPIN)
    e("s_cbranch_scc1 %s" % loop)
    g.label(ok)


vFL, vFA = 125, 126


def flagv_load(g, u):
    e = g.e
    e("s_lshl_b32 s%d, s%d, 2" % (sT2, sCI))
    e("s_add_u32 s%d, s%d, %d" % (sT2, sT2, C_S3 + u))
    e("s_lshl_b32 s%d, s%d, 8" % (sT2, sT2))
    e("s_add_u32 s%d, s%d, %d" % (sT2, sT2, WS_CNT))
    e("v_mov_b32 %s, s%d" % (v(vFA), sT2))
    g.vmem("buffer_load_dword %s, %s, %s, 0 offen sc1" % (v(vFL), v(vFA), srd(SRD_WS)), "flag")


def flagv_check(g, wave=None):
    e = g.e
    g.wait_vm("flag", dual=True)
    loop, ok = g.newlabel("fvl"), g.newlabel("fvo")
    if wave is not None:
        e("s_cmp_eq_u32 s%d, %d" % (sWAVE, wave))
        e("s_cbranch_scc0 %s" % ok)
    e("s_mov_b32 s%d, %d" % (sSPIN, SPIN_LIMIT))
    g.label(loop)
    e("v_cmp_gt_u32 vcc, 14, %s" % v(vFL))
    e("s_nop 4")
    e("s_cbranch_vccz %s" % ok)
    e("s_sleep 1")
    e("buffer_load_dword %s, %s, %s, 0 offen sc1" % (v(vFL), v(vFA), srd(SRD_WS)))
    e("s_waitcnt vmcnt(0)")
    e("s_sub_u32 s%d, s%d, 1" % (sSPIN, sSPIN))
    e("s_cmp_lg_u32 s%d, 0" % sSPIN)
    e("s_cbranch_scc1 %s" % loop)
    g.label(ok)


def s3_signal(g, u):
    e = g.e
    e("s_lshl_b32 s%d, s%d, 2" % (sT0, sBI))
    e("s_add_u32 s%d, s%d, %d" % (sT0, sT0, C_S3 + u))
    e("s_lshl_b32 s%d, s%d, 8" % (sT0, sT0))
    e("s_add_u32 s%d, s%d, %d" % (sT0, sT0, WS_CNT))
    e("v_mov_b32 %s, s%d" % (v(vU), sT0))
    e("v_mov_b32 %s, 1" % v(vW))
    g.signal(vU, vW, 1)
    g.vm.append("sig@0")


def epilogue_items(g, q, p, nb):
    e = g.e
    acc = ACC[p & 1]

    def stats():
        vST = vSTB[p]
        g.wait_vm("st%d" % p)
        loop, ok = g.newlabel("stl"), g.newlabel("sto")
        e("s_mov_b32 s%d, %d" % (sSPIN, SPIN_LIMIT))
        g.label(loop)
        e("v_cmp_eq_u32 vcc, 0, %s" % v(vST))
        e("s_nop 4")
        e("s_cbranch_vccz %s" % ok)
        e("buffer_load_dword %s, %s, %s, 0 offen offset:%d sc1" % (v(vST), v(vSTA), srd(SRD_WS), 128 * p))
        e("s_waitcnt vmcnt(0)")
        e("s_sub_u32 s%d, s%d, 1" % (sSPIN, sSPIN))
        e("s_cmp_lg_u32 s%d, 0" % sSPIN)
        e("s_cbranch_scc1 %s" % loop)
        g.label(ok)
    q.fn(stats, 24, nb)
    q.op("v_and_b32 %s, 0xffff0000, %s" % (v(vS), v(vSTB[p])), nb=nb)
    q.op("v_and_b32 %s, 0xffff, %s" % (v(FOLD + 1), v(vSTB[p])), nb=nb)
    q.op("v_rcp_f32 %s, %s" % (v(vC1), v(vS)), 8, nb)
    q.op("v_xor_b32 %s, 0x8000, %s" % (v(FOLD + 1), v(FOLD + 1)), nb=nb)
    q.op("v_cndmask_b32 %s, 0, %s, s[%d:%d]" % (v(FOLD + 1), v(FOLD + 1), sEX, sEX + 1), nb=nb)
    q.op("v_lshl_or_b32 %s, %s, 16, %s" % (v(FOLD), v(FOLD + 1), v(FOLD + 1)), nb=nb)
    q.op("v_mul_f32 %s, 0xbfb8aa3b, %s" % (v(vC1), v(vC1)), nb=nb)
    q.op("s_nop 0", nb=nb)

    def fold():
        for ft in range(2):
            e("v_mfma_f32_32x32x16_bf16 %s, %s, %s, %s" % (v(acc + 16 * ft, 16), v(CS + 4 * ft, 4), v(FOLD, 4), v(acc + 16 * ft, 16)))
    q.fn(fold, 0, nb)
    for _ in range(4):
        q.fn(lambda: None, 100, nb)


def epilogue_valu(g, q, p, nb, direct=False, nostore=False):
    acc = ACC[p & 1]

    def put(line, cost=4):
        if direct:
            g.e(line)
        else:
            q.op(line, cost, nb)
    for ft in range(2):
        b = acc + 16 * ft
        for x in range(8):
            put("v_mul_f32 %s, %s, %s" % (v(b + x), v(b + x), v(vC1)))
        for x in range(8):
            put("v_exp_f32 %s, %s" % (v(b + x), v(b + x)), 8)
        for x in range(8):
            put("v_fma_f32 %s, %s, %s, %s" % (v(b + x), v(b + x), v(vS), v(vS)))
        for x in range(8):
            put("v_rcp_f32 %s, %s" % (v(b + x), v(b + x)), 8)
        for x in range(8):
            put("v_mul_f32 %s, %s, %s" % (v(b + 8 + x), v(b + 8 + x), v(b + x)))
        for i in range(4):
            put("v_cvt_pk_bf16_f32 %s, %s, %s" % (v(PK + 4 * ft + i), v(b + 8 + 2 * i), v(b + 9 + 2 * i)))


    if nostore:
        return
    if direct:
        h_store(g, p)
    else:
        q.fn(lambda: h_store(g, p), 40, max(nb, HST_STEP[p]))


def h_store(g, p):
    g.e("s_lshl_b32 s%d, s%d, 2" % (sT6, sBI))
    g.e("s_add_u32 s%d, s%d, %d" % (sT6, sT6, p))
    g.e("s_mul_i32 s%d, s%d, 114688" % (sT6, sT6))
    g.e("s_lshl_b32 s%d, s%d, 2" % (sT7, sBJ))
    g.e("s_add_u32 s%d, s%d, s%d" % (sT7, sT7, sWAVE))
    g.e("s_lshl_b32 s%d, s%d, 10" % (sT7, sT7))
    g.e("s_add_u32 s%d, s%d, s%d" % (sT6, sT6, sT7))
    g.e("s_add_u32 s%d, s%d, %d" % (sT6, sT6, WS_HF))
    for ft in range(2):
        g.vmem("buffer_store_dwordx4 %s, %s, %s, s%d offen offset:%d sc1" % (v(PK + 4 * ft, 4), v(vHST), srd(SRD_WS), sT6, 512 * ft), "hst%d" % p)


def wd_bases(g, dst):
    e = g.e
    t0, t1, t2 = vT, vU, vW
    e("v_lshrrev_b32 %s, 5, v1" % v(t0))
    e("v_bfe_u32 %s, v1, 4, 1" % v(t1))
    e("v_lshlrev_b32 %s, 4, %s" % (v(t0), v(t0)))
    e("v_lshl_add_u32 %s, %s, 2, %s" % (v(t0), v(t1), v(t0)))
    e("v_bfe_u32 %s, v1, 2, 2" % v(t2))
    e("v_add_u32 %s, %s, %s" % (v(t0), v(t0), v(t2)))
    e("v_lshlrev_b32 %s, 7, %s" % (v(t0), v(t0)))
    e("v_lshrrev_b32 %s, 1, %s" % (v(t2), v(t2)))
    e("v_lshl_add_u32 %s, %s, 1, %s" % (v(t1), v(t1), v(t2)))
    e("v_and_b32 %s, 3, v1" % v(t2))
    e("v_lshl_add_u32 %s, %s, 3, %s" % (v(t0), v(t2), v(t0)))
    e("s_lshl_b32 s%d, s%d, 14" % (sT0, sWAVE))
    e("s_add_u32 s%d, s%d, %d" % (sT0, sT0, L_WD))
    e("v_add_u32 %s, s%d, %s" % (v(t0), sT0, v(t0)))
    for ct in range(4):
        e("v_xor_b32 %s, %d, %s" % (v(t2), ct, v(t1)))
        e("v_lshl_add_u32 %s, %s, 5, %s" % (v(dst + ct), v(t2), v(t0)))


def hslot(u, s):
    return a((64 if (u & 1) == 0 else 120) + 4 * s, 4)


vHA = 2


def rot_table(g):
    e = g.e
    e("s_lshl_b32 s%d, s%d, 1" % (sT0, sCI))
    e("s_add_u32 s%d, s%d, s%d" % (sT0, sT0, sCS))
    e("s_and_b32 s%d, s%d, 3" % (sT0, sT0))
    e("s_lshl_b32 s%d, s%d, 1" % (sT0, sT0))
    e("s_add_u32 s%d, s%d, s%d" % (sT0, sT0, sCJ))
    e("s_lshl_b32 s%d, s%d, 1" % (sT0, sT0))
    e("s_cmp_ge_u32 s%d, 14" % sT0)
    e("s_cselect_b32 s%d, 14, 0" % sT1)
    e("s_sub_u32 s%d, s%d, s%d" % (sT0, sT0, sT1))
    for i in range(14):
        e("s_lshl_b32 s%d, s%d, 10" % (sOFF + i, sT0))
        if i != 13:
            e("s_add_u32 s%d, s%d, 1" % (sT0, sT0))
            e("s_cmp_eq_u32 s%d, 14" % sT0)
            e("s_cselect_b32 s%d, 0, s%d" % (sT0, sT0))


def hso(g, u):
    e = g.e
    e("s_lshl_b32 s%d, s%d, 2" % (sHS, sCI))
    e("s_add_u32 s%d, s%d, %d" % (sHS, sHS, u))
    e("s_lshl_b32 s%d, s%d, 1" % (sHS, sHS))
    e("s_add_u32 s%d, s%d, s%d" % (sHS, sHS, sCS))
    e("s_mul_i32 s%d, s%d, 57344" % (sHS, sHS))
    e("s_mul_i32 s%d, s%d, 14336" % (sT3, sWAVE))
    e("s_add_u32 s%d, s%d, s%d" % (sHS, sHS, sT3))
    e("s_add_u32 s%d, s%d, %d" % (sHS, sHS, WS_HF))
    e("v_add_u32 %s, s%d, %s" % (v(vHA), sHS, v(vL16)))


vHA0 = 127


def hso3(g, u):
    global vHA
    save = vHA
    vHA = vHA0
    hso(g, u)
    vHA = save


def hload(g, u, s, vaddr=None):
    g.vmem("buffer_load_dwordx4 %s, %s, %s, s%d offen sc1" % (hslot(u, s), v(vHA if vaddr is None else vaddr), srd(SRD_WS), sOFF + s), "hf%d_%d" % (u, s))


def colsum(g, s0, s1, ONES):
    for s in range(s0, s1):
        for ft in range(2):
            g.e("v_mfma_f32_32x32x16_bf16 %s, %s, %s, %s" % (v(ACC[0] + 16 * ft, 16), v(ONES, 4), a(8 * s + 4 * ft, 4), "0" if s == s0 else v(ACC[0] + 16 * ft, 16)))


def phase_b(g):
    e = g.e
    g.c("==== B prologue ====")
    ONES = PK
    e("v_lshlrev_b32 %s, 4, v1" % v(vL16))
    e("v_lshrrev_b32 %s, 5, v1" % v(vT))
    e("v_bfe_u32 %s, v1, 2, 2" % v(vU))
    e("v_lshl_add_u32 %s, %s, 3, %s" % (v(vT), v(vT), v(vU)))
    e("v_lshlrev_b32 %s, 6, %s" % (v(vHTR0), v(vT)))
    e("v_bfe_u32 %s, v1, 4, 1" % v(vT))
    e("v_lshl_add_u32 %s, %s, 5, %s" % (v(vHTR0), v(vT), v(vHTR0)))
    e("v_and_b32 %s, 3, v1" % v(vT))
    e("v_lshl_add_u32 %s, %s, 3, %s" % (v(vHTR0), v(vT), v(vHTR0)))
    e("v_bfe_u32 %s, v1, 4, 1" % v(vT))
    e("v_mul_u32_u24 %s, 57344, %s" % (v(vHST), v(vT)))
    e("v_lshrrev_b32 %s, 5, v1" % v(vT))
    e("v_lshl_add_u32 %s, %s, 8, %s" % (v(vHST), v(vT), v(vHST)))
    e("v_and_b32 %s, 15, v1" % v(vT))
    e("v_lshl_add_u32 %s, %s, 4, %s" % (v(vHST), v(vT), v(vHST)))
    e("v_and_b32 %s, 31, v1" % v(vT))
    e("s_lshl_b32 s%d, s%d, 9" % (sT0, sBI))
    e("s_add_u32 s%d, s%d, %d" % (sT0, sT0, WS_ST2))
    e("v_lshl_add_u32 %s, %s, 2, s%d" % (v(vSTA), v(vT), sT0))
    e("v_lshrrev_b32 %s, 3, v1" % v(vT))
    e("v_mul_u32_u24 %s, 896, %s" % (v(vWDO), v(vT)))
    e("v_lshrrev_b32 %s, 1, %s" % (v(vT), v(vT)))
    e("v_lshlrev_b32 %s, 1, %s" % (v(vT), v(vT)))
    e("v_and_b32 %s, 7, v1" % v(vU))
    e("v_xor_b32 %s, %s, %s" % (v(vU), v(vU), v(vT)))
    e("v_lshl_add_u32 %s, %s, 4, %s" % (v(vWDO), v(vU), v(vWDO)))
    for n in range(1, 4):
        e("v_add_u32 %s, %d, %s" % (v(vWDO + n), n * 6144, v(vWDO)))
    wd_bases(g, vWDB)
    rot_table(g)
    e("s_mov_b32 s%d, -1" % sEX)
    e("s_mov_b32 s%d, 0" % (sEX + 1))
    e("v_mov_b32 %s, 0" % v(FOLD + 2))
    e("v_mov_b32 %s, 0" % v(FOLD + 3))
    e("v_mov_b32 %s, %s" % (v(vCS0), v(ACC[0])))
    e("v_mov_b32 %s, %s" % (v(vCS0 + 1), v(ACC[0] + 16)))
    g.w_stage_read(1)
    e("v_add_u32 %s, %d, %s" % (v(vHTR2), 57344, v(vHTR0)))
    e("v_and_b32 %s, 15, v1" % v(vT))
    e("v_lshlrev_b32 %s, 8, %s" % (v(vT), v(vT)))
    e("s_and_b32 s%d, s2, 7" % sT0)
    e("s_lshl_b32 s%d, s%d, 12" % (sT0, sT0))
    e("s_add_u32 s%d, s%d, %d" % (sT0, sT0, WS_CNT + 256 * C_S2))
    e("v_add_u32 %s, s%d, %s" % (v(vT), sT0, v(vT)))
    e("v_mov_b32 %s, 14" % v(vU))
    e("s_and_b32 s%d, s2, 7" % sT0)
    e("s_lshl_b32 s%d, s%d, 8" % (sT0, sT0))
    e("s_add_u32 s%d, s%d, %d" % (sT0, sT0, WS_CNT + 256 * C_FH))
    e("v_mov_b32 %s, s%d" % (v(vW), sT0))
    e("v_cmp_gt_u32 vcc, 32, v1")
    e("s_nop 1")
    e("v_cndmask_b32 %s, %s, %s, vcc" % (v(vT), v(vW), v(vT)))
    e("v_cndmask_b32 %s, 32, %s, vcc" % (v(vU), v(vU)))
    lab = g.newlabel("hb0")
    e("s_cmp_eq_u32 s%d, 0" % sWAVE)
    e("s_cbranch_scc0 %s" % lab)
    g.spin(vT, vU, vW)
    g.stamp(9)
    e("s_lshl_b32 s%d, s%d, 2" % (sT4, sBI))
    e("s_mul_i32 s%d, s%d, 28672" % (sT4, sT4))
    e("s_add_u32 s%d, s%d, %d" % (sT4, sT4, WS_HB))
    for grp in range(7):
        e("s_mov_b32 m0, %d" % (L_HB + 4096 * grp))
        e("s_nop 0")
        for i in range(4):
            e("buffer_load_dwordx4 %s, %s, s%d offen offset:%d sc1 lds" % (v(vL16), srd(SRD_WS), sT4, 1024 * i))
        if grp != 6:
            e("s_add_u32 s%d, s%d, 4096" % (sT4, sT4))
    g.label(lab)
    g.wait_lg("wr")
    colsum(g, 14, 28, ONES)
    e("s_nop 7")
    e("s_nop 3")
    for ft in range(2):
        cs = ACC[0] + 16 * ft
        d = CS + 4 * ft
        e("v_add_f32 %s, %s, %s" % (v(cs), v(cs), v(vCS0 + ft)))
        e("v_cvt_pk_bf16_f32 %s, %s, %s" % (v(vT), v(cs), v(cs)))
        e("v_lshlrev_b32 %s, 16, %s" % (v(vT), v(vT)))
        e("v_sub_f32 %s, %s, %s" % (v(vU), v(cs), v(vT)))
        e("v_cvt_pk_bf16_f32 %s, %s, %s" % (v(d), v(cs), v(vU)))
        e("v_and_b32 %s, 0xffff0000, %s" % (v(vT), v(d)))
        e("v_sub_f32 %s, %s, %s" % (v(vU), v(vU), v(vT)))
        e("v_cvt_pk_bf16_f32 %s, %s, 0" % (v(d + 1), v(vU)))
        e("v_cndmask_b32 %s, 0, %s, s[%d:%d]" % (v(d), v(d), sEX, sEX + 1))
        e("v_cndmask_b32 %s, 0, %s, s[%d:%d]" % (v(d + 1), v(d + 1), sEX, sEX + 1))
        e("v_mov_b32 %s, 0" % v(d + 2))
        e("v_mov_b32 %s, 0" % v(d + 3))
    g.wait_vm0()
    e("s_barrier")
    g.stamp(10)

    vm_ev = {}
    ld_ev = {}

    def put_vm(step, fn):
        while step in vm_ev:
            step += 1
        vm_ev[step] = fn
        return step
    for n in range(7):
        put_vm(0 + n, lambda n=n: hb_dma(g, 1, n))
    D = {0: 7, 1: 11, 2: 15, 3: 26, 4: 35, 5: 39, 6: 43, 7: 47, 8: 63, 9: 67, 10: 71, 11: 75, 12: 91, 13: 95}
    R = {0: 30, 1: 34, 2: 38, 3: 42, 4: 58, 5: 62, 6: 66, 7: 70, 8: 86, 9: 90}
    for n in range(7):
        put_vm(19 + n, lambda n=n: hb_dma(g, 2, n))
    for n in range(7):
        put_vm(54 + n, lambda n=n: hb_dma(g, 3, n))
    for unit in range(14):
        for n in range(4):
            def f(unit=unit, n=n):
                if n == 0 and unit >= 4:
                    g.wait_lg("wr%d" % (unit - 4))
                wd_dma(g, unit, n)
            st = put_vm(D[unit] + n, f)
            assert st == D[unit] + n, (unit, n, st)
    for unit in range(NREG_UNITS):
        for i in range(8):
            ld_ev.setdefault(R[unit] + (i >> 1), []).append(lambda unit=unit, i=i: wd_read(g, unit, i))
    for n in range(2):
        put_vm(84 + n, lambda n=n: res_dma(g, n))
    for p in range(1, 4):
        put_vm(30 + p, lambda p=p: g.vmem("buffer_load_dword %s, %s, %s, 0 offen offset:%d sc1" % (v(vSTB[p]), v(vSTA), srd(SRD_WS), 128 * p), "st%d" % p))
    for unit, r0 in ((10, 94), (11, 98)):
        for i in range(8):
            ld_ev.setdefault(r0 + (i >> 1), []).append(lambda unit=unit, i=i: wd_read(g, unit, i))
    def first_h():
        hso3(g, 0)
        hload(g, 0, 0, vaddr=vHA0)
    put_vm(99, first_h)
    nxt0 = list(range(1, 14))
    for st_ in (100, 101, 102, 103, 104, 105, 106, 107, 109, 110, 111):
        put_vm(st_, lambda s_=nxt0.pop(0): hload(g, 0, s_, vaddr=vHA0))
    tail_h = nxt0

    def hread(gs):
        u, s = divmod(gs, 28)
        if u > 3:
            return
        buf = u % 3
        base = vHTR2 if buf == 2 else vHTR0
        off = (28672 * buf if buf < 2 else 0) + 1024 * s
        for ee in range(2):
            g.lds("ds_read_b64_tr_b16 %s, %s offset:%d" % (v(HF + 4 * (gs % 3) + 2 * ee, 2), v(base), L_HB + off + 256 * ee), "h%d" % gs)

    hread(0)
    hread(1)
    for u in range(4):
        g.c("---- B block %d" % u)
        q = Q(g)
        acc = ACC[u & 1]
        if u >= 1:
            epilogue_items(g, q, u - 1, 0)
            epilogue_valu(g, q, u - 1, 0)
        for s in range(28):
            gs = 28 * u + s
            g.wait_lg("h%d" % gs)
            srcc = lambda ft: "0" if s == 0 else v(acc + 16 * ft, 16)
            e("v_mfma_f32_32x32x16_bf16 %s, %s, %s, %s" % (v(acc, 16), a(8 * s, 4), v(HF + 4 * (gs % 3), 4), srcc(0)))
            hread(gs + 2)
            q.gap(16, s)
            e("v_mfma_f32_32x32x16_bf16 %s, %s, %s, %s" % (v(acc + 16, 16), a(8 * s + 4, 4), v(HF + 4 * (gs % 3), 4), srcc(1)))
            budget = 20
            for f in ld_ev.get(gs, []):
                f()
                budget -= 4
            if gs in vm_ev:
                vm_ev[gs]()
                budget -= 4
            q.gap(budget, s) if budget > 0 else None
            if u == 0 and s == 18:
                g.vmem("buffer_load_dword %s, %s, %s, 0 offen sc1" % (v(vSTB[0]), v(vSTA), srd(SRD_WS)), "st0")
            if s == 25:
                tags = []
                if u <= 2:
                    tags.append("hb%d" % (u + 1))
                if u == 3:
                    tags.append("res")
                g.wait_vm(tags)
                e("s_barrier")
        q.flush()
        g.stamp(11 + u)
    g.c("---- B tail / C head")
    q = Q(g)
    epilogue_items(g, q, 3, 0)
    while q.o and q.o[-1][0] == 100:
        q.o.pop()
    q.flush()
    for s_ in tail_h:
        hload(g, 0, s_, vaddr=vHA0)
    side = []
    for unit in (12, 13):
        for i in range(8):
            side.append(lambda unit=unit, i=i: wd_read(g, unit, i))
    for k in range(10):
        side.pop(0)()
    q2 = Q(g)
    epilogue_valu(g, q2, 3, 0, nostore=True)
    k = 0
    while q2.o:
        q2.o.popleft()[1]()
        k += 1
        if k % 4 == 2 and side:
            side.pop(0)()
    h_store(g, 3)
    g.stamp(16)
    hso(g, 1)
    c_setup(g)
    g.stamp(15)


vPW, vPR, vRW, vRR, vOUT, vRES = 13, 14, 15, 16, 17, 18
SUM = 64
RS = 84
OUTP = 92


def c_setup(g):
    e = g.e
    e("v_lshrrev_b32 %s, 4, v1" % v(vT))
    e("v_and_b32 %s, 15, v1" % v(vU))
    e("v_mul_u32_u24 %s, 272, %s" % (v(vW), v(vT)))
    e("v_lshl_add_u32 %s, %s, 4, %s" % (v(vW), v(vU), v(vW)))
    e("s_lshl_b32 s%d, s%d, 14" % (sT0, sWAVE))
    e("s_add_u32 s%d, s%d, %d" % (sT0, sT0, L_WD))
    e("v_add_u32 %s, s%d, %s" % (v(vPW), sT0, v(vW)))
    e("s_mul_i32 s%d, s%d, 1088" % (sT0, sWAVE))
    e("s_add_u32 s%d, s%d, %d" % (sT0, sT0, L_RESP))
    e("v_add_u32 %s, s%d, %s" % (v(vRW), sT0, v(vW)))
    e("v_mul_u32_u24 %s, 272, %s" % (v(vW), v(vU)))
    e("s_lshl_b32 s%d, s%d, 2" % (sT0, sWAVE))
    e("v_add_u32 %s, s%d, %s" % (v(vPR), sT0, v(vT)))
    e("v_lshl_add_u32 %s, %s, 4, %s" % (v(vW), v(vPR), v(vW)))
    e("s_lshl_b32 s%d, s%d, 7" % (sT0, sCI))
    e("s_lshl_b32 s%d, s%d, 4" % (sT1, sCS))
    e("s_add_u32 s%d, s%d, s%d" % (sT0, sT0, sT1))
    e("v_add_u32 %s, s%d, %s" % (v(vOUT), sT0, v(vPR)))
    e("v_mul_u32_u24 %s, 896, %s" % (v(vOUT), v(vOUT)))
    e("v_lshl_add_u32 %s, %s, 3, %s" % (v(vOUT), v(vU), v(vOUT)))
    e("s_lshl_b32 s%d, s%d, 7" % (sT0, sCJ))
    e("v_add_u32 %s, s%d, %s" % (v(vOUT), sT0, v(vOUT)))
    e("v_add_u32 %s, %d, %s" % (v(vPR), L_WD, v(vW)))
    e("v_add_u32 %s, %d, %s" % (v(vRR), L_RESP, v(vW)))
    e("v_lshrrev_b32 %s, 4, v1" % v(vT))
    e("v_bfe_u32 %s, v1, 2, 2" % v(vU))
    e("v_lshl_add_u32 %s, %s, 2, %s" % (v(vT), v(vT), v(vU)))
    e("s_lshl_b32 s%d, s%d, 4" % (sT0, sWAVE))
    e("v_add_u32 %s, s%d, %s" % (v(vT), sT0, v(vT)))
    e("v_lshlrev_b32 %s, 5, %s" % (v(vT), v(vT)))
    e("v_and_b32 %s, 3, v1" % v(vU))
    e("v_lshl_add_u32 %s, %s, 3, %s" % (v(vT), v(vU), v(vT)))
    e("v_add_u32 %s, %d, %s" % (v(vRES), L_RES, v(vT)))
    for u in range(4):
        g.lds("ds_read_b64_tr_b16 %s, %s offset:%d" % (v(RS + 2 * u, 2), v(vRES), 2048 * u), "rs%d" % u)
    for u in range(4):
        g.wait_lg("rs%d" % u)
        t = SUM + 4 * u
        e("v_lshlrev_b32 %s, 16, %s" % (v(t), v(RS + 2 * u)))
        e("v_and_b32 %s, 0xffff0000, %s" % (v(t + 1), v(RS + 2 * u)))
        e("v_lshlrev_b32 %s, 16, %s" % (v(t + 2), v(RS + 2 * u + 1)))
        e("v_and_b32 %s, 0xffff0000, %s" % (v(t + 3), v(RS + 2 * u + 1)))
        g.lds("ds_write_b128 %s, %s offset:%d" % (v(vRW), v(t, 4), PART_STRIDE * u), "rw")


def phase_c(g):
    e = g.e
    g.c("==== C ====")
    CACC = [32, 48]

    def finish_items(q, u, nb):
        buf = u & 1
        for w in range(4):
            q.fn(lambda w=w: g.lds("ds_read_b128 %s, %s offset:%d" % (v(SUM + 4 * w, 4), v(vPR), 16384 * w + PART_STRIDE * buf), "p%d" % w), 4, nb)
        q.fn(lambda: g.lds("ds_read_b128 %s, %s offset:%d" % (v(SUM + 16, 4), v(vRR), PART_STRIDE * u), "p4"), 4, nb)
        q.fn(lambda: g.wait_lg("p1"), 4, nb + 1)
        for i in range(4):
            q.op("v_add_f32 %s, %s, %s" % (v(SUM + i), v(SUM + i), v(SUM + 4 + i)), 4, nb)
        q.fn(lambda: g.wait_lg("p3"), 4, nb)
        for i in range(4):
            q.op("v_add_f32 %s, %s, %s" % (v(SUM + 8 + i), v(SUM + 8 + i), v(SUM + 12 + i)), 4, nb)
        q.fn(lambda: g.wait_lg("p4"), 4, nb)
        for i in range(4):
            q.op("v_add_f32 %s, %s, %s" % (v(SUM + i), v(SUM + i), v(SUM + 16 + i)), 4, nb)
        for i in range(4):
            q.op("v_add_f32 %s, %s, %s" % (v(SUM + i), v(SUM + i), v(SUM + 8 + i)), 4, nb)
        q.op("v_cvt_pk_bf16_f32 %s, %s, %s" % (v(OUTP + 2 * u), v(SUM), v(SUM + 1)), 4, nb)
        q.op("v_cvt_pk_bf16_f32 %s, %s, %s" % (v(OUTP + 2 * u + 1), v(SUM + 2), v(SUM + 3)), 4, nb)

    def pwrite(u, ct):
        g.lds("ds_write_b128 %s, %s offset:%d" % (v(vPW), v(CACC[u & 1] + 4 * ct, 4), 1088 * ct + PART_STRIDE * (u & 1)), "pw")

    def mfmas(u, s):
        acc = CACC[u & 1]
        return [lambda ct=ct: e("v_mfma_f32_16x16x32_bf16 %s, %s, %s, %s" % (v(acc + 4 * ct, 4), rname(wdf(s, ct), 4), hslot(u, s), "0" if s == 0 else v(acc + 4 * ct, 4))) for ct in range(4)]

    def reduce_head(q, u):
        for ct in range(4):
            q.fn(lambda ct=ct: pwrite(u, ct), 8, 1)

    vRD = 126
    g.redo = []

    def check(u):
        lab, back = g.newlabel("redo"), g.newlabel("back")
        acc = CACC[u & 1]
        e("v_cmp_u_f32 vcc, %s, %s" % (v(acc), v(acc)))
        e("s_nop 4")
        e("s_cbranch_vccnz %s" % lab)
        g.label(back)
        g.redo.append((u, lab, back))

    for u in range(4):
        g.c("---- C chunk %d" % u)
        q = Q(g)
        nxt = list(range(14)) if u < 3 else []
        if u == 0:
            g.wait_lg0()
        for s in range(14):
            g.wait_vm("hf%d_%d" % (u, s))
            if s == C_BAR and u >= 1:
                q.flush()
                g.wait_lg("pw")
                e("s_barrier")
                finish_items(q, u - 1, 0)
            ms = mfmas(u, s)
            per = 0
            if nxt and s >= 1:
                per = min(4, -(-len(nxt) // (14 - s)))
            for ct in range(4):
                ms[ct]()
                if per and nxt and ct in ((1,), (0, 2), (0, 1, 2), (0, 1, 2, 3))[per - 1]:
                    hload(g, u + 1, nxt.pop(0))
                else:
                    q.gap(8, s)
            if s == 0:
                if u >= 1:
                    check(u - 1)
                    for ct in range(4):
                        q.fn(lambda ct=ct: pwrite(u - 1, ct), 8, 1)
                if 1 <= u < 3:
                    hso(g, u + 1)
        q.flush()
        assert not nxt
        g.stamp(17 + u if u else 17)
    e("s_nop 7")
    check(3)
    for ct in range(4):
        pwrite(3, ct)
    g.wait_lg0()
    e("s_barrier")

    def redo_code():
        for u, lab, back in g.redo:
            g.label(lab)
            loop, done = g.newlabel("rl"), g.newlabel("rd")
            e("s_lshl_b32 s%d, s%d, 2" % (sHS, sCI))
            e("s_add_u32 s%d, s%d, %d" % (sHS, sHS, u))
            e("s_lshl_b32 s%d, s%d, 1" % (sHS, sHS))
            e("s_add_u32 s%d, s%d, s%d" % (sHS, sHS, sCS))
            e("s_mul_i32 s%d, s%d, 57344" % (sHS, sHS))
            e("s_mul_i32 s%d, s%d, 14336" % (sT3, sWAVE))
            e("s_add_u32 s%d, s%d, s%d" % (sHS, sHS, sT3))
            e("s_add_u32 s%d, s%d, %d" % (sHS, sHS, WS_HF))
            e("v_add_u32 %s, s%d, %s" % (v(vRD), sHS, v(vL16)))
            e("s_mov_b32 s%d, %d" % (sSPIN, SPIN_LIMIT))
            g.label(loop)
            for s in range(14):
                e("buffer_load_dwordx4 %s, %s, %s, s%d offen sc1" % (hslot(u, s), v(vRD), srd(SRD_WS), sOFF + s))
            e("s_waitcnt vmcnt(0)")
            for s in range(14):
                mfmas(u, s)[0]()
            e("s_nop 7")
            e("s_nop 3")
            e("v_cmp_u_f32 vcc, %s, %s" % (v(CACC[u & 1]), v(CACC[u & 1])))
            e("s_nop 4")
            e("s_cbranch_vccz %s" % done)
            e("s_sub_u32 s%d, s%d, 1" % (sSPIN, sSPIN))
            e("s_cmp_lg_u32 s%d, 0" % sSPIN)
            e("s_cbranch_scc1 %s" % loop)
            g.label(done)
            for s in range(14):
                for ct in range(1, 4):
                    mfmas(u, s)[ct]()
            e("s_nop 7")
            e("s_nop 3")
            e("s_branch %s" % back)
    g.redo_code = redo_code
    for u in range(3):
        e("s_mov_b32 s%d, %d" % (sT4, 32 * 896 * u))
        g.vmem("buffer_store_dwordx2 %s, %s, %s, s%d offen" % (v(OUTP + 2 * u, 2), v(vOUT), srd(SRD_OUT), sT4), "out")
    q = Q(g)
    finish_items(q, 3, 0)
    q.flush()
    e("s_mov_b32 s%d, %d" % (sT4, 32 * 896 * 3))
    g.vmem("buffer_store_dwordx2 %s, %s, %s, s%d offen" % (v(OUTP + 6, 2), v(vOUT), srd(SRD_OUT), sT4), "out")
```

```python
import sys, os
sys.path.insert(0, os.path.dirname(os.path.abspath(__file__)))
from asmlib import Asm, check_hazards

NAME = "sequential_preLN__ssm_conv_h3__glu_gated_glu__prompt_kernel"
S, D, F = 2048, 448, 1792

WS_KVT = 0x000000
WS_QT = 0x200000
WS_HB = 0x400000
WS_HF = 0x600000
WS_ST1 = 0xE00000
WS_ST2 = 0xE08000
WS_CNT = 0xE10000
WS_TS = 0xF00000
WS_SIZE = 0x1000000
C_S1, C_SL1, C_FH, C_S3, C_S2 = 0, 8, 16, 32, 96
N_CNT = 224

L_WST = 0
L_K = 114688
L_V = L_K + 9216
L_Q = L_V + 8192
L_TS = L_Q + 8192
L_X = L_K
L_EX = L_V
L_HB = 0
L_WD = 86016
LDS_BYTES = 163840

sWAVE = 3
SRD_WS, SRD_Q, SRD_K, SRD_V, SRD_SK, SRD_SH, SRD_WG, SRD_WU, SRD_WD, SRD_OUT, SRD_DBG = 4, 8, 12, 16, 20, 24, 28, 32, 36, 40, 44
sPC = 48
sD = 50
sT0, sT1, sT2, sT3, sT4, sT5, sT6, sT7 = 76, 77, 78, 79, 80, 81, 82, 83
sA0BASE = 84
sG0 = 85
sRB = 86
sBI, sBJ = 87, 88
sCI, sCS, sCJ = 89, 90, 91
sSPIN = 92
sM = 93
sEX = 94
sTS = 96
sHALF = 98
sCHL = 99
sWSO, sWM, sWB, sWG, sWX = 51, 75, 56, 57, 74
sOFF = 58
vWS = 248
vWRD = 246


def srd(n):
    return "s[%d:%d]" % (n, n + 3)


def v(a, n=1):
    return "v%d" % a if n == 1 else "v[%d:%d]" % (a, a + n - 1)


def a(i, n=1):
    return "a%d" % i if n == 1 else "a[%d:%d]" % (i, i + n - 1)


SPIN_LIMIT = 40000
DBG_IDX = [0, 1, 3, 4, 5, 6, 8, 9, 10, 11, 12, 13, 14, 15, 17, 20]


class Gen(Asm):
    def __init__(self, stop=None, stamps=False, tlbwarm=True, prefetch=True, dbgst=False):
        super().__init__()
        self.stop = stop
        self.stamps = stamps
        self.tlbwarm = tlbwarm
        self.prefetch = prefetch
        self.exp = set()
        self.spin_us = 0
        self.dbgst = dbgst
        self.go_off = 128 if dbgst else 0
        self.npre = 8
        self.nw1 = 28
        self.fill_depth = 8

    def stamp(self, idx):
        if self.dbgst:
            if idx not in DBG_IDX or getattr(self, "in_helper", False):
                return
            lab = self.newlabel("st")
            self.e("s_cmp_eq_u32 s%d, 0" % sWAVE)
            self.e("s_cbranch_scc0 %s" % lab)
            self.e("s_and_b32 s%d, s2, 31" % sTS)
            self.e("s_cmp_eq_u32 s%d, %d" % (sTS, 5))
            self.e("s_cbranch_scc0 %s" % lab)
            self.e("s_memrealtime s[%d:%d]" % (sTS, sTS + 1))
            self.e("s_waitcnt lgkmcnt(0)")
            if idx == 0:
                self.e("s_not_b32 s%d, s%d" % (sTS, sTS))
            self.e("v_mov_b32 v30, s%d" % sTS)
            self.e("v_mov_b32 v31, %d" % (4 * DBG_IDX.index(idx)))
            self.e("s_mov_b64 exec, 1")
            self.e("buffer_atomic_umax v30, v31, %s, 0 offen sc1" % srd(SRD_DBG))
            self.e("s_mov_b64 exec, -1")
            self.label(lab)
            return
        if not self.stamps:
            return
        lab = self.newlabel("st")
        self.e("s_cmp_eq_u32 s%d, 0" % sWAVE)
        self.e("s_cbranch_scc0 %s" % lab)
        self.e("s_memrealtime s[%d:%d]" % (sTS, sTS + 1))
        self.e("s_memtime s[100:101]")
        self.e("s_waitcnt lgkmcnt(0)")
        self.e("v_mov_b32 v30, s%d" % sTS)
        self.e("s_lshl_b32 s%d, s2, 8" % (sTS + 1))
        self.e("s_add_u32 s%d, s%d, %d" % (sTS + 1, sTS + 1, WS_TS + 4 * idx))
        self.e("v_mov_b32 v31, s%d" % (sTS + 1))
        self.e("s_mov_b64 exec, 1")
        self.e("buffer_store_dword v30, v31, %s, 0 offen" % srd(SRD_WS))
        self.e("v_mov_b32 v30, s100")
        self.e("s_nop 1")
        self.e("buffer_store_dword v30, v31, %s, 0 offen offset:128" % srd(SRD_WS))
        self.e("s_mov_b64 exec, -1")
        self.label(lab)

    def spin(self, vaddr, vtarget, vtmp):
        loop = self.newlabel("ploop")
        done = self.newlabel("pdone")
        self.e("s_mov_b32 s%d, %d" % (sSPIN, SPIN_LIMIT))
        self.label(loop)
        self.e("buffer_load_dword %s, %s, %s, 0 offen sc1" % (v(vtmp), v(vaddr), srd(SRD_WS)))
        self.e("s_waitcnt vmcnt(0)")
        self.e("v_cmp_lt_u32 vcc, %s, %s" % (v(vtmp), v(vtarget)))
        self.e("s_nop 4")
        self.e("s_cbranch_vccz %s" % done)
        self.e("s_sub_u32 s%d, s%d, 1" % (sSPIN, sSPIN))
        self.e("s_cmp_lg_u32 s%d, 0" % sSPIN)
        self.e("s_cbranch_scc0 %s" % done)
        self.e("s_sleep 1")
        self.e("s_branch %s" % loop)
        self.label(done)

    def poll(self, vaddr, vtarget, vtmp):
        skip = self.newlabel("pskip")
        self.e("s_cmp_eq_u32 s%d, 0" % sWAVE)
        self.e("s_cbranch_scc0 %s" % skip)
        self.spin(vaddr, vtarget, vtmp)
        self.label(skip)
        self.e("s_barrier")

    def signal(self, vaddr, vone, nlanes):
        skip = self.newlabel("sig")
        self.e("s_cmp_eq_u32 s%d, 0" % sWAVE)
        self.e("s_cbranch_scc0 %s" % skip)
        self.e("s_mov_b64 exec, %d" % ((1 << nlanes) - 1))
        self.e("buffer_atomic_add %s, %s, %s, 0 offen sc1" % (v(vone), v(vaddr), srd(SRD_WS)))
        self.e("s_mov_b64 exec, -1")
        self.label(skip)

    def endif_stop(self, name):
        if self.stop == name:
            self.wait_all()
            self.e("s_endpgm")
            return True
        return False

    def prologue(self):
        e = self.e
        e("s_cmp_ge_u32 s2, 256")
        e("s_cbranch_scc1 L_end")
        e("s_load_dwordx4 s[52:55], s[0:1], 0")
        e("s_load_dwordx4 s[56:59], s[0:1], 16")
        e("s_load_dwordx4 s[60:63], s[0:1], 32")
        e("s_load_dwordx4 s[64:67], s[0:1], 56")
        e("s_load_dwordx4 s[68:71], s[0:1], 72")
        e("s_load_dwordx4 s[72:75], s[0:1], 88")
        if self.spin_us:
            e("s_memrealtime s[100:101]")
        e("s_getpc_b64 s[%d:%d]" % (sPC, sPC + 1))
        self.label("L_pc")
        e("v_and_b32 v1, 63, v0")
        e("v_lshrrev_b32 v2, 6, v0")
        e("s_nop 0")
        e("v_readfirstlane_b32 s%d, v2" % sWAVE)
        e("s_waitcnt lgkmcnt(0)")

        def mk(dst, src, size):
            e("s_mov_b32 s%d, s%d" % (dst, src))
            e("s_mov_b32 s%d, s%d" % (dst + 1, src + 1))
            e("s_mov_b32 s%d, %d" % (dst + 2, size))
            e("s_mov_b32 s%d, 0x20000" % (dst + 3))
        mk(SRD_Q, 52, S * D * 2)
        mk(SRD_K, 54, S * D * 2)
        mk(SRD_V, 56, S * D * 2)
        mk(SRD_SH, 58, D * 4 * 2)
        mk(SRD_SK, 60, S * D * 2)
        mk(SRD_WG, 64, D * F * 2)
        mk(SRD_WU, 66, D * F * 2)
        mk(SRD_WD, 68, D * F * 2)
        e("s_sub_u32 s%d, s%d, 1024" % (SRD_WU, SRD_WU))
        e("s_subb_u32 s%d, s%d, 0" % (SRD_WU + 1, SRD_WU + 1))
        e("s_add_u32 s%d, s%d, 1024" % (SRD_WU + 2, SRD_WU + 2))
        mk(SRD_OUT, 70, S * D * 2)
        mk(SRD_DBG, 72, 256)
        mk(SRD_WS, 74, WS_SIZE)
        lab = self.newlabel("nowarm")
        e("s_lshr_b32 s%d, s2, 3" % sT0)
        e("s_cmp_lt_u32 s%d, 4" % sT0)
        e("s_cbranch_scc0 %s" % lab)
        e("s_lshl_b32 s%d, s%d, 2" % (sT0, sT0))
        e("s_add_u32 s%d, s%d, s%d" % (sT0, sT0, sWAVE))
        e("s_mul_i32 s%d, s%d, (L_codeend-L_pc+15)/16" % (sT0, sT0))
        e("v_lshlrev_b32 v2, 5, v1")
        e("v_add_u32 v2, s%d, v2" % sT0)
        e("v_min_u32 v2, L_codeend-L_pc-4, v2")
        e("v_and_b32 v2, -4, v2")
        e("global_load_dword v253, v2, s[%d:%d]" % (sPC, sPC + 1))
        self.label(lab)
        e("s_cmp_ge_u32 s2, 224")
        e("s_cbranch_scc1 L_helper")

    def phase_a0(self):
        e = self.e
        self.c("==== A0 ====")
        e("s_mul_i32 s%d, s2, 293" % sRB)
        e("s_lshr_b32 s%d, s%d, 11" % (sRB, sRB))
        e("s_mul_i32 s%d, s%d, 7" % (sT0, sRB))
        e("s_sub_u32 s%d, s2, s%d" % (sG0, sT0))
        e("s_mul_i32 s%d, s%d, %d" % (sA0BASE, sRB, 64 * 896))
        e("s_lshl_b32 s%d, s%d, 7" % (sT0, sG0))
        e("s_add_u32 s%d, s%d, s%d" % (sA0BASE, sA0BASE, sT0))
        vP, vOff, vOffH, vT = 4, 5, 6, 7
        e("v_lshrrev_b32 %s, 4, v1" % v(vT))
        e("v_and_b32 %s, 1, %s" % (v(vT), v(vT)))
        e("v_lshlrev_b32 %s, 1, %s" % (v(vT), v(vT)))
        e("v_and_b32 %s, 7, v1" % v(vP))
        e("v_xor_b32 %s, %s, %s" % (v(vP), v(vP), v(vT)))
        e("v_lshlrev_b32 %s, 4, %s" % (v(vP), v(vP)))
        e("v_lshrrev_b32 %s, 3, v1" % v(vT))
        e("v_mul_u32_u24 %s, 896, %s" % (v(vT), v(vT)))
        e("v_add_u32 %s, %s, %s" % (v(vP), v(vP), v(vT)))
        e("s_and_b32 s%d, s%d, 1" % (sT0, sWAVE))
        e("s_lshl_b32 s%d, s%d, 6" % (sT0, sT0))
        e("v_xor_b32 %s, s%d, %s" % (v(vOff), sT0, v(vP)))
        e("v_xor_b32 %s, 64, %s" % (v(vOffH), v(vP)))
        e("s_cmp_eq_u32 s%d, 0" % sRB)
        e("s_cselect_b32 s%d, 0x80000000, 0" % sT1)
        e("v_add_u32 %s, s%d, %s" % (v(vOffH), sT1, v(vOffH)))
        e("s_sub_u32 s%d, s%d, 7168" % (sT2, sA0BASE))
        e("s_cmp_eq_u32 s%d, 0" % sRB)
        e("s_cselect_b32 s%d, 0, s%d" % (sT2, sT2))
        e("s_mul_i32 s%d, s%d, 7168" % (sT3, sWAVE))
        e("s_add_u32 s%d, s%d, s%d" % (sT3, sT3, sA0BASE))
        e("s_add_u32 s%d, s%d, %d" % (sT4, sT3, 4 * 7168))
        e("s_lshl_b32 s%d, s%d, 10" % (sT5, sWAVE))

        def dma(srdn, voff, soff, ldsbase, addw=True):
            if addw:
                e("s_add_u32 m0, s%d, %d" % (sT5, ldsbase))
            else:
                e("s_mov_b32 m0, %d" % ldsbase)
            e("s_nop 0")
            self.vmem("buffer_load_dwordx4 %s, %s, s%d offen lds" % (v(voff), srd(srdn), soff), "a0")
        dma(SRD_K, vOffH, sT2, L_K, addw=False)
        dma(SRD_K, vOff, sT3, L_K + 1024)
        dma(SRD_K, vOff, sT4, L_K + 5 * 1024)
        dma(SRD_V, vOff, sT3, L_V)
        dma(SRD_V, vOff, sT4, L_V + 4 * 1024)
        dma(SRD_Q, vOff, sT3, L_Q)
        dma(SRD_Q, vOff, sT4, L_Q + 4 * 1024)
        vCH, vSK = 8, 10
        e("s_lshl_b32 s%d, s%d, 6" % (sT0, sG0))
        e("s_lshl_b32 s%d, s%d, 4" % (sT1, sWAVE))
        e("s_add_u32 s%d, s%d, s%d" % (sT0, sT0, sT1))
        e("v_and_b32 %s, 15, v1" % v(vCH))
        e("v_add_u32 %s, s%d, %s" % (v(vCH), sT0, v(vCH)))
        e("v_lshlrev_b32 %s, 3, %s" % (v(vT), v(vCH)))
        self.vmem("buffer_load_dwordx2 %s, %s, %s, 0 offen" % (v(vSK, 2), v(vT), srd(SRD_SH)), "a0")

        e("s_lshr_b32 s%d, s%d, 1" % (sCHL, sWAVE))
        e("s_and_b32 s%d, s%d, 1" % (sHALF, sWAVE))
        vL16 = 9
        e("v_lshlrev_b32 %s, 4, v1" % v(vL16))
        e("s_lshl_b32 s%d, s2, 1" % sT0)
        e("s_add_u32 s%d, s%d, s%d" % (sT0, sT0, sCHL))
        e("s_lshl_b32 s%d, s%d, 12" % (sT0, sT0))
        e("s_lshl_b32 s%d, s%d, 11" % (sT1, sHALF))
        e("s_add_u32 s%d, s%d, s%d" % (sT0, sT0, sT1))
        e("s_mul_i32 s%d, s%d, 8320" % (sT2, sCHL))
        e("s_add_u32 s%d, s%d, s%d" % (sT2, sT2, sT1))
        e("s_add_u32 m0, s%d, %d" % (sT2, L_TS + 32))
        e("s_nop 0")
        for i in range(2):
            self.vmem("buffer_load_dwordx4 %s, %s, s%d offen offset:%d lds" % (v(vL16), srd(SRD_SK), sT0, 1024 * i), "ts")
        if self.tlbwarm:
            self.c("touch every page that is used later (address translation warm-up)")
            vZ = 59
            e("v_mov_b32 %s, 0" % v(vZ))
            e("s_mov_b64 exec, 1")
            for r in (SRD_SK, SRD_WG, SRD_WD, SRD_OUT):
                e("buffer_load_dword v252, %s, %s, 0 offen" % (v(vZ), srd(r)))
            e("v_mov_b32 %s, 1024" % v(vZ))
            e("buffer_load_dword v252, %s, %s, 0 offen" % (v(vZ), srd(SRD_WU)))
            e("s_mov_b64 exec, 0xff")
            e("v_lshlrev_b32 %s, 21, v1" % v(vZ))
            e("buffer_load_dword v252, %s, %s, 0 offen" % (v(vZ), srd(SRD_WS)))
            e("s_mov_b64 exec, -1")
            self.vm += ["tlb"] * 6
        e("s_lshl_b32 s%d, s2, 2" % sT3)
        e("s_load_dword s%d, s[62:63], s%d" % (sD, sT3))

        vTR, vTRH, vG, vR = 13, 14, 15, 16
        e("v_lshrrev_b32 %s, 4, v1" % v(vG))
        e("v_bfe_u32 %s, v1, 2, 2" % v(vR))
        e("v_lshrrev_b32 %s, 1, %s" % (v(vT), v(vR)))
        e("v_and_b32 %s, 1, %s" % (v(vTR), v(vG)))
        e("v_lshl_or_b32 %s, %s, 1, %s" % (v(vT), v(vTR), v(vT)))
        e("v_xor_b32 %s, s%d, %s" % (v(vT), sWAVE, v(vT)))
        e("v_lshlrev_b32 %s, 5, %s" % (v(vT), v(vT)))
        e("v_lshl_add_u32 %s, %s, 3, %s" % (v(vTR), v(vG), v(vR)))
        e("v_lshl_add_u32 %s, %s, 7, %s" % (v(vTR), v(vTR), v(vT)))
        e("v_and_b32 %s, 3, v1" % v(vT))
        e("v_lshl_add_u32 %s, %s, 3, %s" % (v(vTR), v(vT), v(vTR)))
        e("v_add_u32 %s, %d, %s" % (v(vTR), L_K, v(vTR)))
        e("v_xor_b32 %s, 64, %s" % (v(vTRH), v(vTR)))
        vSKV, vSQ = 17, 18
        e("s_lshl_b32 s%d, s%d, 7" % (sT0, sRB))
        e("v_lshlrev_b32 %s, 12, %s" % (v(vSQ), v(vCH)))
        e("v_lshlrev_b32 %s, 4, %s" % (v(vT), v(vG)))
        e("s_sub_u32 s%d, %d, s%d" % (sT1, WS_KVT + 4080 - 64, sT0))
        e("v_add_u32 %s, s%d, %s" % (v(vSKV), sT1, v(vSQ)))
        e("v_sub_u32 %s, %s, %s" % (v(vSKV), v(vSKV), v(vT)))
        e("s_add_u32 s%d, s%d, %d" % (sT1, sT0, WS_QT))
        e("v_add3_u32 %s, %s, %s, s%d" % (v(vSQ), v(vSQ), v(vT), sT1))
        self.wait_vm("a0")
        e("s_waitcnt lgkmcnt(0)")
        self.lg = []
        e("s_lshl_b32 s%d, s%d, 16" % (sT0, sD))
        e("s_and_b32 s%d, s%d, 0xffff0000" % (sT1, sD))
        e("s_cmp_eq_u32 s%d, 0" % sCHL)
        e("s_cselect_b32 s%d, s%d, s%d" % (sD, sT0, sT1))
        e("s_barrier")
        self.stamp(1)

        KH = [24, 34]
        KM = [26, 36]
        VV = [40, 44]
        QQ = [48, 52]
        for rho in range(2):
            self.lds("ds_read_b64_tr_b16 %s, %s offset:%d" % (v(KH[rho], 2), v(vTRH), 512 + 4096 * rho), "k%d" % rho)
            self.lds("ds_read_b64_tr_b16 %s, %s offset:%d" % (v(KM[rho], 2), v(vTR), 1024 + 4096 * rho), "k%d" % rho)
            self.lds("ds_read_b64_tr_b16 %s, %s offset:%d" % (v(KM[rho] + 2, 2), v(vTR), 1024 + 512 + 4096 * rho), "k%d" % rho)
            self.lds("ds_read_b64_tr_b16 %s, %s offset:%d" % (v(VV[rho], 2), v(vTR), L_V - L_K + 4096 * rho), "v%d" % rho)
            self.lds("ds_read_b64_tr_b16 %s, %s offset:%d" % (v(VV[rho] + 2, 2), v(vTR), L_V - L_K + 512 + 4096 * rho), "v%d" % rho)
        for rho in range(2):
            self.lds("ds_read_b64_tr_b16 %s, %s offset:%d" % (v(QQ[rho], 2), v(vTR), L_Q - L_K + 4096 * rho), "q")
            self.lds("ds_read_b64_tr_b16 %s, %s offset:%d" % (v(QQ[rho] + 2, 2), v(vTR), L_Q - L_K + 512 + 4096 * rho), "q")
        CA, CB = 21, 22
        e("v_alignbit_b32 %s, %s, %s, 16" % (v(CA), v(vSK), v(vSK)))
        e("v_alignbit_b32 %s, %s, %s, 16" % (v(CB), v(vSK + 1), v(vSK + 1)))
        MM = 56
        KS = 64
        VF = 72
        OUTR = [80, 84]
        for rho in range(2):
            self.wait_lg("v%d" % rho)
            Dw = [KH[rho], KH[rho] + 1, KM[rho], KM[rho] + 1, KM[rho] + 2, KM[rho] + 3]
            for i in range(5):
                e("v_alignbit_b32 %s, %s, %s, 16" % (v(MM + i), v(Dw[i + 1]), v(Dw[i])))
            for t in range(8):
                if t & 1:
                    p0, p1 = Dw[2 + (t >> 1)], Dw[1 + (t >> 1)]
                else:
                    p0, p1 = MM + 1 + (t >> 1), MM + (t >> 1)
                e("v_dot2_f32_bf16 %s, %s, %s, 0" % (v(KS + t), v(p1), v(CB)))
            for t in range(8):
                if t & 1:
                    p0 = Dw[2 + (t >> 1)]
                else:
                    p0 = MM + 1 + (t >> 1)
                e("v_dot2_f32_bf16 %s, %s, %s, %s" % (v(KS + t), v(p0), v(CA), v(KS + t)))
            for t in range(8):
                src = VV[rho] + (t >> 1)
                if t & 1:
                    e("v_and_b32 %s, 0xffff0000, %s" % (v(VF + t), v(src)))
                else:
                    e("v_lshlrev_b32 %s, 16, %s" % (v(VF + t), v(src)))
            for t in range(8):
                e("v_mul_f32 %s, %s, %s" % (v(KS + t), v(KS + t), v(VF + t)))
            for i in range(4):
                e("v_cvt_pk_bf16_f32 %s, %s, %s" % (v(OUTR[rho] + i), v(KS + 7 - 2 * i), v(KS + 6 - 2 * i)))
            self.vmem("buffer_store_dwordx4 %s, %s, %s, 0 offen offset:%d sc1" % (v(OUTR[rho], 4), v(vSKV), srd(SRD_WS), 64 if rho == 0 else 0), "a0st")
        self.wait_lg("q")
        for rho in range(2):
            self.vmem("buffer_store_dwordx4 %s, %s, %s, 0 offen offset:%d sc1" % (v(QQ[rho], 4), v(vSQ), srd(SRD_WS), 64 * rho), "a0st")
        vGO, vZERO = 23, 58
        e("v_mov_b32 %s, 0" % v(vZERO))
        self.vmem("buffer_load_dword %s, %s, %s, 0 offen offset:%d sc1" % (v(vGO), v(vZERO), srd(SRD_DBG), self.go_off), "go")
        self.stamp(2)

    def t_build(self):
        e = self.e
        vZ, vZA, vRA, vPA = 19, 20, 21, 22
        D0 = 100
        e("v_mov_b32 %s, 0" % v(vZ))
        e("s_mul_i32 s%d, s%d, 8320" % (sT2, sCHL))
        e("s_add_u32 s%d, s%d, %d" % (sT2, sT2, L_TS))
        e("v_lshl_add_u32 %s, v1, 2, s%d" % (v(vPA), sT2))
        e("v_mov_b32 %s, s%d" % (v(vZA), sT2))
        e("v_add_u32 %s, %d, %s" % (v(vZA), 32 + 4096, v(vZA)))
        e("v_cmp_gt_u32 vcc, 8, v1")
        e("s_nop 1")
        e("v_cndmask_b32 %s, %s, %s, vcc" % (v(vZA), v(vZA), v(vPA)))
        e("s_mov_b64 exec, 0x1ff")
        e("ds_write_b32 %s, %s" % (v(vZA), v(vZ)))
        e("s_mov_b64 exec, -1")
        e("s_lshl_b32 s%d, s%d, 11" % (sT1, sHALF))
        e("s_add_u32 s%d, s%d, s%d" % (sT1, sT1, sT2))
        e("s_add_u32 s%d, s%d, 32" % (sT1, sT1))
        e("v_lshl_add_u32 %s, v1, 4, s%d" % (v(vRA), sT1))
        self.wait_vm("ts")
        self.wait_lg0()
        e("s_barrier")
        for c in range(2):
            e("ds_read_b128 %s, %s offset:%d" % (v(D0 + 6 * c, 4), v(vRA), 1024 * c))
            e("ds_read_b32 %s, %s offset:%d" % (v(D0 + 6 * c + 4), v(vRA), 1024 * c + 16))
        e("ds_read2_b32 %s, %s offset0:0 offset1:1" % (v(D0 + 12, 2), v(vPA)))
        e("s_mul_i32 s%d, s%d, 4608" % (sT0, sCHL))
        e("s_lshl_b32 s%d, s%d, 8" % (sT1, sHALF))
        e("s_add_u32 s%d, s%d, s%d" % (sT0, sT0, sT1))
        e("s_add_u32 s%d, s%d, %d" % (sT0, sT0, L_X + 4096))
        e("v_lshl_add_u32 %s, v1, 2, s%d" % (v(vZA), sT0))
        e("ds_write_b32 %s, %s" % (v(vZA), v(vZ)))
        self.wait_lg0()
        O = D0 + 16
        for c in range(2):
            for i in range(4):
                e("v_alignbit_b32 %s, %s, %s, 16" % (v(O + 4 * c + i), v(D0 + 6 * c + i + 1), v(D0 + 6 * c + i)))
        e("v_alignbit_b32 %s, %s, %s, 16" % (v(O + 8), v(D0 + 13), v(D0 + 12)))
        for c in range(2):
            e("ds_write_b128 %s, %s offset:%d" % (v(vRA), v(O + 4 * c, 4), 4160 + 1024 * c))
        e("s_mov_b64 exec, 0xff")
        e("ds_write_b32 %s, %s offset:4160" % (v(vPA), v(O + 8)))
        e("s_mov_b64 exec, -1")
        self.wait_lg0()
        e("s_barrier")

    def w_stage_setup(self):
        e = self.e
        vT = 7
        e("v_lshrrev_b32 %s, 2, v1" % v(vT))
        e("v_mul_u32_u24 %s, 3584, %s" % (v(vT), v(vT)))
        e("v_and_b32 %s, 3, v1" % v(vWS))
        e("v_xor_b32 %s, 2, %s" % (v(vWS + 1), v(vWS)))
        e("v_lshl_add_u32 %s, %s, 4, %s" % (v(vWS), v(vWS), v(vT)))
        e("v_lshl_add_u32 %s, %s, 4, %s" % (v(vWS + 1), v(vWS + 1), v(vT)))
        e("v_add_u32 %s, %d, %s" % (v(vWS + 2), 57344 - 2048, v(vWS)))
        e("v_add_u32 %s, %d, %s" % (v(vWS + 3), 57344 - 2048, v(vWS + 1)))

    def w_stage_items(self, rnd, spanel=None, gstart=0, ngroups=7, sgstart=None):
        e = self.e
        items = []
        sp = sWAVE if spanel is None else spanel

        def setup():
            e("s_lshl_b32 s%d, s%d, 8" % (sWB, sBJ))
            e("s_lshl_b32 s%d, s%d, 6" % (sWM, sp))
            e("s_add_u32 s%d, s%d, s%d" % (sWB, sWB, sWM))
            if rnd:
                e("s_add_u32 s%d, s%d, %d" % (sWB, sWB, 14 * rnd * 57344))
            e("s_mul_i32 s%d, s%d, 28672" % (sWM, sp))
            if L_WST:
                e("s_add_u32 s%d, s%d, %d" % (sWM, sWM, L_WST))
            e("s_and_b32 s%d, s%d, 3" % (sWG, sBI))
            e("s_lshl_b32 s%d, s%d, 1" % (sWG, sWG))
            if sgstart is not None:
                e("s_add_u32 s%d, s%d, s%d" % (sWG, sWG, sgstart))
                e("s_cmp_ge_u32 s%d, 7" % sWG)
                e("s_cselect_b32 s%d, 7, 0" % sWX)
                e("s_sub_u32 s%d, s%d, s%d" % (sWG, sWG, sWX))

        def addr():
            e("s_mul_i32 s%d, s%d, %d" % (sWSO, sWG, 2 * 57344))
            e("s_add_u32 s%d, s%d, s%d" % (sWSO, sWSO, sWB))
            e("s_lshl_b32 s%d, s%d, 12" % (sWX, sWG))
            e("s_add_u32 m0, s%d, s%d" % (sWX, sWM))
        for grp in range(ngroups):
            for n in range(4):
                def one(grp=grp, n=n):
                    if grp == 0 and n == 0:
                        setup()
                        addr()
                        e("s_nop 0")
                    elif n == 0:
                        e("s_add_u32 s%d, s%d, 1" % (sWG, sWG))
                        e("s_cmp_eq_u32 s%d, 7" % sWG)
                        e("s_cselect_b32 s%d, 0, s%d" % (sWG, sWG))
                        addr()
                        e("s_nop 0")
                    self.vmem("buffer_load_dwordx4 %s, %s, s%d offen offset:%d lds" % (v(vWS + (n & 1) + 2 * (n >> 1)), srd(SRD_WG if (n & 1) == 0 else SRD_WU), sWSO, 1024 * n), "w%d" % rnd)
                items.append(one)
        return items

    def w_stage_read_setup(self, vB0, vB1):
        e = self.e
        vT, vU = 7, 4
        e("v_bfe_u32 %s, v1, 4, 1" % v(vT))
        e("v_lshrrev_b32 %s, 5, v1" % v(vU))
        e("v_lshlrev_b32 %s, 3, %s" % (v(vU), v(vU)))
        e("v_bfe_u32 %s, v1, 2, 2" % v(vB0))
        e("v_add_u32 %s, %s, %s" % (v(vU), v(vU), v(vB0)))
        e("v_lshlrev_b32 %s, 6, %s" % (v(vU), v(vU)))
        e("v_and_b32 %s, 3, v1" % v(vB0))
        e("v_lshl_add_u32 %s, %s, 3, %s" % (v(vU), v(vB0), v(vU)))
        e("v_mul_u32_u24 %s, 1056, %s" % (v(vT), v(vT)))
        e("s_mul_i32 s%d, s%d, 28672" % (sT0, sWAVE))
        e("v_add3_u32 %s, %s, %s, s%d" % (v(vB0), v(vU), v(vT), sT0))
        e("v_xor_b32 %s, 32, %s" % (v(vB1), v(vB0)))

    def w_stage_read_items(self, rnd, vB0, vB1):
        items = []
        for s in range(14):
            for ft in range(2):
                base = 8 * (14 * rnd + s) + 4 * ft
                for ee in range(2):
                    items.append("ds_read_b64_tr_b16 %s, %s offset:%d" % (a(base + 2 * ee, 2), v(vB0 if ft == 0 else vB1), L_WST + 2048 * s + 256 * ee))
        return items

    def w_stage_read(self, rnd):
        self.c("W staging -> AGPR round %d" % rnd)
        self.wait_vm("w%d" % rnd)
        for line in self.w_stage_read_items(rnd, vWRD, vWRD + 1):
            self.lds(line, "wr")

    def t_read(self):
        e = self.e
        self.c("T fragments -> a112..a239")
        vB, vT, vU = 240, 7, 4
        e("v_and_b32 %s, 15, v1" % v(vT))
        e("v_and_b32 %s, 1, %s" % (v(vU), v(vT)))
        e("v_add_u32 %s, %s, %s" % (v(vT), v(vT), v(vU)))
        e("v_lshrrev_b32 %s, 4, v1" % v(vB))
        e("v_lshl_add_u32 %s, %s, 3, %s" % (v(vT), v(vB), v(vT)))
        e("v_lshlrev_b32 %s, 1, %s" % (v(vT), v(vT)))
        e("v_xor_b32 %s, 1, %s" % (v(vU), v(vU)))
        e("v_mul_u32_u24 %s, 4160, %s" % (v(vU), v(vU)))
        e("s_mul_i32 s%d, s%d, 8320" % (sT0, sCHL))
        e("s_lshl_b32 s%d, s%d, 8" % (sT1, sHALF))
        e("s_add_u32 s%d, s%d, s%d" % (sT0, sT0, sT1))
        e("s_add_u32 s%d, s%d, %d" % (sT0, sT0, L_TS))
        e("v_add3_u32 %s, %s, %s, s%d" % (v(vB), v(vT), v(vU), sT0))
        for i in range(1, 4):
            e("v_add_u32 %s, %d, %s" % (v(vB + i), 1024 * i, v(vB)))
        items = []
        for rr in range(4):
            for q in range(8):
                base = 112 + 4 * (8 * rr + q)
                o = 128 * (q & 1) + 16 * rr
                for hh in range(2):
                    items.append("ds_read2_b32 %s, %s offset0:%d offset1:%d" % (a(base + 2 * hh, 2), v(vB + (q >> 1)), o + 2 * hh, o + 2 * hh + 1))
        return items

    def pre_signal(self):
        e = self.e
        self.t_build()
        titems = self.t_read()
        lab0, labj = self.newlabel("p0"), self.newlabel("pj")
        e("s_cmp_eq_u32 s%d, 0" % sWAVE)
        e("s_cbranch_scc1 %s" % lab0)
        save = list(self.vm)
        self.w0_own = self.w_stage_items(0)
        t = list(titems)
        npre = self.npre
        for it in self.w0_own[:npre]:
            it()
            for _ in range(64 // npre):
                e(t.pop(0))
        while t:
            e(t.pop(0))
        self.wait_vm("go")
        self.vm = list(save)
        e("s_branch %s" % labj)
        self.label(lab0)
        for line in titems:
            e(line)
        self.wait_vm("go")
        self.label(labj)

    def window1(self, vL16):
        e = self.e
        lab0, labj = self.newlabel("w0"), self.newlabel("wj")
        e("s_cmp_eq_u32 s%d, 0" % sWAVE)
        e("s_cbranch_scc1 %s" % lab0)
        if self.prefetch:
            vP = 59
            e("s_mul_i32 s%d, s2, 7168" % sT0)
            e("s_sub_u32 s%d, s%d, 1" % (sT1, sWAVE))
            e("s_mul_i32 s%d, s%d, %d" % (sT1, sT1, 19 * 128))
            e("s_add_u32 s%d, s%d, s%d" % (sT0, sT0, sT1))
            e("v_lshl_add_u32 %s, v1, 7, s%d" % (v(vP), sT0))
            e("s_mov_b64 exec, 0x7ffff")
            e("buffer_load_dword v252, %s, %s, 0 offen" % (v(vP), srd(SRD_WG)))
            e("buffer_load_dword v252, %s, %s, 0 offen offset:1024" % (v(vP), srd(SRD_WU)))
            e("buffer_load_dword v252, %s, %s, 0 offen" % (v(vP), srd(SRD_WD)))
            e("s_mov_b64 exec, -1")
        save = list(self.vm)
        for it in self.w0_own[self.npre:]:
            it()
        sPAN, sGST = 72, 73
        e("s_mov_b32 s%d, 0" % sPAN)
        e("s_lshl_b32 s%d, s%d, 1" % (sGST, sWAVE))
        e("s_sub_u32 s%d, s%d, 1" % (sGST, sGST))
        e("s_cmp_eq_u32 s%d, 1" % sWAVE)
        e("s_cselect_b32 s%d, 0, s%d" % (sGST, sGST))
        sh = self.w_stage_items(0, spanel=sPAN, ngroups=3, sgstart=sGST)
        for it in sh[:8]:
            it()
        lab3 = self.newlabel("w3")
        e("s_cmp_eq_u32 s%d, 1" % sWAVE)
        e("s_cbranch_scc0 %s" % lab3)
        for it in sh[8:]:
            it()
        self.label(lab3)
        self.vm = save
        e("s_waitcnt vmcnt(0) lgkmcnt(0)")
        e("s_branch %s" % labj)
        self.label(lab0)
        vA, vTg, vTmp = 21, 22, 23
        e("s_and_b32 s%d, s2, 7" % sT1)
        e("s_lshl_b32 s%d, s%d, 8" % (sT1, sT1))
        e("s_add_u32 s%d, s%d, %d" % (sT1, sT1, WS_CNT + 256 * C_SL1))
        e("s_lshr_b32 s%d, s2, 5" % sT0)
        e("s_lshl_b32 s%d, s%d, 8" % (sT0, sT0))
        e("s_add_u32 s%d, s%d, %d" % (sT0, sT0, WS_CNT + 256 * C_S1))
        e("v_mov_b32 %s, s%d" % (v(vA), sT0))
        e("v_mov_b32 %s, s%d" % (v(vTmp), sT1))
        e("v_cmp_gt_u32 vcc, 32, v1")
        e("s_nop 1")
        e("v_cndmask_b32 %s, %s, %s, vcc" % (v(vA), v(vTmp), v(vA)))
        e("v_mov_b32 %s, 32" % v(vTg))
        self.spin(vA, vTg, vTmp)
        self.stamp(4)
        e("s_lshl_b32 s%d, s2, 13" % sT0)
        if WS_KVT:
            e("s_add_u32 s%d, s%d, %d" % (sT0, sT0, WS_KVT))
        e("s_mov_b32 m0, %d" % L_X)
        e("s_nop 0")
        for i in range(4):
            e("buffer_load_dwordx4 %s, %s, s%d offen offset:%d sc1 lds" % (v(vL16), srd(SRD_WS), sT0, 1024 * i))
        e("s_add_u32 s%d, s%d, 4096" % (sT0, sT0))
        e("s_mov_b32 m0, %d" % (L_X + 4608))
        e("s_nop 0")
        for i in range(4):
            e("buffer_load_dwordx4 %s, %s, s%d offen offset:%d sc1 lds" % (v(vL16), srd(SRD_WS), sT0, 1024 * i))
        e("s_mov_b32 s%d, %d" % (sT0, WS_ST1))
        for grp in range(4):
            e("s_mov_b32 m0, %d" % (L_EX + 4096 * grp))
            e("s_nop 0")
            for i in range(4):
                e("buffer_load_dwordx4 %s, %s, s%d offen offset:%d sc1 lds" % (v(vL16), srd(SRD_WS), sT0, 1024 * i))
            if grp != 3:
                e("s_add_u32 s%d, s%d, 4096" % (sT0, sT0))
        e("s_waitcnt vmcnt(16) lgkmcnt(0)")
        self.label(labj)
        self.vm = ["w0"]
        self.lg = []
        e("s_barrier")

    def phase_a1(self):
        e = self.e
        self.c("==== A1 ====")
        ACC = 32
        XF = [64, 96]
        QR, KVR, AR, BR = 128, 136, 144, 160
        LN, KD, QF = 176, 192, 208
        Y = 224
        vT, vU = 7, 4
        vL16 = 9
        e("v_lshlrev_b32 %s, 4, v1" % v(vL16))
        e("s_lshl_b32 s%d, s2, 1" % sT0)
        e("s_add_u32 s%d, s%d, s%d" % (sT0, sT0, sCHL))
        e("s_lshl_b32 s%d, s%d, 12" % (sT0, sT0))
        vTL = 5
        e("v_and_b32 %s, 15, v1" % v(vT))
        e("v_lshrrev_b32 %s, 4, v1" % v(vU))
        e("v_lshlrev_b32 %s, 2, %s" % (v(vU), v(vU)))
        e("v_lshl_add_u32 %s, %s, 4, %s" % (v(vTL), v(vT), v(vU)))
        e("s_lshl_b32 s%d, s%d, 10" % (sT1, sHALF))
        e("v_add_u32 %s, s%d, %s" % (v(vTL), sT1, v(vTL)))
        vQA, vSA = 6, 8
        e("s_add_u32 s%d, s%d, %d" % (sT2, sT0, WS_QT))
        e("v_lshl_add_u32 %s, %s, 1, s%d" % (v(vQA), v(vTL), sT2))
        e("v_lshlrev_b32 %s, 2, %s" % (v(vSA), v(vTL)))
        e("s_mov_b32 s%d, %d" % (sT4, WS_ST1))
        e("s_mov_b32 s%d, %d" % (sT5, WS_ST1 + 8192))
        vXB, vKVA, vEW, vER = 10, 11, 12, 13
        e("v_and_b32 %s, 15, v1" % v(vT))
        e("v_lshrrev_b32 %s, 4, v1" % v(vU))
        e("v_lshlrev_b32 %s, 4, %s" % (v(vU), v(vU)))
        e("v_lshlrev_b32 %s, 5, %s" % (v(vT), v(vT)))
        e("v_sub_u32 %s, %s, %s" % (v(vXB), v(vU), v(vT)))
        e("s_mul_i32 s%d, s%d, 4608" % (sT0, sCHL))
        e("s_lshl_b32 s%d, s%d, 8" % (sT1, sHALF))
        e("s_add_u32 s%d, s%d, s%d" % (sT1, sT1, sT0))
        e("s_add_u32 s%d, s%d, %d" % (sT1, sT1, L_X + 480))
        e("v_add_u32 %s, s%d, %s" % (v(vXB), sT1, v(vXB)))
        e("s_add_u32 s%d, s%d, %d" % (sT1, sT0, L_X + 4088 - 1536))
        e("v_lshlrev_b32 %s, 1, %s" % (v(vT), v(vTL)))
        e("v_sub_u32 %s, s%d, %s" % (v(vKVA), sT1, v(vT)))
        e("s_lshl_b32 s%d, s%d, 12" % (sT0, sWAVE))
        e("s_add_u32 s%d, s%d, %d" % (sT1, sT0, L_TS))
        e("v_add_u32 %s, s%d, %s" % (v(vEW), sT1, v(vL16)))
        e("s_xor_b32 s%d, s%d, 0x1000" % (sT0, sT0))
        e("s_add_u32 s%d, s%d, %d" % (sT1, sT0, L_TS))
        e("v_add_u32 %s, s%d, %s" % (v(vER), sT1, v(vL16)))
        vHO = 14
        vRow = 15
        e("v_lshrrev_b32 %s, 4, v1" % v(vRow))
        e("v_and_b32 %s, 15, v1" % v(vT))
        e("v_lshrrev_b32 %s, 1, %s" % (v(vU), v(vT)))
        e("v_and_b32 %s, 1, %s" % (v(vHO), v(vRow)))
        e("v_lshl_add_u32 %s, %s, 3, %s" % (v(vU), v(vHO), v(vU)))
        e("v_mul_u32_u24 %s, 28672, %s" % (v(vHO), v(vU)))
        e("v_and_b32 %s, 1, %s" % (v(vT), v(vT)))
        e("v_lshl_add_u32 %s, %s, 5, %s" % (v(vHO), v(vT), v(vHO)))
        e("v_lshrrev_b32 %s, 1, %s" % (v(vRow), v(vRow)))
        e("v_lshl_add_u32 %s, %s, 4, %s" % (v(vHO), v(vRow), v(vHO)))
        e("s_lshl_b32 s%d, s2, 1" % sT0)
        e("s_add_u32 s%d, s%d, s%d" % (sT0, sT0, sCHL))
        e("s_lshl_b32 s%d, s%d, 6" % (sT0, sT0))
        e("s_mul_i32 s%d, s%d, %d" % (sT1, sHALF, 32 * 28672))
        e("s_add_u32 s%d, s%d, s%d" % (sT0, sT0, sT1))
        e("s_add_u32 s%d, s%d, %d" % (sT6, sT0, WS_HB))
        e("s_add_u32 s%d, s%d, %d" % (sT7, sT6, 16 * 28672))
        vABR = 16
        e("v_lshl_add_u32 %s, %s, 2, 0" % (v(vABR), v(vTL)))
        e("v_add_u32 %s, %d, %s" % (v(vABR), L_EX, v(vABR)))
        self.window1(vL16)
        self.stamp(5)

        def xread(rr):
            for m in range(8):
                self.lds("ds_read_b128 %s, %s offset:%d" % (v(XF[rr & 1] + 4 * m, 4), v(vXB), 512 * (7 - m) + 64 * rr), "x%d" % rr)

        F = [[], [], [], []]

        def pair(lst, items):
            for i in range(0, len(items), 2):
                lst.append(items[i:i + 2])
        wr = [("lds", x, "wr") for x in self.w_stage_read_items(0, vWRD, vWRD + 1)]
        pair(F[0], wr)
        w1 = self.w_stage_items(1)
        NW1 = self.nw1
        self.w1_rest = w1[NW1:]
        rest = []
        for cc in range(4):
            rest.append([("lds", "ds_read_b64 %s, %s offset:%d" % (v(KVR + 2 * cc, 2), v(vKVA), 512 * (3 - cc)), "kv"),
                         ("vm", "buffer_load_dwordx2 %s, %s, %s, 0 offen offset:%d sc1" % (v(QR + 2 * cc, 2), v(vQA), srd(SRD_WS), 512 * cc), "q")])
        for cc in range(4):
            rest.append([("lds", "ds_read_b128 %s, %s offset:%d" % (v(AR + 4 * cc, 4), v(vABR), 1024 * cc), "ab"),
                         ("lds", "ds_read_b128 %s, %s offset:%d" % (v(BR + 4 * cc, 4), v(vABR), 8192 + 1024 * cc), "ab")])
        it = []
        for cc in range(4):
            for i in range(4):
                src = KVR + 2 * cc + (1 - (i >> 1))
                if i & 1:
                    it.append(("v", "v_lshlrev_b32 %s, 16, %s" % (v(KD + 4 * cc + i), v(src))))
                else:
                    it.append(("v", "v_and_b32 %s, 0xffff0000, %s" % (v(KD + 4 * cc + i), v(src))))
        it[0:0] = []
        rest.append([("waitlg", "kv"), it[0]])
        rest += [[x] for x in it[1:]]
        rest += [[("v", "v_mul_f32 %s, s%d, %s" % (v(KD + x), sD, v(KD + x)))] for x in range(16)]
        qf = []
        for cc in range(4):
            for i in range(4):
                src = QR + 2 * cc + (i >> 1)
                if i & 1:
                    qf.append(("v", "v_and_b32 %s, 0xffff0000, %s" % (v(QF + 4 * cc + i), v(src))))
                else:
                    qf.append(("v", "v_lshlrev_b32 %s, 16, %s" % (v(QF + 4 * cc + i), v(src))))
        rest.append([("waitvm", "q"), qf[0]])
        rest += [[x] for x in qf[1:]]
        ln = [("v", "v_fma_f32 %s, %s, %s, %s" % (v(LN + x), v(QF + x), v(AR + x), v(BR + x))) for x in range(16)]
        rest.append([("waitlg", "ab"), ln[0]])
        rest += [[x] for x in ln[1:]]
        slots = [(1, 28), (2, 28), (3, 36)]
        nslot = sum(n for _, n in slots)
        nrest = len(rest)
        k = 0
        gslot = 0
        first_w = 4
        for rnd_, n in slots:
            for slot in range(n):
                left = nslot - gslot
                want_w = k < NW1 and gslot >= first_w and (gslot - first_w) * NW1 >= k * (nslot - first_w - 6)
                entry = []
                if want_w:
                    if k == 0:
                        entry.append(("waitlg", "wr"))
                    entry.append(("fn", w1[k]))
                    k += 1
                if rest and (not want_w or len(rest) >= left):
                    entry += rest.pop(0)
                F[rnd_].append(entry)
                gslot += 1
        assert k == NW1 and not rest, (k, len(rest))

        def run(entry):
            for it in entry:
                if it[0] == "v":
                    e(it[1])
                elif it[0] == "lds":
                    self.lds(it[1], it[2])
                elif it[0] == "vm":
                    self.vmem(it[1], it[2])
                elif it[0] == "fn":
                    it[1]()
                elif it[0] == "waitvm":
                    self.wait_vm(it[1])
                elif it[0] == "waitlg":
                    self.wait_lg(it[1])

        xread(0)
        for rr in range(4):
            if rr == 1:
                self.wait_vm("w0")
                e("s_barrier")
            self.wait_lg("x%d" % rr)
            cnt = 0
            fl = list(F[rr])
            for q in range(8):
                for c in range(q, 8):
                    m = c - q
                    srcc = "0" if (rr == 0 and q == 0) else v(ACC + 4 * c, 4)
                    e("v_mfma_f32_16x16x32_bf16 %s, %s, %s, %s" % (v(ACC + 4 * c, 4), a(112 + 4 * (8 * rr + q), 4), v(XF[rr & 1] + 4 * m, 4), srcc))
                    cnt += 1
                    if rr < 3 and cnt <= 8:
                        m2 = cnt - 1
                        self.lds("ds_read_b128 %s, %s offset:%d" % (v(XF[(rr + 1) & 1] + 4 * m2, 4), v(vXB), 512 * (7 - m2) + 64 * (rr + 1)), "x%d" % (rr + 1))
                    elif fl:
                        run(fl.pop(0))
            for entry in fl:
                run(entry)
        self.stamp(6)
        e("s_nop 7")
        lab1, lab2 = self.newlabel("h1"), self.newlabel("hj")
        TMP = XF[0]
        e("s_cmp_eq_u32 s%d, 0" % sHALF)
        e("s_cbranch_scc0 %s" % lab1)
        for cc in range(4):
            e("ds_write_b128 %s, %s offset:%d" % (v(vEW), v(ACC + 16 + 4 * cc, 4), 1024 * cc))
        for x in range(16):
            e("v_add_f32 %s, %s, %s" % (v(Y + x), v(ACC + x), v(KD + x)))
        e("s_branch %s" % lab2)
        self.label(lab1)
        for cc in range(4):
            e("ds_write_b128 %s, %s offset:%d" % (v(vEW), v(ACC + 4 * cc, 4), 1024 * cc))
        for x in range(16):
            e("v_add_f32 %s, %s, %s" % (v(Y + x), v(ACC + 16 + x), v(KD + x)))
        self.label(lab2)
        e("s_waitcnt lgkmcnt(0)")
        self.lg = []
        e("s_barrier")
        for cc in range(4):
            self.lds("ds_read_b128 %s, %s offset:%d" % (v(TMP + 4 * cc, 4), v(vER), 1024 * cc), "ex%d" % cc)
        P = XF[0] + 16
        for cc in range(4):
            self.wait_lg("ex%d" % cc)
            for i in range(4):
                x = 4 * cc + i
                e("v_add_f32 %s, %s, %s" % (v(Y + x), v(Y + x), v(TMP + x)))
            for i in range(4):
                x = 4 * cc + i
                e("v_fma_f32 %s, %s, %s, %s" % (v(Y + x), v(LN + x), v(Y + x), v(QF + x)))
            e("v_cvt_pk_bf16_f32 %s, %s, %s" % (v(P + 2 * cc), v(Y + 4 * cc), v(Y + 4 * cc + 1)))
            e("v_cvt_pk_bf16_f32 %s, %s, %s" % (v(P + 2 * cc + 1), v(Y + 4 * cc + 2), v(Y + 4 * cc + 3)))
            if cc & 1:
                b = P + 2 * (cc - 1)
                e("s_nop 1")
                e("v_permlane16_swap_b32 %s, %s" % (v(b), v(b + 2)))
                e("v_permlane16_swap_b32 %s, %s" % (v(b + 1), v(b + 3)))
                self.vmem("buffer_store_dwordx4 %s, %s, %s, s%d offen sc1" % (v(b, 4), v(vHO), srd(SRD_WS), sT6 if cc == 1 else sT7), "hst")
        self.stamp(7)

    def helper(self):
        e = self.e
        self.label("L_helper")
        self.in_helper = True
        self.vm = []
        self.lg = []
        self.c("==== helper ====")
        sH = sRB
        e("s_sub_u32 s%d, s2, 224" % sH)
        vT, vU, vZ = 7, 4, 5
        e("v_mov_b32 %s, 0" % v(vZ))
        FR = 32
        vQ = 6
        e("s_lshl_b32 s%d, s%d, 6" % (sT0, sH))
        e("s_lshl_b32 s%d, s%d, 4" % (sT1, sWAVE))
        e("s_add_u32 s%d, s%d, s%d" % (sT0, sT0, sT1))
        e("v_and_b32 %s, 15, v1" % v(vT))
        e("v_add_u32 %s, s%d, %s" % (v(8), sT0, v(vT)))
        e("v_mul_u32_u24 %s, 896, %s" % (v(vQ), v(8)))
        e("v_lshrrev_b32 %s, 4, v1" % v(vU))
        e("v_lshl_add_u32 %s, %s, 4, %s" % (v(vQ), v(vU), v(vQ)))
        for s in range(14):
            self.vmem("buffer_load_dwordx4 %s, %s, %s, 0 offen offset:%d" % (v(FR + 4 * s, 4), v(vQ), srd(SRD_Q), 64 * s), "q")
        lab = self.newlabel("hz")
        e("s_cmp_eq_u32 s%d, 0" % sWAVE)
        e("s_cbranch_scc0 %s" % lab)
        e("s_lshl_b32 s%d, s%d, 8" % (sT0, sH))
        e("s_add_u32 s%d, s%d, %d" % (sT0, sT0, WS_ST2))
        e("v_lshl_add_u32 %s, v1, 2, s%d" % (v(vT), sT0))
        e("buffer_store_dword %s, %s, %s, 0 offen sc1" % (v(vZ), v(vT), srd(SRD_WS)))
        self.label(lab)
        lab = self.newlabel("hc")
        e("s_cmp_eq_u32 s%d, 0" % sH)
        e("s_cbranch_scc0 %s" % lab)
        e("v_lshlrev_b32 %s, 8, v0" % v(vT))
        e("v_add_u32 %s, %d, %s" % (v(vT), WS_CNT, v(vT)))
        e("v_cmp_gt_u32 vcc, %d, v0" % N_CNT)
        e("s_and_saveexec_b64 s[%d:%d], vcc" % (sEX, sEX + 1))
        lab2 = self.newlabel("hc2")
        e("s_cbranch_execz %s" % lab2)
        e("buffer_store_dword %s, %s, %s, 0 offen sc1" % (v(vZ), v(vT), srd(SRD_WS)))
        self.label(lab2)
        e("s_mov_b64 exec, s[%d:%d]" % (sEX, sEX + 1))
        e("s_waitcnt vmcnt(0)")
        e("s_barrier")
        e("v_mov_b32 %s, 1" % v(vU))
        lab3 = self.newlabel("hc3")
        e("s_cmp_eq_u32 s%d, 0" % sWAVE)
        e("s_cbranch_scc0 %s" % lab3)
        e("s_mov_b64 exec, 1")
        e("buffer_store_dword %s, %s, %s, 0 offen offset:%d sc1" % (v(vU), v(vZ), srd(SRD_DBG), self.go_off))
        e("s_mov_b64 exec, -1")
        self.label(lab3)
        self.label(lab)
        ONES = 16
        for i in range(4):
            e("v_mov_b32 %s, 0x3f803f80" % v(ONES + i))
        self.wait_vm("q")
        GR, SM = 20, 24
        self.stats_mfma(lambda s: FR + 4 * s, ONES, GR, SM, None)
        A_, B_ = 28, 29
        self.stats_finish(GR, SM, A_, B_, None)
        e("v_lshlrev_b32 %s, 2, %s" % (v(vT), v(8)))
        e("s_mov_b32 s%d, %d" % (sT4, WS_ST1))
        e("s_mov_b32 s%d, %d" % (sT5, WS_ST1 + 8192))
        e("s_mov_b32 exec_lo, 0x00f0000f")
        e("s_mov_b32 exec_hi, 0xf0000f00")
        self.vmem("buffer_store_dword %s, %s, %s, s%d offen sc1" % (v(A_), v(vT), srd(SRD_WS), sT4), "st")
        self.vmem("buffer_store_dword %s, %s, %s, s%d offen sc1" % (v(B_), v(vT), srd(SRD_WS), sT5), "st")
        e("s_mov_b64 exec, -1")
        vGO = 30
        loop, done = self.newlabel("go"), self.newlabel("god")
        e("s_mov_b32 s%d, %d" % (sSPIN, SPIN_LIMIT))
        self.label(loop)
        e("buffer_load_dword %s, %s, %s, 0 offen offset:%d sc1" % (v(vGO), v(vZ), srd(SRD_DBG), self.go_off))
        e("s_waitcnt vmcnt(0)")
        self.vm = []
        e("v_cmp_eq_u32 vcc, 0, %s" % v(vGO))
        e("s_nop 4")
        e("s_cbranch_vccz %s" % done)
        e("s_sub_u32 s%d, s%d, 1" % (sSPIN, sSPIN))
        e("s_cmp_lg_u32 s%d, 0" % sSPIN)
        e("s_cbranch_scc1 %s" % loop)
        self.label(done)
        e("s_barrier")
        e("v_lshlrev_b32 %s, 8, v1" % v(vT))
        e("v_add_u32 %s, %d, %s" % (v(vT), WS_CNT + 256 * C_SL1, v(vT)))
        e("v_mov_b32 %s, 1" % v(vU))
        self.signal(vT, vU, 8)
        self.stamp(3)
        if self.stop in ("a0", "a1"):
            self.wait_all()
            e("s_endpgm")
            return
        MK = 40
        for i in range(4):
            e("v_mov_b32 %s, -1" % v(MK + i))
        e("v_lshlrev_b32 v9, 4, v1")
        e("s_mul_i32 s%d, s%d, 229376" % (sT0, sH))
        e("s_mul_i32 s%d, s%d, 57344" % (sT1, sWAVE))
        e("s_add_u32 s%d, s%d, s%d" % (sT0, sT0, sT1))
        e("s_add_u32 s%d, s%d, %d" % (sT0, sT0, WS_HF))
        for grp in range(14):
            for i in range(4):
                e("buffer_store_dwordx4 %s, v9, %s, s%d offen offset:%d sc1" % (v(MK, 4), srd(SRD_WS), sT0, 1024 * i))
            if grp != 13:
                e("s_add_u32 s%d, s%d, 4096" % (sT0, sT0))
                e("s_waitcnt vmcnt(%d)" % self.fill_depth)
        e("s_waitcnt vmcnt(0)")
        e("s_barrier")
        e("v_lshlrev_b32 %s, 8, v1" % v(vT))
        e("v_add_u32 %s, %d, %s" % (v(vT), WS_CNT + 256 * C_FH, v(vT)))
        e("v_mov_b32 %s, 1" % v(vU))
        self.signal(vT, vU, 8)
        self.stamp(4)
        e("v_and_b32 %s, 15, v1" % v(vT))
        e("v_lshlrev_b32 %s, 8, %s" % (v(vT), v(vT)))
        e("s_and_b32 s%d, s2, 7" % sT0)
        e("s_lshl_b32 s%d, s%d, 12" % (sT0, sT0))
        e("s_add_u32 s%d, s%d, %d" % (sT0, sT0, WS_CNT + 256 * C_S2))
        e("v_add_u32 %s, s%d, %s" % (v(vT), sT0, v(vT)))
        e("v_mov_b32 %s, 14" % v(vU))
        self.poll(vT, vU, vGO)
        self.stamp(8)
        e("s_lshr_b32 s%d, s%d, 1" % (sT0, sH))
        e("s_lshl_b32 s%d, s%d, 2" % (sT0, sT0))
        e("s_and_b32 s%d, s%d, 1" % (sT1, sH))
        e("s_add_u32 s%d, s%d, s%d" % (sT0, sT0, sT1))
        e("s_mul_i32 s%d, s%d, 28672" % (sT2, sT0))
        e("s_add_u32 s%d, s%d, %d" % (sT2, sT2, WS_HB))
        vL16 = 9
        e("v_lshlrev_b32 %s, 4, v1" % v(vL16))
        e("s_mul_i32 s%d, s%d, 7168" % (sT3, sWAVE))
        for blk in range(2):
            e("s_add_u32 s%d, s%d, s%d" % (sT4, sT2, sT3))
            if blk:
                e("s_add_u32 s%d, s%d, %d" % (sT4, sT4, 2 * 28672))
            e("s_add_u32 m0, s%d, %d" % (sT3, 28672 * blk))
            e("s_nop 0")
            for i in range(4):
                self.vmem("buffer_load_dwordx4 %s, %s, s%d offen offset:%d sc1 lds" % (v(vL16), srd(SRD_WS), sT4, 1024 * i), "hb%d" % blk)
            e("s_add_u32 s%d, s%d, 4096" % (sT4, sT4))
            e("s_add_u32 m0, s%d, %d" % (sT3, 28672 * blk + 4096))
            e("s_nop 0")
            for i in range(3):
                self.vmem("buffer_load_dwordx4 %s, %s, s%d offen offset:%d sc1 lds" % (v(vL16), srd(SRD_WS), sT4, 1024 * i), "hb%d" % blk)
        vA, vPX = 10, 14
        e("v_lshrrev_b32 %s, 4, v1" % v(vT))
        e("v_bfe_u32 %s, v1, 2, 2" % v(vU))
        e("v_lshl_add_u32 %s, %s, 3, %s" % (v(vT), v(vT), v(vU)))
        e("v_lshlrev_b32 %s, 6, %s" % (v(vT), v(vT)))
        e("v_and_b32 %s, 3, v1" % v(vU))
        e("v_lshl_add_u32 %s, %s, 3, %s" % (v(vA), v(vU), v(vT)))
        e("s_lshr_b32 s%d, s%d, 1" % (sT4, sWAVE))
        e("s_mul_i32 s%d, s%d, %d" % (sT4, sT4, 7 * 2048))
        e("s_and_b32 s%d, s%d, 1" % (sT5, sWAVE))
        e("s_lshl_b32 s%d, s%d, 5" % (sT5, sT5))
        e("s_add_u32 s%d, s%d, s%d" % (sT4, sT4, sT5))
        e("v_add_u32 %s, s%d, %s" % (v(vA), sT4, v(vA)))
        e("s_lshl_b32 s%d, s%d, 9" % (sT4, sWAVE))
        e("s_add_u32 s%d, s%d, 57344" % (sT4, sT4))
        e("v_lshl_add_u32 %s, v1, 3, s%d" % (v(vPX), sT4))
        vRW = 15
        e("s_lshl_b32 s%d, s%d, 5" % (sT4, sT0))
        e("s_and_b32 s%d, s%d, 1" % (sT5, sWAVE))
        e("s_lshl_b32 s%d, s%d, 4" % (sT5, sT5))
        e("s_add_u32 s%d, s%d, s%d" % (sT4, sT4, sT5))
        e("s_lshl_b32 s%d, s%d, 2" % (sT4, sT4))
        e("s_add_u32 s%d, s%d, %d" % (sT4, sT4, WS_ST2))
        e("v_and_b32 %s, 15, v1" % v(vT))
        e("v_lshl_add_u32 %s, %s, 2, s%d" % (v(vRW), v(vT), sT4))
        PK = 28
        for blk in range(2):
            self.wait_vm("hb%d" % blk)
            e("s_barrier")
            for s_ in range(7):
                for ee in range(2):
                    self.lds("ds_read_b64_tr_b16 %s, %s offset:%d" % (v(FR + 4 * s_ + 2 * ee, 2), v(vA), 28672 * blk + 2048 * s_ + 256 * ee), "f%d" % s_)
            self.stats_mfma(lambda s_: FR + 4 * s_, ONES, GR, SM, lambda s_: self.wait_lg("f%d" % s_), n=7)
            self.stats_diag(GR, 11)
            e("v_mov_b32 %s, %s" % (v(12), v(SM)))
            e("v_mov_b32 v60, v11")
            e("v_mov_b32 v61, v12")
            self.lds("ds_write_b64 %s, v[60:61] offset:%d" % (v(vPX), 2048 * blk), "px")
            self.wait_lg0()
            e("s_barrier")
            e("v_xor_b32 %s, 1024, %s" % (v(13), v(vPX)))
            self.lds("ds_read_b64 v[62:63], %s offset:%d" % (v(13), 2048 * blk), "px")
            self.wait_lg0()
            e("v_add_f32 v11, v60, v62")
            e("v_add_f32 %s, v61, v63" % v(SM))
            self.stats_finish(None, SM, None, None, PK)
            lab = self.newlabel("hs")
            e("s_cmp_lt_u32 s%d, 2" % sWAVE)
            e("s_cbranch_scc0 %s" % lab)
            e("s_mov_b32 exec_lo, 0x00f0000f")
            e("s_mov_b32 exec_hi, 0xf0000f00")
            e("buffer_store_dword %s, %s, %s, 0 offen offset:%d sc1" % (v(PK), v(vRW), srd(SRD_WS), 256 * blk))
            e("s_mov_b64 exec, -1")
            self.label(lab)
        self.stamp(9)
        self.wait_all()
        e("s_endpgm")

    def stats_mfma(self, frag, ONES, GR, SM, pre, n=14):
        e = self.e
        for s in range(n):
            if pre:
                pre(s)
            f = frag(s)
            e("v_mfma_f32_16x16x32_bf16 %s, %s, %s, %s" % (v(GR, 4), v(f, 4), v(f, 4), "0" if s == 0 else v(GR, 4)))
            e("v_mfma_f32_16x16x32_bf16 %s, %s, %s, %s" % (v(SM, 4), v(ONES, 4), v(f, 4), "0" if s == 0 else v(SM, 4)))
        e("s_nop 7")

    def stats_diag(self, GR, t0):
        e = self.e
        e("s_mov_b32 s%d, 0x22222222" % sT6)
        e("s_mov_b32 s%d, 0x22222222" % sT7)
        e("v_cndmask_b32 %s, %s, %s, s[%d:%d]" % (v(t0), v(GR), v(GR + 1), sT6, sT7))
        e("s_mov_b32 s%d, 0x44444444" % sT6)
        e("s_mov_b32 s%d, 0x44444444" % sT7)
        e("v_cndmask_b32 %s, %s, %s, s[%d:%d]" % (v(t0), v(t0), v(GR + 2), sT6, sT7))
        e("s_mov_b32 s%d, 0x88888888" % sT6)
        e("s_mov_b32 s%d, 0x88888888" % sT7)
        e("v_cndmask_b32 %s, %s, %s, s[%d:%d]" % (v(t0), v(t0), v(GR + 3), sT6, sT7))

    def stats_finish(self, GR, SM, A_, B_, PK):
        e = self.e
        t0, t1, t2 = 11, 12, 13
        if GR is not None:
            self.stats_diag(GR, t0)
        e("s_mov_b32 s%d, 0x3b124925" % sT6)
        e("v_mul_f32 %s, s%d, %s" % (v(t1), sT6, v(SM)))
        e("v_mul_f32 %s, s%d, %s" % (v(t0), sT6, v(t0)))
        e("v_fma_f32 %s, -%s, %s, %s" % (v(t0), v(t1), v(t1), v(t0)))
        e("v_max_f32 %s, 0, %s" % (v(t0), v(t0)))
        e("v_cvt_pk_bf16_f32 %s, %s, %s" % (v(t0), v(t0), v(t1)))
        e("v_and_b32 %s, 0xffff0000, %s" % (v(t1), v(t0)))
        e("v_lshlrev_b32 %s, 16, %s" % (v(t0), v(t0)))
        e("v_add_f32 %s, 0x3727c5ac, %s" % (v(t0), v(t0)))
        e("v_cvt_pk_bf16_f32 %s, %s, %s" % (v(t0), v(t0), v(t0)))
        e("v_lshlrev_b32 %s, 16, %s" % (v(t0), v(t0)))
        e("v_sqrt_f32 %s, %s" % (v(t0), v(t0)))
        e("s_nop 0")
        e("v_cvt_pk_bf16_f32 %s, %s, %s" % (v(t0), v(t0), v(t0)))
        if PK is not None:
            e("v_lshrrev_b32 %s, 16, %s" % (v(t2), v(t1)))
            e("v_and_b32 %s, 0xffff0000, %s" % (v(t0), v(t0)))
            e("v_or_b32 %s, %s, %s" % (v(PK), v(t0), v(t2)))
        else:
            e("v_lshlrev_b32 %s, 16, %s" % (v(t0), v(t0)))
            e("v_rcp_f32 %s, %s" % (v(A_), v(t0)))
            e("s_nop 0")
            e("v_mul_f32 %s, -%s, %s" % (v(B_), v(t1), v(A_)))

    def decode_bc(self):
        e = self.e
        e("s_and_b32 s%d, s2, 7" % sT0)
        e("s_lshr_b32 s%d, s2, 3" % sT1)
        e("s_mul_i32 s%d, s%d, 37" % (sT2, sT1))
        e("s_lshr_b32 s%d, s%d, 8" % (sT2, sT2))
        e("s_mul_i32 s%d, s%d, 7" % (sT3, sT2))
        e("s_sub_u32 s%d, s%d, s%d" % (sT3, sT1, sT3))
        e("s_lshr_b32 s%d, s%d, 1" % (sT4, sT0))
        e("s_lshl_b32 s%d, s%d, 2" % (sT4, sT4))
        e("s_add_u32 s%d, s%d, s%d" % (sBI, sT4, sT2))
        e("s_and_b32 s%d, s%d, 1" % (sT4, sT0))
        e("s_mul_i32 s%d, s%d, 7" % (sT4, sT4))
        e("s_add_u32 s%d, s%d, s%d" % (sBJ, sT4, sT3))
        e("s_lshl_b32 s%d, s%d, 2" % (sT4, sT0))
        e("s_add_u32 s%d, s%d, s%d" % (sT4, sT4, sT2))
        e("s_lshr_b32 s%d, s%d, 1" % (sCI, sT4))
        e("s_and_b32 s%d, s%d, 1" % (sCS, sT4))
        e("s_mov_b32 s%d, s%d" % (sCJ, sT3))

    def main_path(self):
        e = self.e
        self.decode_bc()
        self.stamp(0)
        self.phase_a0()
        self.w_stage_setup()
        self.w_stage_read_setup(vWRD, vWRD + 1)
        self.pre_signal()
        vGO, vZERO = 23, 58
        loop, done = self.newlabel("go"), self.newlabel("god")
        e("s_mov_b32 s%d, %d" % (sSPIN, SPIN_LIMIT))
        self.label(loop)
        e("v_cmp_eq_u32 vcc, 0, %s" % v(vGO))
        e("s_nop 4")
        e("s_cbranch_vccz %s" % done)
        e("buffer_load_dword %s, %s, %s, 0 offen offset:%d sc1" % (v(vGO), v(vZERO), srd(SRD_DBG), self.go_off))
        e("s_waitcnt vmcnt(0)")
        e("s_sub_u32 s%d, s%d, 1" % (sSPIN, sSPIN))
        e("s_cmp_lg_u32 s%d, 0" % sSPIN)
        e("s_cbranch_scc1 %s" % loop)
        self.label(done)
        e("s_barrier")
        vA, vOne = 5, 6
        e("s_lshl_b32 s%d, s%d, 8" % (sT0, sG0))
        e("s_add_u32 s%d, s%d, %d" % (sT0, sT0, WS_CNT + 256 * C_S1))
        e("v_mov_b32 %s, s%d" % (v(vA), sT0))
        e("v_mov_b32 %s, 1" % v(vOne))
        self.signal(vA, vOne, 1)
        self.stamp(3)
        if self.endif_stop("a0"):
            return False
        self.phase_a1()
        ONES, CA = 108, 32
        for i in range(4):
            e("v_mov_b32 %s, 0x3f803f80" % v(ONES + i))
        e("s_nop 1")
        for s_ in range(14):
            for ft in range(2):
                e("v_mfma_f32_32x32x16_bf16 %s, %s, %s, %s" % (v(CA + 16 * ft, 16), v(ONES, 4), a(8 * s_ + 4 * ft, 4), "0" if s_ == 0 else v(CA + 16 * ft, 16)))
        self.wait_vm("hst")
        e("s_barrier")
        vA, vOne = 5, 6
        e("s_and_b32 s%d, s2, 15" % sT0)
        e("s_lshl_b32 s%d, s%d, 8" % (sT0, sT0))
        e("s_add_u32 s%d, s%d, %d" % (sT0, sT0, WS_CNT + 256 * C_S2))
        e("v_lshlrev_b32 %s, 12, v1" % v(vA))
        e("v_add_u32 %s, s%d, %s" % (v(vA), sT0, v(vA)))
        e("v_mov_b32 %s, 1" % v(vOne))
        self.signal(vA, vOne, 8)
        self.stamp(8)
        for it in self.w1_rest:
            it()
        if self.endif_stop("a1"):
            return False
        return True

    def build(self):
        self.prologue()
        cont = self.main_path()
        if cont:
            from gen_bc import phase_b, phase_c
            phase_b(self)
            if not self.endif_stop("b"):
                phase_c(self)
                self.wait_all()
                if self.spin_us:
                    self.e("L_diag:")
                    self.e("s_memrealtime s[96:97]")
                    self.e("s_waitcnt lgkmcnt(0)")
                    self.e("s_sub_u32 s96, s96, s100")
                    self.e("s_cmp_lt_u32 s96, %d" % (self.spin_us * 100))
                    self.e("s_cbranch_scc1 L_diag")
                self.e("s_endpgm")
                self.redo_code()
        self.helper()
        self.label("L_end")
        self.e("s_endpgm")
        self.label("L_codeend")
        body = self.text()
        hdr = HEADER
        hdr += "; @launch grid=(256,1,1) block=(256,1,1) lds=%d\n" % LDS_BYTES
        hdr += '.amdgcn_target "amdgcn-amd-amdhsa--gfx950"\n.text\n.globl %s\n.p2align 8\n.type %s,@function\n%s:\n' % (NAME, NAME, NAME)
        tail = """
.section .rodata,"a"
.p2align 6
.amdhsa_kernel %s
  .amdhsa_next_free_vgpr 512
  .amdhsa_next_free_sgpr 102
  .amdhsa_accum_offset 256
  .amdhsa_group_segment_fixed_size 0
  .amdhsa_kernarg_size 104
  .amdhsa_user_sgpr_count 2
  .amdhsa_user_sgpr_kernarg_segment_ptr 1
  .amdhsa_system_sgpr_workgroup_id_x 1
.end_amdhsa_kernel
""" % NAME
        return hdr + body + tail, body


HEADER = """; Fused preLN -> H3 (shift conv, k*v, long causal conv, gate) -> preLN -> GLU FFN, one persistent launch.
"""

if __name__ == "__main__":
    import argparse
    ap = argparse.ArgumentParser()
    ap.add_argument("--stop", default=None)
    ap.add_argument("--stamps", action="store_true")
    ap.add_argument("--dbgst", action="store_true")
    ap.add_argument("--spin", type=int, default=0)
    ap.add_argument("--exp", default="")
    ap.add_argument("--no-tlbwarm", action="store_true")
    ap.add_argument("--no-prefetch", action="store_true")
    ap.add_argument("-o", default="out.s")
    args = ap.parse_args()
    g = Gen(stop=args.stop, stamps=args.stamps, tlbwarm=not args.no_tlbwarm, prefetch=not args.no_prefetch, dbgst=args.dbgst)
    g.spin_us = args.spin
    g.exp = set(args.exp.split(',')) if args.exp else set()
    txt, body = g.build()
    open(args.o, "w").write(txt)
    check_hazards(body)
    print("wrote", args.o, len(txt), "bytes")
```

```python
import sys, os
sys.path.insert(0, os.path.dirname(os.path.abspath(__file__)))
from asmlib import Asm, check_hazards

NAME = "sequential_preLN__ssm_conv_h3__glu_gated_glu__prompt_kernel"
S, D, F = 2048, 448, 1792

WS_KVT = 0x000000
WS_QT = 0x200000
WS_HB = 0x400000
WS_HF = 0x600000
WS_ST1 = 0xE00000
WS_ST2 = 0xE08000
WS_CNT = 0xE10000
WS_TS = 0xF00000
WS_SIZE = 0x1000000
C_S1, C_SL1, C_FH, C_S3, C_S2 = 0, 8, 16, 32, 96
N_CNT = 224

L_WST = 0
L_K = 114688
L_V = L_K + 9216
L_Q = L_V + 8192
L_TS = L_Q + 8192
L_X = L_K
L_EX = L_V
L_HB = 0
L_WD = 86016
LDS_BYTES = 163840

sWAVE = 3
SRD_WS, SRD_Q, SRD_K, SRD_V, SRD_SK, SRD_SH, SRD_WG, SRD_WU, SRD_WD, SRD_OUT, SRD_DBG = 4, 8, 12, 16, 20, 24, 28, 32, 36, 40, 44
sPC = 48
sD = 50
sT0, sT1, sT2, sT3, sT4, sT5, sT6, sT7 = 76, 77, 78, 79, 80, 81, 82, 83
sA0BASE = 84
sG0 = 85
sRB = 86
sBI, sBJ = 87, 88
sCI, sCS, sCJ = 89, 90, 91
sSPIN = 92
sM = 93
sEX = 94
sTS = 96
sHALF = 98
sCHL = 99
sWSO, sWM, sWB, sWG, sWX = 51, 75, 56, 57, 74
sOFF = 58
vWS = 248
vWRD = 246


def srd(n):
    return "s[%d:%d]" % (n, n + 3)


def v(a, n=1):
    return "v%d" % a if n == 1 else "v[%d:%d]" % (a, a + n - 1)


def a(i, n=1):
    return "a%d" % i if n == 1 else "a[%d:%d]" % (i, i + n - 1)


SPIN_LIMIT = 40000
DBG_IDX = [0, 1, 3, 4, 5, 6, 8, 9, 10, 11, 12, 13, 14, 15, 17, 20]


class Gen(Asm):
    def __init__(self, stop=None, stamps=False, tlbwarm=True, prefetch=True, dbgst=False):
        super().__init__()
        self.stop = stop
        self.stamps = stamps
        self.tlbwarm = tlbwarm
        self.prefetch = prefetch
        self.exp = set()
        self.spin_us = 0
        self.dbgst = dbgst
        self.go_off = 128 if dbgst else 0
        self.npre = 8
        self.nw1 = 28
        self.fill_depth = 8

    def stamp(self, idx):
        if self.dbgst:
            if idx not in DBG_IDX or getattr(self, "in_helper", False):
                return
            lab = self.newlabel("st")
            self.e("s_cmp_eq_u32 s%d, 0" % sWAVE)
            self.e("s_cbranch_scc0 %s" % lab)
            self.e("s_and_b32 s%d, s2, 31" % sTS)
            self.e("s_cmp_eq_u32 s%d, %d" % (sTS, 5))
            self.e("s_cbranch_scc0 %s" % lab)
            self.e("s_memrealtime s[%d:%d]" % (sTS, sTS + 1))
            self.e("s_waitcnt lgkmcnt(0)")
            if idx == 0:
                self.e("s_not_b32 s%d, s%d" % (sTS, sTS))
            self.e("v_mov_b32 v30, s%d" % sTS)
            self.e("v_mov_b32 v31, %d" % (4 * DBG_IDX.index(idx)))
            self.e("s_mov_b64 exec, 1")
            self.e("buffer_atomic_umax v30, v31, %s, 0 offen sc1" % srd(SRD_DBG))
            self.e("s_mov_b64 exec, -1")
            self.label(lab)
            return
        if not self.stamps:
            return
        lab = self.newlabel("st")
        self.e("s_cmp_eq_u32 s%d, 0" % sWAVE)
        self.e("s_cbranch_scc0 %s" % lab)
        self.e("s_memrealtime s[%d:%d]" % (sTS, sTS + 1))
        self.e("s_memtime s[100:101]")
        self.e("s_waitcnt lgkmcnt(0)")
        self.e("v_mov_b32 v30, s%d" % sTS)
        self.e("s_lshl_b32 s%d, s2, 8" % (sTS + 1))
        self.e("s_add_u32 s%d, s%d, %d" % (sTS + 1, sTS + 1, WS_TS + 4 * idx))
        self.e("v_mov_b32 v31, s%d" % (sTS + 1))
        self.e("s_mov_b64 exec, 1")
        self.e("buffer_store_dword v30, v31, %s, 0 offen" % srd(SRD_WS))
        self.e("v_mov_b32 v30, s100")
        self.e("s_nop 1")
        self.e("buffer_store_dword v30, v31, %s, 0 offen offset:128" % srd(SRD_WS))
        self.e("s_mov_b64 exec, -1")
        self.label(lab)

    def spin(self, vaddr, vtarget, vtmp):
        loop = self.newlabel("ploop")
        done = self.newlabel("pdone")
        self.e("s_mov_b32 s%d, %d" % (sSPIN, SPIN_LIMIT))
        self.label(loop)
        self.e("buffer_load_dword %s, %s, %s, 0 offen sc1" % (v(vtmp), v(vaddr), srd(SRD_WS)))
        self.e("s_waitcnt vmcnt(0)")
        self.e("v_cmp_lt_u32 vcc, %s, %s" % (v(vtmp), v(vtarget)))
        self.e("s_nop 4")
        self.e("s_cbranch_vccz %s" % done)
        self.e("s_sub_u32 s%d, s%d, 1" % (sSPIN, sSPIN))
        self.e("s_cmp_lg_u32 s%d, 0" % sSPIN)
        self.e("s_cbranch_scc0 %s" % done)
        self.e("s_sleep 1")
        self.e("s_branch %s" % loop)
        self.label(done)

    def poll(self, vaddr, vtarget, vtmp):
        skip = self.newlabel("pskip")
        self.e("s_cmp_eq_u32 s%d, 0" % sWAVE)
        self.e("s_cbranch_scc0 %s" % skip)
        self.spin(vaddr, vtarget, vtmp)
        self.label(skip)
        self.e("s_barrier")

    def signal(self, vaddr, vone, nlanes):
        skip = self.newlabel("sig")
        self.e("s_cmp_eq_u32 s%d, 0" % sWAVE)
        self.e("s_cbranch_scc0 %s" % skip)
        self.e("s_mov_b64 exec, %d" % ((1 << nlanes) - 1))
        self.e("buffer_atomic_add %s, %s, %s, 0 offen sc1" % (v(vone), v(vaddr), srd(SRD_WS)))
        self.e("s_mov_b64 exec, -1")
        self.label(skip)

    def endif_stop(self, name):
        if self.stop == name:
            self.wait_all()
            self.e("s_endpgm")
            return True
        return False

    def prologue(self):
        e = self.e
        e("s_cmp_ge_u32 s2, 256")
        e("s_cbranch_scc1 L_end")
        e("s_load_dwordx4 s[52:55], s[0:1], 0")
        e("s_load_dwordx4 s[56:59], s[0:1], 16")
        e("s_load_dwordx4 s[60:63], s[0:1], 32")
        e("s_load_dwordx4 s[64:67], s[0:1], 56")
        e("s_load_dwordx4 s[68:71], s[0:1], 72")
        e("s_load_dwordx4 s[72:75], s[0:1], 88")
        if self.spin_us:
            e("s_memrealtime s[100:101]")
        e("s_getpc_b64 s[%d:%d]" % (sPC, sPC + 1))
        self.label("L_pc")
        e("v_and_b32 v1, 63, v0")
        e("v_lshrrev_b32 v2, 6, v0")
        e("s_nop 0")
        e("v_readfirstlane_b32 s%d, v2" % sWAVE)
        e("s_waitcnt lgkmcnt(0)")

        def mk(dst, src, size):
            e("s_mov_b32 s%d, s%d" % (dst, src))
            e("s_mov_b32 s%d, s%d" % (dst + 1, src + 1))
            e("s_mov_b32 s%d, %d" % (dst + 2, size))
            e("s_mov_b32 s%d, 0x20000" % (dst + 3))
        mk(SRD_Q, 52, S * D * 2)
        mk(SRD_K, 54, S * D * 2)
        mk(SRD_V, 56, S * D * 2)
        mk(SRD_SH, 58, D * 4 * 2)
        mk(SRD_SK, 60, S * D * 2)
        mk(SRD_WG, 64, D * F * 2)
        mk(SRD_WU, 66, D * F * 2)
        mk(SRD_WD, 68, D * F * 2)
        e("s_sub_u32 s%d, s%d, 1024" % (SRD_WU, SRD_WU))
        e("s_subb_u32 s%d, s%d, 0" % (SRD_WU + 1, SRD_WU + 1))
        e("s_add_u32 s%d, s%d, 1024" % (SRD_WU + 2, SRD_WU + 2))
        mk(SRD_OUT, 70, S * D * 2)
        mk(SRD_DBG, 72, 256)
        mk(SRD_WS, 74, WS_SIZE)
        lab = self.newlabel("nowarm")
        e("s_lshr_b32 s%d, s2, 3" % sT0)
        e("s_cmp_lt_u32 s%d, 4" % sT0)
        e("s_cbranch_scc0 %s" % lab)
        e("s_lshl_b32 s%d, s%d, 2" % (sT0, sT0))
        e("s_add_u32 s%d, s%d, s%d" % (sT0, sT0, sWAVE))
        e("s_mul_i32 s%d, s%d, (L_codeend-L_pc+15)/16" % (sT0, sT0))
        e("v_lshlrev_b32 v2, 5, v1")
        e("v_add_u32 v2, s%d, v2" % sT0)
        e("v_min_u32 v2, L_codeend-L_pc-4, v2")
        e("v_and_b32 v2, -4, v2")
        e("global_load_dword v253, v2, s[%d:%d]" % (sPC, sPC + 1))
        self.label(lab)
        e("s_cmp_ge_u32 s2, 224")
        e("s_cbranch_scc1 L_helper")

    def phase_a0(self):
        e = self.e
        self.c("==== A0 ====")
        e("s_mul_i32 s%d, s2, 293" % sRB)
        e("s_lshr_b32 s%d, s%d, 11" % (sRB, sRB))
        e("s_mul_i32 s%d, s%d, 7" % (sT0, sRB))
        e("s_sub_u32 s%d, s2, s%d" % (sG0, sT0))
        e("s_mul_i32 s%d, s%d, %d" % (sA0BASE, sRB, 64 * 896))
        e("s_lshl_b32 s%d, s%d, 7" % (sT0, sG0))
        e("s_add_u32 s%d, s%d, s%d" % (sA0BASE, sA0BASE, sT0))
        vP, vOff, vOffH, vT = 4, 5, 6, 7
        e("v_lshrrev_b32 %s, 4, v1" % v(vT))
        e("v_and_b32 %s, 1, %s" % (v(vT), v(vT)))
        e("v_lshlrev_b32 %s, 1, %s" % (v(vT), v(vT)))
        e("v_and_b32 %s, 7, v1" % v(vP))
        e("v_xor_b32 %s, %s, %s" % (v(vP), v(vP), v(vT)))
        e("v_lshlrev_b32 %s, 4, %s" % (v(vP), v(vP)))
        e("v_lshrrev_b32 %s, 3, v1" % v(vT))
        e("v_mul_u32_u24 %s, 896, %s" % (v(vT), v(vT)))
        e("v_add_u32 %s, %s, %s" % (v(vP), v(vP), v(vT)))
        e("s_and_b32 s%d, s%d, 1" % (sT0, sWAVE))
        e("s_lshl_b32 s%d, s%d, 6" % (sT0, sT0))
        e("v_xor_b32 %s, s%d, %s" % (v(vOff), sT0, v(vP)))
        e("v_xor_b32 %s, 64, %s" % (v(vOffH), v(vP)))
        e("s_cmp_eq_u32 s%d, 0" % sRB)
        e("s_cselect_b32 s%d, 0x80000000, 0" % sT1)
        e("v_add_u32 %s, s%d, %s" % (v(vOffH), sT1, v(vOffH)))
        e("s_sub_u32 s%d, s%d, 7168" % (sT2, sA0BASE))
        e("s_cmp_eq_u32 s%d, 0" % sRB)
        e("s_cselect_b32 s%d, 0, s%d" % (sT2, sT2))
        e("s_mul_i32 s%d, s%d, 7168" % (sT3, sWAVE))
        e("s_add_u32 s%d, s%d, s%d" % (sT3, sT3, sA0BASE))
        e("s_add_u32 s%d, s%d, %d" % (sT4, sT3, 4 * 7168))
        e("s_lshl_b32 s%d, s%d, 10" % (sT5, sWAVE))

        def dma(srdn, voff, soff, ldsbase, addw=True):
            if addw:
                e("s_add_u32 m0, s%d, %d" % (sT5, ldsbase))
            else:
                e("s_mov_b32 m0, %d" % ldsbase)
            e("s_nop 0")
            self.vmem("buffer_load_dwordx4 %s, %s, s%d offen lds" % (v(voff), srd(srdn), soff), "a0")
        dma(SRD_K, vOffH, sT2, L_K, addw=False)
        dma(SRD_K, vOff, sT3, L_K + 1024)
        dma(SRD_K, vOff, sT4, L_K + 5 * 1024)
        dma(SRD_V, vOff, sT3, L_V)
        dma(SRD_V, vOff, sT4, L_V + 4 * 1024)
        dma(SRD_Q, vOff, sT3, L_Q)
        dma(SRD_Q, vOff, sT4, L_Q + 4 * 1024)
        vCH, vSK = 8, 10
        e("s_lshl_b32 s%d, s%d, 6" % (sT0, sG0))
        e("s_lshl_b32 s%d, s%d, 4" % (sT1, sWAVE))
        e("s_add_u32 s%d, s%d, s%d" % (sT0, sT0, sT1))
        e("v_and_b32 %s, 15, v1" % v(vCH))
        e("v_add_u32 %s, s%d, %s" % (v(vCH), sT0, v(vCH)))
        e("v_lshlrev_b32 %s, 3, %s" % (v(vT), v(vCH)))
        self.vmem("buffer_load_dwordx2 %s, %s, %s, 0 offen" % (v(vSK, 2), v(vT), srd(SRD_SH)), "a0")

        e("s_lshr_b32 s%d, s%d, 1" % (sCHL, sWAVE))
        e("s_and_b32 s%d, s%d, 1" % (sHALF, sWAVE))
        vL16 = 9
        e("v_lshlrev_b32 %s, 4, v1" % v(vL16))
        e("s_lshl_b32 s%d, s2, 1" % sT0)
        e("s_add_u32 s%d, s%d, s%d" % (sT0, sT0, sCHL))
        e("s_lshl_b32 s%d, s%d, 12" % (sT0, sT0))
        e("s_lshl_b32 s%d, s%d, 11" % (sT1, sHALF))
        e("s_add_u32 s%d, s%d, s%d" % (sT0, sT0, sT1))
        e("s_mul_i32 s%d, s%d, 8320" % (sT2, sCHL))
        e("s_add_u32 s%d, s%d, s%d" % (sT2, sT2, sT1))
        e("s_add_u32 m0, s%d, %d" % (sT2, L_TS + 32))
        e("s_nop 0")
        for i in range(2):
            self.vmem("buffer_load_dwordx4 %s, %s, s%d offen offset:%d lds" % (v(vL16), srd(SRD_SK), sT0, 1024 * i), "ts")
        if self.tlbwarm:
            self.c("touch every page that is used later (address translation warm-up)")
            vZ = 59
            e("v_mov_b32 %s, 0" % v(vZ))
            e("s_mov_b64 exec, 1")
            for r in (SRD_SK, SRD_WG, SRD_WD, SRD_OUT):
                e("buffer_load_dword v252, %s, %s, 0 offen" % (v(vZ), srd(r)))
            e("v_mov_b32 %s, 1024" % v(vZ))
            e("buffer_load_dword v252, %s, %s, 0 offen" % (v(vZ), srd(SRD_WU)))
            e("s_mov_b64 exec, 0xff")
            e("v_lshlrev_b32 %s, 21, v1" % v(vZ))
            e("buffer_load_dword v252, %s, %s, 0 offen" % (v(vZ), srd(SRD_WS)))
            e("s_mov_b64 exec, -1")
            self.vm += ["tlb"] * 6
        e("s_lshl_b32 s%d, s2, 2" % sT3)
        e("s_load_dword s%d, s[62:63], s%d" % (sD, sT3))

        vTR, vTRH, vG, vR = 13, 14, 15, 16
        e("v_lshrrev_b32 %s, 4, v1" % v(vG))
        e("v_bfe_u32 %s, v1, 2, 2" % v(vR))
        e("v_lshrrev_b32 %s, 1, %s" % (v(vT), v(vR)))
        e("v_and_b32 %s, 1, %s" % (v(vTR), v(vG)))
        e("v_lshl_or_b32 %s, %s, 1, %s" % (v(vT), v(vTR), v(vT)))
        e("v_xor_b32 %s, s%d, %s" % (v(vT), sWAVE, v(vT)))
        e("v_lshlrev_b32 %s, 5, %s" % (v(vT), v(vT)))
        e("v_lshl_add_u32 %s, %s, 3, %s" % (v(vTR), v(vG), v(vR)))
        e("v_lshl_add_u32 %s, %s, 7, %s" % (v(vTR), v(vTR), v(vT)))
        e("v_and_b32 %s, 3, v1" % v(vT))
        e("v_lshl_add_u32 %s, %s, 3, %s" % (v(vTR), v(vT), v(vTR)))
        e("v_add_u32 %s, %d, %s" % (v(vTR), L_K, v(vTR)))
        e("v_xor_b32 %s, 64, %s" % (v(vTRH), v(vTR)))
        vSKV, vSQ = 17, 18
        e("s_lshl_b32 s%d, s%d, 7" % (sT0, sRB))
        e("v_lshlrev_b32 %s, 12, %s" % (v(vSQ), v(vCH)))
        e("v_lshlrev_b32 %s, 4, %s" % (v(vT), v(vG)))
        e("s_sub_u32 s%d, %d, s%d" % (sT1, WS_KVT + 4080 - 64, sT0))
        e("v_add_u32 %s, s%d, %s" % (v(vSKV), sT1, v(vSQ)))
        e("v_sub_u32 %s, %s, %s" % (v(vSKV), v(vSKV), v(vT)))
        e("s_add_u32 s%d, s%d, %d" % (sT1, sT0, WS_QT))
        e("v_add3_u32 %s, %s, %s, s%d" % (v(vSQ), v(vSQ), v(vT), sT1))
        self.wait_vm("a0")
        e("s_waitcnt lgkmcnt(0)")
        self.lg = []
        e("s_lshl_b32 s%d, s%d, 16" % (sT0, sD))
        e("s_and_b32 s%d, s%d, 0xffff0000" % (sT1, sD))
        e("s_cmp_eq_u32 s%d, 0" % sCHL)
        e("s_cselect_b32 s%d, s%d, s%d" % (sD, sT0, sT1))
        e("s_barrier")
        self.stamp(1)

        KH = [24, 34]
        KM = [26, 36]
        VV = [40, 44]
        QQ = [48, 52]
        for rho in range(2):
            self.lds("ds_read_b64_tr_b16 %s, %s offset:%d" % (v(KH[rho], 2), v(vTRH), 512 + 4096 * rho), "k%d" % rho)
            self.lds("ds_read_b64_tr_b16 %s, %s offset:%d" % (v(KM[rho], 2), v(vTR), 1024 + 4096 * rho), "k%d" % rho)
            self.lds("ds_read_b64_tr_b16 %s, %s offset:%d" % (v(KM[rho] + 2, 2), v(vTR), 1024 + 512 + 4096 * rho), "k%d" % rho)
            self.lds("ds_read_b64_tr_b16 %s, %s offset:%d" % (v(VV[rho], 2), v(vTR), L_V - L_K + 4096 * rho), "v%d" % rho)
            self.lds("ds_read_b64_tr_b16 %s, %s offset:%d" % (v(VV[rho] + 2, 2), v(vTR), L_V - L_K + 512 + 4096 * rho), "v%d" % rho)
        for rho in range(2):
            self.lds("ds_read_b64_tr_b16 %s, %s offset:%d" % (v(QQ[rho], 2), v(vTR), L_Q - L_K + 4096 * rho), "q")
            self.lds("ds_read_b64_tr_b16 %s, %s offset:%d" % (v(QQ[rho] + 2, 2), v(vTR), L_Q - L_K + 512 + 4096 * rho), "q")
        CA, CB = 21, 22
        e("v_alignbit_b32 %s, %s, %s, 16" % (v(CA), v(vSK), v(vSK)))
        e("v_alignbit_b32 %s, %s, %s, 16" % (v(CB), v(vSK + 1), v(vSK + 1)))
        MM = 56
        KS = 64
        VF = 72
        OUTR = [80, 84]
        for rho in range(2):
            self.wait_lg("v%d" % rho)
            Dw = [KH[rho], KH[rho] + 1, KM[rho], KM[rho] + 1, KM[rho] + 2, KM[rho] + 3]
            for i in range(5):
                e("v_alignbit_b32 %s, %s, %s, 16" % (v(MM + i), v(Dw[i + 1]), v(Dw[i])))
            for t in range(8):
                if t & 1:
                    p0, p1 = Dw[2 + (t >> 1)], Dw[1 + (t >> 1)]
                else:
                    p0, p1 = MM + 1 + (t >> 1), MM + (t >> 1)
                e("v_dot2_f32_bf16 %s, %s, %s, 0" % (v(KS + t), v(p1), v(CB)))
            for t in range(8):
                if t & 1:
                    p0 = Dw[2 + (t >> 1)]
                else:
                    p0 = MM + 1 + (t >> 1)
                e("v_dot2_f32_bf16 %s, %s, %s, %s" % (v(KS + t), v(p0), v(CA), v(KS + t)))
            for t in range(8):
                src = VV[rho] + (t >> 1)
                if t & 1:
                    e("v_and_b32 %s, 0xffff0000, %s" % (v(VF + t), v(src)))
                else:
                    e("v_lshlrev_b32 %s, 16, %s" % (v(VF + t), v(src)))
            for t in range(8):
                e("v_mul_f32 %s, %s, %s" % (v(KS + t), v(KS + t), v(VF + t)))
            for i in range(4):
                e("v_cvt_pk_bf16_f32 %s, %s, %s" % (v(OUTR[rho] + i), v(KS + 7 - 2 * i), v(KS + 6 - 2 * i)))
            self.vmem("buffer_store_dwordx4 %s, %s, %s, 0 offen offset:%d sc1" % (v(OUTR[rho], 4), v(vSKV), srd(SRD_WS), 64 if rho == 0 else 0), "a0st")
        self.wait_lg("q")
        for rho in range(2):
            self.vmem("buffer_store_dwordx4 %s, %s, %s, 0 offen offset:%d sc1" % (v(QQ[rho], 4), v(vSQ), srd(SRD_WS), 64 * rho), "a0st")
        vGO, vZERO = 23, 58
        e("v_mov_b32 %s, 0" % v(vZERO))
        self.vmem("buffer_load_dword %s, %s, %s, 0 offen offset:%d sc1" % (v(vGO), v(vZERO), srd(SRD_DBG), self.go_off), "go")
        self.stamp(2)

    def t_build(self):
        e = self.e
        vZ, vZA, vRA, vPA = 19, 20, 21, 22
        D0 = 100
        e("v_mov_b32 %s, 0" % v(vZ))
        e("s_mul_i32 s%d, s%d, 8320" % (sT2, sCHL))
        e("s_add_u32 s%d, s%d, %d" % (sT2, sT2, L_TS))
        e("v_lshl_add_u32 %s, v1, 2, s%d" % (v(vPA), sT2))
        e("v_mov_b32 %s, s%d" % (v(vZA), sT2))
        e("v_add_u32 %s, %d, %s" % (v(vZA), 32 + 4096, v(vZA)))
        e("v_cmp_gt_u32 vcc, 8, v1")
        e("s_nop 1")
        e("v_cndmask_b32 %s, %s, %s, vcc" % (v(vZA), v(vZA), v(vPA)))
        e("s_mov_b64 exec, 0x1ff")
        e("ds_write_b32 %s, %s" % (v(vZA), v(vZ)))
        e("s_mov_b64 exec, -1")
        e("s_lshl_b32 s%d, s%d, 11" % (sT1, sHALF))
        e("s_add_u32 s%d, s%d, s%d" % (sT1, sT1, sT2))
        e("s_add_u32 s%d, s%d, 32" % (sT1, sT1))
        e("v_lshl_add_u32 %s, v1, 4, s%d" % (v(vRA), sT1))
        self.wait_vm("ts")
        self.wait_lg0()
        e("s_barrier")
        for c in range(2):
            e("ds_read_b128 %s, %s offset:%d" % (v(D0 + 6 * c, 4), v(vRA), 1024 * c))
            e("ds_read_b32 %s, %s offset:%d" % (v(D0 + 6 * c + 4), v(vRA), 1024 * c + 16))
        e("ds_read2_b32 %s, %s offset0:0 offset1:1" % (v(D0 + 12, 2), v(vPA)))
        e("s_mul_i32 s%d, s%d, 4608" % (sT0, sCHL))
        e("s_lshl_b32 s%d, s%d, 8" % (sT1, sHALF))
        e("s_add_u32 s%d, s%d, s%d" % (sT0, sT0, sT1))
        e("s_add_u32 s%d, s%d, %d" % (sT0, sT0, L_X + 4096))
        e("v_lshl_add_u32 %s, v1, 2, s%d" % (v(vZA), sT0))
        e("ds_write_b32 %s, %s" % (v(vZA), v(vZ)))
        self.wait_lg0()
        O = D0 + 16
        for c in range(2):
            for i in range(4):
                e("v_alignbit_b32 %s, %s, %s, 16" % (v(O + 4 * c + i), v(D0 + 6 * c + i + 1), v(D0 + 6 * c + i)))
        e("v_alignbit_b32 %s, %s, %s, 16" % (v(O + 8), v(D0 + 13), v(D0 + 12)))
        for c in range(2):
            e("ds_write_b128 %s, %s offset:%d" % (v(vRA), v(O + 4 * c, 4), 4160 + 1024 * c))
        e("s_mov_b64 exec, 0xff")
        e("ds_write_b32 %s, %s offset:4160" % (v(vPA), v(O + 8)))
        e("s_mov_b64 exec, -1")
        self.wait_lg0()
        e("s_barrier")

    def w_stage_setup(self):
        e = self.e
        vT = 7
        e("v_lshrrev_b32 %s, 2, v1" % v(vT))
        e("v_mul_u32_u24 %s, 3584, %s" % (v(vT), v(vT)))
        e("v_and_b32 %s, 3, v1" % v(vWS))
        e("v_xor_b32 %s, 2, %s" % (v(vWS + 1), v(vWS)))
        e("v_lshl_add_u32 %s, %s, 4, %s" % (v(vWS), v(vWS), v(vT)))
        e("v_lshl_add_u32 %s, %s, 4, %s" % (v(vWS + 1), v(vWS + 1), v(vT)))
        e("v_add_u32 %s, %d, %s" % (v(vWS + 2), 57344 - 2048, v(vWS)))
        e("v_add_u32 %s, %d, %s" % (v(vWS + 3), 57344 - 2048, v(vWS + 1)))

    def w_stage_items(self, rnd, spanel=None, gstart=0, ngroups=7, sgstart=None):
        e = self.e
        items = []
        sp = sWAVE if spanel is None else spanel

        def setup():
            e("s_lshl_b32 s%d, s%d, 8" % (sWB, sBJ))
            e("s_lshl_b32 s%d, s%d, 6" % (sWM, sp))
            e("s_add_u32 s%d, s%d, s%d" % (sWB, sWB, sWM))
            if rnd:
                e("s_add_u32 s%d, s%d, %d" % (sWB, sWB, 14 * rnd * 57344))
            e("s_mul_i32 s%d, s%d, 28672" % (sWM, sp))
            if L_WST:
                e("s_add_u32 s%d, s%d, %d" % (sWM, sWM, L_WST))
            e("s_and_b32 s%d, s%d, 3" % (sWG, sBI))
            e("s_lshl_b32 s%d, s%d, 1" % (sWG, sWG))
            if sgstart is not None:
                e("s_add_u32 s%d, s%d, s%d" % (sWG, sWG, sgstart))
                e("s_cmp_ge_u32 s%d, 7" % sWG)
                e("s_cselect_b32 s%d, 7, 0" % sWX)
                e("s_sub_u32 s%d, s%d, s%d" % (sWG, sWG, sWX))

        def addr():
            e("s_mul_i32 s%d, s%d, %d" % (sWSO, sWG, 2 * 57344))
            e("s_add_u32 s%d, s%d, s%d" % (sWSO, sWSO, sWB))
            e("s_lshl_b32 s%d, s%d, 12" % (sWX, sWG))
            e("s_add_u32 m0, s%d, s%d" % (sWX, sWM))
        for grp in range(ngroups):
            for n in range(4):
                def one(grp=grp, n=n):
                    if grp == 0 and n == 0:
                        setup()
                        addr()
                        e("s_nop 0")
                    elif n == 0:
                        e("s_add_u32 s%d, s%d, 1" % (sWG, sWG))
                        e("s_cmp_eq_u32 s%d, 7" % sWG)
                        e("s_cselect_b32 s%d, 0, s%d" % (sWG, sWG))
                        addr()
                        e("s_nop 0")
                    self.vmem("buffer_load_dwordx4 %s, %s, s%d offen offset:%d lds" % (v(vWS + (n & 1) + 2 * (n >> 1)), srd(SRD_WG if (n & 1) == 0 else SRD_WU), sWSO, 1024 * n), "w%d" % rnd)
                items.append(one)
        return items

    def w_stage_read_setup(self, vB0, vB1):
        e = self.e
        vT, vU = 7, 4
        e("v_bfe_u32 %s, v1, 4, 1" % v(vT))
        e("v_lshrrev_b32 %s, 5, v1" % v(vU))
        e("v_lshlrev_b32 %s, 3, %s" % (v(vU), v(vU)))
        e("v_bfe_u32 %s, v1, 2, 2" % v(vB0))
        e("v_add_u32 %s, %s, %s" % (v(vU), v(vU), v(vB0)))
        e("v_lshlrev_b32 %s, 6, %s" % (v(vU), v(vU)))
        e("v_and_b32 %s, 3, v1" % v(vB0))
        e("v_lshl_add_u32 %s, %s, 3, %s" % (v(vU), v(vB0), v(vU)))
        e("v_mul_u32_u24 %s, 1056, %s" % (v(vT), v(vT)))
        e("s_mul_i32 s%d, s%d, 28672" % (sT0, sWAVE))
        e("v_add3_u32 %s, %s, %s, s%d" % (v(vB0), v(vU), v(vT), sT0))
        e("v_xor_b32 %s, 32, %s" % (v(vB1), v(vB0)))

    def w_stage_read_items(self, rnd, vB0, vB1):
        items = []
        for s in range(14):
            for ft in range(2):
                base = 8 * (14 * rnd + s) + 4 * ft
                for ee in range(2):
                    items.append("ds_read_b64_tr_b16 %s, %s offset:%d" % (a(base + 2 * ee, 2), v(vB0 if ft == 0 else vB1), L_WST + 2048 * s + 256 * ee))
        return items

    def w_stage_read(self, rnd):
        self.c("W staging -> AGPR round %d" % rnd)
        self.wait_vm("w%d" % rnd)
        for line in self.w_stage_read_items(rnd, vWRD, vWRD + 1):
            self.lds(line, "wr")

    def t_read(self):
        e = self.e
        self.c("T fragments -> a112..a239")
        vB, vT, vU = 240, 7, 4
        e("v_and_b32 %s, 15, v1" % v(vT))
        e("v_and_b32 %s, 1, %s" % (v(vU), v(vT)))
        e("v_add_u32 %s, %s, %s" % (v(vT), v(vT), v(vU)))
        e("v_lshrrev_b32 %s, 4, v1" % v(vB))
        e("v_lshl_add_u32 %s, %s, 3, %s" % (v(vT), v(vB), v(vT)))
        e("v_lshlrev_b32 %s, 1, %s" % (v(vT), v(vT)))
        e("v_xor_b32 %s, 1, %s" % (v(vU), v(vU)))
        e("v_mul_u32_u24 %s, 4160, %s" % (v(vU), v(vU)))
        e("s_mul_i32 s%d, s%d, 8320" % (sT0, sCHL))
        e("s_lshl_b32 s%d, s%d, 8" % (sT1, sHALF))
        e("s_add_u32 s%d, s%d, s%d" % (sT0, sT0, sT1))
        e("s_add_u32 s%d, s%d, %d" % (sT0, sT0, L_TS))
        e("v_add3_u32 %s, %s, %s, s%d" % (v(vB), v(vT), v(vU), sT0))
        for i in range(1, 4):
            e("v_add_u32 %s, %d, %s" % (v(vB + i), 1024 * i, v(vB)))
        items = []
        for rr in range(4):
            for q in range(8):
                base = 112 + 4 * (8 * rr + q)
                o = 128 * (q & 1) + 16 * rr
                for hh in range(2):
                    items.append("ds_read2_b32 %s, %s offset0:%d offset1:%d" % (a(base + 2 * hh, 2), v(vB + (q >> 1)), o + 2 * hh, o + 2 * hh + 1))
        return items

    def pre_signal(self):
        e = self.e
        self.t_build()
        titems = self.t_read()
        lab0, labj = self.newlabel("p0"), self.newlabel("pj")
        e("s_cmp_eq_u32 s%d, 0" % sWAVE)
        e("s_cbranch_scc1 %s" % lab0)
        save = list(self.vm)
        self.w0_own = self.w_stage_items(0)
        t = list(titems)
        npre = self.npre
        for it in self.w0_own[:npre]:
            it()
            for _ in range(64 // npre):
                e(t.pop(0))
        while t:
            e(t.pop(0))
        self.wait_vm("go")
        self.vm = list(save)
        e("s_branch %s" % labj)
        self.label(lab0)
        for line in titems:
            e(line)
        self.wait_vm("go")
        self.label(labj)

    def window1(self, vL16):
        e = self.e
        lab0, labj = self.newlabel("w0"), self.newlabel("wj")
        e("s_cmp_eq_u32 s%d, 0" % sWAVE)
        e("s_cbranch_scc1 %s" % lab0)
        if self.prefetch:
            vP = 59
            e("s_mul_i32 s%d, s2, 7168" % sT0)
            e("s_sub_u32 s%d, s%d, 1" % (sT1, sWAVE))
            e("s_mul_i32 s%d, s%d, %d" % (sT1, sT1, 19 * 128))
            e("s_add_u32 s%d, s%d, s%d" % (sT0, sT0, sT1))
            e("v_lshl_add_u32 %s, v1, 7, s%d" % (v(vP), sT0))
            e("s_mov_b64 exec, 0x7ffff")
            e("buffer_load_dword v252, %s, %s, 0 offen" % (v(vP), srd(SRD_WG)))
            e("buffer_load_dword v252, %s, %s, 0 offen offset:1024" % (v(vP), srd(SRD_WU)))
            e("buffer_load_dword v252, %s, %s, 0 offen" % (v(vP), srd(SRD_WD)))
            e("s_mov_b64 exec, -1")
        save = list(self.vm)
        for it in self.w0_own[self.npre:]:
            it()
        sPAN, sGST = 72, 73
        e("s_mov_b32 s%d, 0" % sPAN)
        e("s_lshl_b32 s%d, s%d, 1" % (sGST, sWAVE))
        e("s_sub_u32 s%d, s%d, 1" % (sGST, sGST))
        e("s_cmp_eq_u32 s%d, 1" % sWAVE)
        e("s_cselect_b32 s%d, 0, s%d" % (sGST, sGST))
        sh = self.w_stage_items(0, spanel=sPAN, ngroups=3, sgstart=sGST)
        for it in sh[:8]:
            it()
        lab3 = self.newlabel("w3")
        e("s_cmp_eq_u32 s%d, 1" % sWAVE)
        e("s_cbranch_scc0 %s" % lab3)
        for it in sh[8:]:
            it()
        self.label(lab3)
        self.vm = save
        e("s_waitcnt vmcnt(0) lgkmcnt(0)")
        e("s_branch %s" % labj)
        self.label(lab0)
        vA, vTg, vTmp = 21, 22, 23
        e("s_and_b32 s%d, s2, 7" % sT1)
        e("s_lshl_b32 s%d, s%d, 8" % (sT1, sT1))
        e("s_add_u32 s%d, s%d, %d" % (sT1, sT1, WS_CNT + 256 * C_SL1))
        e("s_lshr_b32 s%d, s2, 5" % sT0)
        e("s_lshl_b32 s%d, s%d, 8" % (sT0, sT0))
        e("s_add_u32 s%d, s%d, %d" % (sT0, sT0, WS_CNT + 256 * C_S1))
        e("v_mov_b32 %s, s%d" % (v(vA), sT0))
        e("v_mov_b32 %s, s%d" % (v(vTmp), sT1))
        e("v_cmp_gt_u32 vcc, 32, v1")
        e("s_nop 1")
        e("v_cndmask_b32 %s, %s, %s, vcc" % (v(vA), v(vTmp), v(vA)))
        e("v_mov_b32 %s, 32" % v(vTg))
        self.spin(vA, vTg, vTmp)
        self.stamp(4)
        e("s_lshl_b32 s%d, s2, 13" % sT0)
        if WS_KVT:
            e("s_add_u32 s%d, s%d, %d" % (sT0, sT0, WS_KVT))
        e("s_mov_b32 m0, %d" % L_X)
        e("s_nop 0")
        for i in range(4):
            e("buffer_load_dwordx4 %s, %s, s%d offen offset:%d sc1 lds" % (v(vL16), srd(SRD_WS), sT0, 1024 * i))
        e("s_add_u32 s%d, s%d, 4096" % (sT0, sT0))
        e("s_mov_b32 m0, %d" % (L_X + 4608))
        e("s_nop 0")
        for i in range(4):
            e("buffer_load_dwordx4 %s, %s, s%d offen offset:%d sc1 lds" % (v(vL16), srd(SRD_WS), sT0, 1024 * i))
        e("s_mov_b32 s%d, %d" % (sT0, WS_ST1))
        for grp in range(4):
            e("s_mov_b32 m0, %d" % (L_EX + 4096 * grp))
            e("s_nop 0")
            for i in range(4):
                e("buffer_load_dwordx4 %s, %s, s%d offen offset:%d sc1 lds" % (v(vL16), srd(SRD_WS), sT0, 1024 * i))
            if grp != 3:
                e("s_add_u32 s%d, s%d, 4096" % (sT0, sT0))
        e("s_waitcnt vmcnt(16) lgkmcnt(0)")
        self.label(labj)
        self.vm = ["w0"]
        self.lg = []
        e("s_barrier")

    def phase_a1(self):
        e = self.e
        self.c("==== A1 ====")
        ACC = 32
        XF = [64, 96]
        QR, KVR, AR, BR = 128, 136, 144, 160
        LN, KD, QF = 176, 192, 208
        Y = 224
        vT, vU = 7, 4
        vL16 = 9
        e("v_lshlrev_b32 %s, 4, v1" % v(vL16))
        e("s_lshl_b32 s%d, s2, 1" % sT0)
        e("s_add_u32 s%d, s%d, s%d" % (sT0, sT0, sCHL))
        e("s_lshl_b32 s%d, s%d, 12" % (sT0, sT0))
        vTL = 5
        e("v_and_b32 %s, 15, v1" % v(vT))
        e("v_lshrrev_b32 %s, 4, v1" % v(vU))
        e("v_lshlrev_b32 %s, 2, %s" % (v(vU), v(vU)))
        e("v_lshl_add_u32 %s, %s, 4, %s" % (v(vTL), v(vT), v(vU)))
        e("s_lshl_b32 s%d, s%d, 10" % (sT1, sHALF))
        e("v_add_u32 %s, s%d, %s" % (v(vTL), sT1, v(vTL)))
        vQA, vSA = 6, 8
        e("s_add_u32 s%d, s%d, %d" % (sT2, sT0, WS_QT))
        e("v_lshl_add_u32 %s, %s, 1, s%d" % (v(vQA), v(vTL), sT2))
        e("v_lshlrev_b32 %s, 2, %s" % (v(vSA), v(vTL)))
        e("s_mov_b32 s%d, %d" % (sT4, WS_ST1))
        e("s_mov_b32 s%d, %d" % (sT5, WS_ST1 + 8192))
        vXB, vKVA, vEW, vER = 10, 11, 12, 13
        e("v_and_b32 %s, 15, v1" % v(vT))
        e("v_lshrrev_b32 %s, 4, v1" % v(vU))
        e("v_lshlrev_b32 %s, 4, %s" % (v(vU), v(vU)))
        e("v_lshlrev_b32 %s, 5, %s" % (v(vT), v(vT)))
        e("v_sub_u32 %s, %s, %s" % (v(vXB), v(vU), v(vT)))
        e("s_mul_i32 s%d, s%d, 4608" % (sT0, sCHL))
        e("s_lshl_b32 s%d, s%d, 8" % (sT1, sHALF))
        e("s_add_u32 s%d, s%d, s%d" % (sT1, sT1, sT0))
        e("s_add_u32 s%d, s%d, %d" % (sT1, sT1, L_X + 480))
        e("v_add_u32 %s, s%d, %s" % (v(vXB), sT1, v(vXB)))
        e("s_add_u32 s%d, s%d, %d" % (sT1, sT0, L_X + 4088 - 1536))
        e("v_lshlrev_b32 %s, 1, %s" % (v(vT), v(vTL)))
        e("v_sub_u32 %s, s%d, %s" % (v(vKVA), sT1, v(vT)))
        e("s_lshl_b32 s%d, s%d, 12" % (sT0, sWAVE))
        e("s_add_u32 s%d, s%d, %d" % (sT1, sT0, L_TS))
        e("v_add_u32 %s, s%d, %s" % (v(vEW), sT1, v(vL16)))
        e("s_xor_b32 s%d, s%d, 0x1000" % (sT0, sT0))
        e("s_add_u32 s%d, s%d, %d" % (sT1, sT0, L_TS))
        e("v_add_u32 %s, s%d, %s" % (v(vER), sT1, v(vL16)))
        vHO = 14
        vRow = 15
        e("v_lshrrev_b32 %s, 4, v1" % v(vRow))
        e("v_and_b32 %s, 15, v1" % v(vT))
        e("v_lshrrev_b32 %s, 1, %s" % (v(vU), v(vT)))
        e("v_and_b32 %s, 1, %s" % (v(vHO), v(vRow)))
        e("v_lshl_add_u32 %s, %s, 3, %s" % (v(vU), v(vHO), v(vU)))
        e("v_mul_u32_u24 %s, 28672, %s" % (v(vHO), v(vU)))
        e("v_and_b32 %s, 1, %s" % (v(vT), v(vT)))
        e("v_lshl_add_u32 %s, %s, 5, %s" % (v(vHO), v(vT), v(vHO)))
        e("v_lshrrev_b32 %s, 1, %s" % (v(vRow), v(vRow)))
        e("v_lshl_add_u32 %s, %s, 4, %s" % (v(vHO), v(vRow), v(vHO)))
        e("s_lshl_b32 s%d, s2, 1" % sT0)
        e("s_add_u32 s%d, s%d, s%d" % (sT0, sT0, sCHL))
        e("s_lshl_b32 s%d, s%d, 6" % (sT0, sT0))
        e("s_mul_i32 s%d, s%d, %d" % (sT1, sHALF, 32 * 28672))
        e("s_add_u32 s%d, s%d, s%d" % (sT0, sT0, sT1))
        e("s_add_u32 s%d, s%d, %d" % (sT6, sT0, WS_HB))
        e("s_add_u32 s%d, s%d, %d" % (sT7, sT6, 16 * 28672))
        vABR = 16
        e("v_lshl_add_u32 %s, %s, 2, 0" % (v(vABR), v(vTL)))
        e("v_add_u32 %s, %d, %s" % (v(vABR), L_EX, v(vABR)))
        self.window1(vL16)
        self.stamp(5)

        def xread(rr):
            for m in range(8):
                self.lds("ds_read_b128 %s, %s offset:%d" % (v(XF[rr & 1] + 4 * m, 4), v(vXB), 512 * (7 - m) + 64 * rr), "x%d" % rr)

        F = [[], [], [], []]

        def pair(lst, items):
            for i in range(0, len(items), 2):
                lst.append(items[i:i + 2])
        wr = [("lds", x, "wr") for x in self.w_stage_read_items(0, vWRD, vWRD + 1)]
        pair(F[0], wr)
        w1 = self.w_stage_items(1)
        NW1 = self.nw1
        self.w1_rest = w1[NW1:]
        rest = []
        for cc in range(4):
            rest.append([("lds", "ds_read_b64 %s, %s offset:%d" % (v(KVR + 2 * cc, 2), v(vKVA), 512 * (3 - cc)), "kv"),
                         ("vm", "buffer_load_dwordx2 %s, %s, %s, 0 offen offset:%d sc1" % (v(QR + 2 * cc, 2), v(vQA), srd(SRD_WS), 512 * cc), "q")])
        for cc in range(4):
            rest.append([("lds", "ds_read_b128 %s, %s offset:%d" % (v(AR + 4 * cc, 4), v(vABR), 1024 * cc), "ab"),
                         ("lds", "ds_read_b128 %s, %s offset:%d" % (v(BR + 4 * cc, 4), v(vABR), 8192 + 1024 * cc), "ab")])
        it = []
        for cc in range(4):
            for i in range(4):
                src = KVR + 2 * cc + (1 - (i >> 1))
                if i & 1:
                    it.append(("v", "v_lshlrev_b32 %s, 16, %s" % (v(KD + 4 * cc + i), v(src))))
                else:
                    it.append(("v", "v_and_b32 %s, 0xffff0000, %s" % (v(KD + 4 * cc + i), v(src))))
        it[0:0] = []
        rest.append([("waitlg", "kv"), it[0]])
        rest += [[x] for x in it[1:]]
        rest += [[("v", "v_mul_f32 %s, s%d, %s" % (v(KD + x), sD, v(KD + x)))] for x in range(16)]
        qf = []
        for cc in range(4):
            for i in range(4):
                src = QR + 2 * cc + (i >> 1)
                if i & 1:
                    qf.append(("v", "v_and_b32 %s, 0xffff0000, %s" % (v(QF + 4 * cc + i), v(src))))
                else:
                    qf.append(("v", "v_lshlrev_b32 %s, 16, %s" % (v(QF + 4 * cc + i), v(src))))
        rest.append([("waitvm", "q"), qf[0]])
        rest += [[x] for x in qf[1:]]
        ln = [("v", "v_fma_f32 %s, %s, %s, %s" % (v(LN + x), v(QF + x), v(AR + x), v(BR + x))) for x in range(16)]
        rest.append([("waitlg", "ab"), ln[0]])
        rest += [[x] for x in ln[1:]]
        slots = [(1, 28), (2, 28), (3, 36)]
        nslot = sum(n for _, n in slots)
        nrest = len(rest)
        k = 0
        gslot = 0
        first_w = 4
        for rnd_, n in slots:
            for slot in range(n):
                left = nslot - gslot
                want_w = k < NW1 and gslot >= first_w and (gslot - first_w) * NW1 >= k * (nslot - first_w - 6)
                entry = []
                if want_w:
                    if k == 0:
                        entry.append(("waitlg", "wr"))
                    entry.append(("fn", w1[k]))
                    k += 1
                if rest and (not want_w or len(rest) >= left):
                    entry += rest.pop(0)
                F[rnd_].append(entry)
                gslot += 1
        assert k == NW1 and not rest, (k, len(rest))

        def run(entry):
            for it in entry:
                if it[0] == "v":
                    e(it[1])
                elif it[0] == "lds":
                    self.lds(it[1], it[2])
                elif it[0] == "vm":
                    self.vmem(it[1], it[2])
                elif it[0] == "fn":
                    it[1]()
                elif it[0] == "waitvm":
                    self.wait_vm(it[1])
                elif it[0] == "waitlg":
                    self.wait_lg(it[1])

        xread(0)
        for rr in range(4):
            if rr == 1:
                self.wait_vm("w0")
                e("s_barrier")
            self.wait_lg("x%d" % rr)
            cnt = 0
            fl = list(F[rr])
            for q in range(8):
                for c in range(q, 8):
                    m = c - q
                    srcc = "0" if (rr == 0 and q == 0) else v(ACC + 4 * c, 4)
                    e("v_mfma_f32_16x16x32_bf16 %s, %s, %s, %s" % (v(ACC + 4 * c, 4), a(112 + 4 * (8 * rr + q), 4), v(XF[rr & 1] + 4 * m, 4), srcc))
                    cnt += 1
                    if rr < 3 and cnt <= 8:
                        m2 = cnt - 1
                        self.lds("ds_read_b128 %s, %s offset:%d" % (v(XF[(rr + 1) & 1] + 4 * m2, 4), v(vXB), 512 * (7 - m2) + 64 * (rr + 1)), "x%d" % (rr + 1))
                    elif fl:
                        run(fl.pop(0))
            for entry in fl:
                run(entry)
        self.stamp(6)
        e("s_nop 7")
        lab1, lab2 = self.newlabel("h1"), self.newlabel("hj")
        TMP = XF[0]
        e("s_cmp_eq_u32 s%d, 0" % sHALF)
        e("s_cbranch_scc0 %s" % lab1)
        for cc in range(4):
            e("ds_write_b128 %s, %s offset:%d" % (v(vEW), v(ACC + 16 + 4 * cc, 4), 1024 * cc))
        for x in range(16):
            e("v_add_f32 %s, %s, %s" % (v(Y + x), v(ACC + x), v(KD + x)))
        e("s_branch %s" % lab2)
        self.label(lab1)
        for cc in range(4):
            e("ds_write_b128 %s, %s offset:%d" % (v(vEW), v(ACC + 4 * cc, 4), 1024 * cc))
        for x in range(16):
            e("v_add_f32 %s, %s, %s" % (v(Y + x), v(ACC + 16 + x), v(KD + x)))
        self.label(lab2)
        e("s_waitcnt lgkmcnt(0)")
        self.lg = []
        e("s_barrier")
        for cc in range(4):
            self.lds("ds_read_b128 %s, %s offset:%d" % (v(TMP + 4 * cc, 4), v(vER), 1024 * cc), "ex%d" % cc)
        P = XF[0] + 16
        for cc in range(4):
            self.wait_lg("ex%d" % cc)
            for i in range(4):
                x = 4 * cc + i
                e("v_add_f32 %s, %s, %s" % (v(Y + x), v(Y + x), v(TMP + x)))
            for i in range(4):
                x = 4 * cc + i
                e("v_fma_f32 %s, %s, %s, %s" % (v(Y + x), v(LN + x), v(Y + x), v(QF + x)))
            e("v_cvt_pk_bf16_f32 %s, %s, %s" % (v(P + 2 * cc), v(Y + 4 * cc), v(Y + 4 * cc + 1)))
            e("v_cvt_pk_bf16_f32 %s, %s, %s" % (v(P + 2 * cc + 1), v(Y + 4 * cc + 2), v(Y + 4 * cc + 3)))
            if cc & 1:
                b = P + 2 * (cc - 1)
                e("s_nop 1")
                e("v_permlane16_swap_b32 %s, %s" % (v(b), v(b + 2)))
                e("v_permlane16_swap_b32 %s, %s" % (v(b + 1), v(b + 3)))
                self.vmem("buffer_store_dwordx4 %s, %s, %s, s%d offen sc1" % (v(b, 4), v(vHO), srd(SRD_WS), sT6 if cc == 1 else sT7), "hst")
        self.stamp(7)

    def helper(self):
        e = self.e
        self.label("L_helper")
        self.in_helper = True
        self.vm = []
        self.lg = []
        self.c("==== helper ====")
        sH = sRB
        e("s_sub_u32 s%d, s2, 224" % sH)
        vT, vU, vZ = 7, 4, 5
        e("v_mov_b32 %s, 0" % v(vZ))
        FR = 32
        vQ = 6
        e("s_lshl_b32 s%d, s%d, 6" % (sT0, sH))
        e("s_lshl_b32 s%d, s%d, 4" % (sT1, sWAVE))
        e("s_add_u32 s%d, s%d, s%d" % (sT0, sT0, sT1))
        e("v_and_b32 %s, 15, v1" % v(vT))
        e("v_add_u32 %s, s%d, %s" % (v(8), sT0, v(vT)))
        e("v_mul_u32_u24 %s, 896, %s" % (v(vQ), v(8)))
        e("v_lshrrev_b32 %s, 4, v1" % v(vU))
        e("v_lshl_add_u32 %s, %s, 4, %s" % (v(vQ), v(vU), v(vQ)))
        for s in range(14):
            self.vmem("buffer_load_dwordx4 %s, %s, %s, 0 offen offset:%d" % (v(FR + 4 * s, 4), v(vQ), srd(SRD_Q), 64 * s), "q")
        lab = self.newlabel("hz")
        e("s_cmp_eq_u32 s%d, 0" % sWAVE)
        e("s_cbranch_scc0 %s" % lab)
        e("s_lshl_b32 s%d, s%d, 8" % (sT0, sH))
        e("s_add_u32 s%d, s%d, %d" % (sT0, sT0, WS_ST2))
        e("v_lshl_add_u32 %s, v1, 2, s%d" % (v(vT), sT0))
        e("buffer_store_dword %s, %s, %s, 0 offen sc1" % (v(vZ), v(vT), srd(SRD_WS)))
        self.label(lab)
        lab = self.newlabel("hc")
        e("s_cmp_eq_u32 s%d, 0" % sH)
        e("s_cbranch_scc0 %s" % lab)
        e("v_lshlrev_b32 %s, 8, v0" % v(vT))
        e("v_add_u32 %s, %d, %s" % (v(vT), WS_CNT, v(vT)))
        e("v_cmp_gt_u32 vcc, %d, v0" % N_CNT)
        e("s_and_saveexec_b64 s[%d:%d], vcc" % (sEX, sEX + 1))
        lab2 = self.newlabel("hc2")
        e("s_cbranch_execz %s" % lab2)
        e("buffer_store_dword %s, %s, %s, 0 offen sc1" % (v(vZ), v(vT), srd(SRD_WS)))
        self.label(lab2)
        e("s_mov_b64 exec, s[%d:%d]" % (sEX, sEX + 1))
        e("s_waitcnt vmcnt(0)")
        e("s_barrier")
        e("v_mov_b32 %s, 1" % v(vU))
        lab3 = self.newlabel("hc3")
        e("s_cmp_eq_u32 s%d, 0" % sWAVE)
        e("s_cbranch_scc0 %s" % lab3)
        e("s_mov_b64 exec, 1")
        e("buffer_store_dword %s, %s, %s, 0 offen offset:%d sc1" % (v(vU), v(vZ), srd(SRD_DBG), self.go_off))
        e("s_mov_b64 exec, -1")
        self.label(lab3)
        self.label(lab)
        ONES = 16
        for i in range(4):
            e("v_mov_b32 %s, 0x3f803f80" % v(ONES + i))
        self.wait_vm("q")
        GR, SM = 20, 24
        self.stats_mfma(lambda s: FR + 4 * s, ONES, GR, SM, None)
        A_, B_ = 28, 29
        self.stats_finish(GR, SM, A_, B_, None)
        e("v_lshlrev_b32 %s, 2, %s" % (v(vT), v(8)))
        e("s_mov_b32 s%d, %d" % (sT4, WS_ST1))
        e("s_mov_b32 s%d, %d" % (sT5, WS_ST1 + 8192))
        e("s_mov_b32 exec_lo, 0x00f0000f")
        e("s_mov_b32 exec_hi, 0xf0000f00")
        self.vmem("buffer_store_dword %s, %s, %s, s%d offen sc1" % (v(A_), v(vT), srd(SRD_WS), sT4), "st")
        self.vmem("buffer_store_dword %s, %s, %s, s%d offen sc1" % (v(B_), v(vT), srd(SRD_WS), sT5), "st")
        e("s_mov_b64 exec, -1")
        vGO = 30
        loop, done = self.newlabel("go"), self.newlabel("god")
        e("s_mov_b32 s%d, %d" % (sSPIN, SPIN_LIMIT))
        self.label(loop)
        e("buffer_load_dword %s, %s, %s, 0 offen offset:%d sc1" % (v(vGO), v(vZ), srd(SRD_DBG), self.go_off))
        e("s_waitcnt vmcnt(0)")
        self.vm = []
        e("v_cmp_eq_u32 vcc, 0, %s" % v(vGO))
        e("s_nop 4")
        e("s_cbranch_vccz %s" % done)
        e("s_sub_u32 s%d, s%d, 1" % (sSPIN, sSPIN))
        e("s_cmp_lg_u32 s%d, 0" % sSPIN)
        e("s_cbranch_scc1 %s" % loop)
        self.label(done)
        e("s_barrier")
        e("v_lshlrev_b32 %s, 8, v1" % v(vT))
        e("v_add_u32 %s, %d, %s" % (v(vT), WS_CNT + 256 * C_SL1, v(vT)))
        e("v_mov_b32 %s, 1" % v(vU))
        self.signal(vT, vU, 8)
        self.stamp(3)
        if self.stop in ("a0", "a1"):
            self.wait_all()
            e("s_endpgm")
            return
        MK = 40
        for i in range(4):
            e("v_mov_b32 %s, -1" % v(MK + i))
        e("v_lshlrev_b32 v9, 4, v1")
        e("s_mul_i32 s%d, s%d, 229376" % (sT0, sH))
        e("s_mul_i32 s%d, s%d, 57344" % (sT1, sWAVE))
        e("s_add_u32 s%d, s%d, s%d" % (sT0, sT0, sT1))
        e("s_add_u32 s%d, s%d, %d" % (sT0, sT0, WS_HF))
        for grp in range(14):
            for i in range(4):
                e("buffer_store_dwordx4 %s, v9, %s, s%d offen offset:%d sc1" % (v(MK, 4), srd(SRD_WS), sT0, 1024 * i))
            if grp != 13:
                e("s_add_u32 s%d, s%d, 4096" % (sT0, sT0))
                e("s_waitcnt vmcnt(%d)" % self.fill_depth)
        e("s_waitcnt vmcnt(0)")
        e("s_barrier")
        e("v_lshlrev_b32 %s, 8, v1" % v(vT))
        e("v_add_u32 %s, %d, %s" % (v(vT), WS_CNT + 256 * C_FH, v(vT)))
        e("v_mov_b32 %s, 1" % v(vU))
        self.signal(vT, vU, 8)
        self.stamp(4)
        e("v_and_b32 %s, 15, v1" % v(vT))
        e("v_lshlrev_b32 %s, 8, %s" % (v(vT), v(vT)))
        e("s_and_b32 s%d, s2, 7" % sT0)
        e("s_lshl_b32 s%d, s%d, 12" % (sT0, sT0))
        e("s_add_u32 s%d, s%d, %d" % (sT0, sT0, WS_CNT + 256 * C_S2))
        e("v_add_u32 %s, s%d, %s" % (v(vT), sT0, v(vT)))
        e("v_mov_b32 %s, 14" % v(vU))
        self.poll(vT, vU, vGO)
        self.stamp(8)
        e("s_lshr_b32 s%d, s%d, 1" % (sT0, sH))
        e("s_lshl_b32 s%d, s%d, 2" % (sT0, sT0))
        e("s_and_b32 s%d, s%d, 1" % (sT1, sH))
        e("s_add_u32 s%d, s%d, s%d" % (sT0, sT0, sT1))
        e("s_mul_i32 s%d, s%d, 28672" % (sT2, sT0))
        e("s_add_u32 s%d, s%d, %d" % (sT2, sT2, WS_HB))
        vL16 = 9
        e("v_lshlrev_b32 %s, 4, v1" % v(vL16))
        e("s_mul_i32 s%d, s%d, 7168" % (sT3, sWAVE))
        for blk in range(2):
            e("s_add_u32 s%d, s%d, s%d" % (sT4, sT2, sT3))
            if blk:
                e("s_add_u32 s%d, s%d, %d" % (sT4, sT4, 2 * 28672))
            e("s_add_u32 m0, s%d, %d" % (sT3, 28672 * blk))
            e("s_nop 0")
            for i in range(4):
                self.vmem("buffer_load_dwordx4 %s, %s, s%d offen offset:%d sc1 lds" % (v(vL16), srd(SRD_WS), sT4, 1024 * i), "hb%d" % blk)
            e("s_add_u32 s%d, s%d, 4096" % (sT4, sT4))
            e("s_add_u32 m0, s%d, %d" % (sT3, 28672 * blk + 4096))
            e("s_nop 0")
            for i in range(3):
                self.vmem("buffer_load_dwordx4 %s, %s, s%d offen offset:%d sc1 lds" % (v(vL16), srd(SRD_WS), sT4, 1024 * i), "hb%d" % blk)
        vA, vPX = 10, 14
        e("v_lshrrev_b32 %s, 4, v1" % v(vT))
        e("v_bfe_u32 %s, v1, 2, 2" % v(vU))
        e("v_lshl_add_u32 %s, %s, 3, %s" % (v(vT), v(vT), v(vU)))
        e("v_lshlrev_b32 %s, 6, %s" % (v(vT), v(vT)))
        e("v_and_b32 %s, 3, v1" % v(vU))
        e("v_lshl_add_u32 %s, %s, 3, %s" % (v(vA), v(vU), v(vT)))
        e("s_lshr_b32 s%d, s%d, 1" % (sT4, sWAVE))
        e("s_mul_i32 s%d, s%d, %d" % (sT4, sT4, 7 * 2048))
        e("s_and_b32 s%d, s%d, 1" % (sT5, sWAVE))
        e("s_lshl_b32 s%d, s%d, 5" % (sT5, sT5))
        e("s_add_u32 s%d, s%d, s%d" % (sT4, sT4, sT5))
        e("v_add_u32 %s, s%d, %s" % (v(vA), sT4, v(vA)))
        e("s_lshl_b32 s%d, s%d, 9" % (sT4, sWAVE))
        e("s_add_u32 s%d, s%d, 57344" % (sT4, sT4))
        e("v_lshl_add_u32 %s, v1, 3, s%d" % (v(vPX), sT4))
        vRW = 15
        e("s_lshl_b32 s%d, s%d, 5" % (sT4, sT0))
        e("s_and_b32 s%d, s%d, 1" % (sT5, sWAVE))
        e("s_lshl_b32 s%d, s%d, 4" % (sT5, sT5))
        e("s_add_u32 s%d, s%d, s%d" % (sT4, sT4, sT5))
        e("s_lshl_b32 s%d, s%d, 2" % (sT4, sT4))
        e("s_add_u32 s%d, s%d, %d" % (sT4, sT4, WS_ST2))
        e("v_and_b32 %s, 15, v1" % v(vT))
        e("v_lshl_add_u32 %s, %s, 2, s%d" % (v(vRW), v(vT), sT4))
        PK = 28
        for blk in range(2):
            self.wait_vm("hb%d" % blk)
            e("s_barrier")
            for s_ in range(7):
                for ee in range(2):
                    self.lds("ds_read_b64_tr_b16 %s, %s offset:%d" % (v(FR + 4 * s_ + 2 * ee, 2), v(vA), 28672 * blk + 2048 * s_ + 256 * ee), "f%d" % s_)
            self.stats_mfma(lambda s_: FR + 4 * s_, ONES, GR, SM, lambda s_: self.wait_lg("f%d" % s_), n=7)
            self.stats_diag(GR, 11)
            e("v_mov_b32 %s, %s" % (v(12), v(SM)))
            e("v_mov_b32 v60, v11")
            e("v_mov_b32 v61, v12")
            self.lds("ds_write_b64 %s, v[60:61] offset:%d" % (v(vPX), 2048 * blk), "px")
            self.wait_lg0()
            e("s_barrier")
            e("v_xor_b32 %s, 1024, %s" % (v(13), v(vPX)))
            self.lds("ds_read_b64 v[62:63], %s offset:%d" % (v(13), 2048 * blk), "px")
            self.wait_lg0()
            e("v_add_f32 v11, v60, v62")
            e("v_add_f32 %s, v61, v63" % v(SM))
            self.stats_finish(None, SM, None, None, PK)
            lab = self.newlabel("hs")
            e("s_cmp_lt_u32 s%d, 2" % sWAVE)
            e("s_cbranch_scc0 %s" % lab)
            e("s_mov_b32 exec_lo, 0x00f0000f")
            e("s_mov_b32 exec_hi, 0xf0000f00")
            e("buffer_store_dword %s, %s, %s, 0 offen offset:%d sc1" % (v(PK), v(vRW), srd(SRD_WS), 256 * blk))
            e("s_mov_b64 exec, -1")
            self.label(lab)
        self.stamp(9)
        self.wait_all()
        e("s_endpgm")

    def stats_mfma(self, frag, ONES, GR, SM, pre, n=14):
        e = self.e
        for s in range(n):
            if pre:
                pre(s)
            f = frag(s)
            e("v_mfma_f32_16x16x32_bf16 %s, %s, %s, %s" % (v(GR, 4), v(f, 4), v(f, 4), "0" if s == 0 else v(GR, 4)))
            e("v_mfma_f32_16x16x32_bf16 %s, %s, %s, %s" % (v(SM, 4), v(ONES, 4), v(f, 4), "0" if s == 0 else v(SM, 4)))
        e("s_nop 7")

    def stats_diag(self, GR, t0):
        e = self.e
        e("s_mov_b32 s%d, 0x22222222" % sT6)
        e("s_mov_b32 s%d, 0x22222222" % sT7)
        e("v_cndmask_b32 %s, %s, %s, s[%d:%d]" % (v(t0), v(GR), v(GR + 1), sT6, sT7))
        e("s_mov_b32 s%d, 0x44444444" % sT6)
        e("s_mov_b32 s%d, 0x44444444" % sT7)
        e("v_cndmask_b32 %s, %s, %s, s[%d:%d]" % (v(t0), v(t0), v(GR + 2), sT6, sT7))
        e("s_mov_b32 s%d, 0x88888888" % sT6)
        e("s_mov_b32 s%d, 0x88888888" % sT7)
        e("v_cndmask_b32 %s, %s, %s, s[%d:%d]" % (v(t0), v(t0), v(GR + 3), sT6, sT7))

    def stats_finish(self, GR, SM, A_, B_, PK):
        e = self.e
        t0, t1, t2 = 11, 12, 13
        if GR is not None:
            self.stats_diag(GR, t0)
        e("s_mov_b32 s%d, 0x3b124925" % sT6)
        e("v_mul_f32 %s, s%d, %s" % (v(t1), sT6, v(SM)))
        e("v_mul_f32 %s, s%d, %s" % (v(t0), sT6, v(t0)))
        e("v_fma_f32 %s, -%s, %s, %s" % (v(t0), v(t1), v(t1), v(t0)))
        e("v_max_f32 %s, 0, %s" % (v(t0), v(t0)))
        e("v_cvt_pk_bf16_f32 %s, %s, %s" % (v(t0), v(t0), v(t1)))
        e("v_and_b32 %s, 0xffff0000, %s" % (v(t1), v(t0)))
        e("v_lshlrev_b32 %s, 16, %s" % (v(t0), v(t0)))
        e("v_add_f32 %s, 0x3727c5ac, %s" % (v(t0), v(t0)))
        e("v_cvt_pk_bf16_f32 %s, %s, %s" % (v(t0), v(t0), v(t0)))
        e("v_lshlrev_b32 %s, 16, %s" % (v(t0), v(t0)))
        e("v_sqrt_f32 %s, %s" % (v(t0), v(t0)))
        e("s_nop 0")
        e("v_cvt_pk_bf16_f32 %s, %s, %s" % (v(t0), v(t0), v(t0)))
        if PK is not None:
            e("v_lshrrev_b32 %s, 16, %s" % (v(t2), v(t1)))
            e("v_and_b32 %s, 0xffff0000, %s" % (v(t0), v(t0)))
            e("v_or_b32 %s, %s, %s" % (v(PK), v(t0), v(t2)))
        else:
            e("v_lshlrev_b32 %s, 16, %s" % (v(t0), v(t0)))
            e("v_rcp_f32 %s, %s" % (v(A_), v(t0)))
            e("s_nop 0")
            e("v_mul_f32 %s, -%s, %s" % (v(B_), v(t1), v(A_)))

    def decode_bc(self):
        e = self.e
        e("s_and_b32 s%d, s2, 7" % sT0)
        e("s_lshr_b32 s%d, s2, 3" % sT1)
        e("s_mul_i32 s%d, s%d, 37" % (sT2, sT1))
        e("s_lshr_b32 s%d, s%d, 8" % (sT2, sT2))
        e("s_mul_i32 s%d, s%d, 7" % (sT3, sT2))
        e("s_sub_u32 s%d, s%d, s%d" % (sT3, sT1, sT3))
        e("s_lshr_b32 s%d, s%d, 1" % (sT4, sT0))
        e("s_lshl_b32 s%d, s%d, 2" % (sT4, sT4))
        e("s_add_u32 s%d, s%d, s%d" % (sBI, sT4, sT2))
        e("s_and_b32 s%d, s%d, 1" % (sT4, sT0))
        e("s_mul_i32 s%d, s%d, 7" % (sT4, sT4))
        e("s_add_u32 s%d, s%d, s%d" % (sBJ, sT4, sT3))
        e("s_lshl_b32 s%d, s%d, 2" % (sT4, sT0))
        e("s_add_u32 s%d, s%d, s%d" % (sT4, sT4, sT2))
        e("s_lshr_b32 s%d, s%d, 1" % (sCI, sT4))
        e("s_and_b32 s%d, s%d, 1" % (sCS, sT4))
        e("s_mov_b32 s%d, s%d" % (sCJ, sT3))

    def main_path(self):
        e = self.e
        self.decode_bc()
        self.stamp(0)
        self.phase_a0()
        self.w_stage_setup()
        self.w_stage_read_setup(vWRD, vWRD + 1)
        self.pre_signal()
        vGO, vZERO = 23, 58
        loop, done = self.newlabel("go"), self.newlabel("god")
        e("s_mov_b32 s%d, %d" % (sSPIN, SPIN_LIMIT))
        self.label(loop)
        e("v_cmp_eq_u32 vcc, 0, %s" % v(vGO))
        e("s_nop 4")
        e("s_cbranch_vccz %s" % done)
        e("buffer_load_dword %s, %s, %s, 0 offen offset:%d sc1" % (v(vGO), v(vZERO), srd(SRD_DBG), self.go_off))
        e("s_waitcnt vmcnt(0)")
        e("s_sub_u32 s%d, s%d, 1" % (sSPIN, sSPIN))
        e("s_cmp_lg_u32 s%d, 0" % sSPIN)
        e("s_cbranch_scc1 %s" % loop)
        self.label(done)
        e("s_barrier")
        vA, vOne = 5, 6
        e("s_lshl_b32 s%d, s%d, 8" % (sT0, sG0))
        e("s_add_u32 s%d, s%d, %d" % (sT0, sT0, WS_CNT + 256 * C_S1))
        e("v_mov_b32 %s, s%d" % (v(vA), sT0))
        e("v_mov_b32 %s, 1" % v(vOne))
        self.signal(vA, vOne, 1)
        self.stamp(3)
        if self.endif_stop("a0"):
            return False
        self.phase_a1()
        ONES, CA = 108, 32
        for i in range(4):
            e("v_mov_b32 %s, 0x3f803f80" % v(ONES + i))
        e("s_nop 1")
        for s_ in range(14):
            for ft in range(2):
                e("v_mfma_f32_32x32x16_bf16 %s, %s, %s, %s" % (v(CA + 16 * ft, 16), v(ONES, 4), a(8 * s_ + 4 * ft, 4), "0" if s_ == 0 else v(CA + 16 * ft, 16)))
        self.wait_vm("hst")
        e("s_barrier")
        vA, vOne = 5, 6
        e("s_and_b32 s%d, s2, 15" % sT0)
        e("s_lshl_b32 s%d, s%d, 8" % (sT0, sT0))
        e("s_add_u32 s%d, s%d, %d" % (sT0, sT0, WS_CNT + 256 * C_S2))
        e("v_lshlrev_b32 %s, 12, v1" % v(vA))
        e("v_add_u32 %s, s%d, %s" % (v(vA), sT0, v(vA)))
        e("v_mov_b32 %s, 1" % v(vOne))
        self.signal(vA, vOne, 8)
        self.stamp(8)
        for it in self.w1_rest:
            it()
        if self.endif_stop("a1"):
            return False
        return True

    def build(self):
        self.prologue()
        cont = self.main_path()
        if cont:
            from gen_bc import phase_b, phase_c
            phase_b(self)
            if not self.endif_stop("b"):
                phase_c(self)
                self.wait_all()
                if self.spin_us:
                    self.e("L_diag:")
                    self.e("s_memrealtime s[96:97]")
                    self.e("s_waitcnt lgkmcnt(0)")
                    self.e("s_sub_u32 s96, s96, s100")
                    self.e("s_cmp_lt_u32 s96, %d" % (self.spin_us * 100))
                    self.e("s_cbranch_scc1 L_diag")
                self.e("s_endpgm")
                self.redo_code()
        self.helper()
        self.label("L_end")
        self.e("s_endpgm")
        self.label("L_codeend")
        body = self.text()
        hdr = HEADER
        hdr += "; @launch grid=(256,1,1) block=(256,1,1) lds=%d\n" % LDS_BYTES
        hdr += '.amdgcn_target "amdgcn-amd-amdhsa--gfx950"\n.text\n.globl %s\n.p2align 8\n.type %s,@function\n%s:\n' % (NAME, NAME, NAME)
        tail = """
.section .rodata,"a"
.p2align 6
.amdhsa_kernel %s
  .amdhsa_next_free_vgpr 512
  .amdhsa_next_free_sgpr 102
  .amdhsa_accum_offset 256
  .amdhsa_group_segment_fixed_size 0
  .amdhsa_kernarg_size 104
  .amdhsa_user_sgpr_count 2
  .amdhsa_user_sgpr_kernarg_segment_ptr 1
  .amdhsa_system_sgpr_workgroup_id_x 1
.end_amdhsa_kernel
""" % NAME
        return hdr + body + tail, body


HEADER = """; Fused preLN -> H3 (shift conv, k*v, long causal conv, gate) -> preLN -> GLU FFN, one persistent launch.
"""

if __name__ == "__main__":
    import argparse
    ap = argparse.ArgumentParser()
    ap.add_argument("--stop", default=None)
    ap.add_argument("--stamps", action="store_true")
    ap.add_argument("--dbgst", action="store_true")
    ap.add_argument("--spin", type=int, default=0)
    ap.add_argument("--exp", default="")
    ap.add_argument("--tmo", action="store_true")
    ap.add_argument("--no-tlbwarm", action="store_true")
    ap.add_argument("--no-prefetch", action="store_true")
    ap.add_argument("-o", default="out.s")
    args = ap.parse_args()
    g = Gen(stop=args.stop, stamps=args.stamps, tlbwarm=not args.no_tlbwarm, prefetch=not args.no_prefetch, dbgst=args.dbgst)
    g.spin_us = args.spin
    g.exp = set(args.exp.split(',')) if args.exp else set()
    txt, body = g.build()
    if args.tmo:
        out = []
        site = 0
        lines = txt.split("\n")
        for i, ln in enumerate(lines):
            out.append(ln)
            if ln.strip() == "s_cmp_lg_u32 s92, 0":
                lab = "L_tmo_%d" % site
                out += ["  s_cbranch_scc1 %s" % lab, "  v_mov_b32 v30, 1", "  v_mov_b32 v31, %d" % (128 + 4 * site), "  s_mov_b64 s[100:101], exec", "  s_mov_b64 exec, 1",
                        "  buffer_atomic_add v30, v31, s[44:47], 0 offen sc1", "  s_mov_b64 exec, s[100:101]", "  s_cmp_lg_u32 s92, 0", lab + ":"]
                print("site", site, "near", [l for l in lines[max(0, i - 14):i] if l.endswith(":")])
                site += 1
        txt = "\n".join(out)
    open(args.o, "w").write(txt)
    check_hazards(body)
    print("wrote", args.o, len(txt), "bytes")
```

```python
import sys, os
sys.path.insert(0, os.path.dirname(os.path.abspath(__file__)))
from asmlib import Asm, check_hazards

NAME = "sequential_preLN__ssm_conv_h3__glu_gated_glu__prompt_kernel"
S, D, F = 2048, 448, 1792

WS_KVT = 0x000000
WS_QT = 0x200000
WS_HB = 0x400000
WS_HF = 0x600000
WS_ST1 = 0xE00000
WS_ST2 = 0xE08000
WS_CNT = 0xE10000
WS_TS = 0xF00000
WS_SIZE = 0x1000000
C_S1, C_SL1, C_FH, C_S3, C_S2 = 0, 8, 16, 32, 96
N_CNT = 224

L_WST = 0
L_K = 114688
L_V = L_K + 9216
L_Q = L_V + 8192
L_TS = L_Q + 8192
L_X = L_K
L_EX = L_V
L_HB = 0
L_WD = 86016
LDS_BYTES = 163840

sWAVE = 3
SRD_WS, SRD_Q, SRD_K, SRD_V, SRD_SK, SRD_SH, SRD_WG, SRD_WU, SRD_WD, SRD_OUT, SRD_DBG = 4, 8, 12, 16, 20, 24, 28, 32, 36, 40, 44
sPC = 48
sD = 50
sT0, sT1, sT2, sT3, sT4, sT5, sT6, sT7 = 76, 77, 78, 79, 80, 81, 82, 83
sA0BASE = 84
sG0 = 85
sRB = 86
sBI, sBJ = 87, 88
sCI, sCS, sCJ = 89, 90, 91
sSPIN = 92
sM = 93
sEX = 94
sTS = 96
sHALF = 98
sCHL = 99
sWSO, sWM, sWB, sWG, sWX = 51, 75, 56, 57, 74
sOFF = 58
vWS = 248
vWRD = 246


def srd(n):
    return "s[%d:%d]" % (n, n + 3)


def v(a, n=1):
    return "v%d" % a if n == 1 else "v[%d:%d]" % (a, a + n - 1)


def a(i, n=1):
    return "a%d" % i if n == 1 else "a[%d:%d]" % (i, i + n - 1)


SPIN_LIMIT = 40000
DBG_IDX = [0, 1, 3, 4, 5, 6, 8, 9, 10, 11, 12, 13, 14, 15, 17, 20]


class Gen(Asm):
    def __init__(self, stop=None, stamps=False, tlbwarm=True, prefetch=True, dbgst=False):
        super().__init__()
        self.stop = stop
        self.stamps = stamps
        self.tlbwarm = tlbwarm
        self.prefetch = prefetch
        self.exp = set()
        self.spin_us = 0
        self.dbgst = dbgst
        self.go_off = 128 if dbgst else 0
        self.npre = 8
        self.nw1 = 28
        self.fill_depth = 8
        self.touch = False

    def stamp(self, idx):
        if self.dbgst:
            if idx not in DBG_IDX or getattr(self, "in_helper", False):
                return
            lab = self.newlabel("st")
            self.e("s_cmp_eq_u32 s%d, 0" % sWAVE)
            self.e("s_cbranch_scc0 %s" % lab)
            self.e("s_and_b32 s%d, s2, 31" % sTS)
            self.e("s_cmp_eq_u32 s%d, %d" % (sTS, 5))
            self.e("s_cbranch_scc0 %s" % lab)
            self.e("s_memrealtime s[%d:%d]" % (sTS, sTS + 1))
            self.e("s_waitcnt lgkmcnt(0)")
            if idx == 0:
                self.e("s_not_b32 s%d, s%d" % (sTS, sTS))
            self.e("v_mov_b32 v30, s%d" % sTS)
            self.e("v_mov_b32 v31, %d" % (4 * DBG_IDX.index(idx)))
            self.e("s_mov_b64 exec, 1")
            self.e("buffer_atomic_umax v30, v31, %s, 0 offen sc1" % srd(SRD_DBG))
            self.e("s_mov_b64 exec, -1")
            self.label(lab)
            return
        if not self.stamps:
            return
        lab = self.newlabel("st")
        self.e("s_cmp_eq_u32 s%d, 0" % sWAVE)
        self.e("s_cbranch_scc0 %s" % lab)
        self.e("s_memrealtime s[%d:%d]" % (sTS, sTS + 1))
        self.e("s_memtime s[100:101]")
        self.e("s_waitcnt lgkmcnt(0)")
        self.e("v_mov_b32 v30, s%d" % sTS)
        self.e("s_lshl_b32 s%d, s2, 8" % (sTS + 1))
        self.e("s_add_u32 s%d, s%d, %d" % (sTS + 1, sTS + 1, WS_TS + 4 * idx))
        self.e("v_mov_b32 v31, s%d" % (sTS + 1))
        self.e("s_mov_b64 exec, 1")
        self.e("buffer_store_dword v30, v31, %s, 0 offen" % srd(SRD_WS))
        self.e("v_mov_b32 v30, s100")
        self.e("s_nop 1")
        self.e("buffer_store_dword v30, v31, %s, 0 offen offset:128" % srd(SRD_WS))
        self.e("s_mov_b64 exec, -1")
        self.label(lab)

    def spin(self, vaddr, vtarget, vtmp):
        loop = self.newlabel("ploop")
        done = self.newlabel("pdone")
        self.e("s_mov_b32 s%d, %d" % (sSPIN, SPIN_LIMIT))
        self.label(loop)
        self.e("buffer_load_dword %s, %s, %s, 0 offen sc1" % (v(vtmp), v(vaddr), srd(SRD_WS)))
        self.e("s_waitcnt vmcnt(0)")
        self.e("v_cmp_lt_u32 vcc, %s, %s" % (v(vtmp), v(vtarget)))
        self.e("s_nop 4")
        self.e("s_cbranch_vccz %s" % done)
        self.e("s_sub_u32 s%d, s%d, 1" % (sSPIN, sSPIN))
        self.e("s_cmp_lg_u32 s%d, 0" % sSPIN)
        self.e("s_cbranch_scc0 %s" % done)
        self.e("s_sleep 1")
        self.e("s_branch %s" % loop)
        self.label(done)

    def poll(self, vaddr, vtarget, vtmp):
        skip = self.newlabel("pskip")
        self.e("s_cmp_eq_u32 s%d, 0" % sWAVE)
        self.e("s_cbranch_scc0 %s" % skip)
        self.spin(vaddr, vtarget, vtmp)
        self.label(skip)
        self.e("s_barrier")

    def signal(self, vaddr, vone, nlanes):
        skip = self.newlabel("sig")
        self.e("s_cmp_eq_u32 s%d, 0" % sWAVE)
        self.e("s_cbranch_scc0 %s" % skip)
        self.e("s_mov_b64 exec, %d" % ((1 << nlanes) - 1))
        self.e("buffer_atomic_add %s, %s, %s, 0 offen sc1" % (v(vone), v(vaddr), srd(SRD_WS)))
        self.e("s_mov_b64 exec, -1")
        self.label(skip)

    def endif_stop(self, name):
        if self.stop == name:
            self.wait_all()
            self.e("s_endpgm")
            return True
        return False

    def mk(self, dst, src, size):
        e = self.e
        e("s_mov_b32 s%d, s%d" % (dst, src))
        e("s_mov_b32 s%d, s%d" % (dst + 1, src + 1))
        e("s_mov_b32 s%d, %d" % (dst + 2, size))
        e("s_mov_b32 s%d, 0x20000" % (dst + 3))

    def srds(self, which):
        e, mk = self.e, self.mk
        for r in which:
            if r == "q":
                mk(SRD_Q, 52, S * D * 2)
            elif r == "k":
                mk(SRD_K, 54, S * D * 2)
            elif r == "v":
                mk(SRD_V, 56, S * D * 2)
            elif r == "sh":
                mk(SRD_SH, 58, D * 4 * 2)
            elif r == "sk":
                mk(SRD_SK, 60, S * D * 2)
            elif r == "w":
                mk(SRD_WG, 64, D * F * 2)
                mk(SRD_WU, 66, D * F * 2)
                mk(SRD_WD, 68, D * F * 2)
                e("s_sub_u32 s%d, s%d, 1024" % (SRD_WU, SRD_WU))
                e("s_subb_u32 s%d, s%d, 0" % (SRD_WU + 1, SRD_WU + 1))
                e("s_add_u32 s%d, s%d, 1024" % (SRD_WU + 2, SRD_WU + 2))
            elif r == "rest":
                mk(SRD_OUT, 70, S * D * 2)
                mk(SRD_DBG, 72, 256)
                mk(SRD_WS, 74, WS_SIZE)

    def prologue(self):
        e = self.e
        if self.stamps:
            e("s_memrealtime vcc")
        e("s_load_dwordx8 s[52:59], s[0:1], 0")
        e("s_getpc_b64 s[%d:%d]" % (sPC, sPC + 1))
        self.label("L_pc")
        if self.touch:
            e("s_min_u32 s%d, s2, 223" % sT1)
            e("s_mul_i32 s%d, s%d, 293" % (sRB, sT1))
            e("s_lshr_b32 s%d, s%d, 11" % (sRB, sRB))
            e("v_lshrrev_b32 v3, 6, v0")
            e("v_and_b32 v2, 15, v0")
            e("v_lshl_add_u32 v2, v3, 4, v2")
            e("s_lshl_b32 s%d, s%d, 7" % (sT1, sT1))
            e("s_mul_i32 s%d, s%d, 56448" % (sA0BASE, sRB))
            e("v_mul_u32_u24 v2, 896, v2")
            e("s_add_u32 s%d, s%d, s%d" % (sA0BASE, sA0BASE, sT1))
            e("v_add_u32 v2, s%d, v2" % sA0BASE)
        e("v_and_b32 v4, 7, v0")
        e("s_lshr_b32 s%d, s2, 3" % sT0)
        e("v_lshlrev_b32 v4, 7, v4")
        e("s_lshl_b32 s%d, s%d, 10" % (sT0, sT0))
        e("v_add_u32 v4, s%d, v4" % sT0)
        e("v_min_u32 v4, L_codeend-L_pc-4, v4")
        e("global_load_dword v253, v4, s[%d:%d]" % (sPC, sPC + 1))
        if self.touch:
            e("s_waitcnt lgkmcnt(0)")
            e("global_load_dword v252, v2, s[54:55]")
            e("global_load_dword v252, v2, s[56:57]")
            e("global_load_dword v252, v2, s[52:53]")
        else:
            e("v_lshrrev_b32 v3, 6, v0")
        e("s_load_dwordx4 s[60:63], s[0:1], 32")
        e("s_load_dwordx4 s[64:67], s[0:1], 56")
        e("s_load_dwordx4 s[68:71], s[0:1], 72")
        e("s_load_dwordx4 s[72:75], s[0:1], 88")
        if self.spin_us:
            e("s_memrealtime s[100:101]")
        e("v_and_b32 v1, 63, v0")
        e("v_readfirstlane_b32 s%d, v3" % sWAVE)
        e("s_cmp_ge_u32 s2, 256")
        e("s_cbranch_scc1 L_exit")
        e("s_cmp_ge_u32 s2, 224")
        e("s_cbranch_scc1 L_helper")

    def phase_a0(self):
        e = self.e
        self.c("==== A0 ====")
        e("s_mul_i32 s%d, s2, 293" % sRB)
        e("s_lshr_b32 s%d, s%d, 11" % (sRB, sRB))
        e("s_mul_i32 s%d, s%d, 7" % (sT0, sRB))
        e("s_sub_u32 s%d, s2, s%d" % (sG0, sT0))
        e("s_mul_i32 s%d, s%d, %d" % (sA0BASE, sRB, 64 * 896))
        e("s_lshl_b32 s%d, s%d, 7" % (sT0, sG0))
        e("s_add_u32 s%d, s%d, s%d" % (sA0BASE, sA0BASE, sT0))
        vP, vOff, vOffH, vT = 4, 5, 6, 7
        e("v_lshrrev_b32 %s, 4, v1" % v(vT))
        e("v_and_b32 %s, 1, %s" % (v(vT), v(vT)))
        e("v_lshlrev_b32 %s, 1, %s" % (v(vT), v(vT)))
        e("v_and_b32 %s, 7, v1" % v(vP))
        e("v_xor_b32 %s, %s, %s" % (v(vP), v(vP), v(vT)))
        e("v_lshlrev_b32 %s, 4, %s" % (v(vP), v(vP)))
        e("v_lshrrev_b32 %s, 3, v1" % v(vT))
        e("v_mul_u32_u24 %s, 896, %s" % (v(vT), v(vT)))
        e("v_add_u32 %s, %s, %s" % (v(vP), v(vP), v(vT)))
        e("s_and_b32 s%d, s%d, 1" % (sT0, sWAVE))
        e("s_lshl_b32 s%d, s%d, 6" % (sT0, sT0))
        e("v_xor_b32 %s, s%d, %s" % (v(vOff), sT0, v(vP)))
        e("v_xor_b32 %s, 64, %s" % (v(vOffH), v(vP)))
        e("s_cmp_eq_u32 s%d, 0" % sRB)
        e("s_cselect_b32 s%d, 0x80000000, 0" % sT1)
        e("v_add_u32 %s, s%d, %s" % (v(vOffH), sT1, v(vOffH)))
        e("s_sub_u32 s%d, s%d, 7168" % (sT2, sA0BASE))
        e("s_cmp_eq_u32 s%d, 0" % sRB)
        e("s_cselect_b32 s%d, 0, s%d" % (sT2, sT2))
        e("s_mul_i32 s%d, s%d, 7168" % (sT3, sWAVE))
        e("s_add_u32 s%d, s%d, s%d" % (sT3, sT3, sA0BASE))
        e("s_add_u32 s%d, s%d, %d" % (sT4, sT3, 4 * 7168))
        e("s_lshl_b32 s%d, s%d, 10" % (sT5, sWAVE))

        e("s_waitcnt lgkmcnt(0)")
        if self.stamps:
            e("v_mov_b32 v254, vcc_lo")
        self.srds("kvq")

        def dma(srdn, voff, soff, ldsbase, addw=True):
            if addw:
                e("s_add_u32 m0, s%d, %d" % (sT5, ldsbase))
            else:
                e("s_mov_b32 m0, %d" % ldsbase)
            e("s_nop 0")
            self.vmem("buffer_load_dwordx4 %s, %s, s%d offen lds" % (v(voff), srd(srdn), soff), "a0")
        dma(SRD_K, vOffH, sT2, L_K, addw=False)
        dma(SRD_K, vOff, sT3, L_K + 1024)
        dma(SRD_K, vOff, sT4, L_K + 5 * 1024)
        dma(SRD_V, vOff, sT3, L_V)
        dma(SRD_V, vOff, sT4, L_V + 4 * 1024)
        dma(SRD_Q, vOff, sT3, L_Q)
        dma(SRD_Q, vOff, sT4, L_Q + 4 * 1024)
        self.srds(["sh", "sk"])
        vCH, vSK = 8, 10
        e("s_lshl_b32 s%d, s%d, 6" % (sT0, sG0))
        e("s_lshl_b32 s%d, s%d, 4" % (sT1, sWAVE))
        e("s_add_u32 s%d, s%d, s%d" % (sT0, sT0, sT1))
        e("v_and_b32 %s, 15, v1" % v(vCH))
        e("v_add_u32 %s, s%d, %s" % (v(vCH), sT0, v(vCH)))
        e("v_lshlrev_b32 %s, 3, %s" % (v(vT), v(vCH)))
        self.vmem("buffer_load_dwordx2 %s, %s, %s, 0 offen" % (v(vSK, 2), v(vT), srd(SRD_SH)), "a0")

        e("s_lshr_b32 s%d, s%d, 1" % (sCHL, sWAVE))
        e("s_and_b32 s%d, s%d, 1" % (sHALF, sWAVE))
        vL16 = 9
        e("v_lshlrev_b32 %s, 4, v1" % v(vL16))
        e("s_lshl_b32 s%d, s2, 1" % sT0)
        e("s_add_u32 s%d, s%d, s%d" % (sT0, sT0, sCHL))
        e("s_lshl_b32 s%d, s%d, 12" % (sT0, sT0))
        e("s_lshl_b32 s%d, s%d, 11" % (sT1, sHALF))
        e("s_add_u32 s%d, s%d, s%d" % (sT0, sT0, sT1))
        e("s_mul_i32 s%d, s%d, 8320" % (sT2, sCHL))
        e("s_add_u32 s%d, s%d, s%d" % (sT2, sT2, sT1))
        e("s_add_u32 m0, s%d, %d" % (sT2, L_TS + 32))
        e("s_nop 0")
        for i in range(2):
            self.vmem("buffer_load_dwordx4 %s, %s, s%d offen offset:%d lds" % (v(vL16), srd(SRD_SK), sT0, 1024 * i), "ts")
        self.srds(["w", "rest"])
        self.decode_bc()
        self.stamp(0)
        if self.stamps:
            lab = self.newlabel("se")
            e("s_cmp_eq_u32 s%d, 0" % sWAVE)
            e("s_cbranch_scc0 %s" % lab)
            e("s_lshl_b32 s%d, s2, 8" % (sTS + 1))
            e("s_add_u32 s%d, s%d, %d" % (sTS + 1, sTS + 1, WS_TS + 4 * 31))
            e("v_mov_b32 v31, s%d" % (sTS + 1))
            e("s_mov_b64 exec, 1")
            e("buffer_store_dword v254, v31, %s, 0 offen" % srd(SRD_WS))
            e("s_mov_b64 exec, -1")
            self.label(lab)
        if self.tlbwarm:
            self.c("touch every page that is used later (address translation warm-up)")
            vZ = 59
            e("v_mov_b32 %s, 0" % v(vZ))
            e("s_mov_b64 exec, 1")
            for r in (SRD_SK, SRD_WG, SRD_WD, SRD_OUT):
                e("buffer_load_dword v252, %s, %s, 0 offen" % (v(vZ), srd(r)))
            e("v_mov_b32 %s, 1024" % v(vZ))
            e("buffer_load_dword v252, %s, %s, 0 offen" % (v(vZ), srd(SRD_WU)))
            e("s_mov_b64 exec, 0xff")
            e("v_lshlrev_b32 %s, 21, v1" % v(vZ))
            e("buffer_load_dword v252, %s, %s, 0 offen" % (v(vZ), srd(SRD_WS)))
            e("s_mov_b64 exec, -1")
            self.vm += ["tlb"] * 6
        e("s_lshl_b32 s%d, s2, 2" % sT3)
        e("s_load_dword s%d, s[62:63], s%d" % (sD, sT3))

        vTR, vTRH, vG, vR = 13, 14, 15, 16
        e("v_lshrrev_b32 %s, 4, v1" % v(vG))
        e("v_bfe_u32 %s, v1, 2, 2" % v(vR))
        e("v_lshrrev_b32 %s, 1, %s" % (v(vT), v(vR)))
        e("v_and_b32 %s, 1, %s" % (v(vTR), v(vG)))
        e("v_lshl_or_b32 %s, %s, 1, %s" % (v(vT), v(vTR), v(vT)))
        e("v_xor_b32 %s, s%d, %s" % (v(vT), sWAVE, v(vT)))
        e("v_lshlrev_b32 %s, 5, %s" % (v(vT), v(vT)))
        e("v_lshl_add_u32 %s, %s, 3, %s" % (v(vTR), v(vG), v(vR)))
        e("v_lshl_add_u32 %s, %s, 7, %s" % (v(vTR), v(vTR), v(vT)))
        e("v_and_b32 %s, 3, v1" % v(vT))
        e("v_lshl_add_u32 %s, %s, 3, %s" % (v(vTR), v(vT), v(vTR)))
        e("v_add_u32 %s, %d, %s" % (v(vTR), L_K, v(vTR)))
        e("v_xor_b32 %s, 64, %s" % (v(vTRH), v(vTR)))
        vSKV, vSQ = 17, 18
        e("s_lshl_b32 s%d, s%d, 7" % (sT0, sRB))
        e("v_lshlrev_b32 %s, 12, %s" % (v(vSQ), v(vCH)))
        e("v_lshlrev_b32 %s, 4, %s" % (v(vT), v(vG)))
        e("s_sub_u32 s%d, %d, s%d" % (sT1, WS_KVT + 4080 - 64, sT0))
        e("v_add_u32 %s, s%d, %s" % (v(vSKV), sT1, v(vSQ)))
        e("v_sub_u32 %s, %s, %s" % (v(vSKV), v(vSKV), v(vT)))
        e("s_add_u32 s%d, s%d, %d" % (sT1, sT0, WS_QT))
        e("v_add3_u32 %s, %s, %s, s%d" % (v(vSQ), v(vSQ), v(vT), sT1))
        self.wait_vm("a0")
        e("s_waitcnt lgkmcnt(0)")
        self.lg = []
        e("s_lshl_b32 s%d, s%d, 16" % (sT0, sD))
        e("s_and_b32 s%d, s%d, 0xffff0000" % (sT1, sD))
        e("s_cmp_eq_u32 s%d, 0" % sCHL)
        e("s_cselect_b32 s%d, s%d, s%d" % (sD, sT0, sT1))
        e("s_barrier")
        self.stamp(1)

        KH = [24, 34]
        KM = [26, 36]
        VV = [40, 44]
        QQ = [48, 52]
        for rho in range(2):
            self.lds("ds_read_b64_tr_b16 %s, %s offset:%d" % (v(KH[rho], 2), v(vTRH), 512 + 4096 * rho), "k%d" % rho)
            self.lds("ds_read_b64_tr_b16 %s, %s offset:%d" % (v(KM[rho], 2), v(vTR), 1024 + 4096 * rho), "k%d" % rho)
            self.lds("ds_read_b64_tr_b16 %s, %s offset:%d" % (v(KM[rho] + 2, 2), v(vTR), 1024 + 512 + 4096 * rho), "k%d" % rho)
            self.lds("ds_read_b64_tr_b16 %s, %s offset:%d" % (v(VV[rho], 2), v(vTR), L_V - L_K + 4096 * rho), "v%d" % rho)
            self.lds("ds_read_b64_tr_b16 %s, %s offset:%d" % (v(VV[rho] + 2, 2), v(vTR), L_V - L_K + 512 + 4096 * rho), "v%d" % rho)
        for rho in range(2):
            self.lds("ds_read_b64_tr_b16 %s, %s offset:%d" % (v(QQ[rho], 2), v(vTR), L_Q - L_K + 4096 * rho), "q")
            self.lds("ds_read_b64_tr_b16 %s, %s offset:%d" % (v(QQ[rho] + 2, 2), v(vTR), L_Q - L_K + 512 + 4096 * rho), "q")
        CA, CB = 21, 22
        e("v_alignbit_b32 %s, %s, %s, 16" % (v(CA), v(vSK), v(vSK)))
        e("v_alignbit_b32 %s, %s, %s, 16" % (v(CB), v(vSK + 1), v(vSK + 1)))
        MM = 56
        KS = 64
        VF = 72
        OUTR = [80, 84]
        for rho in range(2):
            self.wait_lg("v%d" % rho)
            Dw = [KH[rho], KH[rho] + 1, KM[rho], KM[rho] + 1, KM[rho] + 2, KM[rho] + 3]
            for i in range(5):
                e("v_alignbit_b32 %s, %s, %s, 16" % (v(MM + i), v(Dw[i + 1]), v(Dw[i])))
            for t in range(8):
                if t & 1:
                    p0, p1 = Dw[2 + (t >> 1)], Dw[1 + (t >> 1)]
                else:
                    p0, p1 = MM + 1 + (t >> 1), MM + (t >> 1)
                e("v_dot2_f32_bf16 %s, %s, %s, 0" % (v(KS + t), v(p1), v(CB)))
            for t in range(8):
                if t & 1:
                    p0 = Dw[2 + (t >> 1)]
                else:
                    p0 = MM + 1 + (t >> 1)
                e("v_dot2_f32_bf16 %s, %s, %s, %s" % (v(KS + t), v(p0), v(CA), v(KS + t)))
            for t in range(8):
                src = VV[rho] + (t >> 1)
                if t & 1:
                    e("v_and_b32 %s, 0xffff0000, %s" % (v(VF + t), v(src)))
                else:
                    e("v_lshlrev_b32 %s, 16, %s" % (v(VF + t), v(src)))
            for t in range(8):
                e("v_mul_f32 %s, %s, %s" % (v(KS + t), v(KS + t), v(VF + t)))
            for i in range(4):
                e("v_cvt_pk_bf16_f32 %s, %s, %s" % (v(OUTR[rho] + i), v(KS + 7 - 2 * i), v(KS + 6 - 2 * i)))
            self.vmem("buffer_store_dwordx4 %s, %s, %s, 0 offen offset:%d sc1" % (v(OUTR[rho], 4), v(vSKV), srd(SRD_WS), 64 if rho == 0 else 0), "a0st")
        self.wait_lg("q")
        for rho in range(2):
            self.vmem("buffer_store_dwordx4 %s, %s, %s, 0 offen offset:%d sc1" % (v(QQ[rho], 4), v(vSQ), srd(SRD_WS), 64 * rho), "a0st")
        vGO, vZERO = 23, 58
        e("v_mov_b32 %s, 0" % v(vZERO))
        self.vmem("buffer_load_dword %s, %s, %s, 0 offen offset:%d sc1" % (v(vGO), v(vZERO), srd(SRD_DBG), self.go_off), "go")
        self.stamp(2)

    def t_build(self):
        e = self.e
        vZ, vZA, vRA, vPA = 19, 20, 21, 22
        D0 = 100
        e("v_mov_b32 %s, 0" % v(vZ))
        e("s_mul_i32 s%d, s%d, 8320" % (sT2, sCHL))
        e("s_add_u32 s%d, s%d, %d" % (sT2, sT2, L_TS))
        e("v_lshl_add_u32 %s, v1, 2, s%d" % (v(vPA), sT2))
        e("v_mov_b32 %s, s%d" % (v(vZA), sT2))
        e("v_add_u32 %s, %d, %s" % (v(vZA), 32 + 4096, v(vZA)))
        e("v_cmp_gt_u32 vcc, 8, v1")
        e("s_nop 1")
        e("v_cndmask_b32 %s, %s, %s, vcc" % (v(vZA), v(vZA), v(vPA)))
        e("s_mov_b64 exec, 0x1ff")
        e("ds_write_b32 %s, %s" % (v(vZA), v(vZ)))
        e("s_mov_b64 exec, -1")
        e("s_lshl_b32 s%d, s%d, 11" % (sT1, sHALF))
        e("s_add_u32 s%d, s%d, s%d" % (sT1, sT1, sT2))
        e("s_add_u32 s%d, s%d, 32" % (sT1, sT1))
        e("v_lshl_add_u32 %s, v1, 4, s%d" % (v(vRA), sT1))
        self.wait_vm("ts")
        self.wait_lg0()
        e("s_barrier")
        for c in range(2):
            e("ds_read_b128 %s, %s offset:%d" % (v(D0 + 6 * c, 4), v(vRA), 1024 * c))
            e("ds_read_b32 %s, %s offset:%d" % (v(D0 + 6 * c + 4), v(vRA), 1024 * c + 16))
        e("ds_read2_b32 %s, %s offset0:0 offset1:1" % (v(D0 + 12, 2), v(vPA)))
        e("s_mul_i32 s%d, s%d, 4608" % (sT0, sCHL))
        e("s_lshl_b32 s%d, s%d, 8" % (sT1, sHALF))
        e("s_add_u32 s%d, s%d, s%d" % (sT0, sT0, sT1))
        e("s_add_u32 s%d, s%d, %d" % (sT0, sT0, L_X + 4096))
        e("v_lshl_add_u32 %s, v1, 2, s%d" % (v(vZA), sT0))
        e("ds_write_b32 %s, %s" % (v(vZA), v(vZ)))
        self.wait_lg0()
        O = D0 + 16
        for c in range(2):
            for i in range(4):
                e("v_alignbit_b32 %s, %s, %s, 16" % (v(O + 4 * c + i), v(D0 + 6 * c + i + 1), v(D0 + 6 * c + i)))
        e("v_alignbit_b32 %s, %s, %s, 16" % (v(O + 8), v(D0 + 13), v(D0 + 12)))
        for c in range(2):
            e("ds_write_b128 %s, %s offset:%d" % (v(vRA), v(O + 4 * c, 4), 4160 + 1024 * c))
        e("s_mov_b64 exec, 0xff")
        e("ds_write_b32 %s, %s offset:4160" % (v(vPA), v(O + 8)))
        e("s_mov_b64 exec, -1")
        self.wait_lg0()
        e("s_barrier")

    def w_stage_setup(self):
        e = self.e
        vT = 7
        e("v_lshrrev_b32 %s, 2, v1" % v(vT))
        e("v_mul_u32_u24 %s, 3584, %s" % (v(vT), v(vT)))
        e("v_and_b32 %s, 3, v1" % v(vWS))
        e("v_xor_b32 %s, 2, %s" % (v(vWS + 1), v(vWS)))
        e("v_lshl_add_u32 %s, %s, 4, %s" % (v(vWS), v(vWS), v(vT)))
        e("v_lshl_add_u32 %s, %s, 4, %s" % (v(vWS + 1), v(vWS + 1), v(vT)))
        e("v_add_u32 %s, %d, %s" % (v(vWS + 2), 57344 - 2048, v(vWS)))
        e("v_add_u32 %s, %d, %s" % (v(vWS + 3), 57344 - 2048, v(vWS + 1)))

    def w_stage_items(self, rnd, spanel=None, gstart=0, ngroups=7, sgstart=None):
        e = self.e
        items = []
        sp = sWAVE if spanel is None else spanel

        def setup():
            e("s_lshl_b32 s%d, s%d, 8" % (sWB, sBJ))
            e("s_lshl_b32 s%d, s%d, 6" % (sWM, sp))
            e("s_add_u32 s%d, s%d, s%d" % (sWB, sWB, sWM))
            if rnd:
                e("s_add_u32 s%d, s%d, %d" % (sWB, sWB, 14 * rnd * 57344))
            e("s_mul_i32 s%d, s%d, 28672" % (sWM, sp))
            if L_WST:
                e("s_add_u32 s%d, s%d, %d" % (sWM, sWM, L_WST))
            e("s_and_b32 s%d, s%d, 3" % (sWG, sBI))
            e("s_lshl_b32 s%d, s%d, 1" % (sWG, sWG))
            if sgstart is not None:
                e("s_add_u32 s%d, s%d, s%d" % (sWG, sWG, sgstart))
                e("s_cmp_ge_u32 s%d, 7" % sWG)
                e("s_cselect_b32 s%d, 7, 0" % sWX)
                e("s_sub_u32 s%d, s%d, s%d" % (sWG, sWG, sWX))

        def addr():
            e("s_mul_i32 s%d, s%d, %d" % (sWSO, sWG, 2 * 57344))
            e("s_add_u32 s%d, s%d, s%d" % (sWSO, sWSO, sWB))
            e("s_lshl_b32 s%d, s%d, 12" % (sWX, sWG))
            e("s_add_u32 m0, s%d, s%d" % (sWX, sWM))
        for grp in range(ngroups):
            for n in range(4):
                def one(grp=grp, n=n):
                    if grp == 0 and n == 0:
                        setup()
                        addr()
                        e("s_nop 0")
                    elif n == 0:
                        e("s_add_u32 s%d, s%d, 1" % (sWG, sWG))
                        e("s_cmp_eq_u32 s%d, 7" % sWG)
                        e("s_cselect_b32 s%d, 0, s%d" % (sWG, sWG))
                        addr()
                        e("s_nop 0")
                    self.vmem("buffer_load_dwordx4 %s, %s, s%d offen offset:%d lds" % (v(vWS + (n & 1) + 2 * (n >> 1)), srd(SRD_WG if (n & 1) == 0 else SRD_WU), sWSO, 1024 * n), "w%d" % rnd)
                items.append(one)
        return items

    def w_stage_read_setup(self, vB0, vB1):
        e = self.e
        vT, vU = 7, 4
        e("v_bfe_u32 %s, v1, 4, 1" % v(vT))
        e("v_lshrrev_b32 %s, 5, v1" % v(vU))
        e("v_lshlrev_b32 %s, 3, %s" % (v(vU), v(vU)))
        e("v_bfe_u32 %s, v1, 2, 2" % v(vB0))
        e("v_add_u32 %s, %s, %s" % (v(vU), v(vU), v(vB0)))
        e("v_lshlrev_b32 %s, 6, %s" % (v(vU), v(vU)))
        e("v_and_b32 %s, 3, v1" % v(vB0))
        e("v_lshl_add_u32 %s, %s, 3, %s" % (v(vU), v(vB0), v(vU)))
        e("v_mul_u32_u24 %s, 1056, %s" % (v(vT), v(vT)))
        e("s_mul_i32 s%d, s%d, 28672" % (sT0, sWAVE))
        e("v_add3_u32 %s, %s, %s, s%d" % (v(vB0), v(vU), v(vT), sT0))
        e("v_xor_b32 %s, 32, %s" % (v(vB1), v(vB0)))

    def w_stage_read_items(self, rnd, vB0, vB1):
        items = []
        for s in range(14):
            for ft in range(2):
                base = 8 * (14 * rnd + s) + 4 * ft
                for ee in range(2):
                    items.append("ds_read_b64_tr_b16 %s, %s offset:%d" % (a(base + 2 * ee, 2), v(vB0 if ft == 0 else vB1), L_WST + 2048 * s + 256 * ee))
        return items

    def w_stage_read(self, rnd):
        self.c("W staging -> AGPR round %d" % rnd)
        self.wait_vm("w%d" % rnd)
        for line in self.w_stage_read_items(rnd, vWRD, vWRD + 1):
            self.lds(line, "wr")

    def t_read(self):
        e = self.e
        self.c("T fragments -> a112..a239")
        vB, vT, vU = 240, 7, 4
        e("v_and_b32 %s, 15, v1" % v(vT))
        e("v_and_b32 %s, 1, %s" % (v(vU), v(vT)))
        e("v_add_u32 %s, %s, %s" % (v(vT), v(vT), v(vU)))
        e("v_lshrrev_b32 %s, 4, v1" % v(vB))
        e("v_lshl_add_u32 %s, %s, 3, %s" % (v(vT), v(vB), v(vT)))
        e("v_lshlrev_b32 %s, 1, %s" % (v(vT), v(vT)))
        e("v_xor_b32 %s, 1, %s" % (v(vU), v(vU)))
        e("v_mul_u32_u24 %s, 4160, %s" % (v(vU), v(vU)))
        e("s_mul_i32 s%d, s%d, 8320" % (sT0, sCHL))
        e("s_lshl_b32 s%d, s%d, 8" % (sT1, sHALF))
        e("s_add_u32 s%d, s%d, s%d" % (sT0, sT0, sT1))
        e("s_add_u32 s%d, s%d, %d" % (sT0, sT0, L_TS))
        e("v_add3_u32 %s, %s, %s, s%d" % (v(vB), v(vT), v(vU), sT0))
        for i in range(1, 4):
            e("v_add_u32 %s, %d, %s" % (v(vB + i), 1024 * i, v(vB)))
        items = []
        for rr in range(4):
            for q in range(8):
                base = 112 + 4 * (8 * rr + q)
                o = 128 * (q & 1) + 16 * rr
                for hh in range(2):
                    items.append("ds_read2_b32 %s, %s offset0:%d offset1:%d" % (a(base + 2 * hh, 2), v(vB + (q >> 1)), o + 2 * hh, o + 2 * hh + 1))
        return items

    def pre_signal(self):
        e = self.e
        self.t_build()
        titems = self.t_read()
        lab0, labj = self.newlabel("p0"), self.newlabel("pj")
        e("s_cmp_eq_u32 s%d, 0" % sWAVE)
        e("s_cbranch_scc1 %s" % lab0)
        save = list(self.vm)
        self.w0_own = self.w_stage_items(0)
        t = list(titems)
        npre = self.npre
        for it in self.w0_own[:npre]:
            it()
            for _ in range(64 // npre):
                e(t.pop(0))
        while t:
            e(t.pop(0))
        self.wait_vm("go")
        self.vm = list(save)
        e("s_branch %s" % labj)
        self.label(lab0)
        for line in titems:
            e(line)
        self.wait_vm("go")
        self.label(labj)

    def window1(self, vL16):
        e = self.e
        lab0, labj = self.newlabel("w0"), self.newlabel("wj")
        e("s_cmp_eq_u32 s%d, 0" % sWAVE)
        e("s_cbranch_scc1 %s" % lab0)
        if self.prefetch:
            vP = 59
            e("s_mul_i32 s%d, s2, 7168" % sT0)
            e("s_sub_u32 s%d, s%d, 1" % (sT1, sWAVE))
            e("s_mul_i32 s%d, s%d, %d" % (sT1, sT1, 19 * 128))
            e("s_add_u32 s%d, s%d, s%d" % (sT0, sT0, sT1))
            e("v_lshl_add_u32 %s, v1, 7, s%d" % (v(vP), sT0))
            e("s_mov_b64 exec, 0x7ffff")
            e("buffer_load_dword v252, %s, %s, 0 offen" % (v(vP), srd(SRD_WG)))
            e("buffer_load_dword v252, %s, %s, 0 offen offset:1024" % (v(vP), srd(SRD_WU)))
            e("buffer_load_dword v252, %s, %s, 0 offen" % (v(vP), srd(SRD_WD)))
            e("s_mov_b64 exec, -1")
        save = list(self.vm)
        for it in self.w0_own[self.npre:]:
            it()
        sPAN, sGST = 72, 73
        e("s_mov_b32 s%d, 0" % sPAN)
        e("s_lshl_b32 s%d, s%d, 1" % (sGST, sWAVE))
        e("s_sub_u32 s%d, s%d, 1" % (sGST, sGST))
        e("s_cmp_eq_u32 s%d, 1" % sWAVE)
        e("s_cselect_b32 s%d, 0, s%d" % (sGST, sGST))
        sh = self.w_stage_items(0, spanel=sPAN, ngroups=3, sgstart=sGST)
        for it in sh[:8]:
            it()
        lab3 = self.newlabel("w3")
        e("s_cmp_eq_u32 s%d, 1" % sWAVE)
        e("s_cbranch_scc0 %s" % lab3)
        for it in sh[8:]:
            it()
        self.label(lab3)
        self.vm = save
        e("s_waitcnt vmcnt(0) lgkmcnt(0)")
        e("s_branch %s" % labj)
        self.label(lab0)
        vA, vTg, vTmp = 21, 22, 23
        e("s_and_b32 s%d, s2, 7" % sT1)
        e("s_lshl_b32 s%d, s%d, 8" % (sT1, sT1))
        e("s_add_u32 s%d, s%d, %d" % (sT1, sT1, WS_CNT + 256 * C_SL1))
        e("s_lshr_b32 s%d, s2, 5" % sT0)
        e("s_lshl_b32 s%d, s%d, 8" % (sT0, sT0))
        e("s_add_u32 s%d, s%d, %d" % (sT0, sT0, WS_CNT + 256 * C_S1))
        e("v_mov_b32 %s, s%d" % (v(vA), sT0))
        e("v_mov_b32 %s, s%d" % (v(vTmp), sT1))
        e("v_cmp_gt_u32 vcc, 32, v1")
        e("s_nop 1")
        e("v_cndmask_b32 %s, %s, %s, vcc" % (v(vA), v(vTmp), v(vA)))
        e("v_mov_b32 %s, 32" % v(vTg))
        self.spin(vA, vTg, vTmp)
        self.stamp(4)
        e("s_lshl_b32 s%d, s2, 13" % sT0)
        if WS_KVT:
            e("s_add_u32 s%d, s%d, %d" % (sT0, sT0, WS_KVT))
        e("s_mov_b32 m0, %d" % L_X)
        e("s_nop 0")
        for i in range(4):
            e("buffer_load_dwordx4 %s, %s, s%d offen offset:%d sc1 lds" % (v(vL16), srd(SRD_WS), sT0, 1024 * i))
        e("s_add_u32 s%d, s%d, 4096" % (sT0, sT0))
        e("s_mov_b32 m0, %d" % (L_X + 4608))
        e("s_nop 0")
        for i in range(4):
            e("buffer_load_dwordx4 %s, %s, s%d offen offset:%d sc1 lds" % (v(vL16), srd(SRD_WS), sT0, 1024 * i))
        e("s_mov_b32 s%d, %d" % (sT0, WS_ST1))
        for grp in range(4):
            e("s_mov_b32 m0, %d" % (L_EX + 4096 * grp))
            e("s_nop 0")
            for i in range(4):
                e("buffer_load_dwordx4 %s, %s, s%d offen offset:%d sc1 lds" % (v(vL16), srd(SRD_WS), sT0, 1024 * i))
            if grp != 3:
                e("s_add_u32 s%d, s%d, 4096" % (sT0, sT0))
        e("s_waitcnt vmcnt(16) lgkmcnt(0)")
        self.label(labj)
        self.vm = ["w0"]
        self.lg = []
        e("s_barrier")

    def phase_a1(self):
        e = self.e
        self.c("==== A1 ====")
        ACC = 32
        XF = [64, 96]
        QR, KVR, AR, BR = 128, 136, 144, 160
        LN, KD, QF = 176, 192, 208
        Y = 224
        vT, vU = 7, 4
        vL16 = 9
        e("v_lshlrev_b32 %s, 4, v1" % v(vL16))
        e("s_lshl_b32 s%d, s2, 1" % sT0)
        e("s_add_u32 s%d, s%d, s%d" % (sT0, sT0, sCHL))
        e("s_lshl_b32 s%d, s%d, 12" % (sT0, sT0))
        vTL = 5
        e("v_and_b32 %s, 15, v1" % v(vT))
        e("v_lshrrev_b32 %s, 4, v1" % v(vU))
        e("v_lshlrev_b32 %s, 2, %s" % (v(vU), v(vU)))
        e("v_lshl_add_u32 %s, %s, 4, %s" % (v(vTL), v(vT), v(vU)))
        e("s_lshl_b32 s%d, s%d, 10" % (sT1, sHALF))
        e("v_add_u32 %s, s%d, %s" % (v(vTL), sT1, v(vTL)))
        vQA, vSA = 6, 8
        e("s_add_u32 s%d, s%d, %d" % (sT2, sT0, WS_QT))
        e("v_lshl_add_u32 %s, %s, 1, s%d" % (v(vQA), v(vTL), sT2))
        e("v_lshlrev_b32 %s, 2, %s" % (v(vSA), v(vTL)))
        e("s_mov_b32 s%d, %d" % (sT4, WS_ST1))
        e("s_mov_b32 s%d, %d" % (sT5, WS_ST1 + 8192))
        vXB, vKVA, vEW, vER = 10, 11, 12, 13
        e("v_and_b32 %s, 15, v1" % v(vT))
        e("v_lshrrev_b32 %s, 4, v1" % v(vU))
        e("v_lshlrev_b32 %s, 4, %s" % (v(vU), v(vU)))
        e("v_lshlrev_b32 %s, 5, %s" % (v(vT), v(vT)))
        e("v_sub_u32 %s, %s, %s" % (v(vXB), v(vU), v(vT)))
        e("s_mul_i32 s%d, s%d, 4608" % (sT0, sCHL))
        e("s_lshl_b32 s%d, s%d, 8" % (sT1, sHALF))
        e("s_add_u32 s%d, s%d, s%d" % (sT1, sT1, sT0))
        e("s_add_u32 s%d, s%d, %d" % (sT1, sT1, L_X + 480))
        e("v_add_u32 %s, s%d, %s" % (v(vXB), sT1, v(vXB)))
        e("s_add_u32 s%d, s%d, %d" % (sT1, sT0, L_X + 4088 - 1536))
        e("v_lshlrev_b32 %s, 1, %s" % (v(vT), v(vTL)))
        e("v_sub_u32 %s, s%d, %s" % (v(vKVA), sT1, v(vT)))
        e("s_lshl_b32 s%d, s%d, 12" % (sT0, sWAVE))
        e("s_add_u32 s%d, s%d, %d" % (sT1, sT0, L_TS))
        e("v_add_u32 %s, s%d, %s" % (v(vEW), sT1, v(vL16)))
        e("s_xor_b32 s%d, s%d, 0x1000" % (sT0, sT0))
        e("s_add_u32 s%d, s%d, %d" % (sT1, sT0, L_TS))
        e("v_add_u32 %s, s%d, %s" % (v(vER), sT1, v(vL16)))
        vHO = 14
        vRow = 15
        e("v_lshrrev_b32 %s, 4, v1" % v(vRow))
        e("v_and_b32 %s, 15, v1" % v(vT))
        e("v_lshrrev_b32 %s, 1, %s" % (v(vU), v(vT)))
        e("v_and_b32 %s, 1, %s" % (v(vHO), v(vRow)))
        e("v_lshl_add_u32 %s, %s, 3, %s" % (v(vU), v(vHO), v(vU)))
        e("v_mul_u32_u24 %s, 28672, %s" % (v(vHO), v(vU)))
        e("v_and_b32 %s, 1, %s" % (v(vT), v(vT)))
        e("v_lshl_add_u32 %s, %s, 5, %s" % (v(vHO), v(vT), v(vHO)))
        e("v_lshrrev_b32 %s, 1, %s" % (v(vRow), v(vRow)))
        e("v_lshl_add_u32 %s, %s, 4, %s" % (v(vHO), v(vRow), v(vHO)))
        e("s_lshl_b32 s%d, s2, 1" % sT0)
        e("s_add_u32 s%d, s%d, s%d" % (sT0, sT0, sCHL))
        e("s_lshl_b32 s%d, s%d, 6" % (sT0, sT0))
        e("s_mul_i32 s%d, s%d, %d" % (sT1, sHALF, 32 * 28672))
        e("s_add_u32 s%d, s%d, s%d" % (sT0, sT0, sT1))
        e("s_add_u32 s%d, s%d, %d" % (sT6, sT0, WS_HB))
        e("s_add_u32 s%d, s%d, %d" % (sT7, sT6, 16 * 28672))
        vABR = 16
        e("v_lshl_add_u32 %s, %s, 2, 0" % (v(vABR), v(vTL)))
        e("v_add_u32 %s, %d, %s" % (v(vABR), L_EX, v(vABR)))
        self.window1(vL16)
        self.stamp(5)

        def xread(rr):
            for m in range(8):
                self.lds("ds_read_b128 %s, %s offset:%d" % (v(XF[rr & 1] + 4 * m, 4), v(vXB), 512 * (7 - m) + 64 * rr), "x%d" % rr)

        F = [[], [], [], []]

        def pair(lst, items):
            for i in range(0, len(items), 2):
                lst.append(items[i:i + 2])
        wr = [("lds", x, "wr") for x in self.w_stage_read_items(0, vWRD, vWRD + 1)]
        pair(F[0], wr)
        w1 = self.w_stage_items(1)
        NW1 = self.nw1
        self.w1_rest = w1[NW1:]
        rest = []
        for cc in range(4):
            rest.append([("lds", "ds_read_b64 %s, %s offset:%d" % (v(KVR + 2 * cc, 2), v(vKVA), 512 * (3 - cc)), "kv"),
                         ("vm", "buffer_load_dwordx2 %s, %s, %s, 0 offen offset:%d sc1" % (v(QR + 2 * cc, 2), v(vQA), srd(SRD_WS), 512 * cc), "q")])
        for cc in range(4):
            rest.append([("lds", "ds_read_b128 %s, %s offset:%d" % (v(AR + 4 * cc, 4), v(vABR), 1024 * cc), "ab"),
                         ("lds", "ds_read_b128 %s, %s offset:%d" % (v(BR + 4 * cc, 4), v(vABR), 8192 + 1024 * cc), "ab")])
        it = []
        for cc in range(4):
            for i in range(4):
                src = KVR + 2 * cc + (1 - (i >> 1))
                if i & 1:
                    it.append(("v", "v_lshlrev_b32 %s, 16, %s" % (v(KD + 4 * cc + i), v(src))))
                else:
                    it.append(("v", "v_and_b32 %s, 0xffff0000, %s" % (v(KD + 4 * cc + i), v(src))))
        it[0:0] = []
        rest.append([("waitlg", "kv"), it[0]])
        rest += [[x] for x in it[1:]]
        rest += [[("v", "v_mul_f32 %s, s%d, %s" % (v(KD + x), sD, v(KD + x)))] for x in range(16)]
        qf = []
        for cc in range(4):
            for i in range(4):
                src = QR + 2 * cc + (i >> 1)
                if i & 1:
                    qf.append(("v", "v_and_b32 %s, 0xffff0000, %s" % (v(QF + 4 * cc + i), v(src))))
                else:
                    qf.append(("v", "v_lshlrev_b32 %s, 16, %s" % (v(QF + 4 * cc + i), v(src))))
        rest.append([("waitvm", "q"), qf[0]])
        rest += [[x] for x in qf[1:]]
        ln = [("v", "v_fma_f32 %s, %s, %s, %s" % (v(LN + x), v(QF + x), v(AR + x), v(BR + x))) for x in range(16)]
        rest.append([("waitlg", "ab"), ln[0]])
        rest += [[x] for x in ln[1:]]
        slots = [(1, 28), (2, 28), (3, 36)]
        nslot = sum(n for _, n in slots)
        nrest = len(rest)
        k = 0
        gslot = 0
        first_w = 4
        for rnd_, n in slots:
            for slot in range(n):
                left = nslot - gslot
                want_w = k < NW1 and gslot >= first_w and (gslot - first_w) * NW1 >= k * (nslot - first_w - 6)
                entry = []
                if want_w:
                    if k == 0:
                        entry.append(("waitlg", "wr"))
                    entry.append(("fn", w1[k]))
                    k += 1
                if rest and (not want_w or len(rest) >= left):
                    entry += rest.pop(0)
                F[rnd_].append(entry)
                gslot += 1
        assert k == NW1 and not rest, (k, len(rest))

        def run(entry):
            for it in entry:
                if it[0] == "v":
                    e(it[1])
                elif it[0] == "lds":
                    self.lds(it[1], it[2])
                elif it[0] == "vm":
                    self.vmem(it[1], it[2])
                elif it[0] == "fn":
                    it[1]()
                elif it[0] == "waitvm":
                    self.wait_vm(it[1])
                elif it[0] == "waitlg":
                    self.wait_lg(it[1])

        xread(0)
        for rr in range(4):
            if rr == 1:
                self.wait_vm("w0")
                e("s_barrier")
            self.wait_lg("x%d" % rr)
            cnt = 0
            fl = list(F[rr])
            for q in range(8):
                for c in range(q, 8):
                    m = c - q
                    srcc = "0" if (rr == 0 and q == 0) else v(ACC + 4 * c, 4)
                    e("v_mfma_f32_16x16x32_bf16 %s, %s, %s, %s" % (v(ACC + 4 * c, 4), a(112 + 4 * (8 * rr + q), 4), v(XF[rr & 1] + 4 * m, 4), srcc))
                    cnt += 1
                    if rr < 3 and cnt <= 8:
                        m2 = cnt - 1
                        self.lds("ds_read_b128 %s, %s offset:%d" % (v(XF[(rr + 1) & 1] + 4 * m2, 4), v(vXB), 512 * (7 - m2) + 64 * (rr + 1)), "x%d" % (rr + 1))
                    elif fl:
                        run(fl.pop(0))
            for entry in fl:
                run(entry)
        self.stamp(6)
        e("s_nop 7")
        lab1, lab2 = self.newlabel("h1"), self.newlabel("hj")
        TMP = XF[0]
        e("s_cmp_eq_u32 s%d, 0" % sHALF)
        e("s_cbranch_scc0 %s" % lab1)
        for cc in range(4):
            e("ds_write_b128 %s, %s offset:%d" % (v(vEW), v(ACC + 16 + 4 * cc, 4), 1024 * cc))
        for x in range(16):
            e("v_add_f32 %s, %s, %s" % (v(Y + x), v(ACC + x), v(KD + x)))
        e("s_branch %s" % lab2)
        self.label(lab1)
        for cc in range(4):
            e("ds_write_b128 %s, %s offset:%d" % (v(vEW), v(ACC + 4 * cc, 4), 1024 * cc))
        for x in range(16):
            e("v_add_f32 %s, %s, %s" % (v(Y + x), v(ACC + 16 + x), v(KD + x)))
        self.label(lab2)
        e("s_waitcnt lgkmcnt(0)")
        self.lg = []
        e("s_barrier")
        for cc in range(4):
            self.lds("ds_read_b128 %s, %s offset:%d" % (v(TMP + 4 * cc, 4), v(vER), 1024 * cc), "ex%d" % cc)
        P = XF[0] + 16
        for cc in range(4):
            self.wait_lg("ex%d" % cc)
            for i in range(4):
                x = 4 * cc + i
                e("v_add_f32 %s, %s, %s" % (v(Y + x), v(Y + x), v(TMP + x)))
            for i in range(4):
                x = 4 * cc + i
                e("v_fma_f32 %s, %s, %s, %s" % (v(Y + x), v(LN + x), v(Y + x), v(QF + x)))
            e("v_cvt_pk_bf16_f32 %s, %s, %s" % (v(P + 2 * cc), v(Y + 4 * cc), v(Y + 4 * cc + 1)))
            e("v_cvt_pk_bf16_f32 %s, %s, %s" % (v(P + 2 * cc + 1), v(Y + 4 * cc + 2), v(Y + 4 * cc + 3)))
            if cc & 1:
                b = P + 2 * (cc - 1)
                e("s_nop 1")
                e("v_permlane16_swap_b32 %s, %s" % (v(b), v(b + 2)))
                e("v_permlane16_swap_b32 %s, %s" % (v(b + 1), v(b + 3)))
                self.vmem("buffer_store_dwordx4 %s, %s, %s, s%d offen sc1" % (v(b, 4), v(vHO), srd(SRD_WS), sT6 if cc == 1 else sT7), "hst")
        self.stamp(7)

    def helper(self):
        e = self.e
        self.label("L_helper")
        self.in_helper = True
        self.vm = []
        self.lg = []
        self.c("==== helper ====")
        sH = sRB
        e("s_sub_u32 s%d, s2, 224" % sH)
        e("s_waitcnt lgkmcnt(0)")
        self.srds(["q", "rest"])
        vT, vU, vZ = 7, 4, 5
        e("v_mov_b32 %s, 0" % v(vZ))
        FR = 32
        vQ = 6
        e("s_lshl_b32 s%d, s%d, 6" % (sT0, sH))
        e("s_lshl_b32 s%d, s%d, 4" % (sT1, sWAVE))
        e("s_add_u32 s%d, s%d, s%d" % (sT0, sT0, sT1))
        e("v_and_b32 %s, 15, v1" % v(vT))
        e("v_add_u32 %s, s%d, %s" % (v(8), sT0, v(vT)))
        e("v_mul_u32_u24 %s, 896, %s" % (v(vQ), v(8)))
        e("v_lshrrev_b32 %s, 4, v1" % v(vU))
        e("v_lshl_add_u32 %s, %s, 4, %s" % (v(vQ), v(vU), v(vQ)))
        for s in range(14):
            self.vmem("buffer_load_dwordx4 %s, %s, %s, 0 offen offset:%d" % (v(FR + 4 * s, 4), v(vQ), srd(SRD_Q), 64 * s), "q")
        lab = self.newlabel("hz")
        e("s_cmp_eq_u32 s%d, 0" % sWAVE)
        e("s_cbranch_scc0 %s" % lab)
        e("s_lshl_b32 s%d, s%d, 8" % (sT0, sH))
        e("s_add_u32 s%d, s%d, %d" % (sT0, sT0, WS_ST2))
        e("v_lshl_add_u32 %s, v1, 2, s%d" % (v(vT), sT0))
        e("buffer_store_dword %s, %s, %s, 0 offen sc1" % (v(vZ), v(vT), srd(SRD_WS)))
        self.label(lab)
        lab = self.newlabel("hc")
        e("s_cmp_eq_u32 s%d, 0" % sH)
        e("s_cbranch_scc0 %s" % lab)
        e("v_lshlrev_b32 %s, 8, v0" % v(vT))
        e("v_add_u32 %s, %d, %s" % (v(vT), WS_CNT, v(vT)))
        e("v_cmp_gt_u32 vcc, %d, v0" % N_CNT)
        e("s_and_saveexec_b64 s[%d:%d], vcc" % (sEX, sEX + 1))
        lab2 = self.newlabel("hc2")
        e("s_cbranch_execz %s" % lab2)
        e("buffer_store_dword %s, %s, %s, 0 offen sc1" % (v(vZ), v(vT), srd(SRD_WS)))
        self.label(lab2)
        e("s_mov_b64 exec, s[%d:%d]" % (sEX, sEX + 1))
        e("s_waitcnt vmcnt(0)")
        e("s_barrier")
        e("v_mov_b32 %s, 1" % v(vU))
        lab3 = self.newlabel("hc3")
        e("s_cmp_eq_u32 s%d, 0" % sWAVE)
        e("s_cbranch_scc0 %s" % lab3)
        e("s_mov_b64 exec, 1")
        e("buffer_store_dword %s, %s, %s, 0 offen offset:%d sc1" % (v(vU), v(vZ), srd(SRD_DBG), self.go_off))
        e("s_mov_b64 exec, -1")
        self.label(lab3)
        self.label(lab)
        ONES = 16
        for i in range(4):
            e("v_mov_b32 %s, 0x3f803f80" % v(ONES + i))
        self.wait_vm("q")
        GR, SM = 20, 24
        self.stats_mfma(lambda s: FR + 4 * s, ONES, GR, SM, None)
        A_, B_ = 28, 29
        self.stats_finish(GR, SM, A_, B_, None)
        e("v_lshlrev_b32 %s, 2, %s" % (v(vT), v(8)))
        e("s_mov_b32 s%d, %d" % (sT4, WS_ST1))
        e("s_mov_b32 s%d, %d" % (sT5, WS_ST1 + 8192))
        e("s_mov_b32 exec_lo, 0x00f0000f")
        e("s_mov_b32 exec_hi, 0xf0000f00")
        self.vmem("buffer_store_dword %s, %s, %s, s%d offen sc1" % (v(A_), v(vT), srd(SRD_WS), sT4), "st")
        self.vmem("buffer_store_dword %s, %s, %s, s%d offen sc1" % (v(B_), v(vT), srd(SRD_WS), sT5), "st")
        e("s_mov_b64 exec, -1")
        vGO = 30
        loop, done = self.newlabel("go"), self.newlabel("god")
        e("s_mov_b32 s%d, %d" % (sSPIN, SPIN_LIMIT))
        self.label(loop)
        e("buffer_load_dword %s, %s, %s, 0 offen offset:%d sc1" % (v(vGO), v(vZ), srd(SRD_DBG), self.go_off))
        e("s_waitcnt vmcnt(0)")
        self.vm = []
        e("v_cmp_eq_u32 vcc, 0, %s" % v(vGO))
        e("s_nop 4")
        e("s_cbranch_vccz %s" % done)
        e("s_sub_u32 s%d, s%d, 1" % (sSPIN, sSPIN))
        e("s_cmp_lg_u32 s%d, 0" % sSPIN)
        e("s_cbranch_scc1 %s" % loop)
        self.label(done)
        e("s_barrier")
        e("v_lshlrev_b32 %s, 8, v1" % v(vT))
        e("v_add_u32 %s, %d, %s" % (v(vT), WS_CNT + 256 * C_SL1, v(vT)))
        e("v_mov_b32 %s, 1" % v(vU))
        self.signal(vT, vU, 8)
        self.stamp(3)
        if self.stop in ("a0", "a1"):
            self.wait_all()
            e("s_endpgm")
            return
        MK = 40
        for i in range(4):
            e("v_mov_b32 %s, -1" % v(MK + i))
        e("v_lshlrev_b32 v9, 4, v1")
        e("s_mul_i32 s%d, s%d, 229376" % (sT0, sH))
        e("s_mul_i32 s%d, s%d, 57344" % (sT1, sWAVE))
        e("s_add_u32 s%d, s%d, s%d" % (sT0, sT0, sT1))
        e("s_add_u32 s%d, s%d, %d" % (sT0, sT0, WS_HF))
        for grp in range(14):
            for i in range(4):
                e("buffer_store_dwordx4 %s, v9, %s, s%d offen offset:%d sc1" % (v(MK, 4), srd(SRD_WS), sT0, 1024 * i))
            if grp != 13:
                e("s_add_u32 s%d, s%d, 4096" % (sT0, sT0))
                e("s_waitcnt vmcnt(%d)" % self.fill_depth)
        e("s_waitcnt vmcnt(0)")
        e("s_barrier")
        e("v_lshlrev_b32 %s, 8, v1" % v(vT))
        e("v_add_u32 %s, %d, %s" % (v(vT), WS_CNT + 256 * C_FH, v(vT)))
        e("v_mov_b32 %s, 1" % v(vU))
        self.signal(vT, vU, 8)
        self.stamp(4)
        e("v_and_b32 %s, 15, v1" % v(vT))
        e("v_lshlrev_b32 %s, 8, %s" % (v(vT), v(vT)))
        e("s_and_b32 s%d, s2, 7" % sT0)
        e("s_lshl_b32 s%d, s%d, 12" % (sT0, sT0))
        e("s_add_u32 s%d, s%d, %d" % (sT0, sT0, WS_CNT + 256 * C_S2))
        e("v_add_u32 %s, s%d, %s" % (v(vT), sT0, v(vT)))
        e("v_mov_b32 %s, 14" % v(vU))
        self.poll(vT, vU, vGO)
        self.stamp(8)
        e("s_lshr_b32 s%d, s%d, 1" % (sT0, sH))
        e("s_lshl_b32 s%d, s%d, 2" % (sT0, sT0))
        e("s_and_b32 s%d, s%d, 1" % (sT1, sH))
        e("s_add_u32 s%d, s%d, s%d" % (sT0, sT0, sT1))
        e("s_mul_i32 s%d, s%d, 28672" % (sT2, sT0))
        e("s_add_u32 s%d, s%d, %d" % (sT2, sT2, WS_HB))
        vL16 = 9
        e("v_lshlrev_b32 %s, 4, v1" % v(vL16))
        e("s_mul_i32 s%d, s%d, 7168" % (sT3, sWAVE))
        for blk in range(2):
            e("s_add_u32 s%d, s%d, s%d" % (sT4, sT2, sT3))
            if blk:
                e("s_add_u32 s%d, s%d, %d" % (sT4, sT4, 2 * 28672))
            e("s_add_u32 m0, s%d, %d" % (sT3, 28672 * blk))
            e("s_nop 0")
            for i in range(4):
                self.vmem("buffer_load_dwordx4 %s, %s, s%d offen offset:%d sc1 lds" % (v(vL16), srd(SRD_WS), sT4, 1024 * i), "hb%d" % blk)
            e("s_add_u32 s%d, s%d, 4096" % (sT4, sT4))
            e("s_add_u32 m0, s%d, %d" % (sT3, 28672 * blk + 4096))
            e("s_nop 0")
            for i in range(3):
                self.vmem("buffer_load_dwordx4 %s, %s, s%d offen offset:%d sc1 lds" % (v(vL16), srd(SRD_WS), sT4, 1024 * i), "hb%d" % blk)
        vA, vPX = 10, 14
        e("v_lshrrev_b32 %s, 4, v1" % v(vT))
        e("v_bfe_u32 %s, v1, 2, 2" % v(vU))
        e("v_lshl_add_u32 %s, %s, 3, %s" % (v(vT), v(vT), v(vU)))
        e("v_lshlrev_b32 %s, 6, %s" % (v(vT), v(vT)))
        e("v_and_b32 %s, 3, v1" % v(vU))
        e("v_lshl_add_u32 %s, %s, 3, %s" % (v(vA), v(vU), v(vT)))
        e("s_lshr_b32 s%d, s%d, 1" % (sT4, sWAVE))
        e("s_mul_i32 s%d, s%d, %d" % (sT4, sT4, 7 * 2048))
        e("s_and_b32 s%d, s%d, 1" % (sT5, sWAVE))
        e("s_lshl_b32 s%d, s%d, 5" % (sT5, sT5))
        e("s_add_u32 s%d, s%d, s%d" % (sT4, sT4, sT5))
        e("v_add_u32 %s, s%d, %s" % (v(vA), sT4, v(vA)))
        e("s_lshl_b32 s%d, s%d, 9" % (sT4, sWAVE))
        e("s_add_u32 s%d, s%d, 57344" % (sT4, sT4))
        e("v_lshl_add_u32 %s, v1, 3, s%d" % (v(vPX), sT4))
        vRW = 15
        e("s_lshl_b32 s%d, s%d, 5" % (sT4, sT0))
        e("s_and_b32 s%d, s%d, 1" % (sT5, sWAVE))
        e("s_lshl_b32 s%d, s%d, 4" % (sT5, sT5))
        e("s_add_u32 s%d, s%d, s%d" % (sT4, sT4, sT5))
        e("s_lshl_b32 s%d, s%d, 2" % (sT4, sT4))
        e("s_add_u32 s%d, s%d, %d" % (sT4, sT4, WS_ST2))
        e("v_and_b32 %s, 15, v1" % v(vT))
        e("v_lshl_add_u32 %s, %s, 2, s%d" % (v(vRW), v(vT), sT4))
        PK = 28
        for blk in range(2):
            self.wait_vm("hb%d" % blk)
            e("s_barrier")
            for s_ in range(7):
                for ee in range(2):
                    self.lds("ds_read_b64_tr_b16 %s, %s offset:%d" % (v(FR + 4 * s_ + 2 * ee, 2), v(vA), 28672 * blk + 2048 * s_ + 256 * ee), "f%d" % s_)
            self.stats_mfma(lambda s_: FR + 4 * s_, ONES, GR, SM, lambda s_: self.wait_lg("f%d" % s_), n=7)
            self.stats_diag(GR, 11)
            e("v_mov_b32 %s, %s" % (v(12), v(SM)))
            e("v_mov_b32 v60, v11")
            e("v_mov_b32 v61, v12")
            self.lds("ds_write_b64 %s, v[60:61] offset:%d" % (v(vPX), 2048 * blk), "px")
            self.wait_lg0()
            e("s_barrier")
            e("v_xor_b32 %s, 1024, %s" % (v(13), v(vPX)))
            self.lds("ds_read_b64 v[62:63], %s offset:%d" % (v(13), 2048 * blk), "px")
            self.wait_lg0()
            e("v_add_f32 v11, v60, v62")
            e("v_add_f32 %s, v61, v63" % v(SM))
            self.stats_finish(None, SM, None, None, PK)
            lab = self.newlabel("hs")
            e("s_cmp_lt_u32 s%d, 2" % sWAVE)
            e("s_cbranch_scc0 %s" % lab)
            e("s_mov_b32 exec_lo, 0x00f0000f")
            e("s_mov_b32 exec_hi, 0xf0000f00")
            e("buffer_store_dword %s, %s, %s, 0 offen offset:%d sc1" % (v(PK), v(vRW), srd(SRD_WS), 256 * blk))
            e("s_mov_b64 exec, -1")
            self.label(lab)
        self.stamp(9)
        self.wait_all()
        e("s_endpgm")

    def stats_mfma(self, frag, ONES, GR, SM, pre, n=14):
        e = self.e
        for s in range(n):
            if pre:
                pre(s)
            f = frag(s)
            e("v_mfma_f32_16x16x32_bf16 %s, %s, %s, %s" % (v(GR, 4), v(f, 4), v(f, 4), "0" if s == 0 else v(GR, 4)))
            e("v_mfma_f32_16x16x32_bf16 %s, %s, %s, %s" % (v(SM, 4), v(ONES, 4), v(f, 4), "0" if s == 0 else v(SM, 4)))
        e("s_nop 7")

    def stats_diag(self, GR, t0):
        e = self.e
        e("s_mov_b32 s%d, 0x22222222" % sT6)
        e("s_mov_b32 s%d, 0x22222222" % sT7)
        e("v_cndmask_b32 %s, %s, %s, s[%d:%d]" % (v(t0), v(GR), v(GR + 1), sT6, sT7))
        e("s_mov_b32 s%d, 0x44444444" % sT6)
        e("s_mov_b32 s%d, 0x44444444" % sT7)
        e("v_cndmask_b32 %s, %s, %s, s[%d:%d]" % (v(t0), v(t0), v(GR + 2), sT6, sT7))
        e("s_mov_b32 s%d, 0x88888888" % sT6)
        e("s_mov_b32 s%d, 0x88888888" % sT7)
        e("v_cndmask_b32 %s, %s, %s, s[%d:%d]" % (v(t0), v(t0), v(GR + 3), sT6, sT7))

    def stats_finish(self, GR, SM, A_, B_, PK):
        e = self.e
        t0, t1, t2 = 11, 12, 13
        if GR is not None:
            self.stats_diag(GR, t0)
        e("s_mov_b32 s%d, 0x3b124925" % sT6)
        e("v_mul_f32 %s, s%d, %s" % (v(t1), sT6, v(SM)))
        e("v_mul_f32 %s, s%d, %s" % (v(t0), sT6, v(t0)))
        e("v_fma_f32 %s, -%s, %s, %s" % (v(t0), v(t1), v(t1), v(t0)))
        e("v_max_f32 %s, 0, %s" % (v(t0), v(t0)))
        e("v_cvt_pk_bf16_f32 %s, %s, %s" % (v(t0), v(t0), v(t1)))
        e("v_and_b32 %s, 0xffff0000, %s" % (v(t1), v(t0)))
        e("v_lshlrev_b32 %s, 16, %s" % (v(t0), v(t0)))
        e("v_add_f32 %s, 0x3727c5ac, %s" % (v(t0), v(t0)))
        e("v_cvt_pk_bf16_f32 %s, %s, %s" % (v(t0), v(t0), v(t0)))
        e("v_lshlrev_b32 %s, 16, %s" % (v(t0), v(t0)))
        e("v_sqrt_f32 %s, %s" % (v(t0), v(t0)))
        e("s_nop 0")
        e("v_cvt_pk_bf16_f32 %s, %s, %s" % (v(t0), v(t0), v(t0)))
        if PK is not None:
            e("v_lshrrev_b32 %s, 16, %s" % (v(t2), v(t1)))
            e("v_and_b32 %s, 0xffff0000, %s" % (v(t0), v(t0)))
            e("v_or_b32 %s, %s, %s" % (v(PK), v(t0), v(t2)))
        else:
            e("v_lshlrev_b32 %s, 16, %s" % (v(t0), v(t0)))
            e("v_rcp_f32 %s, %s" % (v(A_), v(t0)))
            e("s_nop 0")
            e("v_mul_f32 %s, -%s, %s" % (v(B_), v(t1), v(A_)))

    def decode_bc(self):
        e = self.e
        e("s_and_b32 s%d, s2, 7" % sT0)
        e("s_lshr_b32 s%d, s2, 3" % sT1)
        e("s_mul_i32 s%d, s%d, 37" % (sT2, sT1))
        e("s_lshr_b32 s%d, s%d, 8" % (sT2, sT2))
        e("s_mul_i32 s%d, s%d, 7" % (sT3, sT2))
        e("s_sub_u32 s%d, s%d, s%d" % (sT3, sT1, sT3))
        e("s_lshr_b32 s%d, s%d, 1" % (sT4, sT0))
        e("s_lshl_b32 s%d, s%d, 2" % (sT4, sT4))
        e("s_add_u32 s%d, s%d, s%d" % (sBI, sT4, sT2))
        e("s_and_b32 s%d, s%d, 1" % (sT4, sT0))
        e("s_mul_i32 s%d, s%d, 7" % (sT4, sT4))
        e("s_add_u32 s%d, s%d, s%d" % (sBJ, sT4, sT3))
        e("s_lshl_b32 s%d, s%d, 2" % (sT4, sT0))
        e("s_add_u32 s%d, s%d, s%d" % (sT4, sT4, sT2))
        e("s_lshr_b32 s%d, s%d, 1" % (sCI, sT4))
        e("s_and_b32 s%d, s%d, 1" % (sCS, sT4))
        e("s_mov_b32 s%d, s%d" % (sCJ, sT3))

    def main_path(self):
        e = self.e
        self.phase_a0()
        self.w_stage_setup()
        self.w_stage_read_setup(vWRD, vWRD + 1)
        self.pre_signal()
        vGO, vZERO = 23, 58
        loop, done = self.newlabel("go"), self.newlabel("god")
        e("s_mov_b32 s%d, %d" % (sSPIN, SPIN_LIMIT))
        self.label(loop)
        e("v_cmp_eq_u32 vcc, 0, %s" % v(vGO))
        e("s_nop 4")
        e("s_cbranch_vccz %s" % done)
        e("buffer_load_dword %s, %s, %s, 0 offen offset:%d sc1" % (v(vGO), v(vZERO), srd(SRD_DBG), self.go_off))
        e("s_waitcnt vmcnt(0)")
        e("s_sub_u32 s%d, s%d, 1" % (sSPIN, sSPIN))
        e("s_cmp_lg_u32 s%d, 0" % sSPIN)
        e("s_cbranch_scc1 %s" % loop)
        self.label(done)
        e("s_barrier")
        vA, vOne = 5, 6
        e("s_lshl_b32 s%d, s%d, 8" % (sT0, sG0))
        e("s_add_u32 s%d, s%d, %d" % (sT0, sT0, WS_CNT + 256 * C_S1))
        e("v_mov_b32 %s, s%d" % (v(vA), sT0))
        e("v_mov_b32 %s, 1" % v(vOne))
        self.signal(vA, vOne, 1)
        self.stamp(3)
        if self.endif_stop("a0"):
            return False
        self.phase_a1()
        ONES, CA = 108, 32
        for i in range(4):
            e("v_mov_b32 %s, 0x3f803f80" % v(ONES + i))
        e("s_nop 1")
        for s_ in range(14):
            for ft in range(2):
                e("v_mfma_f32_32x32x16_bf16 %s, %s, %s, %s" % (v(CA + 16 * ft, 16), v(ONES, 4), a(8 * s_ + 4 * ft, 4), "0" if s_ == 0 else v(CA + 16 * ft, 16)))
        self.wait_vm("hst")
        e("s_barrier")
        vA, vOne = 5, 6
        e("s_and_b32 s%d, s2, 15" % sT0)
        e("s_lshl_b32 s%d, s%d, 8" % (sT0, sT0))
        e("s_add_u32 s%d, s%d, %d" % (sT0, sT0, WS_CNT + 256 * C_S2))
        e("v_lshlrev_b32 %s, 12, v1" % v(vA))
        e("v_add_u32 %s, s%d, %s" % (v(vA), sT0, v(vA)))
        e("v_mov_b32 %s, 1" % v(vOne))
        self.signal(vA, vOne, 8)
        self.stamp(8)
        for it in self.w1_rest:
            it()
        if self.endif_stop("a1"):
            return False
        return True

    def build(self):
        self.prologue()
        cont = self.main_path()
        if cont:
            from gen_bc import phase_b, phase_c
            phase_b(self)
            if not self.endif_stop("b"):
                phase_c(self)
                self.wait_all()
                if self.spin_us:
                    self.e("L_diag:")
                    self.e("s_memrealtime s[96:97]")
                    self.e("s_waitcnt lgkmcnt(0)")
                    self.e("s_sub_u32 s96, s96, s100")
                    self.e("s_cmp_lt_u32 s96, %d" % (self.spin_us * 100))
                    self.e("s_cbranch_scc1 L_diag")
                self.e("s_endpgm")
                self.redo_code()
        self.helper()
        self.label("L_exit")
        self.e("s_waitcnt vmcnt(0) lgkmcnt(0)")
        self.label("L_end")
        self.e("s_endpgm")
        self.label("L_codeend")
        body = self.text()
        hdr = HEADER
        hdr += "; @launch grid=(256,1,1) block=(256,1,1) lds=%d\n" % LDS_BYTES
        hdr += '.amdgcn_target "amdgcn-amd-amdhsa--gfx950"\n.text\n.globl %s\n.p2align 8\n.type %s,@function\n%s:\n' % (NAME, NAME, NAME)
        tail = """
.section .rodata,"a"
.p2align 6
.amdhsa_kernel %s
  .amdhsa_next_free_vgpr 512
  .amdhsa_next_free_sgpr 102
  .amdhsa_accum_offset 256
  .amdhsa_group_segment_fixed_size 0
  .amdhsa_kernarg_size 104
  .amdhsa_user_sgpr_count 2
  .amdhsa_user_sgpr_kernarg_segment_ptr 1
  .amdhsa_system_sgpr_workgroup_id_x 1
.end_amdhsa_kernel
""" % NAME
        return hdr + body + tail, body


HEADER = """; Fused preLN -> H3 (shift conv, k*v, long causal conv, gate) -> preLN -> GLU FFN, one persistent launch.
; Kernarg: q,k,v,shift_k,ssm_k,ssm_D,x(unused),w_gate,w_up,w_down,out,debug,ws (generated by gen/gen.py)
"""

if __name__ == "__main__":
    import argparse
    ap = argparse.ArgumentParser()
    ap.add_argument("--stop", default=None)
    ap.add_argument("--stamps", action="store_true")
    ap.add_argument("--dbgst", action="store_true")
    ap.add_argument("--spin", type=int, default=0)
    ap.add_argument("--exp", default="")
    ap.add_argument("--tmo", action="store_true")
    ap.add_argument("--touch", action="store_true")
    ap.add_argument("--no-tlbwarm", action="store_true")
    ap.add_argument("--no-prefetch", action="store_true")
    ap.add_argument("-o", default="out.s")
    args = ap.parse_args()
    g = Gen(stop=args.stop, stamps=args.stamps, tlbwarm=not args.no_tlbwarm, prefetch=not args.no_prefetch, dbgst=args.dbgst)
    g.spin_us = args.spin
    g.touch = args.touch
    g.exp = set(args.exp.split(',')) if args.exp else set()
    txt, body = g.build()
    if args.tmo:
        out = []
        site = 0
        lines = txt.split("\n")
        for i, ln in enumerate(lines):
            out.append(ln)
            if ln.strip() == "s_cmp_lg_u32 s92, 0":
                lab = "L_tmo_%d" % site
                out += ["  s_cbranch_scc1 %s" % lab, "  v_mov_b32 v30, 1", "  v_mov_b32 v31, %d" % (128 + 4 * site), "  s_mov_b64 s[100:101], exec", "  s_mov_b64 exec, 1",
                        "  buffer_atomic_add v30, v31, s[44:47], 0 offen sc1", "  s_mov_b64 exec, s[100:101]", "  s_cmp_lg_u32 s92, 0", lab + ":"]
                print("site", site, "near", [l for l in lines[max(0, i - 14):i] if l.endswith(":")])
                site += 1
        txt = "\n".join(out)
    open(args.o, "w").write(txt)
    check_hazards(body)
    print("wrote", args.o, len(txt), "bytes")
```

```python
from collections import deque
from gen import *
import gen as G_

vHTR0, vHTR2, vL16, vHST, vSTA, vT = 2, 3, 4, 5, 6, 7
vWDB = 8
vS, vC1 = 14, 15
vSTB = [13, 12, 123, 124]
FOLD = 16
CS = 20
vU, vW = 28, 29
ACC = [32, 64]
HF = 96
PK = 108
vWDO = 116
vCS0 = 120
L_RES = 151552
L_RESP = 28672
PART_STRIDE = 4352
sF = 52
sWD0, sWD1 = 53, 54
sHS = 55
NREG_UNITS = 10
GAMMA = 14
CK_STEP = 15
HST_STEP = [24, 24, 18, 0]
C_SIG2 = 5
C_BAR = 4


def wdf(ks, ct):
    i = 4 * ks + ct
    if i < 8:
        return ("a", 224 + 4 * i)
    if i < 32:
        return ("v", 160 + 4 * (i - 8))
    if i < 40:
        return ("v", 128 + 4 * (i - 32))
    return ("a", 4 * (i - 40))


def rname(reg, n, off=0):
    k, b = reg
    return (a if k == "a" else v)(b + off, n)


class Q:
    def __init__(self, g):
        self.g = g
        self.o = deque()

    def op(self, line, cost=4, nb=0):
        self.o.append((cost, lambda: self.g.e(line), nb))

    def fn(self, fn, cost=4, nb=0):
        self.o.append((cost, fn, nb))

    def gap(self, budget, step):
        fresh = True
        while self.o and self.o[0][2] <= step and (self.o[0][0] <= budget or fresh):
            c, f, _ = self.o.popleft()
            f()
            budget -= c
            fresh = False

    def flush(self):
        while self.o:
            self.o.popleft()[1]()


def wd_dma(g, unit, n):
    e = g.e
    if n == 0:
        e("s_mul_i32 s%d, s%d, 401408" % (sWD0, sWAVE))
        e("s_lshl_b32 s%d, s%d, 7" % (sWD1, sCJ))
        e("s_add_u32 s%d, s%d, s%d" % (sWD0, sWD0, sWD1))
        e("s_mul_i32 s%d, s%d, 28" % (sWD1, sOFF + unit))
        e("s_add_u32 s%d, s%d, s%d" % (sWD0, sWD0, sWD1))
        e("s_lshl_b32 s%d, s%d, 14" % (sWD1, sWAVE))
        e("s_add_u32 s%d, s%d, %d" % (sWD1, sWD1, L_WD + 4096 * (unit % 4)))
        e("s_mov_b32 m0, s%d" % sWD1)
        e("s_nop 0")
    g.vmem("buffer_load_dwordx4 %s, %s, s%d offen offset:%d lds" % (v(vWDO + n), srd(SRD_WD), sWD0, 1024 * n), "wd%d" % unit)


def wd_read(g, unit, i):
    ct, ee = i >> 1, i & 1
    if i == 0:
        g.wait_vm("wd%d" % unit)
    g.lds("ds_read_b64_tr_b16 %s, %s offset:%d" % (rname(wdf(unit, ct), 2, 2 * ee), v(vWDB + ct), 4096 * (unit % 4) + 1024 * ee), "wr%d" % unit)


def hb_dma(g, blk, n):
    e = g.e
    if n in (0, 4):
        e("s_lshl_b32 s%d, s%d, 2" % (sT4, sBI))
        e("s_add_u32 s%d, s%d, %d" % (sT4, sT4, blk))
        e("s_mul_i32 s%d, s%d, 28672" % (sT4, sT4))
        e("s_mul_i32 s%d, s%d, 7168" % (sT5, sWAVE))
        e("s_add_u32 s%d, s%d, s%d" % (sT4, sT4, sT5))
        e("s_add_u32 s%d, s%d, %d" % (sT4, sT4, WS_HB + (4096 if n == 4 else 0)))
        e("s_add_u32 m0, s%d, %d" % (sT5, L_HB + 28672 * (blk % 3) + (4096 if n == 4 else 0)))
        e("s_nop 0")
    g.vmem("buffer_load_dwordx4 %s, %s, s%d offen offset:%d sc1 lds" % (v(vL16), srd(SRD_WS), sT4, 1024 * (n & 3)), "hb%d" % blk)


def res_dma(g, n, scratch=False):
    e = g.e
    t0, t1, vA = (56, 57, 126) if scratch else (sT0, sT1, 120)
    if n == 0:
        e("v_lshrrev_b32 %s, 1, v1" % v(vA))
        e("v_lshlrev_b32 %s, 6, %s" % (v(vA), v(vA)))
        e("v_and_b32 %s, 1, v1" % v(vW))
        e("v_lshl_add_u32 %s, %s, 4, %s" % (v(vA), v(vW), v(vA)))
        e("s_lshl_b32 s%d, s%d, 2" % (t0, sCI))
        e("s_add_u32 s%d, s%d, s%d" % (t0, t0, sWAVE))
        e("s_mul_i32 s%d, s%d, 28672" % (t0, t0))
        e("s_lshl_b32 s%d, s%d, 12" % (t1, sCJ))
        e("s_add_u32 s%d, s%d, s%d" % (t0, t0, t1))
        e("s_lshl_b32 s%d, s%d, 5" % (t1, sCS))
        e("s_add_u32 s%d, s%d, s%d" % (t0, t0, t1))
        e("s_add_u32 s%d, s%d, %d" % (t0, t0, WS_HB))
        e("s_lshl_b32 s%d, s%d, 11" % (t1, sWAVE))
        e("s_add_u32 m0, s%d, %d" % (t1, L_RES))
    else:
        e("s_add_u32 s%d, s%d, 2048" % (t0, t0))
        e("s_add_u32 m0, s%d, %d" % (t1, L_RES + 1024))
    e("s_nop 0")
    g.vmem("buffer_load_dwordx4 %s, %s, s%d offen sc1 lds" % (v(vA), srd(SRD_WS), t0), "res")


def flag_load(g, u):
    e = g.e
    e("s_lshl_b32 s%d, s%d, 2" % (sT2, sCI))
    e("s_add_u32 s%d, s%d, %d" % (sT2, sT2, C_S3 + u))
    e("s_lshl_b32 s%d, s%d, 8" % (sT2, sT2))
    e("s_add_u32 s%d, s%d, %d" % (sT2, sT2, WS_CNT))
    e("s_load_dword s%d, s[%d:%d], s%d glc" % (sF, SRD_WS, SRD_WS + 1, sT2))


def flag_check(g, u):
    e = g.e
    loop, ok = g.newlabel("fl"), g.newlabel("fo")
    e("s_waitcnt lgkmcnt(0)")
    e("s_cmp_ge_u32 s%d, 14" % sF)
    e("s_cbranch_scc1 %s" % ok)
    e("s_mov_b32 s%d, %d" % (sSPIN, SPIN_LIMIT))
    g.label(loop)
    e("s_sleep 1")
    e("s_load_dword s%d, s[%d:%d], s%d glc" % (sF, SRD_WS, SRD_WS + 1, sT2))
    e("s_waitcnt lgkmcnt(0)")
    e("s_cmp_ge_u32 s%d, 14" % sF)
    e("s_cbranch_scc1 %s" % ok)
    e("s_sub_u32 s%d, s%d, 1" % (sSPIN, sSPIN))
    e("s_cmp_lg_u32 s%d, 0" % sSPIN)
    e("s_cbranch_scc1 %s" % loop)
    g.label(ok)


vFL, vFA = 125, 126


def flagv_load(g, u):
    e = g.e
    e("s_lshl_b32 s%d, s%d, 2" % (sT2, sCI))
    e("s_add_u32 s%d, s%d, %d" % (sT2, sT2, C_S3 + u))
    e("s_lshl_b32 s%d, s%d, 8" % (sT2, sT2))
    e("s_add_u32 s%d, s%d, %d" % (sT2, sT2, WS_CNT))
    e("v_mov_b32 %s, s%d" % (v(vFA), sT2))
    g.vmem("buffer_load_dword %s, %s, %s, 0 offen sc1" % (v(vFL), v(vFA), srd(SRD_WS)), "flag")


def flagv_check(g, wave=None):
    e = g.e
    g.wait_vm("flag", dual=True)
    loop, ok = g.newlabel("fvl"), g.newlabel("fvo")
    if wave is not None:
        e("s_cmp_eq_u32 s%d, %d" % (sWAVE, wave))
        e("s_cbranch_scc0 %s" % ok)
    e("s_mov_b32 s%d, %d" % (sSPIN, SPIN_LIMIT))
    g.label(loop)
    e("v_cmp_gt_u32 vcc, 14, %s" % v(vFL))
    e("s_nop 4")
    e("s_cbranch_vccz %s" % ok)
    e("s_sleep 1")
    e("buffer_load_dword %s, %s, %s, 0 offen sc1" % (v(vFL), v(vFA), srd(SRD_WS)))
    e("s_waitcnt vmcnt(0)")
    e("s_sub_u32 s%d, s%d, 1" % (sSPIN, sSPIN))
    e("s_cmp_lg_u32 s%d, 0" % sSPIN)
    e("s_cbranch_scc1 %s" % loop)
    g.label(ok)


def s3_signal(g, u):
    e = g.e
    e("s_lshl_b32 s%d, s%d, 2" % (sT0, sBI))
    e("s_add_u32 s%d, s%d, %d" % (sT0, sT0, C_S3 + u))
    e("s_lshl_b32 s%d, s%d, 8" % (sT0, sT0))
    e("s_add_u32 s%d, s%d, %d" % (sT0, sT0, WS_CNT))
    e("v_mov_b32 %s, s%d" % (v(vU), sT0))
    e("v_mov_b32 %s, 1" % v(vW))
    g.signal(vU, vW, 1)
    g.vm.append("sig@0")


def epilogue_items(g, q, p, nb):
    e = g.e
    acc = ACC[p & 1]

    def stats():
        vST = vSTB[p]
        g.wait_vm("st%d" % p)
        loop, ok = g.newlabel("stl"), g.newlabel("sto")
        e("s_mov_b32 s%d, %d" % (sSPIN, SPIN_LIMIT))
        g.label(loop)
        e("v_cmp_eq_u32 vcc, 0, %s" % v(vST))
        e("s_nop 4")
        e("s_cbranch_vccz %s" % ok)
        e("buffer_load_dword %s, %s, %s, 0 offen offset:%d sc1" % (v(vST), v(vSTA), srd(SRD_WS), 128 * p))
        e("s_waitcnt vmcnt(0)")
        e("s_sub_u32 s%d, s%d, 1" % (sSPIN, sSPIN))
        e("s_cmp_lg_u32 s%d, 0" % sSPIN)
        e("s_cbranch_scc1 %s" % loop)
        g.label(ok)
    q.fn(stats, 24, nb)
    q.op("v_and_b32 %s, 0xffff0000, %s" % (v(vS), v(vSTB[p])), nb=nb)
    q.op("v_and_b32 %s, 0xffff, %s" % (v(FOLD + 1), v(vSTB[p])), nb=nb)
    q.op("v_rcp_f32 %s, %s" % (v(vC1), v(vS)), 8, nb)
    q.op("v_xor_b32 %s, 0x8000, %s" % (v(FOLD + 1), v(FOLD + 1)), nb=nb)
    q.op("v_cndmask_b32 %s, 0, %s, s[%d:%d]" % (v(FOLD + 1), v(FOLD + 1), sEX, sEX + 1), nb=nb)
    q.op("v_lshl_or_b32 %s, %s, 16, %s" % (v(FOLD), v(FOLD + 1), v(FOLD + 1)), nb=nb)
    q.op("v_mul_f32 %s, 0xbfb8aa3b, %s" % (v(vC1), v(vC1)), nb=nb)
    q.op("s_nop 0", nb=nb)

    def fold():
        for ft in range(2):
            e("v_mfma_f32_32x32x16_bf16 %s, %s, %s, %s" % (v(acc + 16 * ft, 16), v(CS + 4 * ft, 4), v(FOLD, 4), v(acc + 16 * ft, 16)))
    q.fn(fold, 0, nb)
    for _ in range(4):
        q.fn(lambda: None, 100, nb)


def epilogue_valu(g, q, p, nb, direct=False, nostore=False):
    acc = ACC[p & 1]

    def put(line, cost=4):
        if direct:
            g.e(line)
        else:
            q.op(line, cost, nb)
    for ft in range(2):
        b = acc + 16 * ft
        for x in range(8):
            put("v_mul_f32 %s, %s, %s" % (v(b + x), v(b + x), v(vC1)))
        for x in range(8):
            put("v_exp_f32 %s, %s" % (v(b + x), v(b + x)), 8)
        for x in range(8):
            put("v_fma_f32 %s, %s, %s, %s" % (v(b + x), v(b + x), v(vS), v(vS)))
        for x in range(8):
            put("v_rcp_f32 %s, %s" % (v(b + x), v(b + x)), 8)
        for x in range(8):
            put("v_mul_f32 %s, %s, %s" % (v(b + 8 + x), v(b + 8 + x), v(b + x)))
        for i in range(4):
            put("v_cvt_pk_bf16_f32 %s, %s, %s" % (v(PK + 4 * ft + i), v(b + 8 + 2 * i), v(b + 9 + 2 * i)))


    if nostore:
        return
    if direct:
        h_store(g, p)
    else:
        q.fn(lambda: h_store(g, p), 40, max(nb, HST_STEP[p]))


def h_store(g, p):
    g.e("s_lshl_b32 s%d, s%d, 2" % (sT6, sBI))
    g.e("s_add_u32 s%d, s%d, %d" % (sT6, sT6, p))
    g.e("s_mul_i32 s%d, s%d, 114688" % (sT6, sT6))
    g.e("s_lshl_b32 s%d, s%d, 2" % (sT7, sBJ))
    g.e("s_add_u32 s%d, s%d, s%d" % (sT7, sT7, sWAVE))
    g.e("s_lshl_b32 s%d, s%d, 10" % (sT7, sT7))
    g.e("s_add_u32 s%d, s%d, s%d" % (sT6, sT6, sT7))
    g.e("s_add_u32 s%d, s%d, %d" % (sT6, sT6, WS_HF))
    for ft in range(2):
        g.vmem("buffer_store_dwordx4 %s, %s, %s, s%d offen offset:%d sc1" % (v(PK + 4 * ft, 4), v(vHST), srd(SRD_WS), sT6, 512 * ft), "hst%d" % p)


def wd_bases(g, dst):
    e = g.e
    t0, t1, t2 = vT, vU, vW
    e("v_lshrrev_b32 %s, 5, v1" % v(t0))
    e("v_bfe_u32 %s, v1, 4, 1" % v(t1))
    e("v_lshlrev_b32 %s, 4, %s" % (v(t0), v(t0)))
    e("v_lshl_add_u32 %s, %s, 2, %s" % (v(t0), v(t1), v(t0)))
    e("v_bfe_u32 %s, v1, 2, 2" % v(t2))
    e("v_add_u32 %s, %s, %s" % (v(t0), v(t0), v(t2)))
    e("v_lshlrev_b32 %s, 7, %s" % (v(t0), v(t0)))
    e("v_lshrrev_b32 %s, 1, %s" % (v(t2), v(t2)))
    e("v_lshl_add_u32 %s, %s, 1, %s" % (v(t1), v(t1), v(t2)))
    e("v_and_b32 %s, 3, v1" % v(t2))
    e("v_lshl_add_u32 %s, %s, 3, %s" % (v(t0), v(t2), v(t0)))
    e("s_lshl_b32 s%d, s%d, 14" % (sT0, sWAVE))
    e("s_add_u32 s%d, s%d, %d" % (sT0, sT0, L_WD))
    e("v_add_u32 %s, s%d, %s" % (v(t0), sT0, v(t0)))
    for ct in range(4):
        e("v_xor_b32 %s, %d, %s" % (v(t2), ct, v(t1)))
        e("v_lshl_add_u32 %s, %s, 5, %s" % (v(dst + ct), v(t2), v(t0)))


def hslot(u, s):
    return a((64 if (u & 1) == 0 else 120) + 4 * s, 4)


vHA = 2


def rot_table(g):
    e = g.e
    e("s_lshl_b32 s%d, s%d, 1" % (sT0, sCI))
    e("s_add_u32 s%d, s%d, s%d" % (sT0, sT0, sCS))
    e("s_and_b32 s%d, s%d, 3" % (sT0, sT0))
    e("s_lshl_b32 s%d, s%d, 1" % (sT0, sT0))
    e("s_add_u32 s%d, s%d, s%d" % (sT0, sT0, sCJ))
    e("s_lshl_b32 s%d, s%d, 1" % (sT0, sT0))
    e("s_cmp_ge_u32 s%d, 14" % sT0)
    e("s_cselect_b32 s%d, 14, 0" % sT1)
    e("s_sub_u32 s%d, s%d, s%d" % (sT0, sT0, sT1))
    for i in range(14):
        e("s_lshl_b32 s%d, s%d, 10" % (sOFF + i, sT0))
        if i != 13:
            e("s_add_u32 s%d, s%d, 1" % (sT0, sT0))
            e("s_cmp_eq_u32 s%d, 14" % sT0)
            e("s_cselect_b32 s%d, 0, s%d" % (sT0, sT0))


def hso(g, u):
    e = g.e
    e("s_lshl_b32 s%d, s%d, 2" % (sHS, sCI))
    e("s_add_u32 s%d, s%d, %d" % (sHS, sHS, u))
    e("s_lshl_b32 s%d, s%d, 1" % (sHS, sHS))
    e("s_add_u32 s%d, s%d, s%d" % (sHS, sHS, sCS))
    e("s_mul_i32 s%d, s%d, 57344" % (sHS, sHS))
    e("s_mul_i32 s%d, s%d, 14336" % (sT3, sWAVE))
    e("s_add_u32 s%d, s%d, s%d" % (sHS, sHS, sT3))
    e("s_add_u32 s%d, s%d, %d" % (sHS, sHS, WS_HF))
    e("v_add_u32 %s, s%d, %s" % (v(vHA), sHS, v(vL16)))


vHA0 = 127


def hso3(g, u):
    global vHA
    save = vHA
    vHA = vHA0
    hso(g, u)
    vHA = save


def hload(g, u, s, vaddr=None):
    g.vmem("buffer_load_dwordx4 %s, %s, %s, s%d offen sc1" % (hslot(u, s), v(vHA if vaddr is None else vaddr), srd(SRD_WS), sOFF + s), "hf%d_%d" % (u, s))


def colsum(g, s0, s1, ONES):
    for s in range(s0, s1):
        for ft in range(2):
            g.e("v_mfma_f32_32x32x16_bf16 %s, %s, %s, %s" % (v(ACC[0] + 16 * ft, 16), v(ONES, 4), a(8 * s + 4 * ft, 4), "0" if s == s0 else v(ACC[0] + 16 * ft, 16)))


vCK = 122
CKR = 128
vFHA, vFH = 126, 125


def phase_b(g):
    e = g.e
    g.c("==== B prologue ====")
    ONES = PK
    e("v_lshlrev_b32 %s, 4, v1" % v(vL16))
    e("s_lshl_b32 s72, s%d, 2" % sBI)
    e("s_mul_i32 s%d, s%d, 7168" % (sT0, sWAVE))
    e("v_add_u32 %s, s%d, %s" % (v(vCK), sT0, v(vL16)))
    g.wait_lg("wr")
    e("s_barrier")
    g.stamp(9)
    for n in range(7):
        hb_dma(g, 0, n)
    keep = g.L
    g.L = []
    e("v_lshrrev_b32 %s, 5, v1" % v(vT))
    e("v_bfe_u32 %s, v1, 2, 2" % v(vU))
    e("v_lshl_add_u32 %s, %s, 3, %s" % (v(vT), v(vT), v(vU)))
    e("v_lshlrev_b32 %s, 6, %s" % (v(vHTR0), v(vT)))
    e("v_bfe_u32 %s, v1, 4, 1" % v(vT))
    e("v_lshl_add_u32 %s, %s, 5, %s" % (v(vHTR0), v(vT), v(vHTR0)))
    e("v_and_b32 %s, 3, v1" % v(vT))
    e("v_lshl_add_u32 %s, %s, 3, %s" % (v(vHTR0), v(vT), v(vHTR0)))
    e("v_bfe_u32 %s, v1, 4, 1" % v(vT))
    e("v_mul_u32_u24 %s, 57344, %s" % (v(vHST), v(vT)))
    e("v_lshrrev_b32 %s, 5, v1" % v(vT))
    e("v_lshl_add_u32 %s, %s, 8, %s" % (v(vHST), v(vT), v(vHST)))
    e("v_and_b32 %s, 15, v1" % v(vT))
    e("v_lshl_add_u32 %s, %s, 4, %s" % (v(vHST), v(vT), v(vHST)))
    e("v_and_b32 %s, 31, v1" % v(vT))
    e("s_lshl_b32 s%d, s%d, 9" % (sT0, sBI))
    e("s_add_u32 s%d, s%d, %d" % (sT0, sT0, WS_ST2))
    e("v_lshl_add_u32 %s, %s, 2, s%d" % (v(vSTA), v(vT), sT0))
    e("v_lshrrev_b32 %s, 3, v1" % v(vT))
    e("v_mul_u32_u24 %s, 896, %s" % (v(vWDO), v(vT)))
    e("v_lshrrev_b32 %s, 1, %s" % (v(vT), v(vT)))
    e("v_lshlrev_b32 %s, 1, %s" % (v(vT), v(vT)))
    e("v_and_b32 %s, 7, v1" % v(vU))
    e("v_xor_b32 %s, %s, %s" % (v(vU), v(vU), v(vT)))
    e("v_lshl_add_u32 %s, %s, 4, %s" % (v(vWDO), v(vU), v(vWDO)))
    for n in range(1, 4):
        e("v_add_u32 %s, %d, %s" % (v(vWDO + n), n * 6144, v(vWDO)))
    wd_bases(g, vWDB)
    rot_table(g)
    e("s_mov_b32 s%d, -1" % sEX)
    e("s_mov_b32 s%d, 0" % (sEX + 1))
    e("v_mov_b32 %s, 0" % v(FOLD + 2))
    e("v_mov_b32 %s, 0" % v(FOLD + 3))
    e("v_add_u32 %s, %d, %s" % (v(vHTR2), 57344, v(vHTR0)))
    e("s_and_b32 s%d, s2, 7" % sT0)
    e("s_lshl_b32 s%d, s%d, 8" % (sT0, sT0))
    e("s_add_u32 s%d, s%d, %d" % (sT0, sT0, WS_CNT + 256 * C_FH))
    e("v_mov_b32 %s, s%d" % (v(vFHA), sT0))
    setup = g.L
    g.L = keep
    per = -(-len(setup) // 28)
    for s_ in range(14, 28):
        for ft in range(2):
            e("v_mfma_f32_32x32x16_bf16 %s, %s, %s, %s" % (v(ACC[1] + 16 * ft, 16), v(ONES, 4), a(8 * s_ + 4 * ft, 4), v(ACC[1] + 16 * ft, 16)))
            g.L += setup[:per]
            setup = setup[per:]
    assert not setup
    g.stamp(29)
    g.wait_vm("hb0")
    g.stamp(30)
    for ln in g.mark_reads(7, vCK, L_HB, CKR, None):
        e(ln)
    e("s_waitcnt lgkmcnt(0)")
    g.lg = []
    for ln in g.mark_fold(7, CKR):
        e(ln)
    g.mark_branch(7, vCK, L_HB, CKR, lambda: g.hb_refetch(72, 0, 0, vL16))
    e("s_barrier")
    g.stamp(10)

    cs_items = []
    for ft in range(2):
        cs = ACC[1] + 16 * ft
        d = CS + 4 * ft
        cs_items += [
            "v_cvt_pk_bf16_f32 %s, %s, %s" % (v(vT), v(cs), v(cs)),
            "v_lshlrev_b32 %s, 16, %s" % (v(vT), v(vT)),
            "v_sub_f32 %s, %s, %s" % (v(vU), v(cs), v(vT)),
            "v_cvt_pk_bf16_f32 %s, %s, %s" % (v(d), v(cs), v(vU)),
            "v_and_b32 %s, 0xffff0000, %s" % (v(vT), v(d)),
            "v_sub_f32 %s, %s, %s" % (v(vU), v(vU), v(vT)),
            "v_cvt_pk_bf16_f32 %s, %s, 0" % (v(d + 1), v(vU)),
            "v_cndmask_b32 %s, 0, %s, s[%d:%d]" % (v(d), v(d), sEX, sEX + 1),
            "v_cndmask_b32 %s, 0, %s, s[%d:%d]" % (v(d + 1), v(d + 1), sEX, sEX + 1),
            "v_mov_b32 %s, 0" % v(d + 2),
            "v_mov_b32 %s, 0" % v(d + 3)]

    vm_ev = {}
    ld_ev = {}

    def put_vm(step, fn):
        while step in vm_ev:
            step += 1
        vm_ev[step] = fn
        return step
    for n in range(7):
        put_vm(0 + n, lambda n=n: hb_dma(g, 1, n))
    D = {0: 7, 1: 11, 2: 15, 3: 26, 4: 35, 5: 39, 6: 43, 7: 47, 8: 63, 9: 67, 10: 71, 11: 75, 12: 91, 13: 95}
    R = {0: 30, 1: 34, 2: 38, 3: 42, 4: 58, 5: 62, 6: 66, 7: 70, 8: 86, 9: 90}
    for n in range(7):
        put_vm(19 + n, lambda n=n: hb_dma(g, 2, n))
    for n in range(7):
        put_vm(54 + n, lambda n=n: hb_dma(g, 3, n))
    for unit in range(14):
        for n in range(4):
            def f(unit=unit, n=n):
                if n == 0 and unit >= 4:
                    g.wait_lg("wr%d" % (unit - 4))
                wd_dma(g, unit, n)
            st = put_vm(D[unit] + n, f)
            assert st == D[unit] + n, (unit, n, st)
    for unit in range(NREG_UNITS):
        for i in range(8):
            ld_ev.setdefault(R[unit] + (i >> 1), []).append(lambda unit=unit, i=i: wd_read(g, unit, i))
    for n in range(2):
        put_vm(84 + n, lambda n=n: res_dma(g, n))
    for p in range(1, 4):
        put_vm(30 + p, lambda p=p: g.vmem("buffer_load_dword %s, %s, %s, 0 offen offset:%d sc1" % (v(vSTB[p]), v(vSTA), srd(SRD_WS), 128 * p), "st%d" % p))
    for unit, r0 in ((10, 94), (11, 98)):
        for i in range(8):
            ld_ev.setdefault(r0 + (i >> 1), []).append(lambda unit=unit, i=i: wd_read(g, unit, i))
    def first_h():
        hso3(g, 0)
        hload(g, 0, 0, vaddr=vHA0)
    put_vm(99, first_h)
    nxt0 = list(range(1, 14))
    for st_ in (100, 101, 102, 103, 104, 105, 106, 107, 109, 110, 111):
        put_vm(st_, lambda s_=nxt0.pop(0): hload(g, 0, s_, vaddr=vHA0))
    tail_h = nxt0

    ck_ev = {}
    for u in range(3):
        def ck_reads(u=u, part=0):
            if part == 0:
                g.wait_vm("hb%d" % (u + 1))
            lines = g.mark_reads(7, vCK, L_HB + 28672 * ((u + 1) % 3), CKR, None)
            for ln in lines[2 * part:2 * part + 2]:
                g.lds(ln, "ck")
        for part in range(4):
            ck_ev.setdefault(28 * u + CK_STEP + part, []).append(lambda u=u, part=part, f=ck_reads: f(u, part))
        fold = g.mark_fold(7, CKR)
        for i in range(0, len(fold), 4):
            def ck_fold(i=i, fold=fold):
                if i == 0:
                    g.wait_lg("ck")
                for ln in fold[i:i + 4]:
                    e(ln)
            ck_ev.setdefault(28 * u + CK_STEP + 5 + i // 4, []).append(ck_fold)
        ck_ev.setdefault(28 * u + 25, []).insert(0, lambda u=u: g.mark_branch(7, vCK, L_HB + 28672 * ((u + 1) % 3), CKR, lambda u=u: g.hb_refetch(72, u + 1, (u + 1) % 3, vL16)))
    vRA, RCK = 125, 116

    def res_ck(part):
        if part == 0:
            e("s_lshl_b32 s%d, s%d, 11" % (sT0, sWAVE))
            e("s_add_u32 s%d, s%d, %d" % (sT0, sT0, L_RES))
            e("v_add_u32 %s, s%d, %s" % (v(vRA), sT0, v(vL16)))
            g.wait_vm("res")
            for ln in g.mark_reads(2, vRA, 0, RCK, None):
                g.lds(ln, "ck")
        else:
            g.wait_lg("ck")
            for ln in g.mark_fold(2, RCK):
                e(ln)
    ck_ev.setdefault(84 + 17, []).append(lambda: res_ck(0))
    ck_ev.setdefault(84 + 20, []).append(lambda: res_ck(1))

    def res_refetch():
        save = list(g.vm)
        res_dma(g, 0, scratch=True)
        res_dma(g, 1, scratch=True)
        g.vm = save
    ck_ev.setdefault(84 + 25, []).insert(0, lambda: g.mark_branch(2, vRA, 0, RCK, res_refetch))

    def fh_check():
        g.wait_vm("fh")
        lab, back = g.newlabel("fh"), g.newlabel("fhb")
        e("v_cmp_gt_u32 vcc, 32, %s" % v(vFH))
        e("s_nop 4")
        e("s_cbranch_vccnz %s" % lab)
        g.label(back)

        def code():
            loop = g.newlabel("fhl")
            g.label(lab)
            e("s_mov_b32 s%d, %d" % (sSPIN, SPIN_LIMIT))
            g.label(loop)
            e("buffer_load_dword %s, %s, %s, 0 offen sc1" % (v(vFH), v(vFHA), srd(SRD_WS)))
            e("s_waitcnt vmcnt(0)")
            e("v_cmp_gt_u32 vcc, 32, %s" % v(vFH))
            e("s_nop 4")
            e("s_cbranch_vccz %s" % back)
            e("s_sub_u32 s%d, s%d, 1" % (sSPIN, sSPIN))
            e("s_cmp_lg_u32 s%d, 0" % sSPIN)
            e("s_cbranch_scc1 %s" % loop)
            e("s_branch %s" % back)
        g.ool.append(code)
    ck_ev.setdefault(8, []).append(lambda: g.vmem("buffer_load_dword %s, %s, %s, 0 offen sc1" % (v(vFH), v(vFHA), srd(SRD_WS)), "fh"))
    ck_ev.setdefault(24, []).append(fh_check)

    def hread(gs):
        u, s = divmod(gs, 28)
        if u > 3:
            return
        buf = u % 3
        base = vHTR2 if buf == 2 else vHTR0
        off = (28672 * buf if buf < 2 else 0) + 1024 * s
        for ee in range(2):
            g.lds("ds_read_b64_tr_b16 %s, %s offset:%d" % (v(HF + 4 * (gs % 3) + 2 * ee, 2), v(base), L_HB + off + 256 * ee), "h%d" % gs)

    hread(0)
    hread(1)
    for u in range(4):
        g.c("---- B block %d" % u)
        q = Q(g)
        acc = ACC[u & 1]
        if u == 0:
            for ln in cs_items:
                q.op(ln, 4, 1)
        if u >= 1:
            epilogue_items(g, q, u - 1, 0)
            epilogue_valu(g, q, u - 1, 0)
        for s in range(28):
            gs = 28 * u + s
            g.wait_lg("h%d" % gs)
            srcc = lambda ft: "0" if s == 0 else v(acc + 16 * ft, 16)
            e("v_mfma_f32_32x32x16_bf16 %s, %s, %s, %s" % (v(acc, 16), a(8 * s, 4), v(HF + 4 * (gs % 3), 4), srcc(0)))
            hread(gs + 2)
            q.gap(16, s)
            e("v_mfma_f32_32x32x16_bf16 %s, %s, %s, %s" % (v(acc + 16, 16), a(8 * s + 4, 4), v(HF + 4 * (gs % 3), 4), srcc(1)))
            budget = 20
            for f in ld_ev.get(gs, []):
                f()
                budget -= 4
            if gs in vm_ev:
                vm_ev[gs]()
                budget -= 4
            q.gap(budget, s) if budget > 0 else None
            if s != 25:
                for f in ck_ev.get(gs, []):
                    f()
            if u == 0 and s == 18:
                g.vmem("buffer_load_dword %s, %s, %s, 0 offen sc1" % (v(vSTB[0]), v(vSTA), srd(SRD_WS)), "st0")
            if s == 25:
                for f in ck_ev.get(gs, []):
                    f()
                e("s_barrier")
        q.flush()
        g.stamp(11 + u)
    g.c("---- B tail / C head")
    q = Q(g)
    epilogue_items(g, q, 3, 0)
    while q.o and q.o[-1][0] == 100:
        q.o.pop()
    q.flush()
    for s_ in tail_h:
        hload(g, 0, s_, vaddr=vHA0)
    side = []
    for unit in (12, 13):
        for i in range(8):
            side.append(lambda unit=unit, i=i: wd_read(g, unit, i))
    for k in range(10):
        side.pop(0)()
    q2 = Q(g)
    epilogue_valu(g, q2, 3, 0, nostore=True)
    k = 0
    while q2.o:
        q2.o.popleft()[1]()
        k += 1
        if k % 4 == 2 and side:
            side.pop(0)()
    h_store(g, 3)
    g.stamp(16)
    hso(g, 1)
    c_setup(g)
    g.stamp(15)


vPW, vPR, vRW, vRR, vOUT, vRES = 13, 14, 15, 16, 17, 18
SUM = 64
RS = 84
OUTP = 92


def c_setup(g):
    e = g.e
    e("v_lshrrev_b32 %s, 4, v1" % v(vT))
    e("v_and_b32 %s, 15, v1" % v(vU))
    e("v_mul_u32_u24 %s, 272, %s" % (v(vW), v(vT)))
    e("v_lshl_add_u32 %s, %s, 4, %s" % (v(vW), v(vU), v(vW)))
    e("s_lshl_b32 s%d, s%d, 14" % (sT0, sWAVE))
    e("s_add_u32 s%d, s%d, %d" % (sT0, sT0, L_WD))
    e("v_add_u32 %s, s%d, %s" % (v(vPW), sT0, v(vW)))
    e("s_mul_i32 s%d, s%d, 1088" % (sT0, sWAVE))
    e("s_add_u32 s%d, s%d, %d" % (sT0, sT0, L_RESP))
    e("v_add_u32 %s, s%d, %s" % (v(vRW), sT0, v(vW)))
    e("v_mul_u32_u24 %s, 272, %s" % (v(vW), v(vU)))
    e("s_lshl_b32 s%d, s%d, 2" % (sT0, sWAVE))
    e("v_add_u32 %s, s%d, %s" % (v(vPR), sT0, v(vT)))
    e("v_lshl_add_u32 %s, %s, 4, %s" % (v(vW), v(vPR), v(vW)))
    e("s_lshl_b32 s%d, s%d, 7" % (sT0, sCI))
    e("s_lshl_b32 s%d, s%d, 4" % (sT1, sCS))
    e("s_add_u32 s%d, s%d, s%d" % (sT0, sT0, sT1))
    e("v_add_u32 %s, s%d, %s" % (v(vOUT), sT0, v(vPR)))
    e("v_mul_u32_u24 %s, 896, %s" % (v(vOUT), v(vOUT)))
    e("v_lshl_add_u32 %s, %s, 3, %s" % (v(vOUT), v(vU), v(vOUT)))
    e("s_lshl_b32 s%d, s%d, 7" % (sT0, sCJ))
    e("v_add_u32 %s, s%d, %s" % (v(vOUT), sT0, v(vOUT)))
    e("v_add_u32 %s, %d, %s" % (v(vPR), L_WD, v(vW)))
    e("v_add_u32 %s, %d, %s" % (v(vRR), L_RESP, v(vW)))
    e("v_lshrrev_b32 %s, 4, v1" % v(vT))
    e("v_bfe_u32 %s, v1, 2, 2" % v(vU))
    e("v_lshl_add_u32 %s, %s, 2, %s" % (v(vT), v(vT), v(vU)))
    e("s_lshl_b32 s%d, s%d, 4" % (sT0, sWAVE))
    e("v_add_u32 %s, s%d, %s" % (v(vT), sT0, v(vT)))
    e("v_lshlrev_b32 %s, 5, %s" % (v(vT), v(vT)))
    e("v_and_b32 %s, 3, v1" % v(vU))
    e("v_lshl_add_u32 %s, %s, 3, %s" % (v(vT), v(vU), v(vT)))
    e("v_add_u32 %s, %d, %s" % (v(vRES), L_RES, v(vT)))
    for u in range(4):
        g.lds("ds_read_b64_tr_b16 %s, %s offset:%d" % (v(RS + 2 * u, 2), v(vRES), 2048 * u), "rs%d" % u)
    for u in range(4):
        g.wait_lg("rs%d" % u)
        t = SUM + 4 * u
        e("v_lshlrev_b32 %s, 16, %s" % (v(t), v(RS + 2 * u)))
        e("v_and_b32 %s, 0xffff0000, %s" % (v(t + 1), v(RS + 2 * u)))
        e("v_lshlrev_b32 %s, 16, %s" % (v(t + 2), v(RS + 2 * u + 1)))
        e("v_and_b32 %s, 0xffff0000, %s" % (v(t + 3), v(RS + 2 * u + 1)))
        g.lds("ds_write_b128 %s, %s offset:%d" % (v(vRW), v(t, 4), PART_STRIDE * u), "rw")


def phase_c(g):
    e = g.e
    g.c("==== C ====")
    CACC = [32, 48]

    def finish_items(q, u, nb):
        buf = u & 1
        for w in range(4):
            q.fn(lambda w=w: g.lds("ds_read_b128 %s, %s offset:%d" % (v(SUM + 4 * w, 4), v(vPR), 16384 * w + PART_STRIDE * buf), "p%d" % w), 4, nb)
        q.fn(lambda: g.lds("ds_read_b128 %s, %s offset:%d" % (v(SUM + 16, 4), v(vRR), PART_STRIDE * u), "p4"), 4, nb)
        q.fn(lambda: g.wait_lg("p1"), 4, nb + 1)
        for i in range(4):
            q.op("v_add_f32 %s, %s, %s" % (v(SUM + i), v(SUM + i), v(SUM + 4 + i)), 4, nb)
        q.fn(lambda: g.wait_lg("p3"), 4, nb)
        for i in range(4):
            q.op("v_add_f32 %s, %s, %s" % (v(SUM + 8 + i), v(SUM + 8 + i), v(SUM + 12 + i)), 4, nb)
        q.fn(lambda: g.wait_lg("p4"), 4, nb)
        for i in range(4):
            q.op("v_add_f32 %s, %s, %s" % (v(SUM + i), v(SUM + i), v(SUM + 16 + i)), 4, nb)
        for i in range(4):
            q.op("v_add_f32 %s, %s, %s" % (v(SUM + i), v(SUM + i), v(SUM + 8 + i)), 4, nb)
        q.op("v_cvt_pk_bf16_f32 %s, %s, %s" % (v(OUTP + 2 * u), v(SUM), v(SUM + 1)), 4, nb)
        q.op("v_cvt_pk_bf16_f32 %s, %s, %s" % (v(OUTP + 2 * u + 1), v(SUM + 2), v(SUM + 3)), 4, nb)

    def pwrite(u, ct):
        g.lds("ds_write_b128 %s, %s offset:%d" % (v(vPW), v(CACC[u & 1] + 4 * ct, 4), 1088 * ct + PART_STRIDE * (u & 1)), "pw")

    def mfmas(u, s):
        acc = CACC[u & 1]
        return [lambda ct=ct: e("v_mfma_f32_16x16x32_bf16 %s, %s, %s, %s" % (v(acc + 4 * ct, 4), rname(wdf(s, ct), 4), hslot(u, s), "0" if s == 0 else v(acc + 4 * ct, 4))) for ct in range(4)]

    def reduce_head(q, u):
        for ct in range(4):
            q.fn(lambda ct=ct: pwrite(u, ct), 8, 1)

    vRD = 126
    g.redo = []

    def check(u):
        lab, back = g.newlabel("redo"), g.newlabel("back")
        acc = CACC[u & 1]
        e("v_cmp_u_f32 vcc, %s, %s" % (v(acc), v(acc)))
        e("s_nop 4")
        e("s_cbranch_vccnz %s" % lab)
        g.label(back)
        g.redo.append((u, lab, back))

    for u in range(4):
        g.c("---- C chunk %d" % u)
        q = Q(g)
        nxt = list(range(14)) if u < 3 else []
        if u == 0:
            g.wait_lg0()
        for s in range(14):
            g.wait_vm("hf%d_%d" % (u, s))
            if s == C_BAR and u >= 1:
                q.flush()
                g.wait_lg("pw")
                e("s_barrier")
                finish_items(q, u - 1, 0)
            ms = mfmas(u, s)
            per = 0
            if nxt and s >= 1:
                per = min(4, -(-len(nxt) // (14 - s)))
            for ct in range(4):
                ms[ct]()
                if per and nxt and ct in ((1,), (0, 2), (0, 1, 2), (0, 1, 2, 3))[per - 1]:
                    hload(g, u + 1, nxt.pop(0))
                else:
                    q.gap(8, s)
            if s == 0:
                if u >= 1:
                    check(u - 1)
                    for ct in range(4):
                        q.fn(lambda ct=ct: pwrite(u - 1, ct), 8, 1)
                if 1 <= u < 3:
                    hso(g, u + 1)
        q.flush()
        assert not nxt
        g.stamp(17 + u if u < 3 else 21)
    e("s_nop 7")
    check(3)
    for ct in range(4):
        pwrite(3, ct)
    g.wait_lg0()
    e("s_barrier")

    def redo_code():
        for u, lab, back in g.redo:
            g.label(lab)
            loop, done = g.newlabel("rl"), g.newlabel("rd")
            e("s_lshl_b32 s%d, s%d, 2" % (sHS, sCI))
            e("s_add_u32 s%d, s%d, %d" % (sHS, sHS, u))
            e("s_lshl_b32 s%d, s%d, 1" % (sHS, sHS))
            e("s_add_u32 s%d, s%d, s%d" % (sHS, sHS, sCS))
            e("s_mul_i32 s%d, s%d, 57344" % (sHS, sHS))
            e("s_mul_i32 s%d, s%d, 14336" % (sT3, sWAVE))
            e("s_add_u32 s%d, s%d, s%d" % (sHS, sHS, sT3))
            e("s_add_u32 s%d, s%d, %d" % (sHS, sHS, WS_HF))
            e("v_add_u32 %s, s%d, %s" % (v(vRD), sHS, v(vL16)))
            e("s_mov_b32 s%d, %d" % (sSPIN, SPIN_LIMIT))
            g.label(loop)
            for s in range(14):
                e("buffer_load_dwordx4 %s, %s, %s, s%d offen sc1" % (hslot(u, s), v(vRD), srd(SRD_WS), sOFF + s))
            e("s_waitcnt vmcnt(0)")
            for s in range(14):
                mfmas(u, s)[0]()
            e("s_nop 7")
            e("s_nop 3")
            e("v_cmp_u_f32 vcc, %s, %s" % (v(CACC[u & 1]), v(CACC[u & 1])))
            e("s_nop 4")
            e("s_cbranch_vccz %s" % done)
            e("s_sub_u32 s%d, s%d, 1" % (sSPIN, sSPIN))
            e("s_cmp_lg_u32 s%d, 0" % sSPIN)
            e("s_cbranch_scc1 %s" % loop)
            g.label(done)
            for s in range(14):
                for ct in range(1, 4):
                    mfmas(u, s)[ct]()
            e("s_nop 7")
            e("s_nop 3")
            e("s_branch %s" % back)
    g.redo_code = redo_code
    for u in range(3):
        e("s_mov_b32 s%d, %d" % (sT4, 32 * 896 * u))
        g.vmem("buffer_store_dwordx2 %s, %s, %s, s%d offen" % (v(OUTP + 2 * u, 2), v(vOUT), srd(SRD_OUT), sT4), "out")
    q = Q(g)
    finish_items(q, 3, 0)
    q.flush()
    e("s_mov_b32 s%d, %d" % (sT4, 32 * 896 * 3))
    g.vmem("buffer_store_dwordx2 %s, %s, %s, s%d offen" % (v(OUTP + 6, 2), v(vOUT), srd(SRD_OUT), sT4), "out")
```

```python
import sys, os
sys.path.insert(0, os.path.dirname(os.path.abspath(__file__)))
from asmlib import Asm, check_hazards

NAME = "sequential_preLN__ssm_conv_h3__glu_gated_glu__prompt_kernel"
S, D, F = 2048, 448, 1792

WS_KVT = 0x000000
WS_QT = 0x200000
WS_HB = 0x400000
WS_HF = 0x600000
WS_ST1 = 0xE00000
WS_ST2 = 0xE08000
WS_CNT = 0xE10000
WS_TS = 0xF00000
WS_SIZE = 0x1000000
C_S1, C_SL1, C_FH, C_S3, C_S2 = 0, 8, 16, 32, 96
N_CNT = 224

L_WST = 0
L_K = 114688
L_V = L_K + 9216
L_Q = L_V + 8192
L_TS = L_Q + 8192
L_X = L_K
L_EX = L_V
L_HB = 0
L_WD = 86016
LDS_BYTES = 163840

sWAVE = 3
SRD_WS, SRD_Q, SRD_K, SRD_V, SRD_SK, SRD_SH, SRD_WG, SRD_WU, SRD_WD, SRD_OUT, SRD_DBG = 4, 8, 12, 16, 20, 24, 28, 32, 36, 40, 44
sPC = 48
sD = 50
sT0, sT1, sT2, sT3, sT4, sT5, sT6, sT7 = 76, 77, 78, 79, 80, 81, 82, 83
sA0BASE = 84
sG0 = 85
sRB = 86
sBI, sBJ = 87, 88
sCI, sCS, sCJ = 89, 90, 91
sSPIN = 92
sM = 93
sEX = 94
sTS = 96
sHALF = 98
sCHL = 99
sWSO, sWM, sWB, sWG, sWX = 51, 75, 56, 57, 74
sOFF = 58
vWS = 248
vWRD = 246


def srd(n):
    return "s[%d:%d]" % (n, n + 3)


def v(a, n=1):
    return "v%d" % a if n == 1 else "v[%d:%d]" % (a, a + n - 1)


def a(i, n=1):
    return "a%d" % i if n == 1 else "a[%d:%d]" % (i, i + n - 1)


SPIN_LIMIT = 40000
DBG_IDX = [0, 1, 3, 4, 5, 6, 8, 9, 10, 11, 12, 13, 14, 15, 17, 20]


class Gen(Asm):
    def __init__(self, stop=None, stamps=False, tlbwarm=True, prefetch=True, dbgst=False):
        super().__init__()
        self.stop = stop
        self.stamps = stamps
        self.tlbwarm = tlbwarm
        self.prefetch = prefetch
        self.exp = set()
        self.spin_us = 0
        self.dbgst = dbgst
        self.go_off = 128 if dbgst else 0
        self.npre = 8
        self.nw1 = 28
        self.stat_round = 2
        self.fill_depth = 8
        self.touch = False
        self.wtouch = False
        self.wtouch2 = False
        self.smem_poll = False

    def stamp(self, idx, wave=0):
        if self.dbgst:
            if idx not in DBG_IDX or getattr(self, "in_helper", False):
                return
            lab = self.newlabel("st")
            self.e("s_cmp_eq_u32 s%d, 0" % sWAVE)
            self.e("s_cbranch_scc0 %s" % lab)
            self.e("s_and_b32 s%d, s2, 31" % sTS)
            self.e("s_cmp_eq_u32 s%d, %d" % (sTS, 5))
            self.e("s_cbranch_scc0 %s" % lab)
            self.e("s_memrealtime s[%d:%d]" % (sTS, sTS + 1))
            self.e("s_waitcnt lgkmcnt(0)")
            if idx == 0:
                self.e("s_not_b32 s%d, s%d" % (sTS, sTS))
            self.e("v_mov_b32 v30, s%d" % sTS)
            self.e("v_mov_b32 v31, %d" % (4 * DBG_IDX.index(idx)))
            self.e("s_mov_b64 exec, 1")
            self.e("buffer_atomic_umax v30, v31, %s, 0 offen sc1" % srd(SRD_DBG))
            self.e("s_mov_b64 exec, -1")
            self.label(lab)
            return
        if not self.stamps or wave != 0:
            return
        vS = 93 if getattr(self, "in_helper", False) else 30
        lab = self.newlabel("st")
        self.e("s_cmp_eq_u32 s%d, 0" % sWAVE)
        self.e("s_cbranch_scc0 %s" % lab)
        self.e("s_memrealtime s[%d:%d]" % (sTS, sTS + 1))
        self.e("s_memtime s[100:101]")
        self.e("s_waitcnt lgkmcnt(0)")
        self.e("v_writelane_b32 v%d, s%d, %d" % (vS, sTS, idx))
        self.e("v_writelane_b32 v%d, s100, %d" % (vS, 32 + idx))
        self.label(lab)

    def stamp_dump(self):
        if not self.stamps:
            return
        vS = 93 if getattr(self, "in_helper", False) else 30
        lab = self.newlabel("sd")
        self.e("s_cmp_eq_u32 s%d, 0" % sWAVE)
        self.e("s_cbranch_scc0 %s" % lab)
        self.e("s_lshl_b32 s%d, s2, 8" % sTS)
        self.e("s_add_u32 s%d, s%d, %d" % (sTS, sTS, WS_TS))
        self.e("v_lshl_add_u32 v31, v1, 2, s%d" % sTS)
        self.e("buffer_store_dword v%d, v31, %s, 0 offen" % (vS, srd(SRD_WS)))
        self.label(lab)

    def spin(self, vaddr, vtarget, vtmp):
        loop = self.newlabel("ploop")
        done = self.newlabel("pdone")
        self.e("s_mov_b32 s%d, %d" % (sSPIN, SPIN_LIMIT))
        self.label(loop)
        self.e("buffer_load_dword %s, %s, %s, 0 offen sc1" % (v(vtmp), v(vaddr), srd(SRD_WS)))
        self.e("s_waitcnt vmcnt(0)")
        self.e("v_cmp_lt_u32 vcc, %s, %s" % (v(vtmp), v(vtarget)))
        self.e("s_nop 4")
        self.e("s_cbranch_vccz %s" % done)
        self.e("s_sub_u32 s%d, s%d, 1" % (sSPIN, sSPIN))
        self.e("s_cmp_lg_u32 s%d, 0" % sSPIN)
        self.e("s_cbranch_scc0 %s" % done)
        self.e("s_sleep 1")
        self.e("s_branch %s" % loop)
        self.label(done)

    def poll(self, vaddr, vtarget, vtmp):
        skip = self.newlabel("pskip")
        self.e("s_cmp_eq_u32 s%d, 0" % sWAVE)
        self.e("s_cbranch_scc0 %s" % skip)
        self.spin(vaddr, vtarget, vtmp)
        self.label(skip)
        self.e("s_barrier")

    def signal(self, vaddr, vone, nlanes):
        skip = self.newlabel("sig")
        self.e("s_cmp_eq_u32 s%d, 0" % sWAVE)
        self.e("s_cbranch_scc0 %s" % skip)
        self.e("s_mov_b64 exec, %d" % ((1 << nlanes) - 1))
        self.e("buffer_atomic_add %s, %s, %s, 0 offen sc1" % (v(vone), v(vaddr), srd(SRD_WS)))
        self.e("s_mov_b64 exec, -1")
        self.label(skip)

    def endif_stop(self, name):
        if self.stop == name:
            self.wait_all()
            self.e("s_endpgm")
            return True
        return False

    def mk(self, dst, src, size):
        e = self.e
        e("s_mov_b32 s%d, s%d" % (dst, src))
        e("s_mov_b32 s%d, s%d" % (dst + 1, src + 1))
        e("s_mov_b32 s%d, %d" % (dst + 2, size))
        e("s_mov_b32 s%d, 0x20000" % (dst + 3))

    def srds(self, which):
        e, mk = self.e, self.mk
        for r in which:
            if r == "q":
                mk(SRD_Q, 52, S * D * 2)
            elif r == "k":
                mk(SRD_K, 54, S * D * 2)
            elif r == "v":
                mk(SRD_V, 56, S * D * 2)
            elif r == "sh":
                mk(SRD_SH, 58, D * 4 * 2)
            elif r == "sk":
                mk(SRD_SK, 60, S * D * 2)
            elif r == "w":
                mk(SRD_WG, 64, D * F * 2)
                mk(SRD_WU, 66, D * F * 2)
                mk(SRD_WD, 68, D * F * 2)
                e("s_sub_u32 s%d, s%d, 1024" % (SRD_WU, SRD_WU))
                e("s_subb_u32 s%d, s%d, 0" % (SRD_WU + 1, SRD_WU + 1))
                e("s_add_u32 s%d, s%d, 1024" % (SRD_WU + 2, SRD_WU + 2))
            elif r == "rest":
                mk(SRD_OUT, 70, S * D * 2)
                mk(SRD_DBG, 72, 256)
                mk(SRD_WS, 74, WS_SIZE)

    def prologue(self):
        e = self.e
        if self.stamps:
            e("s_memrealtime vcc")
        e("s_load_dwordx8 s[52:59], s[0:1], 0")
        e("s_getpc_b64 s[%d:%d]" % (sPC, sPC + 1))
        self.label("L_pc")
        if self.touch:
            e("s_min_u32 s%d, s2, 223" % sT1)
            e("s_mul_i32 s%d, s%d, 293" % (sRB, sT1))
            e("s_lshr_b32 s%d, s%d, 11" % (sRB, sRB))
            e("v_lshrrev_b32 v3, 6, v0")
            e("v_and_b32 v2, 15, v0")
            e("v_lshl_add_u32 v2, v3, 4, v2")
            e("s_lshl_b32 s%d, s%d, 7" % (sT1, sT1))
            e("s_mul_i32 s%d, s%d, 56448" % (sA0BASE, sRB))
            e("v_mul_u32_u24 v2, 896, v2")
            e("s_add_u32 s%d, s%d, s%d" % (sA0BASE, sA0BASE, sT1))
            e("v_add_u32 v2, s%d, v2" % sA0BASE)
        e("v_and_b32 v4, 7, v0")
        e("s_lshr_b32 s%d, s2, 3" % sT0)
        e("v_lshlrev_b32 v4, 7, v4")
        e("s_lshl_b32 s%d, s%d, 10" % (sT0, sT0))
        e("v_add_u32 v4, s%d, v4" % sT0)
        e("v_min_u32 v4, L_codeend-L_pc-4, v4")
        e("global_load_dword v253, v4, s[%d:%d]" % (sPC, sPC + 1))
        if self.touch:
            e("s_waitcnt lgkmcnt(0)")
            e("global_load_dword v252, v2, s[54:55]")
            e("global_load_dword v252, v2, s[56:57]")
            e("global_load_dword v252, v2, s[52:53]")
        else:
            e("v_lshrrev_b32 v3, 6, v0")
        e("s_load_dwordx4 s[60:63], s[0:1], 32")
        e("s_load_dwordx4 s[64:67], s[0:1], 56")
        e("s_load_dwordx4 s[68:71], s[0:1], 72")
        e("s_load_dwordx4 s[72:75], s[0:1], 88")
        if self.spin_us:
            e("s_memrealtime s[100:101]")
        e("v_and_b32 v1, 63, v0")
        e("v_readfirstlane_b32 s%d, v3" % sWAVE)
        e("s_cmp_ge_u32 s2, 256")
        e("s_cbranch_scc1 L_exit")
        e("s_cmp_ge_u32 s2, 224")
        e("s_cbranch_scc1 L_helper")

    def phase_a0(self):
        e = self.e
        self.c("==== A0 ====")
        e("s_mul_i32 s%d, s2, 293" % sRB)
        e("s_lshr_b32 s%d, s%d, 11" % (sRB, sRB))
        e("s_mul_i32 s%d, s%d, 7" % (sT0, sRB))
        e("s_sub_u32 s%d, s2, s%d" % (sG0, sT0))
        e("s_mul_i32 s%d, s%d, %d" % (sA0BASE, sRB, 64 * 896))
        e("s_lshl_b32 s%d, s%d, 7" % (sT0, sG0))
        e("s_add_u32 s%d, s%d, s%d" % (sA0BASE, sA0BASE, sT0))
        vP, vOff, vOffH, vT = 4, 5, 6, 7
        e("v_lshrrev_b32 %s, 4, v1" % v(vT))
        e("v_and_b32 %s, 1, %s" % (v(vT), v(vT)))
        e("v_lshlrev_b32 %s, 1, %s" % (v(vT), v(vT)))
        e("v_and_b32 %s, 7, v1" % v(vP))
        e("v_xor_b32 %s, %s, %s" % (v(vP), v(vP), v(vT)))
        e("v_lshlrev_b32 %s, 4, %s" % (v(vP), v(vP)))
        e("v_lshrrev_b32 %s, 3, v1" % v(vT))
        e("v_mul_u32_u24 %s, 896, %s" % (v(vT), v(vT)))
        e("v_add_u32 %s, %s, %s" % (v(vP), v(vP), v(vT)))
        e("s_and_b32 s%d, s%d, 1" % (sT0, sWAVE))
        e("s_lshl_b32 s%d, s%d, 6" % (sT0, sT0))
        e("v_xor_b32 %s, s%d, %s" % (v(vOff), sT0, v(vP)))
        e("v_xor_b32 %s, 64, %s" % (v(vOffH), v(vP)))
        e("s_cmp_eq_u32 s%d, 0" % sRB)
        e("s_cselect_b32 s%d, 0x80000000, 0" % sT1)
        e("v_add_u32 %s, s%d, %s" % (v(vOffH), sT1, v(vOffH)))
        e("s_sub_u32 s%d, s%d, 7168" % (sT2, sA0BASE))
        e("s_cmp_eq_u32 s%d, 0" % sRB)
        e("s_cselect_b32 s%d, 0, s%d" % (sT2, sT2))
        e("s_mul_i32 s%d, s%d, 7168" % (sT3, sWAVE))
        e("s_add_u32 s%d, s%d, s%d" % (sT3, sT3, sA0BASE))
        e("s_add_u32 s%d, s%d, %d" % (sT4, sT3, 4 * 7168))
        e("s_lshl_b32 s%d, s%d, 10" % (sT5, sWAVE))

        e("s_waitcnt lgkmcnt(0)")
        if self.stamps:
            e("v_mov_b32 v254, vcc_lo")
            e("v_mov_b32 v30, 0")
        self.srds("kvq")

        def dma(srdn, voff, soff, ldsbase, addw=True):
            if addw:
                e("s_add_u32 m0, s%d, %d" % (sT5, ldsbase))
            else:
                e("s_mov_b32 m0, %d" % ldsbase)
            e("s_nop 0")
            self.vmem("buffer_load_dwordx4 %s, %s, s%d offen lds" % (v(voff), srd(srdn), soff), "a0")
        dma(SRD_K, vOffH, sT2, L_K, addw=False)
        dma(SRD_K, vOff, sT3, L_K + 1024)
        dma(SRD_K, vOff, sT4, L_K + 5 * 1024)
        dma(SRD_V, vOff, sT3, L_V)
        dma(SRD_V, vOff, sT4, L_V + 4 * 1024)
        dma(SRD_Q, vOff, sT3, L_Q)
        dma(SRD_Q, vOff, sT4, L_Q + 4 * 1024)
        self.srds(["sh", "sk"])
        vCH, vSK = 8, 10
        e("s_lshl_b32 s%d, s%d, 6" % (sT0, sG0))
        e("s_lshl_b32 s%d, s%d, 4" % (sT1, sWAVE))
        e("s_add_u32 s%d, s%d, s%d" % (sT0, sT0, sT1))
        e("v_and_b32 %s, 15, v1" % v(vCH))
        e("v_add_u32 %s, s%d, %s" % (v(vCH), sT0, v(vCH)))
        e("v_lshlrev_b32 %s, 3, %s" % (v(vT), v(vCH)))
        self.vmem("buffer_load_dwordx2 %s, %s, %s, 0 offen" % (v(vSK, 2), v(vT), srd(SRD_SH)), "a0")

        e("s_lshr_b32 s%d, s%d, 1" % (sCHL, sWAVE))
        e("s_and_b32 s%d, s%d, 1" % (sHALF, sWAVE))
        vL16 = 9
        e("v_lshlrev_b32 %s, 4, v1" % v(vL16))
        e("s_lshl_b32 s%d, s2, 1" % sT0)
        e("s_add_u32 s%d, s%d, s%d" % (sT0, sT0, sCHL))
        e("s_lshl_b32 s%d, s%d, 12" % (sT0, sT0))
        e("s_lshl_b32 s%d, s%d, 11" % (sT1, sHALF))
        e("s_add_u32 s%d, s%d, s%d" % (sT0, sT0, sT1))
        e("s_mul_i32 s%d, s%d, 8320" % (sT2, sCHL))
        e("s_add_u32 s%d, s%d, s%d" % (sT2, sT2, sT1))
        e("s_add_u32 m0, s%d, %d" % (sT2, L_TS + 32))
        e("s_nop 0")
        for i in range(2):
            self.vmem("buffer_load_dwordx4 %s, %s, s%d offen offset:%d lds" % (v(vL16), srd(SRD_SK), sT0, 1024 * i), "ts")
        self.srds(["w", "rest"])
        self.decode_bc()
        self.stamp(0)
        if self.stamps:
            e("v_readfirstlane_b32 s%d, v254" % sTS)
            e("s_nop 3")
            e("v_writelane_b32 v30, s%d, 31" % sTS)
        if self.tlbwarm:
            self.c("touch every page that is used later (address translation warm-up)")
            vZ = 59
            e("v_mov_b32 %s, 0" % v(vZ))
            e("s_mov_b64 exec, 1")
            for r in (SRD_SK, SRD_WG, SRD_WD, SRD_OUT):
                e("buffer_load_dword v252, %s, %s, 0 offen" % (v(vZ), srd(r)))
            e("v_mov_b32 %s, 1024" % v(vZ))
            e("buffer_load_dword v252, %s, %s, 0 offen" % (v(vZ), srd(SRD_WU)))
            e("s_mov_b64 exec, 0xff")
            e("v_lshlrev_b32 %s, 21, v1" % v(vZ))
            e("buffer_load_dword v252, %s, %s, 0 offen" % (v(vZ), srd(SRD_WS)))
            e("s_mov_b64 exec, -1")
            self.vm += ["tlb"] * 6
        e("s_lshl_b32 s%d, s2, 2" % sT3)
        e("s_load_dword s%d, s[62:63], s%d" % (sD, sT3))

        vTR, vTRH, vG, vR = 13, 14, 15, 16
        e("v_lshrrev_b32 %s, 4, v1" % v(vG))
        e("v_bfe_u32 %s, v1, 2, 2" % v(vR))
        e("v_lshrrev_b32 %s, 1, %s" % (v(vT), v(vR)))
        e("v_and_b32 %s, 1, %s" % (v(vTR), v(vG)))
        e("v_lshl_or_b32 %s, %s, 1, %s" % (v(vT), v(vTR), v(vT)))
        e("v_xor_b32 %s, s%d, %s" % (v(vT), sWAVE, v(vT)))
        e("v_lshlrev_b32 %s, 5, %s" % (v(vT), v(vT)))
        e("v_lshl_add_u32 %s, %s, 3, %s" % (v(vTR), v(vG), v(vR)))
        e("v_lshl_add_u32 %s, %s, 7, %s" % (v(vTR), v(vTR), v(vT)))
        e("v_and_b32 %s, 3, v1" % v(vT))
        e("v_lshl_add_u32 %s, %s, 3, %s" % (v(vTR), v(vT), v(vTR)))
        e("v_add_u32 %s, %d, %s" % (v(vTR), L_K, v(vTR)))
        e("v_xor_b32 %s, 64, %s" % (v(vTRH), v(vTR)))
        vSKV, vSQ = 17, 18
        e("s_lshl_b32 s%d, s%d, 7" % (sT0, sRB))
        e("v_lshlrev_b32 %s, 12, %s" % (v(vSQ), v(vCH)))
        e("v_lshlrev_b32 %s, 4, %s" % (v(vT), v(vG)))
        e("s_sub_u32 s%d, %d, s%d" % (sT1, WS_KVT + 4080 - 64, sT0))
        e("v_add_u32 %s, s%d, %s" % (v(vSKV), sT1, v(vSQ)))
        e("v_sub_u32 %s, %s, %s" % (v(vSKV), v(vSKV), v(vT)))
        e("s_add_u32 s%d, s%d, %d" % (sT1, sT0, WS_QT))
        e("v_add3_u32 %s, %s, %s, s%d" % (v(vSQ), v(vSQ), v(vT), sT1))
        self.wait_vm("a0")
        e("s_waitcnt lgkmcnt(0)")
        self.lg = []
        e("s_lshl_b32 s%d, s%d, 16" % (sT0, sD))
        e("s_and_b32 s%d, s%d, 0xffff0000" % (sT1, sD))
        e("s_cmp_eq_u32 s%d, 0" % sCHL)
        e("s_cselect_b32 s%d, s%d, s%d" % (sD, sT0, sT1))
        e("s_barrier")
        self.stamp(1)
        if self.wtouch:
            self.w_touch(0, "wt")

        KH = [24, 34]
        KM = [26, 36]
        VV = [40, 44]
        QQ = [48, 52]
        for rho in range(2):
            self.lds("ds_read_b64_tr_b16 %s, %s offset:%d" % (v(KH[rho], 2), v(vTRH), 512 + 4096 * rho), "k%d" % rho)
            self.lds("ds_read_b64_tr_b16 %s, %s offset:%d" % (v(KM[rho], 2), v(vTR), 1024 + 4096 * rho), "k%d" % rho)
            self.lds("ds_read_b64_tr_b16 %s, %s offset:%d" % (v(KM[rho] + 2, 2), v(vTR), 1024 + 512 + 4096 * rho), "k%d" % rho)
            self.lds("ds_read_b64_tr_b16 %s, %s offset:%d" % (v(VV[rho], 2), v(vTR), L_V - L_K + 4096 * rho), "v%d" % rho)
            self.lds("ds_read_b64_tr_b16 %s, %s offset:%d" % (v(VV[rho] + 2, 2), v(vTR), L_V - L_K + 512 + 4096 * rho), "v%d" % rho)
        for rho in range(2):
            self.lds("ds_read_b64_tr_b16 %s, %s offset:%d" % (v(QQ[rho], 2), v(vTR), L_Q - L_K + 4096 * rho), "q")
            self.lds("ds_read_b64_tr_b16 %s, %s offset:%d" % (v(QQ[rho] + 2, 2), v(vTR), L_Q - L_K + 512 + 4096 * rho), "q")
        CA, CB = 21, 22
        e("v_alignbit_b32 %s, %s, %s, 16" % (v(CA), v(vSK), v(vSK)))
        e("v_alignbit_b32 %s, %s, %s, 16" % (v(CB), v(vSK + 1), v(vSK + 1)))
        MM = 56
        KS = 64
        VF = 72
        OUTR = [80, 84]
        for rho in range(2):
            self.wait_lg("v%d" % rho)
            Dw = [KH[rho], KH[rho] + 1, KM[rho], KM[rho] + 1, KM[rho] + 2, KM[rho] + 3]
            for i in range(5):
                e("v_alignbit_b32 %s, %s, %s, 16" % (v(MM + i), v(Dw[i + 1]), v(Dw[i])))
            for t in range(8):
                if t & 1:
                    p0, p1 = Dw[2 + (t >> 1)], Dw[1 + (t >> 1)]
                else:
                    p0, p1 = MM + 1 + (t >> 1), MM + (t >> 1)
                e("v_dot2_f32_bf16 %s, %s, %s, 0" % (v(KS + t), v(p1), v(CB)))
            for t in range(8):
                if t & 1:
                    p0 = Dw[2 + (t >> 1)]
                else:
                    p0 = MM + 1 + (t >> 1)
                e("v_dot2_f32_bf16 %s, %s, %s, %s" % (v(KS + t), v(p0), v(CA), v(KS + t)))
            for t in range(8):
                src = VV[rho] + (t >> 1)
                if t & 1:
                    e("v_and_b32 %s, 0xffff0000, %s" % (v(VF + t), v(src)))
                else:
                    e("v_lshlrev_b32 %s, 16, %s" % (v(VF + t), v(src)))
            for t in range(8):
                e("v_mul_f32 %s, %s, %s" % (v(KS + t), v(KS + t), v(VF + t)))
            for i in range(4):
                e("v_cvt_pk_bf16_f32 %s, %s, %s" % (v(OUTR[rho] + i), v(KS + 7 - 2 * i), v(KS + 6 - 2 * i)))
            self.vmem("buffer_store_dwordx4 %s, %s, %s, 0 offen offset:%d sc1" % (v(OUTR[rho], 4), v(vSKV), srd(SRD_WS), 64 if rho == 0 else 0), "a0st")
        self.wait_lg("q")
        for rho in range(2):
            self.vmem("buffer_store_dwordx4 %s, %s, %s, 0 offen offset:%d sc1" % (v(QQ[rho], 4), v(vSQ), srd(SRD_WS), 64 * rho), "a0st")
        vGO, vZERO = 23, 58
        e("v_mov_b32 %s, 0" % v(vZERO))
        self.vmem("buffer_load_dword %s, %s, %s, 0 offen offset:%d sc1" % (v(vGO), v(vZERO), srd(SRD_DBG), self.go_off), "go")
        self.stamp(2)

    def w_touch(self, half, tag):
        e = self.e
        vP = 62
        e("s_and_b32 s%d, s%d, 3" % (sT0, sBI))
        e("s_mul_i32 s%d, s%d, %d" % (sT0, sT0, 56 * 3584))
        e("s_lshl_b32 s%d, s%d, 8" % (sT1, sBJ))
        e("s_add_u32 s%d, s%d, s%d" % (sT0, sT0, sT1))
        e("s_lshr_b32 s%d, s%d, 1" % (sT1, sWAVE))
        e("s_lshl_b32 s%d, s%d, 7" % (sT1, sT1))
        e("s_add_u32 s%d, s%d, s%d" % (sT0, sT0, sT1))
        if half:
            e("s_add_u32 s%d, s%d, %d" % (sT0, sT0, 224 * 3584))
        e("v_min_u32 %s, 55, v1" % v(vP))
        e("v_mul_u32_u24 %s, 3584, %s" % (v(vP), v(vP)))
        lab, labj = self.newlabel("wt"), self.newlabel("wtj")
        e("s_bitcmp1_b32 s%d, 0" % sWAVE)
        e("s_cbranch_scc1 %s" % lab)
        e("buffer_load_dword v252, %s, %s, s%d offen" % (v(vP), srd(SRD_WG), sT0))
        e("s_branch %s" % labj)
        self.label(lab)
        e("buffer_load_dword v252, %s, %s, s%d offen offset:1024" % (v(vP), srd(SRD_WU), sT0))
        self.label(labj)
        self.vm.append(tag)

    def t_build(self):
        e = self.e
        vZ, vZA, vRA, vPA = 19, 20, 21, 22
        D0 = 100
        e("v_mov_b32 %s, 0" % v(vZ))
        e("s_mul_i32 s%d, s%d, 8320" % (sT2, sCHL))
        e("s_add_u32 s%d, s%d, %d" % (sT2, sT2, L_TS))
        e("v_lshl_add_u32 %s, v1, 2, s%d" % (v(vPA), sT2))
        e("v_mov_b32 %s, s%d" % (v(vZA), sT2))
        e("v_add_u32 %s, %d, %s" % (v(vZA), 32 + 4096, v(vZA)))
        e("v_cmp_gt_u32 vcc, 8, v1")
        e("s_nop 1")
        e("v_cndmask_b32 %s, %s, %s, vcc" % (v(vZA), v(vZA), v(vPA)))
        e("s_mov_b64 exec, 0x1ff")
        e("ds_write_b32 %s, %s" % (v(vZA), v(vZ)))
        e("s_mov_b64 exec, -1")
        e("s_lshl_b32 s%d, s%d, 11" % (sT1, sHALF))
        e("s_add_u32 s%d, s%d, s%d" % (sT1, sT1, sT2))
        e("s_add_u32 s%d, s%d, 32" % (sT1, sT1))
        e("v_lshl_add_u32 %s, v1, 4, s%d" % (v(vRA), sT1))
        self.wait_vm("ts")
        self.wait_lg0()
        e("s_barrier")
        for c in range(2):
            e("ds_read_b128 %s, %s offset:%d" % (v(D0 + 6 * c, 4), v(vRA), 1024 * c))
            e("ds_read_b32 %s, %s offset:%d" % (v(D0 + 6 * c + 4), v(vRA), 1024 * c + 16))
        e("ds_read2_b32 %s, %s offset0:0 offset1:1" % (v(D0 + 12, 2), v(vPA)))
        e("s_mul_i32 s%d, s%d, 4608" % (sT0, sCHL))
        e("s_lshl_b32 s%d, s%d, 8" % (sT1, sHALF))
        e("s_add_u32 s%d, s%d, s%d" % (sT0, sT0, sT1))
        e("s_add_u32 s%d, s%d, %d" % (sT0, sT0, L_X + 4096))
        e("v_lshl_add_u32 %s, v1, 2, s%d" % (v(vZA), sT0))
        e("ds_write_b32 %s, %s" % (v(vZA), v(vZ)))
        self.wait_lg0()
        O = D0 + 16
        for c in range(2):
            for i in range(4):
                e("v_alignbit_b32 %s, %s, %s, 16" % (v(O + 4 * c + i), v(D0 + 6 * c + i + 1), v(D0 + 6 * c + i)))
        e("v_alignbit_b32 %s, %s, %s, 16" % (v(O + 8), v(D0 + 13), v(D0 + 12)))
        for c in range(2):
            e("ds_write_b128 %s, %s offset:%d" % (v(vRA), v(O + 4 * c, 4), 4160 + 1024 * c))
        e("s_mov_b64 exec, 0xff")
        e("ds_write_b32 %s, %s offset:4160" % (v(vPA), v(O + 8)))
        e("s_mov_b64 exec, -1")
        self.wait_lg0()
        e("s_barrier")

    def w_stage_setup(self):
        e = self.e
        vT = 7
        e("v_lshrrev_b32 %s, 2, v1" % v(vT))
        e("v_mul_u32_u24 %s, 3584, %s" % (v(vT), v(vT)))
        e("v_and_b32 %s, 3, v1" % v(vWS))
        e("v_xor_b32 %s, 2, %s" % (v(vWS + 1), v(vWS)))
        e("v_lshl_add_u32 %s, %s, 4, %s" % (v(vWS), v(vWS), v(vT)))
        e("v_lshl_add_u32 %s, %s, 4, %s" % (v(vWS + 1), v(vWS + 1), v(vT)))
        e("v_add_u32 %s, %d, %s" % (v(vWS + 2), 57344 - 2048, v(vWS)))
        e("v_add_u32 %s, %d, %s" % (v(vWS + 3), 57344 - 2048, v(vWS + 1)))

    def w_stage_items(self, rnd, spanel=None, gstart=0, ngroups=7, sgstart=None):
        e = self.e
        items = []
        sp = sWAVE if spanel is None else spanel

        def setup():
            e("s_lshl_b32 s%d, s%d, 8" % (sWB, sBJ))
            e("s_lshl_b32 s%d, s%d, 6" % (sWM, sp))
            e("s_add_u32 s%d, s%d, s%d" % (sWB, sWB, sWM))
            if rnd:
                e("s_add_u32 s%d, s%d, %d" % (sWB, sWB, 14 * rnd * 57344))
            e("s_mul_i32 s%d, s%d, 28672" % (sWM, sp))
            if L_WST:
                e("s_add_u32 s%d, s%d, %d" % (sWM, sWM, L_WST))
            e("s_and_b32 s%d, s%d, 3" % (sWG, sBI))
            e("s_lshl_b32 s%d, s%d, 1" % (sWG, sWG))
            if sgstart is not None:
                e("s_add_u32 s%d, s%d, s%d" % (sWG, sWG, sgstart))
                e("s_cmp_ge_u32 s%d, 7" % sWG)
                e("s_cselect_b32 s%d, 7, 0" % sWX)
                e("s_sub_u32 s%d, s%d, s%d" % (sWG, sWG, sWX))

        def addr():
            e("s_mul_i32 s%d, s%d, %d" % (sWSO, sWG, 2 * 57344))
            e("s_add_u32 s%d, s%d, s%d" % (sWSO, sWSO, sWB))
            e("s_lshl_b32 s%d, s%d, 12" % (sWX, sWG))
            e("s_add_u32 m0, s%d, s%d" % (sWX, sWM))
        for grp in range(ngroups):
            for n in range(4):
                def one(grp=grp, n=n):
                    if grp == 0 and n == 0:
                        setup()
                        addr()
                        e("s_nop 0")
                    elif n == 0:
                        e("s_add_u32 s%d, s%d, 1" % (sWG, sWG))
                        e("s_cmp_eq_u32 s%d, 7" % sWG)
                        e("s_cselect_b32 s%d, 0, s%d" % (sWG, sWG))
                        addr()
                        e("s_nop 0")
                    self.vmem("buffer_load_dwordx4 %s, %s, s%d offen offset:%d lds" % (v(vWS + (n & 1) + 2 * (n >> 1)), srd(SRD_WG if (n & 1) == 0 else SRD_WU), sWSO, 1024 * n), "w%d" % rnd)
                items.append(one)
        return items

    def w_stage_read_setup(self, vB0, vB1):
        e = self.e
        vT, vU = 7, 4
        e("v_bfe_u32 %s, v1, 4, 1" % v(vT))
        e("v_lshrrev_b32 %s, 5, v1" % v(vU))
        e("v_lshlrev_b32 %s, 3, %s" % (v(vU), v(vU)))
        e("v_bfe_u32 %s, v1, 2, 2" % v(vB0))
        e("v_add_u32 %s, %s, %s" % (v(vU), v(vU), v(vB0)))
        e("v_lshlrev_b32 %s, 6, %s" % (v(vU), v(vU)))
        e("v_and_b32 %s, 3, v1" % v(vB0))
        e("v_lshl_add_u32 %s, %s, 3, %s" % (v(vU), v(vB0), v(vU)))
        e("v_mul_u32_u24 %s, 1056, %s" % (v(vT), v(vT)))
        e("s_mul_i32 s%d, s%d, 28672" % (sT0, sWAVE))
        e("v_add3_u32 %s, %s, %s, s%d" % (v(vB0), v(vU), v(vT), sT0))
        e("v_xor_b32 %s, 32, %s" % (v(vB1), v(vB0)))

    def w_stage_read_items(self, rnd, vB0, vB1):
        items = []
        for s in range(14):
            for ft in range(2):
                base = 8 * (14 * rnd + s) + 4 * ft
                for ee in range(2):
                    items.append("ds_read_b64_tr_b16 %s, %s offset:%d" % (a(base + 2 * ee, 2), v(vB0 if ft == 0 else vB1), L_WST + 2048 * s + 256 * ee))
        return items

    def w_stage_read(self, rnd):
        self.c("W staging -> AGPR round %d" % rnd)
        self.wait_vm("w%d" % rnd)
        for line in self.w_stage_read_items(rnd, vWRD, vWRD + 1):
            self.lds(line, "wr")

    def t_read(self):
        e = self.e
        self.c("T fragments -> a112..a239")
        vB, vT, vU = 240, 7, 4
        e("v_and_b32 %s, 15, v1" % v(vT))
        e("v_and_b32 %s, 1, %s" % (v(vU), v(vT)))
        e("v_add_u32 %s, %s, %s" % (v(vT), v(vT), v(vU)))
        e("v_lshrrev_b32 %s, 4, v1" % v(vB))
        e("v_lshl_add_u32 %s, %s, 3, %s" % (v(vT), v(vB), v(vT)))
        e("v_lshlrev_b32 %s, 1, %s" % (v(vT), v(vT)))
        e("v_xor_b32 %s, 1, %s" % (v(vU), v(vU)))
        e("v_mul_u32_u24 %s, 4160, %s" % (v(vU), v(vU)))
        e("s_mul_i32 s%d, s%d, 8320" % (sT0, sCHL))
        e("s_lshl_b32 s%d, s%d, 8" % (sT1, sHALF))
        e("s_add_u32 s%d, s%d, s%d" % (sT0, sT0, sT1))
        e("s_add_u32 s%d, s%d, %d" % (sT0, sT0, L_TS))
        e("v_add3_u32 %s, %s, %s, s%d" % (v(vB), v(vT), v(vU), sT0))
        for i in range(1, 4):
            e("v_add_u32 %s, %d, %s" % (v(vB + i), 1024 * i, v(vB)))
        items = []
        for rr in range(4):
            for q in range(8):
                base = 112 + 4 * (8 * rr + q)
                o = 128 * (q & 1) + 16 * rr
                for hh in range(2):
                    items.append("ds_read2_b32 %s, %s offset0:%d offset1:%d" % (a(base + 2 * hh, 2), v(vB + (q >> 1)), o + 2 * hh, o + 2 * hh + 1))
        return items

    def pre_signal(self):
        e = self.e
        if self.wtouch2:
            self.w_touch(0, "wt")
        self.t_build()
        titems = self.t_read()
        lab0, labj = self.newlabel("p0"), self.newlabel("pj")
        e("s_cmp_eq_u32 s%d, 0" % sWAVE)
        e("s_cbranch_scc1 %s" % lab0)
        save = list(self.vm)
        self.w0_own = self.w_stage_items(0)
        t = list(titems)
        npre = self.npre
        for it in self.w0_own[:npre]:
            it()
            for _ in range(64 // max(npre, 1)):
                e(t.pop(0))
        while t:
            e(t.pop(0))
        self.wait_vm("go")
        self.vm = list(save)
        e("s_branch %s" % labj)
        self.label(lab0)
        for line in titems:
            e(line)
        self.wait_vm("go")
        self.label(labj)

    def window1(self, vL16):
        e = self.e
        lab0, labj = self.newlabel("w0"), self.newlabel("wj")
        e("s_cmp_eq_u32 s%d, 0" % sWAVE)
        e("s_cbranch_scc1 %s" % lab0)
        if self.prefetch:
            vP = 59
            e("s_mul_i32 s%d, s2, 7168" % sT0)
            e("s_sub_u32 s%d, s%d, 1" % (sT1, sWAVE))
            e("s_mul_i32 s%d, s%d, %d" % (sT1, sT1, 19 * 128))
            e("s_add_u32 s%d, s%d, s%d" % (sT0, sT0, sT1))
            e("v_lshl_add_u32 %s, v1, 7, s%d" % (v(vP), sT0))
            e("s_mov_b64 exec, 0x7ffff")
            e("buffer_load_dword v252, %s, %s, 0 offen" % (v(vP), srd(SRD_WG)))
            e("buffer_load_dword v252, %s, %s, 0 offen offset:1024" % (v(vP), srd(SRD_WU)))
            e("buffer_load_dword v252, %s, %s, 0 offen" % (v(vP), srd(SRD_WD)))
            e("s_mov_b64 exec, -1")
        save = list(self.vm)
        for it in self.w0_own[self.npre:]:
            it()
        sPAN, sGST = 72, 73
        e("s_mov_b32 s%d, 0" % sPAN)
        e("s_lshl_b32 s%d, s%d, 1" % (sGST, sWAVE))
        e("s_sub_u32 s%d, s%d, 1" % (sGST, sGST))
        e("s_cmp_eq_u32 s%d, 1" % sWAVE)
        e("s_cselect_b32 s%d, 0, s%d" % (sGST, sGST))
        sh = self.w_stage_items(0, spanel=sPAN, ngroups=3, sgstart=sGST)
        for it in sh[:8]:
            it()
        lab3 = self.newlabel("w3")
        e("s_cmp_eq_u32 s%d, 1" % sWAVE)
        e("s_cbranch_scc0 %s" % lab3)
        for it in sh[8:]:
            it()
        self.label(lab3)
        self.vm = save
        e("s_waitcnt vmcnt(0) lgkmcnt(0)")
        self.stamp(21, wave=1)
        e("s_branch %s" % labj)
        self.label(lab0)
        vA, vTg, vTmp = 21, 22, 23
        e("s_lshr_b32 s%d, s2, 5" % sT0)
        e("s_lshl_b32 s%d, s%d, 8" % (sT0, sT0))
        e("s_add_u32 s%d, s%d, %d" % (sT0, sT0, WS_CNT + 256 * C_S1))
        e("v_mov_b32 %s, s%d" % (v(vA), sT0))
        e("v_mov_b32 %s, 32" % v(vTg))
        if self.smem_poll:
            loop, done = self.newlabel("sp"), self.newlabel("spd")
            e("s_mov_b32 s%d, %d" % (sSPIN, SPIN_LIMIT))
            self.label(loop)
            e("s_load_dword s%d, s[%d:%d], s%d glc" % (sT1, SRD_WS, SRD_WS + 1, sT0))
            e("s_waitcnt lgkmcnt(0)")
            e("s_cmp_ge_u32 s%d, 32" % sT1)
            e("s_cbranch_scc1 %s" % done)
            e("s_sub_u32 s%d, s%d, 1" % (sSPIN, sSPIN))
            e("s_cmp_lg_u32 s%d, 0" % sSPIN)
            e("s_cbranch_scc1 %s" % loop)
            self.label(done)
        else:
            self.spin(vA, vTg, vTmp)
        self.stamp(4)
        e("s_lshl_b32 s%d, s2, 13" % sT0)
        if WS_KVT:
            e("s_add_u32 s%d, s%d, %d" % (sT0, sT0, WS_KVT))
        e("s_mov_b32 m0, %d" % L_X)
        e("s_nop 0")
        for i in range(4):
            e("buffer_load_dwordx4 %s, %s, s%d offen offset:%d sc1 lds" % (v(vL16), srd(SRD_WS), sT0, 1024 * i))
        e("s_add_u32 s%d, s%d, 4096" % (sT0, sT0))
        e("s_mov_b32 m0, %d" % (L_X + 4608))
        e("s_nop 0")
        for i in range(4):
            e("buffer_load_dwordx4 %s, %s, s%d offen offset:%d sc1 lds" % (v(vL16), srd(SRD_WS), sT0, 1024 * i))
        e("s_and_b32 s%d, s2, 7" % sT1)
        e("s_lshl_b32 s%d, s%d, 8" % (sT1, sT1))
        e("s_add_u32 s%d, s%d, %d" % (sT1, sT1, WS_CNT + 256 * C_SL1))
        e("v_mov_b32 %s, s%d" % (v(vA), sT1))
        e("s_waitcnt vmcnt(0) lgkmcnt(0)")
        self.stamp(22)
        self.label(labj)
        self.vm = ["w0"]
        self.lg = []
        e("s_barrier")

    def phase_a1(self):
        e = self.e
        self.c("==== A1 ====")
        ACC = 32
        XF = [64, 96]
        QR, KVR, AR, BR = 128, 136, 144, 160
        LN, KD, QF = 176, 192, 208
        Y = 224
        vT, vU = 7, 4
        vL16 = 9
        e("v_lshlrev_b32 %s, 4, v1" % v(vL16))
        e("s_lshl_b32 s%d, s2, 1" % sT0)
        e("s_add_u32 s%d, s%d, s%d" % (sT0, sT0, sCHL))
        e("s_lshl_b32 s%d, s%d, 12" % (sT0, sT0))
        vTL = 5
        e("v_and_b32 %s, 15, v1" % v(vT))
        e("v_lshrrev_b32 %s, 4, v1" % v(vU))
        e("v_lshlrev_b32 %s, 2, %s" % (v(vU), v(vU)))
        e("v_lshl_add_u32 %s, %s, 4, %s" % (v(vTL), v(vT), v(vU)))
        e("s_lshl_b32 s%d, s%d, 10" % (sT1, sHALF))
        e("v_add_u32 %s, s%d, %s" % (v(vTL), sT1, v(vTL)))
        vQA, vSA = 6, 8
        e("s_add_u32 s%d, s%d, %d" % (sT2, sT0, WS_QT))
        e("v_lshl_add_u32 %s, %s, 1, s%d" % (v(vQA), v(vTL), sT2))
        e("v_lshlrev_b32 %s, 2, %s" % (v(vSA), v(vTL)))
        e("s_mov_b32 s%d, %d" % (sT4, WS_ST1))
        e("s_mov_b32 s%d, %d" % (sT5, WS_ST1 + 8192))
        vXB, vKVA, vEW, vER = 10, 11, 12, 13
        e("v_and_b32 %s, 15, v1" % v(vT))
        e("v_lshrrev_b32 %s, 4, v1" % v(vU))
        e("v_lshlrev_b32 %s, 4, %s" % (v(vU), v(vU)))
        e("v_lshlrev_b32 %s, 5, %s" % (v(vT), v(vT)))
        e("v_sub_u32 %s, %s, %s" % (v(vXB), v(vU), v(vT)))
        e("s_mul_i32 s%d, s%d, 4608" % (sT0, sCHL))
        e("s_lshl_b32 s%d, s%d, 8" % (sT1, sHALF))
        e("s_add_u32 s%d, s%d, s%d" % (sT1, sT1, sT0))
        e("s_add_u32 s%d, s%d, %d" % (sT1, sT1, L_X + 480))
        e("v_add_u32 %s, s%d, %s" % (v(vXB), sT1, v(vXB)))
        e("s_add_u32 s%d, s%d, %d" % (sT1, sT0, L_X + 4088 - 1536))
        e("v_lshlrev_b32 %s, 1, %s" % (v(vT), v(vTL)))
        e("v_sub_u32 %s, s%d, %s" % (v(vKVA), sT1, v(vT)))
        e("s_lshl_b32 s%d, s%d, 12" % (sT0, sWAVE))
        e("s_add_u32 s%d, s%d, %d" % (sT1, sT0, L_TS))
        e("v_add_u32 %s, s%d, %s" % (v(vEW), sT1, v(vL16)))
        e("s_xor_b32 s%d, s%d, 0x1000" % (sT0, sT0))
        e("s_add_u32 s%d, s%d, %d" % (sT1, sT0, L_TS))
        e("v_add_u32 %s, s%d, %s" % (v(vER), sT1, v(vL16)))
        vHO = 14
        vRow = 15
        e("v_lshrrev_b32 %s, 4, v1" % v(vRow))
        e("v_and_b32 %s, 15, v1" % v(vT))
        e("v_lshrrev_b32 %s, 1, %s" % (v(vU), v(vT)))
        e("v_and_b32 %s, 1, %s" % (v(vHO), v(vRow)))
        e("v_lshl_add_u32 %s, %s, 3, %s" % (v(vU), v(vHO), v(vU)))
        e("v_mul_u32_u24 %s, 28672, %s" % (v(vHO), v(vU)))
        e("v_and_b32 %s, 1, %s" % (v(vT), v(vT)))
        e("v_lshl_add_u32 %s, %s, 5, %s" % (v(vHO), v(vT), v(vHO)))
        e("v_lshrrev_b32 %s, 1, %s" % (v(vRow), v(vRow)))
        e("v_lshl_add_u32 %s, %s, 4, %s" % (v(vHO), v(vRow), v(vHO)))
        e("s_lshl_b32 s%d, s2, 1" % sT0)
        e("s_add_u32 s%d, s%d, s%d" % (sT0, sT0, sCHL))
        e("s_lshl_b32 s%d, s%d, 6" % (sT0, sT0))
        e("s_mul_i32 s%d, s%d, %d" % (sT1, sHALF, 32 * 28672))
        e("s_add_u32 s%d, s%d, s%d" % (sT0, sT0, sT1))
        e("s_add_u32 s%d, s%d, %d" % (sT6, sT0, WS_HB))
        e("s_add_u32 s%d, s%d, %d" % (sT7, sT6, 16 * 28672))
        vABR = 16
        e("v_lshl_add_u32 %s, %s, 2, 0" % (v(vABR), v(vTL)))
        e("v_add_u32 %s, %d, %s" % (v(vABR), L_EX, v(vABR)))
        self.window1(vL16)
        self.stamp(5)

        def xread(rr):
            for m in range(8):
                self.lds("ds_read_b128 %s, %s offset:%d" % (v(XF[rr & 1] + 4 * m, 4), v(vXB), 512 * (7 - m) + 64 * rr), "x%d" % rr)

        F = [[], [], [], []]

        def pair(lst, items):
            for i in range(0, len(items), 2):
                lst.append(items[i:i + 2])
        wr = [("lds", x, "wr") for x in self.w_stage_read_items(0, vWRD, vWRD + 1)]
        pair(F[0], wr)
        w1 = self.w_stage_items(1)
        NW1 = self.nw1
        self.w1_rest = w1[NW1:]
        def stat_dma(i):
            if i == 0:
                e("s_lshl_b32 s%d, s%d, 12" % (sT4, sWAVE))
                e("s_add_u32 m0, s%d, %d" % (sT4, L_EX))
                e("s_add_u32 s%d, s%d, %d" % (sT4, sT4, WS_ST1))
            self.vmem("buffer_load_dwordx4 %s, %s, s%d offen offset:%d sc1 lds" % (v(vL16), srd(SRD_WS), sT4, 1024 * i), "stat")
        kvq = []
        for cc in range(4):
            kvq.append([("lds", "ds_read_b64 %s, %s offset:%d" % (v(KVR + 2 * cc, 2), v(vKVA), 512 * (3 - cc)), "kv"),
                        ("vm", "buffer_load_dwordx2 %s, %s, %s, 0 offen offset:%d sc1" % (v(QR + 2 * cc, 2), v(vQA), srd(SRD_WS), 512 * cc), "q")])
        abl = []
        for cc in range(4):
            abl.append([("lds", "ds_read_b128 %s, %s offset:%d" % (v(AR + 4 * cc, 4), v(vABR), 1024 * cc), "ab"),
                        ("lds", "ds_read_b128 %s, %s offset:%d" % (v(BR + 4 * cc, 4), v(vABR), 8192 + 1024 * cc), "ab")])
        it = []
        for cc in range(4):
            for i in range(4):
                src = KVR + 2 * cc + (1 - (i >> 1))
                if i & 1:
                    it.append(("v", "v_lshlrev_b32 %s, 16, %s" % (v(KD + 4 * cc + i), v(src))))
                else:
                    it.append(("v", "v_and_b32 %s, 0xffff0000, %s" % (v(KD + 4 * cc + i), v(src))))
        unp = [[("waitlg", "kv"), it[0]]] + [[x] for x in it[1:]]
        km = [[("v", "v_mul_f32 %s, s%d, %s" % (v(KD + x), sD, v(KD + x)))] for x in range(16)]
        qf = []
        for cc in range(4):
            for i in range(4):
                src = QR + 2 * cc + (i >> 1)
                if i & 1:
                    qf.append(("v", "v_and_b32 %s, 0xffff0000, %s" % (v(QF + 4 * cc + i), v(src))))
                else:
                    qf.append(("v", "v_lshlrev_b32 %s, 16, %s" % (v(QF + 4 * cc + i), v(src))))
        qf = [[("waitvm", "q"), qf[0]]] + [[x] for x in qf[1:]]
        ln = [("v", "v_fma_f32 %s, %s, %s, %s" % (v(LN + x), v(QF + x), v(AR + x), v(BR + x))) for x in range(16)]
        ln = [[("waitlg", "ab"), ln[0]]] + [[x] for x in ln[1:]]
        plan = {1: (28, 8, kvq + unp[:16]), 2: (28, 8, km + qf[:4]), 3: (36, 12, abl + qf[4:] + ln)}
        k = 0
        for rnd_ in (1, 2, 3):
            n, nw, items = plan[rnd_]
            items = list(items)
            ent = [[] for _ in range(n)]
            first = 4 if rnd_ == 1 else (1 if rnd_ == 2 else 0)
            wpos = [first + (j * (n - first - 1)) // nw for j in range(nw)]
            if rnd_ == self.stat_round:
                ent[0].append(("fn", lambda: [stat_dma(i) for i in range(4)]))
            for j in wpos:
                if k == 0:
                    ent[j].append(("waitlg", "wr"))
                ent[j].append(("fn", w1[k]))
                k += 1
            free = [j for j in range(n) if not ent[j]]
            extra = len(items) - len(free)
            slots = sorted(free + wpos[len(wpos) - max(extra, 0):]) if extra > 0 else free
            assert len(items) <= len(slots), (rnd_, len(items), len(slots))
            for j, itm in zip(slots, items):
                ent[j] += itm
            F[rnd_] = ent
        assert k == NW1

        def run(entry):
            for it in entry:
                if it[0] == "v":
                    e(it[1])
                elif it[0] == "lds":
                    self.lds(it[1], it[2])
                elif it[0] == "vm":
                    self.vmem(it[1], it[2])
                elif it[0] == "fn":
                    it[1]()
                elif it[0] == "waitvm":
                    self.wait_vm(it[1])
                elif it[0] == "waitlg":
                    self.wait_lg(it[1])

        xread(0)
        for rr in range(4):
            if rr == self.stat_round - 1:
                lab = self.newlabel("sl")
                e("s_cmp_eq_u32 s%d, 0" % sWAVE)
                e("s_cbranch_scc0 %s" % lab)
                e("buffer_load_dword v23, v21, %s, 0 offen sc1" % srd(SRD_WS))
                self.label(lab)
                self.vm = ["sl@0"]
            if rr == self.stat_round:
                self.stamp(26)
                self.wait_vm("sl@0")
                loop, done = self.newlabel("sll"), self.newlabel("sld")
                e("s_cmp_eq_u32 s%d, 0" % sWAVE)
                e("s_cbranch_scc0 %s" % done)
                e("s_mov_b32 s%d, %d" % (sSPIN, SPIN_LIMIT))
                self.label(loop)
                e("v_cmp_lt_u32 vcc, v23, v22")
                e("s_nop 4")
                e("s_cbranch_vccz %s" % done)
                e("buffer_load_dword v23, v21, %s, 0 offen sc1" % srd(SRD_WS))
                e("s_waitcnt vmcnt(0)")
                e("s_sub_u32 s%d, s%d, 1" % (sSPIN, sSPIN))
                e("s_cmp_lg_u32 s%d, 0" % sSPIN)
                e("s_cbranch_scc1 %s" % loop)
                self.label(done)
                e("s_barrier")
            if rr == self.stat_round + 1:
                self.stamp(27)
                self.wait_vm("stat")
                e("s_barrier")
            if rr:
                self.stamp(22 + rr)
            self.wait_lg("x%d" % rr)
            cnt = 0
            fl = list(F[rr])
            for q in range(8):
                for c in range(q, 8):
                    m = c - q
                    srcc = "0" if (rr == 0 and q == 0) else v(ACC + 4 * c, 4)
                    e("v_mfma_f32_16x16x32_bf16 %s, %s, %s, %s" % (v(ACC + 4 * c, 4), a(112 + 4 * (8 * rr + q), 4), v(XF[rr & 1] + 4 * m, 4), srcc))
                    cnt += 1
                    if rr < 3 and cnt <= 8:
                        m2 = cnt - 1
                        self.lds("ds_read_b128 %s, %s offset:%d" % (v(XF[(rr + 1) & 1] + 4 * m2, 4), v(vXB), 512 * (7 - m2) + 64 * (rr + 1)), "x%d" % (rr + 1))
                    elif fl:
                        run(fl.pop(0))
            for entry in fl:
                run(entry)
        self.stamp(6)
        e("s_nop 7")
        lab1, lab2 = self.newlabel("h1"), self.newlabel("hj")
        TMP = XF[0]
        e("s_cmp_eq_u32 s%d, 0" % sHALF)
        e("s_cbranch_scc0 %s" % lab1)
        for cc in range(4):
            e("ds_write_b128 %s, %s offset:%d" % (v(vEW), v(ACC + 16 + 4 * cc, 4), 1024 * cc))
        for x in range(16):
            e("v_add_f32 %s, %s, %s" % (v(Y + x), v(ACC + x), v(KD + x)))
        e("s_branch %s" % lab2)
        self.label(lab1)
        for cc in range(4):
            e("ds_write_b128 %s, %s offset:%d" % (v(vEW), v(ACC + 4 * cc, 4), 1024 * cc))
        for x in range(16):
            e("v_add_f32 %s, %s, %s" % (v(Y + x), v(ACC + 16 + x), v(KD + x)))
        self.label(lab2)
        e("s_waitcnt lgkmcnt(0)")
        self.lg = []
        e("s_barrier")
        for cc in range(4):
            self.lds("ds_read_b128 %s, %s offset:%d" % (v(TMP + 4 * cc, 4), v(vER), 1024 * cc), "ex%d" % cc)
        P = XF[0] + 16
        for cc in range(4):
            self.wait_lg("ex%d" % cc)
            for i in range(4):
                x = 4 * cc + i
                e("v_add_f32 %s, %s, %s" % (v(Y + x), v(Y + x), v(TMP + x)))
            for i in range(4):
                x = 4 * cc + i
                e("v_fma_f32 %s, %s, %s, %s" % (v(Y + x), v(LN + x), v(Y + x), v(QF + x)))
            e("v_cvt_pk_bf16_f32 %s, %s, %s" % (v(P + 2 * cc), v(Y + 4 * cc), v(Y + 4 * cc + 1)))
            e("v_cvt_pk_bf16_f32 %s, %s, %s" % (v(P + 2 * cc + 1), v(Y + 4 * cc + 2), v(Y + 4 * cc + 3)))
            if cc & 1:
                b = P + 2 * (cc - 1)
                e("s_nop 1")
                e("v_permlane16_swap_b32 %s, %s" % (v(b), v(b + 2)))
                e("v_permlane16_swap_b32 %s, %s" % (v(b + 1), v(b + 3)))
                self.vmem("buffer_store_dwordx4 %s, %s, %s, s%d offen sc1" % (v(b, 4), v(vHO), srd(SRD_WS), sT6 if cc == 1 else sT7), "hst")
        self.stamp(7)

    def helper(self):
        e = self.e
        self.label("L_helper")
        self.in_helper = True
        self.vm = []
        self.lg = []
        self.c("==== helper ====")
        sH = sRB
        e("s_sub_u32 s%d, s2, 224" % sH)
        e("s_waitcnt lgkmcnt(0)")
        self.srds(["q", "rest"])
        if self.stamps:
            e("v_mov_b32 v93, 0")
        vT, vU, vZ = 7, 4, 5
        e("v_mov_b32 %s, 0" % v(vZ))
        FR = 32
        vQ = 6
        e("s_lshl_b32 s%d, s%d, 6" % (sT0, sH))
        e("s_lshl_b32 s%d, s%d, 4" % (sT1, sWAVE))
        e("s_add_u32 s%d, s%d, s%d" % (sT0, sT0, sT1))
        e("v_and_b32 %s, 15, v1" % v(vT))
        e("v_add_u32 %s, s%d, %s" % (v(8), sT0, v(vT)))
        e("v_mul_u32_u24 %s, 896, %s" % (v(vQ), v(8)))
        e("v_lshrrev_b32 %s, 4, v1" % v(vU))
        e("v_lshl_add_u32 %s, %s, 4, %s" % (v(vQ), v(vU), v(vQ)))
        for s in range(14):
            self.vmem("buffer_load_dwordx4 %s, %s, %s, 0 offen offset:%d" % (v(FR + 4 * s, 4), v(vQ), srd(SRD_Q), 64 * s), "q")
        lab = self.newlabel("hz")
        e("s_cmp_eq_u32 s%d, 0" % sWAVE)
        e("s_cbranch_scc0 %s" % lab)
        e("s_lshl_b32 s%d, s%d, 8" % (sT0, sH))
        e("s_add_u32 s%d, s%d, %d" % (sT0, sT0, WS_ST2))
        e("v_lshl_add_u32 %s, v1, 2, s%d" % (v(vT), sT0))
        e("buffer_store_dword %s, %s, %s, 0 offen sc1" % (v(vZ), v(vT), srd(SRD_WS)))
        self.label(lab)
        lab = self.newlabel("hc")
        e("s_cmp_eq_u32 s%d, 0" % sH)
        e("s_cbranch_scc0 %s" % lab)
        e("v_lshlrev_b32 %s, 8, v0" % v(vT))
        e("v_add_u32 %s, %d, %s" % (v(vT), WS_CNT, v(vT)))
        e("v_cmp_gt_u32 vcc, %d, v0" % N_CNT)
        e("s_and_saveexec_b64 s[%d:%d], vcc" % (sEX, sEX + 1))
        lab2 = self.newlabel("hc2")
        e("s_cbranch_execz %s" % lab2)
        e("buffer_store_dword %s, %s, %s, 0 offen sc1" % (v(vZ), v(vT), srd(SRD_WS)))
        self.label(lab2)
        e("s_mov_b64 exec, s[%d:%d]" % (sEX, sEX + 1))
        e("s_waitcnt vmcnt(0)")
        e("s_barrier")
        e("v_mov_b32 %s, 1" % v(vU))
        lab3 = self.newlabel("hc3")
        e("s_cmp_eq_u32 s%d, 0" % sWAVE)
        e("s_cbranch_scc0 %s" % lab3)
        e("s_mov_b64 exec, 1")
        e("buffer_store_dword %s, %s, %s, 0 offen offset:%d sc1" % (v(vU), v(vZ), srd(SRD_DBG), self.go_off))
        e("s_mov_b64 exec, -1")
        self.label(lab3)
        self.label(lab)
        ONES = 16
        for i in range(4):
            e("v_mov_b32 %s, 0x3f803f80" % v(ONES + i))
        self.wait_vm("q")
        GR, SM = 20, 24
        self.stats_mfma(lambda s: FR + 4 * s, ONES, GR, SM, None)
        A_, B_ = 28, 29
        self.stats_finish(GR, SM, A_, B_, None)
        e("v_lshlrev_b32 %s, 2, %s" % (v(vT), v(8)))
        e("s_mov_b32 s%d, %d" % (sT4, WS_ST1))
        e("s_mov_b32 s%d, %d" % (sT5, WS_ST1 + 8192))
        e("s_mov_b32 exec_lo, 0x00f0000f")
        e("s_mov_b32 exec_hi, 0xf0000f00")
        self.vmem("buffer_store_dword %s, %s, %s, s%d offen sc1" % (v(A_), v(vT), srd(SRD_WS), sT4), "st")
        self.vmem("buffer_store_dword %s, %s, %s, s%d offen sc1" % (v(B_), v(vT), srd(SRD_WS), sT5), "st")
        e("s_mov_b64 exec, -1")
        vGO = 30
        loop, done = self.newlabel("go"), self.newlabel("god")
        e("s_mov_b32 s%d, %d" % (sSPIN, SPIN_LIMIT))
        self.label(loop)
        e("buffer_load_dword %s, %s, %s, 0 offen offset:%d sc1" % (v(vGO), v(vZ), srd(SRD_DBG), self.go_off))
        e("s_waitcnt vmcnt(0)")
        self.vm = []
        e("v_cmp_eq_u32 vcc, 0, %s" % v(vGO))
        e("s_nop 4")
        e("s_cbranch_vccz %s" % done)
        e("s_sub_u32 s%d, s%d, 1" % (sSPIN, sSPIN))
        e("s_cmp_lg_u32 s%d, 0" % sSPIN)
        e("s_cbranch_scc1 %s" % loop)
        self.label(done)
        e("s_barrier")
        e("v_lshlrev_b32 %s, 8, v1" % v(vT))
        e("v_add_u32 %s, %d, %s" % (v(vT), WS_CNT + 256 * C_SL1, v(vT)))
        e("v_mov_b32 %s, 1" % v(vU))
        self.signal(vT, vU, 8)
        self.stamp(3)
        if self.stop in ("a0", "a1"):
            self.wait_all()
            e("s_endpgm")
            return
        MK = 40
        for i in range(4):
            e("v_mov_b32 %s, -1" % v(MK + i))
        e("v_lshlrev_b32 v9, 4, v1")
        e("s_mul_i32 s%d, s%d, 229376" % (sT0, sH))
        e("s_mul_i32 s%d, s%d, 57344" % (sT1, sWAVE))
        e("s_add_u32 s%d, s%d, s%d" % (sT0, sT0, sT1))
        e("s_add_u32 s%d, s%d, %d" % (sT0, sT0, WS_HF))
        for grp in range(14):
            for i in range(4):
                e("buffer_store_dwordx4 %s, v9, %s, s%d offen offset:%d sc1" % (v(MK, 4), srd(SRD_WS), sT0, 1024 * i))
            if grp != 13:
                e("s_add_u32 s%d, s%d, 4096" % (sT0, sT0))
                e("s_waitcnt vmcnt(%d)" % self.fill_depth)
        e("s_waitcnt vmcnt(0)")
        e("s_barrier")
        e("v_lshlrev_b32 %s, 8, v1" % v(vT))
        e("v_add_u32 %s, %d, %s" % (v(vT), WS_CNT + 256 * C_FH, v(vT)))
        e("v_mov_b32 %s, 1" % v(vU))
        self.signal(vT, vU, 8)
        self.stamp(4)
        e("v_and_b32 %s, 15, v1" % v(vT))
        e("v_lshlrev_b32 %s, 8, %s" % (v(vT), v(vT)))
        e("s_and_b32 s%d, s2, 7" % sT0)
        e("s_lshl_b32 s%d, s%d, 12" % (sT0, sT0))
        e("s_add_u32 s%d, s%d, %d" % (sT0, sT0, WS_CNT + 256 * C_S2))
        e("v_add_u32 %s, s%d, %s" % (v(vT), sT0, v(vT)))
        e("v_mov_b32 %s, 14" % v(vU))
        self.poll(vT, vU, vGO)
        self.stamp(8)
        e("s_lshr_b32 s%d, s%d, 1" % (sT0, sH))
        e("s_lshl_b32 s%d, s%d, 2" % (sT0, sT0))
        e("s_and_b32 s%d, s%d, 1" % (sT1, sH))
        e("s_add_u32 s%d, s%d, s%d" % (sT0, sT0, sT1))
        e("s_mul_i32 s%d, s%d, 28672" % (sT2, sT0))
        e("s_add_u32 s%d, s%d, %d" % (sT2, sT2, WS_HB))
        vL16 = 9
        e("v_lshlrev_b32 %s, 4, v1" % v(vL16))
        e("s_mul_i32 s%d, s%d, 7168" % (sT3, sWAVE))
        for blk in range(2):
            e("s_add_u32 s%d, s%d, s%d" % (sT4, sT2, sT3))
            if blk:
                e("s_add_u32 s%d, s%d, %d" % (sT4, sT4, 2 * 28672))
            e("s_add_u32 m0, s%d, %d" % (sT3, 28672 * blk))
            e("s_nop 0")
            for i in range(4):
                self.vmem("buffer_load_dwordx4 %s, %s, s%d offen offset:%d sc1 lds" % (v(vL16), srd(SRD_WS), sT4, 1024 * i), "hb%d" % blk)
            e("s_add_u32 s%d, s%d, 4096" % (sT4, sT4))
            e("s_add_u32 m0, s%d, %d" % (sT3, 28672 * blk + 4096))
            e("s_nop 0")
            for i in range(3):
                self.vmem("buffer_load_dwordx4 %s, %s, s%d offen offset:%d sc1 lds" % (v(vL16), srd(SRD_WS), sT4, 1024 * i), "hb%d" % blk)
        vA, vPX = 10, 14
        e("v_lshrrev_b32 %s, 4, v1" % v(vT))
        e("v_bfe_u32 %s, v1, 2, 2" % v(vU))
        e("v_lshl_add_u32 %s, %s, 3, %s" % (v(vT), v(vT), v(vU)))
        e("v_lshlrev_b32 %s, 6, %s" % (v(vT), v(vT)))
        e("v_and_b32 %s, 3, v1" % v(vU))
        e("v_lshl_add_u32 %s, %s, 3, %s" % (v(vA), v(vU), v(vT)))
        e("s_lshr_b32 s%d, s%d, 1" % (sT4, sWAVE))
        e("s_mul_i32 s%d, s%d, %d" % (sT4, sT4, 7 * 2048))
        e("s_and_b32 s%d, s%d, 1" % (sT5, sWAVE))
        e("s_lshl_b32 s%d, s%d, 5" % (sT5, sT5))
        e("s_add_u32 s%d, s%d, s%d" % (sT4, sT4, sT5))
        e("v_add_u32 %s, s%d, %s" % (v(vA), sT4, v(vA)))
        e("s_lshl_b32 s%d, s%d, 9" % (sT4, sWAVE))
        e("s_add_u32 s%d, s%d, 57344" % (sT4, sT4))
        e("v_lshl_add_u32 %s, v1, 3, s%d" % (v(vPX), sT4))
        vRW = 15
        e("s_lshl_b32 s%d, s%d, 5" % (sT4, sT0))
        e("s_and_b32 s%d, s%d, 1" % (sT5, sWAVE))
        e("s_lshl_b32 s%d, s%d, 4" % (sT5, sT5))
        e("s_add_u32 s%d, s%d, s%d" % (sT4, sT4, sT5))
        e("s_lshl_b32 s%d, s%d, 2" % (sT4, sT4))
        e("s_add_u32 s%d, s%d, %d" % (sT4, sT4, WS_ST2))
        e("v_and_b32 %s, 15, v1" % v(vT))
        e("v_lshl_add_u32 %s, %s, 2, s%d" % (v(vRW), v(vT), sT4))
        PK = 28
        for blk in range(2):
            self.wait_vm("hb%d" % blk)
            e("s_barrier")
            for s_ in range(7):
                for ee in range(2):
                    self.lds("ds_read_b64_tr_b16 %s, %s offset:%d" % (v(FR + 4 * s_ + 2 * ee, 2), v(vA), 28672 * blk + 2048 * s_ + 256 * ee), "f%d" % s_)
            self.stats_mfma(lambda s_: FR + 4 * s_, ONES, GR, SM, lambda s_: self.wait_lg("f%d" % s_), n=7)
            self.stats_diag(GR, 11)
            e("v_mov_b32 %s, %s" % (v(12), v(SM)))
            e("v_mov_b32 v60, v11")
            e("v_mov_b32 v61, v12")
            self.lds("ds_write_b64 %s, v[60:61] offset:%d" % (v(vPX), 2048 * blk), "px")
            self.wait_lg0()
            e("s_barrier")
            e("v_xor_b32 %s, 1024, %s" % (v(13), v(vPX)))
            self.lds("ds_read_b64 v[62:63], %s offset:%d" % (v(13), 2048 * blk), "px")
            self.wait_lg0()
            e("v_add_f32 v11, v60, v62")
            e("v_add_f32 %s, v61, v63" % v(SM))
            self.stats_finish(None, SM, None, None, PK)
            lab = self.newlabel("hs")
            e("s_cmp_lt_u32 s%d, 2" % sWAVE)
            e("s_cbranch_scc0 %s" % lab)
            e("s_mov_b32 exec_lo, 0x00f0000f")
            e("s_mov_b32 exec_hi, 0xf0000f00")
            e("buffer_store_dword %s, %s, %s, 0 offen offset:%d sc1" % (v(PK), v(vRW), srd(SRD_WS), 256 * blk))
            e("s_mov_b64 exec, -1")
            self.label(lab)
        self.stamp(9)
        lab = self.newlabel("clr")
        e("s_cmp_eq_u32 s%d, 0" % sH)
        e("s_cbranch_scc0 %s" % lab)
        e("s_cmp_eq_u32 s%d, 0" % sWAVE)
        e("s_cbranch_scc0 %s" % lab)
        e("v_mov_b32 %s, 0" % v(vZ))
        e("s_mov_b64 exec, 1")
        e("buffer_store_dword %s, %s, %s, 0 offen offset:%d sc1" % (v(vZ), v(vZ), srd(SRD_DBG), self.go_off))
        e("s_mov_b64 exec, -1")
        self.label(lab)
        self.stamp_dump()
        self.wait_all()
        e("s_endpgm")

    def stats_mfma(self, frag, ONES, GR, SM, pre, n=14):
        e = self.e
        for s in range(n):
            if pre:
                pre(s)
            f = frag(s)
            e("v_mfma_f32_16x16x32_bf16 %s, %s, %s, %s" % (v(GR, 4), v(f, 4), v(f, 4), "0" if s == 0 else v(GR, 4)))
            e("v_mfma_f32_16x16x32_bf16 %s, %s, %s, %s" % (v(SM, 4), v(ONES, 4), v(f, 4), "0" if s == 0 else v(SM, 4)))
        e("s_nop 7")

    def stats_diag(self, GR, t0):
        e = self.e
        e("s_mov_b32 s%d, 0x22222222" % sT6)
        e("s_mov_b32 s%d, 0x22222222" % sT7)
        e("v_cndmask_b32 %s, %s, %s, s[%d:%d]" % (v(t0), v(GR), v(GR + 1), sT6, sT7))
        e("s_mov_b32 s%d, 0x44444444" % sT6)
        e("s_mov_b32 s%d, 0x44444444" % sT7)
        e("v_cndmask_b32 %s, %s, %s, s[%d:%d]" % (v(t0), v(t0), v(GR + 2), sT6, sT7))
        e("s_mov_b32 s%d, 0x88888888" % sT6)
        e("s_mov_b32 s%d, 0x88888888" % sT7)
        e("v_cndmask_b32 %s, %s, %s, s[%d:%d]" % (v(t0), v(t0), v(GR + 3), sT6, sT7))

    def stats_finish(self, GR, SM, A_, B_, PK):
        e = self.e
        t0, t1, t2 = 11, 12, 13
        if GR is not None:
            self.stats_diag(GR, t0)
        e("s_mov_b32 s%d, 0x3b124925" % sT6)
        e("v_mul_f32 %s, s%d, %s" % (v(t1), sT6, v(SM)))
        e("v_mul_f32 %s, s%d, %s" % (v(t0), sT6, v(t0)))
        e("v_fma_f32 %s, -%s, %s, %s" % (v(t0), v(t1), v(t1), v(t0)))
        e("v_max_f32 %s, 0, %s" % (v(t0), v(t0)))
        e("v_cvt_pk_bf16_f32 %s, %s, %s" % (v(t0), v(t0), v(t1)))
        e("v_and_b32 %s, 0xffff0000, %s" % (v(t1), v(t0)))
        e("v_lshlrev_b32 %s, 16, %s" % (v(t0), v(t0)))
        e("v_add_f32 %s, 0x3727c5ac, %s" % (v(t0), v(t0)))
        e("v_cvt_pk_bf16_f32 %s, %s, %s" % (v(t0), v(t0), v(t0)))
        e("v_lshlrev_b32 %s, 16, %s" % (v(t0), v(t0)))
        e("v_sqrt_f32 %s, %s" % (v(t0), v(t0)))
        e("s_nop 0")
        e("v_cvt_pk_bf16_f32 %s, %s, %s" % (v(t0), v(t0), v(t0)))
        if PK is not None:
            e("v_lshrrev_b32 %s, 16, %s" % (v(t2), v(t1)))
            e("v_and_b32 %s, 0xffff0000, %s" % (v(t0), v(t0)))
            e("v_or_b32 %s, %s, %s" % (v(PK), v(t0), v(t2)))
        else:
            e("v_lshlrev_b32 %s, 16, %s" % (v(t0), v(t0)))
            e("v_rcp_f32 %s, %s" % (v(A_), v(t0)))
            e("s_nop 0")
            e("v_mul_f32 %s, -%s, %s" % (v(B_), v(t1), v(A_)))

    def decode_bc(self):
        e = self.e
        e("s_and_b32 s%d, s2, 7" % sT0)
        e("s_lshr_b32 s%d, s2, 3" % sT1)
        e("s_mul_i32 s%d, s%d, 37" % (sT2, sT1))
        e("s_lshr_b32 s%d, s%d, 8" % (sT2, sT2))
        e("s_mul_i32 s%d, s%d, 7" % (sT3, sT2))
        e("s_sub_u32 s%d, s%d, s%d" % (sT3, sT1, sT3))
        e("s_lshr_b32 s%d, s%d, 1" % (sT4, sT0))
        e("s_lshl_b32 s%d, s%d, 2" % (sT4, sT4))
        e("s_add_u32 s%d, s%d, s%d" % (sBI, sT4, sT2))
        e("s_and_b32 s%d, s%d, 1" % (sT4, sT0))
        e("s_mul_i32 s%d, s%d, 7" % (sT4, sT4))
        e("s_add_u32 s%d, s%d, s%d" % (sBJ, sT4, sT3))
        e("s_lshl_b32 s%d, s%d, 2" % (sT4, sT0))
        e("s_add_u32 s%d, s%d, s%d" % (sT4, sT4, sT2))
        e("s_lshr_b32 s%d, s%d, 1" % (sCI, sT4))
        e("s_and_b32 s%d, s%d, 1" % (sCS, sT4))
        e("s_mov_b32 s%d, s%d" % (sCJ, sT3))

    def main_path(self):
        e = self.e
        self.phase_a0()
        self.w_stage_setup()
        self.w_stage_read_setup(vWRD, vWRD + 1)
        self.pre_signal()
        vGO, vZERO = 23, 58
        loop, done = self.newlabel("go"), self.newlabel("god")
        e("s_mov_b32 s%d, %d" % (sSPIN, SPIN_LIMIT))
        self.label(loop)
        e("v_cmp_eq_u32 vcc, 0, %s" % v(vGO))
        e("s_nop 4")
        e("s_cbranch_vccz %s" % done)
        e("buffer_load_dword %s, %s, %s, 0 offen offset:%d sc1" % (v(vGO), v(vZERO), srd(SRD_DBG), self.go_off))
        e("s_waitcnt vmcnt(0)")
        e("s_sub_u32 s%d, s%d, 1" % (sSPIN, sSPIN))
        e("s_cmp_lg_u32 s%d, 0" % sSPIN)
        e("s_cbranch_scc1 %s" % loop)
        self.label(done)
        e("s_barrier")
        vA, vOne = 5, 6
        e("s_lshl_b32 s%d, s%d, 8" % (sT0, sG0))
        e("s_add_u32 s%d, s%d, %d" % (sT0, sT0, WS_CNT + 256 * C_S1))
        e("v_mov_b32 %s, s%d" % (v(vA), sT0))
        e("v_mov_b32 %s, 1" % v(vOne))
        self.signal(vA, vOne, 1)
        self.stamp(3)
        if self.endif_stop("a0"):
            return False
        self.phase_a1()
        ONES, CA = 108, 32
        for i in range(4):
            e("v_mov_b32 %s, 0x3f803f80" % v(ONES + i))
        e("s_nop 1")
        for s_ in range(14):
            for ft in range(2):
                e("v_mfma_f32_32x32x16_bf16 %s, %s, %s, %s" % (v(CA + 16 * ft, 16), v(ONES, 4), a(8 * s_ + 4 * ft, 4), "0" if s_ == 0 else v(CA + 16 * ft, 16)))
        self.wait_vm("hst")
        e("s_barrier")
        vA, vOne = 5, 6
        e("s_and_b32 s%d, s2, 15" % sT0)
        e("s_lshl_b32 s%d, s%d, 8" % (sT0, sT0))
        e("s_add_u32 s%d, s%d, %d" % (sT0, sT0, WS_CNT + 256 * C_S2))
        e("v_lshlrev_b32 %s, 12, v1" % v(vA))
        e("v_add_u32 %s, s%d, %s" % (v(vA), sT0, v(vA)))
        e("v_mov_b32 %s, 1" % v(vOne))
        self.signal(vA, vOne, 8)
        self.stamp(8)
        for it in self.w1_rest:
            it()
        if self.endif_stop("a1"):
            return False
        return True

    def build(self):
        self.prologue()
        cont = self.main_path()
        if cont:
            from gen_bc import phase_b, phase_c
            phase_b(self)
            if not self.endif_stop("b"):
                phase_c(self)
                self.stamp(20)
                self.stamp_dump()
                self.wait_all()
                if self.spin_us:
                    self.e("L_diag:")
                    self.e("s_memrealtime s[96:97]")
                    self.e("s_waitcnt lgkmcnt(0)")
                    self.e("s_sub_u32 s96, s96, s100")
                    self.e("s_cmp_lt_u32 s96, %d" % (self.spin_us * 100))
                    self.e("s_cbranch_scc1 L_diag")
                self.e("s_endpgm")
                self.redo_code()
        self.helper()
        self.label("L_exit")
        self.e("s_waitcnt vmcnt(0) lgkmcnt(0)")
        self.label("L_end")
        self.e("s_endpgm")
        self.label("L_codeend")
        body = self.text()
        hdr = HEADER
        hdr += "; @launch grid=(256,1,1) block=(256,1,1) lds=%d\n" % LDS_BYTES
        hdr += '.amdgcn_target "amdgcn-amd-amdhsa--gfx950"\n.text\n.globl %s\n.p2align 8\n.type %s,@function\n%s:\n' % (NAME, NAME, NAME)
        tail = """
.section .rodata,"a"
.p2align 6
.amdhsa_kernel %s
  .amdhsa_next_free_vgpr 512
  .amdhsa_next_free_sgpr 102
  .amdhsa_accum_offset 256
  .amdhsa_group_segment_fixed_size 0
  .amdhsa_kernarg_size 104
  .amdhsa_user_sgpr_count 2
  .amdhsa_user_sgpr_kernarg_segment_ptr 1
  .amdhsa_system_sgpr_workgroup_id_x 1
.end_amdhsa_kernel
""" % NAME
        return hdr + body + tail, body


HEADER = """; Fused preLN -> H3 (shift conv, k*v, long causal conv, gate) -> preLN -> GLU FFN, one persistent launch.
; Kernarg: q,k,v,shift_k,ssm_k,ssm_D,x(unused),w_gate,w_up,w_down,out,debug,ws (generated by gen/gen.py)
"""

if __name__ == "__main__":
    import argparse
    ap = argparse.ArgumentParser()
    ap.add_argument("--stop", default=None)
    ap.add_argument("--stamps", action="store_true")
    ap.add_argument("--dbgst", action="store_true")
    ap.add_argument("--spin", type=int, default=0)
    ap.add_argument("--exp", default="")
    ap.add_argument("--tmo", action="store_true")
    ap.add_argument("--wtouch", action="store_true")
    ap.add_argument("--wtouch2", action="store_true")
    ap.add_argument("--smem-poll", action="store_true")
    ap.add_argument("--fill", type=int, default=8)
    ap.add_argument("--npre", type=int, default=8)
    ap.add_argument("--touch", action="store_true")
    ap.add_argument("--no-tlbwarm", action="store_true")
    ap.add_argument("--no-prefetch", action="store_true")
    ap.add_argument("-o", default="out.s")
    args = ap.parse_args()
    g = Gen(stop=args.stop, stamps=args.stamps, tlbwarm=not args.no_tlbwarm, prefetch=not args.no_prefetch, dbgst=args.dbgst)
    g.spin_us = args.spin
    g.touch = args.touch
    g.wtouch = args.wtouch
    g.wtouch2 = args.wtouch2
    g.smem_poll = args.smem_poll
    g.fill_depth = args.fill
    g.npre = args.npre
    g.exp = set(args.exp.split(',')) if args.exp else set()
    txt, body = g.build()
    if args.tmo:
        out = []
        site = 0
        lines = txt.split("\n")
        for i, ln in enumerate(lines):
            out.append(ln)
            if ln.strip() == "s_cmp_lg_u32 s92, 0":
                lab = "L_tmo_%d" % site
                out += ["  s_cbranch_scc1 %s" % lab, "  v_mov_b32 v30, 1", "  v_mov_b32 v31, %d" % (128 + 4 * site), "  s_mov_b64 s[100:101], exec", "  s_mov_b64 exec, 1",
                        "  buffer_atomic_add v30, v31, s[44:47], 0 offen sc1", "  s_mov_b64 exec, s[100:101]", "  s_cmp_lg_u32 s92, 0", lab + ":"]
                print("site", site, "near", [l for l in lines[max(0, i - 14):i] if l.endswith(":")])
                site += 1
        txt = "\n".join(out)
    open(args.o, "w").write(txt)
    check_hazards(body)
    print("wrote", args.o, len(txt), "bytes")
```

```python
from collections import deque
from gen import *
import gen as G_

vHTR0, vHTR2, vL16, vHST, vSTA, vT = 2, 3, 4, 5, 6, 7
vWDB = 8
vS, vC1 = 14, 15
vSTB = [13, 12, 123, 124]
FOLD = 16
CS = 20
vU, vW = 28, 29
ACC = [32, 64]
HF = 96
PK = 108
vWDO = 116
vCS0 = 120
L_RES = 151552
L_RESP = 28672
PART_STRIDE = 4352
sF = 52
sWD0, sWD1 = 53, 54
sHS = 55
NREG_UNITS = 10
GAMMA = 14
HST_STEP = [24, 24, 18, 0]
C_SIG2 = 5
C_BAR = 4


def wdf(ks, ct):
    i = 4 * ks + ct
    if i < 8:
        return ("a", 224 + 4 * i)
    if i < 32:
        return ("v", 160 + 4 * (i - 8))
    if i < 40:
        return ("v", 128 + 4 * (i - 32))
    return ("a", 4 * (i - 40))


def rname(reg, n, off=0):
    k, b = reg
    return (a if k == "a" else v)(b + off, n)


class Q:
    def __init__(self, g):
        self.g = g
        self.o = deque()

    def op(self, line, cost=4, nb=0):
        self.o.append((cost, lambda: self.g.e(line), nb))

    def fn(self, fn, cost=4, nb=0):
        self.o.append((cost, fn, nb))

    def gap(self, budget, step):
        fresh = True
        while self.o and self.o[0][2] <= step and (self.o[0][0] <= budget or fresh):
            c, f, _ = self.o.popleft()
            f()
            budget -= c
            fresh = False

    def flush(self):
        while self.o:
            self.o.popleft()[1]()


def wd_dma(g, unit, n):
    e = g.e
    if n == 0:
        e("s_mul_i32 s%d, s%d, 401408" % (sWD0, sWAVE))
        e("s_lshl_b32 s%d, s%d, 7" % (sWD1, sCJ))
        e("s_add_u32 s%d, s%d, s%d" % (sWD0, sWD0, sWD1))
        e("s_mul_i32 s%d, s%d, 28" % (sWD1, sOFF + unit))
        e("s_add_u32 s%d, s%d, s%d" % (sWD0, sWD0, sWD1))
        e("s_lshl_b32 s%d, s%d, 14" % (sWD1, sWAVE))
        e("s_add_u32 s%d, s%d, %d" % (sWD1, sWD1, L_WD + 4096 * (unit % 4)))
        e("s_mov_b32 m0, s%d" % sWD1)
        e("s_nop 0")
    g.vmem("buffer_load_dwordx4 %s, %s, s%d offen offset:%d lds" % (v(vWDO + n), srd(SRD_WD), sWD0, 1024 * n), "wd%d" % unit)


def wd_read(g, unit, i):
    ct, ee = i >> 1, i & 1
    if i == 0:
        g.wait_vm("wd%d" % unit)
    g.lds("ds_read_b64_tr_b16 %s, %s offset:%d" % (rname(wdf(unit, ct), 2, 2 * ee), v(vWDB + ct), 4096 * (unit % 4) + 1024 * ee), "wr%d" % unit)


def hb_dma(g, blk, n):
    e = g.e
    if n in (0, 4):
        e("s_lshl_b32 s%d, s%d, 2" % (sT4, sBI))
        e("s_add_u32 s%d, s%d, %d" % (sT4, sT4, blk))
        e("s_mul_i32 s%d, s%d, 28672" % (sT4, sT4))
        e("s_mul_i32 s%d, s%d, 7168" % (sT5, sWAVE))
        e("s_add_u32 s%d, s%d, s%d" % (sT4, sT4, sT5))
        e("s_add_u32 s%d, s%d, %d" % (sT4, sT4, WS_HB + (4096 if n == 4 else 0)))
        e("s_add_u32 m0, s%d, %d" % (sT5, L_HB + 28672 * (blk % 3) + (4096 if n == 4 else 0)))
        e("s_nop 0")
    g.vmem("buffer_load_dwordx4 %s, %s, s%d offen offset:%d sc1 lds" % (v(vL16), srd(SRD_WS), sT4, 1024 * (n & 3)), "hb%d" % blk)


def res_dma(g, n):
    e = g.e
    if n == 0:
        e("v_lshrrev_b32 %s, 1, v1" % v(vU))
        e("v_lshlrev_b32 %s, 6, %s" % (v(vU), v(vU)))
        e("v_and_b32 %s, 1, v1" % v(vW))
        e("v_lshl_add_u32 %s, %s, 4, %s" % (v(vU), v(vW), v(vU)))
        e("s_lshl_b32 s%d, s%d, 2" % (sT0, sCI))
        e("s_add_u32 s%d, s%d, s%d" % (sT0, sT0, sWAVE))
        e("s_mul_i32 s%d, s%d, 28672" % (sT0, sT0))
        e("s_lshl_b32 s%d, s%d, 12" % (sT1, sCJ))
        e("s_add_u32 s%d, s%d, s%d" % (sT0, sT0, sT1))
        e("s_lshl_b32 s%d, s%d, 5" % (sT1, sCS))
        e("s_add_u32 s%d, s%d, s%d" % (sT0, sT0, sT1))
        e("s_add_u32 s%d, s%d, %d" % (sT0, sT0, WS_HB))
        e("s_lshl_b32 s%d, s%d, 11" % (sT1, sWAVE))
        e("s_add_u32 m0, s%d, %d" % (sT1, L_RES))
    else:
        e("s_add_u32 s%d, s%d, 2048" % (sT0, sT0))
        e("s_add_u32 m0, s%d, %d" % (sT1, L_RES + 1024))
    e("s_nop 0")
    g.vmem("buffer_load_dwordx4 %s, %s, s%d offen sc1 lds" % (v(vU), srd(SRD_WS), sT0), "res")


def flag_load(g, u):
    e = g.e
    e("s_lshl_b32 s%d, s%d, 2" % (sT2, sCI))
    e("s_add_u32 s%d, s%d, %d" % (sT2, sT2, C_S3 + u))
    e("s_lshl_b32 s%d, s%d, 8" % (sT2, sT2))
    e("s_add_u32 s%d, s%d, %d" % (sT2, sT2, WS_CNT))
    e("s_load_dword s%d, s[%d:%d], s%d glc" % (sF, SRD_WS, SRD_WS + 1, sT2))


def flag_check(g, u):
    e = g.e
    loop, ok = g.newlabel("fl"), g.newlabel("fo")
    e("s_waitcnt lgkmcnt(0)")
    e("s_cmp_ge_u32 s%d, 14" % sF)
    e("s_cbranch_scc1 %s" % ok)
    e("s_mov_b32 s%d, %d" % (sSPIN, SPIN_LIMIT))
    g.label(loop)
    e("s_sleep 1")
    e("s_load_dword s%d, s[%d:%d], s%d glc" % (sF, SRD_WS, SRD_WS + 1, sT2))
    e("s_waitcnt lgkmcnt(0)")
    e("s_cmp_ge_u32 s%d, 14" % sF)
    e("s_cbranch_scc1 %s" % ok)
    e("s_sub_u32 s%d, s%d, 1" % (sSPIN, sSPIN))
    e("s_cmp_lg_u32 s%d, 0" % sSPIN)
    e("s_cbranch_scc1 %s" % loop)
    g.label(ok)


vFL, vFA = 125, 126


def flagv_load(g, u):
    e = g.e
    e("s_lshl_b32 s%d, s%d, 2" % (sT2, sCI))
    e("s_add_u32 s%d, s%d, %d" % (sT2, sT2, C_S3 + u))
    e("s_lshl_b32 s%d, s%d, 8" % (sT2, sT2))
    e("s_add_u32 s%d, s%d, %d" % (sT2, sT2, WS_CNT))
    e("v_mov_b32 %s, s%d" % (v(vFA), sT2))
    g.vmem("buffer_load_dword %s, %s, %s, 0 offen sc1" % (v(vFL), v(vFA), srd(SRD_WS)), "flag")


def flagv_check(g, wave=None):
    e = g.e
    g.wait_vm("flag", dual=True)
    loop, ok = g.newlabel("fvl"), g.newlabel("fvo")
    if wave is not None:
        e("s_cmp_eq_u32 s%d, %d" % (sWAVE, wave))
        e("s_cbranch_scc0 %s" % ok)
    e("s_mov_b32 s%d, %d" % (sSPIN, SPIN_LIMIT))
    g.label(loop)
    e("v_cmp_gt_u32 vcc, 14, %s" % v(vFL))
    e("s_nop 4")
    e("s_cbranch_vccz %s" % ok)
    e("s_sleep 1")
    e("buffer_load_dword %s, %s, %s, 0 offen sc1" % (v(vFL), v(vFA), srd(SRD_WS)))
    e("s_waitcnt vmcnt(0)")
    e("s_sub_u32 s%d, s%d, 1" % (sSPIN, sSPIN))
    e("s_cmp_lg_u32 s%d, 0" % sSPIN)
    e("s_cbranch_scc1 %s" % loop)
    g.label(ok)


def s3_signal(g, u):
    e = g.e
    e("s_lshl_b32 s%d, s%d, 2" % (sT0, sBI))
    e("s_add_u32 s%d, s%d, %d" % (sT0, sT0, C_S3 + u))
    e("s_lshl_b32 s%d, s%d, 8" % (sT0, sT0))
    e("s_add_u32 s%d, s%d, %d" % (sT0, sT0, WS_CNT))
    e("v_mov_b32 %s, s%d" % (v(vU), sT0))
    e("v_mov_b32 %s, 1" % v(vW))
    g.signal(vU, vW, 1)
    g.vm.append("sig@0")


def epilogue_items(g, q, p, nb):
    e = g.e
    acc = ACC[p & 1]

    def stats():
        vST = vSTB[p]
        g.wait_vm("st%d" % p)
        loop, ok = g.newlabel("stl"), g.newlabel("sto")
        e("s_mov_b32 s%d, %d" % (sSPIN, SPIN_LIMIT))
        g.label(loop)
        e("v_cmp_eq_u32 vcc, 0, %s" % v(vST))
        e("s_nop 4")
        e("s_cbranch_vccz %s" % ok)
        e("buffer_load_dword %s, %s, %s, 0 offen offset:%d sc1" % (v(vST), v(vSTA), srd(SRD_WS), 128 * p))
        e("s_waitcnt vmcnt(0)")
        e("s_sub_u32 s%d, s%d, 1" % (sSPIN, sSPIN))
        e("s_cmp_lg_u32 s%d, 0" % sSPIN)
        e("s_cbranch_scc1 %s" % loop)
        g.label(ok)
    q.fn(stats, 24, nb)
    q.op("v_and_b32 %s, 0xffff0000, %s" % (v(vS), v(vSTB[p])), nb=nb)
    q.op("v_and_b32 %s, 0xffff, %s" % (v(FOLD + 1), v(vSTB[p])), nb=nb)
    q.op("v_rcp_f32 %s, %s" % (v(vC1), v(vS)), 8, nb)
    q.op("v_xor_b32 %s, 0x8000, %s" % (v(FOLD + 1), v(FOLD + 1)), nb=nb)
    q.op("v_cndmask_b32 %s, 0, %s, s[%d:%d]" % (v(FOLD + 1), v(FOLD + 1), sEX, sEX + 1), nb=nb)
    q.op("v_lshl_or_b32 %s, %s, 16, %s" % (v(FOLD), v(FOLD + 1), v(FOLD + 1)), nb=nb)
    q.op("v_mul_f32 %s, 0xbfb8aa3b, %s" % (v(vC1), v(vC1)), nb=nb)
    q.op("s_nop 0", nb=nb)

    def fold():
        for ft in range(2):
            e("v_mfma_f32_32x32x16_bf16 %s, %s, %s, %s" % (v(acc + 16 * ft, 16), v(CS + 4 * ft, 4), v(FOLD, 4), v(acc + 16 * ft, 16)))
    q.fn(fold, 0, nb)
    for _ in range(4):
        q.fn(lambda: None, 100, nb)


def epilogue_valu(g, q, p, nb, direct=False, nostore=False):
    acc = ACC[p & 1]

    def put(line, cost=4):
        if direct:
            g.e(line)
        else:
            q.op(line, cost, nb)
    for ft in range(2):
        b = acc + 16 * ft
        for x in range(8):
            put("v_mul_f32 %s, %s, %s" % (v(b + x), v(b + x), v(vC1)))
        for x in range(8):
            put("v_exp_f32 %s, %s" % (v(b + x), v(b + x)), 8)
        for x in range(8):
            put("v_fma_f32 %s, %s, %s, %s" % (v(b + x), v(b + x), v(vS), v(vS)))
        for x in range(8):
            put("v_rcp_f32 %s, %s" % (v(b + x), v(b + x)), 8)
        for x in range(8):
            put("v_mul_f32 %s, %s, %s" % (v(b + 8 + x), v(b + 8 + x), v(b + x)))
        for i in range(4):
            put("v_cvt_pk_bf16_f32 %s, %s, %s" % (v(PK + 4 * ft + i), v(b + 8 + 2 * i), v(b + 9 + 2 * i)))


    if nostore:
        return
    if direct:
        h_store(g, p)
    else:
        q.fn(lambda: h_store(g, p), 40, max(nb, HST_STEP[p]))


def h_store(g, p):
    g.e("s_lshl_b32 s%d, s%d, 2" % (sT6, sBI))
    g.e("s_add_u32 s%d, s%d, %d" % (sT6, sT6, p))
    g.e("s_mul_i32 s%d, s%d, 114688" % (sT6, sT6))
    g.e("s_lshl_b32 s%d, s%d, 2" % (sT7, sBJ))
    g.e("s_add_u32 s%d, s%d, s%d" % (sT7, sT7, sWAVE))
    g.e("s_lshl_b32 s%d, s%d, 10" % (sT7, sT7))
    g.e("s_add_u32 s%d, s%d, s%d" % (sT6, sT6, sT7))
    g.e("s_add_u32 s%d, s%d, %d" % (sT6, sT6, WS_HF))
    for ft in range(2):
        g.vmem("buffer_store_dwordx4 %s, %s, %s, s%d offen offset:%d sc1" % (v(PK + 4 * ft, 4), v(vHST), srd(SRD_WS), sT6, 512 * ft), "hst%d" % p)


def wd_bases(g, dst):
    e = g.e
    t0, t1, t2 = vT, vU, vW
    e("v_lshrrev_b32 %s, 5, v1" % v(t0))
    e("v_bfe_u32 %s, v1, 4, 1" % v(t1))
    e("v_lshlrev_b32 %s, 4, %s" % (v(t0), v(t0)))
    e("v_lshl_add_u32 %s, %s, 2, %s" % (v(t0), v(t1), v(t0)))
    e("v_bfe_u32 %s, v1, 2, 2" % v(t2))
    e("v_add_u32 %s, %s, %s" % (v(t0), v(t0), v(t2)))
    e("v_lshlrev_b32 %s, 7, %s" % (v(t0), v(t0)))
    e("v_lshrrev_b32 %s, 1, %s" % (v(t2), v(t2)))
    e("v_lshl_add_u32 %s, %s, 1, %s" % (v(t1), v(t1), v(t2)))
    e("v_and_b32 %s, 3, v1" % v(t2))
    e("v_lshl_add_u32 %s, %s, 3, %s" % (v(t0), v(t2), v(t0)))
    e("s_lshl_b32 s%d, s%d, 14" % (sT0, sWAVE))
    e("s_add_u32 s%d, s%d, %d" % (sT0, sT0, L_WD))
    e("v_add_u32 %s, s%d, %s" % (v(t0), sT0, v(t0)))
    for ct in range(4):
        e("v_xor_b32 %s, %d, %s" % (v(t2), ct, v(t1)))
        e("v_lshl_add_u32 %s, %s, 5, %s" % (v(dst + ct), v(t2), v(t0)))


def hslot(u, s):
    return a((64 if (u & 1) == 0 else 120) + 4 * s, 4)


vHA = 2


def rot_table(g):
    e = g.e
    e("s_lshl_b32 s%d, s%d, 1" % (sT0, sCI))
    e("s_add_u32 s%d, s%d, s%d" % (sT0, sT0, sCS))
    e("s_and_b32 s%d, s%d, 3" % (sT0, sT0))
    e("s_lshl_b32 s%d, s%d, 1" % (sT0, sT0))
    e("s_add_u32 s%d, s%d, s%d" % (sT0, sT0, sCJ))
    e("s_lshl_b32 s%d, s%d, 1" % (sT0, sT0))
    e("s_cmp_ge_u32 s%d, 14" % sT0)
    e("s_cselect_b32 s%d, 14, 0" % sT1)
    e("s_sub_u32 s%d, s%d, s%d" % (sT0, sT0, sT1))
    for i in range(14):
        e("s_lshl_b32 s%d, s%d, 10" % (sOFF + i, sT0))
        if i != 13:
            e("s_add_u32 s%d, s%d, 1" % (sT0, sT0))
            e("s_cmp_eq_u32 s%d, 14" % sT0)
            e("s_cselect_b32 s%d, 0, s%d" % (sT0, sT0))


def hso(g, u):
    e = g.e
    e("s_lshl_b32 s%d, s%d, 2" % (sHS, sCI))
    e("s_add_u32 s%d, s%d, %d" % (sHS, sHS, u))
    e("s_lshl_b32 s%d, s%d, 1" % (sHS, sHS))
    e("s_add_u32 s%d, s%d, s%d" % (sHS, sHS, sCS))
    e("s_mul_i32 s%d, s%d, 57344" % (sHS, sHS))
    e("s_mul_i32 s%d, s%d, 14336" % (sT3, sWAVE))
    e("s_add_u32 s%d, s%d, s%d" % (sHS, sHS, sT3))
    e("s_add_u32 s%d, s%d, %d" % (sHS, sHS, WS_HF))
    e("v_add_u32 %s, s%d, %s" % (v(vHA), sHS, v(vL16)))


vHA0 = 127


def hso3(g, u):
    global vHA
    save = vHA
    vHA = vHA0
    hso(g, u)
    vHA = save


def hload(g, u, s, vaddr=None):
    g.vmem("buffer_load_dwordx4 %s, %s, %s, s%d offen sc1" % (hslot(u, s), v(vHA if vaddr is None else vaddr), srd(SRD_WS), sOFF + s), "hf%d_%d" % (u, s))


def colsum(g, s0, s1, ONES):
    for s in range(s0, s1):
        for ft in range(2):
            g.e("v_mfma_f32_32x32x16_bf16 %s, %s, %s, %s" % (v(ACC[0] + 16 * ft, 16), v(ONES, 4), a(8 * s + 4 * ft, 4), "0" if s == s0 else v(ACC[0] + 16 * ft, 16)))


def phase_b(g):
    e = g.e
    g.c("==== B prologue ====")
    ONES = PK
    e("v_lshlrev_b32 %s, 4, v1" % v(vL16))
    e("v_lshrrev_b32 %s, 5, v1" % v(vT))
    e("v_bfe_u32 %s, v1, 2, 2" % v(vU))
    e("v_lshl_add_u32 %s, %s, 3, %s" % (v(vT), v(vT), v(vU)))
    e("v_lshlrev_b32 %s, 6, %s" % (v(vHTR0), v(vT)))
    e("v_bfe_u32 %s, v1, 4, 1" % v(vT))
    e("v_lshl_add_u32 %s, %s, 5, %s" % (v(vHTR0), v(vT), v(vHTR0)))
    e("v_and_b32 %s, 3, v1" % v(vT))
    e("v_lshl_add_u32 %s, %s, 3, %s" % (v(vHTR0), v(vT), v(vHTR0)))
    e("v_bfe_u32 %s, v1, 4, 1" % v(vT))
    e("v_mul_u32_u24 %s, 57344, %s" % (v(vHST), v(vT)))
    e("v_lshrrev_b32 %s, 5, v1" % v(vT))
    e("v_lshl_add_u32 %s, %s, 8, %s" % (v(vHST), v(vT), v(vHST)))
    e("v_and_b32 %s, 15, v1" % v(vT))
    e("v_lshl_add_u32 %s, %s, 4, %s" % (v(vHST), v(vT), v(vHST)))
    e("v_and_b32 %s, 31, v1" % v(vT))
    e("s_lshl_b32 s%d, s%d, 9" % (sT0, sBI))
    e("s_add_u32 s%d, s%d, %d" % (sT0, sT0, WS_ST2))
    e("v_lshl_add_u32 %s, %s, 2, s%d" % (v(vSTA), v(vT), sT0))
    e("v_lshrrev_b32 %s, 3, v1" % v(vT))
    e("v_mul_u32_u24 %s, 896, %s" % (v(vWDO), v(vT)))
    e("v_lshrrev_b32 %s, 1, %s" % (v(vT), v(vT)))
    e("v_lshlrev_b32 %s, 1, %s" % (v(vT), v(vT)))
    e("v_and_b32 %s, 7, v1" % v(vU))
    e("v_xor_b32 %s, %s, %s" % (v(vU), v(vU), v(vT)))
    e("v_lshl_add_u32 %s, %s, 4, %s" % (v(vWDO), v(vU), v(vWDO)))
    for n in range(1, 4):
        e("v_add_u32 %s, %d, %s" % (v(vWDO + n), n * 6144, v(vWDO)))
    wd_bases(g, vWDB)
    rot_table(g)
    e("s_mov_b32 s%d, -1" % sEX)
    e("s_mov_b32 s%d, 0" % (sEX + 1))
    e("v_mov_b32 %s, 0" % v(FOLD + 2))
    e("v_mov_b32 %s, 0" % v(FOLD + 3))
    e("v_mov_b32 %s, %s" % (v(vCS0), v(ACC[0])))
    e("v_mov_b32 %s, %s" % (v(vCS0 + 1), v(ACC[0] + 16)))
    g.w_stage_read(1)
    e("v_add_u32 %s, %d, %s" % (v(vHTR2), 57344, v(vHTR0)))
    e("v_and_b32 %s, 15, v1" % v(vT))
    e("v_lshlrev_b32 %s, 8, %s" % (v(vT), v(vT)))
    e("s_and_b32 s%d, s2, 7" % sT0)
    e("s_lshl_b32 s%d, s%d, 12" % (sT0, sT0))
    e("s_add_u32 s%d, s%d, %d" % (sT0, sT0, WS_CNT + 256 * C_S2))
    e("v_add_u32 %s, s%d, %s" % (v(vT), sT0, v(vT)))
    e("v_mov_b32 %s, 14" % v(vU))
    e("s_and_b32 s%d, s2, 7" % sT0)
    e("s_lshl_b32 s%d, s%d, 8" % (sT0, sT0))
    e("s_add_u32 s%d, s%d, %d" % (sT0, sT0, WS_CNT + 256 * C_FH))
    e("v_mov_b32 %s, s%d" % (v(vW), sT0))
    e("v_cmp_gt_u32 vcc, 32, v1")
    e("s_nop 1")
    e("v_cndmask_b32 %s, %s, %s, vcc" % (v(vT), v(vW), v(vT)))
    e("v_cndmask_b32 %s, 32, %s, vcc" % (v(vU), v(vU)))
    lab = g.newlabel("hb0")
    e("s_cmp_eq_u32 s%d, 0" % sWAVE)
    e("s_cbranch_scc0 %s" % lab)
    g.spin(vT, vU, vW)
    g.stamp(9)
    e("s_lshl_b32 s%d, s%d, 2" % (sT4, sBI))
    e("s_mul_i32 s%d, s%d, 28672" % (sT4, sT4))
    e("s_add_u32 s%d, s%d, %d" % (sT4, sT4, WS_HB))
    for grp in range(7):
        e("s_mov_b32 m0, %d" % (L_HB + 4096 * grp))
        e("s_nop 0")
        for i in range(4):
            e("buffer_load_dwordx4 %s, %s, s%d offen offset:%d sc1 lds" % (v(vL16), srd(SRD_WS), sT4, 1024 * i))
        if grp != 6:
            e("s_add_u32 s%d, s%d, 4096" % (sT4, sT4))
    g.label(lab)
    g.wait_lg("wr")
    colsum(g, 14, 28, ONES)
    e("s_nop 7")
    e("s_nop 3")
    for ft in range(2):
        cs = ACC[0] + 16 * ft
        d = CS + 4 * ft
        e("v_add_f32 %s, %s, %s" % (v(cs), v(cs), v(vCS0 + ft)))
        e("v_cvt_pk_bf16_f32 %s, %s, %s" % (v(vT), v(cs), v(cs)))
        e("v_lshlrev_b32 %s, 16, %s" % (v(vT), v(vT)))
        e("v_sub_f32 %s, %s, %s" % (v(vU), v(cs), v(vT)))
        e("v_cvt_pk_bf16_f32 %s, %s, %s" % (v(d), v(cs), v(vU)))
        e("v_and_b32 %s, 0xffff0000, %s" % (v(vT), v(d)))
        e("v_sub_f32 %s, %s, %s" % (v(vU), v(vU), v(vT)))
        e("v_cvt_pk_bf16_f32 %s, %s, 0" % (v(d + 1), v(vU)))
        e("v_cndmask_b32 %s, 0, %s, s[%d:%d]" % (v(d), v(d), sEX, sEX + 1))
        e("v_cndmask_b32 %s, 0, %s, s[%d:%d]" % (v(d + 1), v(d + 1), sEX, sEX + 1))
        e("v_mov_b32 %s, 0" % v(d + 2))
        e("v_mov_b32 %s, 0" % v(d + 3))
    g.wait_vm0()
    e("s_barrier")
    g.stamp(10)

    vm_ev = {}
    ld_ev = {}

    def put_vm(step, fn):
        while step in vm_ev:
            step += 1
        vm_ev[step] = fn
        return step
    for n in range(7):
        put_vm(0 + n, lambda n=n: hb_dma(g, 1, n))
    D = {0: 7, 1: 11, 2: 15, 3: 26, 4: 35, 5: 39, 6: 43, 7: 47, 8: 63, 9: 67, 10: 71, 11: 75, 12: 91, 13: 95}
    R = {0: 30, 1: 34, 2: 38, 3: 42, 4: 58, 5: 62, 6: 66, 7: 70, 8: 86, 9: 90}
    for n in range(7):
        put_vm(19 + n, lambda n=n: hb_dma(g, 2, n))
    for n in range(7):
        put_vm(54 + n, lambda n=n: hb_dma(g, 3, n))
    for unit in range(14):
        for n in range(4):
            def f(unit=unit, n=n):
                if n == 0 and unit >= 4:
                    g.wait_lg("wr%d" % (unit - 4))
                wd_dma(g, unit, n)
            st = put_vm(D[unit] + n, f)
            assert st == D[unit] + n, (unit, n, st)
    for unit in range(NREG_UNITS):
        for i in range(8):
            ld_ev.setdefault(R[unit] + (i >> 1), []).append(lambda unit=unit, i=i: wd_read(g, unit, i))
    for n in range(2):
        put_vm(84 + n, lambda n=n: res_dma(g, n))
    for p in range(1, 4):
        put_vm(30 + p, lambda p=p: g.vmem("buffer_load_dword %s, %s, %s, 0 offen offset:%d sc1" % (v(vSTB[p]), v(vSTA), srd(SRD_WS), 128 * p), "st%d" % p))
    for unit, r0 in ((10, 94), (11, 98)):
        for i in range(8):
            ld_ev.setdefault(r0 + (i >> 1), []).append(lambda unit=unit, i=i: wd_read(g, unit, i))
    def first_h():
        hso3(g, 0)
        hload(g, 0, 0, vaddr=vHA0)
    put_vm(99, first_h)
    nxt0 = list(range(1, 14))
    for st_ in (100, 101, 102, 103, 104, 105, 106, 107, 109, 110, 111):
        put_vm(st_, lambda s_=nxt0.pop(0): hload(g, 0, s_, vaddr=vHA0))
    tail_h = nxt0

    def hread(gs):
        u, s = divmod(gs, 28)
        if u > 3:
            return
        buf = u % 3
        base = vHTR2 if buf == 2 else vHTR0
        off = (28672 * buf if buf < 2 else 0) + 1024 * s
        for ee in range(2):
            g.lds("ds_read_b64_tr_b16 %s, %s offset:%d" % (v(HF + 4 * (gs % 3) + 2 * ee, 2), v(base), L_HB + off + 256 * ee), "h%d" % gs)

    hread(0)
    hread(1)
    for u in range(4):
        g.c("---- B block %d" % u)
        q = Q(g)
        acc = ACC[u & 1]
        if u >= 1:
            epilogue_items(g, q, u - 1, 0)
            epilogue_valu(g, q, u - 1, 0)
        for s in range(28):
            gs = 28 * u + s
            g.wait_lg("h%d" % gs)
            srcc = lambda ft: "0" if s == 0 else v(acc + 16 * ft, 16)
            e("v_mfma_f32_32x32x16_bf16 %s, %s, %s, %s" % (v(acc, 16), a(8 * s, 4), v(HF + 4 * (gs % 3), 4), srcc(0)))
            hread(gs + 2)
            q.gap(16, s)
            e("v_mfma_f32_32x32x16_bf16 %s, %s, %s, %s" % (v(acc + 16, 16), a(8 * s + 4, 4), v(HF + 4 * (gs % 3), 4), srcc(1)))
            budget = 20
            for f in ld_ev.get(gs, []):
                f()
                budget -= 4
            if gs in vm_ev:
                vm_ev[gs]()
                budget -= 4
            q.gap(budget, s) if budget > 0 else None
            if u == 0 and s == 18:
                g.vmem("buffer_load_dword %s, %s, %s, 0 offen sc1" % (v(vSTB[0]), v(vSTA), srd(SRD_WS)), "st0")
            if s == 25:
                tags = []
                if u <= 2:
                    tags.append("hb%d" % (u + 1))
                if u == 3:
                    tags.append("res")
                g.wait_vm(tags)
                e("s_barrier")
        q.flush()
        g.stamp(11 + u)
    g.c("---- B tail / C head")
    q = Q(g)
    epilogue_items(g, q, 3, 0)
    while q.o and q.o[-1][0] == 100:
        q.o.pop()
    q.flush()
    for s_ in tail_h:
        hload(g, 0, s_, vaddr=vHA0)
    side = []
    for unit in (12, 13):
        for i in range(8):
            side.append(lambda unit=unit, i=i: wd_read(g, unit, i))
    for k in range(10):
        side.pop(0)()
    q2 = Q(g)
    epilogue_valu(g, q2, 3, 0, nostore=True)
    k = 0
    while q2.o:
        q2.o.popleft()[1]()
        k += 1
        if k % 4 == 2 and side:
            side.pop(0)()
    h_store(g, 3)
    g.stamp(16)
    hso(g, 1)
    c_setup(g)
    g.stamp(15)


vPW, vPR, vRW, vRR, vOUT, vRES = 13, 14, 15, 16, 17, 18
SUM = 64
RS = 84
OUTP = 92


def c_setup(g):
    e = g.e
    e("v_lshrrev_b32 %s, 4, v1" % v(vT))
    e("v_and_b32 %s, 15, v1" % v(vU))
    e("v_mul_u32_u24 %s, 272, %s" % (v(vW), v(vT)))
    e("v_lshl_add_u32 %s, %s, 4, %s" % (v(vW), v(vU), v(vW)))
    e("s_lshl_b32 s%d, s%d, 14" % (sT0, sWAVE))
    e("s_add_u32 s%d, s%d, %d" % (sT0, sT0, L_WD))
    e("v_add_u32 %s, s%d, %s" % (v(vPW), sT0, v(vW)))
    e("s_mul_i32 s%d, s%d, 1088" % (sT0, sWAVE))
    e("s_add_u32 s%d, s%d, %d" % (sT0, sT0, L_RESP))
    e("v_add_u32 %s, s%d, %s" % (v(vRW), sT0, v(vW)))
    e("v_mul_u32_u24 %s, 272, %s" % (v(vW), v(vU)))
    e("s_lshl_b32 s%d, s%d, 2" % (sT0, sWAVE))
    e("v_add_u32 %s, s%d, %s" % (v(vPR), sT0, v(vT)))
    e("v_lshl_add_u32 %s, %s, 4, %s" % (v(vW), v(vPR), v(vW)))
    e("s_lshl_b32 s%d, s%d, 7" % (sT0, sCI))
    e("s_lshl_b32 s%d, s%d, 4" % (sT1, sCS))
    e("s_add_u32 s%d, s%d, s%d" % (sT0, sT0, sT1))
    e("v_add_u32 %s, s%d, %s" % (v(vOUT), sT0, v(vPR)))
    e("v_mul_u32_u24 %s, 896, %s" % (v(vOUT), v(vOUT)))
    e("v_lshl_add_u32 %s, %s, 3, %s" % (v(vOUT), v(vU), v(vOUT)))
    e("s_lshl_b32 s%d, s%d, 7" % (sT0, sCJ))
    e("v_add_u32 %s, s%d, %s" % (v(vOUT), sT0, v(vOUT)))
    e("v_add_u32 %s, %d, %s" % (v(vPR), L_WD, v(vW)))
    e("v_add_u32 %s, %d, %s" % (v(vRR), L_RESP, v(vW)))
    e("v_lshrrev_b32 %s, 4, v1" % v(vT))
    e("v_bfe_u32 %s, v1, 2, 2" % v(vU))
    e("v_lshl_add_u32 %s, %s, 2, %s" % (v(vT), v(vT), v(vU)))
    e("s_lshl_b32 s%d, s%d, 4" % (sT0, sWAVE))
    e("v_add_u32 %s, s%d, %s" % (v(vT), sT0, v(vT)))
    e("v_lshlrev_b32 %s, 5, %s" % (v(vT), v(vT)))
    e("v_and_b32 %s, 3, v1" % v(vU))
    e("v_lshl_add_u32 %s, %s, 3, %s" % (v(vT), v(vU), v(vT)))
    e("v_add_u32 %s, %d, %s" % (v(vRES), L_RES, v(vT)))
    for u in range(4):
        g.lds("ds_read_b64_tr_b16 %s, %s offset:%d" % (v(RS + 2 * u, 2), v(vRES), 2048 * u), "rs%d" % u)
    for u in range(4):
        g.wait_lg("rs%d" % u)
        t = SUM + 4 * u
        e("v_lshlrev_b32 %s, 16, %s" % (v(t), v(RS + 2 * u)))
        e("v_and_b32 %s, 0xffff0000, %s" % (v(t + 1), v(RS + 2 * u)))
        e("v_lshlrev_b32 %s, 16, %s" % (v(t + 2), v(RS + 2 * u + 1)))
        e("v_and_b32 %s, 0xffff0000, %s" % (v(t + 3), v(RS + 2 * u + 1)))
        g.lds("ds_write_b128 %s, %s offset:%d" % (v(vRW), v(t, 4), PART_STRIDE * u), "rw")


def phase_c(g):
    e = g.e
    g.c("==== C ====")
    CACC = [32, 48]

    def finish_items(q, u, nb):
        buf = u & 1
        for w in range(4):
            q.fn(lambda w=w: g.lds("ds_read_b128 %s, %s offset:%d" % (v(SUM + 4 * w, 4), v(vPR), 16384 * w + PART_STRIDE * buf), "p%d" % w), 4, nb)
        q.fn(lambda: g.lds("ds_read_b128 %s, %s offset:%d" % (v(SUM + 16, 4), v(vRR), PART_STRIDE * u), "p4"), 4, nb)
        q.fn(lambda: g.wait_lg("p1"), 4, nb + 1)
        for i in range(4):
            q.op("v_add_f32 %s, %s, %s" % (v(SUM + i), v(SUM + i), v(SUM + 4 + i)), 4, nb)
        q.fn(lambda: g.wait_lg("p3"), 4, nb)
        for i in range(4):
            q.op("v_add_f32 %s, %s, %s" % (v(SUM + 8 + i), v(SUM + 8 + i), v(SUM + 12 + i)), 4, nb)
        q.fn(lambda: g.wait_lg("p4"), 4, nb)
        for i in range(4):
            q.op("v_add_f32 %s, %s, %s" % (v(SUM + i), v(SUM + i), v(SUM + 16 + i)), 4, nb)
        for i in range(4):
            q.op("v_add_f32 %s, %s, %s" % (v(SUM + i), v(SUM + i), v(SUM + 8 + i)), 4, nb)
        q.op("v_cvt_pk_bf16_f32 %s, %s, %s" % (v(OUTP + 2 * u), v(SUM), v(SUM + 1)), 4, nb)
        q.op("v_cvt_pk_bf16_f32 %s, %s, %s" % (v(OUTP + 2 * u + 1), v(SUM + 2), v(SUM + 3)), 4, nb)

    def pwrite(u, ct):
        g.lds("ds_write_b128 %s, %s offset:%d" % (v(vPW), v(CACC[u & 1] + 4 * ct, 4), 1088 * ct + PART_STRIDE * (u & 1)), "pw")

    def mfmas(u, s):
        acc = CACC[u & 1]
        return [lambda ct=ct: e("v_mfma_f32_16x16x32_bf16 %s, %s, %s, %s" % (v(acc + 4 * ct, 4), rname(wdf(s, ct), 4), hslot(u, s), "0" if s == 0 else v(acc + 4 * ct, 4))) for ct in range(4)]

    def reduce_head(q, u):
        for ct in range(4):
            q.fn(lambda ct=ct: pwrite(u, ct), 8, 1)

    vRD = 126
    g.redo = []

    def check(u):
        lab, back = g.newlabel("redo"), g.newlabel("back")
        acc = CACC[u & 1]
        e("v_cmp_u_f32 vcc, %s, %s" % (v(acc), v(acc)))
        e("s_nop 4")
        e("s_cbranch_vccnz %s" % lab)
        g.label(back)
        g.redo.append((u, lab, back))

    for u in range(4):
        g.c("---- C chunk %d" % u)
        q = Q(g)
        nxt = list(range(14)) if u < 3 else []
        if u == 0:
            g.wait_lg0()
        for s in range(14):
            g.wait_vm("hf%d_%d" % (u, s))
            if s == C_BAR and u >= 1:
                q.flush()
                g.wait_lg("pw")
                e("s_barrier")
                finish_items(q, u - 1, 0)
            ms = mfmas(u, s)
            per = 0
            if nxt and s >= 1:
                per = min(4, -(-len(nxt) // (14 - s)))
            for ct in range(4):
                ms[ct]()
                if per and nxt and ct in ((1,), (0, 2), (0, 1, 2), (0, 1, 2, 3))[per - 1]:
                    hload(g, u + 1, nxt.pop(0))
                else:
                    q.gap(8, s)
            if s == 0:
                if u >= 1:
                    check(u - 1)
                    for ct in range(4):
                        q.fn(lambda ct=ct: pwrite(u - 1, ct), 8, 1)
                if 1 <= u < 3:
                    hso(g, u + 1)
        q.flush()
        assert not nxt
        g.stamp(17 + u if u < 3 else 21)
    e("s_nop 7")
    check(3)
    for ct in range(4):
        pwrite(3, ct)
    g.wait_lg0()
    e("s_barrier")

    def redo_code():
        for u, lab, back in g.redo:
            g.label(lab)
            loop, done = g.newlabel("rl"), g.newlabel("rd")
            e("s_lshl_b32 s%d, s%d, 2" % (sHS, sCI))
            e("s_add_u32 s%d, s%d, %d" % (sHS, sHS, u))
            e("s_lshl_b32 s%d, s%d, 1" % (sHS, sHS))
            e("s_add_u32 s%d, s%d, s%d" % (sHS, sHS, sCS))
            e("s_mul_i32 s%d, s%d, 57344" % (sHS, sHS))
            e("s_mul_i32 s%d, s%d, 14336" % (sT3, sWAVE))
            e("s_add_u32 s%d, s%d, s%d" % (sHS, sHS, sT3))
            e("s_add_u32 s%d, s%d, %d" % (sHS, sHS, WS_HF))
            e("v_add_u32 %s, s%d, %s" % (v(vRD), sHS, v(vL16)))
            e("s_mov_b32 s%d, %d" % (sSPIN, SPIN_LIMIT))
            g.label(loop)
            for s in range(14):
                e("buffer_load_dwordx4 %s, %s, %s, s%d offen sc1" % (hslot(u, s), v(vRD), srd(SRD_WS), sOFF + s))
            e("s_waitcnt vmcnt(0)")
            for s in range(14):
                mfmas(u, s)[0]()
            e("s_nop 7")
            e("s_nop 3")
            e("v_cmp_u_f32 vcc, %s, %s" % (v(CACC[u & 1]), v(CACC[u & 1])))
            e("s_nop 4")
            e("s_cbranch_vccz %s" % done)
            e("s_sub_u32 s%d, s%d, 1" % (sSPIN, sSPIN))
            e("s_cmp_lg_u32 s%d, 0" % sSPIN)
            e("s_cbranch_scc1 %s" % loop)
            g.label(done)
            for s in range(14):
                for ct in range(1, 4):
                    mfmas(u, s)[ct]()
            e("s_nop 7")
            e("s_nop 3")
            e("s_branch %s" % back)
    g.redo_code = redo_code
    for u in range(3):
        e("s_mov_b32 s%d, %d" % (sT4, 32 * 896 * u))
        g.vmem("buffer_store_dwordx2 %s, %s, %s, s%d offen" % (v(OUTP + 2 * u, 2), v(vOUT), srd(SRD_OUT), sT4), "out")
    q = Q(g)
    finish_items(q, 3, 0)
    q.flush()
    e("s_mov_b32 s%d, %d" % (sT4, 32 * 896 * 3))
    g.vmem("buffer_store_dwordx2 %s, %s, %s, s%d offen" % (v(OUTP + 6, 2), v(vOUT), srd(SRD_OUT), sT4), "out")
```

```python
import sys, os
sys.path.insert(0, os.path.dirname(os.path.abspath(__file__)))
from asmlib import Asm, check_hazards

NAME = "sequential_preLN__ssm_conv_h3__glu_gated_glu__prompt_kernel"
S, D, F = 2048, 448, 1792

WS_KVT = 0x000000
WS_QT = 0x200000
WS_HB = 0x400000
WS_HF = 0x600000
WS_ST1 = 0xE00000
WS_ST2 = 0xE08000
WS_CNT = 0xE10000
WS_TS = 0xF00000
WS_SIZE = 0x1000000
C_S1, C_SL1, C_FH, C_FH1, C_S3, C_S2 = 0, 8, 16, 24, 32, 96
N_CNT = 32

L_WST = 0
L_K = 114688
L_V = L_K + 9216
L_Q = L_V + 8192
L_TS = L_Q + 8192
L_X = L_K
L_EX = L_V
L_HB = 0
L_WD = 86016
LDS_BYTES = 163840

sWAVE = 3
SRD_WS, SRD_Q, SRD_K, SRD_V, SRD_SK, SRD_SH, SRD_WG, SRD_WU, SRD_WD, SRD_OUT, SRD_DBG = 4, 8, 12, 16, 20, 24, 28, 32, 36, 40, 44
sPC = 48
sD = 50
sT0, sT1, sT2, sT3, sT4, sT5, sT6, sT7 = 76, 77, 78, 79, 80, 81, 82, 83
sA0BASE = 84
sG0 = 85
sRB = 86
sBI, sBJ = 87, 88
sCI, sCS, sCJ = 89, 90, 91
sSPIN = 92
sM = 93
sEX = 94
sTS = 96
sHALF = 98
sCHL = 99
sWSO, sWM, sWB, sWG, sWX = 51, 75, 56, 57, 74
sOFF = 58
vWS = 248
vWRD = 246


def srd(n):
    return "s[%d:%d]" % (n, n + 3)


def v(a, n=1):
    return "v%d" % a if n == 1 else "v[%d:%d]" % (a, a + n - 1)


def a(i, n=1):
    return "a%d" % i if n == 1 else "a[%d:%d]" % (i, i + n - 1)


SPIN_LIMIT = 40000
DBG_IDX = [0, 1, 3, 4, 5, 6, 8, 9, 10, 11, 12, 13, 14, 15, 17, 20]


class Gen(Asm):
    def __init__(self, stop=None, stamps=False, tlbwarm=True, prefetch=True, dbgst=False):
        super().__init__()
        self.stop = stop
        self.stamps = stamps
        self.tlbwarm = tlbwarm
        self.prefetch = prefetch
        self.exp = set()
        self.spin_us = 0
        self.dbgst = dbgst
        self.go_off = 128 if dbgst else 0
        self.npre = 8
        self.nw1 = 28
        self.stat_round = 2
        self.ool = []
        self.fill_depth = 8
        self.touch = False
        self.wtouch = False
        self.wtouch2 = False
        self.smem_poll = False

    def stamp(self, idx, wave=0):
        if self.dbgst:
            if idx not in DBG_IDX or getattr(self, "in_helper", False):
                return
            lab = self.newlabel("st")
            self.e("s_cmp_eq_u32 s%d, 0" % sWAVE)
            self.e("s_cbranch_scc0 %s" % lab)
            self.e("s_and_b32 s%d, s2, 31" % sTS)
            self.e("s_cmp_eq_u32 s%d, %d" % (sTS, 5))
            self.e("s_cbranch_scc0 %s" % lab)
            self.e("s_memrealtime s[%d:%d]" % (sTS, sTS + 1))
            self.e("s_waitcnt lgkmcnt(0)")
            if idx == 0:
                self.e("s_not_b32 s%d, s%d" % (sTS, sTS))
            self.e("v_mov_b32 v30, s%d" % sTS)
            self.e("v_mov_b32 v31, %d" % (4 * DBG_IDX.index(idx)))
            self.e("s_mov_b64 exec, 1")
            self.e("buffer_atomic_umax v30, v31, %s, 0 offen sc1" % srd(SRD_DBG))
            self.e("s_mov_b64 exec, -1")
            self.label(lab)
            return
        if not self.stamps or wave != 0:
            return
        vS = 93 if getattr(self, "in_helper", False) else 30
        lab = self.newlabel("st")
        self.e("s_cmp_eq_u32 s%d, 0" % sWAVE)
        self.e("s_cbranch_scc0 %s" % lab)
        self.e("s_memrealtime s[%d:%d]" % (sTS, sTS + 1))
        self.e("s_memtime s[100:101]")
        self.e("s_waitcnt lgkmcnt(0)")
        self.e("v_writelane_b32 v%d, s%d, %d" % (vS, sTS, idx))
        self.e("v_writelane_b32 v%d, s100, %d" % (vS, 32 + idx))
        self.label(lab)

    def stamp_dump(self):
        if not self.stamps:
            return
        vS = 93 if getattr(self, "in_helper", False) else 30
        lab = self.newlabel("sd")
        self.e("s_cmp_eq_u32 s%d, 0" % sWAVE)
        self.e("s_cbranch_scc0 %s" % lab)
        self.e("s_lshl_b32 s%d, s2, 8" % sTS)
        self.e("s_add_u32 s%d, s%d, %d" % (sTS, sTS, WS_TS))
        self.e("v_lshl_add_u32 v31, v1, 2, s%d" % sTS)
        self.e("buffer_store_dword v%d, v31, %s, 0 offen" % (vS, srd(SRD_WS)))
        self.label(lab)

    def spin(self, vaddr, vtarget, vtmp):
        loop = self.newlabel("ploop")
        done = self.newlabel("pdone")
        self.e("s_mov_b32 s%d, %d" % (sSPIN, SPIN_LIMIT))
        self.label(loop)
        self.e("buffer_load_dword %s, %s, %s, 0 offen sc1" % (v(vtmp), v(vaddr), srd(SRD_WS)))
        self.e("s_waitcnt vmcnt(0)")
        self.e("v_cmp_lt_u32 vcc, %s, %s" % (v(vtmp), v(vtarget)))
        self.e("s_nop 4")
        self.e("s_cbranch_vccz %s" % done)
        self.e("s_sub_u32 s%d, s%d, 1" % (sSPIN, sSPIN))
        self.e("s_cmp_lg_u32 s%d, 0" % sSPIN)
        self.e("s_cbranch_scc0 %s" % done)
        self.e("s_sleep 1")
        self.e("s_branch %s" % loop)
        self.label(done)

    def poll(self, vaddr, vtarget, vtmp):
        skip = self.newlabel("pskip")
        self.e("s_cmp_eq_u32 s%d, 0" % sWAVE)
        self.e("s_cbranch_scc0 %s" % skip)
        self.spin(vaddr, vtarget, vtmp)
        self.label(skip)
        self.e("s_barrier")

    def signal(self, vaddr, vone, nlanes):
        skip = self.newlabel("sig")
        self.e("s_cmp_eq_u32 s%d, 0" % sWAVE)
        self.e("s_cbranch_scc0 %s" % skip)
        self.e("s_mov_b64 exec, %d" % ((1 << nlanes) - 1))
        self.e("buffer_atomic_add %s, %s, %s, 0 offen sc1" % (v(vone), v(vaddr), srd(SRD_WS)))
        self.e("s_mov_b64 exec, -1")
        self.label(skip)

    def mark_reads(self, n, vaddr, off, r0, tag):
        return ["ds_read_b128 %s, %s offset:%d" % (v(r0 + 4 * i, 4), v(vaddr), off + 1024 * i) for i in range(n)]

    def mark_fold(self, n, r0):
        out = ["v_max3_u32 %s, %s, %s, %s" % (v(r0), v(r0), v(r0 + 1), v(r0 + 2))]
        i = 3
        while i + 1 < 4 * n:
            out.append("v_max3_u32 %s, %s, %s, %s" % (v(r0), v(r0), v(r0 + i), v(r0 + i + 1)))
            i += 2
        if i < 4 * n:
            out.append("v_max_u32 %s, %s, %s" % (v(r0), v(r0), v(r0 + i)))
        return out

    def mark_branch(self, n, vaddr, off, r0, refetch):
        e = self.e
        lab, back = self.newlabel("mk"), self.newlabel("mkb")
        e("v_cmp_eq_u32 vcc, -1, %s" % v(r0))
        e("s_nop 4")
        e("s_cbranch_vccnz %s" % lab)
        self.label(back)

        def code():
            loop, done = self.newlabel("mkl"), self.newlabel("mkd")
            self.label(lab)
            e("s_mov_b32 s73, m0")
            e("s_mov_b32 s%d, %d" % (sSPIN, SPIN_LIMIT))
            self.label(loop)
            refetch()
            e("s_waitcnt vmcnt(0)")
            for ln in self.mark_reads(n, vaddr, off, r0, None):
                e(ln)
            e("s_waitcnt lgkmcnt(0)")
            for ln in self.mark_fold(n, r0):
                e(ln)
            e("v_cmp_eq_u32 vcc, -1, %s" % v(r0))
            e("s_nop 4")
            e("s_cbranch_vccz %s" % done)
            e("s_sub_u32 s%d, s%d, 1" % (sSPIN, sSPIN))
            e("s_cmp_lg_u32 s%d, 0" % sSPIN)
            e("s_cbranch_scc1 %s" % loop)
            self.label(done)
            e("s_mov_b32 m0, s73")
            e("s_branch %s" % back)
        self.ool.append(code)

    def hb_refetch(self, stb, add, buf, vL16):
        e = self.e
        e("s_add_u32 s56, s%d, %d" % (stb, add))
        e("s_mul_i32 s56, s56, 28672")
        e("s_mul_i32 s57, s%d, 7168" % sWAVE)
        e("s_add_u32 s56, s56, s57")
        e("s_add_u32 s56, s56, %d" % WS_HB)
        e("s_add_u32 m0, s57, %d" % (28672 * buf))
        e("s_nop 0")
        for i in range(4):
            e("buffer_load_dwordx4 %s, %s, s56 offen offset:%d sc1 lds" % (v(vL16), srd(SRD_WS), 1024 * i))
        e("s_add_u32 s56, s56, 4096")
        e("s_add_u32 m0, s57, %d" % (28672 * buf + 4096))
        e("s_nop 0")
        for i in range(3):
            e("buffer_load_dwordx4 %s, %s, s56 offen offset:%d sc1 lds" % (v(vL16), srd(SRD_WS), 1024 * i))

    def endif_stop(self, name):
        if self.stop == name:
            self.wait_all()
            self.e("s_endpgm")
            return True
        return False

    def mk(self, dst, src, size):
        e = self.e
        e("s_mov_b32 s%d, s%d" % (dst, src))
        e("s_mov_b32 s%d, s%d" % (dst + 1, src + 1))
        e("s_mov_b32 s%d, %d" % (dst + 2, size))
        e("s_mov_b32 s%d, 0x20000" % (dst + 3))

    def srds(self, which):
        e, mk = self.e, self.mk
        for r in which:
            if r == "q":
                mk(SRD_Q, 52, S * D * 2)
            elif r == "k":
                mk(SRD_K, 54, S * D * 2)
            elif r == "v":
                mk(SRD_V, 56, S * D * 2)
            elif r == "sh":
                mk(SRD_SH, 58, D * 4 * 2)
            elif r == "sk":
                mk(SRD_SK, 60, S * D * 2)
            elif r == "w":
                mk(SRD_WG, 64, D * F * 2)
                mk(SRD_WU, 66, D * F * 2)
                mk(SRD_WD, 68, D * F * 2)
                e("s_sub_u32 s%d, s%d, 1024" % (SRD_WU, SRD_WU))
                e("s_subb_u32 s%d, s%d, 0" % (SRD_WU + 1, SRD_WU + 1))
                e("s_add_u32 s%d, s%d, 1024" % (SRD_WU + 2, SRD_WU + 2))
            elif r == "rest":
                mk(SRD_OUT, 70, S * D * 2)
                mk(SRD_DBG, 72, 256)
                mk(SRD_WS, 74, WS_SIZE)

    def prologue(self):
        e = self.e
        if self.stamps:
            e("s_memrealtime vcc")
        e("s_load_dwordx8 s[52:59], s[0:1], 0")
        e("s_getpc_b64 s[%d:%d]" % (sPC, sPC + 1))
        self.label("L_pc")
        if self.touch:
            e("s_min_u32 s%d, s2, 223" % sT1)
            e("s_mul_i32 s%d, s%d, 293" % (sRB, sT1))
            e("s_lshr_b32 s%d, s%d, 11" % (sRB, sRB))
            e("v_lshrrev_b32 v3, 6, v0")
            e("v_and_b32 v2, 15, v0")
            e("v_lshl_add_u32 v2, v3, 4, v2")
            e("s_lshl_b32 s%d, s%d, 7" % (sT1, sT1))
            e("s_mul_i32 s%d, s%d, 56448" % (sA0BASE, sRB))
            e("v_mul_u32_u24 v2, 896, v2")
            e("s_add_u32 s%d, s%d, s%d" % (sA0BASE, sA0BASE, sT1))
            e("v_add_u32 v2, s%d, v2" % sA0BASE)
        e("v_and_b32 v4, 7, v0")
        e("s_lshr_b32 s%d, s2, 3" % sT0)
        e("v_lshlrev_b32 v4, 7, v4")
        e("s_lshl_b32 s%d, s%d, 10" % (sT0, sT0))
        e("v_add_u32 v4, s%d, v4" % sT0)
        e("v_min_u32 v4, L_codeend-L_pc-4, v4")
        e("global_load_dword v253, v4, s[%d:%d]" % (sPC, sPC + 1))
        if self.touch:
            e("s_waitcnt lgkmcnt(0)")
            e("global_load_dword v252, v2, s[54:55]")
            e("global_load_dword v252, v2, s[56:57]")
            e("global_load_dword v252, v2, s[52:53]")
        else:
            e("v_lshrrev_b32 v3, 6, v0")
        e("s_load_dwordx4 s[60:63], s[0:1], 32")
        e("s_load_dwordx4 s[64:67], s[0:1], 56")
        e("s_load_dwordx4 s[68:71], s[0:1], 72")
        e("s_load_dwordx4 s[72:75], s[0:1], 88")
        if self.spin_us:
            e("s_memrealtime s[100:101]")
        e("v_and_b32 v1, 63, v0")
        e("v_readfirstlane_b32 s%d, v3" % sWAVE)
        e("s_cmp_ge_u32 s2, 256")
        e("s_cbranch_scc1 L_exit")
        e("s_cmp_ge_u32 s2, 224")
        e("s_cbranch_scc1 L_helper")

    def phase_a0(self):
        e = self.e
        self.c("==== A0 ====")
        e("s_mul_i32 s%d, s2, 293" % sRB)
        e("s_lshr_b32 s%d, s%d, 11" % (sRB, sRB))
        e("s_mul_i32 s%d, s%d, 7" % (sT0, sRB))
        e("s_sub_u32 s%d, s2, s%d" % (sG0, sT0))
        e("s_mul_i32 s%d, s%d, %d" % (sA0BASE, sRB, 64 * 896))
        e("s_lshl_b32 s%d, s%d, 7" % (sT0, sG0))
        e("s_add_u32 s%d, s%d, s%d" % (sA0BASE, sA0BASE, sT0))
        vP, vOff, vOffH, vT = 4, 5, 6, 7
        e("v_lshrrev_b32 %s, 4, v1" % v(vT))
        e("v_and_b32 %s, 1, %s" % (v(vT), v(vT)))
        e("v_lshlrev_b32 %s, 1, %s" % (v(vT), v(vT)))
        e("v_and_b32 %s, 7, v1" % v(vP))
        e("v_xor_b32 %s, %s, %s" % (v(vP), v(vP), v(vT)))
        e("v_lshlrev_b32 %s, 4, %s" % (v(vP), v(vP)))
        e("v_lshrrev_b32 %s, 3, v1" % v(vT))
        e("v_mul_u32_u24 %s, 896, %s" % (v(vT), v(vT)))
        e("v_add_u32 %s, %s, %s" % (v(vP), v(vP), v(vT)))
        e("s_and_b32 s%d, s%d, 1" % (sT0, sWAVE))
        e("s_lshl_b32 s%d, s%d, 6" % (sT0, sT0))
        e("v_xor_b32 %s, s%d, %s" % (v(vOff), sT0, v(vP)))
        e("v_xor_b32 %s, 64, %s" % (v(vOffH), v(vP)))
        e("s_cmp_eq_u32 s%d, 0" % sRB)
        e("s_cselect_b32 s%d, 0x80000000, 0" % sT1)
        e("v_add_u32 %s, s%d, %s" % (v(vOffH), sT1, v(vOffH)))
        e("s_sub_u32 s%d, s%d, 7168" % (sT2, sA0BASE))
        e("s_cmp_eq_u32 s%d, 0" % sRB)
        e("s_cselect_b32 s%d, 0, s%d" % (sT2, sT2))
        e("s_mul_i32 s%d, s%d, 7168" % (sT3, sWAVE))
        e("s_add_u32 s%d, s%d, s%d" % (sT3, sT3, sA0BASE))
        e("s_add_u32 s%d, s%d, %d" % (sT4, sT3, 4 * 7168))
        e("s_lshl_b32 s%d, s%d, 10" % (sT5, sWAVE))

        e("s_waitcnt lgkmcnt(0)")
        if self.stamps:
            e("v_mov_b32 v254, vcc_lo")
            e("v_mov_b32 v30, 0")
        self.srds("kvq")

        def dma(srdn, voff, soff, ldsbase, addw=True):
            if addw:
                e("s_add_u32 m0, s%d, %d" % (sT5, ldsbase))
            else:
                e("s_mov_b32 m0, %d" % ldsbase)
            e("s_nop 0")
            self.vmem("buffer_load_dwordx4 %s, %s, s%d offen lds" % (v(voff), srd(srdn), soff), "a0")
        dma(SRD_K, vOffH, sT2, L_K, addw=False)
        dma(SRD_K, vOff, sT3, L_K + 1024)
        dma(SRD_K, vOff, sT4, L_K + 5 * 1024)
        dma(SRD_V, vOff, sT3, L_V)
        dma(SRD_V, vOff, sT4, L_V + 4 * 1024)
        dma(SRD_Q, vOff, sT3, L_Q)
        dma(SRD_Q, vOff, sT4, L_Q + 4 * 1024)
        self.srds(["sh", "sk"])
        vCH, vSK = 8, 10
        e("s_lshl_b32 s%d, s%d, 6" % (sT0, sG0))
        e("s_lshl_b32 s%d, s%d, 4" % (sT1, sWAVE))
        e("s_add_u32 s%d, s%d, s%d" % (sT0, sT0, sT1))
        e("v_and_b32 %s, 15, v1" % v(vCH))
        e("v_add_u32 %s, s%d, %s" % (v(vCH), sT0, v(vCH)))
        e("v_lshlrev_b32 %s, 3, %s" % (v(vT), v(vCH)))
        self.vmem("buffer_load_dwordx2 %s, %s, %s, 0 offen" % (v(vSK, 2), v(vT), srd(SRD_SH)), "a0")

        e("s_lshr_b32 s%d, s%d, 1" % (sCHL, sWAVE))
        e("s_and_b32 s%d, s%d, 1" % (sHALF, sWAVE))
        vL16 = 9
        e("v_lshlrev_b32 %s, 4, v1" % v(vL16))
        e("s_lshl_b32 s%d, s2, 1" % sT0)
        e("s_add_u32 s%d, s%d, s%d" % (sT0, sT0, sCHL))
        e("s_lshl_b32 s%d, s%d, 12" % (sT0, sT0))
        e("s_lshl_b32 s%d, s%d, 11" % (sT1, sHALF))
        e("s_add_u32 s%d, s%d, s%d" % (sT0, sT0, sT1))
        e("s_mul_i32 s%d, s%d, 8320" % (sT2, sCHL))
        e("s_add_u32 s%d, s%d, s%d" % (sT2, sT2, sT1))
        e("s_add_u32 m0, s%d, %d" % (sT2, L_TS + 32))
        e("s_nop 0")
        for i in range(2):
            self.vmem("buffer_load_dwordx4 %s, %s, s%d offen offset:%d lds" % (v(vL16), srd(SRD_SK), sT0, 1024 * i), "ts")
        self.srds(["w", "rest"])
        self.decode_bc()
        self.stamp(0)
        if self.stamps:
            e("v_readfirstlane_b32 s%d, v254" % sTS)
            e("s_nop 3")
            e("v_writelane_b32 v30, s%d, 31" % sTS)
        if self.tlbwarm:
            self.c("touch every page that is used later (address translation warm-up)")
            vZ = 59
            e("v_mov_b32 %s, 0" % v(vZ))
            e("s_mov_b64 exec, 1")
            for r in (SRD_SK, SRD_WG, SRD_WD, SRD_OUT):
                e("buffer_load_dword v252, %s, %s, 0 offen" % (v(vZ), srd(r)))
            e("v_mov_b32 %s, 1024" % v(vZ))
            e("buffer_load_dword v252, %s, %s, 0 offen" % (v(vZ), srd(SRD_WU)))
            e("s_mov_b64 exec, 0xff")
            e("v_lshlrev_b32 %s, 21, v1" % v(vZ))
            e("buffer_load_dword v252, %s, %s, 0 offen" % (v(vZ), srd(SRD_WS)))
            e("s_mov_b64 exec, -1")
            self.vm += ["tlb"] * 6
        e("s_lshl_b32 s%d, s2, 2" % sT3)
        e("s_load_dword s%d, s[62:63], s%d" % (sD, sT3))

        vTR, vTRH, vG, vR = 13, 14, 15, 16
        e("v_lshrrev_b32 %s, 4, v1" % v(vG))
        e("v_bfe_u32 %s, v1, 2, 2" % v(vR))
        e("v_lshrrev_b32 %s, 1, %s" % (v(vT), v(vR)))
        e("v_and_b32 %s, 1, %s" % (v(vTR), v(vG)))
        e("v_lshl_or_b32 %s, %s, 1, %s" % (v(vT), v(vTR), v(vT)))
        e("v_xor_b32 %s, s%d, %s" % (v(vT), sWAVE, v(vT)))
        e("v_lshlrev_b32 %s, 5, %s" % (v(vT), v(vT)))
        e("v_lshl_add_u32 %s, %s, 3, %s" % (v(vTR), v(vG), v(vR)))
        e("v_lshl_add_u32 %s, %s, 7, %s" % (v(vTR), v(vTR), v(vT)))
        e("v_and_b32 %s, 3, v1" % v(vT))
        e("v_lshl_add_u32 %s, %s, 3, %s" % (v(vTR), v(vT), v(vTR)))
        e("v_add_u32 %s, %d, %s" % (v(vTR), L_K, v(vTR)))
        e("v_xor_b32 %s, 64, %s" % (v(vTRH), v(vTR)))
        vSKV, vSQ = 17, 18
        e("s_lshl_b32 s%d, s%d, 7" % (sT0, sRB))
        e("v_lshlrev_b32 %s, 12, %s" % (v(vSQ), v(vCH)))
        e("v_lshlrev_b32 %s, 4, %s" % (v(vT), v(vG)))
        e("s_sub_u32 s%d, %d, s%d" % (sT1, WS_KVT + 4080 - 64, sT0))
        e("v_add_u32 %s, s%d, %s" % (v(vSKV), sT1, v(vSQ)))
        e("v_sub_u32 %s, %s, %s" % (v(vSKV), v(vSKV), v(vT)))
        e("s_add_u32 s%d, s%d, %d" % (sT1, sT0, WS_QT))
        e("v_add3_u32 %s, %s, %s, s%d" % (v(vSQ), v(vSQ), v(vT), sT1))
        self.wait_vm("a0")
        e("s_waitcnt lgkmcnt(0)")
        self.lg = []
        e("s_lshl_b32 s%d, s%d, 16" % (sT0, sD))
        e("s_and_b32 s%d, s%d, 0xffff0000" % (sT1, sD))
        e("s_cmp_eq_u32 s%d, 0" % sCHL)
        e("s_cselect_b32 s%d, s%d, s%d" % (sD, sT0, sT1))
        e("s_barrier")
        self.stamp(1)
        if self.wtouch:
            self.w_touch(0, "wt")

        KH = [24, 34]
        KM = [26, 36]
        VV = [40, 44]
        QQ = [48, 52]
        for rho in range(2):
            self.lds("ds_read_b64_tr_b16 %s, %s offset:%d" % (v(KH[rho], 2), v(vTRH), 512 + 4096 * rho), "k%d" % rho)
            self.lds("ds_read_b64_tr_b16 %s, %s offset:%d" % (v(KM[rho], 2), v(vTR), 1024 + 4096 * rho), "k%d" % rho)
            self.lds("ds_read_b64_tr_b16 %s, %s offset:%d" % (v(KM[rho] + 2, 2), v(vTR), 1024 + 512 + 4096 * rho), "k%d" % rho)
            self.lds("ds_read_b64_tr_b16 %s, %s offset:%d" % (v(VV[rho], 2), v(vTR), L_V - L_K + 4096 * rho), "v%d" % rho)
            self.lds("ds_read_b64_tr_b16 %s, %s offset:%d" % (v(VV[rho] + 2, 2), v(vTR), L_V - L_K + 512 + 4096 * rho), "v%d" % rho)
        for rho in range(2):
            self.lds("ds_read_b64_tr_b16 %s, %s offset:%d" % (v(QQ[rho], 2), v(vTR), L_Q - L_K + 4096 * rho), "q")
            self.lds("ds_read_b64_tr_b16 %s, %s offset:%d" % (v(QQ[rho] + 2, 2), v(vTR), L_Q - L_K + 512 + 4096 * rho), "q")
        CA, CB = 21, 22
        e("v_alignbit_b32 %s, %s, %s, 16" % (v(CA), v(vSK), v(vSK)))
        e("v_alignbit_b32 %s, %s, %s, 16" % (v(CB), v(vSK + 1), v(vSK + 1)))
        MM = 56
        KS = 64
        VF = 72
        OUTR = [80, 84]
        for rho in range(2):
            self.wait_lg("v%d" % rho)
            Dw = [KH[rho], KH[rho] + 1, KM[rho], KM[rho] + 1, KM[rho] + 2, KM[rho] + 3]
            for i in range(5):
                e("v_alignbit_b32 %s, %s, %s, 16" % (v(MM + i), v(Dw[i + 1]), v(Dw[i])))
            for t in range(8):
                if t & 1:
                    p0, p1 = Dw[2 + (t >> 1)], Dw[1 + (t >> 1)]
                else:
                    p0, p1 = MM + 1 + (t >> 1), MM + (t >> 1)
                e("v_dot2_f32_bf16 %s, %s, %s, 0" % (v(KS + t), v(p1), v(CB)))
            for t in range(8):
                if t & 1:
                    p0 = Dw[2 + (t >> 1)]
                else:
                    p0 = MM + 1 + (t >> 1)
                e("v_dot2_f32_bf16 %s, %s, %s, %s" % (v(KS + t), v(p0), v(CA), v(KS + t)))
            for t in range(8):
                src = VV[rho] + (t >> 1)
                if t & 1:
                    e("v_and_b32 %s, 0xffff0000, %s" % (v(VF + t), v(src)))
                else:
                    e("v_lshlrev_b32 %s, 16, %s" % (v(VF + t), v(src)))
            for t in range(8):
                e("v_mul_f32 %s, %s, %s" % (v(KS + t), v(KS + t), v(VF + t)))
            for i in range(4):
                e("v_cvt_pk_bf16_f32 %s, %s, %s" % (v(OUTR[rho] + i), v(KS + 7 - 2 * i), v(KS + 6 - 2 * i)))
            self.vmem("buffer_store_dwordx4 %s, %s, %s, 0 offen offset:%d sc1" % (v(OUTR[rho], 4), v(vSKV), srd(SRD_WS), 64 if rho == 0 else 0), "a0st")
        self.wait_lg("q")
        for rho in range(2):
            self.vmem("buffer_store_dwordx4 %s, %s, %s, 0 offen offset:%d sc1" % (v(QQ[rho], 4), v(vSQ), srd(SRD_WS), 64 * rho), "a0st")
        vGO, vZERO = 23, 58
        e("v_mov_b32 %s, 0" % v(vZERO))
        self.vmem("buffer_load_dword %s, %s, %s, 0 offen offset:%d sc1" % (v(vGO), v(vZERO), srd(SRD_DBG), self.go_off), "go")
        self.stamp(2)

    def w_touch(self, half, tag):
        e = self.e
        vP = 62
        e("s_and_b32 s%d, s%d, 3" % (sT0, sBI))
        e("s_mul_i32 s%d, s%d, %d" % (sT0, sT0, 56 * 3584))
        e("s_lshl_b32 s%d, s%d, 8" % (sT1, sBJ))
        e("s_add_u32 s%d, s%d, s%d" % (sT0, sT0, sT1))
        e("s_lshr_b32 s%d, s%d, 1" % (sT1, sWAVE))
        e("s_lshl_b32 s%d, s%d, 7" % (sT1, sT1))
        e("s_add_u32 s%d, s%d, s%d" % (sT0, sT0, sT1))
        if half:
            e("s_add_u32 s%d, s%d, %d" % (sT0, sT0, 224 * 3584))
        e("v_min_u32 %s, 55, v1" % v(vP))
        e("v_mul_u32_u24 %s, 3584, %s" % (v(vP), v(vP)))
        lab, labj = self.newlabel("wt"), self.newlabel("wtj")
        e("s_bitcmp1_b32 s%d, 0" % sWAVE)
        e("s_cbranch_scc1 %s" % lab)
        e("buffer_load_dword v252, %s, %s, s%d offen" % (v(vP), srd(SRD_WG), sT0))
        e("s_branch %s" % labj)
        self.label(lab)
        e("buffer_load_dword v252, %s, %s, s%d offen offset:1024" % (v(vP), srd(SRD_WU), sT0))
        self.label(labj)
        self.vm.append(tag)

    def t_build(self):
        e = self.e
        vZ, vZA, vRA, vPA = 19, 20, 21, 22
        D0 = 100
        e("v_mov_b32 %s, 0" % v(vZ))
        e("s_mul_i32 s%d, s%d, 8320" % (sT2, sCHL))
        e("s_add_u32 s%d, s%d, %d" % (sT2, sT2, L_TS))
        e("v_lshl_add_u32 %s, v1, 2, s%d" % (v(vPA), sT2))
        e("v_mov_b32 %s, s%d" % (v(vZA), sT2))
        e("v_add_u32 %s, %d, %s" % (v(vZA), 32 + 4096, v(vZA)))
        e("v_cmp_gt_u32 vcc, 8, v1")
        e("s_nop 1")
        e("v_cndmask_b32 %s, %s, %s, vcc" % (v(vZA), v(vZA), v(vPA)))
        e("s_mov_b64 exec, 0x1ff")
        e("ds_write_b32 %s, %s" % (v(vZA), v(vZ)))
        e("s_mov_b64 exec, -1")
        e("s_lshl_b32 s%d, s%d, 11" % (sT1, sHALF))
        e("s_add_u32 s%d, s%d, s%d" % (sT1, sT1, sT2))
        e("s_add_u32 s%d, s%d, 32" % (sT1, sT1))
        e("v_lshl_add_u32 %s, v1, 4, s%d" % (v(vRA), sT1))
        self.wait_vm("ts")
        self.wait_lg0()
        e("s_barrier")
        for c in range(2):
            e("ds_read_b128 %s, %s offset:%d" % (v(D0 + 6 * c, 4), v(vRA), 1024 * c))
            e("ds_read_b32 %s, %s offset:%d" % (v(D0 + 6 * c + 4), v(vRA), 1024 * c + 16))
        e("ds_read2_b32 %s, %s offset0:0 offset1:1" % (v(D0 + 12, 2), v(vPA)))
        e("s_mul_i32 s%d, s%d, 4608" % (sT0, sCHL))
        e("s_lshl_b32 s%d, s%d, 8" % (sT1, sHALF))
        e("s_add_u32 s%d, s%d, s%d" % (sT0, sT0, sT1))
        e("s_add_u32 s%d, s%d, %d" % (sT0, sT0, L_X + 4096))
        e("v_lshl_add_u32 %s, v1, 2, s%d" % (v(vZA), sT0))
        e("ds_write_b32 %s, %s" % (v(vZA), v(vZ)))
        self.wait_lg0()
        O = D0 + 16
        for c in range(2):
            for i in range(4):
                e("v_alignbit_b32 %s, %s, %s, 16" % (v(O + 4 * c + i), v(D0 + 6 * c + i + 1), v(D0 + 6 * c + i)))
        e("v_alignbit_b32 %s, %s, %s, 16" % (v(O + 8), v(D0 + 13), v(D0 + 12)))
        for c in range(2):
            e("ds_write_b128 %s, %s offset:%d" % (v(vRA), v(O + 4 * c, 4), 4160 + 1024 * c))
        e("s_mov_b64 exec, 0xff")
        e("ds_write_b32 %s, %s offset:4160" % (v(vPA), v(O + 8)))
        e("s_mov_b64 exec, -1")
        self.wait_lg0()
        e("s_barrier")

    def w_stage_setup(self):
        e = self.e
        vT = 7
        e("v_lshrrev_b32 %s, 2, v1" % v(vT))
        e("v_mul_u32_u24 %s, 3584, %s" % (v(vT), v(vT)))
        e("v_and_b32 %s, 3, v1" % v(vWS))
        e("v_xor_b32 %s, 2, %s" % (v(vWS + 1), v(vWS)))
        e("v_lshl_add_u32 %s, %s, 4, %s" % (v(vWS), v(vWS), v(vT)))
        e("v_lshl_add_u32 %s, %s, 4, %s" % (v(vWS + 1), v(vWS + 1), v(vT)))
        e("v_add_u32 %s, %d, %s" % (v(vWS + 2), 57344 - 2048, v(vWS)))
        e("v_add_u32 %s, %d, %s" % (v(vWS + 3), 57344 - 2048, v(vWS + 1)))

    def w_stage_items(self, rnd, spanel=None, gstart=0, ngroups=7, sgstart=None):
        e = self.e
        items = []
        sp = sWAVE if spanel is None else spanel

        def setup():
            e("s_lshl_b32 s%d, s%d, 8" % (sWB, sBJ))
            e("s_lshl_b32 s%d, s%d, 6" % (sWM, sp))
            e("s_add_u32 s%d, s%d, s%d" % (sWB, sWB, sWM))
            if rnd:
                e("s_add_u32 s%d, s%d, %d" % (sWB, sWB, 14 * rnd * 57344))
            e("s_mul_i32 s%d, s%d, 28672" % (sWM, sp))
            if L_WST:
                e("s_add_u32 s%d, s%d, %d" % (sWM, sWM, L_WST))
            e("s_and_b32 s%d, s%d, 3" % (sWG, sBI))
            e("s_lshl_b32 s%d, s%d, 1" % (sWG, sWG))
            if sgstart is not None:
                e("s_add_u32 s%d, s%d, s%d" % (sWG, sWG, sgstart))
                e("s_cmp_ge_u32 s%d, 7" % sWG)
                e("s_cselect_b32 s%d, 7, 0" % sWX)
                e("s_sub_u32 s%d, s%d, s%d" % (sWG, sWG, sWX))

        def addr():
            e("s_mul_i32 s%d, s%d, %d" % (sWSO, sWG, 2 * 57344))
            e("s_add_u32 s%d, s%d, s%d" % (sWSO, sWSO, sWB))
            e("s_lshl_b32 s%d, s%d, 12" % (sWX, sWG))
            e("s_add_u32 m0, s%d, s%d" % (sWX, sWM))
        for grp in range(ngroups):
            for n in range(4):
                def one(grp=grp, n=n):
                    if grp == 0 and n == 0:
                        setup()
                        addr()
                        e("s_nop 0")
                    elif n == 0:
                        e("s_add_u32 s%d, s%d, 1" % (sWG, sWG))
                        e("s_cmp_eq_u32 s%d, 7" % sWG)
                        e("s_cselect_b32 s%d, 0, s%d" % (sWG, sWG))
                        addr()
                        e("s_nop 0")
                    self.vmem("buffer_load_dwordx4 %s, %s, s%d offen offset:%d lds" % (v(vWS + (n & 1) + 2 * (n >> 1)), srd(SRD_WG if (n & 1) == 0 else SRD_WU), sWSO, 1024 * n), "w%d" % rnd)
                items.append(one)
        return items

    def w_stage_read_setup(self, vB0, vB1):
        e = self.e
        vT, vU = 7, 4
        e("v_bfe_u32 %s, v1, 4, 1" % v(vT))
        e("v_lshrrev_b32 %s, 5, v1" % v(vU))
        e("v_lshlrev_b32 %s, 3, %s" % (v(vU), v(vU)))
        e("v_bfe_u32 %s, v1, 2, 2" % v(vB0))
        e("v_add_u32 %s, %s, %s" % (v(vU), v(vU), v(vB0)))
        e("v_lshlrev_b32 %s, 6, %s" % (v(vU), v(vU)))
        e("v_and_b32 %s, 3, v1" % v(vB0))
        e("v_lshl_add_u32 %s, %s, 3, %s" % (v(vU), v(vB0), v(vU)))
        e("v_mul_u32_u24 %s, 1056, %s" % (v(vT), v(vT)))
        e("s_mul_i32 s%d, s%d, 28672" % (sT0, sWAVE))
        e("v_add3_u32 %s, %s, %s, s%d" % (v(vB0), v(vU), v(vT), sT0))
        e("v_xor_b32 %s, 32, %s" % (v(vB1), v(vB0)))

    def w_stage_read_items(self, rnd, vB0, vB1):
        items = []
        for s in range(14):
            for ft in range(2):
                base = 8 * (14 * rnd + s) + 4 * ft
                for ee in range(2):
                    items.append("ds_read_b64_tr_b16 %s, %s offset:%d" % (a(base + 2 * ee, 2), v(vB0 if ft == 0 else vB1), L_WST + 2048 * s + 256 * ee))
        return items

    def w_stage_read(self, rnd):
        self.c("W staging -> AGPR round %d" % rnd)
        self.wait_vm("w%d" % rnd)
        for line in self.w_stage_read_items(rnd, vWRD, vWRD + 1):
            self.lds(line, "wr")

    def t_read(self):
        e = self.e
        self.c("T fragments -> a112..a239")
        vB, vT, vU = 240, 7, 4
        e("v_and_b32 %s, 15, v1" % v(vT))
        e("v_and_b32 %s, 1, %s" % (v(vU), v(vT)))
        e("v_add_u32 %s, %s, %s" % (v(vT), v(vT), v(vU)))
        e("v_lshrrev_b32 %s, 4, v1" % v(vB))
        e("v_lshl_add_u32 %s, %s, 3, %s" % (v(vT), v(vB), v(vT)))
        e("v_lshlrev_b32 %s, 1, %s" % (v(vT), v(vT)))
        e("v_xor_b32 %s, 1, %s" % (v(vU), v(vU)))
        e("v_mul_u32_u24 %s, 4160, %s" % (v(vU), v(vU)))
        e("s_mul_i32 s%d, s%d, 8320" % (sT0, sCHL))
        e("s_lshl_b32 s%d, s%d, 8" % (sT1, sHALF))
        e("s_add_u32 s%d, s%d, s%d" % (sT0, sT0, sT1))
        e("s_add_u32 s%d, s%d, %d" % (sT0, sT0, L_TS))
        e("v_add3_u32 %s, %s, %s, s%d" % (v(vB), v(vT), v(vU), sT0))
        for i in range(1, 4):
            e("v_add_u32 %s, %d, %s" % (v(vB + i), 1024 * i, v(vB)))
        items = []
        for rr in range(4):
            for q in range(8):
                base = 112 + 4 * (8 * rr + q)
                o = 128 * (q & 1) + 16 * rr
                for hh in range(2):
                    items.append("ds_read2_b32 %s, %s offset0:%d offset1:%d" % (a(base + 2 * hh, 2), v(vB + (q >> 1)), o + 2 * hh, o + 2 * hh + 1))
        return items

    def pre_signal(self):
        e = self.e
        if self.wtouch2:
            self.w_touch(0, "wt")
        self.t_build()
        titems = self.t_read()
        lab0, labj = self.newlabel("p0"), self.newlabel("pj")
        e("s_cmp_eq_u32 s%d, 0" % sWAVE)
        e("s_cbranch_scc1 %s" % lab0)
        save = list(self.vm)
        self.w0_own = self.w_stage_items(0)
        t = list(titems)
        npre = self.npre
        for it in self.w0_own[:npre]:
            it()
            for _ in range(64 // max(npre, 1)):
                e(t.pop(0))
        while t:
            e(t.pop(0))
        self.wait_vm("go")
        self.vm = list(save)
        e("s_branch %s" % labj)
        self.label(lab0)
        for line in titems:
            e(line)
        self.wait_vm("go")
        self.label(labj)

    def window1(self, vL16):
        e = self.e
        lab0, labj = self.newlabel("w0"), self.newlabel("wj")
        e("s_cmp_eq_u32 s%d, 0" % sWAVE)
        e("s_cbranch_scc1 %s" % lab0)
        if self.prefetch:
            vP = 59
            e("s_mul_i32 s%d, s2, 7168" % sT0)
            e("s_sub_u32 s%d, s%d, 1" % (sT1, sWAVE))
            e("s_mul_i32 s%d, s%d, %d" % (sT1, sT1, 19 * 128))
            e("s_add_u32 s%d, s%d, s%d" % (sT0, sT0, sT1))
            e("v_lshl_add_u32 %s, v1, 7, s%d" % (v(vP), sT0))
            e("s_mov_b64 exec, 0x7ffff")
            e("buffer_load_dword v252, %s, %s, 0 offen" % (v(vP), srd(SRD_WG)))
            e("buffer_load_dword v252, %s, %s, 0 offen offset:1024" % (v(vP), srd(SRD_WU)))
            e("buffer_load_dword v252, %s, %s, 0 offen" % (v(vP), srd(SRD_WD)))
            e("s_mov_b64 exec, -1")
        save = list(self.vm)
        for it in self.w0_own[self.npre:]:
            it()
        sPAN, sGST = 72, 73
        e("s_mov_b32 s%d, 0" % sPAN)
        e("s_lshl_b32 s%d, s%d, 1" % (sGST, sWAVE))
        e("s_sub_u32 s%d, s%d, 1" % (sGST, sGST))
        e("s_cmp_eq_u32 s%d, 1" % sWAVE)
        e("s_cselect_b32 s%d, 0, s%d" % (sGST, sGST))
        sh = self.w_stage_items(0, spanel=sPAN, ngroups=3, sgstart=sGST)
        for it in sh[:8]:
            it()
        lab3 = self.newlabel("w3")
        e("s_cmp_eq_u32 s%d, 1" % sWAVE)
        e("s_cbranch_scc0 %s" % lab3)
        for it in sh[8:]:
            it()
        self.label(lab3)
        self.vm = save
        e("s_waitcnt vmcnt(0) lgkmcnt(0)")
        self.stamp(21, wave=1)
        e("s_branch %s" % labj)
        self.label(lab0)
        vA, vTg, vTmp = 21, 22, 23
        e("s_lshr_b32 s%d, s2, 5" % sT0)
        e("s_lshl_b32 s%d, s%d, 8" % (sT0, sT0))
        e("s_add_u32 s%d, s%d, %d" % (sT0, sT0, WS_CNT + 256 * C_S1))
        e("v_mov_b32 %s, s%d" % (v(vA), sT0))
        e("v_mov_b32 %s, 32" % v(vTg))
        if self.smem_poll:
            loop, done = self.newlabel("sp"), self.newlabel("spd")
            e("s_mov_b32 s%d, %d" % (sSPIN, SPIN_LIMIT))
            self.label(loop)
            e("s_load_dword s%d, s[%d:%d], s%d glc" % (sT1, SRD_WS, SRD_WS + 1, sT0))
            e("s_waitcnt lgkmcnt(0)")
            e("s_cmp_ge_u32 s%d, 32" % sT1)
            e("s_cbranch_scc1 %s" % done)
            e("s_sub_u32 s%d, s%d, 1" % (sSPIN, sSPIN))
            e("s_cmp_lg_u32 s%d, 0" % sSPIN)
            e("s_cbranch_scc1 %s" % loop)
            self.label(done)
        else:
            self.spin(vA, vTg, vTmp)
        self.stamp(4)
        e("s_lshl_b32 s%d, s2, 13" % sT0)
        if WS_KVT:
            e("s_add_u32 s%d, s%d, %d" % (sT0, sT0, WS_KVT))
        e("s_mov_b32 m0, %d" % L_X)
        e("s_nop 0")
        for i in range(4):
            e("buffer_load_dwordx4 %s, %s, s%d offen offset:%d sc1 lds" % (v(vL16), srd(SRD_WS), sT0, 1024 * i))
        e("s_add_u32 s%d, s%d, 4096" % (sT0, sT0))
        e("s_mov_b32 m0, %d" % (L_X + 4608))
        e("s_nop 0")
        for i in range(4):
            e("buffer_load_dwordx4 %s, %s, s%d offen offset:%d sc1 lds" % (v(vL16), srd(SRD_WS), sT0, 1024 * i))
        e("s_and_b32 s%d, s2, 7" % sT1)
        e("s_lshl_b32 s%d, s%d, 8" % (sT1, sT1))
        e("s_add_u32 s%d, s%d, %d" % (sT1, sT1, WS_CNT + 256 * C_SL1))
        e("v_mov_b32 %s, s%d" % (v(vA), sT1))
        e("v_add_u32 %s, %d, %s" % (v(vTmp), 256 * (C_FH1 - C_SL1), v(vA)))
        e("v_cmp_gt_u32 vcc, 32, v1")
        e("s_nop 1")
        e("v_cndmask_b32 %s, %s, %s, vcc" % (v(vA), v(vTmp), v(vA)))
        e("s_waitcnt vmcnt(0) lgkmcnt(0)")
        self.stamp(22)
        self.label(labj)
        self.vm = ["w0"]
        self.lg = []
        e("s_barrier")

    def phase_a1(self):
        e = self.e
        self.c("==== A1 ====")
        ACC = 32
        XF = [64, 96]
        QR, KVR, AR, BR = 128, 136, 144, 160
        LN, KD, QF = 176, 192, 208
        Y = 224
        vT, vU = 7, 4
        vL16 = 9
        e("v_lshlrev_b32 %s, 4, v1" % v(vL16))
        e("s_lshl_b32 s%d, s2, 1" % sT0)
        e("s_add_u32 s%d, s%d, s%d" % (sT0, sT0, sCHL))
        e("s_lshl_b32 s%d, s%d, 12" % (sT0, sT0))
        vTL = 5
        e("v_and_b32 %s, 15, v1" % v(vT))
        e("v_lshrrev_b32 %s, 4, v1" % v(vU))
        e("v_lshlrev_b32 %s, 2, %s" % (v(vU), v(vU)))
        e("v_lshl_add_u32 %s, %s, 4, %s" % (v(vTL), v(vT), v(vU)))
        e("s_lshl_b32 s%d, s%d, 10" % (sT1, sHALF))
        e("v_add_u32 %s, s%d, %s" % (v(vTL), sT1, v(vTL)))
        vQA, vSA = 6, 8
        e("s_add_u32 s%d, s%d, %d" % (sT2, sT0, WS_QT))
        e("v_lshl_add_u32 %s, %s, 1, s%d" % (v(vQA), v(vTL), sT2))
        e("v_lshlrev_b32 %s, 2, %s" % (v(vSA), v(vTL)))
        e("s_mov_b32 s%d, %d" % (sT4, WS_ST1))
        e("s_mov_b32 s%d, %d" % (sT5, WS_ST1 + 8192))
        vXB, vKVA, vEW, vER = 10, 11, 12, 13
        e("v_and_b32 %s, 15, v1" % v(vT))
        e("v_lshrrev_b32 %s, 4, v1" % v(vU))
        e("v_lshlrev_b32 %s, 4, %s" % (v(vU), v(vU)))
        e("v_lshlrev_b32 %s, 5, %s" % (v(vT), v(vT)))
        e("v_sub_u32 %s, %s, %s" % (v(vXB), v(vU), v(vT)))
        e("s_mul_i32 s%d, s%d, 4608" % (sT0, sCHL))
        e("s_lshl_b32 s%d, s%d, 8" % (sT1, sHALF))
        e("s_add_u32 s%d, s%d, s%d" % (sT1, sT1, sT0))
        e("s_add_u32 s%d, s%d, %d" % (sT1, sT1, L_X + 480))
        e("v_add_u32 %s, s%d, %s" % (v(vXB), sT1, v(vXB)))
        e("s_add_u32 s%d, s%d, %d" % (sT1, sT0, L_X + 4088 - 1536))
        e("v_lshlrev_b32 %s, 1, %s" % (v(vT), v(vTL)))
        e("v_sub_u32 %s, s%d, %s" % (v(vKVA), sT1, v(vT)))
        e("s_lshl_b32 s%d, s%d, 12" % (sT0, sWAVE))
        e("s_add_u32 s%d, s%d, %d" % (sT1, sT0, L_TS))
        e("v_add_u32 %s, s%d, %s" % (v(vEW), sT1, v(vL16)))
        e("s_xor_b32 s%d, s%d, 0x1000" % (sT0, sT0))
        e("s_add_u32 s%d, s%d, %d" % (sT1, sT0, L_TS))
        e("v_add_u32 %s, s%d, %s" % (v(vER), sT1, v(vL16)))
        vHO = 14
        vRow = 15
        e("v_lshrrev_b32 %s, 4, v1" % v(vRow))
        e("v_and_b32 %s, 15, v1" % v(vT))
        e("v_lshrrev_b32 %s, 1, %s" % (v(vU), v(vT)))
        e("v_and_b32 %s, 1, %s" % (v(vHO), v(vRow)))
        e("v_lshl_add_u32 %s, %s, 3, %s" % (v(vU), v(vHO), v(vU)))
        e("v_mul_u32_u24 %s, 28672, %s" % (v(vHO), v(vU)))
        e("v_and_b32 %s, 1, %s" % (v(vT), v(vT)))
        e("v_lshl_add_u32 %s, %s, 5, %s" % (v(vHO), v(vT), v(vHO)))
        e("v_lshrrev_b32 %s, 1, %s" % (v(vRow), v(vRow)))
        e("v_lshl_add_u32 %s, %s, 4, %s" % (v(vHO), v(vRow), v(vHO)))
        e("s_lshl_b32 s%d, s2, 1" % sT0)
        e("s_add_u32 s%d, s%d, s%d" % (sT0, sT0, sCHL))
        e("s_lshl_b32 s%d, s%d, 6" % (sT0, sT0))
        e("s_mul_i32 s%d, s%d, %d" % (sT1, sHALF, 32 * 28672))
        e("s_add_u32 s%d, s%d, s%d" % (sT0, sT0, sT1))
        e("s_add_u32 s%d, s%d, %d" % (sT6, sT0, WS_HB))
        e("s_add_u32 s%d, s%d, %d" % (sT7, sT6, 16 * 28672))
        vABR = 16
        e("v_lshl_add_u32 %s, %s, 2, 0" % (v(vABR), v(vTL)))
        e("v_add_u32 %s, %d, %s" % (v(vABR), L_EX, v(vABR)))
        self.window1(vL16)
        self.stamp(5)

        def xread(rr):
            for m in range(8):
                self.lds("ds_read_b128 %s, %s offset:%d" % (v(XF[rr & 1] + 4 * m, 4), v(vXB), 512 * (7 - m) + 64 * rr), "x%d" % rr)

        F = [[], [], [], []]

        def pair(lst, items):
            for i in range(0, len(items), 2):
                lst.append(items[i:i + 2])
        wr = [("lds", x, "wr") for x in self.w_stage_read_items(0, vWRD, vWRD + 1)]
        pair(F[0], wr)
        w1 = self.w_stage_items(1)
        NW1 = self.nw1
        self.w1_rest = w1[NW1:]
        def stat_dma(i):
            if i == 0:
                e("s_lshl_b32 s%d, s%d, 12" % (sT4, sWAVE))
                e("s_add_u32 m0, s%d, %d" % (sT4, L_EX))
                e("s_add_u32 s%d, s%d, %d" % (sT4, sT4, WS_ST1))
            self.vmem("buffer_load_dwordx4 %s, %s, s%d offen offset:%d sc1 lds" % (v(vL16), srd(SRD_WS), sT4, 1024 * i), "stat")
        kvq = []
        for cc in range(4):
            kvq.append([("lds", "ds_read_b64 %s, %s offset:%d" % (v(KVR + 2 * cc, 2), v(vKVA), 512 * (3 - cc)), "kv"),
                        ("vm", "buffer_load_dwordx2 %s, %s, %s, 0 offen offset:%d sc1" % (v(QR + 2 * cc, 2), v(vQA), srd(SRD_WS), 512 * cc), "q")])
        abl = []
        for cc in range(4):
            abl.append([("lds", "ds_read_b128 %s, %s offset:%d" % (v(AR + 4 * cc, 4), v(vABR), 1024 * cc), "ab"),
                        ("lds", "ds_read_b128 %s, %s offset:%d" % (v(BR + 4 * cc, 4), v(vABR), 8192 + 1024 * cc), "ab")])
        it = []
        for cc in range(4):
            for i in range(4):
                src = KVR + 2 * cc + (1 - (i >> 1))
                if i & 1:
                    it.append(("v", "v_lshlrev_b32 %s, 16, %s" % (v(KD + 4 * cc + i), v(src))))
                else:
                    it.append(("v", "v_and_b32 %s, 0xffff0000, %s" % (v(KD + 4 * cc + i), v(src))))
        unp = [[("waitlg", "kv"), it[0]]] + [[x] for x in it[1:]]
        km = [[("v", "v_mul_f32 %s, s%d, %s" % (v(KD + x), sD, v(KD + x)))] for x in range(16)]
        qf = []
        for cc in range(4):
            for i in range(4):
                src = QR + 2 * cc + (i >> 1)
                if i & 1:
                    qf.append(("v", "v_and_b32 %s, 0xffff0000, %s" % (v(QF + 4 * cc + i), v(src))))
                else:
                    qf.append(("v", "v_lshlrev_b32 %s, 16, %s" % (v(QF + 4 * cc + i), v(src))))
        qf = [[("waitvm", "q"), qf[0]]] + [[x] for x in qf[1:]]
        ln = [("v", "v_fma_f32 %s, %s, %s, %s" % (v(LN + x), v(QF + x), v(AR + x), v(BR + x))) for x in range(16)]
        ln = [[("waitlg", "ab"), ln[0]]] + [[x] for x in ln[1:]]
        plan = {1: (28, 8, kvq + unp[:16]), 2: (28, 8, km + qf[:4]), 3: (36, 12, abl + qf[4:] + ln)}
        k = 0
        for rnd_ in (1, 2, 3):
            n, nw, items = plan[rnd_]
            items = list(items)
            ent = [[] for _ in range(n)]
            first = 4 if rnd_ == 1 else (1 if rnd_ == 2 else 0)
            wpos = [first + (j * (n - first - 1)) // nw for j in range(nw)]
            if rnd_ == self.stat_round:
                ent[0].append(("fn", lambda: [stat_dma(i) for i in range(4)]))
            for j in wpos:
                if k == 0:
                    ent[j].append(("waitlg", "wr"))
                ent[j].append(("fn", w1[k]))
                k += 1
            free = [j for j in range(n) if not ent[j]]
            extra = len(items) - len(free)
            slots = sorted(free + wpos[len(wpos) - max(extra, 0):]) if extra > 0 else free
            assert len(items) <= len(slots), (rnd_, len(items), len(slots))
            for j, itm in zip(slots, items):
                ent[j] += itm
            F[rnd_] = ent
        assert k == NW1

        def run(entry):
            for it in entry:
                if it[0] == "v":
                    e(it[1])
                elif it[0] == "lds":
                    self.lds(it[1], it[2])
                elif it[0] == "vm":
                    self.vmem(it[1], it[2])
                elif it[0] == "fn":
                    it[1]()
                elif it[0] == "waitvm":
                    self.wait_vm(it[1])
                elif it[0] == "waitlg":
                    self.wait_lg(it[1])

        xread(0)
        for rr in range(4):
            if rr == self.stat_round - 1:
                lab = self.newlabel("sl")
                e("s_cmp_eq_u32 s%d, 0" % sWAVE)
                e("s_cbranch_scc0 %s" % lab)
                e("buffer_load_dword v23, v21, %s, 0 offen sc1" % srd(SRD_WS))
                self.label(lab)
                self.vm = ["sl@0"]
            if rr == self.stat_round:
                self.stamp(26)
                self.wait_vm("sl@0")
                loop, done = self.newlabel("sll"), self.newlabel("sld")
                e("s_cmp_eq_u32 s%d, 0" % sWAVE)
                e("s_cbranch_scc0 %s" % done)
                e("s_mov_b32 s%d, %d" % (sSPIN, SPIN_LIMIT))
                self.label(loop)
                e("v_cmp_lt_u32 vcc, v23, v22")
                e("s_nop 4")
                e("s_cbranch_vccz %s" % done)
                e("buffer_load_dword v23, v21, %s, 0 offen sc1" % srd(SRD_WS))
                e("s_waitcnt vmcnt(0)")
                e("s_sub_u32 s%d, s%d, 1" % (sSPIN, sSPIN))
                e("s_cmp_lg_u32 s%d, 0" % sSPIN)
                e("s_cbranch_scc1 %s" % loop)
                self.label(done)
                e("s_barrier")
            if rr == self.stat_round + 1:
                self.stamp(27)
                self.wait_vm("stat")
                e("s_barrier")
            if rr:
                self.stamp(22 + rr)
            self.wait_lg("x%d" % rr)
            cnt = 0
            fl = list(F[rr])
            for q in range(8):
                for c in range(q, 8):
                    m = c - q
                    srcc = "0" if (rr == 0 and q == 0) else v(ACC + 4 * c, 4)
                    e("v_mfma_f32_16x16x32_bf16 %s, %s, %s, %s" % (v(ACC + 4 * c, 4), a(112 + 4 * (8 * rr + q), 4), v(XF[rr & 1] + 4 * m, 4), srcc))
                    cnt += 1
                    if rr < 3 and cnt <= 8:
                        m2 = cnt - 1
                        self.lds("ds_read_b128 %s, %s offset:%d" % (v(XF[(rr + 1) & 1] + 4 * m2, 4), v(vXB), 512 * (7 - m2) + 64 * (rr + 1)), "x%d" % (rr + 1))
                    elif fl:
                        run(fl.pop(0))
            for entry in fl:
                run(entry)
        self.stamp(6)
        e("s_nop 7")
        lab1, lab2 = self.newlabel("h1"), self.newlabel("hj")
        TMP = XF[0]
        e("s_cmp_eq_u32 s%d, 0" % sHALF)
        e("s_cbranch_scc0 %s" % lab1)
        for cc in range(4):
            e("ds_write_b128 %s, %s offset:%d" % (v(vEW), v(ACC + 16 + 4 * cc, 4), 1024 * cc))
        for x in range(16):
            e("v_add_f32 %s, %s, %s" % (v(Y + x), v(ACC + x), v(KD + x)))
        e("s_branch %s" % lab2)
        self.label(lab1)
        for cc in range(4):
            e("ds_write_b128 %s, %s offset:%d" % (v(vEW), v(ACC + 4 * cc, 4), 1024 * cc))
        for x in range(16):
            e("v_add_f32 %s, %s, %s" % (v(Y + x), v(ACC + 16 + x), v(KD + x)))
        self.label(lab2)
        e("s_waitcnt lgkmcnt(0)")
        self.lg = []
        e("s_barrier")
        for cc in range(4):
            self.lds("ds_read_b128 %s, %s offset:%d" % (v(TMP + 4 * cc, 4), v(vER), 1024 * cc), "ex%d" % cc)
        P = XF[0] + 16
        for cc in range(4):
            self.wait_lg("ex%d" % cc)
            for i in range(4):
                x = 4 * cc + i
                e("v_add_f32 %s, %s, %s" % (v(Y + x), v(Y + x), v(TMP + x)))
            for i in range(4):
                x = 4 * cc + i
                e("v_fma_f32 %s, %s, %s, %s" % (v(Y + x), v(LN + x), v(Y + x), v(QF + x)))
            e("v_cvt_pk_bf16_f32 %s, %s, %s" % (v(P + 2 * cc), v(Y + 4 * cc), v(Y + 4 * cc + 1)))
            e("v_cvt_pk_bf16_f32 %s, %s, %s" % (v(P + 2 * cc + 1), v(Y + 4 * cc + 2), v(Y + 4 * cc + 3)))
            if cc & 1:
                b = P + 2 * (cc - 1)
                e("s_nop 1")
                e("v_permlane16_swap_b32 %s, %s" % (v(b), v(b + 2)))
                e("v_permlane16_swap_b32 %s, %s" % (v(b + 1), v(b + 3)))
                self.vmem("buffer_store_dwordx4 %s, %s, %s, s%d offen sc1" % (v(b, 4), v(vHO), srd(SRD_WS), sT6 if cc == 1 else sT7), "hst")
        self.stamp(7)

    def helper(self):
        e = self.e
        self.label("L_helper")
        self.in_helper = True
        self.vm = []
        self.lg = []
        self.c("==== helper ====")
        sH = sRB
        e("s_sub_u32 s%d, s2, 224" % sH)
        e("s_waitcnt lgkmcnt(0)")
        self.srds(["q", "rest"])
        if self.stamps:
            e("v_mov_b32 v93, 0")
        vT, vU, vZ = 7, 4, 5
        e("v_mov_b32 %s, 0" % v(vZ))
        lab = self.newlabel("hz0")
        e("s_cmp_eq_u32 s%d, 0" % sH)
        e("s_cbranch_scc0 %s" % lab)
        e("s_cmp_eq_u32 s%d, 0" % sWAVE)
        e("s_cbranch_scc0 %s" % lab)
        e("v_lshlrev_b32 %s, 8, v1" % v(vT))
        e("v_add_u32 %s, %d, %s" % (v(vT), WS_CNT, v(vT)))
        e("s_mov_b32 exec_hi, 0")
        e("buffer_store_dword %s, %s, %s, 0 offen sc1" % (v(vZ), v(vT), srd(SRD_WS)))
        e("s_mov_b64 exec, -1")
        self.label(lab)
        FR = 32
        vQ = 6
        e("s_lshl_b32 s%d, s%d, 6" % (sT0, sH))
        e("s_lshl_b32 s%d, s%d, 4" % (sT1, sWAVE))
        e("s_add_u32 s%d, s%d, s%d" % (sT0, sT0, sT1))
        e("v_and_b32 %s, 15, v1" % v(vT))
        e("v_add_u32 %s, s%d, %s" % (v(8), sT0, v(vT)))
        e("v_mul_u32_u24 %s, 896, %s" % (v(vQ), v(8)))
        e("v_lshrrev_b32 %s, 4, v1" % v(vU))
        e("v_lshl_add_u32 %s, %s, 4, %s" % (v(vQ), v(vU), v(vQ)))
        for s in range(14):
            self.vmem("buffer_load_dwordx4 %s, %s, %s, 0 offen offset:%d" % (v(FR + 4 * s, 4), v(vQ), srd(SRD_Q), 64 * s), "q")
        lab = self.newlabel("hz")
        e("s_cmp_eq_u32 s%d, 0" % sWAVE)
        e("s_cbranch_scc0 %s" % lab)
        e("s_lshl_b32 s%d, s%d, 8" % (sT0, sH))
        e("s_add_u32 s%d, s%d, %d" % (sT0, sT0, WS_ST2))
        e("v_lshl_add_u32 %s, v1, 2, s%d" % (v(vT), sT0))
        e("buffer_store_dword %s, %s, %s, 0 offen sc1" % (v(vZ), v(vT), srd(SRD_WS)))
        self.label(lab)
        lab = self.newlabel("hc")
        e("s_cmp_eq_u32 s%d, 0" % sH)
        e("s_cbranch_scc0 %s" % lab)
        e("s_cmp_eq_u32 s%d, 0" % sWAVE)
        e("s_cbranch_scc0 %s" % lab)
        e("s_waitcnt vmcnt(15)")
        e("v_mov_b32 %s, 1" % v(vU))
        e("s_mov_b64 exec, 1")
        e("buffer_store_dword %s, %s, %s, 0 offen offset:%d sc1" % (v(vU), v(vZ), srd(SRD_DBG), self.go_off))
        e("s_mov_b64 exec, -1")
        self.label(lab)
        ONES = 16
        for i in range(4):
            e("v_mov_b32 %s, 0x3f803f80" % v(ONES + i))
        self.wait_vm("q")
        GR, SM = 20, 24
        self.stats_mfma(lambda s: FR + 4 * s, ONES, GR, SM, None)
        A_, B_ = 28, 29
        self.stats_finish(GR, SM, A_, B_, None)
        e("v_lshlrev_b32 %s, 2, %s" % (v(vT), v(8)))
        e("s_mov_b32 s%d, %d" % (sT4, WS_ST1))
        e("s_mov_b32 s%d, %d" % (sT5, WS_ST1 + 8192))
        e("s_mov_b32 exec_lo, 0x00f0000f")
        e("s_mov_b32 exec_hi, 0xf0000f00")
        self.vmem("buffer_store_dword %s, %s, %s, s%d offen sc1" % (v(A_), v(vT), srd(SRD_WS), sT4), "st")
        self.vmem("buffer_store_dword %s, %s, %s, s%d offen sc1" % (v(B_), v(vT), srd(SRD_WS), sT5), "st")
        e("s_mov_b64 exec, -1")
        vGO = 30
        loop, done = self.newlabel("go"), self.newlabel("god")
        e("s_mov_b32 s%d, %d" % (sSPIN, SPIN_LIMIT))
        self.label(loop)
        e("buffer_load_dword %s, %s, %s, 0 offen offset:%d sc1" % (v(vGO), v(vZ), srd(SRD_DBG), self.go_off))
        e("s_waitcnt vmcnt(0)")
        self.vm = []
        e("v_cmp_eq_u32 vcc, 0, %s" % v(vGO))
        e("s_nop 4")
        e("s_cbranch_vccz %s" % done)
        e("s_sub_u32 s%d, s%d, 1" % (sSPIN, sSPIN))
        e("s_cmp_lg_u32 s%d, 0" % sSPIN)
        e("s_cbranch_scc1 %s" % loop)
        self.label(done)
        e("s_barrier")
        e("v_lshlrev_b32 %s, 8, v1" % v(vT))
        e("v_add_u32 %s, %d, %s" % (v(vT), WS_CNT + 256 * C_SL1, v(vT)))
        e("v_mov_b32 %s, 1" % v(vU))
        self.signal(vT, vU, 8)
        self.stamp(3)
        if self.stop in ("a0", "a1"):
            self.wait_all()
            e("s_endpgm")
            return
        MK = 40
        for i in range(4):
            e("v_mov_b32 %s, -1" % v(MK + i))
        e("v_lshlrev_b32 v9, 4, v1")
        e("s_mul_i32 s%d, s%d, 57344" % (sT0, sH))
        e("s_mul_i32 s%d, s%d, 14336" % (sT1, sWAVE))
        e("s_add_u32 s%d, s%d, s%d" % (sT0, sT0, sT1))
        e("s_add_u32 s%d, s%d, %d" % (sT0, sT0, WS_HB))
        for grp in range(4):
            for i in range(4 if grp < 3 else 2):
                e("buffer_store_dwordx4 %s, v9, %s, s%d offen offset:%d sc1" % (v(MK, 4), srd(SRD_WS), sT0, 1024 * i))
            if grp != 3:
                e("s_add_u32 s%d, s%d, 4096" % (sT0, sT0))
        e("s_waitcnt vmcnt(0)")
        e("s_barrier")
        e("v_lshlrev_b32 %s, 8, v1" % v(vT))
        e("v_add_u32 %s, %d, %s" % (v(vT), WS_CNT + 256 * C_FH1, v(vT)))
        e("v_mov_b32 %s, 1" % v(vU))
        self.signal(vT, vU, 8)
        e("s_mul_i32 s%d, s%d, 229376" % (sT0, sH))
        e("s_mul_i32 s%d, s%d, 57344" % (sT1, sWAVE))
        e("s_add_u32 s%d, s%d, s%d" % (sT0, sT0, sT1))
        e("s_add_u32 s%d, s%d, %d" % (sT0, sT0, WS_HF))
        for grp in range(14):
            for i in range(4):
                e("buffer_store_dwordx4 %s, v9, %s, s%d offen offset:%d sc1" % (v(MK, 4), srd(SRD_WS), sT0, 1024 * i))
            if grp != 13:
                e("s_add_u32 s%d, s%d, 4096" % (sT0, sT0))
                e("s_waitcnt vmcnt(%d)" % self.fill_depth)
        e("s_waitcnt vmcnt(0)")
        e("s_barrier")
        e("v_lshlrev_b32 %s, 8, v1" % v(vT))
        e("v_add_u32 %s, %d, %s" % (v(vT), WS_CNT + 256 * C_FH, v(vT)))
        e("v_mov_b32 %s, 1" % v(vU))
        self.signal(vT, vU, 8)
        self.stamp(4)
        e("s_and_b32 s%d, s2, 7" % sT0)
        e("s_lshl_b32 s%d, s%d, 8" % (sT0, sT0))
        e("s_add_u32 s%d, s%d, %d" % (sT0, sT0, WS_CNT + 256 * C_FH1))
        e("v_mov_b32 %s, s%d" % (v(vT), sT0))
        e("v_mov_b32 %s, 32" % v(vU))
        self.poll(vT, vU, vGO)
        self.stamp(8)
        e("s_lshr_b32 s%d, s%d, 1" % (sT0, sH))
        e("s_lshl_b32 s%d, s%d, 2" % (sT0, sT0))
        e("s_and_b32 s%d, s%d, 1" % (sT1, sH))
        e("s_add_u32 s%d, s%d, s%d" % (sT0, sT0, sT1))
        sTB = 51
        e("s_mov_b32 s%d, s%d" % (sTB, sT0))
        vL16, vCK = 9, 92
        e("v_lshlrev_b32 %s, 4, v1" % v(vL16))
        e("s_mul_i32 s%d, s%d, 7168" % (sT3, sWAVE))
        e("v_add_u32 %s, s%d, %s" % (v(vCK), sT3, v(vL16)))
        vA, vPX = 10, 14
        e("v_lshrrev_b32 %s, 4, v1" % v(vT))
        e("v_bfe_u32 %s, v1, 2, 2" % v(vU))
        e("v_lshl_add_u32 %s, %s, 3, %s" % (v(vT), v(vT), v(vU)))
        e("v_lshlrev_b32 %s, 6, %s" % (v(vT), v(vT)))
        e("v_and_b32 %s, 3, v1" % v(vU))
        e("v_lshl_add_u32 %s, %s, 3, %s" % (v(vA), v(vU), v(vT)))
        e("s_lshr_b32 s%d, s%d, 1" % (sT4, sWAVE))
        e("s_mul_i32 s%d, s%d, %d" % (sT4, sT4, 7 * 2048))
        e("s_and_b32 s%d, s%d, 1" % (sT5, sWAVE))
        e("s_lshl_b32 s%d, s%d, 5" % (sT5, sT5))
        e("s_add_u32 s%d, s%d, s%d" % (sT4, sT4, sT5))
        e("v_add_u32 %s, s%d, %s" % (v(vA), sT4, v(vA)))
        e("s_lshl_b32 s%d, s%d, 9" % (sT4, sWAVE))
        e("s_add_u32 s%d, s%d, 57344" % (sT4, sT4))
        e("v_lshl_add_u32 %s, v1, 3, s%d" % (v(vPX), sT4))
        vRW = 15
        e("s_lshl_b32 s%d, s%d, 5" % (sT4, sT0))
        e("s_and_b32 s%d, s%d, 1" % (sT5, sWAVE))
        e("s_lshl_b32 s%d, s%d, 4" % (sT5, sT5))
        e("s_add_u32 s%d, s%d, s%d" % (sT4, sT4, sT5))
        e("s_lshl_b32 s%d, s%d, 2" % (sT4, sT4))
        e("s_add_u32 s%d, s%d, %d" % (sT4, sT4, WS_ST2))
        e("v_and_b32 %s, 15, v1" % v(vT))
        e("v_lshl_add_u32 %s, %s, 2, s%d" % (v(vRW), v(vT), sT4))
        PK = 28
        CKR = 64
        for blk in range(2):
            self.hb_refetch(sTB, 2 * blk, blk, vL16)
            e("s_waitcnt vmcnt(0)")
            for ln in self.mark_reads(7, vCK, 28672 * blk, CKR, None):
                e(ln)
            e("s_waitcnt lgkmcnt(0)")
            for ln in self.mark_fold(7, CKR):
                e(ln)
            self.mark_branch(7, vCK, 28672 * blk, CKR, lambda blk=blk: self.hb_refetch(sTB, 2 * blk, blk, vL16))
            e("s_barrier")
            for s_ in range(7):
                for ee in range(2):
                    self.lds("ds_read_b64_tr_b16 %s, %s offset:%d" % (v(FR + 4 * s_ + 2 * ee, 2), v(vA), 28672 * blk + 2048 * s_ + 256 * ee), "f%d" % s_)
            self.stats_mfma(lambda s_: FR + 4 * s_, ONES, GR, SM, lambda s_: self.wait_lg("f%d" % s_), n=7)
            self.stats_diag(GR, 11)
            e("v_mov_b32 %s, %s" % (v(12), v(SM)))
            e("v_mov_b32 v60, v11")
            e("v_mov_b32 v61, v12")
            self.lds("ds_write_b64 %s, v[60:61] offset:%d" % (v(vPX), 2048 * blk), "px")
            self.wait_lg0()
            e("s_barrier")
            e("v_xor_b32 %s, 1024, %s" % (v(13), v(vPX)))
            self.lds("ds_read_b64 v[62:63], %s offset:%d" % (v(13), 2048 * blk), "px")
            self.wait_lg0()
            e("v_add_f32 v11, v60, v62")
            e("v_add_f32 %s, v61, v63" % v(SM))
            self.stats_finish(None, SM, None, None, PK)
            lab = self.newlabel("hs")
            e("s_cmp_lt_u32 s%d, 2" % sWAVE)
            e("s_cbranch_scc0 %s" % lab)
            e("s_mov_b32 exec_lo, 0x00f0000f")
            e("s_mov_b32 exec_hi, 0xf0000f00")
            e("buffer_store_dword %s, %s, %s, 0 offen offset:%d sc1" % (v(PK), v(vRW), srd(SRD_WS), 256 * blk))
            e("s_mov_b64 exec, -1")
            self.label(lab)
        self.stamp(9)
        lab = self.newlabel("clr")
        e("s_cmp_eq_u32 s%d, 0" % sH)
        e("s_cbranch_scc0 %s" % lab)
        e("s_cmp_eq_u32 s%d, 0" % sWAVE)
        e("s_cbranch_scc0 %s" % lab)
        e("v_mov_b32 %s, 0" % v(vZ))
        e("s_mov_b64 exec, 1")
        e("buffer_store_dword %s, %s, %s, 0 offen offset:%d sc1" % (v(vZ), v(vZ), srd(SRD_DBG), self.go_off))
        e("s_mov_b64 exec, -1")
        self.label(lab)
        self.stamp_dump()
        self.wait_all()
        e("s_endpgm")

    def stats_mfma(self, frag, ONES, GR, SM, pre, n=14):
        e = self.e
        for s in range(n):
            if pre:
                pre(s)
            f = frag(s)
            e("v_mfma_f32_16x16x32_bf16 %s, %s, %s, %s" % (v(GR, 4), v(f, 4), v(f, 4), "0" if s == 0 else v(GR, 4)))
            e("v_mfma_f32_16x16x32_bf16 %s, %s, %s, %s" % (v(SM, 4), v(ONES, 4), v(f, 4), "0" if s == 0 else v(SM, 4)))
        e("s_nop 7")

    def stats_diag(self, GR, t0):
        e = self.e
        e("s_mov_b32 s%d, 0x22222222" % sT6)
        e("s_mov_b32 s%d, 0x22222222" % sT7)
        e("v_cndmask_b32 %s, %s, %s, s[%d:%d]" % (v(t0), v(GR), v(GR + 1), sT6, sT7))
        e("s_mov_b32 s%d, 0x44444444" % sT6)
        e("s_mov_b32 s%d, 0x44444444" % sT7)
        e("v_cndmask_b32 %s, %s, %s, s[%d:%d]" % (v(t0), v(t0), v(GR + 2), sT6, sT7))
        e("s_mov_b32 s%d, 0x88888888" % sT6)
        e("s_mov_b32 s%d, 0x88888888" % sT7)
        e("v_cndmask_b32 %s, %s, %s, s[%d:%d]" % (v(t0), v(t0), v(GR + 3), sT6, sT7))

    def stats_finish(self, GR, SM, A_, B_, PK):
        e = self.e
        t0, t1, t2 = 11, 12, 13
        if GR is not None:
            self.stats_diag(GR, t0)
        e("s_mov_b32 s%d, 0x3b124925" % sT6)
        e("v_mul_f32 %s, s%d, %s" % (v(t1), sT6, v(SM)))
        e("v_mul_f32 %s, s%d, %s" % (v(t0), sT6, v(t0)))
        e("v_fma_f32 %s, -%s, %s, %s" % (v(t0), v(t1), v(t1), v(t0)))
        e("v_max_f32 %s, 0, %s" % (v(t0), v(t0)))
        e("v_cvt_pk_bf16_f32 %s, %s, %s" % (v(t0), v(t0), v(t1)))
        e("v_and_b32 %s, 0xffff0000, %s" % (v(t1), v(t0)))
        e("v_lshlrev_b32 %s, 16, %s" % (v(t0), v(t0)))
        e("v_add_f32 %s, 0x3727c5ac, %s" % (v(t0), v(t0)))
        e("v_cvt_pk_bf16_f32 %s, %s, %s" % (v(t0), v(t0), v(t0)))
        e("v_lshlrev_b32 %s, 16, %s" % (v(t0), v(t0)))
        e("v_sqrt_f32 %s, %s" % (v(t0), v(t0)))
        e("s_nop 0")
        e("v_cvt_pk_bf16_f32 %s, %s, %s" % (v(t0), v(t0), v(t0)))
        if PK is not None:
            e("v_lshrrev_b32 %s, 16, %s" % (v(t2), v(t1)))
            e("v_and_b32 %s, 0xffff0000, %s" % (v(t0), v(t0)))
            e("v_or_b32 %s, %s, %s" % (v(PK), v(t0), v(t2)))
        else:
            e("v_lshlrev_b32 %s, 16, %s" % (v(t0), v(t0)))
            e("v_rcp_f32 %s, %s" % (v(A_), v(t0)))
            e("s_nop 0")
            e("v_mul_f32 %s, -%s, %s" % (v(B_), v(t1), v(A_)))

    def decode_bc(self):
        e = self.e
        e("s_and_b32 s%d, s2, 7" % sT0)
        e("s_lshr_b32 s%d, s2, 3" % sT1)
        e("s_mul_i32 s%d, s%d, 37" % (sT2, sT1))
        e("s_lshr_b32 s%d, s%d, 8" % (sT2, sT2))
        e("s_mul_i32 s%d, s%d, 7" % (sT3, sT2))
        e("s_sub_u32 s%d, s%d, s%d" % (sT3, sT1, sT3))
        e("s_lshr_b32 s%d, s%d, 1" % (sT4, sT0))
        e("s_lshl_b32 s%d, s%d, 2" % (sT4, sT4))
        e("s_add_u32 s%d, s%d, s%d" % (sBI, sT4, sT2))
        e("s_and_b32 s%d, s%d, 1" % (sT4, sT0))
        e("s_mul_i32 s%d, s%d, 7" % (sT4, sT4))
        e("s_add_u32 s%d, s%d, s%d" % (sBJ, sT4, sT3))
        e("s_lshl_b32 s%d, s%d, 2" % (sT4, sT0))
        e("s_add_u32 s%d, s%d, s%d" % (sT4, sT4, sT2))
        e("s_lshr_b32 s%d, s%d, 1" % (sCI, sT4))
        e("s_and_b32 s%d, s%d, 1" % (sCS, sT4))
        e("s_mov_b32 s%d, s%d" % (sCJ, sT3))

    def main_path(self):
        e = self.e
        self.phase_a0()
        self.w_stage_setup()
        self.w_stage_read_setup(vWRD, vWRD + 1)
        self.pre_signal()
        vGO, vZERO = 23, 58
        loop, done = self.newlabel("go"), self.newlabel("god")
        e("s_mov_b32 s%d, %d" % (sSPIN, SPIN_LIMIT))
        self.label(loop)
        e("v_cmp_eq_u32 vcc, 0, %s" % v(vGO))
        e("s_nop 4")
        e("s_cbranch_vccz %s" % done)
        e("buffer_load_dword %s, %s, %s, 0 offen offset:%d sc1" % (v(vGO), v(vZERO), srd(SRD_DBG), self.go_off))
        e("s_waitcnt vmcnt(0)")
        e("s_sub_u32 s%d, s%d, 1" % (sSPIN, sSPIN))
        e("s_cmp_lg_u32 s%d, 0" % sSPIN)
        e("s_cbranch_scc1 %s" % loop)
        self.label(done)
        e("s_barrier")
        vA, vOne = 5, 6
        e("s_lshl_b32 s%d, s%d, 8" % (sT0, sG0))
        e("s_add_u32 s%d, s%d, %d" % (sT0, sT0, WS_CNT + 256 * C_S1))
        e("v_mov_b32 %s, s%d" % (v(vA), sT0))
        e("v_mov_b32 %s, 1" % v(vOne))
        self.signal(vA, vOne, 1)
        self.stamp(3)
        if self.endif_stop("a0"):
            return False
        self.phase_a1()
        ONES, CA = 108, 64
        for i in range(4):
            e("v_mov_b32 %s, 0x3f803f80" % v(ONES + i))
        self.wait_vm("w1")
        self.stamp(28)
        e("s_nop 1")
        rd = self.w_stage_read_items(1, vWRD, vWRD + 1)
        for s_ in range(14):
            for ft in range(2):
                e("v_mfma_f32_32x32x16_bf16 %s, %s, %s, %s" % (v(CA + 16 * ft, 16), v(ONES, 4), a(8 * s_ + 4 * ft, 4), "0" if s_ == 0 else v(CA + 16 * ft, 16)))
                for _ in range(2):
                    self.lds(rd.pop(0), "wr")
        self.stamp(8)
        if self.endif_stop("a1"):
            return False
        return True

    def build(self):
        self.prologue()
        cont = self.main_path()
        if cont:
            from gen_bc import phase_b, phase_c
            phase_b(self)
            if not self.endif_stop("b"):
                phase_c(self)
                self.stamp(20)
                self.stamp_dump()
                self.wait_all()
                if self.spin_us:
                    self.e("L_diag:")
                    self.e("s_memrealtime s[96:97]")
                    self.e("s_waitcnt lgkmcnt(0)")
                    self.e("s_sub_u32 s96, s96, s100")
                    self.e("s_cmp_lt_u32 s96, %d" % (self.spin_us * 100))
                    self.e("s_cbranch_scc1 L_diag")
                self.e("s_endpgm")
        self.helper()
        if getattr(self, "redo_code", None):
            self.redo_code()
        for code in self.ool:
            code()
        self.label("L_exit")
        self.e("s_waitcnt vmcnt(0) lgkmcnt(0)")
        self.label("L_end")
        self.e("s_endpgm")
        self.label("L_codeend")
        body = self.text()
        hdr = HEADER
        hdr += "; @launch grid=(256,1,1) block=(256,1,1) lds=%d\n" % LDS_BYTES
        hdr += '.amdgcn_target "amdgcn-amd-amdhsa--gfx950"\n.text\n.globl %s\n.p2align 8\n.type %s,@function\n%s:\n' % (NAME, NAME, NAME)
        tail = """
.section .rodata,"a"
.p2align 6
.amdhsa_kernel %s
  .amdhsa_next_free_vgpr 512
  .amdhsa_next_free_sgpr 102
  .amdhsa_accum_offset 256
  .amdhsa_group_segment_fixed_size 0
  .amdhsa_kernarg_size 104
  .amdhsa_user_sgpr_count 2
  .amdhsa_user_sgpr_kernarg_segment_ptr 1
  .amdhsa_system_sgpr_workgroup_id_x 1
.end_amdhsa_kernel
""" % NAME
        return hdr + body + tail, body


HEADER = """; Fused preLN -> H3 (shift conv, k*v, long causal conv, gate) -> preLN -> GLU FFN, one persistent launch.
; Kernarg: q,k,v,shift_k,ssm_k,ssm_D,x(unused),w_gate,w_up,w_down,out,debug,ws (generated by gen/gen.py)
"""

if __name__ == "__main__":
    import argparse
    ap = argparse.ArgumentParser()
    ap.add_argument("--stop", default=None)
    ap.add_argument("--stamps", action="store_true")
    ap.add_argument("--dbgst", action="store_true")
    ap.add_argument("--spin", type=int, default=0)
    ap.add_argument("--exp", default="")
    ap.add_argument("--tmo", action="store_true")
    ap.add_argument("--wtouch", action="store_true")
    ap.add_argument("--wtouch2", action="store_true")
    ap.add_argument("--smem-poll", action="store_true")
    ap.add_argument("--fill", type=int, default=8)
    ap.add_argument("--npre", type=int, default=8)
    ap.add_argument("--touch", action="store_true")
    ap.add_argument("--no-tlbwarm", action="store_true")
    ap.add_argument("--no-prefetch", action="store_true")
    ap.add_argument("-o", default="out.s")
    args = ap.parse_args()
    g = Gen(stop=args.stop, stamps=args.stamps, tlbwarm=not args.no_tlbwarm, prefetch=not args.no_prefetch, dbgst=args.dbgst)
    g.spin_us = args.spin
    g.touch = args.touch
    g.wtouch = args.wtouch
    g.wtouch2 = args.wtouch2
    g.smem_poll = args.smem_poll
    g.fill_depth = args.fill
    g.npre = args.npre
    g.exp = set(args.exp.split(',')) if args.exp else set()
    txt, body = g.build()
    if args.tmo:
        out = []
        site = 0
        lines = txt.split("\n")
        for i, ln in enumerate(lines):
            out.append(ln)
            if ln.strip() == "s_cmp_lg_u32 s92, 0":
                lab = "L_tmo_%d" % site
                out += ["  s_cbranch_scc1 %s" % lab, "  v_mov_b32 v30, 1", "  v_mov_b32 v31, %d" % (128 + 4 * site), "  s_mov_b64 s[100:101], exec", "  s_mov_b64 exec, 1",
                        "  buffer_atomic_add v30, v31, s[44:47], 0 offen sc1", "  s_mov_b64 exec, s[100:101]", "  s_cmp_lg_u32 s92, 0", lab + ":"]
                print("site", site, "near", [l for l in lines[max(0, i - 14):i] if l.endswith(":")])
                site += 1
        txt = "\n".join(out)
    open(args.o, "w").write(txt)
    check_hazards(body)
    print("wrote", args.o, len(txt), "bytes")
```

```python
import sys, os
sys.path.insert(0, os.path.dirname(os.path.abspath(__file__)))
from asmlib import Asm, check_hazards

NAME = "sequential_preLN__ssm_conv_h3__glu_gated_glu__prompt_kernel"
S, D, F = 2048, 448, 1792

WS_KVT = 0x000000
WS_QT = 0x200000
WS_HB = 0x400000
WS_HF = 0x600000
WS_ST1 = 0xE00000
WS_ST2 = 0xE08000
WS_CNT = 0xE10000
WS_TS = 0xF00000
WS_SIZE = 0x1000000
C_S1, C_SL1, C_FH, C_FH1, C_S3, C_S2 = 0, 56, 64, 72, 80, 96
N_CNT = 80

L_WST = 0
L_K = 114688
L_V = L_K + 9216
L_Q = L_V + 8192
L_TS = L_Q + 8192
L_X = L_K
L_EX = L_V
L_HB = 0
L_WD = 86016
LDS_BYTES = 163840

sWAVE = 3
SRD_WS, SRD_Q, SRD_K, SRD_V, SRD_SK, SRD_SH, SRD_WG, SRD_WU, SRD_WD, SRD_OUT, SRD_DBG = 4, 8, 12, 16, 20, 24, 28, 32, 36, 40, 44
sPC = 48
sD = 50
sT0, sT1, sT2, sT3, sT4, sT5, sT6, sT7 = 76, 77, 78, 79, 80, 81, 82, 83
sA0BASE = 84
sG0 = 85
sRB = 86
sBI, sBJ = 87, 88
sCI, sCS, sCJ = 89, 90, 91
sSPIN = 92
sM = 93
sEX = 94
sTS = 96
sHALF = 98
sCHL = 99
sWSO, sWM, sWB, sWG, sWX = 51, 75, 56, 57, 74
sOFF = 58
vWS = 248
vWRD = 246


def srd(n):
    return "s[%d:%d]" % (n, n + 3)


def v(a, n=1):
    return "v%d" % a if n == 1 else "v[%d:%d]" % (a, a + n - 1)


def a(i, n=1):
    return "a%d" % i if n == 1 else "a[%d:%d]" % (i, i + n - 1)


SPIN_LIMIT = 40000
DBG_IDX = [0, 1, 3, 4, 5, 6, 8, 9, 10, 11, 12, 13, 14, 15, 17, 20]


class Gen(Asm):
    def __init__(self, stop=None, stamps=False, tlbwarm=True, prefetch=True, dbgst=False):
        super().__init__()
        self.stop = stop
        self.stamps = stamps
        self.tlbwarm = tlbwarm
        self.prefetch = prefetch
        self.exp = set()
        self.spin_us = 0
        self.dbgst = dbgst
        self.go_off = 128 if dbgst else 0
        self.npre = 8
        self.nw1 = 28
        self.stat_round = 2
        self.ool = []
        self.sleep = 1
        self.b0 = False
        self.hpf = 0
        self.fill_depth = 8
        self.touch = False
        self.wtouch = False
        self.wtouch2 = False
        self.smem_poll = False

    def stamp(self, idx, wave=0):
        if self.dbgst:
            if idx not in DBG_IDX or getattr(self, "in_helper", False):
                return
            lab = self.newlabel("st")
            self.e("s_cmp_eq_u32 s%d, 0" % sWAVE)
            self.e("s_cbranch_scc0 %s" % lab)
            self.e("s_and_b32 s%d, s2, 31" % sTS)
            self.e("s_cmp_eq_u32 s%d, %d" % (sTS, 5))
            self.e("s_cbranch_scc0 %s" % lab)
            self.e("s_memrealtime s[%d:%d]" % (sTS, sTS + 1))
            self.e("s_waitcnt lgkmcnt(0)")
            if idx == 0:
                self.e("s_not_b32 s%d, s%d" % (sTS, sTS))
            self.e("v_mov_b32 v30, s%d" % sTS)
            self.e("v_mov_b32 v31, %d" % (4 * DBG_IDX.index(idx)))
            self.e("s_mov_b64 exec, 1")
            self.e("buffer_atomic_umax v30, v31, %s, 0 offen sc1" % srd(SRD_DBG))
            self.e("s_mov_b64 exec, -1")
            self.label(lab)
            return
        if not self.stamps or wave != 0:
            return
        vS = 93 if getattr(self, "in_helper", False) else 30
        lab = self.newlabel("st")
        self.e("s_cmp_eq_u32 s%d, 0" % sWAVE)
        self.e("s_cbranch_scc0 %s" % lab)
        self.e("s_memrealtime s[%d:%d]" % (sTS, sTS + 1))
        self.e("s_memtime s[100:101]")
        self.e("s_waitcnt lgkmcnt(0)")
        self.e("v_writelane_b32 v%d, s%d, %d" % (vS, sTS, idx))
        self.e("v_writelane_b32 v%d, s100, %d" % (vS, 32 + idx))
        self.label(lab)

    def stamp_dump(self):
        if not self.stamps:
            return
        vS = 93 if getattr(self, "in_helper", False) else 30
        lab = self.newlabel("sd")
        self.e("s_cmp_eq_u32 s%d, 0" % sWAVE)
        self.e("s_cbranch_scc0 %s" % lab)
        self.e("s_lshl_b32 s%d, s2, 8" % sTS)
        self.e("s_add_u32 s%d, s%d, %d" % (sTS, sTS, WS_TS))
        self.e("v_lshl_add_u32 v31, v1, 2, s%d" % sTS)
        self.e("buffer_store_dword v%d, v31, %s, 0 offen" % (vS, srd(SRD_WS)))
        self.label(lab)

    def spin(self, vaddr, vtarget, vtmp):
        loop = self.newlabel("ploop")
        done = self.newlabel("pdone")
        self.e("s_mov_b32 s%d, %d" % (sSPIN, SPIN_LIMIT))
        self.label(loop)
        self.e("buffer_load_dword %s, %s, %s, 0 offen sc1" % (v(vtmp), v(vaddr), srd(SRD_WS)))
        self.e("s_waitcnt vmcnt(0)")
        self.e("v_cmp_lt_u32 vcc, %s, %s" % (v(vtmp), v(vtarget)))
        self.e("s_nop 4")
        self.e("s_cbranch_vccz %s" % done)
        self.e("s_sub_u32 s%d, s%d, 1" % (sSPIN, sSPIN))
        self.e("s_cmp_lg_u32 s%d, 0" % sSPIN)
        self.e("s_cbranch_scc0 %s" % done)
        self.e("s_sleep %d" % self.sleep)
        self.e("s_branch %s" % loop)
        self.label(done)

    def poll(self, vaddr, vtarget, vtmp):
        skip = self.newlabel("pskip")
        self.e("s_cmp_eq_u32 s%d, 0" % sWAVE)
        self.e("s_cbranch_scc0 %s" % skip)
        self.spin(vaddr, vtarget, vtmp)
        self.label(skip)
        self.e("s_barrier")

    def signal(self, vaddr, vone, nlanes):
        skip = self.newlabel("sig")
        self.e("s_cmp_eq_u32 s%d, 0" % sWAVE)
        self.e("s_cbranch_scc0 %s" % skip)
        self.e("s_mov_b64 exec, %d" % ((1 << nlanes) - 1))
        self.e("buffer_atomic_add %s, %s, %s, 0 offen sc1" % (v(vone), v(vaddr), srd(SRD_WS)))
        self.e("s_mov_b64 exec, -1")
        self.label(skip)

    def mark_reads(self, n, vaddr, off, r0, tag):
        return ["ds_read_b128 %s, %s offset:%d" % (v(r0 + 4 * i, 4), v(vaddr), off + 1024 * i) for i in range(n)]

    def mark_fold(self, n, r0):
        out = ["v_max3_u32 %s, %s, %s, %s" % (v(r0), v(r0), v(r0 + 1), v(r0 + 2))]
        i = 3
        while i + 1 < 4 * n:
            out.append("v_max3_u32 %s, %s, %s, %s" % (v(r0), v(r0), v(r0 + i), v(r0 + i + 1)))
            i += 2
        if i < 4 * n:
            out.append("v_max_u32 %s, %s, %s" % (v(r0), v(r0), v(r0 + i)))
        return out

    def mark_branch(self, n, vaddr, off, r0, refetch):
        e = self.e
        lab, back = self.newlabel("mk"), self.newlabel("mkb")
        e("v_cmp_eq_u32 vcc, -1, %s" % v(r0))
        e("s_nop 4")
        e("s_cbranch_vccnz %s" % lab)
        self.label(back)

        def code():
            loop, done = self.newlabel("mkl"), self.newlabel("mkd")
            self.label(lab)
            e("s_mov_b32 s73, m0")
            e("s_mov_b32 s%d, %d" % (sSPIN, SPIN_LIMIT))
            self.label(loop)
            refetch()
            e("s_waitcnt vmcnt(0)")
            for ln in self.mark_reads(n, vaddr, off, r0, None):
                e(ln)
            e("s_waitcnt lgkmcnt(0)")
            for ln in self.mark_fold(n, r0):
                e(ln)
            e("v_cmp_eq_u32 vcc, -1, %s" % v(r0))
            e("s_nop 4")
            e("s_cbranch_vccz %s" % done)
            e("s_sub_u32 s%d, s%d, 1" % (sSPIN, sSPIN))
            e("s_cmp_lg_u32 s%d, 0" % sSPIN)
            e("s_cbranch_scc1 %s" % loop)
            self.label(done)
            e("s_mov_b32 m0, s73")
            e("s_branch %s" % back)
        self.ool.append(code)

    def hb_refetch(self, stb, add, buf, vL16):
        e = self.e
        e("s_add_u32 s56, s%d, %d" % (stb, add))
        e("s_mul_i32 s56, s56, 28672")
        e("s_mul_i32 s57, s%d, 7168" % sWAVE)
        e("s_add_u32 s56, s56, s57")
        e("s_add_u32 s56, s56, %d" % WS_HB)
        e("s_add_u32 m0, s57, %d" % (28672 * buf))
        e("s_nop 0")
        for i in range(4):
            e("buffer_load_dwordx4 %s, %s, s56 offen offset:%d sc1 lds" % (v(vL16), srd(SRD_WS), 1024 * i))
        e("s_add_u32 s56, s56, 4096")
        e("s_add_u32 m0, s57, %d" % (28672 * buf + 4096))
        e("s_nop 0")
        for i in range(3):
            e("buffer_load_dwordx4 %s, %s, s56 offen offset:%d sc1 lds" % (v(vL16), srd(SRD_WS), 1024 * i))

    def endif_stop(self, name):
        if self.stop == name:
            self.wait_all()
            self.e("s_endpgm")
            return True
        return False

    def mk(self, dst, src, size):
        e = self.e
        e("s_mov_b32 s%d, s%d" % (dst, src))
        e("s_mov_b32 s%d, s%d" % (dst + 1, src + 1))
        e("s_mov_b32 s%d, %d" % (dst + 2, size))
        e("s_mov_b32 s%d, 0x20000" % (dst + 3))

    def srds(self, which):
        e, mk = self.e, self.mk
        for r in which:
            if r == "q":
                mk(SRD_Q, 52, S * D * 2)
            elif r == "k":
                mk(SRD_K, 54, S * D * 2)
            elif r == "v":
                mk(SRD_V, 56, S * D * 2)
            elif r == "sh":
                mk(SRD_SH, 58, D * 4 * 2)
            elif r == "sk":
                mk(SRD_SK, 60, S * D * 2)
            elif r == "w":
                mk(SRD_WG, 64, D * F * 2)
                mk(SRD_WU, 66, D * F * 2)
                mk(SRD_WD, 68, D * F * 2)
                e("s_sub_u32 s%d, s%d, 1024" % (SRD_WU, SRD_WU))
                e("s_subb_u32 s%d, s%d, 0" % (SRD_WU + 1, SRD_WU + 1))
                e("s_add_u32 s%d, s%d, 1024" % (SRD_WU + 2, SRD_WU + 2))
            elif r == "rest":
                mk(SRD_OUT, 70, S * D * 2)
                mk(SRD_DBG, 72, 256)
                mk(SRD_WS, 74, WS_SIZE)

    def prologue(self):
        e = self.e
        if self.stamps:
            e("s_memrealtime vcc")
        e("s_load_dwordx8 s[52:59], s[0:1], 0")
        e("s_getpc_b64 s[%d:%d]" % (sPC, sPC + 1))
        self.label("L_pc")
        if self.touch:
            e("s_min_u32 s%d, s2, 223" % sT1)
            e("s_mul_i32 s%d, s%d, 293" % (sRB, sT1))
            e("s_lshr_b32 s%d, s%d, 11" % (sRB, sRB))
            e("v_lshrrev_b32 v3, 6, v0")
            e("v_and_b32 v2, 15, v0")
            e("v_lshl_add_u32 v2, v3, 4, v2")
            e("s_lshl_b32 s%d, s%d, 7" % (sT1, sT1))
            e("s_mul_i32 s%d, s%d, 56448" % (sA0BASE, sRB))
            e("v_mul_u32_u24 v2, 896, v2")
            e("s_add_u32 s%d, s%d, s%d" % (sA0BASE, sA0BASE, sT1))
            e("v_add_u32 v2, s%d, v2" % sA0BASE)
        e("v_and_b32 v4, 7, v0")
        e("s_lshr_b32 s%d, s2, 3" % sT0)
        e("v_lshlrev_b32 v4, 7, v4")
        e("s_lshl_b32 s%d, s%d, 10" % (sT0, sT0))
        e("v_add_u32 v4, s%d, v4" % sT0)
        e("v_min_u32 v4, L_codeend-L_pc-4, v4")
        e("global_load_dword v253, v4, s[%d:%d]" % (sPC, sPC + 1))
        if self.touch:
            e("s_waitcnt lgkmcnt(0)")
            e("global_load_dword v252, v2, s[54:55]")
            e("global_load_dword v252, v2, s[56:57]")
            e("global_load_dword v252, v2, s[52:53]")
        else:
            e("v_lshrrev_b32 v3, 6, v0")
        e("s_load_dwordx4 s[60:63], s[0:1], 32")
        e("s_load_dwordx4 s[64:67], s[0:1], 56")
        e("s_load_dwordx4 s[68:71], s[0:1], 72")
        e("s_load_dwordx4 s[72:75], s[0:1], 88")
        if self.spin_us:
            e("s_memrealtime s[100:101]")
        e("v_and_b32 v1, 63, v0")
        e("v_readfirstlane_b32 s%d, v3" % sWAVE)
        e("s_cmp_ge_u32 s2, 256")
        e("s_cbranch_scc1 L_exit")
        e("s_cmp_ge_u32 s2, 224")
        e("s_cbranch_scc1 L_helper")

    def phase_a0(self):
        e = self.e
        self.c("==== A0 ====")
        e("s_mul_i32 s%d, s2, 293" % sRB)
        e("s_lshr_b32 s%d, s%d, 11" % (sRB, sRB))
        e("s_mul_i32 s%d, s%d, 7" % (sT0, sRB))
        e("s_sub_u32 s%d, s2, s%d" % (sG0, sT0))
        e("s_mul_i32 s%d, s%d, %d" % (sA0BASE, sRB, 64 * 896))
        e("s_lshl_b32 s%d, s%d, 7" % (sT0, sG0))
        e("s_add_u32 s%d, s%d, s%d" % (sA0BASE, sA0BASE, sT0))
        vP, vOff, vOffH, vT = 4, 5, 6, 7
        e("v_lshrrev_b32 %s, 4, v1" % v(vT))
        e("v_and_b32 %s, 1, %s" % (v(vT), v(vT)))
        e("v_lshlrev_b32 %s, 1, %s" % (v(vT), v(vT)))
        e("v_and_b32 %s, 7, v1" % v(vP))
        e("v_xor_b32 %s, %s, %s" % (v(vP), v(vP), v(vT)))
        e("v_lshlrev_b32 %s, 4, %s" % (v(vP), v(vP)))
        e("v_lshrrev_b32 %s, 3, v1" % v(vT))
        e("v_mul_u32_u24 %s, 896, %s" % (v(vT), v(vT)))
        e("v_add_u32 %s, %s, %s" % (v(vP), v(vP), v(vT)))
        e("s_and_b32 s%d, s%d, 1" % (sT0, sWAVE))
        e("s_lshl_b32 s%d, s%d, 6" % (sT0, sT0))
        e("v_xor_b32 %s, s%d, %s" % (v(vOff), sT0, v(vP)))
        e("v_xor_b32 %s, 64, %s" % (v(vOffH), v(vP)))
        e("s_cmp_eq_u32 s%d, 0" % sRB)
        e("s_cselect_b32 s%d, 0x80000000, 0" % sT1)
        e("v_add_u32 %s, s%d, %s" % (v(vOffH), sT1, v(vOffH)))
        e("s_sub_u32 s%d, s%d, 7168" % (sT2, sA0BASE))
        e("s_cmp_eq_u32 s%d, 0" % sRB)
        e("s_cselect_b32 s%d, 0, s%d" % (sT2, sT2))
        e("s_mul_i32 s%d, s%d, 7168" % (sT3, sWAVE))
        e("s_add_u32 s%d, s%d, s%d" % (sT3, sT3, sA0BASE))
        e("s_add_u32 s%d, s%d, %d" % (sT4, sT3, 4 * 7168))
        e("s_lshl_b32 s%d, s%d, 10" % (sT5, sWAVE))

        e("s_waitcnt lgkmcnt(0)")
        if self.stamps:
            e("v_mov_b32 v254, vcc_lo")
            e("v_mov_b32 v30, 0")
        self.srds("kvq")

        def dma(srdn, voff, soff, ldsbase, addw=True):
            if addw:
                e("s_add_u32 m0, s%d, %d" % (sT5, ldsbase))
            else:
                e("s_mov_b32 m0, %d" % ldsbase)
            e("s_nop 0")
            self.vmem("buffer_load_dwordx4 %s, %s, s%d offen lds" % (v(voff), srd(srdn), soff), "a0")
        dma(SRD_K, vOffH, sT2, L_K, addw=False)
        dma(SRD_K, vOff, sT3, L_K + 1024)
        dma(SRD_K, vOff, sT4, L_K + 5 * 1024)
        dma(SRD_V, vOff, sT3, L_V)
        dma(SRD_V, vOff, sT4, L_V + 4 * 1024)
        dma(SRD_Q, vOff, sT3, L_Q)
        dma(SRD_Q, vOff, sT4, L_Q + 4 * 1024)
        self.srds(["sh", "sk"])
        vCH, vSK = 8, 10
        e("s_lshl_b32 s%d, s%d, 6" % (sT0, sG0))
        e("s_lshl_b32 s%d, s%d, 4" % (sT1, sWAVE))
        e("s_add_u32 s%d, s%d, s%d" % (sT0, sT0, sT1))
        e("v_and_b32 %s, 15, v1" % v(vCH))
        e("v_add_u32 %s, s%d, %s" % (v(vCH), sT0, v(vCH)))
        e("v_lshlrev_b32 %s, 3, %s" % (v(vT), v(vCH)))
        self.vmem("buffer_load_dwordx2 %s, %s, %s, 0 offen" % (v(vSK, 2), v(vT), srd(SRD_SH)), "a0")

        e("s_lshr_b32 s%d, s%d, 1" % (sCHL, sWAVE))
        e("s_and_b32 s%d, s%d, 1" % (sHALF, sWAVE))
        vL16 = 9
        e("v_lshlrev_b32 %s, 4, v1" % v(vL16))
        e("s_lshl_b32 s%d, s2, 1" % sT0)
        e("s_add_u32 s%d, s%d, s%d" % (sT0, sT0, sCHL))
        e("s_lshl_b32 s%d, s%d, 12" % (sT0, sT0))
        e("s_lshl_b32 s%d, s%d, 11" % (sT1, sHALF))
        e("s_add_u32 s%d, s%d, s%d" % (sT0, sT0, sT1))
        e("s_mul_i32 s%d, s%d, 8320" % (sT2, sCHL))
        e("s_add_u32 s%d, s%d, s%d" % (sT2, sT2, sT1))
        e("s_add_u32 m0, s%d, %d" % (sT2, L_TS + 32))
        e("s_nop 0")
        for i in range(2):
            self.vmem("buffer_load_dwordx4 %s, %s, s%d offen offset:%d lds" % (v(vL16), srd(SRD_SK), sT0, 1024 * i), "ts")
        self.srds(["w", "rest"])
        self.decode_bc()
        self.stamp(0)
        if self.stamps:
            e("v_readfirstlane_b32 s%d, v254" % sTS)
            e("s_nop 3")
            e("v_writelane_b32 v30, s%d, 31" % sTS)
        if self.tlbwarm:
            self.c("touch every page that is used later (address translation warm-up)")
            vZ = 59
            e("v_mov_b32 %s, 0" % v(vZ))
            e("s_mov_b64 exec, 1")
            for r in (SRD_SK, SRD_WG, SRD_WD, SRD_OUT):
                e("buffer_load_dword v252, %s, %s, 0 offen" % (v(vZ), srd(r)))
            e("v_mov_b32 %s, 1024" % v(vZ))
            e("buffer_load_dword v252, %s, %s, 0 offen" % (v(vZ), srd(SRD_WU)))
            e("s_mov_b64 exec, 0xff")
            e("v_lshlrev_b32 %s, 21, v1" % v(vZ))
            e("buffer_load_dword v252, %s, %s, 0 offen" % (v(vZ), srd(SRD_WS)))
            e("s_mov_b64 exec, -1")
            self.vm += ["tlb"] * 6
        e("s_lshl_b32 s%d, s2, 2" % sT3)
        e("s_load_dword s%d, s[62:63], s%d" % (sD, sT3))

        vTR, vTRH, vG, vR = 13, 14, 15, 16
        e("v_lshrrev_b32 %s, 4, v1" % v(vG))
        e("v_bfe_u32 %s, v1, 2, 2" % v(vR))
        e("v_lshrrev_b32 %s, 1, %s" % (v(vT), v(vR)))
        e("v_and_b32 %s, 1, %s" % (v(vTR), v(vG)))
        e("v_lshl_or_b32 %s, %s, 1, %s" % (v(vT), v(vTR), v(vT)))
        e("v_xor_b32 %s, s%d, %s" % (v(vT), sWAVE, v(vT)))
        e("v_lshlrev_b32 %s, 5, %s" % (v(vT), v(vT)))
        e("v_lshl_add_u32 %s, %s, 3, %s" % (v(vTR), v(vG), v(vR)))
        e("v_lshl_add_u32 %s, %s, 7, %s" % (v(vTR), v(vTR), v(vT)))
        e("v_and_b32 %s, 3, v1" % v(vT))
        e("v_lshl_add_u32 %s, %s, 3, %s" % (v(vTR), v(vT), v(vTR)))
        e("v_add_u32 %s, %d, %s" % (v(vTR), L_K, v(vTR)))
        e("v_xor_b32 %s, 64, %s" % (v(vTRH), v(vTR)))
        vSKV, vSQ = 17, 18
        e("s_lshl_b32 s%d, s%d, 7" % (sT0, sRB))
        e("v_lshlrev_b32 %s, 12, %s" % (v(vSQ), v(vCH)))
        e("v_lshlrev_b32 %s, 4, %s" % (v(vT), v(vG)))
        e("s_sub_u32 s%d, %d, s%d" % (sT1, WS_KVT + 4080 - 64, sT0))
        e("v_add_u32 %s, s%d, %s" % (v(vSKV), sT1, v(vSQ)))
        e("v_sub_u32 %s, %s, %s" % (v(vSKV), v(vSKV), v(vT)))
        e("s_add_u32 s%d, s%d, %d" % (sT1, sT0, WS_QT))
        e("v_add3_u32 %s, %s, %s, s%d" % (v(vSQ), v(vSQ), v(vT), sT1))
        self.wait_vm("a0")
        e("s_waitcnt lgkmcnt(0)")
        self.lg = []
        e("s_lshl_b32 s%d, s%d, 16" % (sT0, sD))
        e("s_and_b32 s%d, s%d, 0xffff0000" % (sT1, sD))
        e("s_cmp_eq_u32 s%d, 0" % sCHL)
        e("s_cselect_b32 s%d, s%d, s%d" % (sD, sT0, sT1))
        e("s_barrier")
        self.stamp(1)
        if self.wtouch:
            self.w_touch(0, "wt")

        KH = [24, 34]
        KM = [26, 36]
        VV = [40, 44]
        QQ = [48, 52]
        for rho in range(2):
            self.lds("ds_read_b64_tr_b16 %s, %s offset:%d" % (v(KH[rho], 2), v(vTRH), 512 + 4096 * rho), "k%d" % rho)
            self.lds("ds_read_b64_tr_b16 %s, %s offset:%d" % (v(KM[rho], 2), v(vTR), 1024 + 4096 * rho), "k%d" % rho)
            self.lds("ds_read_b64_tr_b16 %s, %s offset:%d" % (v(KM[rho] + 2, 2), v(vTR), 1024 + 512 + 4096 * rho), "k%d" % rho)
            self.lds("ds_read_b64_tr_b16 %s, %s offset:%d" % (v(VV[rho], 2), v(vTR), L_V - L_K + 4096 * rho), "v%d" % rho)
            self.lds("ds_read_b64_tr_b16 %s, %s offset:%d" % (v(VV[rho] + 2, 2), v(vTR), L_V - L_K + 512 + 4096 * rho), "v%d" % rho)
        for rho in range(2):
            self.lds("ds_read_b64_tr_b16 %s, %s offset:%d" % (v(QQ[rho], 2), v(vTR), L_Q - L_K + 4096 * rho), "q")
            self.lds("ds_read_b64_tr_b16 %s, %s offset:%d" % (v(QQ[rho] + 2, 2), v(vTR), L_Q - L_K + 512 + 4096 * rho), "q")
        CA, CB = 21, 22
        e("v_alignbit_b32 %s, %s, %s, 16" % (v(CA), v(vSK), v(vSK)))
        e("v_alignbit_b32 %s, %s, %s, 16" % (v(CB), v(vSK + 1), v(vSK + 1)))
        MM = 56
        KS = 64
        VF = 72
        OUTR = [80, 84]
        for rho in range(2):
            self.wait_lg("v%d" % rho)
            Dw = [KH[rho], KH[rho] + 1, KM[rho], KM[rho] + 1, KM[rho] + 2, KM[rho] + 3]
            for i in range(5):
                e("v_alignbit_b32 %s, %s, %s, 16" % (v(MM + i), v(Dw[i + 1]), v(Dw[i])))
            for t in range(8):
                if t & 1:
                    p0, p1 = Dw[2 + (t >> 1)], Dw[1 + (t >> 1)]
                else:
                    p0, p1 = MM + 1 + (t >> 1), MM + (t >> 1)
                e("v_dot2_f32_bf16 %s, %s, %s, 0" % (v(KS + t), v(p1), v(CB)))
            for t in range(8):
                if t & 1:
                    p0 = Dw[2 + (t >> 1)]
                else:
                    p0 = MM + 1 + (t >> 1)
                e("v_dot2_f32_bf16 %s, %s, %s, %s" % (v(KS + t), v(p0), v(CA), v(KS + t)))
            for t in range(8):
                src = VV[rho] + (t >> 1)
                if t & 1:
                    e("v_and_b32 %s, 0xffff0000, %s" % (v(VF + t), v(src)))
                else:
                    e("v_lshlrev_b32 %s, 16, %s" % (v(VF + t), v(src)))
            for t in range(8):
                e("v_mul_f32 %s, %s, %s" % (v(KS + t), v(KS + t), v(VF + t)))
            for i in range(4):
                e("v_cvt_pk_bf16_f32 %s, %s, %s" % (v(OUTR[rho] + i), v(KS + 7 - 2 * i), v(KS + 6 - 2 * i)))
            self.vmem("buffer_store_dwordx4 %s, %s, %s, 0 offen offset:%d sc1" % (v(OUTR[rho], 4), v(vSKV), srd(SRD_WS), 64 if rho == 0 else 0), "a0st")
        self.wait_lg("q")
        for rho in range(2):
            self.vmem("buffer_store_dwordx4 %s, %s, %s, 0 offen offset:%d sc1" % (v(QQ[rho], 4), v(vSQ), srd(SRD_WS), 64 * rho), "a0st")
        vGO, vZERO = 23, 58
        e("v_mov_b32 %s, 0" % v(vZERO))
        self.vmem("buffer_load_dword %s, %s, %s, 0 offen offset:%d sc1" % (v(vGO), v(vZERO), srd(SRD_DBG), self.go_off), "go")
        self.stamp(2)

    def w_touch(self, half, tag):
        e = self.e
        vP = 62
        e("s_and_b32 s%d, s%d, 3" % (sT0, sBI))
        e("s_mul_i32 s%d, s%d, %d" % (sT0, sT0, 56 * 3584))
        e("s_lshl_b32 s%d, s%d, 8" % (sT1, sBJ))
        e("s_add_u32 s%d, s%d, s%d" % (sT0, sT0, sT1))
        e("s_lshr_b32 s%d, s%d, 1" % (sT1, sWAVE))
        e("s_lshl_b32 s%d, s%d, 7" % (sT1, sT1))
        e("s_add_u32 s%d, s%d, s%d" % (sT0, sT0, sT1))
        if half:
            e("s_add_u32 s%d, s%d, %d" % (sT0, sT0, 224 * 3584))
        e("v_min_u32 %s, 55, v1" % v(vP))
        e("v_mul_u32_u24 %s, 3584, %s" % (v(vP), v(vP)))
        lab, labj = self.newlabel("wt"), self.newlabel("wtj")
        e("s_bitcmp1_b32 s%d, 0" % sWAVE)
        e("s_cbranch_scc1 %s" % lab)
        e("buffer_load_dword v252, %s, %s, s%d offen" % (v(vP), srd(SRD_WG), sT0))
        e("s_branch %s" % labj)
        self.label(lab)
        e("buffer_load_dword v252, %s, %s, s%d offen offset:1024" % (v(vP), srd(SRD_WU), sT0))
        self.label(labj)
        self.vm.append(tag)

    def t_build(self):
        e = self.e
        vZ, vZA, vRA, vPA = 19, 20, 21, 22
        D0 = 100
        e("v_mov_b32 %s, 0" % v(vZ))
        e("s_mul_i32 s%d, s%d, 8320" % (sT2, sCHL))
        e("s_add_u32 s%d, s%d, %d" % (sT2, sT2, L_TS))
        e("v_lshl_add_u32 %s, v1, 2, s%d" % (v(vPA), sT2))
        e("v_mov_b32 %s, s%d" % (v(vZA), sT2))
        e("v_add_u32 %s, %d, %s" % (v(vZA), 32 + 4096, v(vZA)))
        e("v_cmp_gt_u32 vcc, 8, v1")
        e("s_nop 1")
        e("v_cndmask_b32 %s, %s, %s, vcc" % (v(vZA), v(vZA), v(vPA)))
        e("s_mov_b64 exec, 0x1ff")
        e("ds_write_b32 %s, %s" % (v(vZA), v(vZ)))
        e("s_mov_b64 exec, -1")
        e("s_lshl_b32 s%d, s%d, 11" % (sT1, sHALF))
        e("s_add_u32 s%d, s%d, s%d" % (sT1, sT1, sT2))
        e("s_add_u32 s%d, s%d, 32" % (sT1, sT1))
        e("v_lshl_add_u32 %s, v1, 4, s%d" % (v(vRA), sT1))
        self.wait_vm("ts")
        self.wait_lg0()
        e("s_barrier")
        for c in range(2):
            e("ds_read_b128 %s, %s offset:%d" % (v(D0 + 6 * c, 4), v(vRA), 1024 * c))
            e("ds_read_b32 %s, %s offset:%d" % (v(D0 + 6 * c + 4), v(vRA), 1024 * c + 16))
        e("ds_read2_b32 %s, %s offset0:0 offset1:1" % (v(D0 + 12, 2), v(vPA)))
        e("s_mul_i32 s%d, s%d, 4608" % (sT0, sCHL))
        e("s_lshl_b32 s%d, s%d, 8" % (sT1, sHALF))
        e("s_add_u32 s%d, s%d, s%d" % (sT0, sT0, sT1))
        e("s_add_u32 s%d, s%d, %d" % (sT0, sT0, L_X + 4096))
        e("v_lshl_add_u32 %s, v1, 2, s%d" % (v(vZA), sT0))
        e("ds_write_b32 %s, %s" % (v(vZA), v(vZ)))
        self.wait_lg0()
        O = D0 + 16
        for c in range(2):
            for i in range(4):
                e("v_alignbit_b32 %s, %s, %s, 16" % (v(O + 4 * c + i), v(D0 + 6 * c + i + 1), v(D0 + 6 * c + i)))
        e("v_alignbit_b32 %s, %s, %s, 16" % (v(O + 8), v(D0 + 13), v(D0 + 12)))
        for c in range(2):
            e("ds_write_b128 %s, %s offset:%d" % (v(vRA), v(O + 4 * c, 4), 4160 + 1024 * c))
        e("s_mov_b64 exec, 0xff")
        e("ds_write_b32 %s, %s offset:4160" % (v(vPA), v(O + 8)))
        e("s_mov_b64 exec, -1")
        self.wait_lg0()
        e("s_barrier")

    def w_stage_setup(self):
        e = self.e
        vT = 7
        e("v_lshrrev_b32 %s, 2, v1" % v(vT))
        e("v_mul_u32_u24 %s, 3584, %s" % (v(vT), v(vT)))
        e("v_and_b32 %s, 3, v1" % v(vWS))
        e("v_xor_b32 %s, 2, %s" % (v(vWS + 1), v(vWS)))
        e("v_lshl_add_u32 %s, %s, 4, %s" % (v(vWS), v(vWS), v(vT)))
        e("v_lshl_add_u32 %s, %s, 4, %s" % (v(vWS + 1), v(vWS + 1), v(vT)))
        e("v_add_u32 %s, %d, %s" % (v(vWS + 2), 57344 - 2048, v(vWS)))
        e("v_add_u32 %s, %d, %s" % (v(vWS + 3), 57344 - 2048, v(vWS + 1)))

    def w_stage_items(self, rnd, spanel=None, gstart=0, ngroups=7, sgstart=None):
        e = self.e
        items = []
        sp = sWAVE if spanel is None else spanel

        def setup():
            e("s_lshl_b32 s%d, s%d, 8" % (sWB, sBJ))
            e("s_lshl_b32 s%d, s%d, 6" % (sWM, sp))
            e("s_add_u32 s%d, s%d, s%d" % (sWB, sWB, sWM))
            if rnd:
                e("s_add_u32 s%d, s%d, %d" % (sWB, sWB, 14 * rnd * 57344))
            e("s_mul_i32 s%d, s%d, 28672" % (sWM, sp))
            if L_WST:
                e("s_add_u32 s%d, s%d, %d" % (sWM, sWM, L_WST))
            e("s_and_b32 s%d, s%d, 3" % (sWG, sBI))
            e("s_lshl_b32 s%d, s%d, 1" % (sWG, sWG))
            if sgstart is not None:
                e("s_add_u32 s%d, s%d, s%d" % (sWG, sWG, sgstart))
                e("s_cmp_ge_u32 s%d, 7" % sWG)
                e("s_cselect_b32 s%d, 7, 0" % sWX)
                e("s_sub_u32 s%d, s%d, s%d" % (sWG, sWG, sWX))

        def addr():
            e("s_mul_i32 s%d, s%d, %d" % (sWSO, sWG, 2 * 57344))
            e("s_add_u32 s%d, s%d, s%d" % (sWSO, sWSO, sWB))
            e("s_lshl_b32 s%d, s%d, 12" % (sWX, sWG))
            e("s_add_u32 m0, s%d, s%d" % (sWX, sWM))
        for grp in range(ngroups):
            for n in range(4):
                def one(grp=grp, n=n):
                    if grp == 0 and n == 0:
                        setup()
                        addr()
                        e("s_nop 0")
                    elif n == 0:
                        e("s_add_u32 s%d, s%d, 1" % (sWG, sWG))
                        e("s_cmp_eq_u32 s%d, 7" % sWG)
                        e("s_cselect_b32 s%d, 0, s%d" % (sWG, sWG))
                        addr()
                        e("s_nop 0")
                    self.vmem("buffer_load_dwordx4 %s, %s, s%d offen offset:%d lds" % (v(vWS + (n & 1) + 2 * (n >> 1)), srd(SRD_WG if (n & 1) == 0 else SRD_WU), sWSO, 1024 * n), "w%d" % rnd)
                items.append(one)
        return items

    def w_stage_read_setup(self, vB0, vB1):
        e = self.e
        vT, vU = 7, 4
        e("v_bfe_u32 %s, v1, 4, 1" % v(vT))
        e("v_lshrrev_b32 %s, 5, v1" % v(vU))
        e("v_lshlrev_b32 %s, 3, %s" % (v(vU), v(vU)))
        e("v_bfe_u32 %s, v1, 2, 2" % v(vB0))
        e("v_add_u32 %s, %s, %s" % (v(vU), v(vU), v(vB0)))
        e("v_lshlrev_b32 %s, 6, %s" % (v(vU), v(vU)))
        e("v_and_b32 %s, 3, v1" % v(vB0))
        e("v_lshl_add_u32 %s, %s, 3, %s" % (v(vU), v(vB0), v(vU)))
        e("v_mul_u32_u24 %s, 1056, %s" % (v(vT), v(vT)))
        e("s_mul_i32 s%d, s%d, 28672" % (sT0, sWAVE))
        e("v_add3_u32 %s, %s, %s, s%d" % (v(vB0), v(vU), v(vT), sT0))
        e("v_xor_b32 %s, 32, %s" % (v(vB1), v(vB0)))

    def w_stage_read_items(self, rnd, vB0, vB1):
        items = []
        for s in range(14):
            for ft in range(2):
                base = 8 * (14 * rnd + s) + 4 * ft
                for ee in range(2):
                    items.append("ds_read_b64_tr_b16 %s, %s offset:%d" % (a(base + 2 * ee, 2), v(vB0 if ft == 0 else vB1), L_WST + 2048 * s + 256 * ee))
        return items

    def w_stage_read(self, rnd):
        self.c("W staging -> AGPR round %d" % rnd)
        self.wait_vm("w%d" % rnd)
        for line in self.w_stage_read_items(rnd, vWRD, vWRD + 1):
            self.lds(line, "wr")

    def t_read(self):
        e = self.e
        self.c("T fragments -> a112..a239")
        vB, vT, vU = 240, 7, 4
        e("v_and_b32 %s, 15, v1" % v(vT))
        e("v_and_b32 %s, 1, %s" % (v(vU), v(vT)))
        e("v_add_u32 %s, %s, %s" % (v(vT), v(vT), v(vU)))
        e("v_lshrrev_b32 %s, 4, v1" % v(vB))
        e("v_lshl_add_u32 %s, %s, 3, %s" % (v(vT), v(vB), v(vT)))
        e("v_lshlrev_b32 %s, 1, %s" % (v(vT), v(vT)))
        e("v_xor_b32 %s, 1, %s" % (v(vU), v(vU)))
        e("v_mul_u32_u24 %s, 4160, %s" % (v(vU), v(vU)))
        e("s_mul_i32 s%d, s%d, 8320" % (sT0, sCHL))
        e("s_lshl_b32 s%d, s%d, 8" % (sT1, sHALF))
        e("s_add_u32 s%d, s%d, s%d" % (sT0, sT0, sT1))
        e("s_add_u32 s%d, s%d, %d" % (sT0, sT0, L_TS))
        e("v_add3_u32 %s, %s, %s, s%d" % (v(vB), v(vT), v(vU), sT0))
        for i in range(1, 4):
            e("v_add_u32 %s, %d, %s" % (v(vB + i), 1024 * i, v(vB)))
        items = []
        for rr in range(4):
            for q in range(8):
                base = 112 + 4 * (8 * rr + q)
                o = 128 * (q & 1) + 16 * rr
                for hh in range(2):
                    items.append("ds_read2_b32 %s, %s offset0:%d offset1:%d" % (a(base + 2 * hh, 2), v(vB + (q >> 1)), o + 2 * hh, o + 2 * hh + 1))
        return items

    def pre_signal(self):
        e = self.e
        if self.wtouch2:
            self.w_touch(0, "wt")
        self.t_build()
        titems = self.t_read()
        lab0, labj = self.newlabel("p0"), self.newlabel("pj")
        e("s_cmp_eq_u32 s%d, 0" % sWAVE)
        e("s_cbranch_scc1 %s" % lab0)
        save = list(self.vm)
        self.w0_own = self.w_stage_items(0)
        t = list(titems)
        npre = self.npre
        for it in self.w0_own[:npre]:
            it()
            for _ in range(64 // max(npre, 1)):
                e(t.pop(0))
        while t:
            e(t.pop(0))
        self.wait_vm("go")
        self.vm = list(save)
        e("s_branch %s" % labj)
        self.label(lab0)
        for line in titems:
            e(line)
        self.wait_vm("go")
        self.label(labj)

    def window1(self, vL16):
        e = self.e
        lab0, labj = self.newlabel("w0"), self.newlabel("wj")
        e("s_cmp_eq_u32 s%d, 0" % sWAVE)
        e("s_cbranch_scc1 %s" % lab0)
        if self.prefetch:
            vP = 59
            e("s_mul_i32 s%d, s2, 7168" % sT0)
            e("s_sub_u32 s%d, s%d, 1" % (sT1, sWAVE))
            e("s_mul_i32 s%d, s%d, %d" % (sT1, sT1, 19 * 128))
            e("s_add_u32 s%d, s%d, s%d" % (sT0, sT0, sT1))
            e("v_lshl_add_u32 %s, v1, 7, s%d" % (v(vP), sT0))
            e("s_mov_b64 exec, 0x7ffff")
            e("buffer_load_dword v252, %s, %s, 0 offen" % (v(vP), srd(SRD_WG)))
            e("buffer_load_dword v252, %s, %s, 0 offen offset:1024" % (v(vP), srd(SRD_WU)))
            e("buffer_load_dword v252, %s, %s, 0 offen" % (v(vP), srd(SRD_WD)))
            e("s_mov_b64 exec, -1")
        save = list(self.vm)
        if self.b0:
            e("s_barrier")
        for it in self.w0_own[self.npre:]:
            it()
        sPAN, sGST = 72, 73
        e("s_mov_b32 s%d, 0" % sPAN)
        e("s_lshl_b32 s%d, s%d, 1" % (sGST, sWAVE))
        e("s_sub_u32 s%d, s%d, 1" % (sGST, sGST))
        e("s_cmp_eq_u32 s%d, 1" % sWAVE)
        e("s_cselect_b32 s%d, 0, s%d" % (sGST, sGST))
        sh = self.w_stage_items(0, spanel=sPAN, ngroups=3, sgstart=sGST)
        for it in sh[:8]:
            it()
        lab3 = self.newlabel("w3")
        e("s_cmp_eq_u32 s%d, 1" % sWAVE)
        e("s_cbranch_scc0 %s" % lab3)
        for it in sh[8:]:
            it()
        self.label(lab3)
        self.vm = save
        e("s_waitcnt vmcnt(0) lgkmcnt(0)")
        self.stamp(21, wave=1)
        e("s_branch %s" % labj)
        self.label(lab0)
        vA, vTg, vTmp = 21, 22, 23
        e("s_lshr_b32 s%d, s2, 5" % sT0)
        e("s_lshl_b32 s%d, s%d, 3" % (sT0, sT0))
        e("s_and_b32 s%d, s2, 7" % sT1)
        e("s_add_u32 s%d, s%d, s%d" % (sT0, sT0, sT1))
        e("s_lshl_b32 s%d, s%d, 8" % (sT0, sT0))
        e("s_add_u32 s%d, s%d, %d" % (sT0, sT0, WS_CNT + 256 * C_S1))
        e("v_mov_b32 %s, s%d" % (v(vA), sT0))
        e("v_mov_b32 %s, 32" % v(vTg))
        if self.smem_poll:
            loop, done = self.newlabel("sp"), self.newlabel("spd")
            e("s_mov_b32 s%d, %d" % (sSPIN, SPIN_LIMIT))
            self.label(loop)
            e("s_load_dword s%d, s[%d:%d], s%d glc" % (sT1, SRD_WS, SRD_WS + 1, sT0))
            e("s_waitcnt lgkmcnt(0)")
            e("s_cmp_ge_u32 s%d, 32" % sT1)
            e("s_cbranch_scc1 %s" % done)
            e("s_sub_u32 s%d, s%d, 1" % (sSPIN, sSPIN))
            e("s_cmp_lg_u32 s%d, 0" % sSPIN)
            e("s_cbranch_scc1 %s" % loop)
            self.label(done)
        else:
            self.spin(vA, vTg, vTmp)
        self.stamp(4)
        e("s_lshl_b32 s%d, s2, 13" % sT0)
        if WS_KVT:
            e("s_add_u32 s%d, s%d, %d" % (sT0, sT0, WS_KVT))
        e("s_mov_b32 m0, %d" % L_X)
        e("s_nop 0")
        for i in range(4):
            e("buffer_load_dwordx4 %s, %s, s%d offen offset:%d sc1 lds" % (v(vL16), srd(SRD_WS), sT0, 1024 * i))
        e("s_add_u32 s%d, s%d, 4096" % (sT0, sT0))
        e("s_mov_b32 m0, %d" % (L_X + 4608))
        e("s_nop 0")
        for i in range(4):
            e("buffer_load_dwordx4 %s, %s, s%d offen offset:%d sc1 lds" % (v(vL16), srd(SRD_WS), sT0, 1024 * i))
        if self.b0:
            e("s_barrier")
        e("s_and_b32 s%d, s2, 7" % sT1)
        e("s_lshl_b32 s%d, s%d, 8" % (sT1, sT1))
        e("s_add_u32 s%d, s%d, %d" % (sT1, sT1, WS_CNT + 256 * C_SL1))
        e("v_mov_b32 %s, s%d" % (v(vA), sT1))
        e("v_add_u32 %s, %d, %s" % (v(vTmp), 256 * (C_FH1 - C_SL1), v(vA)))
        e("v_cmp_gt_u32 vcc, 32, v1")
        e("s_nop 1")
        e("v_cndmask_b32 %s, %s, %s, vcc" % (v(vA), v(vTmp), v(vA)))
        e("s_waitcnt vmcnt(0) lgkmcnt(0)")
        self.stamp(22)
        self.label(labj)
        self.vm = ["w0"]
        self.lg = []
        e("s_barrier")

    def phase_a1(self):
        e = self.e
        self.c("==== A1 ====")
        ACC = 32
        XF = [64, 96]
        QR, KVR, AR, BR = 128, 136, 144, 160
        LN, KD, QF = 176, 192, 208
        Y = 224
        vT, vU = 7, 4
        vL16 = 9
        e("v_lshlrev_b32 %s, 4, v1" % v(vL16))
        e("s_lshl_b32 s%d, s2, 1" % sT0)
        e("s_add_u32 s%d, s%d, s%d" % (sT0, sT0, sCHL))
        e("s_lshl_b32 s%d, s%d, 12" % (sT0, sT0))
        vTL = 5
        e("v_and_b32 %s, 15, v1" % v(vT))
        e("v_lshrrev_b32 %s, 4, v1" % v(vU))
        e("v_lshlrev_b32 %s, 2, %s" % (v(vU), v(vU)))
        e("v_lshl_add_u32 %s, %s, 4, %s" % (v(vTL), v(vT), v(vU)))
        e("s_lshl_b32 s%d, s%d, 10" % (sT1, sHALF))
        e("v_add_u32 %s, s%d, %s" % (v(vTL), sT1, v(vTL)))
        vQA, vSA = 6, 8
        e("s_add_u32 s%d, s%d, %d" % (sT2, sT0, WS_QT))
        e("v_lshl_add_u32 %s, %s, 1, s%d" % (v(vQA), v(vTL), sT2))
        e("v_lshlrev_b32 %s, 2, %s" % (v(vSA), v(vTL)))
        e("s_mov_b32 s%d, %d" % (sT4, WS_ST1))
        e("s_mov_b32 s%d, %d" % (sT5, WS_ST1 + 8192))
        vXB, vKVA, vEW, vER = 10, 11, 12, 13
        e("v_and_b32 %s, 15, v1" % v(vT))
        e("v_lshrrev_b32 %s, 4, v1" % v(vU))
        e("v_lshlrev_b32 %s, 4, %s" % (v(vU), v(vU)))
        e("v_lshlrev_b32 %s, 5, %s" % (v(vT), v(vT)))
        e("v_sub_u32 %s, %s, %s" % (v(vXB), v(vU), v(vT)))
        e("s_mul_i32 s%d, s%d, 4608" % (sT0, sCHL))
        e("s_lshl_b32 s%d, s%d, 8" % (sT1, sHALF))
        e("s_add_u32 s%d, s%d, s%d" % (sT1, sT1, sT0))
        e("s_add_u32 s%d, s%d, %d" % (sT1, sT1, L_X + 480))
        e("v_add_u32 %s, s%d, %s" % (v(vXB), sT1, v(vXB)))
        e("s_add_u32 s%d, s%d, %d" % (sT1, sT0, L_X + 4088 - 1536))
        e("v_lshlrev_b32 %s, 1, %s" % (v(vT), v(vTL)))
        e("v_sub_u32 %s, s%d, %s" % (v(vKVA), sT1, v(vT)))
        e("s_lshl_b32 s%d, s%d, 12" % (sT0, sWAVE))
        e("s_add_u32 s%d, s%d, %d" % (sT1, sT0, L_TS))
        e("v_add_u32 %s, s%d, %s" % (v(vEW), sT1, v(vL16)))
        e("s_xor_b32 s%d, s%d, 0x1000" % (sT0, sT0))
        e("s_add_u32 s%d, s%d, %d" % (sT1, sT0, L_TS))
        e("v_add_u32 %s, s%d, %s" % (v(vER), sT1, v(vL16)))
        vHO = 14
        vRow = 15
        e("v_lshrrev_b32 %s, 4, v1" % v(vRow))
        e("v_and_b32 %s, 15, v1" % v(vT))
        e("v_lshrrev_b32 %s, 1, %s" % (v(vU), v(vT)))
        e("v_and_b32 %s, 1, %s" % (v(vHO), v(vRow)))
        e("v_lshl_add_u32 %s, %s, 3, %s" % (v(vU), v(vHO), v(vU)))
        e("v_mul_u32_u24 %s, 28672, %s" % (v(vHO), v(vU)))
        e("v_and_b32 %s, 1, %s" % (v(vT), v(vT)))
        e("v_lshl_add_u32 %s, %s, 5, %s" % (v(vHO), v(vT), v(vHO)))
        e("v_lshrrev_b32 %s, 1, %s" % (v(vRow), v(vRow)))
        e("v_lshl_add_u32 %s, %s, 4, %s" % (v(vHO), v(vRow), v(vHO)))
        e("s_lshl_b32 s%d, s2, 1" % sT0)
        e("s_add_u32 s%d, s%d, s%d" % (sT0, sT0, sCHL))
        e("s_lshl_b32 s%d, s%d, 6" % (sT0, sT0))
        e("s_mul_i32 s%d, s%d, %d" % (sT1, sHALF, 32 * 28672))
        e("s_add_u32 s%d, s%d, s%d" % (sT0, sT0, sT1))
        e("s_add_u32 s%d, s%d, %d" % (sT6, sT0, WS_HB))
        e("s_add_u32 s%d, s%d, %d" % (sT7, sT6, 16 * 28672))
        vABR = 16
        e("v_lshl_add_u32 %s, %s, 2, 0" % (v(vABR), v(vTL)))
        e("v_add_u32 %s, %d, %s" % (v(vABR), L_EX, v(vABR)))
        self.window1(vL16)
        self.stamp(5)

        def xread(rr):
            for m in range(8):
                self.lds("ds_read_b128 %s, %s offset:%d" % (v(XF[rr & 1] + 4 * m, 4), v(vXB), 512 * (7 - m) + 64 * rr), "x%d" % rr)

        F = [[], [], [], []]

        def pair(lst, items):
            for i in range(0, len(items), 2):
                lst.append(items[i:i + 2])
        wr = [("lds", x, "wr") for x in self.w_stage_read_items(0, vWRD, vWRD + 1)]
        pair(F[0], wr)
        w1 = self.w_stage_items(1)
        NW1 = self.nw1
        self.w1_rest = w1[NW1:]
        def stat_dma(i):
            if i == 0:
                e("s_lshl_b32 s%d, s%d, 12" % (sT4, sWAVE))
                e("s_add_u32 m0, s%d, %d" % (sT4, L_EX))
                e("s_add_u32 s%d, s%d, %d" % (sT4, sT4, WS_ST1))
            self.vmem("buffer_load_dwordx4 %s, %s, s%d offen offset:%d sc1 lds" % (v(vL16), srd(SRD_WS), sT4, 1024 * i), "stat")
        kvq = []
        for cc in range(4):
            kvq.append([("lds", "ds_read_b64 %s, %s offset:%d" % (v(KVR + 2 * cc, 2), v(vKVA), 512 * (3 - cc)), "kv"),
                        ("vm", "buffer_load_dwordx2 %s, %s, %s, 0 offen offset:%d sc1" % (v(QR + 2 * cc, 2), v(vQA), srd(SRD_WS), 512 * cc), "q")])
        abl = []
        for cc in range(4):
            abl.append([("lds", "ds_read_b128 %s, %s offset:%d" % (v(AR + 4 * cc, 4), v(vABR), 1024 * cc), "ab"),
                        ("lds", "ds_read_b128 %s, %s offset:%d" % (v(BR + 4 * cc, 4), v(vABR), 8192 + 1024 * cc), "ab")])
        it = []
        for cc in range(4):
            for i in range(4):
                src = KVR + 2 * cc + (1 - (i >> 1))
                if i & 1:
                    it.append(("v", "v_lshlrev_b32 %s, 16, %s" % (v(KD + 4 * cc + i), v(src))))
                else:
                    it.append(("v", "v_and_b32 %s, 0xffff0000, %s" % (v(KD + 4 * cc + i), v(src))))
        unp = [[("waitlg", "kv"), it[0]]] + [[x] for x in it[1:]]
        km = [[("v", "v_mul_f32 %s, s%d, %s" % (v(KD + x), sD, v(KD + x)))] for x in range(16)]
        qf = []
        for cc in range(4):
            for i in range(4):
                src = QR + 2 * cc + (i >> 1)
                if i & 1:
                    qf.append(("v", "v_and_b32 %s, 0xffff0000, %s" % (v(QF + 4 * cc + i), v(src))))
                else:
                    qf.append(("v", "v_lshlrev_b32 %s, 16, %s" % (v(QF + 4 * cc + i), v(src))))
        qf = [[("waitvm", "q"), qf[0]]] + [[x] for x in qf[1:]]
        ln = [("v", "v_fma_f32 %s, %s, %s, %s" % (v(LN + x), v(QF + x), v(AR + x), v(BR + x))) for x in range(16)]
        ln = [[("waitlg", "ab"), ln[0]]] + [[x] for x in ln[1:]]
        plan = {1: (28, 8, kvq + unp[:16]), 2: (28, 8, km + qf[:4]), 3: (36, 12, abl + qf[4:] + ln)}
        k = 0
        for rnd_ in (1, 2, 3):
            n, nw, items = plan[rnd_]
            items = list(items)
            ent = [[] for _ in range(n)]
            first = 4 if rnd_ == 1 else (1 if rnd_ == 2 else 0)
            wpos = [first + (j * (n - first - 1)) // nw for j in range(nw)]
            if rnd_ == self.stat_round:
                ent[0].append(("fn", lambda: [stat_dma(i) for i in range(4)]))
            for j in wpos:
                if k == 0:
                    ent[j].append(("waitlg", "wr"))
                ent[j].append(("fn", w1[k]))
                k += 1
            free = [j for j in range(n) if not ent[j]]
            extra = len(items) - len(free)
            slots = sorted(free + wpos[len(wpos) - max(extra, 0):]) if extra > 0 else free
            assert len(items) <= len(slots), (rnd_, len(items), len(slots))
            for j, itm in zip(slots, items):
                ent[j] += itm
            F[rnd_] = ent
        assert k == NW1

        def run(entry):
            for it in entry:
                if it[0] == "v":
                    e(it[1])
                elif it[0] == "lds":
                    self.lds(it[1], it[2])
                elif it[0] == "vm":
                    self.vmem(it[1], it[2])
                elif it[0] == "fn":
                    it[1]()
                elif it[0] == "waitvm":
                    self.wait_vm(it[1])
                elif it[0] == "waitlg":
                    self.wait_lg(it[1])

        xread(0)
        for rr in range(4):
            if rr == self.stat_round - 1:
                lab = self.newlabel("sl")
                e("s_cmp_eq_u32 s%d, 0" % sWAVE)
                e("s_cbranch_scc0 %s" % lab)
                e("buffer_load_dword v23, v21, %s, 0 offen sc1" % srd(SRD_WS))
                self.label(lab)
                self.vm = ["sl@0"]
            if rr == self.stat_round:
                self.stamp(26)
                self.wait_vm("sl@0")
                loop, done = self.newlabel("sll"), self.newlabel("sld")
                e("s_cmp_eq_u32 s%d, 0" % sWAVE)
                e("s_cbranch_scc0 %s" % done)
                e("s_mov_b32 s%d, %d" % (sSPIN, SPIN_LIMIT))
                self.label(loop)
                e("v_cmp_lt_u32 vcc, v23, v22")
                e("s_nop 4")
                e("s_cbranch_vccz %s" % done)
                e("buffer_load_dword v23, v21, %s, 0 offen sc1" % srd(SRD_WS))
                e("s_waitcnt vmcnt(0)")
                e("s_sub_u32 s%d, s%d, 1" % (sSPIN, sSPIN))
                e("s_cmp_lg_u32 s%d, 0" % sSPIN)
                e("s_cbranch_scc1 %s" % loop)
                self.label(done)
                e("s_barrier")
            if rr == self.stat_round + 1:
                self.stamp(27)
                self.wait_vm("stat")
                e("s_barrier")
            if rr:
                self.stamp(22 + rr)
            self.wait_lg("x%d" % rr)
            cnt = 0
            fl = list(F[rr])
            for q in range(8):
                for c in range(q, 8):
                    m = c - q
                    srcc = "0" if (rr == 0 and q == 0) else v(ACC + 4 * c, 4)
                    e("v_mfma_f32_16x16x32_bf16 %s, %s, %s, %s" % (v(ACC + 4 * c, 4), a(112 + 4 * (8 * rr + q), 4), v(XF[rr & 1] + 4 * m, 4), srcc))
                    cnt += 1
                    if rr < 3 and cnt <= 8:
                        m2 = cnt - 1
                        self.lds("ds_read_b128 %s, %s offset:%d" % (v(XF[(rr + 1) & 1] + 4 * m2, 4), v(vXB), 512 * (7 - m2) + 64 * (rr + 1)), "x%d" % (rr + 1))
                    elif fl:
                        run(fl.pop(0))
            for entry in fl:
                run(entry)
        self.stamp(6)
        e("s_nop 7")
        lab1, lab2 = self.newlabel("h1"), self.newlabel("hj")
        TMP = XF[0]
        e("s_cmp_eq_u32 s%d, 0" % sHALF)
        e("s_cbranch_scc0 %s" % lab1)
        for cc in range(4):
            e("ds_write_b128 %s, %s offset:%d" % (v(vEW), v(ACC + 16 + 4 * cc, 4), 1024 * cc))
        for x in range(16):
            e("v_add_f32 %s, %s, %s" % (v(Y + x), v(ACC + x), v(KD + x)))
        e("s_branch %s" % lab2)
        self.label(lab1)
        for cc in range(4):
            e("ds_write_b128 %s, %s offset:%d" % (v(vEW), v(ACC + 4 * cc, 4), 1024 * cc))
        for x in range(16):
            e("v_add_f32 %s, %s, %s" % (v(Y + x), v(ACC + 16 + x), v(KD + x)))
        self.label(lab2)
        e("s_waitcnt lgkmcnt(0)")
        self.lg = []
        e("s_barrier")
        for cc in range(4):
            self.lds("ds_read_b128 %s, %s offset:%d" % (v(TMP + 4 * cc, 4), v(vER), 1024 * cc), "ex%d" % cc)
        P = XF[0] + 16
        for cc in range(4):
            self.wait_lg("ex%d" % cc)
            for i in range(4):
                x = 4 * cc + i
                e("v_add_f32 %s, %s, %s" % (v(Y + x), v(Y + x), v(TMP + x)))
            for i in range(4):
                x = 4 * cc + i
                e("v_fma_f32 %s, %s, %s, %s" % (v(Y + x), v(LN + x), v(Y + x), v(QF + x)))
            e("v_cvt_pk_bf16_f32 %s, %s, %s" % (v(P + 2 * cc), v(Y + 4 * cc), v(Y + 4 * cc + 1)))
            e("v_cvt_pk_bf16_f32 %s, %s, %s" % (v(P + 2 * cc + 1), v(Y + 4 * cc + 2), v(Y + 4 * cc + 3)))
            if cc & 1:
                b = P + 2 * (cc - 1)
                e("s_nop 1")
                e("v_permlane16_swap_b32 %s, %s" % (v(b), v(b + 2)))
                e("v_permlane16_swap_b32 %s, %s" % (v(b + 1), v(b + 3)))
                self.vmem("buffer_store_dwordx4 %s, %s, %s, s%d offen sc1" % (v(b, 4), v(vHO), srd(SRD_WS), sT6 if cc == 1 else sT7), "hst")
        self.stamp(7)

    def helper(self):
        e = self.e
        self.label("L_helper")
        self.in_helper = True
        self.vm = []
        self.lg = []
        self.c("==== helper ====")
        sH = sRB
        e("s_sub_u32 s%d, s2, 224" % sH)
        e("s_waitcnt lgkmcnt(0)")
        self.srds(["q", "rest"])
        if self.stamps:
            e("v_mov_b32 v93, 0")
        vT, vU, vZ = 7, 4, 5
        e("v_mov_b32 %s, 0" % v(vZ))
        lab = self.newlabel("hz0")
        e("s_cmp_eq_u32 s%d, 0" % sH)
        e("s_cbranch_scc0 %s" % lab)
        e("s_cmp_eq_u32 s%d, 0" % sWAVE)
        e("s_cbranch_scc0 %s" % lab)
        e("v_lshlrev_b32 %s, 8, v1" % v(vT))
        e("v_add_u32 %s, %d, %s" % (v(vT), WS_CNT, v(vT)))
        e("buffer_store_dword %s, %s, %s, 0 offen sc1" % (v(vZ), v(vT), srd(SRD_WS)))
        e("v_add_u32 %s, %d, %s" % (v(vT), 64 * 256, v(vT)))
        e("s_mov_b64 exec, 0xffff")
        e("buffer_store_dword %s, %s, %s, 0 offen sc1" % (v(vZ), v(vT), srd(SRD_WS)))
        e("s_mov_b64 exec, -1")
        self.label(lab)
        FR = 32
        vQ = 6
        e("s_lshl_b32 s%d, s%d, 6" % (sT0, sH))
        e("s_lshl_b32 s%d, s%d, 4" % (sT1, sWAVE))
        e("s_add_u32 s%d, s%d, s%d" % (sT0, sT0, sT1))
        e("v_and_b32 %s, 15, v1" % v(vT))
        e("v_add_u32 %s, s%d, %s" % (v(8), sT0, v(vT)))
        e("v_mul_u32_u24 %s, 896, %s" % (v(vQ), v(8)))
        e("v_lshrrev_b32 %s, 4, v1" % v(vU))
        e("v_lshl_add_u32 %s, %s, 4, %s" % (v(vQ), v(vU), v(vQ)))
        for s in range(14):
            self.vmem("buffer_load_dwordx4 %s, %s, %s, 0 offen offset:%d" % (v(FR + 4 * s, 4), v(vQ), srd(SRD_Q), 64 * s), "q")
        lab = self.newlabel("hz")
        e("s_cmp_eq_u32 s%d, 0" % sWAVE)
        e("s_cbranch_scc0 %s" % lab)
        e("s_lshl_b32 s%d, s%d, 8" % (sT0, sH))
        e("s_add_u32 s%d, s%d, %d" % (sT0, sT0, WS_ST2))
        e("v_lshl_add_u32 %s, v1, 2, s%d" % (v(vT), sT0))
        e("buffer_store_dword %s, %s, %s, 0 offen sc1" % (v(vZ), v(vT), srd(SRD_WS)))
        self.label(lab)
        lab = self.newlabel("hc")
        e("s_cmp_eq_u32 s%d, 0" % sH)
        e("s_cbranch_scc0 %s" % lab)
        e("s_cmp_eq_u32 s%d, 0" % sWAVE)
        e("s_cbranch_scc0 %s" % lab)
        e("s_waitcnt vmcnt(15)")
        e("v_mov_b32 %s, 1" % v(vU))
        e("s_mov_b64 exec, 1")
        e("buffer_store_dword %s, %s, %s, 0 offen offset:%d sc1" % (v(vU), v(vZ), srd(SRD_DBG), self.go_off))
        e("s_mov_b64 exec, -1")
        self.label(lab)
        if self.hpf:
            vP = 94
            e("s_lshl_b32 s%d, s%d, 2" % (sT0, sH))
            e("s_add_u32 s%d, s%d, s%d" % (sT0, sT0, sWAVE))
            e("s_mul_i32 s%d, s%d, %d" % (sT0, sT0, 49 * 128))
            e("v_min_u32 %s, 48, v1" % v(vP))
            e("v_lshl_add_u32 %s, %s, 7, s%d" % (v(vP), v(vP), sT0))
            self.srds(["w"])
            self.vmem("buffer_load_dword v95, %s, %s, 0 offen" % (v(vP), srd(SRD_WG)), "pf")
            self.vmem("buffer_load_dword v95, %s, %s, 0 offen offset:1024" % (v(vP), srd(SRD_WU)), "pf")
        ONES = 16
        for i in range(4):
            e("v_mov_b32 %s, 0x3f803f80" % v(ONES + i))
        self.wait_vm("q")
        GR, SM = 20, 24
        self.stats_mfma(lambda s: FR + 4 * s, ONES, GR, SM, None)
        A_, B_ = 28, 29
        self.stats_finish(GR, SM, A_, B_, None)
        e("v_lshlrev_b32 %s, 2, %s" % (v(vT), v(8)))
        e("s_mov_b32 s%d, %d" % (sT4, WS_ST1))
        e("s_mov_b32 s%d, %d" % (sT5, WS_ST1 + 8192))
        e("s_mov_b32 exec_lo, 0x00f0000f")
        e("s_mov_b32 exec_hi, 0xf0000f00")
        self.vmem("buffer_store_dword %s, %s, %s, s%d offen sc1" % (v(A_), v(vT), srd(SRD_WS), sT4), "st")
        self.vmem("buffer_store_dword %s, %s, %s, s%d offen sc1" % (v(B_), v(vT), srd(SRD_WS), sT5), "st")
        e("s_mov_b64 exec, -1")
        vGO = 30
        loop, done = self.newlabel("go"), self.newlabel("god")
        e("s_mov_b32 s%d, %d" % (sSPIN, SPIN_LIMIT))
        self.label(loop)
        e("buffer_load_dword %s, %s, %s, 0 offen offset:%d sc1" % (v(vGO), v(vZ), srd(SRD_DBG), self.go_off))
        e("s_waitcnt vmcnt(0)")
        self.vm = []
        e("v_cmp_eq_u32 vcc, 0, %s" % v(vGO))
        e("s_nop 4")
        e("s_cbranch_vccz %s" % done)
        e("s_sub_u32 s%d, s%d, 1" % (sSPIN, sSPIN))
        e("s_cmp_lg_u32 s%d, 0" % sSPIN)
        e("s_cbranch_scc1 %s" % loop)
        self.label(done)
        e("s_barrier")
        e("v_lshlrev_b32 %s, 8, v1" % v(vT))
        e("v_add_u32 %s, %d, %s" % (v(vT), WS_CNT + 256 * C_SL1, v(vT)))
        e("v_mov_b32 %s, 1" % v(vU))
        self.signal(vT, vU, 8)
        self.stamp(3)
        if self.stop in ("a0", "a1"):
            self.wait_all()
            e("s_endpgm")
            return
        MK = 40
        for i in range(4):
            e("v_mov_b32 %s, -1" % v(MK + i))
        e("v_lshlrev_b32 v9, 4, v1")
        e("s_mul_i32 s%d, s%d, 57344" % (sT0, sH))
        e("s_mul_i32 s%d, s%d, 14336" % (sT1, sWAVE))
        e("s_add_u32 s%d, s%d, s%d" % (sT0, sT0, sT1))
        e("s_add_u32 s%d, s%d, %d" % (sT0, sT0, WS_HB))
        for grp in range(4):
            for i in range(4 if grp < 3 else 2):
                e("buffer_store_dwordx4 %s, v9, %s, s%d offen offset:%d sc1" % (v(MK, 4), srd(SRD_WS), sT0, 1024 * i))
            if grp != 3:
                e("s_add_u32 s%d, s%d, 4096" % (sT0, sT0))
        e("s_waitcnt vmcnt(0)")
        e("s_barrier")
        e("v_lshlrev_b32 %s, 8, v1" % v(vT))
        e("v_add_u32 %s, %d, %s" % (v(vT), WS_CNT + 256 * C_FH1, v(vT)))
        e("v_mov_b32 %s, 1" % v(vU))
        self.signal(vT, vU, 8)
        e("s_mul_i32 s%d, s%d, 229376" % (sT0, sH))
        e("s_mul_i32 s%d, s%d, 57344" % (sT1, sWAVE))
        e("s_add_u32 s%d, s%d, s%d" % (sT0, sT0, sT1))
        e("s_add_u32 s%d, s%d, %d" % (sT0, sT0, WS_HF))
        for grp in range(14):
            for i in range(4):
                e("buffer_store_dwordx4 %s, v9, %s, s%d offen offset:%d sc1" % (v(MK, 4), srd(SRD_WS), sT0, 1024 * i))
            if grp != 13:
                e("s_add_u32 s%d, s%d, 4096" % (sT0, sT0))
                e("s_waitcnt vmcnt(%d)" % self.fill_depth)
        e("s_waitcnt vmcnt(0)")
        e("s_barrier")
        e("v_lshlrev_b32 %s, 8, v1" % v(vT))
        e("v_add_u32 %s, %d, %s" % (v(vT), WS_CNT + 256 * C_FH, v(vT)))
        e("v_mov_b32 %s, 1" % v(vU))
        self.signal(vT, vU, 8)
        self.stamp(4)
        e("s_and_b32 s%d, s2, 7" % sT0)
        e("s_lshl_b32 s%d, s%d, 8" % (sT0, sT0))
        e("s_add_u32 s%d, s%d, %d" % (sT0, sT0, WS_CNT + 256 * C_FH1))
        e("v_mov_b32 %s, s%d" % (v(vT), sT0))
        e("v_mov_b32 %s, 32" % v(vU))
        self.poll(vT, vU, vGO)
        self.stamp(8)
        e("s_lshr_b32 s%d, s%d, 1" % (sT0, sH))
        e("s_lshl_b32 s%d, s%d, 2" % (sT0, sT0))
        e("s_and_b32 s%d, s%d, 1" % (sT1, sH))
        e("s_add_u32 s%d, s%d, s%d" % (sT0, sT0, sT1))
        sTB = 51
        e("s_mov_b32 s%d, s%d" % (sTB, sT0))
        vL16, vCK = 9, 92
        e("v_lshlrev_b32 %s, 4, v1" % v(vL16))
        e("s_mul_i32 s%d, s%d, 7168" % (sT3, sWAVE))
        e("v_add_u32 %s, s%d, %s" % (v(vCK), sT3, v(vL16)))
        vA, vPX = 10, 14
        e("v_lshrrev_b32 %s, 4, v1" % v(vT))
        e("v_bfe_u32 %s, v1, 2, 2" % v(vU))
        e("v_lshl_add_u32 %s, %s, 3, %s" % (v(vT), v(vT), v(vU)))
        e("v_lshlrev_b32 %s, 6, %s" % (v(vT), v(vT)))
        e("v_and_b32 %s, 3, v1" % v(vU))
        e("v_lshl_add_u32 %s, %s, 3, %s" % (v(vA), v(vU), v(vT)))
        e("s_lshr_b32 s%d, s%d, 1" % (sT4, sWAVE))
        e("s_mul_i32 s%d, s%d, %d" % (sT4, sT4, 7 * 2048))
        e("s_and_b32 s%d, s%d, 1" % (sT5, sWAVE))
        e("s_lshl_b32 s%d, s%d, 5" % (sT5, sT5))
        e("s_add_u32 s%d, s%d, s%d" % (sT4, sT4, sT5))
        e("v_add_u32 %s, s%d, %s" % (v(vA), sT4, v(vA)))
        e("s_lshl_b32 s%d, s%d, 9" % (sT4, sWAVE))
        e("s_add_u32 s%d, s%d, 57344" % (sT4, sT4))
        e("v_lshl_add_u32 %s, v1, 3, s%d" % (v(vPX), sT4))
        vRW = 15
        e("s_lshl_b32 s%d, s%d, 5" % (sT4, sT0))
        e("s_and_b32 s%d, s%d, 1" % (sT5, sWAVE))
        e("s_lshl_b32 s%d, s%d, 4" % (sT5, sT5))
        e("s_add_u32 s%d, s%d, s%d" % (sT4, sT4, sT5))
        e("s_lshl_b32 s%d, s%d, 2" % (sT4, sT4))
        e("s_add_u32 s%d, s%d, %d" % (sT4, sT4, WS_ST2))
        e("v_and_b32 %s, 15, v1" % v(vT))
        e("v_lshl_add_u32 %s, %s, 2, s%d" % (v(vRW), v(vT), sT4))
        PK = 28
        CKR = 64
        for blk in range(2):
            self.hb_refetch(sTB, 2 * blk, blk, vL16)
            e("s_waitcnt vmcnt(0)")
            for ln in self.mark_reads(7, vCK, 28672 * blk, CKR, None):
                e(ln)
            e("s_waitcnt lgkmcnt(0)")
            for ln in self.mark_fold(7, CKR):
                e(ln)
            self.mark_branch(7, vCK, 28672 * blk, CKR, lambda blk=blk: self.hb_refetch(sTB, 2 * blk, blk, vL16))
            e("s_barrier")
            for s_ in range(7):
                for ee in range(2):
                    self.lds("ds_read_b64_tr_b16 %s, %s offset:%d" % (v(FR + 4 * s_ + 2 * ee, 2), v(vA), 28672 * blk + 2048 * s_ + 256 * ee), "f%d" % s_)
            self.stats_mfma(lambda s_: FR + 4 * s_, ONES, GR, SM, lambda s_: self.wait_lg("f%d" % s_), n=7)
            self.stats_diag(GR, 11)
            e("v_mov_b32 %s, %s" % (v(12), v(SM)))
            e("v_mov_b32 v60, v11")
            e("v_mov_b32 v61, v12")
            self.lds("ds_write_b64 %s, v[60:61] offset:%d" % (v(vPX), 2048 * blk), "px")
            self.wait_lg0()
            e("s_barrier")
            e("v_xor_b32 %s, 1024, %s" % (v(13), v(vPX)))
            self.lds("ds_read_b64 v[62:63], %s offset:%d" % (v(13), 2048 * blk), "px")
            self.wait_lg0()
            e("v_add_f32 v11, v60, v62")
            e("v_add_f32 %s, v61, v63" % v(SM))
            self.stats_finish(None, SM, None, None, PK)
            lab = self.newlabel("hs")
            e("s_cmp_lt_u32 s%d, 2" % sWAVE)
            e("s_cbranch_scc0 %s" % lab)
            e("s_mov_b32 exec_lo, 0x00f0000f")
            e("s_mov_b32 exec_hi, 0xf0000f00")
            e("buffer_store_dword %s, %s, %s, 0 offen offset:%d sc1" % (v(PK), v(vRW), srd(SRD_WS), 256 * blk))
            e("s_mov_b64 exec, -1")
            self.label(lab)
        self.stamp(9)
        lab = self.newlabel("clr")
        e("s_cmp_eq_u32 s%d, 0" % sH)
        e("s_cbranch_scc0 %s" % lab)
        e("s_cmp_eq_u32 s%d, 0" % sWAVE)
        e("s_cbranch_scc0 %s" % lab)
        e("v_mov_b32 %s, 0" % v(vZ))
        e("s_mov_b64 exec, 1")
        e("buffer_store_dword %s, %s, %s, 0 offen offset:%d sc1" % (v(vZ), v(vZ), srd(SRD_DBG), self.go_off))
        e("s_mov_b64 exec, -1")
        self.label(lab)
        self.stamp_dump()
        self.wait_all()
        e("s_endpgm")

    def stats_mfma(self, frag, ONES, GR, SM, pre, n=14):
        e = self.e
        for s in range(n):
            if pre:
                pre(s)
            f = frag(s)
            e("v_mfma_f32_16x16x32_bf16 %s, %s, %s, %s" % (v(GR, 4), v(f, 4), v(f, 4), "0" if s == 0 else v(GR, 4)))
            e("v_mfma_f32_16x16x32_bf16 %s, %s, %s, %s" % (v(SM, 4), v(ONES, 4), v(f, 4), "0" if s == 0 else v(SM, 4)))
        e("s_nop 7")

    def stats_diag(self, GR, t0):
        e = self.e
        e("s_mov_b32 s%d, 0x22222222" % sT6)
        e("s_mov_b32 s%d, 0x22222222" % sT7)
        e("v_cndmask_b32 %s, %s, %s, s[%d:%d]" % (v(t0), v(GR), v(GR + 1), sT6, sT7))
        e("s_mov_b32 s%d, 0x44444444" % sT6)
        e("s_mov_b32 s%d, 0x44444444" % sT7)
        e("v_cndmask_b32 %s, %s, %s, s[%d:%d]" % (v(t0), v(t0), v(GR + 2), sT6, sT7))
        e("s_mov_b32 s%d, 0x88888888" % sT6)
        e("s_mov_b32 s%d, 0x88888888" % sT7)
        e("v_cndmask_b32 %s, %s, %s, s[%d:%d]" % (v(t0), v(t0), v(GR + 3), sT6, sT7))

    def stats_finish(self, GR, SM, A_, B_, PK):
        e = self.e
        t0, t1, t2 = 11, 12, 13
        if GR is not None:
            self.stats_diag(GR, t0)
        e("s_mov_b32 s%d, 0x3b124925" % sT6)
        e("v_mul_f32 %s, s%d, %s" % (v(t1), sT6, v(SM)))
        e("v_mul_f32 %s, s%d, %s" % (v(t0), sT6, v(t0)))
        e("v_fma_f32 %s, -%s, %s, %s" % (v(t0), v(t1), v(t1), v(t0)))
        e("v_max_f32 %s, 0, %s" % (v(t0), v(t0)))
        e("v_cvt_pk_bf16_f32 %s, %s, %s" % (v(t0), v(t0), v(t1)))
        e("v_and_b32 %s, 0xffff0000, %s" % (v(t1), v(t0)))
        e("v_lshlrev_b32 %s, 16, %s" % (v(t0), v(t0)))
        e("v_add_f32 %s, 0x3727c5ac, %s" % (v(t0), v(t0)))
        e("v_cvt_pk_bf16_f32 %s, %s, %s" % (v(t0), v(t0), v(t0)))
        e("v_lshlrev_b32 %s, 16, %s" % (v(t0), v(t0)))
        e("v_sqrt_f32 %s, %s" % (v(t0), v(t0)))
        e("s_nop 0")
        e("v_cvt_pk_bf16_f32 %s, %s, %s" % (v(t0), v(t0), v(t0)))
        if PK is not None:
            e("v_lshrrev_b32 %s, 16, %s" % (v(t2), v(t1)))
            e("v_and_b32 %s, 0xffff0000, %s" % (v(t0), v(t0)))
            e("v_or_b32 %s, %s, %s" % (v(PK), v(t0), v(t2)))
        else:
            e("v_lshlrev_b32 %s, 16, %s" % (v(t0), v(t0)))
            e("v_rcp_f32 %s, %s" % (v(A_), v(t0)))
            e("s_nop 0")
            e("v_mul_f32 %s, -%s, %s" % (v(B_), v(t1), v(A_)))

    def decode_bc(self):
        e = self.e
        e("s_and_b32 s%d, s2, 7" % sT0)
        e("s_lshr_b32 s%d, s2, 3" % sT1)
        e("s_mul_i32 s%d, s%d, 37" % (sT2, sT1))
        e("s_lshr_b32 s%d, s%d, 8" % (sT2, sT2))
        e("s_mul_i32 s%d, s%d, 7" % (sT3, sT2))
        e("s_sub_u32 s%d, s%d, s%d" % (sT3, sT1, sT3))
        e("s_lshr_b32 s%d, s%d, 1" % (sT4, sT0))
        e("s_lshl_b32 s%d, s%d, 2" % (sT4, sT4))
        e("s_add_u32 s%d, s%d, s%d" % (sBI, sT4, sT2))
        e("s_and_b32 s%d, s%d, 1" % (sT4, sT0))
        e("s_mul_i32 s%d, s%d, 7" % (sT4, sT4))
        e("s_add_u32 s%d, s%d, s%d" % (sBJ, sT4, sT3))
        e("s_lshl_b32 s%d, s%d, 2" % (sT4, sT0))
        e("s_add_u32 s%d, s%d, s%d" % (sT4, sT4, sT2))
        e("s_lshr_b32 s%d, s%d, 1" % (sCI, sT4))
        e("s_and_b32 s%d, s%d, 1" % (sCS, sT4))
        e("s_mov_b32 s%d, s%d" % (sCJ, sT3))

    def main_path(self):
        e = self.e
        self.phase_a0()
        self.w_stage_setup()
        self.w_stage_read_setup(vWRD, vWRD + 1)
        self.pre_signal()
        vGO, vZERO = 23, 58
        loop, done = self.newlabel("go"), self.newlabel("god")
        e("s_mov_b32 s%d, %d" % (sSPIN, SPIN_LIMIT))
        self.label(loop)
        e("v_cmp_eq_u32 vcc, 0, %s" % v(vGO))
        e("s_nop 4")
        e("s_cbranch_vccz %s" % done)
        e("buffer_load_dword %s, %s, %s, 0 offen offset:%d sc1" % (v(vGO), v(vZERO), srd(SRD_DBG), self.go_off))
        e("s_waitcnt vmcnt(0)")
        e("s_sub_u32 s%d, s%d, 1" % (sSPIN, sSPIN))
        e("s_cmp_lg_u32 s%d, 0" % sSPIN)
        e("s_cbranch_scc1 %s" % loop)
        self.label(done)
        e("s_barrier")
        vA, vOne = 5, 6
        e("s_lshl_b32 s%d, s%d, 11" % (sT0, sG0))
        e("s_add_u32 s%d, s%d, %d" % (sT0, sT0, WS_CNT + 256 * C_S1))
        e("v_lshl_add_u32 %s, v1, 8, s%d" % (v(vA), sT0))
        e("v_mov_b32 %s, 1" % v(vOne))
        self.signal(vA, vOne, 8)
        self.stamp(3)
        if self.endif_stop("a0"):
            return False
        self.phase_a1()
        ONES, CA = 108, 64
        for i in range(4):
            e("v_mov_b32 %s, 0x3f803f80" % v(ONES + i))
        self.wait_vm("w1")
        self.stamp(28)
        e("s_nop 1")
        rd = self.w_stage_read_items(1, vWRD, vWRD + 1)
        for s_ in range(14):
            for ft in range(2):
                e("v_mfma_f32_32x32x16_bf16 %s, %s, %s, %s" % (v(CA + 16 * ft, 16), v(ONES, 4), a(8 * s_ + 4 * ft, 4), "0" if s_ == 0 else v(CA + 16 * ft, 16)))
                for _ in range(2):
                    self.lds(rd.pop(0), "wr")
        self.stamp(8)
        if self.endif_stop("a1"):
            return False
        return True

    def build(self):
        self.prologue()
        cont = self.main_path()
        if cont:
            from gen_bc import phase_b, phase_c
            phase_b(self)
            if not self.endif_stop("b"):
                phase_c(self)
                self.stamp(20)
                self.stamp_dump()
                self.wait_all()
                if self.spin_us:
                    self.e("L_diag:")
                    self.e("s_memrealtime s[96:97]")
                    self.e("s_waitcnt lgkmcnt(0)")
                    self.e("s_sub_u32 s96, s96, s100")
                    self.e("s_cmp_lt_u32 s96, %d" % (self.spin_us * 100))
                    self.e("s_cbranch_scc1 L_diag")
                self.e("s_endpgm")
        self.helper()
        if getattr(self, "redo_code", None):
            self.redo_code()
        for code in self.ool:
            code()
        self.label("L_exit")
        self.e("s_waitcnt vmcnt(0) lgkmcnt(0)")
        self.label("L_end")
        self.e("s_endpgm")
        self.label("L_codeend")
        body = self.text()
        hdr = HEADER
        hdr += "; @launch grid=(256,1,1) block=(256,1,1) lds=%d\n" % LDS_BYTES
        hdr += '.amdgcn_target "amdgcn-amd-amdhsa--gfx950"\n.text\n.globl %s\n.p2align 8\n.type %s,@function\n%s:\n' % (NAME, NAME, NAME)
        tail = """
.section .rodata,"a"
.p2align 6
.amdhsa_kernel %s
  .amdhsa_next_free_vgpr 512
  .amdhsa_next_free_sgpr 102
  .amdhsa_accum_offset 256
  .amdhsa_group_segment_fixed_size 0
  .amdhsa_kernarg_size 104
  .amdhsa_user_sgpr_count 2
  .amdhsa_user_sgpr_kernarg_segment_ptr 1
  .amdhsa_system_sgpr_workgroup_id_x 1
.end_amdhsa_kernel
""" % NAME
        return hdr + body + tail, body


HEADER = """; Fused preLN -> H3 (shift conv, k*v, long causal conv, gate) -> preLN -> GLU FFN, one persistent launch.
; Kernarg: q,k,v,shift_k,ssm_k,ssm_D,x(unused),w_gate,w_up,w_down,out,debug,ws (generated by gen/gen.py)
"""

if __name__ == "__main__":
    import argparse
    ap = argparse.ArgumentParser()
    ap.add_argument("--stop", default=None)
    ap.add_argument("--stamps", action="store_true")
    ap.add_argument("--dbgst", action="store_true")
    ap.add_argument("--spin", type=int, default=0)
    ap.add_argument("--exp", default="")
    ap.add_argument("--tmo", action="store_true")
    ap.add_argument("--hpf", type=int, default=0)
    ap.add_argument("--b0", action="store_true")
    ap.add_argument("--sleep", type=int, default=1)
    ap.add_argument("--wtouch", action="store_true")
    ap.add_argument("--wtouch2", action="store_true")
    ap.add_argument("--smem-poll", action="store_true")
    ap.add_argument("--fill", type=int, default=8)
    ap.add_argument("--npre", type=int, default=8)
    ap.add_argument("--touch", action="store_true")
    ap.add_argument("--no-tlbwarm", action="store_true")
    ap.add_argument("--no-prefetch", action="store_true")
    ap.add_argument("-o", default="out.s")
    args = ap.parse_args()
    g = Gen(stop=args.stop, stamps=args.stamps, tlbwarm=not args.no_tlbwarm, prefetch=not args.no_prefetch, dbgst=args.dbgst)
    g.spin_us = args.spin
    g.touch = args.touch
    g.hpf = args.hpf
    g.b0 = args.b0
    g.sleep = args.sleep
    g.wtouch = args.wtouch
    g.wtouch2 = args.wtouch2
    g.smem_poll = args.smem_poll
    g.fill_depth = args.fill
    g.npre = args.npre
    g.exp = set(args.exp.split(',')) if args.exp else set()
    txt, body = g.build()
    if args.tmo:
        out = []
        site = 0
        lines = txt.split("\n")
        for i, ln in enumerate(lines):
            out.append(ln)
            if ln.strip() == "s_cmp_lg_u32 s92, 0":
                lab = "L_tmo_%d" % site
                out += ["  s_cbranch_scc1 %s" % lab, "  v_mov_b32 v30, 1", "  v_mov_b32 v31, %d" % (128 + 4 * site), "  s_mov_b64 s[100:101], exec", "  s_mov_b64 exec, 1",
                        "  buffer_atomic_add v30, v31, s[44:47], 0 offen sc1", "  s_mov_b64 exec, s[100:101]", "  s_cmp_lg_u32 s92, 0", lab + ":"]
                print("site", site, "near", [l for l in lines[max(0, i - 14):i] if l.endswith(":")])
                site += 1
        txt = "\n".join(out)
    open(args.o, "w").write(txt)
    check_hazards(body)
    print("wrote", args.o, len(txt), "bytes")
```

```python
from collections import deque
from gen import *
import gen as G_

vHTR0, vHTR2, vL16, vHST, vSTA, vT = 2, 3, 4, 5, 6, 7
vWDB = 8
vS, vC1 = 14, 15
vSTB = [13, 12, 123, 124]
FOLD = 16
CS = 20
vU, vW = 28, 29
ACC = [32, 64]
HF = 96
PK = 108
vWDO = 116
vCS0 = 120
L_RES = 151552
L_RESP = 28672
PART_STRIDE = 4352
sF = 52
sWD0, sWD1 = 53, 54
sHS = 55
NREG_UNITS = 10
GAMMA = 14
CK_STEP = 15
HST_STEP = [24, 24, 18, 0]
C_SIG2 = 5
C_BAR = 4
N2_SETUP = 4


def wdf(ks, ct):
    i = 4 * ks + ct
    if i < 8:
        return ("a", 224 + 4 * i)
    if i < 32:
        return ("v", 160 + 4 * (i - 8))
    if i < 40:
        return ("v", 128 + 4 * (i - 32))
    return ("a", 4 * (i - 40))


def rname(reg, n, off=0):
    k, b = reg
    return (a if k == "a" else v)(b + off, n)


class Q:
    def __init__(self, g):
        self.g = g
        self.o = deque()

    def op(self, line, cost=4, nb=0):
        self.o.append((cost, lambda: self.g.e(line), nb))

    def fn(self, fn, cost=4, nb=0):
        self.o.append((cost, fn, nb))

    def gap(self, budget, step):
        fresh = True
        while self.o and self.o[0][2] <= step and (self.o[0][0] <= budget or fresh):
            c, f, _ = self.o.popleft()
            f()
            budget -= c
            fresh = False

    def flush(self):
        while self.o:
            self.o.popleft()[1]()


def wd_dma(g, unit, n):
    e = g.e
    if n == 0:
        e("s_mul_i32 s%d, s%d, 401408" % (sWD0, sWAVE))
        e("s_lshl_b32 s%d, s%d, 7" % (sWD1, sCJ))
        e("s_add_u32 s%d, s%d, s%d" % (sWD0, sWD0, sWD1))
        e("s_mul_i32 s%d, s%d, 28" % (sWD1, sOFF + unit))
        e("s_add_u32 s%d, s%d, s%d" % (sWD0, sWD0, sWD1))
        e("s_lshl_b32 s%d, s%d, 14" % (sWD1, sWAVE))
        e("s_add_u32 s%d, s%d, %d" % (sWD1, sWD1, L_WD + 4096 * (unit % 4)))
        e("s_mov_b32 m0, s%d" % sWD1)
        e("s_nop 0")
    g.vmem("buffer_load_dwordx4 %s, %s, s%d offen offset:%d lds" % (v(vWDO + n), srd(SRD_WD), sWD0, 1024 * n), "wd%d" % unit)


def wd_read(g, unit, i):
    ct, ee = i >> 1, i & 1
    if i == 0:
        g.wait_vm("wd%d" % unit)
    g.lds("ds_read_b64_tr_b16 %s, %s offset:%d" % (rname(wdf(unit, ct), 2, 2 * ee), v(vWDB + ct), 4096 * (unit % 4) + 1024 * ee), "wr%d" % unit)


def hb_dma(g, blk, n):
    e = g.e
    if n in (0, 4):
        e("s_lshl_b32 s%d, s%d, 2" % (sT4, sBI))
        e("s_add_u32 s%d, s%d, %d" % (sT4, sT4, blk))
        e("s_mul_i32 s%d, s%d, 28672" % (sT4, sT4))
        e("s_mul_i32 s%d, s%d, 7168" % (sT5, sWAVE))
        e("s_add_u32 s%d, s%d, s%d" % (sT4, sT4, sT5))
        e("s_add_u32 s%d, s%d, %d" % (sT4, sT4, WS_HB + (4096 if n == 4 else 0)))
        e("s_add_u32 m0, s%d, %d" % (sT5, L_HB + 28672 * (blk % 3) + (4096 if n == 4 else 0)))
        e("s_nop 0")
    g.vmem("buffer_load_dwordx4 %s, %s, s%d offen offset:%d sc1 lds" % (v(vL16), srd(SRD_WS), sT4, 1024 * (n & 3)), "hb%d" % blk)


def res_dma(g, n, scratch=False):
    e = g.e
    t0, t1, vA = (56, 57, 126) if scratch else (sT0, sT1, 120)
    if n == 0:
        e("v_lshrrev_b32 %s, 1, v1" % v(vA))
        e("v_lshlrev_b32 %s, 6, %s" % (v(vA), v(vA)))
        e("v_and_b32 %s, 1, v1" % v(vW))
        e("v_lshl_add_u32 %s, %s, 4, %s" % (v(vA), v(vW), v(vA)))
        e("s_lshl_b32 s%d, s%d, 2" % (t0, sCI))
        e("s_add_u32 s%d, s%d, s%d" % (t0, t0, sWAVE))
        e("s_mul_i32 s%d, s%d, 28672" % (t0, t0))
        e("s_lshl_b32 s%d, s%d, 12" % (t1, sCJ))
        e("s_add_u32 s%d, s%d, s%d" % (t0, t0, t1))
        e("s_lshl_b32 s%d, s%d, 5" % (t1, sCS))
        e("s_add_u32 s%d, s%d, s%d" % (t0, t0, t1))
        e("s_add_u32 s%d, s%d, %d" % (t0, t0, WS_HB))
        e("s_lshl_b32 s%d, s%d, 11" % (t1, sWAVE))
        e("s_add_u32 m0, s%d, %d" % (t1, L_RES))
    else:
        e("s_add_u32 s%d, s%d, 2048" % (t0, t0))
        e("s_add_u32 m0, s%d, %d" % (t1, L_RES + 1024))
    e("s_nop 0")
    g.vmem("buffer_load_dwordx4 %s, %s, s%d offen sc1 lds" % (v(vA), srd(SRD_WS), t0), "res")


def flag_load(g, u):
    e = g.e
    e("s_lshl_b32 s%d, s%d, 2" % (sT2, sCI))
    e("s_add_u32 s%d, s%d, %d" % (sT2, sT2, C_S3 + u))
    e("s_lshl_b32 s%d, s%d, 8" % (sT2, sT2))
    e("s_add_u32 s%d, s%d, %d" % (sT2, sT2, WS_CNT))
    e("s_load_dword s%d, s[%d:%d], s%d glc" % (sF, SRD_WS, SRD_WS + 1, sT2))


def flag_check(g, u):
    e = g.e
    loop, ok = g.newlabel("fl"), g.newlabel("fo")
    e("s_waitcnt lgkmcnt(0)")
    e("s_cmp_ge_u32 s%d, 14" % sF)
    e("s_cbranch_scc1 %s" % ok)
    e("s_mov_b32 s%d, %d" % (sSPIN, SPIN_LIMIT))
    g.label(loop)
    e("s_sleep 1")
    e("s_load_dword s%d, s[%d:%d], s%d glc" % (sF, SRD_WS, SRD_WS + 1, sT2))
    e("s_waitcnt lgkmcnt(0)")
    e("s_cmp_ge_u32 s%d, 14" % sF)
    e("s_cbranch_scc1 %s" % ok)
    e("s_sub_u32 s%d, s%d, 1" % (sSPIN, sSPIN))
    e("s_cmp_lg_u32 s%d, 0" % sSPIN)
    e("s_cbranch_scc1 %s" % loop)
    g.label(ok)


vFL, vFA = 125, 126


def flagv_load(g, u):
    e = g.e
    e("s_lshl_b32 s%d, s%d, 2" % (sT2, sCI))
    e("s_add_u32 s%d, s%d, %d" % (sT2, sT2, C_S3 + u))
    e("s_lshl_b32 s%d, s%d, 8" % (sT2, sT2))
    e("s_add_u32 s%d, s%d, %d" % (sT2, sT2, WS_CNT))
    e("v_mov_b32 %s, s%d" % (v(vFA), sT2))
    g.vmem("buffer_load_dword %s, %s, %s, 0 offen sc1" % (v(vFL), v(vFA), srd(SRD_WS)), "flag")


def flagv_check(g, wave=None):
    e = g.e
    g.wait_vm("flag", dual=True)
    loop, ok = g.newlabel("fvl"), g.newlabel("fvo")
    if wave is not None:
        e("s_cmp_eq_u32 s%d, %d" % (sWAVE, wave))
        e("s_cbranch_scc0 %s" % ok)
    e("s_mov_b32 s%d, %d" % (sSPIN, SPIN_LIMIT))
    g.label(loop)
    e("v_cmp_gt_u32 vcc, 14, %s" % v(vFL))
    e("s_nop 4")
    e("s_cbranch_vccz %s" % ok)
    e("s_sleep 1")
    e("buffer_load_dword %s, %s, %s, 0 offen sc1" % (v(vFL), v(vFA), srd(SRD_WS)))
    e("s_waitcnt vmcnt(0)")
    e("s_sub_u32 s%d, s%d, 1" % (sSPIN, sSPIN))
    e("s_cmp_lg_u32 s%d, 0" % sSPIN)
    e("s_cbranch_scc1 %s" % loop)
    g.label(ok)


def s3_signal(g, u):
    e = g.e
    e("s_lshl_b32 s%d, s%d, 2" % (sT0, sBI))
    e("s_add_u32 s%d, s%d, %d" % (sT0, sT0, C_S3 + u))
    e("s_lshl_b32 s%d, s%d, 8" % (sT0, sT0))
    e("s_add_u32 s%d, s%d, %d" % (sT0, sT0, WS_CNT))
    e("v_mov_b32 %s, s%d" % (v(vU), sT0))
    e("v_mov_b32 %s, 1" % v(vW))
    g.signal(vU, vW, 1)
    g.vm.append("sig@0")


def epilogue_items(g, q, p, nb):
    e = g.e
    acc = ACC[p & 1]

    def stats():
        vST = vSTB[p]
        g.wait_vm("st%d" % p)
        loop, ok = g.newlabel("stl"), g.newlabel("sto")
        e("s_mov_b32 s%d, %d" % (sSPIN, SPIN_LIMIT))
        g.label(loop)
        e("v_cmp_eq_u32 vcc, 0, %s" % v(vST))
        e("s_nop 4")
        e("s_cbranch_vccz %s" % ok)
        e("buffer_load_dword %s, %s, %s, 0 offen offset:%d sc1" % (v(vST), v(vSTA), srd(SRD_WS), 128 * p))
        e("s_waitcnt vmcnt(0)")
        e("s_sub_u32 s%d, s%d, 1" % (sSPIN, sSPIN))
        e("s_cmp_lg_u32 s%d, 0" % sSPIN)
        e("s_cbranch_scc1 %s" % loop)
        g.label(ok)
    q.fn(stats, 24, nb)
    q.op("v_and_b32 %s, 0xffff0000, %s" % (v(vS), v(vSTB[p])), nb=nb)
    q.op("v_and_b32 %s, 0xffff, %s" % (v(FOLD + 1), v(vSTB[p])), nb=nb)
    q.op("v_rcp_f32 %s, %s" % (v(vC1), v(vS)), 8, nb)
    q.op("v_xor_b32 %s, 0x8000, %s" % (v(FOLD + 1), v(FOLD + 1)), nb=nb)
    q.op("v_cndmask_b32 %s, 0, %s, s[%d:%d]" % (v(FOLD + 1), v(FOLD + 1), sEX, sEX + 1), nb=nb)
    q.op("v_lshl_or_b32 %s, %s, 16, %s" % (v(FOLD), v(FOLD + 1), v(FOLD + 1)), nb=nb)
    q.op("v_mul_f32 %s, 0xbfb8aa3b, %s" % (v(vC1), v(vC1)), nb=nb)
    q.op("s_nop 0", nb=nb)

    def fold():
        for ft in range(2):
            e("v_mfma_f32_32x32x16_bf16 %s, %s, %s, %s" % (v(acc + 16 * ft, 16), v(CS + 4 * ft, 4), v(FOLD, 4), v(acc + 16 * ft, 16)))
    q.fn(fold, 0, nb)
    for _ in range(4):
        q.fn(lambda: None, 100, nb)


def epilogue_valu(g, q, p, nb, direct=False, nostore=False):
    acc = ACC[p & 1]

    def put(line, cost=4):
        if direct:
            g.e(line)
        else:
            q.op(line, cost, nb)
    for ft in range(2):
        b = acc + 16 * ft
        for x in range(8):
            put("v_mul_f32 %s, %s, %s" % (v(b + x), v(b + x), v(vC1)))
        for x in range(8):
            put("v_exp_f32 %s, %s" % (v(b + x), v(b + x)), 8)
        for x in range(8):
            put("v_fma_f32 %s, %s, %s, %s" % (v(b + x), v(b + x), v(vS), v(vS)))
        for x in range(8):
            put("v_rcp_f32 %s, %s" % (v(b + x), v(b + x)), 8)
        for x in range(8):
            put("v_mul_f32 %s, %s, %s" % (v(b + 8 + x), v(b + 8 + x), v(b + x)))
        for i in range(4):
            put("v_cvt_pk_bf16_f32 %s, %s, %s" % (v(PK + 4 * ft + i), v(b + 8 + 2 * i), v(b + 9 + 2 * i)))


    if nostore:
        return
    if direct:
        h_store(g, p)
    else:
        q.fn(lambda: h_store(g, p), 40, max(nb, HST_STEP[p]))


def h_store(g, p):
    g.e("s_lshl_b32 s%d, s%d, 2" % (sT6, sBI))
    g.e("s_add_u32 s%d, s%d, %d" % (sT6, sT6, p))
    g.e("s_mul_i32 s%d, s%d, 114688" % (sT6, sT6))
    g.e("s_lshl_b32 s%d, s%d, 2" % (sT7, sBJ))
    g.e("s_add_u32 s%d, s%d, s%d" % (sT7, sT7, sWAVE))
    g.e("s_lshl_b32 s%d, s%d, 10" % (sT7, sT7))
    g.e("s_add_u32 s%d, s%d, s%d" % (sT6, sT6, sT7))
    g.e("s_add_u32 s%d, s%d, %d" % (sT6, sT6, WS_HF))
    for ft in range(2):
        g.vmem("buffer_store_dwordx4 %s, %s, %s, s%d offen offset:%d sc1" % (v(PK + 4 * ft, 4), v(vHST), srd(SRD_WS), sT6, 512 * ft), "hst%d" % p)


def wd_bases(g, dst):
    e = g.e
    t0, t1, t2 = vT, vU, vW
    e("v_lshrrev_b32 %s, 5, v1" % v(t0))
    e("v_bfe_u32 %s, v1, 4, 1" % v(t1))
    e("v_lshlrev_b32 %s, 4, %s" % (v(t0), v(t0)))
    e("v_lshl_add_u32 %s, %s, 2, %s" % (v(t0), v(t1), v(t0)))
    e("v_bfe_u32 %s, v1, 2, 2" % v(t2))
    e("v_add_u32 %s, %s, %s" % (v(t0), v(t0), v(t2)))
    e("v_lshlrev_b32 %s, 7, %s" % (v(t0), v(t0)))
    e("v_lshrrev_b32 %s, 1, %s" % (v(t2), v(t2)))
    e("v_lshl_add_u32 %s, %s, 1, %s" % (v(t1), v(t1), v(t2)))
    e("v_and_b32 %s, 3, v1" % v(t2))
    e("v_lshl_add_u32 %s, %s, 3, %s" % (v(t0), v(t2), v(t0)))
    e("s_lshl_b32 s%d, s%d, 14" % (sT0, sWAVE))
    e("s_add_u32 s%d, s%d, %d" % (sT0, sT0, L_WD))
    e("v_add_u32 %s, s%d, %s" % (v(t0), sT0, v(t0)))
    for ct in range(4):
        e("v_xor_b32 %s, %d, %s" % (v(t2), ct, v(t1)))
        e("v_lshl_add_u32 %s, %s, 5, %s" % (v(dst + ct), v(t2), v(t0)))


def hslot(u, s):
    return a((64 if (u & 1) == 0 else 120) + 4 * s, 4)


vHA = 2


def rot_table(g):
    e = g.e
    e("s_lshl_b32 s%d, s%d, 1" % (sT0, sCI))
    e("s_add_u32 s%d, s%d, s%d" % (sT0, sT0, sCS))
    e("s_and_b32 s%d, s%d, 3" % (sT0, sT0))
    e("s_lshl_b32 s%d, s%d, 1" % (sT0, sT0))
    e("s_add_u32 s%d, s%d, s%d" % (sT0, sT0, sCJ))
    e("s_lshl_b32 s%d, s%d, 1" % (sT0, sT0))
    e("s_cmp_ge_u32 s%d, 14" % sT0)
    e("s_cselect_b32 s%d, 14, 0" % sT1)
    e("s_sub_u32 s%d, s%d, s%d" % (sT0, sT0, sT1))
    for i in range(14):
        e("s_lshl_b32 s%d, s%d, 10" % (sOFF + i, sT0))
        if i != 13:
            e("s_add_u32 s%d, s%d, 1" % (sT0, sT0))
            e("s_cmp_eq_u32 s%d, 14" % sT0)
            e("s_cselect_b32 s%d, 0, s%d" % (sT0, sT0))


def hso(g, u):
    e = g.e
    e("s_lshl_b32 s%d, s%d, 2" % (sHS, sCI))
    e("s_add_u32 s%d, s%d, %d" % (sHS, sHS, u))
    e("s_lshl_b32 s%d, s%d, 1" % (sHS, sHS))
    e("s_add_u32 s%d, s%d, s%d" % (sHS, sHS, sCS))
    e("s_mul_i32 s%d, s%d, 57344" % (sHS, sHS))
    e("s_mul_i32 s%d, s%d, 14336" % (sT3, sWAVE))
    e("s_add_u32 s%d, s%d, s%d" % (sHS, sHS, sT3))
    e("s_add_u32 s%d, s%d, %d" % (sHS, sHS, WS_HF))
    e("v_add_u32 %s, s%d, %s" % (v(vHA), sHS, v(vL16)))


vHA0 = 127


def hso3(g, u):
    global vHA
    save = vHA
    vHA = vHA0
    hso(g, u)
    vHA = save


def hload(g, u, s, vaddr=None):
    g.vmem("buffer_load_dwordx4 %s, %s, %s, s%d offen sc1" % (hslot(u, s), v(vHA if vaddr is None else vaddr), srd(SRD_WS), sOFF + s), "hf%d_%d" % (u, s))


def colsum(g, s0, s1, ONES):
    for s in range(s0, s1):
        for ft in range(2):
            g.e("v_mfma_f32_32x32x16_bf16 %s, %s, %s, %s" % (v(ACC[0] + 16 * ft, 16), v(ONES, 4), a(8 * s + 4 * ft, 4), "0" if s == s0 else v(ACC[0] + 16 * ft, 16)))


vCK = 122
CKR = 128
vFHA, vFH = 126, 125


def phase_b(g):
    e = g.e
    g.c("==== B prologue ====")
    ONES = PK
    e("v_lshlrev_b32 %s, 4, v1" % v(vL16))
    e("s_lshl_b32 s72, s%d, 2" % sBI)
    e("s_mul_i32 s%d, s%d, 7168" % (sT0, sWAVE))
    e("v_add_u32 %s, s%d, %s" % (v(vCK), sT0, v(vL16)))
    g.wait_lg("wr")
    e("s_barrier")
    g.stamp(9)
    for n in range(7):
        hb_dma(g, 0, n)
    keep = g.L
    g.L = []
    e("v_lshrrev_b32 %s, 5, v1" % v(vT))
    e("v_bfe_u32 %s, v1, 2, 2" % v(vU))
    e("v_lshl_add_u32 %s, %s, 3, %s" % (v(vT), v(vT), v(vU)))
    e("v_lshlrev_b32 %s, 6, %s" % (v(vHTR0), v(vT)))
    e("v_bfe_u32 %s, v1, 4, 1" % v(vT))
    e("v_lshl_add_u32 %s, %s, 5, %s" % (v(vHTR0), v(vT), v(vHTR0)))
    e("v_and_b32 %s, 3, v1" % v(vT))
    e("v_lshl_add_u32 %s, %s, 3, %s" % (v(vHTR0), v(vT), v(vHTR0)))
    e("v_bfe_u32 %s, v1, 4, 1" % v(vT))
    e("v_mul_u32_u24 %s, 57344, %s" % (v(vHST), v(vT)))
    e("v_lshrrev_b32 %s, 5, v1" % v(vT))
    e("v_lshl_add_u32 %s, %s, 8, %s" % (v(vHST), v(vT), v(vHST)))
    e("v_and_b32 %s, 15, v1" % v(vT))
    e("v_lshl_add_u32 %s, %s, 4, %s" % (v(vHST), v(vT), v(vHST)))
    e("v_and_b32 %s, 31, v1" % v(vT))
    e("s_lshl_b32 s%d, s%d, 9" % (sT0, sBI))
    e("s_add_u32 s%d, s%d, %d" % (sT0, sT0, WS_ST2))
    e("v_lshl_add_u32 %s, %s, 2, s%d" % (v(vSTA), v(vT), sT0))
    e("v_lshrrev_b32 %s, 3, v1" % v(vT))
    e("v_mul_u32_u24 %s, 896, %s" % (v(vWDO), v(vT)))
    e("v_lshrrev_b32 %s, 1, %s" % (v(vT), v(vT)))
    e("v_lshlrev_b32 %s, 1, %s" % (v(vT), v(vT)))
    e("v_and_b32 %s, 7, v1" % v(vU))
    e("v_xor_b32 %s, %s, %s" % (v(vU), v(vU), v(vT)))
    e("v_lshl_add_u32 %s, %s, 4, %s" % (v(vWDO), v(vU), v(vWDO)))
    for n in range(1, 4):
        e("v_add_u32 %s, %d, %s" % (v(vWDO + n), n * 6144, v(vWDO)))
    wd_bases(g, vWDB)
    rot_table(g)
    e("s_mov_b32 s%d, -1" % sEX)
    e("s_mov_b32 s%d, 0" % (sEX + 1))
    e("v_mov_b32 %s, 0" % v(FOLD + 2))
    e("v_mov_b32 %s, 0" % v(FOLD + 3))
    e("v_add_u32 %s, %d, %s" % (v(vHTR2), 57344, v(vHTR0)))
    e("s_and_b32 s%d, s2, 7" % sT0)
    e("s_lshl_b32 s%d, s%d, 8" % (sT0, sT0))
    e("s_add_u32 s%d, s%d, %d" % (sT0, sT0, WS_CNT + 256 * C_FH))
    e("v_mov_b32 %s, s%d" % (v(vFHA), sT0))
    setup = g.L
    g.L = keep
    per = -(-len(setup) // 28)
    for s_ in range(14, 28):
        for ft in range(2):
            e("v_mfma_f32_32x32x16_bf16 %s, %s, %s, %s" % (v(ACC[1] + 16 * ft, 16), v(ONES, 4), a(8 * s_ + 4 * ft, 4), v(ACC[1] + 16 * ft, 16)))
            g.L += setup[:per]
            setup = setup[per:]
    assert not setup
    g.stamp(29)
    g.wait_vm("hb0")
    g.stamp(30)
    for ln in g.mark_reads(7, vCK, L_HB, CKR, None):
        e(ln)
    e("s_waitcnt lgkmcnt(0)")
    g.lg = []
    for ln in g.mark_fold(7, CKR):
        e(ln)
    g.mark_branch(7, vCK, L_HB, CKR, lambda: g.hb_refetch(72, 0, 0, vL16))
    e("s_barrier")
    g.stamp(10)

    cs_items = []
    for ft in range(2):
        cs = ACC[1] + 16 * ft
        d = CS + 4 * ft
        cs_items += [
            "v_cvt_pk_bf16_f32 %s, %s, %s" % (v(vT), v(cs), v(cs)),
            "v_lshlrev_b32 %s, 16, %s" % (v(vT), v(vT)),
            "v_sub_f32 %s, %s, %s" % (v(vU), v(cs), v(vT)),
            "v_cvt_pk_bf16_f32 %s, %s, %s" % (v(d), v(cs), v(vU)),
            "v_and_b32 %s, 0xffff0000, %s" % (v(vT), v(d)),
            "v_sub_f32 %s, %s, %s" % (v(vU), v(vU), v(vT)),
            "v_cvt_pk_bf16_f32 %s, %s, 0" % (v(d + 1), v(vU)),
            "v_cndmask_b32 %s, 0, %s, s[%d:%d]" % (v(d), v(d), sEX, sEX + 1),
            "v_cndmask_b32 %s, 0, %s, s[%d:%d]" % (v(d + 1), v(d + 1), sEX, sEX + 1),
            "v_mov_b32 %s, 0" % v(d + 2),
            "v_mov_b32 %s, 0" % v(d + 3)]

    vm_ev = {}
    ld_ev = {}

    def put_vm(step, fn):
        while step in vm_ev:
            step += 1
        vm_ev[step] = fn
        return step
    for n in range(7):
        put_vm(0 + n, lambda n=n: hb_dma(g, 1, n))
    D = {0: 7, 1: 11, 2: 15, 3: 26, 4: 35, 5: 39, 6: 43, 7: 47, 8: 63, 9: 67, 10: 71, 11: 75, 12: 91, 13: 95}
    R = {0: 30, 1: 34, 2: 38, 3: 42, 4: 58, 5: 62, 6: 66, 7: 70, 8: 86, 9: 90}
    for n in range(7):
        put_vm(19 + n, lambda n=n: hb_dma(g, 2, n))
    for n in range(7):
        put_vm(54 + n, lambda n=n: hb_dma(g, 3, n))
    for unit in range(14):
        for n in range(4):
            def f(unit=unit, n=n):
                if n == 0 and unit >= 4:
                    g.wait_lg("wr%d" % (unit - 4))
                wd_dma(g, unit, n)
            st = put_vm(D[unit] + n, f)
            assert st == D[unit] + n, (unit, n, st)
    for unit in range(NREG_UNITS):
        for i in range(8):
            ld_ev.setdefault(R[unit] + (i >> 1), []).append(lambda unit=unit, i=i: wd_read(g, unit, i))
    for n in range(2):
        put_vm(84 + n, lambda n=n: res_dma(g, n))
    for p in range(1, 4):
        put_vm(30 + p, lambda p=p: g.vmem("buffer_load_dword %s, %s, %s, 0 offen offset:%d sc1" % (v(vSTB[p]), v(vSTA), srd(SRD_WS), 128 * p), "st%d" % p))
    for unit, r0 in ((10, 94), (11, 98)):
        for i in range(8):
            ld_ev.setdefault(r0 + (i >> 1), []).append(lambda unit=unit, i=i: wd_read(g, unit, i))
    def first_h():
        hso3(g, 0)
        hload(g, 0, 0, vaddr=vHA0)
    put_vm(99, first_h)
    nxt0 = list(range(1, 14))
    for st_ in (100, 101, 102, 103, 104, 105, 106, 107, 109, 110, 111):
        put_vm(st_, lambda s_=nxt0.pop(0): hload(g, 0, s_, vaddr=vHA0))
    tail_h = nxt0

    ck_ev = {}
    for u in range(3):
        def ck_reads(u=u, part=0):
            if part == 0:
                g.wait_vm("hb%d" % (u + 1))
            lines = g.mark_reads(7, vCK, L_HB + 28672 * ((u + 1) % 3), CKR, None)
            for ln in lines[2 * part:2 * part + 2]:
                g.lds(ln, "ck")
        for part in range(4):
            ck_ev.setdefault(28 * u + CK_STEP + part, []).append(lambda u=u, part=part, f=ck_reads: f(u, part))
        fold = g.mark_fold(7, CKR)
        for i in range(0, len(fold), 4):
            def ck_fold(i=i, fold=fold):
                if i == 0:
                    g.wait_lg("ck")
                for ln in fold[i:i + 4]:
                    e(ln)
            ck_ev.setdefault(28 * u + CK_STEP + 5 + i // 4, []).append(ck_fold)
        ck_ev.setdefault(28 * u + 25, []).insert(0, lambda u=u: g.mark_branch(7, vCK, L_HB + 28672 * ((u + 1) % 3), CKR, lambda u=u: g.hb_refetch(72, u + 1, (u + 1) % 3, vL16)))
    vRA, RCK = 125, 116

    def res_ck(part):
        if part == 0:
            e("s_lshl_b32 s%d, s%d, 11" % (sT0, sWAVE))
            e("s_add_u32 s%d, s%d, %d" % (sT0, sT0, L_RES))
            e("v_add_u32 %s, s%d, %s" % (v(vRA), sT0, v(vL16)))
            g.wait_vm("res")
            for ln in g.mark_reads(2, vRA, 0, RCK, None):
                g.lds(ln, "ck")
        else:
            g.wait_lg("ck")
            for ln in g.mark_fold(2, RCK):
                e(ln)
    ck_ev.setdefault(84 + 17, []).append(lambda: res_ck(0))
    ck_ev.setdefault(84 + 20, []).append(lambda: res_ck(1))

    def res_refetch():
        save = list(g.vm)
        res_dma(g, 0, scratch=True)
        res_dma(g, 1, scratch=True)
        g.vm = save
    ck_ev.setdefault(84 + 25, []).insert(0, lambda: g.mark_branch(2, vRA, 0, RCK, res_refetch))

    def fh_check():
        g.wait_vm("fh")
        lab, back = g.newlabel("fh"), g.newlabel("fhb")
        e("v_cmp_gt_u32 vcc, 32, %s" % v(vFH))
        e("s_nop 4")
        e("s_cbranch_vccnz %s" % lab)
        g.label(back)

        def code():
            loop = g.newlabel("fhl")
            g.label(lab)
            e("s_mov_b32 s%d, %d" % (sSPIN, SPIN_LIMIT))
            g.label(loop)
            e("buffer_load_dword %s, %s, %s, 0 offen sc1" % (v(vFH), v(vFHA), srd(SRD_WS)))
            e("s_waitcnt vmcnt(0)")
            e("v_cmp_gt_u32 vcc, 32, %s" % v(vFH))
            e("s_nop 4")
            e("s_cbranch_vccz %s" % back)
            e("s_sub_u32 s%d, s%d, 1" % (sSPIN, sSPIN))
            e("s_cmp_lg_u32 s%d, 0" % sSPIN)
            e("s_cbranch_scc1 %s" % loop)
            e("s_branch %s" % back)
        g.ool.append(code)
    ck_ev.setdefault(8, []).append(lambda: g.vmem("buffer_load_dword %s, %s, %s, 0 offen sc1" % (v(vFH), v(vFHA), srd(SRD_WS)), "fh"))
    ck_ev.setdefault(24, []).append(fh_check)

    def hread(gs):
        u, s = divmod(gs, 28)
        if u > 3:
            return
        buf = u % 3
        base = vHTR2 if buf == 2 else vHTR0
        off = (28672 * buf if buf < 2 else 0) + 1024 * s
        for ee in range(2):
            g.lds("ds_read_b64_tr_b16 %s, %s offset:%d" % (v(HF + 4 * (gs % 3) + 2 * ee, 2), v(base), L_HB + off + 256 * ee), "h%d" % gs)

    hread(0)
    hread(1)
    for u in range(4):
        g.c("---- B block %d" % u)
        q = Q(g)
        acc = ACC[u & 1]
        if u == 0:
            for ln in cs_items:
                q.op(ln, 4, 1)
        if u >= 1:
            epilogue_items(g, q, u - 1, 0)
            epilogue_valu(g, q, u - 1, 0)
        for s in range(28):
            gs = 28 * u + s
            g.wait_lg("h%d" % gs)
            srcc = lambda ft: "0" if s == 0 else v(acc + 16 * ft, 16)
            e("v_mfma_f32_32x32x16_bf16 %s, %s, %s, %s" % (v(acc, 16), a(8 * s, 4), v(HF + 4 * (gs % 3), 4), srcc(0)))
            hread(gs + 2)
            q.gap(16, s)
            e("v_mfma_f32_32x32x16_bf16 %s, %s, %s, %s" % (v(acc + 16, 16), a(8 * s + 4, 4), v(HF + 4 * (gs % 3), 4), srcc(1)))
            budget = 20
            for f in ld_ev.get(gs, []):
                f()
                budget -= 4
            if gs in vm_ev:
                vm_ev[gs]()
                budget -= 4
            q.gap(budget, s) if budget > 0 else None
            if s != 25:
                for f in ck_ev.get(gs, []):
                    f()
            if u == 0 and s == 18:
                g.vmem("buffer_load_dword %s, %s, %s, 0 offen sc1" % (v(vSTB[0]), v(vSTA), srd(SRD_WS)), "st0")
            if s == 25:
                for f in ck_ev.get(gs, []):
                    f()
                e("s_barrier")
        q.flush()
        g.stamp(11 + u)
    g.c("---- B tail / C chunk 0")
    g.redo = []
    q = Q(g)
    epilogue_items(g, q, 3, 0)
    while q.o and q.o[-1][0] == 100:
        q.o.pop()
    q.flush()
    hso(g, 1)
    side = [lambda unit=unit, i=i: wd_read(g, unit, i) for unit in (12, 13) for i in range(8)]
    pre = [lambda s_=s_: hload(g, 0, s_, vaddr=vHA0) for s_ in tail_h] + side[:8 - len(tail_h)]
    side = side[8 - len(tail_h):]
    q2 = Q(g)
    epilogue_valu(g, q2, 3, 0, nostore=True)
    epi = [it[1] for it in q2.o]
    h1 = list(range(14))
    stored = False
    gap = 0
    for s_ in range(14):
        g.wait_vm("hf0_%d" % s_)
        if s_ >= 12:
            g.wait_lg("wr%d" % s_)
        for ct in range(4):
            c_mfma(g, 0, s_, ct)
            if gap < 4:
                pre.pop(0)()
                pre.pop(0)()
            else:
                if side and gap % 3 == 1:
                    side.pop(0)()
                if h1 and gap % 3 == 2:
                    hload(g, 1, h1.pop(0))
                for _ in range(2):
                    if epi:
                        epi.pop(0)()
                if not epi and not stored:
                    assert not h1 and not side
                    h_store(g, 3)
                    g.stamp(16)
                    stored = True
            gap += 1
    assert stored
    e("s_nop 7")
    c_check(g, 0)
    hso(g, 2)
    keep = g.L
    g.L = []
    c_setup(g)
    lines = g.L
    g.L = keep
    h2 = list(range(14))
    for k, ln in enumerate(lines):
        g.L.append(ln)
        if len(h2) > 14 - N2_SETUP and k % 12 == 3:
            hload(g, 2, h2.pop(0))
    g.h2_rest = h2
    g.stamp(15)


CACC = [32, 48]


def c_mfma(g, u, s, ct):
    acc = CACC[u & 1]
    g.e("v_mfma_f32_16x16x32_bf16 %s, %s, %s, %s" % (v(acc + 4 * ct, 4), rname(wdf(s, ct), 4), hslot(u, s), "0" if s == 0 else v(acc + 4 * ct, 4)))


def c_check(g, u):
    lab, back = g.newlabel("redo"), g.newlabel("back")
    acc = CACC[u & 1]
    g.e("v_cmp_u_f32 vcc, %s, %s" % (v(acc), v(acc)))
    g.e("s_nop 4")
    g.e("s_cbranch_vccnz %s" % lab)
    g.label(back)
    g.redo.append((u, lab, back))


vPW, vPR, vRW, vRR, vOUT, vRES = 13, 14, 15, 16, 17, 18
SUM = 64
RS = 84
OUTP = 92


def c_setup(g):
    e = g.e
    e("v_lshrrev_b32 %s, 4, v1" % v(vT))
    e("v_and_b32 %s, 15, v1" % v(vU))
    e("v_mul_u32_u24 %s, 272, %s" % (v(vW), v(vT)))
    e("v_lshl_add_u32 %s, %s, 4, %s" % (v(vW), v(vU), v(vW)))
    e("s_lshl_b32 s%d, s%d, 14" % (sT0, sWAVE))
    e("s_add_u32 s%d, s%d, %d" % (sT0, sT0, L_WD))
    e("v_add_u32 %s, s%d, %s" % (v(vPW), sT0, v(vW)))
    e("s_mul_i32 s%d, s%d, 1088" % (sT0, sWAVE))
    e("s_add_u32 s%d, s%d, %d" % (sT0, sT0, L_RESP))
    e("v_add_u32 %s, s%d, %s" % (v(vRW), sT0, v(vW)))
    e("v_mul_u32_u24 %s, 272, %s" % (v(vW), v(vU)))
    e("s_lshl_b32 s%d, s%d, 2" % (sT0, sWAVE))
    e("v_add_u32 %s, s%d, %s" % (v(vPR), sT0, v(vT)))
    e("v_lshl_add_u32 %s, %s, 4, %s" % (v(vW), v(vPR), v(vW)))
    e("s_lshl_b32 s%d, s%d, 7" % (sT0, sCI))
    e("s_lshl_b32 s%d, s%d, 4" % (sT1, sCS))
    e("s_add_u32 s%d, s%d, s%d" % (sT0, sT0, sT1))
    e("v_add_u32 %s, s%d, %s" % (v(vOUT), sT0, v(vPR)))
    e("v_mul_u32_u24 %s, 896, %s" % (v(vOUT), v(vOUT)))
    e("v_lshl_add_u32 %s, %s, 3, %s" % (v(vOUT), v(vU), v(vOUT)))
    e("s_lshl_b32 s%d, s%d, 7" % (sT0, sCJ))
    e("v_add_u32 %s, s%d, %s" % (v(vOUT), sT0, v(vOUT)))
    e("v_add_u32 %s, %d, %s" % (v(vPR), L_WD, v(vW)))
    e("v_add_u32 %s, %d, %s" % (v(vRR), L_RESP, v(vW)))
    e("v_lshrrev_b32 %s, 4, v1" % v(vT))
    e("v_bfe_u32 %s, v1, 2, 2" % v(vU))
    e("v_lshl_add_u32 %s, %s, 2, %s" % (v(vT), v(vT), v(vU)))
    e("s_lshl_b32 s%d, s%d, 4" % (sT0, sWAVE))
    e("v_add_u32 %s, s%d, %s" % (v(vT), sT0, v(vT)))
    e("v_lshlrev_b32 %s, 5, %s" % (v(vT), v(vT)))
    e("v_and_b32 %s, 3, v1" % v(vU))
    e("v_lshl_add_u32 %s, %s, 3, %s" % (v(vT), v(vU), v(vT)))
    e("v_add_u32 %s, %d, %s" % (v(vRES), L_RES, v(vT)))
    for u in range(4):
        g.lds("ds_read_b64_tr_b16 %s, %s offset:%d" % (v(RS + 2 * u, 2), v(vRES), 2048 * u), "rs%d" % u)
    for u in range(4):
        g.wait_lg("rs%d" % u)
        t = SUM + 4 * u
        e("v_lshlrev_b32 %s, 16, %s" % (v(t), v(RS + 2 * u)))
        e("v_and_b32 %s, 0xffff0000, %s" % (v(t + 1), v(RS + 2 * u)))
        e("v_lshlrev_b32 %s, 16, %s" % (v(t + 2), v(RS + 2 * u + 1)))
        e("v_and_b32 %s, 0xffff0000, %s" % (v(t + 3), v(RS + 2 * u + 1)))
        g.lds("ds_write_b128 %s, %s offset:%d" % (v(vRW), v(t, 4), PART_STRIDE * u), "rw")


def phase_c(g):
    e = g.e
    g.c("==== C ====")

    def finish_items(q, u, nb):
        buf = u & 1
        for w in range(4):
            q.fn(lambda w=w: g.lds("ds_read_b128 %s, %s offset:%d" % (v(SUM + 4 * w, 4), v(vPR), 16384 * w + PART_STRIDE * buf), "p%d" % w), 4, nb)
        q.fn(lambda: g.lds("ds_read_b128 %s, %s offset:%d" % (v(SUM + 16, 4), v(vRR), PART_STRIDE * u), "p4"), 4, nb)
        q.fn(lambda: g.wait_lg("p1"), 4, nb + 1)
        for i in range(4):
            q.op("v_add_f32 %s, %s, %s" % (v(SUM + i), v(SUM + i), v(SUM + 4 + i)), 4, nb)
        q.fn(lambda: g.wait_lg("p3"), 4, nb)
        for i in range(4):
            q.op("v_add_f32 %s, %s, %s" % (v(SUM + 8 + i), v(SUM + 8 + i), v(SUM + 12 + i)), 4, nb)
        q.fn(lambda: g.wait_lg("p4"), 4, nb)
        for i in range(4):
            q.op("v_add_f32 %s, %s, %s" % (v(SUM + i), v(SUM + i), v(SUM + 16 + i)), 4, nb)
        for i in range(4):
            q.op("v_add_f32 %s, %s, %s" % (v(SUM + i), v(SUM + i), v(SUM + 8 + i)), 4, nb)
        q.op("v_cvt_pk_bf16_f32 %s, %s, %s" % (v(OUTP + 2 * u), v(SUM), v(SUM + 1)), 4, nb)
        q.op("v_cvt_pk_bf16_f32 %s, %s, %s" % (v(OUTP + 2 * u + 1), v(SUM + 2), v(SUM + 3)), 4, nb)

    def pwrite(u, ct):
        g.lds("ds_write_b128 %s, %s offset:%d" % (v(vPW), v(CACC[u & 1] + 4 * ct, 4), 1088 * ct + PART_STRIDE * (u & 1)), "pw")

    def mfmas(u, s):
        acc = CACC[u & 1]
        return [lambda ct=ct: e("v_mfma_f32_16x16x32_bf16 %s, %s, %s, %s" % (v(acc + 4 * ct, 4), rname(wdf(s, ct), 4), hslot(u, s), "0" if s == 0 else v(acc + 4 * ct, 4))) for ct in range(4)]

    def reduce_head(q, u):
        for ct in range(4):
            q.fn(lambda ct=ct: pwrite(u, ct), 8, 1)

    vRD = 126

    def check(u):
        c_check(g, u)

    order = [(s, ct) for s in range(14) for ct in (0, 1)] + [(s, ct) for s in range(14) for ct in (2, 3)]
    for u in range(1, 4):
        g.c("---- C chunk %d" % u)
        q = Q(g)
        nxt = {1: g.h2_rest, 2: list(range(14)), 3: []}[u]
        for ct in range(4):
            q.fn(lambda ct=ct, u=u: pwrite(u - 1, ct), 8, 1)
        if u == 2:
            hso(g, u + 1)
        nload = len(nxt)
        slots = [i for i in range(2, 56) if not (28 <= i < 34)]
        at = set(slots[(j * len(slots)) // nload] for j in range(nload)) if nload else set()
        for i, (s, ct) in enumerate(order):
            ps = i // 4
            if i < 28 and ct == 0:
                g.wait_vm("hf%d_%d" % (u, s))
            if i == 4 * C_BAR:
                q.flush()
                g.wait_lg("pw")
                e("s_barrier")
                finish_items(q, u - 1, 0)
            c_mfma(g, u, s, ct)
            if i == 31:
                lab, back = g.newlabel("redo"), g.newlabel("back")
                e("v_cmp_u_f32 vcc, %s, %s" % (v(CACC[u & 1]), v(CACC[u & 1])))
            if i == 33:
                e("s_nop 2")
                e("s_cbranch_vccnz %s" % lab)
                g.label(back)
                g.redo.append((u, lab, back))
            if 28 <= i < 34:
                continue
            if i in at:
                hload(g, u + 1, nxt.pop(0))
            else:
                q.gap(8, ps)
        q.flush()
        assert not nxt
        g.stamp(17 + u if u < 3 else 21)
    e("s_nop 7")
    for ct in range(4):
        pwrite(3, ct)
    g.wait_lg0()
    e("s_barrier")

    def redo_code():
        for u, lab, back in g.redo:
            g.label(lab)
            loop, done = g.newlabel("rl"), g.newlabel("rd")
            e("s_lshl_b32 s%d, s%d, 2" % (sHS, sCI))
            e("s_add_u32 s%d, s%d, %d" % (sHS, sHS, u))
            e("s_lshl_b32 s%d, s%d, 1" % (sHS, sHS))
            e("s_add_u32 s%d, s%d, s%d" % (sHS, sHS, sCS))
            e("s_mul_i32 s%d, s%d, 57344" % (sHS, sHS))
            e("s_mul_i32 s%d, s%d, 14336" % (sT3, sWAVE))
            e("s_add_u32 s%d, s%d, s%d" % (sHS, sHS, sT3))
            e("s_add_u32 s%d, s%d, %d" % (sHS, sHS, WS_HF))
            e("v_add_u32 %s, s%d, %s" % (v(vRD), sHS, v(vL16)))
            e("s_mov_b32 s%d, %d" % (sSPIN, SPIN_LIMIT))
            g.label(loop)
            for s in range(14):
                e("buffer_load_dwordx4 %s, %s, %s, s%d offen sc1" % (hslot(u, s), v(vRD), srd(SRD_WS), sOFF + s))
            e("s_waitcnt vmcnt(0)")
            probe = (0,) if u == 0 else (0, 1)
            for s in range(14):
                for ct in probe:
                    c_mfma(g, u, s, ct)
            e("s_nop 7")
            e("s_nop 3")
            e("v_cmp_u_f32 vcc, %s, %s" % (v(CACC[u & 1]), v(CACC[u & 1])))
            e("s_nop 4")
            e("s_cbranch_vccz %s" % done)
            e("s_sub_u32 s%d, s%d, 1" % (sSPIN, sSPIN))
            e("s_cmp_lg_u32 s%d, 0" % sSPIN)
            e("s_cbranch_scc1 %s" % loop)
            g.label(done)
            if u == 0:
                for s in range(14):
                    for ct in range(1, 4):
                        c_mfma(g, u, s, ct)
                e("s_nop 7")
                e("s_nop 3")
            else:
                for s in range(3):
                    for ct in (2, 3):
                        c_mfma(g, u, s, ct)
            e("s_branch %s" % back)
    g.redo_code = redo_code
    for u in range(3):
        e("s_mov_b32 s%d, %d" % (sT4, 32 * 896 * u))
        g.vmem("buffer_store_dwordx2 %s, %s, %s, s%d offen" % (v(OUTP + 2 * u, 2), v(vOUT), srd(SRD_OUT), sT4), "out")
    q = Q(g)
    finish_items(q, 3, 0)
    q.flush()
    e("s_mov_b32 s%d, %d" % (sT4, 32 * 896 * 3))
    g.vmem("buffer_store_dwordx2 %s, %s, %s, s%d offen" % (v(OUTP + 6, 2), v(vOUT), srd(SRD_OUT), sT4), "out")
```

```python
import sys, os
sys.path.insert(0, os.path.dirname(os.path.abspath(__file__)))
from asmlib import Asm, check_hazards

NAME = "sequential_preLN__ssm_conv_h3__glu_gated_glu__prompt_kernel"
S, D, F = 2048, 448, 1792

WS_KVT = 0x000000
WS_QT = 0x200000
WS_HB = 0x400000
WS_HF = 0x600000
WS_ST1 = 0xE00000
WS_ST2 = 0xE08000
WS_CNT = 0xE10000
WS_TS = 0xF00000
WS_SIZE = 0x1000000
C_S1, C_SL1, C_FH, C_FH1, C_S3, C_S2 = 0, 56, 64, 72, 80, 96
N_CNT = 80

L_WST = 0
L_K = 114688
L_V = L_K + 9216
L_Q = L_V + 8192
L_TS = L_Q + 8192
L_X = L_K
L_EX = L_V
L_HB = 0
L_WD = 86016
LDS_BYTES = 163840

sWAVE = 3
SRD_WS, SRD_Q, SRD_K, SRD_V, SRD_SK, SRD_SH, SRD_WG, SRD_WU, SRD_WD, SRD_OUT, SRD_DBG = 4, 8, 12, 16, 20, 24, 28, 32, 36, 40, 44
sPC = 48
sD = 50
sT0, sT1, sT2, sT3, sT4, sT5, sT6, sT7 = 76, 77, 78, 79, 80, 81, 82, 83
sA0BASE = 84
sG0 = 85
sRB = 86
sBI, sBJ = 87, 88
sCI, sCS, sCJ = 89, 90, 91
sSPIN = 92
sM = 93
sEX = 94
sTS = 96
sHALF = 98
sCHL = 99
sWSO, sWM, sWB, sWG, sWX = 51, 75, 56, 57, 74
sOFF = 58
vWS = 248
vWRD = 246


def srd(n):
    return "s[%d:%d]" % (n, n + 3)


def v(a, n=1):
    return "v%d" % a if n == 1 else "v[%d:%d]" % (a, a + n - 1)


def a(i, n=1):
    return "a%d" % i if n == 1 else "a[%d:%d]" % (i, i + n - 1)


SPIN_LIMIT = 40000
DBG_IDX = [0, 1, 3, 4, 5, 6, 8, 9, 10, 11, 12, 13, 14, 15, 17, 20]


class Gen(Asm):
    def __init__(self, stop=None, stamps=False, tlbwarm=True, prefetch=True, dbgst=False):
        super().__init__()
        self.stop = stop
        self.stamps = stamps
        self.tlbwarm = tlbwarm
        self.prefetch = prefetch
        self.exp = set()
        self.spin_us = 0
        self.dbgst = dbgst
        self.go_off = 128 if dbgst else 0
        self.npre = 8
        self.nw1 = 28
        self.stat_round = 2
        self.ool = []
        self.sleep = 1
        self.b0 = False
        self.hpf = 0
        self.fill_depth = 8
        self.touch = False
        self.wtouch = False
        self.wtouch2 = False
        self.smem_poll = False

    def stamp(self, idx, wave=0):
        if self.dbgst:
            if idx not in DBG_IDX or getattr(self, "in_helper", False):
                return
            lab = self.newlabel("st")
            self.e("s_cmp_eq_u32 s%d, 0" % sWAVE)
            self.e("s_cbranch_scc0 %s" % lab)
            self.e("s_and_b32 s%d, s2, 31" % sTS)
            self.e("s_cmp_eq_u32 s%d, %d" % (sTS, 5))
            self.e("s_cbranch_scc0 %s" % lab)
            self.e("s_memrealtime s[%d:%d]" % (sTS, sTS + 1))
            self.e("s_waitcnt lgkmcnt(0)")
            if idx == 0:
                self.e("s_not_b32 s%d, s%d" % (sTS, sTS))
            self.e("v_mov_b32 v30, s%d" % sTS)
            self.e("v_mov_b32 v31, %d" % (4 * DBG_IDX.index(idx)))
            self.e("s_mov_b64 exec, 1")
            self.e("buffer_atomic_umax v30, v31, %s, 0 offen sc1" % srd(SRD_DBG))
            self.e("s_mov_b64 exec, -1")
            self.label(lab)
            return
        if not self.stamps or wave != 0:
            return
        vS = 93 if getattr(self, "in_helper", False) else 30
        lab = self.newlabel("st")
        self.e("s_cmp_eq_u32 s%d, 0" % sWAVE)
        self.e("s_cbranch_scc0 %s" % lab)
        self.e("s_memrealtime s[%d:%d]" % (sTS, sTS + 1))
        self.e("s_memtime s[100:101]")
        self.e("s_waitcnt lgkmcnt(0)")
        self.e("v_writelane_b32 v%d, s%d, %d" % (vS, sTS, idx))
        self.e("v_writelane_b32 v%d, s100, %d" % (vS, 32 + idx))
        self.label(lab)

    def stamp_dump(self):
        if not self.stamps:
            return
        vS = 93 if getattr(self, "in_helper", False) else 30
        lab = self.newlabel("sd")
        self.e("s_cmp_eq_u32 s%d, 0" % sWAVE)
        self.e("s_cbranch_scc0 %s" % lab)
        self.e("s_lshl_b32 s%d, s2, 8" % sTS)
        self.e("s_add_u32 s%d, s%d, %d" % (sTS, sTS, WS_TS))
        self.e("v_lshl_add_u32 v31, v1, 2, s%d" % sTS)
        self.e("buffer_store_dword v%d, v31, %s, 0 offen" % (vS, srd(SRD_WS)))
        self.label(lab)

    def spin(self, vaddr, vtarget, vtmp):
        loop = self.newlabel("ploop")
        done = self.newlabel("pdone")
        self.e("s_mov_b32 s%d, %d" % (sSPIN, SPIN_LIMIT))
        self.label(loop)
        self.e("buffer_load_dword %s, %s, %s, 0 offen sc1" % (v(vtmp), v(vaddr), srd(SRD_WS)))
        self.e("s_waitcnt vmcnt(0)")
        self.e("v_cmp_lt_u32 vcc, %s, %s" % (v(vtmp), v(vtarget)))
        self.e("s_nop 4")
        self.e("s_cbranch_vccz %s" % done)
        self.e("s_sub_u32 s%d, s%d, 1" % (sSPIN, sSPIN))
        self.e("s_cmp_lg_u32 s%d, 0" % sSPIN)
        self.e("s_cbranch_scc0 %s" % done)
        self.e("s_sleep %d" % self.sleep)
        self.e("s_branch %s" % loop)
        self.label(done)

    def poll(self, vaddr, vtarget, vtmp):
        skip = self.newlabel("pskip")
        self.e("s_cmp_eq_u32 s%d, 0" % sWAVE)
        self.e("s_cbranch_scc0 %s" % skip)
        self.spin(vaddr, vtarget, vtmp)
        self.label(skip)
        self.e("s_barrier")

    def signal(self, vaddr, vone, nlanes):
        skip = self.newlabel("sig")
        self.e("s_cmp_eq_u32 s%d, 0" % sWAVE)
        self.e("s_cbranch_scc0 %s" % skip)
        self.e("s_mov_b64 exec, %d" % ((1 << nlanes) - 1))
        self.e("buffer_atomic_add %s, %s, %s, 0 offen sc1" % (v(vone), v(vaddr), srd(SRD_WS)))
        self.e("s_mov_b64 exec, -1")
        self.label(skip)

    def mark_reads(self, n, vaddr, off, r0, tag):
        return ["ds_read_b128 %s, %s offset:%d" % (v(r0 + 4 * i, 4), v(vaddr), off + 1024 * i) for i in range(n)]

    def mark_fold(self, n, r0):
        out = ["v_max3_u32 %s, %s, %s, %s" % (v(r0), v(r0), v(r0 + 1), v(r0 + 2))]
        i = 3
        while i + 1 < 4 * n:
            out.append("v_max3_u32 %s, %s, %s, %s" % (v(r0), v(r0), v(r0 + i), v(r0 + i + 1)))
            i += 2
        if i < 4 * n:
            out.append("v_max_u32 %s, %s, %s" % (v(r0), v(r0), v(r0 + i)))
        return out

    def mark_branch(self, n, vaddr, off, r0, refetch):
        e = self.e
        lab, back = self.newlabel("mk"), self.newlabel("mkb")
        e("v_cmp_eq_u32 vcc, -1, %s" % v(r0))
        e("s_nop 4")
        e("s_cbranch_vccnz %s" % lab)
        self.label(back)

        def code():
            loop, done = self.newlabel("mkl"), self.newlabel("mkd")
            self.label(lab)
            e("s_mov_b32 s73, m0")
            e("s_mov_b32 s%d, %d" % (sSPIN, SPIN_LIMIT))
            self.label(loop)
            refetch()
            e("s_waitcnt vmcnt(0)")
            for ln in self.mark_reads(n, vaddr, off, r0, None):
                e(ln)
            e("s_waitcnt lgkmcnt(0)")
            for ln in self.mark_fold(n, r0):
                e(ln)
            e("v_cmp_eq_u32 vcc, -1, %s" % v(r0))
            e("s_nop 4")
            e("s_cbranch_vccz %s" % done)
            e("s_sub_u32 s%d, s%d, 1" % (sSPIN, sSPIN))
            e("s_cmp_lg_u32 s%d, 0" % sSPIN)
            e("s_cbranch_scc1 %s" % loop)
            self.label(done)
            e("s_mov_b32 m0, s73")
            e("s_branch %s" % back)
        self.ool.append(code)

    def hb_refetch(self, stb, add, buf, vL16):
        e = self.e
        e("s_add_u32 s56, s%d, %d" % (stb, add))
        e("s_mul_i32 s56, s56, 28672")
        e("s_mul_i32 s57, s%d, 7168" % sWAVE)
        e("s_add_u32 s56, s56, s57")
        e("s_add_u32 s56, s56, %d" % WS_HB)
        e("s_add_u32 m0, s57, %d" % (28672 * buf))
        e("s_nop 0")
        for i in range(4):
            e("buffer_load_dwordx4 %s, %s, s56 offen offset:%d sc1 lds" % (v(vL16), srd(SRD_WS), 1024 * i))
        e("s_add_u32 s56, s56, 4096")
        e("s_add_u32 m0, s57, %d" % (28672 * buf + 4096))
        e("s_nop 0")
        for i in range(3):
            e("buffer_load_dwordx4 %s, %s, s56 offen offset:%d sc1 lds" % (v(vL16), srd(SRD_WS), 1024 * i))

    def endif_stop(self, name):
        if self.stop == name:
            self.wait_all()
            self.e("s_endpgm")
            return True
        return False

    def mk(self, dst, src, size):
        e = self.e
        e("s_mov_b32 s%d, s%d" % (dst, src))
        e("s_mov_b32 s%d, s%d" % (dst + 1, src + 1))
        e("s_mov_b32 s%d, %d" % (dst + 2, size))
        e("s_mov_b32 s%d, 0x20000" % (dst + 3))

    def srds(self, which):
        e, mk = self.e, self.mk
        for r in which:
            if r == "q":
                mk(SRD_Q, 52, S * D * 2)
            elif r == "k":
                mk(SRD_K, 54, S * D * 2)
            elif r == "v":
                mk(SRD_V, 56, S * D * 2)
            elif r == "sh":
                mk(SRD_SH, 58, D * 4 * 2)
            elif r == "sk":
                mk(SRD_SK, 60, S * D * 2)
            elif r == "w":
                mk(SRD_WG, 64, D * F * 2)
                mk(SRD_WU, 66, D * F * 2)
                mk(SRD_WD, 68, D * F * 2)
                e("s_sub_u32 s%d, s%d, 1024" % (SRD_WU, SRD_WU))
                e("s_subb_u32 s%d, s%d, 0" % (SRD_WU + 1, SRD_WU + 1))
                e("s_add_u32 s%d, s%d, 1024" % (SRD_WU + 2, SRD_WU + 2))
            elif r == "rest":
                mk(SRD_OUT, 70, S * D * 2)
                mk(SRD_DBG, 72, 256)
                mk(SRD_WS, 74, WS_SIZE)

    def prologue(self):
        e = self.e
        if self.stamps:
            e("s_memrealtime vcc")
        e("s_load_dwordx8 s[52:59], s[0:1], 0")
        e("s_getpc_b64 s[%d:%d]" % (sPC, sPC + 1))
        self.label("L_pc")
        if self.touch:
            e("s_min_u32 s%d, s2, 223" % sT1)
            e("s_mul_i32 s%d, s%d, 293" % (sRB, sT1))
            e("s_lshr_b32 s%d, s%d, 11" % (sRB, sRB))
            e("v_lshrrev_b32 v3, 6, v0")
            e("v_and_b32 v2, 15, v0")
            e("v_lshl_add_u32 v2, v3, 4, v2")
            e("s_lshl_b32 s%d, s%d, 7" % (sT1, sT1))
            e("s_mul_i32 s%d, s%d, 56448" % (sA0BASE, sRB))
            e("v_mul_u32_u24 v2, 896, v2")
            e("s_add_u32 s%d, s%d, s%d" % (sA0BASE, sA0BASE, sT1))
            e("v_add_u32 v2, s%d, v2" % sA0BASE)
        e("v_and_b32 v4, 7, v0")
        e("s_lshr_b32 s%d, s2, 3" % sT0)
        e("v_lshlrev_b32 v4, 7, v4")
        e("s_lshl_b32 s%d, s%d, 10" % (sT0, sT0))
        e("v_add_u32 v4, s%d, v4" % sT0)
        e("v_min_u32 v4, L_codeend-L_pc-4, v4")
        e("global_load_dword v253, v4, s[%d:%d]" % (sPC, sPC + 1))
        if self.touch:
            e("s_waitcnt lgkmcnt(0)")
            e("global_load_dword v252, v2, s[54:55]")
            e("global_load_dword v252, v2, s[56:57]")
            e("global_load_dword v252, v2, s[52:53]")
        else:
            e("v_lshrrev_b32 v3, 6, v0")
        e("s_load_dwordx4 s[60:63], s[0:1], 32")
        e("s_load_dwordx4 s[64:67], s[0:1], 56")
        e("s_load_dwordx4 s[68:71], s[0:1], 72")
        e("s_load_dwordx4 s[72:75], s[0:1], 88")
        if self.spin_us:
            e("s_memrealtime s[100:101]")
        e("v_and_b32 v1, 63, v0")
        e("v_readfirstlane_b32 s%d, v3" % sWAVE)
        e("s_cmp_ge_u32 s2, 256")
        e("s_cbranch_scc1 L_exit")
        e("s_cmp_ge_u32 s2, 224")
        e("s_cbranch_scc1 L_helper")

    def phase_a0(self):
        e = self.e
        self.c("==== A0 ====")
        e("s_mul_i32 s%d, s2, 293" % sRB)
        e("s_lshr_b32 s%d, s%d, 11" % (sRB, sRB))
        e("s_mul_i32 s%d, s%d, 7" % (sT0, sRB))
        e("s_sub_u32 s%d, s2, s%d" % (sG0, sT0))
        e("s_mul_i32 s%d, s%d, %d" % (sA0BASE, sRB, 64 * 896))
        e("s_lshl_b32 s%d, s%d, 7" % (sT0, sG0))
        e("s_add_u32 s%d, s%d, s%d" % (sA0BASE, sA0BASE, sT0))
        vP, vOff, vOffH, vT = 4, 5, 6, 7
        e("v_lshrrev_b32 %s, 4, v1" % v(vT))
        e("v_and_b32 %s, 1, %s" % (v(vT), v(vT)))
        e("v_lshlrev_b32 %s, 1, %s" % (v(vT), v(vT)))
        e("v_and_b32 %s, 7, v1" % v(vP))
        e("v_xor_b32 %s, %s, %s" % (v(vP), v(vP), v(vT)))
        e("v_lshlrev_b32 %s, 4, %s" % (v(vP), v(vP)))
        e("v_lshrrev_b32 %s, 3, v1" % v(vT))
        e("v_mul_u32_u24 %s, 896, %s" % (v(vT), v(vT)))
        e("v_add_u32 %s, %s, %s" % (v(vP), v(vP), v(vT)))
        e("s_and_b32 s%d, s%d, 1" % (sT0, sWAVE))
        e("s_lshl_b32 s%d, s%d, 6" % (sT0, sT0))
        e("v_xor_b32 %s, s%d, %s" % (v(vOff), sT0, v(vP)))
        e("v_xor_b32 %s, 64, %s" % (v(vOffH), v(vP)))
        e("s_cmp_eq_u32 s%d, 0" % sRB)
        e("s_cselect_b32 s%d, 0x80000000, 0" % sT1)
        e("v_add_u32 %s, s%d, %s" % (v(vOffH), sT1, v(vOffH)))
        e("s_sub_u32 s%d, s%d, 7168" % (sT2, sA0BASE))
        e("s_cmp_eq_u32 s%d, 0" % sRB)
        e("s_cselect_b32 s%d, 0, s%d" % (sT2, sT2))
        e("s_mul_i32 s%d, s%d, 7168" % (sT3, sWAVE))
        e("s_add_u32 s%d, s%d, s%d" % (sT3, sT3, sA0BASE))
        e("s_add_u32 s%d, s%d, %d" % (sT4, sT3, 4 * 7168))
        e("s_lshl_b32 s%d, s%d, 10" % (sT5, sWAVE))

        e("s_waitcnt lgkmcnt(0)")
        if self.stamps:
            e("v_mov_b32 v254, vcc_lo")
            e("v_mov_b32 v30, 0")
        self.srds("kvq")

        def dma(srdn, voff, soff, ldsbase, addw=True):
            if addw:
                e("s_add_u32 m0, s%d, %d" % (sT5, ldsbase))
            else:
                e("s_mov_b32 m0, %d" % ldsbase)
            e("s_nop 0")
            self.vmem("buffer_load_dwordx4 %s, %s, s%d offen lds" % (v(voff), srd(srdn), soff), "a0")
        dma(SRD_K, vOffH, sT2, L_K, addw=False)
        dma(SRD_K, vOff, sT3, L_K + 1024)
        dma(SRD_K, vOff, sT4, L_K + 5 * 1024)
        dma(SRD_V, vOff, sT3, L_V)
        dma(SRD_V, vOff, sT4, L_V + 4 * 1024)
        dma(SRD_Q, vOff, sT3, L_Q)
        dma(SRD_Q, vOff, sT4, L_Q + 4 * 1024)
        self.srds(["sh", "sk"])
        vCH, vSK = 8, 10
        e("s_lshl_b32 s%d, s%d, 6" % (sT0, sG0))
        e("s_lshl_b32 s%d, s%d, 4" % (sT1, sWAVE))
        e("s_add_u32 s%d, s%d, s%d" % (sT0, sT0, sT1))
        e("v_and_b32 %s, 15, v1" % v(vCH))
        e("v_add_u32 %s, s%d, %s" % (v(vCH), sT0, v(vCH)))
        e("v_lshlrev_b32 %s, 3, %s" % (v(vT), v(vCH)))
        self.vmem("buffer_load_dwordx2 %s, %s, %s, 0 offen" % (v(vSK, 2), v(vT), srd(SRD_SH)), "a0")

        e("s_lshr_b32 s%d, s%d, 1" % (sCHL, sWAVE))
        e("s_and_b32 s%d, s%d, 1" % (sHALF, sWAVE))
        vL16 = 9
        e("v_lshlrev_b32 %s, 4, v1" % v(vL16))
        e("s_lshl_b32 s%d, s2, 1" % sT0)
        e("s_add_u32 s%d, s%d, s%d" % (sT0, sT0, sCHL))
        e("s_lshl_b32 s%d, s%d, 12" % (sT0, sT0))
        e("s_lshl_b32 s%d, s%d, 11" % (sT1, sHALF))
        e("s_add_u32 s%d, s%d, s%d" % (sT0, sT0, sT1))
        e("s_mul_i32 s%d, s%d, 8320" % (sT2, sCHL))
        e("s_add_u32 s%d, s%d, s%d" % (sT2, sT2, sT1))
        e("s_add_u32 m0, s%d, %d" % (sT2, L_TS + 32))
        e("s_nop 0")
        for i in range(2):
            self.vmem("buffer_load_dwordx4 %s, %s, s%d offen offset:%d lds" % (v(vL16), srd(SRD_SK), sT0, 1024 * i), "ts")
        self.srds(["w", "rest"])
        self.decode_bc()
        self.stamp(0)
        if self.stamps:
            e("v_readfirstlane_b32 s%d, v254" % sTS)
            e("s_nop 3")
            e("v_writelane_b32 v30, s%d, 31" % sTS)
        if self.tlbwarm:
            self.c("touch every page that is used later (address translation warm-up)")
            vZ = 59
            e("v_mov_b32 %s, 0" % v(vZ))
            e("s_mov_b64 exec, 1")
            for r in (SRD_SK, SRD_WG, SRD_WD, SRD_OUT):
                e("buffer_load_dword v252, %s, %s, 0 offen" % (v(vZ), srd(r)))
            e("v_mov_b32 %s, 1024" % v(vZ))
            e("buffer_load_dword v252, %s, %s, 0 offen" % (v(vZ), srd(SRD_WU)))
            e("s_mov_b64 exec, 0xff")
            e("v_lshlrev_b32 %s, 21, v1" % v(vZ))
            e("buffer_load_dword v252, %s, %s, 0 offen" % (v(vZ), srd(SRD_WS)))
            e("s_mov_b64 exec, -1")
            self.vm += ["tlb"] * 6
        e("s_lshl_b32 s%d, s2, 2" % sT3)
        e("s_load_dword s%d, s[62:63], s%d" % (sD, sT3))

        vTR, vTRH, vG, vR = 13, 14, 15, 16
        e("v_lshrrev_b32 %s, 4, v1" % v(vG))
        e("v_bfe_u32 %s, v1, 2, 2" % v(vR))
        e("v_lshrrev_b32 %s, 1, %s" % (v(vT), v(vR)))
        e("v_and_b32 %s, 1, %s" % (v(vTR), v(vG)))
        e("v_lshl_or_b32 %s, %s, 1, %s" % (v(vT), v(vTR), v(vT)))
        e("v_xor_b32 %s, s%d, %s" % (v(vT), sWAVE, v(vT)))
        e("v_lshlrev_b32 %s, 5, %s" % (v(vT), v(vT)))
        e("v_lshl_add_u32 %s, %s, 3, %s" % (v(vTR), v(vG), v(vR)))
        e("v_lshl_add_u32 %s, %s, 7, %s" % (v(vTR), v(vTR), v(vT)))
        e("v_and_b32 %s, 3, v1" % v(vT))
        e("v_lshl_add_u32 %s, %s, 3, %s" % (v(vTR), v(vT), v(vTR)))
        e("v_add_u32 %s, %d, %s" % (v(vTR), L_K, v(vTR)))
        e("v_xor_b32 %s, 64, %s" % (v(vTRH), v(vTR)))
        vSKV, vSQ = 17, 18
        e("s_lshl_b32 s%d, s%d, 7" % (sT0, sRB))
        e("v_lshlrev_b32 %s, 12, %s" % (v(vSQ), v(vCH)))
        e("v_lshlrev_b32 %s, 4, %s" % (v(vT), v(vG)))
        e("s_sub_u32 s%d, %d, s%d" % (sT1, WS_KVT + 4080 - 64, sT0))
        e("v_add_u32 %s, s%d, %s" % (v(vSKV), sT1, v(vSQ)))
        e("v_sub_u32 %s, %s, %s" % (v(vSKV), v(vSKV), v(vT)))
        e("s_add_u32 s%d, s%d, %d" % (sT1, sT0, WS_QT))
        e("v_add3_u32 %s, %s, %s, s%d" % (v(vSQ), v(vSQ), v(vT), sT1))
        self.wait_vm("a0")
        e("s_waitcnt lgkmcnt(0)")
        self.lg = []
        e("s_lshl_b32 s%d, s%d, 16" % (sT0, sD))
        e("s_and_b32 s%d, s%d, 0xffff0000" % (sT1, sD))
        e("s_cmp_eq_u32 s%d, 0" % sCHL)
        e("s_cselect_b32 s%d, s%d, s%d" % (sD, sT0, sT1))
        e("s_barrier")
        self.stamp(1)
        if self.wtouch:
            self.w_touch(0, "wt")

        KH = [24, 34]
        KM = [26, 36]
        VV = [40, 44]
        QQ = [48, 52]
        for rho in range(2):
            self.lds("ds_read_b64_tr_b16 %s, %s offset:%d" % (v(KH[rho], 2), v(vTRH), 512 + 4096 * rho), "k%d" % rho)
            self.lds("ds_read_b64_tr_b16 %s, %s offset:%d" % (v(KM[rho], 2), v(vTR), 1024 + 4096 * rho), "k%d" % rho)
            self.lds("ds_read_b64_tr_b16 %s, %s offset:%d" % (v(KM[rho] + 2, 2), v(vTR), 1024 + 512 + 4096 * rho), "k%d" % rho)
            self.lds("ds_read_b64_tr_b16 %s, %s offset:%d" % (v(VV[rho], 2), v(vTR), L_V - L_K + 4096 * rho), "v%d" % rho)
            self.lds("ds_read_b64_tr_b16 %s, %s offset:%d" % (v(VV[rho] + 2, 2), v(vTR), L_V - L_K + 512 + 4096 * rho), "v%d" % rho)
        for rho in range(2):
            self.lds("ds_read_b64_tr_b16 %s, %s offset:%d" % (v(QQ[rho], 2), v(vTR), L_Q - L_K + 4096 * rho), "q")
            self.lds("ds_read_b64_tr_b16 %s, %s offset:%d" % (v(QQ[rho] + 2, 2), v(vTR), L_Q - L_K + 512 + 4096 * rho), "q")
        CA, CB = 21, 22
        e("v_alignbit_b32 %s, %s, %s, 16" % (v(CA), v(vSK), v(vSK)))
        e("v_alignbit_b32 %s, %s, %s, 16" % (v(CB), v(vSK + 1), v(vSK + 1)))
        MM = 56
        KS = 64
        VF = 72
        OUTR = [80, 84]
        for rho in range(2):
            self.wait_lg("v%d" % rho)
            Dw = [KH[rho], KH[rho] + 1, KM[rho], KM[rho] + 1, KM[rho] + 2, KM[rho] + 3]
            for i in range(5):
                e("v_alignbit_b32 %s, %s, %s, 16" % (v(MM + i), v(Dw[i + 1]), v(Dw[i])))
            for t in range(8):
                if t & 1:
                    p0, p1 = Dw[2 + (t >> 1)], Dw[1 + (t >> 1)]
                else:
                    p0, p1 = MM + 1 + (t >> 1), MM + (t >> 1)
                e("v_dot2_f32_bf16 %s, %s, %s, 0" % (v(KS + t), v(p1), v(CB)))
            for t in range(8):
                if t & 1:
                    p0 = Dw[2 + (t >> 1)]
                else:
                    p0 = MM + 1 + (t >> 1)
                e("v_dot2_f32_bf16 %s, %s, %s, %s" % (v(KS + t), v(p0), v(CA), v(KS + t)))
            for t in range(8):
                src = VV[rho] + (t >> 1)
                if t & 1:
                    e("v_and_b32 %s, 0xffff0000, %s" % (v(VF + t), v(src)))
                else:
                    e("v_lshlrev_b32 %s, 16, %s" % (v(VF + t), v(src)))
            for t in range(8):
                e("v_mul_f32 %s, %s, %s" % (v(KS + t), v(KS + t), v(VF + t)))
            for i in range(4):
                e("v_cvt_pk_bf16_f32 %s, %s, %s" % (v(OUTR[rho] + i), v(KS + 7 - 2 * i), v(KS + 6 - 2 * i)))
            self.vmem("buffer_store_dwordx4 %s, %s, %s, 0 offen offset:%d sc1" % (v(OUTR[rho], 4), v(vSKV), srd(SRD_WS), 64 if rho == 0 else 0), "a0st")
        self.wait_lg("q")
        for rho in range(2):
            self.vmem("buffer_store_dwordx4 %s, %s, %s, 0 offen offset:%d sc1" % (v(QQ[rho], 4), v(vSQ), srd(SRD_WS), 64 * rho), "a0st")
        vGO, vZERO = 23, 58
        e("v_mov_b32 %s, 0" % v(vZERO))
        self.vmem("buffer_load_dword %s, %s, %s, 0 offen offset:%d sc1" % (v(vGO), v(vZERO), srd(SRD_DBG), self.go_off), "go")
        self.stamp(2)

    def w_touch(self, half, tag):
        e = self.e
        vP = 62
        e("s_and_b32 s%d, s%d, 3" % (sT0, sBI))
        e("s_mul_i32 s%d, s%d, %d" % (sT0, sT0, 56 * 3584))
        e("s_lshl_b32 s%d, s%d, 8" % (sT1, sBJ))
        e("s_add_u32 s%d, s%d, s%d" % (sT0, sT0, sT1))
        e("s_lshr_b32 s%d, s%d, 1" % (sT1, sWAVE))
        e("s_lshl_b32 s%d, s%d, 7" % (sT1, sT1))
        e("s_add_u32 s%d, s%d, s%d" % (sT0, sT0, sT1))
        if half:
            e("s_add_u32 s%d, s%d, %d" % (sT0, sT0, 224 * 3584))
        e("v_min_u32 %s, 55, v1" % v(vP))
        e("v_mul_u32_u24 %s, 3584, %s" % (v(vP), v(vP)))
        lab, labj = self.newlabel("wt"), self.newlabel("wtj")
        e("s_bitcmp1_b32 s%d, 0" % sWAVE)
        e("s_cbranch_scc1 %s" % lab)
        e("buffer_load_dword v252, %s, %s, s%d offen" % (v(vP), srd(SRD_WG), sT0))
        e("s_branch %s" % labj)
        self.label(lab)
        e("buffer_load_dword v252, %s, %s, s%d offen offset:1024" % (v(vP), srd(SRD_WU), sT0))
        self.label(labj)
        self.vm.append(tag)

    def t_build(self):
        e = self.e
        vZ, vZA, vRA, vPA = 19, 20, 21, 22
        D0 = 100
        e("v_mov_b32 %s, 0" % v(vZ))
        e("s_mul_i32 s%d, s%d, 8320" % (sT2, sCHL))
        e("s_add_u32 s%d, s%d, %d" % (sT2, sT2, L_TS))
        e("v_lshl_add_u32 %s, v1, 2, s%d" % (v(vPA), sT2))
        e("v_mov_b32 %s, s%d" % (v(vZA), sT2))
        e("v_add_u32 %s, %d, %s" % (v(vZA), 32 + 4096, v(vZA)))
        e("v_cmp_gt_u32 vcc, 8, v1")
        e("s_nop 1")
        e("v_cndmask_b32 %s, %s, %s, vcc" % (v(vZA), v(vZA), v(vPA)))
        e("s_mov_b64 exec, 0x1ff")
        e("ds_write_b32 %s, %s" % (v(vZA), v(vZ)))
        e("s_mov_b64 exec, -1")
        e("s_lshl_b32 s%d, s%d, 11" % (sT1, sHALF))
        e("s_add_u32 s%d, s%d, s%d" % (sT1, sT1, sT2))
        e("s_add_u32 s%d, s%d, 32" % (sT1, sT1))
        e("v_lshl_add_u32 %s, v1, 4, s%d" % (v(vRA), sT1))
        self.wait_vm("ts")
        self.wait_lg0()
        e("s_barrier")
        for c in range(2):
            e("ds_read_b128 %s, %s offset:%d" % (v(D0 + 6 * c, 4), v(vRA), 1024 * c))
            e("ds_read_b32 %s, %s offset:%d" % (v(D0 + 6 * c + 4), v(vRA), 1024 * c + 16))
        e("ds_read2_b32 %s, %s offset0:0 offset1:1" % (v(D0 + 12, 2), v(vPA)))
        e("s_mul_i32 s%d, s%d, 4608" % (sT0, sCHL))
        e("s_lshl_b32 s%d, s%d, 8" % (sT1, sHALF))
        e("s_add_u32 s%d, s%d, s%d" % (sT0, sT0, sT1))
        e("s_add_u32 s%d, s%d, %d" % (sT0, sT0, L_X + 4096))
        e("v_lshl_add_u32 %s, v1, 2, s%d" % (v(vZA), sT0))
        e("ds_write_b32 %s, %s" % (v(vZA), v(vZ)))
        self.wait_lg0()
        O = D0 + 16
        for c in range(2):
            for i in range(4):
                e("v_alignbit_b32 %s, %s, %s, 16" % (v(O + 4 * c + i), v(D0 + 6 * c + i + 1), v(D0 + 6 * c + i)))
        e("v_alignbit_b32 %s, %s, %s, 16" % (v(O + 8), v(D0 + 13), v(D0 + 12)))
        for c in range(2):
            e("ds_write_b128 %s, %s offset:%d" % (v(vRA), v(O + 4 * c, 4), 4160 + 1024 * c))
        e("s_mov_b64 exec, 0xff")
        e("ds_write_b32 %s, %s offset:4160" % (v(vPA), v(O + 8)))
        e("s_mov_b64 exec, -1")
        self.wait_lg0()
        e("s_barrier")

    def w_stage_setup(self):
        e = self.e
        vT = 7
        e("v_lshrrev_b32 %s, 2, v1" % v(vT))
        e("v_mul_u32_u24 %s, 3584, %s" % (v(vT), v(vT)))
        e("v_and_b32 %s, 3, v1" % v(vWS))
        e("v_xor_b32 %s, 2, %s" % (v(vWS + 1), v(vWS)))
        e("v_lshl_add_u32 %s, %s, 4, %s" % (v(vWS), v(vWS), v(vT)))
        e("v_lshl_add_u32 %s, %s, 4, %s" % (v(vWS + 1), v(vWS + 1), v(vT)))
        e("v_add_u32 %s, %d, %s" % (v(vWS + 2), 57344 - 2048, v(vWS)))
        e("v_add_u32 %s, %d, %s" % (v(vWS + 3), 57344 - 2048, v(vWS + 1)))

    def w_stage_items(self, rnd, spanel=None, gstart=0, ngroups=7, sgstart=None):
        e = self.e
        items = []
        sp = sWAVE if spanel is None else spanel

        def setup():
            e("s_lshl_b32 s%d, s%d, 8" % (sWB, sBJ))
            e("s_lshl_b32 s%d, s%d, 6" % (sWM, sp))
            e("s_add_u32 s%d, s%d, s%d" % (sWB, sWB, sWM))
            if rnd:
                e("s_add_u32 s%d, s%d, %d" % (sWB, sWB, 14 * rnd * 57344))
            e("s_mul_i32 s%d, s%d, 28672" % (sWM, sp))
            if L_WST:
                e("s_add_u32 s%d, s%d, %d" % (sWM, sWM, L_WST))
            e("s_and_b32 s%d, s%d, 3" % (sWG, sBI))
            e("s_lshl_b32 s%d, s%d, 1" % (sWG, sWG))
            if sgstart is not None:
                e("s_add_u32 s%d, s%d, s%d" % (sWG, sWG, sgstart))
                e("s_cmp_ge_u32 s%d, 7" % sWG)
                e("s_cselect_b32 s%d, 7, 0" % sWX)
                e("s_sub_u32 s%d, s%d, s%d" % (sWG, sWG, sWX))

        def addr():
            e("s_mul_i32 s%d, s%d, %d" % (sWSO, sWG, 2 * 57344))
            e("s_add_u32 s%d, s%d, s%d" % (sWSO, sWSO, sWB))
            e("s_lshl_b32 s%d, s%d, 12" % (sWX, sWG))
            e("s_add_u32 m0, s%d, s%d" % (sWX, sWM))
        for grp in range(ngroups):
            for n in range(4):
                def one(grp=grp, n=n):
                    if grp == 0 and n == 0:
                        setup()
                        addr()
                        e("s_nop 0")
                    elif n == 0:
                        e("s_add_u32 s%d, s%d, 1" % (sWG, sWG))
                        e("s_cmp_eq_u32 s%d, 7" % sWG)
                        e("s_cselect_b32 s%d, 0, s%d" % (sWG, sWG))
                        addr()
                        e("s_nop 0")
                    self.vmem("buffer_load_dwordx4 %s, %s, s%d offen offset:%d lds" % (v(vWS + (n & 1) + 2 * (n >> 1)), srd(SRD_WG if (n & 1) == 0 else SRD_WU), sWSO, 1024 * n), "w%d" % rnd)
                items.append(one)
        return items

    def w_stage_read_setup(self, vB0, vB1):
        e = self.e
        vT, vU = 7, 4
        e("v_bfe_u32 %s, v1, 4, 1" % v(vT))
        e("v_lshrrev_b32 %s, 5, v1" % v(vU))
        e("v_lshlrev_b32 %s, 3, %s" % (v(vU), v(vU)))
        e("v_bfe_u32 %s, v1, 2, 2" % v(vB0))
        e("v_add_u32 %s, %s, %s" % (v(vU), v(vU), v(vB0)))
        e("v_lshlrev_b32 %s, 6, %s" % (v(vU), v(vU)))
        e("v_and_b32 %s, 3, v1" % v(vB0))
        e("v_lshl_add_u32 %s, %s, 3, %s" % (v(vU), v(vB0), v(vU)))
        e("v_mul_u32_u24 %s, 1056, %s" % (v(vT), v(vT)))
        e("s_mul_i32 s%d, s%d, 28672" % (sT0, sWAVE))
        e("v_add3_u32 %s, %s, %s, s%d" % (v(vB0), v(vU), v(vT), sT0))
        e("v_xor_b32 %s, 32, %s" % (v(vB1), v(vB0)))

    def w_stage_read_items(self, rnd, vB0, vB1):
        items = []
        for s in range(14):
            for ft in range(2):
                base = 8 * (14 * rnd + s) + 4 * ft
                for ee in range(2):
                    items.append("ds_read_b64_tr_b16 %s, %s offset:%d" % (a(base + 2 * ee, 2), v(vB0 if ft == 0 else vB1), L_WST + 2048 * s + 256 * ee))
        return items

    def w_stage_read(self, rnd):
        self.c("W staging -> AGPR round %d" % rnd)
        self.wait_vm("w%d" % rnd)
        for line in self.w_stage_read_items(rnd, vWRD, vWRD + 1):
            self.lds(line, "wr")

    def t_read(self):
        e = self.e
        self.c("T fragments -> a112..a239")
        vB, vT, vU = 240, 7, 4
        e("v_and_b32 %s, 15, v1" % v(vT))
        e("v_and_b32 %s, 1, %s" % (v(vU), v(vT)))
        e("v_add_u32 %s, %s, %s" % (v(vT), v(vT), v(vU)))
        e("v_lshrrev_b32 %s, 4, v1" % v(vB))
        e("v_lshl_add_u32 %s, %s, 3, %s" % (v(vT), v(vB), v(vT)))
        e("v_lshlrev_b32 %s, 1, %s" % (v(vT), v(vT)))
        e("v_xor_b32 %s, 1, %s" % (v(vU), v(vU)))
        e("v_mul_u32_u24 %s, 4160, %s" % (v(vU), v(vU)))
        e("s_mul_i32 s%d, s%d, 8320" % (sT0, sCHL))
        e("s_lshl_b32 s%d, s%d, 8" % (sT1, sHALF))
        e("s_add_u32 s%d, s%d, s%d" % (sT0, sT0, sT1))
        e("s_add_u32 s%d, s%d, %d" % (sT0, sT0, L_TS))
        e("v_add3_u32 %s, %s, %s, s%d" % (v(vB), v(vT), v(vU), sT0))
        for i in range(1, 4):
            e("v_add_u32 %s, %d, %s" % (v(vB + i), 1024 * i, v(vB)))
        items = []
        for rr in range(4):
            for q in range(8):
                base = 112 + 4 * (8 * rr + q)
                o = 128 * (q & 1) + 16 * rr
                for hh in range(2):
                    items.append("ds_read2_b32 %s, %s offset0:%d offset1:%d" % (a(base + 2 * hh, 2), v(vB + (q >> 1)), o + 2 * hh, o + 2 * hh + 1))
        return items

    def pre_signal(self):
        e = self.e
        if self.wtouch2:
            self.w_touch(0, "wt")
        self.t_build()
        titems = self.t_read()
        lab0, labj = self.newlabel("p0"), self.newlabel("pj")
        e("s_cmp_eq_u32 s%d, 0" % sWAVE)
        e("s_cbranch_scc1 %s" % lab0)
        save = list(self.vm)
        self.w0_own = self.w_stage_items(0)
        t = list(titems)
        npre = self.npre
        for it in self.w0_own[:npre]:
            it()
            for _ in range(64 // max(npre, 1)):
                e(t.pop(0))
        while t:
            e(t.pop(0))
        self.wait_vm("go")
        self.vm = list(save)
        e("s_branch %s" % labj)
        self.label(lab0)
        for line in titems:
            e(line)
        self.wait_vm("go")
        self.label(labj)

    def window1(self, vL16):
        e = self.e
        lab0, labj = self.newlabel("w0"), self.newlabel("wj")
        e("s_cmp_eq_u32 s%d, 0" % sWAVE)
        e("s_cbranch_scc1 %s" % lab0)
        if self.prefetch:
            vP = 59
            e("s_mul_i32 s%d, s2, 7168" % sT0)
            e("s_sub_u32 s%d, s%d, 1" % (sT1, sWAVE))
            e("s_mul_i32 s%d, s%d, %d" % (sT1, sT1, 19 * 128))
            e("s_add_u32 s%d, s%d, s%d" % (sT0, sT0, sT1))
            e("v_lshl_add_u32 %s, v1, 7, s%d" % (v(vP), sT0))
            e("s_mov_b64 exec, 0x7ffff")
            e("buffer_load_dword v252, %s, %s, 0 offen" % (v(vP), srd(SRD_WG)))
            e("buffer_load_dword v252, %s, %s, 0 offen offset:1024" % (v(vP), srd(SRD_WU)))
            e("buffer_load_dword v252, %s, %s, 0 offen" % (v(vP), srd(SRD_WD)))
            e("s_mov_b64 exec, -1")
        save = list(self.vm)
        if self.b0:
            e("s_barrier")
        for it in self.w0_own[self.npre:]:
            it()
        sPAN, sGST = 72, 73
        e("s_mov_b32 s%d, 0" % sPAN)
        e("s_lshl_b32 s%d, s%d, 1" % (sGST, sWAVE))
        e("s_sub_u32 s%d, s%d, 1" % (sGST, sGST))
        e("s_cmp_eq_u32 s%d, 1" % sWAVE)
        e("s_cselect_b32 s%d, 0, s%d" % (sGST, sGST))
        sh = self.w_stage_items(0, spanel=sPAN, ngroups=3, sgstart=sGST)
        for it in sh[:8]:
            it()
        lab3 = self.newlabel("w3")
        e("s_cmp_eq_u32 s%d, 1" % sWAVE)
        e("s_cbranch_scc0 %s" % lab3)
        for it in sh[8:]:
            it()
        self.label(lab3)
        self.vm = save
        e("s_waitcnt vmcnt(0) lgkmcnt(0)")
        self.stamp(21, wave=1)
        e("s_branch %s" % labj)
        self.label(lab0)
        vA, vTg, vTmp = 21, 22, 23
        e("s_lshr_b32 s%d, s2, 5" % sT0)
        e("s_lshl_b32 s%d, s%d, 3" % (sT0, sT0))
        e("s_and_b32 s%d, s2, 7" % sT1)
        e("s_add_u32 s%d, s%d, s%d" % (sT0, sT0, sT1))
        e("s_lshl_b32 s%d, s%d, 8" % (sT0, sT0))
        e("s_add_u32 s%d, s%d, %d" % (sT0, sT0, WS_CNT + 256 * C_S1))
        e("v_mov_b32 %s, s%d" % (v(vA), sT0))
        e("v_mov_b32 %s, 32" % v(vTg))
        if self.smem_poll:
            loop, done = self.newlabel("sp"), self.newlabel("spd")
            e("s_mov_b32 s%d, %d" % (sSPIN, SPIN_LIMIT))
            self.label(loop)
            e("s_load_dword s%d, s[%d:%d], s%d glc" % (sT1, SRD_WS, SRD_WS + 1, sT0))
            e("s_waitcnt lgkmcnt(0)")
            e("s_cmp_ge_u32 s%d, 32" % sT1)
            e("s_cbranch_scc1 %s" % done)
            e("s_sub_u32 s%d, s%d, 1" % (sSPIN, sSPIN))
            e("s_cmp_lg_u32 s%d, 0" % sSPIN)
            e("s_cbranch_scc1 %s" % loop)
            self.label(done)
        else:
            self.spin(vA, vTg, vTmp)
        self.stamp(4)
        e("s_lshl_b32 s%d, s2, 13" % sT0)
        if WS_KVT:
            e("s_add_u32 s%d, s%d, %d" % (sT0, sT0, WS_KVT))
        e("s_mov_b32 m0, %d" % L_X)
        e("s_nop 0")
        for i in range(4):
            e("buffer_load_dwordx4 %s, %s, s%d offen offset:%d sc1 lds" % (v(vL16), srd(SRD_WS), sT0, 1024 * i))
        e("s_add_u32 s%d, s%d, 4096" % (sT0, sT0))
        e("s_mov_b32 m0, %d" % (L_X + 4608))
        e("s_nop 0")
        for i in range(4):
            e("buffer_load_dwordx4 %s, %s, s%d offen offset:%d sc1 lds" % (v(vL16), srd(SRD_WS), sT0, 1024 * i))
        if self.b0:
            e("s_barrier")
        e("s_and_b32 s%d, s2, 7" % sT1)
        e("s_lshl_b32 s%d, s%d, 8" % (sT1, sT1))
        e("s_add_u32 s%d, s%d, %d" % (sT1, sT1, WS_CNT + 256 * C_SL1))
        e("v_mov_b32 %s, s%d" % (v(vA), sT1))
        e("v_add_u32 %s, %d, %s" % (v(vTmp), 256 * (C_FH1 - C_SL1), v(vA)))
        e("v_cmp_gt_u32 vcc, 32, v1")
        e("s_nop 1")
        e("v_cndmask_b32 %s, %s, %s, vcc" % (v(vA), v(vTmp), v(vA)))
        e("s_waitcnt vmcnt(0) lgkmcnt(0)")
        self.stamp(22)
        self.label(labj)
        self.vm = ["w0"]
        self.lg = []
        e("s_barrier")

    def phase_a1(self):
        e = self.e
        self.c("==== A1 ====")
        ACC = 32
        XF = [64, 96]
        QR, KVR, AR, BR = 128, 136, 144, 160
        LN, KD, QF = 176, 192, 208
        Y = 224
        vT, vU = 7, 4
        vL16 = 9
        e("v_lshlrev_b32 %s, 4, v1" % v(vL16))
        e("s_lshl_b32 s%d, s2, 1" % sT0)
        e("s_add_u32 s%d, s%d, s%d" % (sT0, sT0, sCHL))
        e("s_lshl_b32 s%d, s%d, 12" % (sT0, sT0))
        vTL = 5
        e("v_and_b32 %s, 15, v1" % v(vT))
        e("v_lshrrev_b32 %s, 4, v1" % v(vU))
        e("v_lshlrev_b32 %s, 2, %s" % (v(vU), v(vU)))
        e("v_lshl_add_u32 %s, %s, 4, %s" % (v(vTL), v(vT), v(vU)))
        e("s_lshl_b32 s%d, s%d, 10" % (sT1, sHALF))
        e("v_add_u32 %s, s%d, %s" % (v(vTL), sT1, v(vTL)))
        vQA, vSA = 6, 8
        e("s_add_u32 s%d, s%d, %d" % (sT2, sT0, WS_QT))
        e("v_lshl_add_u32 %s, %s, 1, s%d" % (v(vQA), v(vTL), sT2))
        e("v_lshlrev_b32 %s, 2, %s" % (v(vSA), v(vTL)))
        e("s_mov_b32 s%d, %d" % (sT4, WS_ST1))
        e("s_mov_b32 s%d, %d" % (sT5, WS_ST1 + 8192))
        vXB, vKVA, vEW, vER = 10, 11, 12, 13
        e("v_and_b32 %s, 15, v1" % v(vT))
        e("v_lshrrev_b32 %s, 4, v1" % v(vU))
        e("v_lshlrev_b32 %s, 4, %s" % (v(vU), v(vU)))
        e("v_lshlrev_b32 %s, 5, %s" % (v(vT), v(vT)))
        e("v_sub_u32 %s, %s, %s" % (v(vXB), v(vU), v(vT)))
        e("s_mul_i32 s%d, s%d, 4608" % (sT0, sCHL))
        e("s_lshl_b32 s%d, s%d, 8" % (sT1, sHALF))
        e("s_add_u32 s%d, s%d, s%d" % (sT1, sT1, sT0))
        e("s_add_u32 s%d, s%d, %d" % (sT1, sT1, L_X + 480))
        e("v_add_u32 %s, s%d, %s" % (v(vXB), sT1, v(vXB)))
        e("s_add_u32 s%d, s%d, %d" % (sT1, sT0, L_X + 4088 - 1536))
        e("v_lshlrev_b32 %s, 1, %s" % (v(vT), v(vTL)))
        e("v_sub_u32 %s, s%d, %s" % (v(vKVA), sT1, v(vT)))
        e("s_lshl_b32 s%d, s%d, 12" % (sT0, sWAVE))
        e("s_add_u32 s%d, s%d, %d" % (sT1, sT0, L_TS))
        e("v_add_u32 %s, s%d, %s" % (v(vEW), sT1, v(vL16)))
        e("s_xor_b32 s%d, s%d, 0x1000" % (sT0, sT0))
        e("s_add_u32 s%d, s%d, %d" % (sT1, sT0, L_TS))
        e("v_add_u32 %s, s%d, %s" % (v(vER), sT1, v(vL16)))
        vHO = 14
        vRow = 15
        e("v_lshrrev_b32 %s, 4, v1" % v(vRow))
        e("v_and_b32 %s, 15, v1" % v(vT))
        e("v_lshrrev_b32 %s, 1, %s" % (v(vU), v(vT)))
        e("v_and_b32 %s, 1, %s" % (v(vHO), v(vRow)))
        e("v_lshl_add_u32 %s, %s, 3, %s" % (v(vU), v(vHO), v(vU)))
        e("v_mul_u32_u24 %s, 28672, %s" % (v(vHO), v(vU)))
        e("v_and_b32 %s, 1, %s" % (v(vT), v(vT)))
        e("v_lshl_add_u32 %s, %s, 5, %s" % (v(vHO), v(vT), v(vHO)))
        e("v_lshrrev_b32 %s, 1, %s" % (v(vRow), v(vRow)))
        e("v_lshl_add_u32 %s, %s, 4, %s" % (v(vHO), v(vRow), v(vHO)))
        e("s_lshl_b32 s%d, s2, 1" % sT0)
        e("s_add_u32 s%d, s%d, s%d" % (sT0, sT0, sCHL))
        e("s_lshl_b32 s%d, s%d, 6" % (sT0, sT0))
        e("s_mul_i32 s%d, s%d, %d" % (sT1, sHALF, 32 * 28672))
        e("s_add_u32 s%d, s%d, s%d" % (sT0, sT0, sT1))
        e("s_add_u32 s%d, s%d, %d" % (sT6, sT0, WS_HB))
        e("s_add_u32 s%d, s%d, %d" % (sT7, sT6, 16 * 28672))
        vABR = 16
        e("v_lshl_add_u32 %s, %s, 2, 0" % (v(vABR), v(vTL)))
        e("v_add_u32 %s, %d, %s" % (v(vABR), L_EX, v(vABR)))
        self.window1(vL16)
        self.stamp(5)

        def xread(rr):
            for m in range(8):
                self.lds("ds_read_b128 %s, %s offset:%d" % (v(XF[rr & 1] + 4 * m, 4), v(vXB), 512 * (7 - m) + 64 * rr), "x%d" % rr)

        F = [[], [], [], []]

        def pair(lst, items):
            for i in range(0, len(items), 2):
                lst.append(items[i:i + 2])
        wr = [("lds", x, "wr") for x in self.w_stage_read_items(0, vWRD, vWRD + 1)]
        pair(F[0], wr)
        w1 = self.w_stage_items(1)
        NW1 = self.nw1
        self.w1_rest = w1[NW1:]
        def stat_dma(i):
            if i == 0:
                e("s_lshl_b32 s%d, s%d, 12" % (sT4, sWAVE))
                e("s_add_u32 m0, s%d, %d" % (sT4, L_EX))
                e("s_add_u32 s%d, s%d, %d" % (sT4, sT4, WS_ST1))
            self.vmem("buffer_load_dwordx4 %s, %s, s%d offen offset:%d sc1 lds" % (v(vL16), srd(SRD_WS), sT4, 1024 * i), "stat")
        kvq = []
        for cc in range(4):
            kvq.append([("lds", "ds_read_b64 %s, %s offset:%d" % (v(KVR + 2 * cc, 2), v(vKVA), 512 * (3 - cc)), "kv"),
                        ("vm", "buffer_load_dwordx2 %s, %s, %s, 0 offen offset:%d sc1" % (v(QR + 2 * cc, 2), v(vQA), srd(SRD_WS), 512 * cc), "q")])
        abl = []
        for cc in range(4):
            abl.append([("lds", "ds_read_b128 %s, %s offset:%d" % (v(AR + 4 * cc, 4), v(vABR), 1024 * cc), "ab"),
                        ("lds", "ds_read_b128 %s, %s offset:%d" % (v(BR + 4 * cc, 4), v(vABR), 8192 + 1024 * cc), "ab")])
        it = []
        for cc in range(4):
            for i in range(4):
                src = KVR + 2 * cc + (1 - (i >> 1))
                if i & 1:
                    it.append(("v", "v_lshlrev_b32 %s, 16, %s" % (v(KD + 4 * cc + i), v(src))))
                else:
                    it.append(("v", "v_and_b32 %s, 0xffff0000, %s" % (v(KD + 4 * cc + i), v(src))))
        unp = [[("waitlg", "kv"), it[0]]] + [[x] for x in it[1:]]
        km = [[("v", "v_mul_f32 %s, s%d, %s" % (v(KD + x), sD, v(KD + x)))] for x in range(16)]
        qf = []
        for cc in range(4):
            for i in range(4):
                src = QR + 2 * cc + (i >> 1)
                if i & 1:
                    qf.append(("v", "v_and_b32 %s, 0xffff0000, %s" % (v(QF + 4 * cc + i), v(src))))
                else:
                    qf.append(("v", "v_lshlrev_b32 %s, 16, %s" % (v(QF + 4 * cc + i), v(src))))
        qf = [[("waitvm", "q"), qf[0]]] + [[x] for x in qf[1:]]
        ln = [("v", "v_fma_f32 %s, %s, %s, %s" % (v(LN + x), v(QF + x), v(AR + x), v(BR + x))) for x in range(16)]
        ln = [[("waitlg", "ab"), ln[0]]] + [[x] for x in ln[1:]]
        plan = {1: (28, 8, kvq + unp[:16]), 2: (28, 8, km + qf[:4]), 3: (36, 12, abl + qf[4:] + ln)}
        k = 0
        for rnd_ in (1, 2, 3):
            n, nw, items = plan[rnd_]
            items = list(items)
            ent = [[] for _ in range(n)]
            first = 4 if rnd_ == 1 else (1 if rnd_ == 2 else 0)
            wpos = [first + (j * (n - first - 1)) // nw for j in range(nw)]
            if rnd_ == self.stat_round:
                ent[0].append(("fn", lambda: [stat_dma(i) for i in range(4)]))
            for j in wpos:
                if k == 0:
                    ent[j].append(("waitlg", "wr"))
                ent[j].append(("fn", w1[k]))
                k += 1
            free = [j for j in range(n) if not ent[j]]
            extra = len(items) - len(free)
            slots = sorted(free + wpos[len(wpos) - max(extra, 0):]) if extra > 0 else free
            assert len(items) <= len(slots), (rnd_, len(items), len(slots))
            for j, itm in zip(slots, items):
                ent[j] += itm
            F[rnd_] = ent
        assert k == NW1

        def run(entry):
            for it in entry:
                if it[0] == "v":
                    e(it[1])
                elif it[0] == "lds":
                    self.lds(it[1], it[2])
                elif it[0] == "vm":
                    self.vmem(it[1], it[2])
                elif it[0] == "fn":
                    it[1]()
                elif it[0] == "waitvm":
                    self.wait_vm(it[1])
                elif it[0] == "waitlg":
                    self.wait_lg(it[1])

        xread(0)
        for rr in range(4):
            if rr == self.stat_round - 1:
                lab = self.newlabel("sl")
                e("s_cmp_eq_u32 s%d, 0" % sWAVE)
                e("s_cbranch_scc0 %s" % lab)
                e("buffer_load_dword v23, v21, %s, 0 offen sc1" % srd(SRD_WS))
                self.label(lab)
                self.vm = ["sl@0"]
            if rr == self.stat_round:
                self.stamp(26)
                self.wait_vm("sl@0")
                loop, done = self.newlabel("sll"), self.newlabel("sld")
                e("s_cmp_eq_u32 s%d, 0" % sWAVE)
                e("s_cbranch_scc0 %s" % done)
                e("s_mov_b32 s%d, %d" % (sSPIN, SPIN_LIMIT))
                self.label(loop)
                e("v_cmp_lt_u32 vcc, v23, v22")
                e("s_nop 4")
                e("s_cbranch_vccz %s" % done)
                e("buffer_load_dword v23, v21, %s, 0 offen sc1" % srd(SRD_WS))
                e("s_waitcnt vmcnt(0)")
                e("s_sub_u32 s%d, s%d, 1" % (sSPIN, sSPIN))
                e("s_cmp_lg_u32 s%d, 0" % sSPIN)
                e("s_cbranch_scc1 %s" % loop)
                self.label(done)
                e("s_barrier")
            if rr == self.stat_round + 1:
                self.stamp(27)
                self.wait_vm("stat")
                e("s_barrier")
            if rr:
                self.stamp(22 + rr)
            self.wait_lg("x%d" % rr)
            cnt = 0
            fl = list(F[rr])
            for q in range(8):
                for c in range(q, 8):
                    m = c - q
                    srcc = "0" if (rr == 0 and q == 0) else v(ACC + 4 * c, 4)
                    e("v_mfma_f32_16x16x32_bf16 %s, %s, %s, %s" % (v(ACC + 4 * c, 4), a(112 + 4 * (8 * rr + q), 4), v(XF[rr & 1] + 4 * m, 4), srcc))
                    cnt += 1
                    if rr < 3 and cnt <= 8:
                        m2 = cnt - 1
                        self.lds("ds_read_b128 %s, %s offset:%d" % (v(XF[(rr + 1) & 1] + 4 * m2, 4), v(vXB), 512 * (7 - m2) + 64 * (rr + 1)), "x%d" % (rr + 1))
                    elif fl:
                        run(fl.pop(0))
            for entry in fl:
                run(entry)
        self.stamp(6)
        e("s_nop 7")
        lab1, lab2 = self.newlabel("h1"), self.newlabel("hj")
        TMP = XF[0]
        e("s_cmp_eq_u32 s%d, 0" % sHALF)
        e("s_cbranch_scc0 %s" % lab1)
        for cc in range(4):
            e("ds_write_b128 %s, %s offset:%d" % (v(vEW), v(ACC + 16 + 4 * cc, 4), 1024 * cc))
        for x in range(16):
            e("v_add_f32 %s, %s, %s" % (v(Y + x), v(ACC + x), v(KD + x)))
        e("s_branch %s" % lab2)
        self.label(lab1)
        for cc in range(4):
            e("ds_write_b128 %s, %s offset:%d" % (v(vEW), v(ACC + 4 * cc, 4), 1024 * cc))
        for x in range(16):
            e("v_add_f32 %s, %s, %s" % (v(Y + x), v(ACC + 16 + x), v(KD + x)))
        self.label(lab2)
        e("s_waitcnt lgkmcnt(0)")
        self.lg = []
        e("s_barrier")
        for cc in range(4):
            self.lds("ds_read_b128 %s, %s offset:%d" % (v(TMP + 4 * cc, 4), v(vER), 1024 * cc), "ex%d" % cc)
        P = XF[0] + 16
        for cc in range(4):
            self.wait_lg("ex%d" % cc)
            for i in range(4):
                x = 4 * cc + i
                e("v_add_f32 %s, %s, %s" % (v(Y + x), v(Y + x), v(TMP + x)))
            for i in range(4):
                x = 4 * cc + i
                e("v_fma_f32 %s, %s, %s, %s" % (v(Y + x), v(LN + x), v(Y + x), v(QF + x)))
            e("v_cvt_pk_bf16_f32 %s, %s, %s" % (v(P + 2 * cc), v(Y + 4 * cc), v(Y + 4 * cc + 1)))
            e("v_cvt_pk_bf16_f32 %s, %s, %s" % (v(P + 2 * cc + 1), v(Y + 4 * cc + 2), v(Y + 4 * cc + 3)))
            if cc & 1:
                b = P + 2 * (cc - 1)
                e("s_nop 1")
                e("v_permlane16_swap_b32 %s, %s" % (v(b), v(b + 2)))
                e("v_permlane16_swap_b32 %s, %s" % (v(b + 1), v(b + 3)))
                self.vmem("buffer_store_dwordx4 %s, %s, %s, s%d offen sc1" % (v(b, 4), v(vHO), srd(SRD_WS), sT6 if cc == 1 else sT7), "hst")
        self.stamp(7)

    def helper(self):
        e = self.e
        self.label("L_helper")
        self.in_helper = True
        self.vm = []
        self.lg = []
        self.c("==== helper ====")
        sH = sRB
        e("s_sub_u32 s%d, s2, 224" % sH)
        e("s_waitcnt lgkmcnt(0)")
        self.srds(["q", "rest"])
        if self.stamps:
            e("v_mov_b32 v93, 0")
        vT, vU, vZ = 7, 4, 5
        e("v_mov_b32 %s, 0" % v(vZ))
        lab = self.newlabel("hz0")
        e("s_cmp_eq_u32 s%d, 0" % sH)
        e("s_cbranch_scc0 %s" % lab)
        e("s_cmp_eq_u32 s%d, 0" % sWAVE)
        e("s_cbranch_scc0 %s" % lab)
        e("v_lshlrev_b32 %s, 8, v1" % v(vT))
        e("v_add_u32 %s, %d, %s" % (v(vT), WS_CNT, v(vT)))
        e("buffer_store_dword %s, %s, %s, 0 offen sc1" % (v(vZ), v(vT), srd(SRD_WS)))
        e("v_add_u32 %s, %d, %s" % (v(vT), 64 * 256, v(vT)))
        e("s_mov_b64 exec, 0xffff")
        e("buffer_store_dword %s, %s, %s, 0 offen sc1" % (v(vZ), v(vT), srd(SRD_WS)))
        e("s_mov_b64 exec, -1")
        self.label(lab)
        FR = 32
        vQ = 6
        e("s_lshl_b32 s%d, s%d, 6" % (sT0, sH))
        e("s_lshl_b32 s%d, s%d, 4" % (sT1, sWAVE))
        e("s_add_u32 s%d, s%d, s%d" % (sT0, sT0, sT1))
        e("v_and_b32 %s, 15, v1" % v(vT))
        e("v_add_u32 %s, s%d, %s" % (v(8), sT0, v(vT)))
        e("v_mul_u32_u24 %s, 896, %s" % (v(vQ), v(8)))
        e("v_lshrrev_b32 %s, 4, v1" % v(vU))
        e("v_lshl_add_u32 %s, %s, 4, %s" % (v(vQ), v(vU), v(vQ)))
        for s in range(14):
            self.vmem("buffer_load_dwordx4 %s, %s, %s, 0 offen offset:%d" % (v(FR + 4 * s, 4), v(vQ), srd(SRD_Q), 64 * s), "q")
        lab = self.newlabel("hz")
        e("s_cmp_eq_u32 s%d, 0" % sWAVE)
        e("s_cbranch_scc0 %s" % lab)
        e("s_lshl_b32 s%d, s%d, 8" % (sT0, sH))
        e("s_add_u32 s%d, s%d, %d" % (sT0, sT0, WS_ST2))
        e("v_lshl_add_u32 %s, v1, 2, s%d" % (v(vT), sT0))
        e("buffer_store_dword %s, %s, %s, 0 offen sc1" % (v(vZ), v(vT), srd(SRD_WS)))
        self.label(lab)
        lab = self.newlabel("hc")
        e("s_cmp_eq_u32 s%d, 0" % sH)
        e("s_cbranch_scc0 %s" % lab)
        e("s_cmp_eq_u32 s%d, 0" % sWAVE)
        e("s_cbranch_scc0 %s" % lab)
        e("s_waitcnt vmcnt(15)")
        e("v_mov_b32 %s, 1" % v(vU))
        e("s_mov_b64 exec, 1")
        e("buffer_store_dword %s, %s, %s, 0 offen offset:%d sc1" % (v(vU), v(vZ), srd(SRD_DBG), self.go_off))
        e("s_mov_b64 exec, -1")
        self.label(lab)
        if self.hpf:
            vP = 94
            e("s_lshl_b32 s%d, s%d, 2" % (sT0, sH))
            e("s_add_u32 s%d, s%d, s%d" % (sT0, sT0, sWAVE))
            e("s_mul_i32 s%d, s%d, %d" % (sT0, sT0, 49 * 128))
            e("v_min_u32 %s, 48, v1" % v(vP))
            e("v_lshl_add_u32 %s, %s, 7, s%d" % (v(vP), v(vP), sT0))
            self.srds(["w"])
            self.vmem("buffer_load_dword v95, %s, %s, 0 offen" % (v(vP), srd(SRD_WG)), "pf")
            self.vmem("buffer_load_dword v95, %s, %s, 0 offen offset:1024" % (v(vP), srd(SRD_WU)), "pf")
        ONES = 16
        for i in range(4):
            e("v_mov_b32 %s, 0x3f803f80" % v(ONES + i))
        self.wait_vm("q")
        GR, SM = 20, 24
        self.stats_mfma(lambda s: FR + 4 * s, ONES, GR, SM, None)
        A_, B_ = 28, 29
        self.stats_finish(GR, SM, A_, B_, None)
        e("v_lshlrev_b32 %s, 2, %s" % (v(vT), v(8)))
        e("s_mov_b32 s%d, %d" % (sT4, WS_ST1))
        e("s_mov_b32 s%d, %d" % (sT5, WS_ST1 + 8192))
        e("s_mov_b32 exec_lo, 0x00f0000f")
        e("s_mov_b32 exec_hi, 0xf0000f00")
        self.vmem("buffer_store_dword %s, %s, %s, s%d offen sc1" % (v(A_), v(vT), srd(SRD_WS), sT4), "st")
        self.vmem("buffer_store_dword %s, %s, %s, s%d offen sc1" % (v(B_), v(vT), srd(SRD_WS), sT5), "st")
        e("s_mov_b64 exec, -1")
        vGO = 30
        loop, done = self.newlabel("go"), self.newlabel("god")
        e("s_mov_b32 s%d, %d" % (sSPIN, SPIN_LIMIT))
        self.label(loop)
        e("buffer_load_dword %s, %s, %s, 0 offen offset:%d sc1" % (v(vGO), v(vZ), srd(SRD_DBG), self.go_off))
        e("s_waitcnt vmcnt(0)")
        self.vm = []
        e("v_cmp_eq_u32 vcc, 0, %s" % v(vGO))
        e("s_nop 4")
        e("s_cbranch_vccz %s" % done)
        e("s_sub_u32 s%d, s%d, 1" % (sSPIN, sSPIN))
        e("s_cmp_lg_u32 s%d, 0" % sSPIN)
        e("s_cbranch_scc1 %s" % loop)
        self.label(done)
        e("s_barrier")
        e("v_lshlrev_b32 %s, 8, v1" % v(vT))
        e("v_add_u32 %s, %d, %s" % (v(vT), WS_CNT + 256 * C_SL1, v(vT)))
        e("v_mov_b32 %s, 1" % v(vU))
        self.signal(vT, vU, 8)
        self.stamp(3)
        if self.stop in ("a0", "a1"):
            self.wait_all()
            e("s_endpgm")
            return
        MK = 40
        for i in range(4):
            e("v_mov_b32 %s, -1" % v(MK + i))
        e("v_lshlrev_b32 v9, 4, v1")
        e("s_mul_i32 s%d, s%d, 57344" % (sT0, sH))
        e("s_mul_i32 s%d, s%d, 14336" % (sT1, sWAVE))
        e("s_add_u32 s%d, s%d, s%d" % (sT0, sT0, sT1))
        e("s_add_u32 s%d, s%d, %d" % (sT0, sT0, WS_HB))
        for grp in range(4):
            for i in range(4 if grp < 3 else 2):
                e("buffer_store_dwordx4 %s, v9, %s, s%d offen offset:%d sc1" % (v(MK, 4), srd(SRD_WS), sT0, 1024 * i))
            if grp != 3:
                e("s_add_u32 s%d, s%d, 4096" % (sT0, sT0))
        e("s_waitcnt vmcnt(0)")
        e("s_barrier")
        e("v_lshlrev_b32 %s, 8, v1" % v(vT))
        e("v_add_u32 %s, %d, %s" % (v(vT), WS_CNT + 256 * C_FH1, v(vT)))
        e("v_mov_b32 %s, 1" % v(vU))
        self.signal(vT, vU, 8)
        e("s_mul_i32 s%d, s%d, 229376" % (sT0, sH))
        e("s_mul_i32 s%d, s%d, 57344" % (sT1, sWAVE))
        e("s_add_u32 s%d, s%d, s%d" % (sT0, sT0, sT1))
        e("s_add_u32 s%d, s%d, %d" % (sT0, sT0, WS_HF))
        for grp in range(14):
            for i in range(4):
                e("buffer_store_dwordx4 %s, v9, %s, s%d offen offset:%d sc1" % (v(MK, 4), srd(SRD_WS), sT0, 1024 * i))
            if grp != 13:
                e("s_add_u32 s%d, s%d, 4096" % (sT0, sT0))
                e("s_waitcnt vmcnt(%d)" % self.fill_depth)
        e("s_waitcnt vmcnt(0)")
        e("s_barrier")
        e("v_lshlrev_b32 %s, 8, v1" % v(vT))
        e("v_add_u32 %s, %d, %s" % (v(vT), WS_CNT + 256 * C_FH, v(vT)))
        e("v_mov_b32 %s, 1" % v(vU))
        self.signal(vT, vU, 8)
        self.stamp(4)
        e("s_and_b32 s%d, s2, 7" % sT0)
        e("s_lshl_b32 s%d, s%d, 8" % (sT0, sT0))
        e("s_add_u32 s%d, s%d, %d" % (sT0, sT0, WS_CNT + 256 * C_FH1))
        e("v_mov_b32 %s, s%d" % (v(vT), sT0))
        e("v_mov_b32 %s, 32" % v(vU))
        self.poll(vT, vU, vGO)
        self.stamp(8)
        e("s_lshr_b32 s%d, s%d, 1" % (sT0, sH))
        e("s_lshl_b32 s%d, s%d, 2" % (sT0, sT0))
        e("s_and_b32 s%d, s%d, 1" % (sT1, sH))
        e("s_add_u32 s%d, s%d, s%d" % (sT0, sT0, sT1))
        sTB = 51
        e("s_mov_b32 s%d, s%d" % (sTB, sT0))
        vL16, vCK = 9, 92
        e("v_lshlrev_b32 %s, 4, v1" % v(vL16))
        e("s_mul_i32 s%d, s%d, 7168" % (sT3, sWAVE))
        e("v_add_u32 %s, s%d, %s" % (v(vCK), sT3, v(vL16)))
        vA, vPX = 10, 14
        e("v_lshrrev_b32 %s, 4, v1" % v(vT))
        e("v_bfe_u32 %s, v1, 2, 2" % v(vU))
        e("v_lshl_add_u32 %s, %s, 3, %s" % (v(vT), v(vT), v(vU)))
        e("v_lshlrev_b32 %s, 6, %s" % (v(vT), v(vT)))
        e("v_and_b32 %s, 3, v1" % v(vU))
        e("v_lshl_add_u32 %s, %s, 3, %s" % (v(vA), v(vU), v(vT)))
        e("s_lshr_b32 s%d, s%d, 1" % (sT4, sWAVE))
        e("s_mul_i32 s%d, s%d, %d" % (sT4, sT4, 7 * 2048))
        e("s_and_b32 s%d, s%d, 1" % (sT5, sWAVE))
        e("s_lshl_b32 s%d, s%d, 5" % (sT5, sT5))
        e("s_add_u32 s%d, s%d, s%d" % (sT4, sT4, sT5))
        e("v_add_u32 %s, s%d, %s" % (v(vA), sT4, v(vA)))
        e("s_lshl_b32 s%d, s%d, 9" % (sT4, sWAVE))
        e("s_add_u32 s%d, s%d, 57344" % (sT4, sT4))
        e("v_lshl_add_u32 %s, v1, 3, s%d" % (v(vPX), sT4))
        vRW = 15
        e("s_lshl_b32 s%d, s%d, 5" % (sT4, sT0))
        e("s_and_b32 s%d, s%d, 1" % (sT5, sWAVE))
        e("s_lshl_b32 s%d, s%d, 4" % (sT5, sT5))
        e("s_add_u32 s%d, s%d, s%d" % (sT4, sT4, sT5))
        e("s_lshl_b32 s%d, s%d, 2" % (sT4, sT4))
        e("s_add_u32 s%d, s%d, %d" % (sT4, sT4, WS_ST2))
        e("v_and_b32 %s, 15, v1" % v(vT))
        e("v_lshl_add_u32 %s, %s, 2, s%d" % (v(vRW), v(vT), sT4))
        PK = 28
        CKR = 64
        for blk in range(2):
            self.hb_refetch(sTB, 2 * blk, blk, vL16)
            e("s_waitcnt vmcnt(0)")
            for ln in self.mark_reads(7, vCK, 28672 * blk, CKR, None):
                e(ln)
            e("s_waitcnt lgkmcnt(0)")
            for ln in self.mark_fold(7, CKR):
                e(ln)
            self.mark_branch(7, vCK, 28672 * blk, CKR, lambda blk=blk: self.hb_refetch(sTB, 2 * blk, blk, vL16))
            e("s_barrier")
            for s_ in range(7):
                for ee in range(2):
                    self.lds("ds_read_b64_tr_b16 %s, %s offset:%d" % (v(FR + 4 * s_ + 2 * ee, 2), v(vA), 28672 * blk + 2048 * s_ + 256 * ee), "f%d" % s_)
            self.stats_mfma(lambda s_: FR + 4 * s_, ONES, GR, SM, lambda s_: self.wait_lg("f%d" % s_), n=7)
            self.stats_diag(GR, 11)
            e("v_mov_b32 %s, %s" % (v(12), v(SM)))
            e("v_mov_b32 v60, v11")
            e("v_mov_b32 v61, v12")
            self.lds("ds_write_b64 %s, v[60:61] offset:%d" % (v(vPX), 2048 * blk), "px")
            self.wait_lg0()
            e("s_barrier")
            e("v_xor_b32 %s, 1024, %s" % (v(13), v(vPX)))
            self.lds("ds_read_b64 v[62:63], %s offset:%d" % (v(13), 2048 * blk), "px")
            self.wait_lg0()
            e("v_add_f32 v11, v60, v62")
            e("v_add_f32 %s, v61, v63" % v(SM))
            self.stats_finish(None, SM, None, None, PK)
            lab = self.newlabel("hs")
            e("s_cmp_lt_u32 s%d, 2" % sWAVE)
            e("s_cbranch_scc0 %s" % lab)
            e("s_mov_b32 exec_lo, 0x00f0000f")
            e("s_mov_b32 exec_hi, 0xf0000f00")
            e("buffer_store_dword %s, %s, %s, 0 offen offset:%d sc1" % (v(PK), v(vRW), srd(SRD_WS), 256 * blk))
            e("s_mov_b64 exec, -1")
            self.label(lab)
        self.stamp(9)
        lab = self.newlabel("clr")
        e("s_cmp_eq_u32 s%d, 0" % sH)
        e("s_cbranch_scc0 %s" % lab)
        e("s_cmp_eq_u32 s%d, 0" % sWAVE)
        e("s_cbranch_scc0 %s" % lab)
        e("v_mov_b32 %s, 0" % v(vZ))
        e("s_mov_b64 exec, 1")
        e("buffer_store_dword %s, %s, %s, 0 offen offset:%d sc1" % (v(vZ), v(vZ), srd(SRD_DBG), self.go_off))
        e("s_mov_b64 exec, -1")
        self.label(lab)
        self.stamp_dump()
        self.wait_all()
        e("s_endpgm")

    def stats_mfma(self, frag, ONES, GR, SM, pre, n=14):
        e = self.e
        for s in range(n):
            if pre:
                pre(s)
            f = frag(s)
            e("v_mfma_f32_16x16x32_bf16 %s, %s, %s, %s" % (v(GR, 4), v(f, 4), v(f, 4), "0" if s == 0 else v(GR, 4)))
            e("v_mfma_f32_16x16x32_bf16 %s, %s, %s, %s" % (v(SM, 4), v(ONES, 4), v(f, 4), "0" if s == 0 else v(SM, 4)))
        e("s_nop 7")

    def stats_diag(self, GR, t0):
        e = self.e
        e("s_mov_b32 s%d, 0x22222222" % sT6)
        e("s_mov_b32 s%d, 0x22222222" % sT7)
        e("v_cndmask_b32 %s, %s, %s, s[%d:%d]" % (v(t0), v(GR), v(GR + 1), sT6, sT7))
        e("s_mov_b32 s%d, 0x44444444" % sT6)
        e("s_mov_b32 s%d, 0x44444444" % sT7)
        e("v_cndmask_b32 %s, %s, %s, s[%d:%d]" % (v(t0), v(t0), v(GR + 2), sT6, sT7))
        e("s_mov_b32 s%d, 0x88888888" % sT6)
        e("s_mov_b32 s%d, 0x88888888" % sT7)
        e("v_cndmask_b32 %s, %s, %s, s[%d:%d]" % (v(t0), v(t0), v(GR + 3), sT6, sT7))

    def stats_finish(self, GR, SM, A_, B_, PK):
        e = self.e
        t0, t1, t2 = 11, 12, 13
        if GR is not None:
            self.stats_diag(GR, t0)
        e("s_mov_b32 s%d, 0x3b124925" % sT6)
        e("v_mul_f32 %s, s%d, %s" % (v(t1), sT6, v(SM)))
        e("v_mul_f32 %s, s%d, %s" % (v(t0), sT6, v(t0)))
        e("v_fma_f32 %s, -%s, %s, %s" % (v(t0), v(t1), v(t1), v(t0)))
        e("v_max_f32 %s, 0, %s" % (v(t0), v(t0)))
        e("v_cvt_pk_bf16_f32 %s, %s, %s" % (v(t0), v(t0), v(t1)))
        e("v_and_b32 %s, 0xffff0000, %s" % (v(t1), v(t0)))
        e("v_lshlrev_b32 %s, 16, %s" % (v(t0), v(t0)))
        e("v_add_f32 %s, 0x3727c5ac, %s" % (v(t0), v(t0)))
        e("v_cvt_pk_bf16_f32 %s, %s, %s" % (v(t0), v(t0), v(t0)))
        e("v_lshlrev_b32 %s, 16, %s" % (v(t0), v(t0)))
        e("v_sqrt_f32 %s, %s" % (v(t0), v(t0)))
        e("s_nop 0")
        e("v_cvt_pk_bf16_f32 %s, %s, %s" % (v(t0), v(t0), v(t0)))
        if PK is not None:
            e("v_lshrrev_b32 %s, 16, %s" % (v(t2), v(t1)))
            e("v_and_b32 %s, 0xffff0000, %s" % (v(t0), v(t0)))
            e("v_or_b32 %s, %s, %s" % (v(PK), v(t0), v(t2)))
        else:
            e("v_lshlrev_b32 %s, 16, %s" % (v(t0), v(t0)))
            e("v_rcp_f32 %s, %s" % (v(A_), v(t0)))
            e("s_nop 0")
            e("v_mul_f32 %s, -%s, %s" % (v(B_), v(t1), v(A_)))

    def decode_bc(self):
        e = self.e
        e("s_and_b32 s%d, s2, 7" % sT0)
        e("s_lshr_b32 s%d, s2, 3" % sT1)
        e("s_mul_i32 s%d, s%d, 37" % (sT2, sT1))
        e("s_lshr_b32 s%d, s%d, 8" % (sT2, sT2))
        e("s_mul_i32 s%d, s%d, 7" % (sT3, sT2))
        e("s_sub_u32 s%d, s%d, s%d" % (sT3, sT1, sT3))
        e("s_lshr_b32 s%d, s%d, 1" % (sT4, sT0))
        e("s_lshl_b32 s%d, s%d, 2" % (sT4, sT4))
        e("s_add_u32 s%d, s%d, s%d" % (sBI, sT4, sT2))
        e("s_and_b32 s%d, s%d, 1" % (sT4, sT0))
        e("s_mul_i32 s%d, s%d, 7" % (sT4, sT4))
        e("s_add_u32 s%d, s%d, s%d" % (sBJ, sT4, sT3))
        e("s_lshl_b32 s%d, s%d, 2" % (sT4, sT0))
        e("s_add_u32 s%d, s%d, s%d" % (sT4, sT4, sT2))
        e("s_lshr_b32 s%d, s%d, 1" % (sCI, sT4))
        e("s_and_b32 s%d, s%d, 1" % (sCS, sT4))
        e("s_mov_b32 s%d, s%d" % (sCJ, sT3))

    def main_path(self):
        e = self.e
        self.phase_a0()
        self.w_stage_setup()
        self.w_stage_read_setup(vWRD, vWRD + 1)
        self.pre_signal()
        vGO, vZERO = 23, 58
        loop, done = self.newlabel("go"), self.newlabel("god")
        e("s_mov_b32 s%d, %d" % (sSPIN, SPIN_LIMIT))
        self.label(loop)
        e("v_cmp_eq_u32 vcc, 0, %s" % v(vGO))
        e("s_nop 4")
        e("s_cbranch_vccz %s" % done)
        e("buffer_load_dword %s, %s, %s, 0 offen offset:%d sc1" % (v(vGO), v(vZERO), srd(SRD_DBG), self.go_off))
        e("s_waitcnt vmcnt(0)")
        e("s_sub_u32 s%d, s%d, 1" % (sSPIN, sSPIN))
        e("s_cmp_lg_u32 s%d, 0" % sSPIN)
        e("s_cbranch_scc1 %s" % loop)
        self.label(done)
        e("s_barrier")
        vA, vOne = 5, 6
        e("s_lshl_b32 s%d, s%d, 11" % (sT0, sG0))
        e("s_add_u32 s%d, s%d, %d" % (sT0, sT0, WS_CNT + 256 * C_S1))
        e("v_lshl_add_u32 %s, v1, 8, s%d" % (v(vA), sT0))
        e("v_mov_b32 %s, 1" % v(vOne))
        self.signal(vA, vOne, 8)
        self.stamp(3)
        if self.endif_stop("a0"):
            return False
        self.phase_a1()
        ONES, CA = 108, 64
        for i in range(4):
            e("v_mov_b32 %s, 0x3f803f80" % v(ONES + i))
        self.wait_vm("w1")
        self.stamp(28)
        e("s_nop 1")
        rd = self.w_stage_read_items(1, vWRD, vWRD + 1)
        for s_ in range(14):
            for ft in range(2):
                e("v_mfma_f32_32x32x16_bf16 %s, %s, %s, %s" % (v(CA + 16 * ft, 16), v(ONES, 4), a(8 * s_ + 4 * ft, 4), "0" if s_ == 0 else v(CA + 16 * ft, 16)))
                for _ in range(2):
                    self.lds(rd.pop(0), "wr")
        self.stamp(8)
        if self.endif_stop("a1"):
            return False
        return True

    def build(self):
        self.prologue()
        cont = self.main_path()
        if cont:
            from gen_bc import phase_b, phase_c
            phase_b(self)
            if not self.endif_stop("b"):
                phase_c(self)
                self.stamp(20)
                self.stamp_dump()
                self.wait_all()
                if self.spin_us:
                    self.e("L_diag:")
                    self.e("s_memrealtime s[96:97]")
                    self.e("s_waitcnt lgkmcnt(0)")
                    self.e("s_sub_u32 s96, s96, s100")
                    self.e("s_cmp_lt_u32 s96, %d" % (self.spin_us * 100))
                    self.e("s_cbranch_scc1 L_diag")
                self.e("s_endpgm")
        self.helper()
        if getattr(self, "redo_code", None):
            self.redo_code()
        for code in self.ool:
            code()
        self.label("L_exit")
        self.e("s_waitcnt vmcnt(0) lgkmcnt(0)")
        self.label("L_end")
        self.e("s_endpgm")
        self.label("L_codeend")
        body = self.text()
        hdr = HEADER
        hdr += "; @launch grid=(256,1,1) block=(256,1,1) lds=%d\n" % LDS_BYTES
        hdr += '.amdgcn_target "amdgcn-amd-amdhsa--gfx950"\n.text\n.globl %s\n.p2align 8\n.type %s,@function\n%s:\n' % (NAME, NAME, NAME)
        tail = """
.section .rodata,"a"
.p2align 6
.amdhsa_kernel %s
  .amdhsa_next_free_vgpr 512
  .amdhsa_next_free_sgpr 102
  .amdhsa_accum_offset 256
  .amdhsa_group_segment_fixed_size 0
  .amdhsa_kernarg_size 104
  .amdhsa_user_sgpr_count 2
  .amdhsa_user_sgpr_kernarg_segment_ptr 1
  .amdhsa_system_sgpr_workgroup_id_x 1
.end_amdhsa_kernel
""" % NAME
        return hdr + body + tail, body


HEADER = """; Fused preLN -> H3 (shift conv, k*v, long causal conv, gate) -> preLN -> GLU FFN, one persistent launch.
; Kernarg: q,k,v,shift_k,ssm_k,ssm_D,x(unused),w_gate,w_up,w_down,out,debug,ws (generated by gen/gen.py)
"""

if __name__ == "__main__":
    import argparse
    ap = argparse.ArgumentParser()
    ap.add_argument("--stop", default=None)
    ap.add_argument("--stamps", action="store_true")
    ap.add_argument("--dbgst", action="store_true")
    ap.add_argument("--spin", type=int, default=0)
    ap.add_argument("--exp", default="")
    ap.add_argument("--tmo", action="store_true")
    ap.add_argument("--hpf", type=int, default=0)
    ap.add_argument("--b0", action="store_true")
    ap.add_argument("--sleep", type=int, default=1)
    ap.add_argument("--wtouch", action="store_true")
    ap.add_argument("--wtouch2", action="store_true")
    ap.add_argument("--smem-poll", action="store_true")
    ap.add_argument("--fill", type=int, default=8)
    ap.add_argument("--npre", type=int, default=8)
    ap.add_argument("--touch", action="store_true")
    ap.add_argument("--no-tlbwarm", action="store_true")
    ap.add_argument("--no-prefetch", action="store_true")
    ap.add_argument("-o", default="out.s")
    args = ap.parse_args()
    g = Gen(stop=args.stop, stamps=args.stamps, tlbwarm=not args.no_tlbwarm, prefetch=not args.no_prefetch, dbgst=args.dbgst)
    g.spin_us = args.spin
    g.touch = args.touch
    g.hpf = args.hpf
    g.b0 = args.b0
    g.sleep = args.sleep
    g.wtouch = args.wtouch
    g.wtouch2 = args.wtouch2
    g.smem_poll = args.smem_poll
    g.fill_depth = args.fill
    g.npre = args.npre
    g.exp = set(args.exp.split(',')) if args.exp else set()
    txt, body = g.build()
    if args.tmo:
        out = []
        site = 0
        lines = txt.split("\n")
        for i, ln in enumerate(lines):
            out.append(ln)
            if ln.strip() == "s_cmp_lg_u32 s92, 0":
                lab = "L_tmo_%d" % site
                out += ["  s_cbranch_scc1 %s" % lab, "  v_mov_b32 v30, 1", "  v_mov_b32 v31, %d" % (128 + 4 * site), "  s_mov_b64 s[100:101], exec", "  s_mov_b64 exec, 1",
                        "  buffer_atomic_add v30, v31, s[44:47], 0 offen sc1", "  s_mov_b64 exec, s[100:101]", "  s_cmp_lg_u32 s92, 0", lab + ":"]
                print("site", site, "near", [l for l in lines[max(0, i - 14):i] if l.endswith(":")])
                site += 1
        txt = "\n".join(out)
        import re as _re
        out = []
        site = 0
        for ln in txt.split("\n"):
            out.append(ln)
            if _re.match(r"L_(mk|redo|fh)_\d+:", ln):
                print("entry site", site, ln)
                out += ["  v_mov_b32 v30, 1", "  v_mov_b32 v31, %d" % (4 * (2 + site)), "  s_mov_b64 s[100:101], exec", "  s_mov_b64 exec, 1",
                        "  buffer_atomic_add v30, v31, s[44:47], 0 offen sc1", "  s_mov_b64 exec, s[100:101]"]
                site += 1
        txt = "\n".join(out)
    open(args.o, "w").write(txt)
    check_hazards(body)
    print("wrote", args.o, len(txt), "bytes")
```

```python
import sys, os
sys.path.insert(0, os.path.dirname(os.path.abspath(__file__)))
from asmlib import Asm, check_hazards

NAME = "sequential_preLN__ssm_conv_h3__glu_gated_glu__prompt_kernel"
S, D, F = 2048, 448, 1792

WS_KVT = 0x000000
WS_QT = 0x200000
WS_HB = 0x400000
WS_HF = 0x600000
WS_ST1 = 0xE00000
WS_ST2 = 0xE08000
WS_CNT = 0xE10000
WS_TS = 0xF00000
WS_SIZE = 0x1000000
C_S1, C_SL1, C_FH, C_FH1, C_S3, C_S2 = 0, 56, 64, 72, 80, 96
N_CNT = 80

L_WST = 0
L_K = 114688
L_V = L_K + 9216
L_Q = L_V + 8192
L_TS = L_Q + 8192
L_X = L_K
L_EX = L_V
L_HB = 0
L_WD = 86016
LDS_BYTES = 163840

sWAVE = 3
SRD_WS, SRD_Q, SRD_K, SRD_V, SRD_SK, SRD_SH, SRD_WG, SRD_WU, SRD_WD, SRD_OUT, SRD_DBG = 4, 8, 12, 16, 20, 24, 28, 32, 36, 40, 44
sPC = 48
sD = 50
sT0, sT1, sT2, sT3, sT4, sT5, sT6, sT7 = 76, 77, 78, 79, 80, 81, 82, 83
sA0BASE = 84
sG0 = 85
sRB = 86
sBI, sBJ = 87, 88
sCI, sCS, sCJ = 89, 90, 91
sSPIN = 92
sM = 93
sEX = 94
sTS = 96
sHALF = 98
sCHL = 99
sWSO, sWM, sWB, sWG, sWX = 51, 75, 56, 57, 74
sOFF = 58
vWS = 248
vWRD = 246


def srd(n):
    return "s[%d:%d]" % (n, n + 3)


def v(a, n=1):
    return "v%d" % a if n == 1 else "v[%d:%d]" % (a, a + n - 1)


def a(i, n=1):
    return "a%d" % i if n == 1 else "a[%d:%d]" % (i, i + n - 1)


SPIN_LIMIT = 40000
DBG_IDX = [31, 1, 3, 4, 5, 7, 10, 11, 12, 13, 14, 16, 15, 18, 21, 20]


class Gen(Asm):
    def __init__(self, stop=None, stamps=False, tlbwarm=True, prefetch=True, dbgst=False):
        super().__init__()
        self.stop = stop
        self.stamps = stamps
        self.tlbwarm = tlbwarm
        self.prefetch = prefetch
        self.exp = set()
        self.spin_us = 0
        self.dbgst = dbgst
        self.go_off = 128 if dbgst else 0
        self.npre = 8
        self.nw1 = 28
        self.stat_round = 2
        self.ool = []
        self.sleep = 1
        self.b0 = False
        self.hpf = 0
        self.fill_depth = 8
        self.touch = False
        self.wtouch = False
        self.wtouch2 = False
        self.smem_poll = False

    def stamp(self, idx, wave=0):
        if self.dbgst:
            if idx not in DBG_IDX or getattr(self, "in_helper", False) or wave != 0:
                return
            lab = self.newlabel("st")
            self.e("s_cmp_eq_u32 s%d, 0" % sWAVE)
            self.e("s_cbranch_scc0 %s" % lab)
            self.e("s_memrealtime s[%d:%d]" % (sTS, sTS + 1))
            self.e("s_waitcnt lgkmcnt(0)")
            self.e("v_writelane_b32 v30, s%d, %d" % (sTS, DBG_IDX.index(idx)))
            self.label(lab)
            return
        if not self.stamps or wave != 0:
            return
        vS = 93 if getattr(self, "in_helper", False) else 30
        lab = self.newlabel("st")
        self.e("s_cmp_eq_u32 s%d, 0" % sWAVE)
        self.e("s_cbranch_scc0 %s" % lab)
        self.e("s_memrealtime s[%d:%d]" % (sTS, sTS + 1))
        self.e("s_memtime s[100:101]")
        self.e("s_waitcnt lgkmcnt(0)")
        self.e("v_writelane_b32 v%d, s%d, %d" % (vS, sTS, idx))
        self.e("v_writelane_b32 v%d, s100, %d" % (vS, 32 + idx))
        self.label(lab)

    def stamp_dump(self):
        if self.dbgst and not getattr(self, "in_helper", False):
            lab = self.newlabel("sd")
            self.e("s_cmp_eq_u32 s%d, 0" % sWAVE)
            self.e("s_cbranch_scc0 %s" % lab)
            self.e("v_lshlrev_b32 v31, 2, v1")
            self.e("s_mov_b64 exec, 0xffff")
            self.e("buffer_atomic_umax v30, v31, %s, 0 offen sc1" % srd(SRD_DBG))
            self.e("s_mov_b64 exec, -1")
            self.label(lab)
            return
        if not self.stamps:
            return
        vS = 93 if getattr(self, "in_helper", False) else 30
        lab = self.newlabel("sd")
        self.e("s_cmp_eq_u32 s%d, 0" % sWAVE)
        self.e("s_cbranch_scc0 %s" % lab)
        self.e("s_lshl_b32 s%d, s2, 8" % sTS)
        self.e("s_add_u32 s%d, s%d, %d" % (sTS, sTS, WS_TS))
        self.e("v_lshl_add_u32 v31, v1, 2, s%d" % sTS)
        self.e("buffer_store_dword v%d, v31, %s, 0 offen" % (vS, srd(SRD_WS)))
        self.label(lab)

    def spin(self, vaddr, vtarget, vtmp):
        loop = self.newlabel("ploop")
        done = self.newlabel("pdone")
        self.e("s_mov_b32 s%d, %d" % (sSPIN, SPIN_LIMIT))
        self.label(loop)
        self.e("buffer_load_dword %s, %s, %s, 0 offen sc1" % (v(vtmp), v(vaddr), srd(SRD_WS)))
        self.e("s_waitcnt vmcnt(0)")
        self.e("v_cmp_lt_u32 vcc, %s, %s" % (v(vtmp), v(vtarget)))
        self.e("s_nop 4")
        self.e("s_cbranch_vccz %s" % done)
        self.e("s_sub_u32 s%d, s%d, 1" % (sSPIN, sSPIN))
        self.e("s_cmp_lg_u32 s%d, 0" % sSPIN)
        self.e("s_cbranch_scc0 %s" % done)
        self.e("s_sleep %d" % self.sleep)
        self.e("s_branch %s" % loop)
        self.label(done)

    def poll(self, vaddr, vtarget, vtmp):
        skip = self.newlabel("pskip")
        self.e("s_cmp_eq_u32 s%d, 0" % sWAVE)
        self.e("s_cbranch_scc0 %s" % skip)
        self.spin(vaddr, vtarget, vtmp)
        self.label(skip)
        self.e("s_barrier")

    def signal(self, vaddr, vone, nlanes):
        skip = self.newlabel("sig")
        self.e("s_cmp_eq_u32 s%d, 0" % sWAVE)
        self.e("s_cbranch_scc0 %s" % skip)
        self.e("s_mov_b64 exec, %d" % ((1 << nlanes) - 1))
        self.e("buffer_atomic_add %s, %s, %s, 0 offen sc1" % (v(vone), v(vaddr), srd(SRD_WS)))
        self.e("s_mov_b64 exec, -1")
        self.label(skip)

    def mark_reads(self, n, vaddr, off, r0, tag):
        return ["ds_read_b128 %s, %s offset:%d" % (v(r0 + 4 * i, 4), v(vaddr), off + 1024 * i) for i in range(n)]

    def mark_fold(self, n, r0):
        out = ["v_max3_u32 %s, %s, %s, %s" % (v(r0), v(r0), v(r0 + 1), v(r0 + 2))]
        i = 3
        while i + 1 < 4 * n:
            out.append("v_max3_u32 %s, %s, %s, %s" % (v(r0), v(r0), v(r0 + i), v(r0 + i + 1)))
            i += 2
        if i < 4 * n:
            out.append("v_max_u32 %s, %s, %s" % (v(r0), v(r0), v(r0 + i)))
        return out

    def mark_branch(self, n, vaddr, off, r0, refetch):
        e = self.e
        lab, back = self.newlabel("mk"), self.newlabel("mkb")
        e("v_cmp_eq_u32 vcc, -1, %s" % v(r0))
        e("s_nop 4")
        e("s_cbranch_vccnz %s" % lab)
        self.label(back)

        def code():
            loop, done = self.newlabel("mkl"), self.newlabel("mkd")
            self.label(lab)
            e("s_mov_b32 s73, m0")
            e("s_mov_b32 s%d, %d" % (sSPIN, SPIN_LIMIT))
            self.label(loop)
            refetch()
            e("s_waitcnt vmcnt(0)")
            for ln in self.mark_reads(n, vaddr, off, r0, None):
                e(ln)
            e("s_waitcnt lgkmcnt(0)")
            for ln in self.mark_fold(n, r0):
                e(ln)
            e("v_cmp_eq_u32 vcc, -1, %s" % v(r0))
            e("s_nop 4")
            e("s_cbranch_vccz %s" % done)
            e("s_sub_u32 s%d, s%d, 1" % (sSPIN, sSPIN))
            e("s_cmp_lg_u32 s%d, 0" % sSPIN)
            e("s_cbranch_scc1 %s" % loop)
            self.label(done)
            e("s_mov_b32 m0, s73")
            e("s_branch %s" % back)
        self.ool.append(code)

    def hb_refetch(self, stb, add, buf, vL16):
        e = self.e
        e("s_add_u32 s56, s%d, %d" % (stb, add))
        e("s_mul_i32 s56, s56, 28672")
        e("s_mul_i32 s57, s%d, 7168" % sWAVE)
        e("s_add_u32 s56, s56, s57")
        e("s_add_u32 s56, s56, %d" % WS_HB)
        e("s_add_u32 m0, s57, %d" % (28672 * buf))
        e("s_nop 0")
        for i in range(4):
            e("buffer_load_dwordx4 %s, %s, s56 offen offset:%d sc1 lds" % (v(vL16), srd(SRD_WS), 1024 * i))
        e("s_add_u32 s56, s56, 4096")
        e("s_add_u32 m0, s57, %d" % (28672 * buf + 4096))
        e("s_nop 0")
        for i in range(3):
            e("buffer_load_dwordx4 %s, %s, s56 offen offset:%d sc1 lds" % (v(vL16), srd(SRD_WS), 1024 * i))

    def endif_stop(self, name):
        if self.stop == name:
            self.wait_all()
            self.e("s_endpgm")
            return True
        return False

    def mk(self, dst, src, size):
        e = self.e
        e("s_mov_b32 s%d, s%d" % (dst, src))
        e("s_mov_b32 s%d, s%d" % (dst + 1, src + 1))
        e("s_mov_b32 s%d, %d" % (dst + 2, size))
        e("s_mov_b32 s%d, 0x20000" % (dst + 3))

    def srds(self, which):
        e, mk = self.e, self.mk
        for r in which:
            if r == "q":
                mk(SRD_Q, 52, S * D * 2)
            elif r == "k":
                mk(SRD_K, 54, S * D * 2)
            elif r == "v":
                mk(SRD_V, 56, S * D * 2)
            elif r == "sh":
                mk(SRD_SH, 58, D * 4 * 2)
            elif r == "sk":
                mk(SRD_SK, 60, S * D * 2)
            elif r == "w":
                mk(SRD_WG, 64, D * F * 2)
                mk(SRD_WU, 66, D * F * 2)
                mk(SRD_WD, 68, D * F * 2)
                e("s_sub_u32 s%d, s%d, 1024" % (SRD_WU, SRD_WU))
                e("s_subb_u32 s%d, s%d, 0" % (SRD_WU + 1, SRD_WU + 1))
                e("s_add_u32 s%d, s%d, 1024" % (SRD_WU + 2, SRD_WU + 2))
            elif r == "rest":
                mk(SRD_OUT, 70, S * D * 2)
                mk(SRD_DBG, 72, 256)
                mk(SRD_WS, 74, WS_SIZE)

    def prologue(self):
        e = self.e
        if self.stamps or self.dbgst:
            e("s_memrealtime vcc")
        e("s_load_dwordx8 s[52:59], s[0:1], 0")
        e("s_getpc_b64 s[%d:%d]" % (sPC, sPC + 1))
        self.label("L_pc")
        if self.touch:
            e("s_min_u32 s%d, s2, 223" % sT1)
            e("s_mul_i32 s%d, s%d, 293" % (sRB, sT1))
            e("s_lshr_b32 s%d, s%d, 11" % (sRB, sRB))
            e("v_lshrrev_b32 v3, 6, v0")
            e("v_and_b32 v2, 15, v0")
            e("v_lshl_add_u32 v2, v3, 4, v2")
            e("s_lshl_b32 s%d, s%d, 7" % (sT1, sT1))
            e("s_mul_i32 s%d, s%d, 56448" % (sA0BASE, sRB))
            e("v_mul_u32_u24 v2, 896, v2")
            e("s_add_u32 s%d, s%d, s%d" % (sA0BASE, sA0BASE, sT1))
            e("v_add_u32 v2, s%d, v2" % sA0BASE)
        e("v_and_b32 v4, 7, v0")
        e("s_lshr_b32 s%d, s2, 3" % sT0)
        e("v_lshlrev_b32 v4, 7, v4")
        e("s_lshl_b32 s%d, s%d, 10" % (sT0, sT0))
        e("v_add_u32 v4, s%d, v4" % sT0)
        e("v_min_u32 v4, L_codeend-L_pc-4, v4")
        e("global_load_dword v253, v4, s[%d:%d]" % (sPC, sPC + 1))
        if self.touch:
            e("s_waitcnt lgkmcnt(0)")
            e("global_load_dword v252, v2, s[54:55]")
            e("global_load_dword v252, v2, s[56:57]")
            e("global_load_dword v252, v2, s[52:53]")
        else:
            e("v_lshrrev_b32 v3, 6, v0")
        e("s_load_dwordx4 s[60:63], s[0:1], 32")
        e("s_load_dwordx4 s[64:67], s[0:1], 56")
        e("s_load_dwordx4 s[68:71], s[0:1], 72")
        e("s_load_dwordx4 s[72:75], s[0:1], 88")
        if self.spin_us:
            e("s_memrealtime s[100:101]")
        e("v_and_b32 v1, 63, v0")
        e("v_readfirstlane_b32 s%d, v3" % sWAVE)
        e("s_cmp_ge_u32 s2, 256")
        e("s_cbranch_scc1 L_exit")
        e("s_cmp_ge_u32 s2, 224")
        e("s_cbranch_scc1 L_helper")

    def phase_a0(self):
        e = self.e
        self.c("==== A0 ====")
        e("s_mul_i32 s%d, s2, 293" % sRB)
        e("s_lshr_b32 s%d, s%d, 11" % (sRB, sRB))
        e("s_mul_i32 s%d, s%d, 7" % (sT0, sRB))
        e("s_sub_u32 s%d, s2, s%d" % (sG0, sT0))
        e("s_mul_i32 s%d, s%d, %d" % (sA0BASE, sRB, 64 * 896))
        e("s_lshl_b32 s%d, s%d, 7" % (sT0, sG0))
        e("s_add_u32 s%d, s%d, s%d" % (sA0BASE, sA0BASE, sT0))
        vP, vOff, vOffH, vT = 4, 5, 6, 7
        e("v_lshrrev_b32 %s, 4, v1" % v(vT))
        e("v_and_b32 %s, 1, %s" % (v(vT), v(vT)))
        e("v_lshlrev_b32 %s, 1, %s" % (v(vT), v(vT)))
        e("v_and_b32 %s, 7, v1" % v(vP))
        e("v_xor_b32 %s, %s, %s" % (v(vP), v(vP), v(vT)))
        e("v_lshlrev_b32 %s, 4, %s" % (v(vP), v(vP)))
        e("v_lshrrev_b32 %s, 3, v1" % v(vT))
        e("v_mul_u32_u24 %s, 896, %s" % (v(vT), v(vT)))
        e("v_add_u32 %s, %s, %s" % (v(vP), v(vP), v(vT)))
        e("s_and_b32 s%d, s%d, 1" % (sT0, sWAVE))
        e("s_lshl_b32 s%d, s%d, 6" % (sT0, sT0))
        e("v_xor_b32 %s, s%d, %s" % (v(vOff), sT0, v(vP)))
        e("v_xor_b32 %s, 64, %s" % (v(vOffH), v(vP)))
        e("s_cmp_eq_u32 s%d, 0" % sRB)
        e("s_cselect_b32 s%d, 0x80000000, 0" % sT1)
        e("v_add_u32 %s, s%d, %s" % (v(vOffH), sT1, v(vOffH)))
        e("s_sub_u32 s%d, s%d, 7168" % (sT2, sA0BASE))
        e("s_cmp_eq_u32 s%d, 0" % sRB)
        e("s_cselect_b32 s%d, 0, s%d" % (sT2, sT2))
        e("s_mul_i32 s%d, s%d, 7168" % (sT3, sWAVE))
        e("s_add_u32 s%d, s%d, s%d" % (sT3, sT3, sA0BASE))
        e("s_add_u32 s%d, s%d, %d" % (sT4, sT3, 4 * 7168))
        e("s_lshl_b32 s%d, s%d, 10" % (sT5, sWAVE))

        e("s_waitcnt lgkmcnt(0)")
        if self.stamps or self.dbgst:
            e("v_mov_b32 v254, vcc_lo")
            e("v_mov_b32 v30, 0")
        self.srds("kvq")

        def dma(srdn, voff, soff, ldsbase, addw=True):
            if addw:
                e("s_add_u32 m0, s%d, %d" % (sT5, ldsbase))
            else:
                e("s_mov_b32 m0, %d" % ldsbase)
            e("s_nop 0")
            self.vmem("buffer_load_dwordx4 %s, %s, s%d offen lds" % (v(voff), srd(srdn), soff), "a0")
        dma(SRD_K, vOffH, sT2, L_K, addw=False)
        dma(SRD_K, vOff, sT3, L_K + 1024)
        dma(SRD_K, vOff, sT4, L_K + 5 * 1024)
        dma(SRD_V, vOff, sT3, L_V)
        dma(SRD_V, vOff, sT4, L_V + 4 * 1024)
        dma(SRD_Q, vOff, sT3, L_Q)
        dma(SRD_Q, vOff, sT4, L_Q + 4 * 1024)
        self.srds(["sh", "sk"])
        vCH, vSK = 8, 10
        e("s_lshl_b32 s%d, s%d, 6" % (sT0, sG0))
        e("s_lshl_b32 s%d, s%d, 4" % (sT1, sWAVE))
        e("s_add_u32 s%d, s%d, s%d" % (sT0, sT0, sT1))
        e("v_and_b32 %s, 15, v1" % v(vCH))
        e("v_add_u32 %s, s%d, %s" % (v(vCH), sT0, v(vCH)))
        e("v_lshlrev_b32 %s, 3, %s" % (v(vT), v(vCH)))
        self.vmem("buffer_load_dwordx2 %s, %s, %s, 0 offen" % (v(vSK, 2), v(vT), srd(SRD_SH)), "a0")

        e("s_lshr_b32 s%d, s%d, 1" % (sCHL, sWAVE))
        e("s_and_b32 s%d, s%d, 1" % (sHALF, sWAVE))
        vL16 = 9
        e("v_lshlrev_b32 %s, 4, v1" % v(vL16))
        e("s_lshl_b32 s%d, s2, 1" % sT0)
        e("s_add_u32 s%d, s%d, s%d" % (sT0, sT0, sCHL))
        e("s_lshl_b32 s%d, s%d, 12" % (sT0, sT0))
        e("s_lshl_b32 s%d, s%d, 11" % (sT1, sHALF))
        e("s_add_u32 s%d, s%d, s%d" % (sT0, sT0, sT1))
        e("s_mul_i32 s%d, s%d, 8320" % (sT2, sCHL))
        e("s_add_u32 s%d, s%d, s%d" % (sT2, sT2, sT1))
        e("s_add_u32 m0, s%d, %d" % (sT2, L_TS + 32))
        e("s_nop 0")
        for i in range(2):
            self.vmem("buffer_load_dwordx4 %s, %s, s%d offen offset:%d lds" % (v(vL16), srd(SRD_SK), sT0, 1024 * i), "ts")
        self.srds(["w", "rest"])
        self.decode_bc()
        self.stamp(0)
        if self.stamps or self.dbgst:
            e("v_readfirstlane_b32 s%d, v254" % sTS)
            e("s_nop 3")
            if self.dbgst:
                e("s_not_b32 s%d, s%d" % (sTS, sTS))
            e("v_writelane_b32 v30, s%d, %d" % (sTS, 0 if self.dbgst else 31))
        if self.tlbwarm:
            self.c("touch every page that is used later (address translation warm-up)")
            vZ = 59
            e("v_mov_b32 %s, 0" % v(vZ))
            e("s_mov_b64 exec, 1")
            for r in (SRD_SK, SRD_WG, SRD_WD, SRD_OUT):
                e("buffer_load_dword v252, %s, %s, 0 offen" % (v(vZ), srd(r)))
            e("v_mov_b32 %s, 1024" % v(vZ))
            e("buffer_load_dword v252, %s, %s, 0 offen" % (v(vZ), srd(SRD_WU)))
            e("s_mov_b64 exec, 0xff")
            e("v_lshlrev_b32 %s, 21, v1" % v(vZ))
            e("buffer_load_dword v252, %s, %s, 0 offen" % (v(vZ), srd(SRD_WS)))
            e("s_mov_b64 exec, -1")
            self.vm += ["tlb"] * 6
        e("s_lshl_b32 s%d, s2, 2" % sT3)
        e("s_load_dword s%d, s[62:63], s%d" % (sD, sT3))

        vTR, vTRH, vG, vR = 13, 14, 15, 16
        e("v_lshrrev_b32 %s, 4, v1" % v(vG))
        e("v_bfe_u32 %s, v1, 2, 2" % v(vR))
        e("v_lshrrev_b32 %s, 1, %s" % (v(vT), v(vR)))
        e("v_and_b32 %s, 1, %s" % (v(vTR), v(vG)))
        e("v_lshl_or_b32 %s, %s, 1, %s" % (v(vT), v(vTR), v(vT)))
        e("v_xor_b32 %s, s%d, %s" % (v(vT), sWAVE, v(vT)))
        e("v_lshlrev_b32 %s, 5, %s" % (v(vT), v(vT)))
        e("v_lshl_add_u32 %s, %s, 3, %s" % (v(vTR), v(vG), v(vR)))
        e("v_lshl_add_u32 %s, %s, 7, %s" % (v(vTR), v(vTR), v(vT)))
        e("v_and_b32 %s, 3, v1" % v(vT))
        e("v_lshl_add_u32 %s, %s, 3, %s" % (v(vTR), v(vT), v(vTR)))
        e("v_add_u32 %s, %d, %s" % (v(vTR), L_K, v(vTR)))
        e("v_xor_b32 %s, 64, %s" % (v(vTRH), v(vTR)))
        vSKV, vSQ = 17, 18
        e("s_lshl_b32 s%d, s%d, 7" % (sT0, sRB))
        e("v_lshlrev_b32 %s, 12, %s" % (v(vSQ), v(vCH)))
        e("v_lshlrev_b32 %s, 4, %s" % (v(vT), v(vG)))
        e("s_sub_u32 s%d, %d, s%d" % (sT1, WS_KVT + 4080 - 64, sT0))
        e("v_add_u32 %s, s%d, %s" % (v(vSKV), sT1, v(vSQ)))
        e("v_sub_u32 %s, %s, %s" % (v(vSKV), v(vSKV), v(vT)))
        e("s_add_u32 s%d, s%d, %d" % (sT1, sT0, WS_QT))
        e("v_add3_u32 %s, %s, %s, s%d" % (v(vSQ), v(vSQ), v(vT), sT1))
        self.wait_vm("a0")
        e("s_waitcnt lgkmcnt(0)")
        self.lg = []
        e("s_lshl_b32 s%d, s%d, 16" % (sT0, sD))
        e("s_and_b32 s%d, s%d, 0xffff0000" % (sT1, sD))
        e("s_cmp_eq_u32 s%d, 0" % sCHL)
        e("s_cselect_b32 s%d, s%d, s%d" % (sD, sT0, sT1))
        e("s_barrier")
        self.stamp(1)
        if self.wtouch:
            self.w_touch(0, "wt")

        KH = [24, 34]
        KM = [26, 36]
        VV = [40, 44]
        QQ = [48, 52]
        for rho in range(2):
            self.lds("ds_read_b64_tr_b16 %s, %s offset:%d" % (v(KH[rho], 2), v(vTRH), 512 + 4096 * rho), "k%d" % rho)
            self.lds("ds_read_b64_tr_b16 %s, %s offset:%d" % (v(KM[rho], 2), v(vTR), 1024 + 4096 * rho), "k%d" % rho)
            self.lds("ds_read_b64_tr_b16 %s, %s offset:%d" % (v(KM[rho] + 2, 2), v(vTR), 1024 + 512 + 4096 * rho), "k%d" % rho)
            self.lds("ds_read_b64_tr_b16 %s, %s offset:%d" % (v(VV[rho], 2), v(vTR), L_V - L_K + 4096 * rho), "v%d" % rho)
            self.lds("ds_read_b64_tr_b16 %s, %s offset:%d" % (v(VV[rho] + 2, 2), v(vTR), L_V - L_K + 512 + 4096 * rho), "v%d" % rho)
        for rho in range(2):
            self.lds("ds_read_b64_tr_b16 %s, %s offset:%d" % (v(QQ[rho], 2), v(vTR), L_Q - L_K + 4096 * rho), "q")
            self.lds("ds_read_b64_tr_b16 %s, %s offset:%d" % (v(QQ[rho] + 2, 2), v(vTR), L_Q - L_K + 512 + 4096 * rho), "q")
        CA, CB = 21, 22
        e("v_alignbit_b32 %s, %s, %s, 16" % (v(CA), v(vSK), v(vSK)))
        e("v_alignbit_b32 %s, %s, %s, 16" % (v(CB), v(vSK + 1), v(vSK + 1)))
        MM = 56
        KS = 64
        VF = 72
        OUTR = [80, 84]
        for rho in range(2):
            self.wait_lg("v%d" % rho)
            Dw = [KH[rho], KH[rho] + 1, KM[rho], KM[rho] + 1, KM[rho] + 2, KM[rho] + 3]
            for i in range(5):
                e("v_alignbit_b32 %s, %s, %s, 16" % (v(MM + i), v(Dw[i + 1]), v(Dw[i])))
            for t in range(8):
                if t & 1:
                    p0, p1 = Dw[2 + (t >> 1)], Dw[1 + (t >> 1)]
                else:
                    p0, p1 = MM + 1 + (t >> 1), MM + (t >> 1)
                e("v_dot2_f32_bf16 %s, %s, %s, 0" % (v(KS + t), v(p1), v(CB)))
            for t in range(8):
                if t & 1:
                    p0 = Dw[2 + (t >> 1)]
                else:
                    p0 = MM + 1 + (t >> 1)
                e("v_dot2_f32_bf16 %s, %s, %s, %s" % (v(KS + t), v(p0), v(CA), v(KS + t)))
            for t in range(8):
                src = VV[rho] + (t >> 1)
                if t & 1:
                    e("v_and_b32 %s, 0xffff0000, %s" % (v(VF + t), v(src)))
                else:
                    e("v_lshlrev_b32 %s, 16, %s" % (v(VF + t), v(src)))
            for t in range(8):
                e("v_mul_f32 %s, %s, %s" % (v(KS + t), v(KS + t), v(VF + t)))
            for i in range(4):
                e("v_cvt_pk_bf16_f32 %s, %s, %s" % (v(OUTR[rho] + i), v(KS + 7 - 2 * i), v(KS + 6 - 2 * i)))
            self.vmem("buffer_store_dwordx4 %s, %s, %s, 0 offen offset:%d sc1" % (v(OUTR[rho], 4), v(vSKV), srd(SRD_WS), 64 if rho == 0 else 0), "a0st")
        self.wait_lg("q")
        for rho in range(2):
            self.vmem("buffer_store_dwordx4 %s, %s, %s, 0 offen offset:%d sc1" % (v(QQ[rho], 4), v(vSQ), srd(SRD_WS), 64 * rho), "a0st")
        vGO, vZERO = 23, 58
        e("v_mov_b32 %s, 0" % v(vZERO))
        self.vmem("buffer_load_dword %s, %s, %s, 0 offen offset:%d sc1" % (v(vGO), v(vZERO), srd(SRD_DBG), self.go_off), "go")
        self.stamp(2)

    def w_touch(self, half, tag):
        e = self.e
        vP = 62
        e("s_and_b32 s%d, s%d, 3" % (sT0, sBI))
        e("s_mul_i32 s%d, s%d, %d" % (sT0, sT0, 56 * 3584))
        e("s_lshl_b32 s%d, s%d, 8" % (sT1, sBJ))
        e("s_add_u32 s%d, s%d, s%d" % (sT0, sT0, sT1))
        e("s_lshr_b32 s%d, s%d, 1" % (sT1, sWAVE))
        e("s_lshl_b32 s%d, s%d, 7" % (sT1, sT1))
        e("s_add_u32 s%d, s%d, s%d" % (sT0, sT0, sT1))
        if half:
            e("s_add_u32 s%d, s%d, %d" % (sT0, sT0, 224 * 3584))
        e("v_min_u32 %s, 55, v1" % v(vP))
        e("v_mul_u32_u24 %s, 3584, %s" % (v(vP), v(vP)))
        lab, labj = self.newlabel("wt"), self.newlabel("wtj")
        e("s_bitcmp1_b32 s%d, 0" % sWAVE)
        e("s_cbranch_scc1 %s" % lab)
        e("buffer_load_dword v252, %s, %s, s%d offen" % (v(vP), srd(SRD_WG), sT0))
        e("s_branch %s" % labj)
        self.label(lab)
        e("buffer_load_dword v252, %s, %s, s%d offen offset:1024" % (v(vP), srd(SRD_WU), sT0))
        self.label(labj)
        self.vm.append(tag)

    def t_build(self):
        e = self.e
        vZ, vZA, vRA, vPA = 19, 20, 21, 22
        D0 = 100
        e("v_mov_b32 %s, 0" % v(vZ))
        e("s_mul_i32 s%d, s%d, 8320" % (sT2, sCHL))
        e("s_add_u32 s%d, s%d, %d" % (sT2, sT2, L_TS))
        e("v_lshl_add_u32 %s, v1, 2, s%d" % (v(vPA), sT2))
        e("v_mov_b32 %s, s%d" % (v(vZA), sT2))
        e("v_add_u32 %s, %d, %s" % (v(vZA), 32 + 4096, v(vZA)))
        e("v_cmp_gt_u32 vcc, 8, v1")
        e("s_nop 1")
        e("v_cndmask_b32 %s, %s, %s, vcc" % (v(vZA), v(vZA), v(vPA)))
        e("s_mov_b64 exec, 0x1ff")
        e("ds_write_b32 %s, %s" % (v(vZA), v(vZ)))
        e("s_mov_b64 exec, -1")
        e("s_lshl_b32 s%d, s%d, 11" % (sT1, sHALF))
        e("s_add_u32 s%d, s%d, s%d" % (sT1, sT1, sT2))
        e("s_add_u32 s%d, s%d, 32" % (sT1, sT1))
        e("v_lshl_add_u32 %s, v1, 4, s%d" % (v(vRA), sT1))
        self.wait_vm("ts")
        self.wait_lg0()
        e("s_barrier")
        for c in range(2):
            e("ds_read_b128 %s, %s offset:%d" % (v(D0 + 6 * c, 4), v(vRA), 1024 * c))
            e("ds_read_b32 %s, %s offset:%d" % (v(D0 + 6 * c + 4), v(vRA), 1024 * c + 16))
        e("ds_read2_b32 %s, %s offset0:0 offset1:1" % (v(D0 + 12, 2), v(vPA)))
        e("s_mul_i32 s%d, s%d, 4608" % (sT0, sCHL))
        e("s_lshl_b32 s%d, s%d, 8" % (sT1, sHALF))
        e("s_add_u32 s%d, s%d, s%d" % (sT0, sT0, sT1))
        e("s_add_u32 s%d, s%d, %d" % (sT0, sT0, L_X + 4096))
        e("v_lshl_add_u32 %s, v1, 2, s%d" % (v(vZA), sT0))
        e("ds_write_b32 %s, %s" % (v(vZA), v(vZ)))
        self.wait_lg0()
        O = D0 + 16
        for c in range(2):
            for i in range(4):
                e("v_alignbit_b32 %s, %s, %s, 16" % (v(O + 4 * c + i), v(D0 + 6 * c + i + 1), v(D0 + 6 * c + i)))
        e("v_alignbit_b32 %s, %s, %s, 16" % (v(O + 8), v(D0 + 13), v(D0 + 12)))
        for c in range(2):
            e("ds_write_b128 %s, %s offset:%d" % (v(vRA), v(O + 4 * c, 4), 4160 + 1024 * c))
        e("s_mov_b64 exec, 0xff")
        e("ds_write_b32 %s, %s offset:4160" % (v(vPA), v(O + 8)))
        e("s_mov_b64 exec, -1")
        self.wait_lg0()
        e("s_barrier")

    def w_stage_setup(self):
        e = self.e
        vT = 7
        e("v_lshrrev_b32 %s, 2, v1" % v(vT))
        e("v_mul_u32_u24 %s, 3584, %s" % (v(vT), v(vT)))
        e("v_and_b32 %s, 3, v1" % v(vWS))
        e("v_xor_b32 %s, 2, %s" % (v(vWS + 1), v(vWS)))
        e("v_lshl_add_u32 %s, %s, 4, %s" % (v(vWS), v(vWS), v(vT)))
        e("v_lshl_add_u32 %s, %s, 4, %s" % (v(vWS + 1), v(vWS + 1), v(vT)))
        e("v_add_u32 %s, %d, %s" % (v(vWS + 2), 57344 - 2048, v(vWS)))
        e("v_add_u32 %s, %d, %s" % (v(vWS + 3), 57344 - 2048, v(vWS + 1)))

    def w_stage_items(self, rnd, spanel=None, gstart=0, ngroups=7, sgstart=None):
        e = self.e
        items = []
        sp = sWAVE if spanel is None else spanel

        def setup():
            e("s_lshl_b32 s%d, s%d, 8" % (sWB, sBJ))
            e("s_lshl_b32 s%d, s%d, 6" % (sWM, sp))
            e("s_add_u32 s%d, s%d, s%d" % (sWB, sWB, sWM))
            if rnd:
                e("s_add_u32 s%d, s%d, %d" % (sWB, sWB, 14 * rnd * 57344))
            e("s_mul_i32 s%d, s%d, 28672" % (sWM, sp))
            if L_WST:
                e("s_add_u32 s%d, s%d, %d" % (sWM, sWM, L_WST))
            e("s_and_b32 s%d, s%d, 3" % (sWG, sBI))
            e("s_lshl_b32 s%d, s%d, 1" % (sWG, sWG))
            if sgstart is not None:
                e("s_add_u32 s%d, s%d, s%d" % (sWG, sWG, sgstart))
                e("s_cmp_ge_u32 s%d, 7" % sWG)
                e("s_cselect_b32 s%d, 7, 0" % sWX)
                e("s_sub_u32 s%d, s%d, s%d" % (sWG, sWG, sWX))

        def addr():
            e("s_mul_i32 s%d, s%d, %d" % (sWSO, sWG, 2 * 57344))
            e("s_add_u32 s%d, s%d, s%d" % (sWSO, sWSO, sWB))
            e("s_lshl_b32 s%d, s%d, 12" % (sWX, sWG))
            e("s_add_u32 m0, s%d, s%d" % (sWX, sWM))
        for grp in range(ngroups):
            for n in range(4):
                def one(grp=grp, n=n):
                    if grp == 0 and n == 0:
                        setup()
                        addr()
                        e("s_nop 0")
                    elif n == 0:
                        e("s_add_u32 s%d, s%d, 1" % (sWG, sWG))
                        e("s_cmp_eq_u32 s%d, 7" % sWG)
                        e("s_cselect_b32 s%d, 0, s%d" % (sWG, sWG))
                        addr()
                        e("s_nop 0")
                    self.vmem("buffer_load_dwordx4 %s, %s, s%d offen offset:%d lds" % (v(vWS + (n & 1) + 2 * (n >> 1)), srd(SRD_WG if (n & 1) == 0 else SRD_WU), sWSO, 1024 * n), "w%d" % rnd)
                items.append(one)
        return items

    def w_stage_read_setup(self, vB0, vB1):
        e = self.e
        vT, vU = 7, 4
        e("v_bfe_u32 %s, v1, 4, 1" % v(vT))
        e("v_lshrrev_b32 %s, 5, v1" % v(vU))
        e("v_lshlrev_b32 %s, 3, %s" % (v(vU), v(vU)))
        e("v_bfe_u32 %s, v1, 2, 2" % v(vB0))
        e("v_add_u32 %s, %s, %s" % (v(vU), v(vU), v(vB0)))
        e("v_lshlrev_b32 %s, 6, %s" % (v(vU), v(vU)))
        e("v_and_b32 %s, 3, v1" % v(vB0))
        e("v_lshl_add_u32 %s, %s, 3, %s" % (v(vU), v(vB0), v(vU)))
        e("v_mul_u32_u24 %s, 1056, %s" % (v(vT), v(vT)))
        e("s_mul_i32 s%d, s%d, 28672" % (sT0, sWAVE))
        e("v_add3_u32 %s, %s, %s, s%d" % (v(vB0), v(vU), v(vT), sT0))
        e("v_xor_b32 %s, 32, %s" % (v(vB1), v(vB0)))

    def w_stage_read_items(self, rnd, vB0, vB1):
        items = []
        for s in range(14):
            for ft in range(2):
                base = 8 * (14 * rnd + s) + 4 * ft
                for ee in range(2):
                    items.append("ds_read_b64_tr_b16 %s, %s offset:%d" % (a(base + 2 * ee, 2), v(vB0 if ft == 0 else vB1), L_WST + 2048 * s + 256 * ee))
        return items

    def w_stage_read(self, rnd):
        self.c("W staging -> AGPR round %d" % rnd)
        self.wait_vm("w%d" % rnd)
        for line in self.w_stage_read_items(rnd, vWRD, vWRD + 1):
            self.lds(line, "wr")

    def t_read(self):
        e = self.e
        self.c("T fragments -> a112..a239")
        vB, vT, vU = 240, 7, 4
        e("v_and_b32 %s, 15, v1" % v(vT))
        e("v_and_b32 %s, 1, %s" % (v(vU), v(vT)))
        e("v_add_u32 %s, %s, %s" % (v(vT), v(vT), v(vU)))
        e("v_lshrrev_b32 %s, 4, v1" % v(vB))
        e("v_lshl_add_u32 %s, %s, 3, %s" % (v(vT), v(vB), v(vT)))
        e("v_lshlrev_b32 %s, 1, %s" % (v(vT), v(vT)))
        e("v_xor_b32 %s, 1, %s" % (v(vU), v(vU)))
        e("v_mul_u32_u24 %s, 4160, %s" % (v(vU), v(vU)))
        e("s_mul_i32 s%d, s%d, 8320" % (sT0, sCHL))
        e("s_lshl_b32 s%d, s%d, 8" % (sT1, sHALF))
        e("s_add_u32 s%d, s%d, s%d" % (sT0, sT0, sT1))
        e("s_add_u32 s%d, s%d, %d" % (sT0, sT0, L_TS))
        e("v_add3_u32 %s, %s, %s, s%d" % (v(vB), v(vT), v(vU), sT0))
        for i in range(1, 4):
            e("v_add_u32 %s, %d, %s" % (v(vB + i), 1024 * i, v(vB)))
        items = []
        for rr in range(4):
            for q in range(8):
                base = 112 + 4 * (8 * rr + q)
                o = 128 * (q & 1) + 16 * rr
                for hh in range(2):
                    items.append("ds_read2_b32 %s, %s offset0:%d offset1:%d" % (a(base + 2 * hh, 2), v(vB + (q >> 1)), o + 2 * hh, o + 2 * hh + 1))
        return items

    def pre_signal(self):
        e = self.e
        if self.wtouch2:
            self.w_touch(0, "wt")
        self.t_build()
        titems = self.t_read()
        lab0, labj = self.newlabel("p0"), self.newlabel("pj")
        e("s_cmp_eq_u32 s%d, 0" % sWAVE)
        e("s_cbranch_scc1 %s" % lab0)
        save = list(self.vm)
        self.w0_own = self.w_stage_items(0)
        t = list(titems)
        npre = self.npre
        for it in self.w0_own[:npre]:
            it()
            for _ in range(64 // max(npre, 1)):
                e(t.pop(0))
        while t:
            e(t.pop(0))
        self.wait_vm("go")
        self.vm = list(save)
        e("s_branch %s" % labj)
        self.label(lab0)
        for line in titems:
            e(line)
        self.wait_vm("go")
        self.label(labj)

    def window1(self, vL16):
        e = self.e
        lab0, labj = self.newlabel("w0"), self.newlabel("wj")
        e("s_cmp_eq_u32 s%d, 0" % sWAVE)
        e("s_cbranch_scc1 %s" % lab0)
        if self.prefetch:
            vP = 59
            e("s_mul_i32 s%d, s2, 7168" % sT0)
            e("s_sub_u32 s%d, s%d, 1" % (sT1, sWAVE))
            e("s_mul_i32 s%d, s%d, %d" % (sT1, sT1, 19 * 128))
            e("s_add_u32 s%d, s%d, s%d" % (sT0, sT0, sT1))
            e("v_lshl_add_u32 %s, v1, 7, s%d" % (v(vP), sT0))
            e("s_mov_b64 exec, 0x7ffff")
            e("buffer_load_dword v252, %s, %s, 0 offen" % (v(vP), srd(SRD_WG)))
            e("buffer_load_dword v252, %s, %s, 0 offen offset:1024" % (v(vP), srd(SRD_WU)))
            e("buffer_load_dword v252, %s, %s, 0 offen" % (v(vP), srd(SRD_WD)))
            e("s_mov_b64 exec, -1")
        save = list(self.vm)
        if self.b0:
            e("s_barrier")
        for it in self.w0_own[self.npre:]:
            it()
        sPAN, sGST = 72, 73
        e("s_mov_b32 s%d, 0" % sPAN)
        e("s_lshl_b32 s%d, s%d, 1" % (sGST, sWAVE))
        e("s_sub_u32 s%d, s%d, 1" % (sGST, sGST))
        e("s_cmp_eq_u32 s%d, 1" % sWAVE)
        e("s_cselect_b32 s%d, 0, s%d" % (sGST, sGST))
        sh = self.w_stage_items(0, spanel=sPAN, ngroups=3, sgstart=sGST)
        for it in sh[:8]:
            it()
        lab3 = self.newlabel("w3")
        e("s_cmp_eq_u32 s%d, 1" % sWAVE)
        e("s_cbranch_scc0 %s" % lab3)
        for it in sh[8:]:
            it()
        self.label(lab3)
        self.vm = save
        e("s_waitcnt vmcnt(0) lgkmcnt(0)")
        self.stamp(21, wave=1)
        e("s_branch %s" % labj)
        self.label(lab0)
        vA, vTg, vTmp = 21, 22, 23
        e("s_lshr_b32 s%d, s2, 5" % sT0)
        e("s_lshl_b32 s%d, s%d, 3" % (sT0, sT0))
        e("s_and_b32 s%d, s2, 7" % sT1)
        e("s_add_u32 s%d, s%d, s%d" % (sT0, sT0, sT1))
        e("s_lshl_b32 s%d, s%d, 8" % (sT0, sT0))
        e("s_add_u32 s%d, s%d, %d" % (sT0, sT0, WS_CNT + 256 * C_S1))
        e("v_mov_b32 %s, s%d" % (v(vA), sT0))
        e("v_mov_b32 %s, 32" % v(vTg))
        if self.smem_poll:
            loop, done = self.newlabel("sp"), self.newlabel("spd")
            e("s_mov_b32 s%d, %d" % (sSPIN, SPIN_LIMIT))
            self.label(loop)
            e("s_load_dword s%d, s[%d:%d], s%d glc" % (sT1, SRD_WS, SRD_WS + 1, sT0))
            e("s_waitcnt lgkmcnt(0)")
            e("s_cmp_ge_u32 s%d, 32" % sT1)
            e("s_cbranch_scc1 %s" % done)
            e("s_sub_u32 s%d, s%d, 1" % (sSPIN, sSPIN))
            e("s_cmp_lg_u32 s%d, 0" % sSPIN)
            e("s_cbranch_scc1 %s" % loop)
            self.label(done)
        else:
            self.spin(vA, vTg, vTmp)
        self.stamp(4)
        e("s_lshl_b32 s%d, s2, 13" % sT0)
        if WS_KVT:
            e("s_add_u32 s%d, s%d, %d" % (sT0, sT0, WS_KVT))
        e("s_mov_b32 m0, %d" % L_X)
        e("s_nop 0")
        for i in range(4):
            e("buffer_load_dwordx4 %s, %s, s%d offen offset:%d sc1 lds" % (v(vL16), srd(SRD_WS), sT0, 1024 * i))
        e("s_add_u32 s%d, s%d, 4096" % (sT0, sT0))
        e("s_mov_b32 m0, %d" % (L_X + 4608))
        e("s_nop 0")
        for i in range(4):
            e("buffer_load_dwordx4 %s, %s, s%d offen offset:%d sc1 lds" % (v(vL16), srd(SRD_WS), sT0, 1024 * i))
        if self.b0:
            e("s_barrier")
        e("s_and_b32 s%d, s2, 7" % sT1)
        e("s_lshl_b32 s%d, s%d, 8" % (sT1, sT1))
        e("s_add_u32 s%d, s%d, %d" % (sT1, sT1, WS_CNT + 256 * C_SL1))
        e("v_mov_b32 %s, s%d" % (v(vA), sT1))
        e("v_add_u32 %s, %d, %s" % (v(vTmp), 256 * (C_FH1 - C_SL1), v(vA)))
        e("v_cmp_gt_u32 vcc, 32, v1")
        e("s_nop 1")
        e("v_cndmask_b32 %s, %s, %s, vcc" % (v(vA), v(vTmp), v(vA)))
        e("s_waitcnt vmcnt(0) lgkmcnt(0)")
        self.stamp(22)
        self.label(labj)
        self.vm = ["w0"]
        self.lg = []
        e("s_barrier")

    def phase_a1(self):
        e = self.e
        self.c("==== A1 ====")
        ACC = 32
        XF = [64, 96]
        QR, KVR, AR, BR = 128, 136, 144, 160
        LN, KD, QF = 176, 192, 208
        Y = 224
        vT, vU = 7, 4
        vL16 = 9
        e("v_lshlrev_b32 %s, 4, v1" % v(vL16))
        e("s_lshl_b32 s%d, s2, 1" % sT0)
        e("s_add_u32 s%d, s%d, s%d" % (sT0, sT0, sCHL))
        e("s_lshl_b32 s%d, s%d, 12" % (sT0, sT0))
        vTL = 5
        e("v_and_b32 %s, 15, v1" % v(vT))
        e("v_lshrrev_b32 %s, 4, v1" % v(vU))
        e("v_lshlrev_b32 %s, 2, %s" % (v(vU), v(vU)))
        e("v_lshl_add_u32 %s, %s, 4, %s" % (v(vTL), v(vT), v(vU)))
        e("s_lshl_b32 s%d, s%d, 10" % (sT1, sHALF))
        e("v_add_u32 %s, s%d, %s" % (v(vTL), sT1, v(vTL)))
        vQA, vSA = 6, 8
        e("s_add_u32 s%d, s%d, %d" % (sT2, sT0, WS_QT))
        e("v_lshl_add_u32 %s, %s, 1, s%d" % (v(vQA), v(vTL), sT2))
        e("v_lshlrev_b32 %s, 2, %s" % (v(vSA), v(vTL)))
        e("s_mov_b32 s%d, %d" % (sT4, WS_ST1))
        e("s_mov_b32 s%d, %d" % (sT5, WS_ST1 + 8192))
        vXB, vKVA, vEW, vER = 10, 11, 12, 13
        e("v_and_b32 %s, 15, v1" % v(vT))
        e("v_lshrrev_b32 %s, 4, v1" % v(vU))
        e("v_lshlrev_b32 %s, 4, %s" % (v(vU), v(vU)))
        e("v_lshlrev_b32 %s, 5, %s" % (v(vT), v(vT)))
        e("v_sub_u32 %s, %s, %s" % (v(vXB), v(vU), v(vT)))
        e("s_mul_i32 s%d, s%d, 4608" % (sT0, sCHL))
        e("s_lshl_b32 s%d, s%d, 8" % (sT1, sHALF))
        e("s_add_u32 s%d, s%d, s%d" % (sT1, sT1, sT0))
        e("s_add_u32 s%d, s%d, %d" % (sT1, sT1, L_X + 480))
        e("v_add_u32 %s, s%d, %s" % (v(vXB), sT1, v(vXB)))
        e("s_add_u32 s%d, s%d, %d" % (sT1, sT0, L_X + 4088 - 1536))
        e("v_lshlrev_b32 %s, 1, %s" % (v(vT), v(vTL)))
        e("v_sub_u32 %s, s%d, %s" % (v(vKVA), sT1, v(vT)))
        e("s_lshl_b32 s%d, s%d, 12" % (sT0, sWAVE))
        e("s_add_u32 s%d, s%d, %d" % (sT1, sT0, L_TS))
        e("v_add_u32 %s, s%d, %s" % (v(vEW), sT1, v(vL16)))
        e("s_xor_b32 s%d, s%d, 0x1000" % (sT0, sT0))
        e("s_add_u32 s%d, s%d, %d" % (sT1, sT0, L_TS))
        e("v_add_u32 %s, s%d, %s" % (v(vER), sT1, v(vL16)))
        vHO = 14
        vRow = 15
        e("v_lshrrev_b32 %s, 4, v1" % v(vRow))
        e("v_and_b32 %s, 15, v1" % v(vT))
        e("v_lshrrev_b32 %s, 1, %s" % (v(vU), v(vT)))
        e("v_and_b32 %s, 1, %s" % (v(vHO), v(vRow)))
        e("v_lshl_add_u32 %s, %s, 3, %s" % (v(vU), v(vHO), v(vU)))
        e("v_mul_u32_u24 %s, 28672, %s" % (v(vHO), v(vU)))
        e("v_and_b32 %s, 1, %s" % (v(vT), v(vT)))
        e("v_lshl_add_u32 %s, %s, 5, %s" % (v(vHO), v(vT), v(vHO)))
        e("v_lshrrev_b32 %s, 1, %s" % (v(vRow), v(vRow)))
        e("v_lshl_add_u32 %s, %s, 4, %s" % (v(vHO), v(vRow), v(vHO)))
        e("s_lshl_b32 s%d, s2, 1" % sT0)
        e("s_add_u32 s%d, s%d, s%d" % (sT0, sT0, sCHL))
        e("s_lshl_b32 s%d, s%d, 6" % (sT0, sT0))
        e("s_mul_i32 s%d, s%d, %d" % (sT1, sHALF, 32 * 28672))
        e("s_add_u32 s%d, s%d, s%d" % (sT0, sT0, sT1))
        e("s_add_u32 s%d, s%d, %d" % (sT6, sT0, WS_HB))
        e("s_add_u32 s%d, s%d, %d" % (sT7, sT6, 16 * 28672))
        vABR = 16
        e("v_lshl_add_u32 %s, %s, 2, 0" % (v(vABR), v(vTL)))
        e("v_add_u32 %s, %d, %s" % (v(vABR), L_EX, v(vABR)))
        self.window1(vL16)
        self.stamp(5)

        def xread(rr):
            for m in range(8):
                self.lds("ds_read_b128 %s, %s offset:%d" % (v(XF[rr & 1] + 4 * m, 4), v(vXB), 512 * (7 - m) + 64 * rr), "x%d" % rr)

        F = [[], [], [], []]

        def pair(lst, items):
            for i in range(0, len(items), 2):
                lst.append(items[i:i + 2])
        wr = [("lds", x, "wr") for x in self.w_stage_read_items(0, vWRD, vWRD + 1)]
        pair(F[0], wr)
        w1 = self.w_stage_items(1)
        NW1 = self.nw1
        self.w1_rest = w1[NW1:]
        def stat_dma(i):
            if i == 0:
                e("s_lshl_b32 s%d, s%d, 12" % (sT4, sWAVE))
                e("s_add_u32 m0, s%d, %d" % (sT4, L_EX))
                e("s_add_u32 s%d, s%d, %d" % (sT4, sT4, WS_ST1))
            self.vmem("buffer_load_dwordx4 %s, %s, s%d offen offset:%d sc1 lds" % (v(vL16), srd(SRD_WS), sT4, 1024 * i), "stat")
        kvq = []
        for cc in range(4):
            kvq.append([("lds", "ds_read_b64 %s, %s offset:%d" % (v(KVR + 2 * cc, 2), v(vKVA), 512 * (3 - cc)), "kv"),
                        ("vm", "buffer_load_dwordx2 %s, %s, %s, 0 offen offset:%d sc1" % (v(QR + 2 * cc, 2), v(vQA), srd(SRD_WS), 512 * cc), "q")])
        abl = []
        for cc in range(4):
            abl.append([("lds", "ds_read_b128 %s, %s offset:%d" % (v(AR + 4 * cc, 4), v(vABR), 1024 * cc), "ab"),
                        ("lds", "ds_read_b128 %s, %s offset:%d" % (v(BR + 4 * cc, 4), v(vABR), 8192 + 1024 * cc), "ab")])
        it = []
        for cc in range(4):
            for i in range(4):
                src = KVR + 2 * cc + (1 - (i >> 1))
                if i & 1:
                    it.append(("v", "v_lshlrev_b32 %s, 16, %s" % (v(KD + 4 * cc + i), v(src))))
                else:
                    it.append(("v", "v_and_b32 %s, 0xffff0000, %s" % (v(KD + 4 * cc + i), v(src))))
        unp = [[("waitlg", "kv"), it[0]]] + [[x] for x in it[1:]]
        km = [[("v", "v_mul_f32 %s, s%d, %s" % (v(KD + x), sD, v(KD + x)))] for x in range(16)]
        qf = []
        for cc in range(4):
            for i in range(4):
                src = QR + 2 * cc + (i >> 1)
                if i & 1:
                    qf.append(("v", "v_and_b32 %s, 0xffff0000, %s" % (v(QF + 4 * cc + i), v(src))))
                else:
                    qf.append(("v", "v_lshlrev_b32 %s, 16, %s" % (v(QF + 4 * cc + i), v(src))))
        qf = [[("waitvm", "q"), qf[0]]] + [[x] for x in qf[1:]]
        ln = [("v", "v_fma_f32 %s, %s, %s, %s" % (v(LN + x), v(QF + x), v(AR + x), v(BR + x))) for x in range(16)]
        ln = [[("waitlg", "ab"), ln[0]]] + [[x] for x in ln[1:]]
        plan = {1: (28, 8, kvq + unp[:16]), 2: (28, 8, km + qf[:4]), 3: (36, 12, abl + qf[4:] + ln)}
        k = 0
        for rnd_ in (1, 2, 3):
            n, nw, items = plan[rnd_]
            items = list(items)
            ent = [[] for _ in range(n)]
            first = 4 if rnd_ == 1 else (1 if rnd_ == 2 else 0)
            wpos = [first + (j * (n - first - 1)) // nw for j in range(nw)]
            if rnd_ == self.stat_round:
                ent[0].append(("fn", lambda: [stat_dma(i) for i in range(4)]))
            for j in wpos:
                if k == 0:
                    ent[j].append(("waitlg", "wr"))
                ent[j].append(("fn", w1[k]))
                k += 1
            free = [j for j in range(n) if not ent[j]]
            extra = len(items) - len(free)
            slots = sorted(free + wpos[len(wpos) - max(extra, 0):]) if extra > 0 else free
            assert len(items) <= len(slots), (rnd_, len(items), len(slots))
            for j, itm in zip(slots, items):
                ent[j] += itm
            F[rnd_] = ent
        assert k == NW1

        def run(entry):
            for it in entry:
                if it[0] == "v":
                    e(it[1])
                elif it[0] == "lds":
                    self.lds(it[1], it[2])
                elif it[0] == "vm":
                    self.vmem(it[1], it[2])
                elif it[0] == "fn":
                    it[1]()
                elif it[0] == "waitvm":
                    self.wait_vm(it[1])
                elif it[0] == "waitlg":
                    self.wait_lg(it[1])

        xread(0)
        for rr in range(4):
            if rr == self.stat_round - 1:
                lab = self.newlabel("sl")
                e("s_cmp_eq_u32 s%d, 0" % sWAVE)
                e("s_cbranch_scc0 %s" % lab)
                e("buffer_load_dword v23, v21, %s, 0 offen sc1" % srd(SRD_WS))
                self.label(lab)
                self.vm = ["sl@0"]
            if rr == self.stat_round:
                self.stamp(26)
                self.wait_vm("sl@0")
                loop, done = self.newlabel("sll"), self.newlabel("sld")
                e("s_cmp_eq_u32 s%d, 0" % sWAVE)
                e("s_cbranch_scc0 %s" % done)
                e("s_mov_b32 s%d, %d" % (sSPIN, SPIN_LIMIT))
                self.label(loop)
                e("v_cmp_lt_u32 vcc, v23, v22")
                e("s_nop 4")
                e("s_cbranch_vccz %s" % done)
                e("buffer_load_dword v23, v21, %s, 0 offen sc1" % srd(SRD_WS))
                e("s_waitcnt vmcnt(0)")
                e("s_sub_u32 s%d, s%d, 1" % (sSPIN, sSPIN))
                e("s_cmp_lg_u32 s%d, 0" % sSPIN)
                e("s_cbranch_scc1 %s" % loop)
                self.label(done)
                e("s_barrier")
            if rr == self.stat_round + 1:
                self.stamp(27)
                self.wait_vm("stat")
                e("s_barrier")
            if rr:
                self.stamp(22 + rr)
            self.wait_lg("x%d" % rr)
            cnt = 0
            fl = list(F[rr])
            for q in range(8):
                for c in range(q, 8):
                    m = c - q
                    srcc = "0" if (rr == 0 and q == 0) else v(ACC + 4 * c, 4)
                    e("v_mfma_f32_16x16x32_bf16 %s, %s, %s, %s" % (v(ACC + 4 * c, 4), a(112 + 4 * (8 * rr + q), 4), v(XF[rr & 1] + 4 * m, 4), srcc))
                    cnt += 1
                    if rr < 3 and cnt <= 8:
                        m2 = cnt - 1
                        self.lds("ds_read_b128 %s, %s offset:%d" % (v(XF[(rr + 1) & 1] + 4 * m2, 4), v(vXB), 512 * (7 - m2) + 64 * (rr + 1)), "x%d" % (rr + 1))
                    elif fl:
                        run(fl.pop(0))
            for entry in fl:
                run(entry)
        self.stamp(6)
        e("s_nop 7")
        lab1, lab2 = self.newlabel("h1"), self.newlabel("hj")
        TMP = XF[0]
        e("s_cmp_eq_u32 s%d, 0" % sHALF)
        e("s_cbranch_scc0 %s" % lab1)
        for cc in range(4):
            e("ds_write_b128 %s, %s offset:%d" % (v(vEW), v(ACC + 16 + 4 * cc, 4), 1024 * cc))
        for x in range(16):
            e("v_add_f32 %s, %s, %s" % (v(Y + x), v(ACC + x), v(KD + x)))
        e("s_branch %s" % lab2)
        self.label(lab1)
        for cc in range(4):
            e("ds_write_b128 %s, %s offset:%d" % (v(vEW), v(ACC + 4 * cc, 4), 1024 * cc))
        for x in range(16):
            e("v_add_f32 %s, %s, %s" % (v(Y + x), v(ACC + 16 + x), v(KD + x)))
        self.label(lab2)
        e("s_waitcnt lgkmcnt(0)")
        self.lg = []
        e("s_barrier")
        for cc in range(4):
            self.lds("ds_read_b128 %s, %s offset:%d" % (v(TMP + 4 * cc, 4), v(vER), 1024 * cc), "ex%d" % cc)
        P = XF[0] + 16
        for cc in range(4):
            self.wait_lg("ex%d" % cc)
            for i in range(4):
                x = 4 * cc + i
                e("v_add_f32 %s, %s, %s" % (v(Y + x), v(Y + x), v(TMP + x)))
            for i in range(4):
                x = 4 * cc + i
                e("v_fma_f32 %s, %s, %s, %s" % (v(Y + x), v(LN + x), v(Y + x), v(QF + x)))
            e("v_cvt_pk_bf16_f32 %s, %s, %s" % (v(P + 2 * cc), v(Y + 4 * cc), v(Y + 4 * cc + 1)))
            e("v_cvt_pk_bf16_f32 %s, %s, %s" % (v(P + 2 * cc + 1), v(Y + 4 * cc + 2), v(Y + 4 * cc + 3)))
            if cc & 1:
                b = P + 2 * (cc - 1)
                e("s_nop 1")
                e("v_permlane16_swap_b32 %s, %s" % (v(b), v(b + 2)))
                e("v_permlane16_swap_b32 %s, %s" % (v(b + 1), v(b + 3)))
                self.vmem("buffer_store_dwordx4 %s, %s, %s, s%d offen sc1" % (v(b, 4), v(vHO), srd(SRD_WS), sT6 if cc == 1 else sT7), "hst")
        self.stamp(7)

    def helper(self):
        e = self.e
        self.label("L_helper")
        self.in_helper = True
        self.vm = []
        self.lg = []
        self.c("==== helper ====")
        sH = sRB
        e("s_sub_u32 s%d, s2, 224" % sH)
        e("s_waitcnt lgkmcnt(0)")
        self.srds(["q", "rest"])
        if self.stamps:
            e("v_mov_b32 v93, 0")
        vT, vU, vZ = 7, 4, 5
        e("v_mov_b32 %s, 0" % v(vZ))
        lab = self.newlabel("hz0")
        e("s_cmp_eq_u32 s%d, 0" % sH)
        e("s_cbranch_scc0 %s" % lab)
        e("s_cmp_eq_u32 s%d, 0" % sWAVE)
        e("s_cbranch_scc0 %s" % lab)
        e("v_lshlrev_b32 %s, 8, v1" % v(vT))
        e("v_add_u32 %s, %d, %s" % (v(vT), WS_CNT, v(vT)))
        e("buffer_store_dword %s, %s, %s, 0 offen sc1" % (v(vZ), v(vT), srd(SRD_WS)))
        e("v_add_u32 %s, %d, %s" % (v(vT), 64 * 256, v(vT)))
        e("s_mov_b64 exec, 0xffff")
        e("buffer_store_dword %s, %s, %s, 0 offen sc1" % (v(vZ), v(vT), srd(SRD_WS)))
        e("s_mov_b64 exec, -1")
        self.label(lab)
        FR = 32
        vQ = 6
        e("s_lshl_b32 s%d, s%d, 6" % (sT0, sH))
        e("s_lshl_b32 s%d, s%d, 4" % (sT1, sWAVE))
        e("s_add_u32 s%d, s%d, s%d" % (sT0, sT0, sT1))
        e("v_and_b32 %s, 15, v1" % v(vT))
        e("v_add_u32 %s, s%d, %s" % (v(8), sT0, v(vT)))
        e("v_mul_u32_u24 %s, 896, %s" % (v(vQ), v(8)))
        e("v_lshrrev_b32 %s, 4, v1" % v(vU))
        e("v_lshl_add_u32 %s, %s, 4, %s" % (v(vQ), v(vU), v(vQ)))
        for s in range(14):
            self.vmem("buffer_load_dwordx4 %s, %s, %s, 0 offen offset:%d" % (v(FR + 4 * s, 4), v(vQ), srd(SRD_Q), 64 * s), "q")
        lab = self.newlabel("hz")
        e("s_cmp_eq_u32 s%d, 0" % sWAVE)
        e("s_cbranch_scc0 %s" % lab)
        e("s_lshl_b32 s%d, s%d, 8" % (sT0, sH))
        e("s_add_u32 s%d, s%d, %d" % (sT0, sT0, WS_ST2))
        e("v_lshl_add_u32 %s, v1, 2, s%d" % (v(vT), sT0))
        e("buffer_store_dword %s, %s, %s, 0 offen sc1" % (v(vZ), v(vT), srd(SRD_WS)))
        self.label(lab)
        lab = self.newlabel("hc")
        e("s_cmp_eq_u32 s%d, 0" % sH)
        e("s_cbranch_scc0 %s" % lab)
        e("s_cmp_eq_u32 s%d, 0" % sWAVE)
        e("s_cbranch_scc0 %s" % lab)
        e("s_waitcnt vmcnt(15)")
        e("v_mov_b32 %s, 1" % v(vU))
        e("s_mov_b64 exec, 1")
        e("buffer_store_dword %s, %s, %s, 0 offen offset:%d sc1" % (v(vU), v(vZ), srd(SRD_DBG), self.go_off))
        e("s_mov_b64 exec, -1")
        self.label(lab)
        if self.hpf:
            vP = 94
            e("s_lshl_b32 s%d, s%d, 2" % (sT0, sH))
            e("s_add_u32 s%d, s%d, s%d" % (sT0, sT0, sWAVE))
            e("s_mul_i32 s%d, s%d, %d" % (sT0, sT0, 49 * 128))
            e("v_min_u32 %s, 48, v1" % v(vP))
            e("v_lshl_add_u32 %s, %s, 7, s%d" % (v(vP), v(vP), sT0))
            self.srds(["w"])
            self.vmem("buffer_load_dword v95, %s, %s, 0 offen" % (v(vP), srd(SRD_WG)), "pf")
            self.vmem("buffer_load_dword v95, %s, %s, 0 offen offset:1024" % (v(vP), srd(SRD_WU)), "pf")
        ONES = 16
        for i in range(4):
            e("v_mov_b32 %s, 0x3f803f80" % v(ONES + i))
        self.wait_vm("q")
        GR, SM = 20, 24
        self.stats_mfma(lambda s: FR + 4 * s, ONES, GR, SM, None)
        A_, B_ = 28, 29
        self.stats_finish(GR, SM, A_, B_, None)
        e("v_lshlrev_b32 %s, 2, %s" % (v(vT), v(8)))
        e("s_mov_b32 s%d, %d" % (sT4, WS_ST1))
        e("s_mov_b32 s%d, %d" % (sT5, WS_ST1 + 8192))
        e("s_mov_b32 exec_lo, 0x00f0000f")
        e("s_mov_b32 exec_hi, 0xf0000f00")
        self.vmem("buffer_store_dword %s, %s, %s, s%d offen sc1" % (v(A_), v(vT), srd(SRD_WS), sT4), "st")
        self.vmem("buffer_store_dword %s, %s, %s, s%d offen sc1" % (v(B_), v(vT), srd(SRD_WS), sT5), "st")
        e("s_mov_b64 exec, -1")
        vGO = 30
        loop, done = self.newlabel("go"), self.newlabel("god")
        e("s_mov_b32 s%d, %d" % (sSPIN, SPIN_LIMIT))
        self.label(loop)
        e("buffer_load_dword %s, %s, %s, 0 offen offset:%d sc1" % (v(vGO), v(vZ), srd(SRD_DBG), self.go_off))
        e("s_waitcnt vmcnt(0)")
        self.vm = []
        e("v_cmp_eq_u32 vcc, 0, %s" % v(vGO))
        e("s_nop 4")
        e("s_cbranch_vccz %s" % done)
        e("s_sub_u32 s%d, s%d, 1" % (sSPIN, sSPIN))
        e("s_cmp_lg_u32 s%d, 0" % sSPIN)
        e("s_cbranch_scc1 %s" % loop)
        self.label(done)
        e("s_barrier")
        e("v_lshlrev_b32 %s, 8, v1" % v(vT))
        e("v_add_u32 %s, %d, %s" % (v(vT), WS_CNT + 256 * C_SL1, v(vT)))
        e("v_mov_b32 %s, 1" % v(vU))
        self.signal(vT, vU, 8)
        self.stamp(3)
        if self.stop in ("a0", "a1"):
            self.wait_all()
            e("s_endpgm")
            return
        MK = 40
        for i in range(4):
            e("v_mov_b32 %s, -1" % v(MK + i))
        e("v_lshlrev_b32 v9, 4, v1")
        e("s_mul_i32 s%d, s%d, 57344" % (sT0, sH))
        e("s_mul_i32 s%d, s%d, 14336" % (sT1, sWAVE))
        e("s_add_u32 s%d, s%d, s%d" % (sT0, sT0, sT1))
        e("s_add_u32 s%d, s%d, %d" % (sT0, sT0, WS_HB))
        for grp in range(4):
            for i in range(4 if grp < 3 else 2):
                e("buffer_store_dwordx4 %s, v9, %s, s%d offen offset:%d sc1" % (v(MK, 4), srd(SRD_WS), sT0, 1024 * i))
            if grp != 3:
                e("s_add_u32 s%d, s%d, 4096" % (sT0, sT0))
        e("s_waitcnt vmcnt(0)")
        e("s_barrier")
        e("v_lshlrev_b32 %s, 8, v1" % v(vT))
        e("v_add_u32 %s, %d, %s" % (v(vT), WS_CNT + 256 * C_FH1, v(vT)))
        e("v_mov_b32 %s, 1" % v(vU))
        self.signal(vT, vU, 8)
        e("s_mul_i32 s%d, s%d, 229376" % (sT0, sH))
        e("s_mul_i32 s%d, s%d, 57344" % (sT1, sWAVE))
        e("s_add_u32 s%d, s%d, s%d" % (sT0, sT0, sT1))
        e("s_add_u32 s%d, s%d, %d" % (sT0, sT0, WS_HF))
        for grp in range(14):
            for i in range(4):
                e("buffer_store_dwordx4 %s, v9, %s, s%d offen offset:%d sc1" % (v(MK, 4), srd(SRD_WS), sT0, 1024 * i))
            if grp != 13:
                e("s_add_u32 s%d, s%d, 4096" % (sT0, sT0))
                e("s_waitcnt vmcnt(%d)" % self.fill_depth)
        e("s_waitcnt vmcnt(0)")
        e("s_barrier")
        e("v_lshlrev_b32 %s, 8, v1" % v(vT))
        e("v_add_u32 %s, %d, %s" % (v(vT), WS_CNT + 256 * C_FH, v(vT)))
        e("v_mov_b32 %s, 1" % v(vU))
        self.signal(vT, vU, 8)
        self.stamp(4)
        e("s_and_b32 s%d, s2, 7" % sT0)
        e("s_lshl_b32 s%d, s%d, 8" % (sT0, sT0))
        e("s_add_u32 s%d, s%d, %d" % (sT0, sT0, WS_CNT + 256 * C_FH1))
        e("v_mov_b32 %s, s%d" % (v(vT), sT0))
        e("v_mov_b32 %s, 32" % v(vU))
        self.poll(vT, vU, vGO)
        self.stamp(8)
        e("s_lshr_b32 s%d, s%d, 1" % (sT0, sH))
        e("s_lshl_b32 s%d, s%d, 2" % (sT0, sT0))
        e("s_and_b32 s%d, s%d, 1" % (sT1, sH))
        e("s_add_u32 s%d, s%d, s%d" % (sT0, sT0, sT1))
        sTB = 51
        e("s_mov_b32 s%d, s%d" % (sTB, sT0))
        vL16, vCK = 9, 92
        e("v_lshlrev_b32 %s, 4, v1" % v(vL16))
        e("s_mul_i32 s%d, s%d, 7168" % (sT3, sWAVE))
        e("v_add_u32 %s, s%d, %s" % (v(vCK), sT3, v(vL16)))
        vA, vPX = 10, 14
        e("v_lshrrev_b32 %s, 4, v1" % v(vT))
        e("v_bfe_u32 %s, v1, 2, 2" % v(vU))
        e("v_lshl_add_u32 %s, %s, 3, %s" % (v(vT), v(vT), v(vU)))
        e("v_lshlrev_b32 %s, 6, %s" % (v(vT), v(vT)))
        e("v_and_b32 %s, 3, v1" % v(vU))
        e("v_lshl_add_u32 %s, %s, 3, %s" % (v(vA), v(vU), v(vT)))
        e("s_lshr_b32 s%d, s%d, 1" % (sT4, sWAVE))
        e("s_mul_i32 s%d, s%d, %d" % (sT4, sT4, 7 * 2048))
        e("s_and_b32 s%d, s%d, 1" % (sT5, sWAVE))
        e("s_lshl_b32 s%d, s%d, 5" % (sT5, sT5))
        e("s_add_u32 s%d, s%d, s%d" % (sT4, sT4, sT5))
        e("v_add_u32 %s, s%d, %s" % (v(vA), sT4, v(vA)))
        e("s_lshl_b32 s%d, s%d, 9" % (sT4, sWAVE))
        e("s_add_u32 s%d, s%d, 57344" % (sT4, sT4))
        e("v_lshl_add_u32 %s, v1, 3, s%d" % (v(vPX), sT4))
        vRW = 15
        e("s_lshl_b32 s%d, s%d, 5" % (sT4, sT0))
        e("s_and_b32 s%d, s%d, 1" % (sT5, sWAVE))
        e("s_lshl_b32 s%d, s%d, 4" % (sT5, sT5))
        e("s_add_u32 s%d, s%d, s%d" % (sT4, sT4, sT5))
        e("s_lshl_b32 s%d, s%d, 2" % (sT4, sT4))
        e("s_add_u32 s%d, s%d, %d" % (sT4, sT4, WS_ST2))
        e("v_and_b32 %s, 15, v1" % v(vT))
        e("v_lshl_add_u32 %s, %s, 2, s%d" % (v(vRW), v(vT), sT4))
        PK = 28
        CKR = 64
        for blk in range(2):
            self.hb_refetch(sTB, 2 * blk, blk, vL16)
            e("s_waitcnt vmcnt(0)")
            for ln in self.mark_reads(7, vCK, 28672 * blk, CKR, None):
                e(ln)
            e("s_waitcnt lgkmcnt(0)")
            for ln in self.mark_fold(7, CKR):
                e(ln)
            self.mark_branch(7, vCK, 28672 * blk, CKR, lambda blk=blk: self.hb_refetch(sTB, 2 * blk, blk, vL16))
            e("s_barrier")
            for s_ in range(7):
                for ee in range(2):
                    self.lds("ds_read_b64_tr_b16 %s, %s offset:%d" % (v(FR + 4 * s_ + 2 * ee, 2), v(vA), 28672 * blk + 2048 * s_ + 256 * ee), "f%d" % s_)
            self.stats_mfma(lambda s_: FR + 4 * s_, ONES, GR, SM, lambda s_: self.wait_lg("f%d" % s_), n=7)
            self.stats_diag(GR, 11)
            e("v_mov_b32 %s, %s" % (v(12), v(SM)))
            e("v_mov_b32 v60, v11")
            e("v_mov_b32 v61, v12")
            self.lds("ds_write_b64 %s, v[60:61] offset:%d" % (v(vPX), 2048 * blk), "px")
            self.wait_lg0()
            e("s_barrier")
            e("v_xor_b32 %s, 1024, %s" % (v(13), v(vPX)))
            self.lds("ds_read_b64 v[62:63], %s offset:%d" % (v(13), 2048 * blk), "px")
            self.wait_lg0()
            e("v_add_f32 v11, v60, v62")
            e("v_add_f32 %s, v61, v63" % v(SM))
            self.stats_finish(None, SM, None, None, PK)
            lab = self.newlabel("hs")
            e("s_cmp_lt_u32 s%d, 2" % sWAVE)
            e("s_cbranch_scc0 %s" % lab)
            e("s_mov_b32 exec_lo, 0x00f0000f")
            e("s_mov_b32 exec_hi, 0xf0000f00")
            e("buffer_store_dword %s, %s, %s, 0 offen offset:%d sc1" % (v(PK), v(vRW), srd(SRD_WS), 256 * blk))
            e("s_mov_b64 exec, -1")
            self.label(lab)
        self.stamp(9)
        lab = self.newlabel("clr")
        e("s_cmp_eq_u32 s%d, 0" % sH)
        e("s_cbranch_scc0 %s" % lab)
        e("s_cmp_eq_u32 s%d, 0" % sWAVE)
        e("s_cbranch_scc0 %s" % lab)
        e("v_mov_b32 %s, 0" % v(vZ))
        e("s_mov_b64 exec, 1")
        e("buffer_store_dword %s, %s, %s, 0 offen offset:%d sc1" % (v(vZ), v(vZ), srd(SRD_DBG), self.go_off))
        e("s_mov_b64 exec, -1")
        self.label(lab)
        self.stamp_dump()
        self.wait_all()
        e("s_endpgm")

    def stats_mfma(self, frag, ONES, GR, SM, pre, n=14):
        e = self.e
        for s in range(n):
            if pre:
                pre(s)
            f = frag(s)
            e("v_mfma_f32_16x16x32_bf16 %s, %s, %s, %s" % (v(GR, 4), v(f, 4), v(f, 4), "0" if s == 0 else v(GR, 4)))
            e("v_mfma_f32_16x16x32_bf16 %s, %s, %s, %s" % (v(SM, 4), v(ONES, 4), v(f, 4), "0" if s == 0 else v(SM, 4)))
        e("s_nop 7")

    def stats_diag(self, GR, t0):
        e = self.e
        e("s_mov_b32 s%d, 0x22222222" % sT6)
        e("s_mov_b32 s%d, 0x22222222" % sT7)
        e("v_cndmask_b32 %s, %s, %s, s[%d:%d]" % (v(t0), v(GR), v(GR + 1), sT6, sT7))
        e("s_mov_b32 s%d, 0x44444444" % sT6)
        e("s_mov_b32 s%d, 0x44444444" % sT7)
        e("v_cndmask_b32 %s, %s, %s, s[%d:%d]" % (v(t0), v(t0), v(GR + 2), sT6, sT7))
        e("s_mov_b32 s%d, 0x88888888" % sT6)
        e("s_mov_b32 s%d, 0x88888888" % sT7)
        e("v_cndmask_b32 %s, %s, %s, s[%d:%d]" % (v(t0), v(t0), v(GR + 3), sT6, sT7))

    def stats_finish(self, GR, SM, A_, B_, PK):
        e = self.e
        t0, t1, t2 = 11, 12, 13
        if GR is not None:
            self.stats_diag(GR, t0)
        e("s_mov_b32 s%d, 0x3b124925" % sT6)
        e("v_mul_f32 %s, s%d, %s" % (v(t1), sT6, v(SM)))
        e("v_mul_f32 %s, s%d, %s" % (v(t0), sT6, v(t0)))
        e("v_fma_f32 %s, -%s, %s, %s" % (v(t0), v(t1), v(t1), v(t0)))
        e("v_max_f32 %s, 0, %s" % (v(t0), v(t0)))
        e("v_cvt_pk_bf16_f32 %s, %s, %s" % (v(t0), v(t0), v(t1)))
        e("v_and_b32 %s, 0xffff0000, %s" % (v(t1), v(t0)))
        e("v_lshlrev_b32 %s, 16, %s" % (v(t0), v(t0)))
        e("v_add_f32 %s, 0x3727c5ac, %s" % (v(t0), v(t0)))
        e("v_cvt_pk_bf16_f32 %s, %s, %s" % (v(t0), v(t0), v(t0)))
        e("v_lshlrev_b32 %s, 16, %s" % (v(t0), v(t0)))
        e("v_sqrt_f32 %s, %s" % (v(t0), v(t0)))
        e("s_nop 0")
        e("v_cvt_pk_bf16_f32 %s, %s, %s" % (v(t0), v(t0), v(t0)))
        if PK is not None:
            e("v_lshrrev_b32 %s, 16, %s" % (v(t2), v(t1)))
            e("v_and_b32 %s, 0xffff0000, %s" % (v(t0), v(t0)))
            e("v_or_b32 %s, %s, %s" % (v(PK), v(t0), v(t2)))
        else:
            e("v_lshlrev_b32 %s, 16, %s" % (v(t0), v(t0)))
            e("v_rcp_f32 %s, %s" % (v(A_), v(t0)))
            e("s_nop 0")
            e("v_mul_f32 %s, -%s, %s" % (v(B_), v(t1), v(A_)))

    def decode_bc(self):
        e = self.e
        e("s_and_b32 s%d, s2, 7" % sT0)
        e("s_lshr_b32 s%d, s2, 3" % sT1)
        e("s_mul_i32 s%d, s%d, 37" % (sT2, sT1))
        e("s_lshr_b32 s%d, s%d, 8" % (sT2, sT2))
        e("s_mul_i32 s%d, s%d, 7" % (sT3, sT2))
        e("s_sub_u32 s%d, s%d, s%d" % (sT3, sT1, sT3))
        e("s_lshr_b32 s%d, s%d, 1" % (sT4, sT0))
        e("s_lshl_b32 s%d, s%d, 2" % (sT4, sT4))
        e("s_add_u32 s%d, s%d, s%d" % (sBI, sT4, sT2))
        e("s_and_b32 s%d, s%d, 1" % (sT4, sT0))
        e("s_mul_i32 s%d, s%d, 7" % (sT4, sT4))
        e("s_add_u32 s%d, s%d, s%d" % (sBJ, sT4, sT3))
        e("s_lshl_b32 s%d, s%d, 2" % (sT4, sT0))
        e("s_add_u32 s%d, s%d, s%d" % (sT4, sT4, sT2))
        e("s_lshr_b32 s%d, s%d, 1" % (sCI, sT4))
        e("s_and_b32 s%d, s%d, 1" % (sCS, sT4))
        e("s_mov_b32 s%d, s%d" % (sCJ, sT3))

    def main_path(self):
        e = self.e
        self.phase_a0()
        self.w_stage_setup()
        self.w_stage_read_setup(vWRD, vWRD + 1)
        self.pre_signal()
        vGO, vZERO = 23, 58
        loop, done = self.newlabel("go"), self.newlabel("god")
        e("s_mov_b32 s%d, %d" % (sSPIN, SPIN_LIMIT))
        self.label(loop)
        e("v_cmp_eq_u32 vcc, 0, %s" % v(vGO))
        e("s_nop 4")
        e("s_cbranch_vccz %s" % done)
        e("buffer_load_dword %s, %s, %s, 0 offen offset:%d sc1" % (v(vGO), v(vZERO), srd(SRD_DBG), self.go_off))
        e("s_waitcnt vmcnt(0)")
        e("s_sub_u32 s%d, s%d, 1" % (sSPIN, sSPIN))
        e("s_cmp_lg_u32 s%d, 0" % sSPIN)
        e("s_cbranch_scc1 %s" % loop)
        self.label(done)
        e("s_barrier")
        vA, vOne = 5, 6
        e("s_lshl_b32 s%d, s%d, 11" % (sT0, sG0))
        e("s_add_u32 s%d, s%d, %d" % (sT0, sT0, WS_CNT + 256 * C_S1))
        e("v_lshl_add_u32 %s, v1, 8, s%d" % (v(vA), sT0))
        e("v_mov_b32 %s, 1" % v(vOne))
        self.signal(vA, vOne, 8)
        self.stamp(3)
        if self.endif_stop("a0"):
            return False
        self.phase_a1()
        ONES, CA = 108, 64
        for i in range(4):
            e("v_mov_b32 %s, 0x3f803f80" % v(ONES + i))
        self.wait_vm("w1")
        self.stamp(28)
        e("s_nop 1")
        rd = self.w_stage_read_items(1, vWRD, vWRD + 1)
        for s_ in range(14):
            for ft in range(2):
                e("v_mfma_f32_32x32x16_bf16 %s, %s, %s, %s" % (v(CA + 16 * ft, 16), v(ONES, 4), a(8 * s_ + 4 * ft, 4), "0" if s_ == 0 else v(CA + 16 * ft, 16)))
                for _ in range(2):
                    self.lds(rd.pop(0), "wr")
        self.stamp(8)
        if self.endif_stop("a1"):
            return False
        return True

    def build(self):
        self.prologue()
        cont = self.main_path()
        if cont:
            from gen_bc import phase_b, phase_c
            phase_b(self)
            if not self.endif_stop("b"):
                phase_c(self)
                self.stamp(20)
                self.stamp_dump()
                self.wait_all()
                if self.spin_us:
                    self.e("L_diag:")
                    self.e("s_memrealtime s[96:97]")
                    self.e("s_waitcnt lgkmcnt(0)")
                    self.e("s_sub_u32 s96, s96, s100")
                    self.e("s_cmp_lt_u32 s96, %d" % (self.spin_us * 100))
                    self.e("s_cbranch_scc1 L_diag")
                self.e("s_endpgm")
        self.helper()
        if getattr(self, "redo_code", None):
            self.redo_code()
        for code in self.ool:
            code()
        self.label("L_exit")
        self.e("s_waitcnt vmcnt(0) lgkmcnt(0)")
        self.label("L_end")
        self.e("s_endpgm")
        self.label("L_codeend")
        body = self.text()
        hdr = HEADER
        hdr += "; @launch grid=(256,1,1) block=(256,1,1) lds=%d\n" % LDS_BYTES
        hdr += '.amdgcn_target "amdgcn-amd-amdhsa--gfx950"\n.text\n.globl %s\n.p2align 8\n.type %s,@function\n%s:\n' % (NAME, NAME, NAME)
        tail = """
.section .rodata,"a"
.p2align 6
.amdhsa_kernel %s
  .amdhsa_next_free_vgpr 512
  .amdhsa_next_free_sgpr 102
  .amdhsa_accum_offset 256
  .amdhsa_group_segment_fixed_size 0
  .amdhsa_kernarg_size 104
  .amdhsa_user_sgpr_count 2
  .amdhsa_user_sgpr_kernarg_segment_ptr 1
  .amdhsa_system_sgpr_workgroup_id_x 1
.end_amdhsa_kernel
""" % NAME
        return hdr + body + tail, body


HEADER = """; Fused preLN -> H3 (shift conv, k*v, long causal conv, gate) -> preLN -> GLU FFN, one persistent launch.
; Kernarg: q,k,v,shift_k,ssm_k,ssm_D,x(unused),w_gate,w_up,w_down,out,debug,ws (generated by gen/gen.py)
"""

if __name__ == "__main__":
    import argparse
    ap = argparse.ArgumentParser()
    ap.add_argument("--stop", default=None)
    ap.add_argument("--stamps", action="store_true")
    ap.add_argument("--dbgst", action="store_true")
    ap.add_argument("--spin", type=int, default=0)
    ap.add_argument("--exp", default="")
    ap.add_argument("--tmo", action="store_true")
    ap.add_argument("--hpf", type=int, default=0)
    ap.add_argument("--b0", action="store_true")
    ap.add_argument("--sleep", type=int, default=1)
    ap.add_argument("--wtouch", action="store_true")
    ap.add_argument("--wtouch2", action="store_true")
    ap.add_argument("--smem-poll", action="store_true")
    ap.add_argument("--fill", type=int, default=8)
    ap.add_argument("--npre", type=int, default=8)
    ap.add_argument("--touch", action="store_true")
    ap.add_argument("--no-tlbwarm", action="store_true")
    ap.add_argument("--no-prefetch", action="store_true")
    ap.add_argument("-o", default="out.s")
    args = ap.parse_args()
    g = Gen(stop=args.stop, stamps=args.stamps, tlbwarm=not args.no_tlbwarm, prefetch=not args.no_prefetch, dbgst=args.dbgst)
    g.spin_us = args.spin
    g.touch = args.touch
    g.hpf = args.hpf
    g.b0 = args.b0
    g.sleep = args.sleep
    g.wtouch = args.wtouch
    g.wtouch2 = args.wtouch2
    g.smem_poll = args.smem_poll
    g.fill_depth = args.fill
    g.npre = args.npre
    g.exp = set(args.exp.split(',')) if args.exp else set()
    txt, body = g.build()
    if args.tmo:
        out = []
        site = 0
        lines = txt.split("\n")
        for i, ln in enumerate(lines):
            out.append(ln)
            if ln.strip() == "s_cmp_lg_u32 s92, 0":
                lab = "L_tmo_%d" % site
                out += ["  s_cbranch_scc1 %s" % lab, "  v_mov_b32 v30, 1", "  v_mov_b32 v31, %d" % (128 + 4 * site), "  s_mov_b64 s[100:101], exec", "  s_mov_b64 exec, 1",
                        "  buffer_atomic_add v30, v31, s[44:47], 0 offen sc1", "  s_mov_b64 exec, s[100:101]", "  s_cmp_lg_u32 s92, 0", lab + ":"]
                print("site", site, "near", [l for l in lines[max(0, i - 14):i] if l.endswith(":")])
                site += 1
        txt = "\n".join(out)
        import re as _re
        out = []
        site = 0
        for ln in txt.split("\n"):
            out.append(ln)
            if _re.match(r"L_(mk|redo|fh)_\d+:", ln):
                print("entry site", site, ln)
                out += ["  v_mov_b32 v30, 1", "  v_mov_b32 v31, %d" % (4 * (2 + site)), "  s_mov_b64 s[100:101], exec", "  s_mov_b64 exec, 1",
                        "  buffer_atomic_add v30, v31, s[44:47], 0 offen sc1", "  s_mov_b64 exec, s[100:101]"]
                site += 1
        txt = "\n".join(out)
    open(args.o, "w").write(txt)
    check_hazards(body)
    print("wrote", args.o, len(txt), "bytes")
```

```python
from collections import deque
from gen import *
import gen as G_

vHTR0, vHTR2, vL16, vHST, vSTA, vT = 2, 3, 4, 5, 6, 7
vWDB = 8
vS, vC1 = 14, 15
vSTB = [13, 12, 123, 124]
FOLD = 16
CS = 20
vU, vW = 28, 29
ACC = [32, 64]
HF = 96
PK = 108
vWDO = 116
vCS0 = 120
L_RES = 151552
L_RESP = 28672
PART_STRIDE = 4352
sF = 52
sWD0, sWD1 = 53, 54
sHS = 55
NREG_UNITS = 10
sWDG, sWDL, sHBG, sHBL, sHFS, sHFL = 84, 85, 86, 98, 99, 50
GAMMA = 14
CK_STEP = 15
HST_STEP = [24, 24, 18, 0]
C_SIG2 = 5
C_BAR = 4
N2_SETUP = 4


def wdf(ks, ct):
    i = 4 * ks + ct
    if i < 8:
        return ("a", 224 + 4 * i)
    if i < 32:
        return ("v", 160 + 4 * (i - 8))
    if i < 40:
        return ("v", 128 + 4 * (i - 32))
    return ("a", 4 * (i - 40))


def rname(reg, n, off=0):
    k, b = reg
    return (a if k == "a" else v)(b + off, n)


class Q:
    def __init__(self, g):
        self.g = g
        self.o = deque()

    def op(self, line, cost=4, nb=0):
        self.o.append((cost, lambda: self.g.e(line), nb))

    def fn(self, fn, cost=4, nb=0):
        self.o.append((cost, fn, nb))

    def gap(self, budget, step):
        fresh = True
        while self.o and self.o[0][2] <= step and (self.o[0][0] <= budget or fresh):
            c, f, _ = self.o.popleft()
            f()
            budget -= c
            fresh = False

    def flush(self):
        while self.o:
            self.o.popleft()[1]()


def wd_dma(g, unit, n):
    e = g.e
    if n == 0:
        e("s_add_u32 m0, s%d, %d" % (sWDL, 4096 * (unit % 4)))
        e("s_mul_i32 s%d, s%d, 28" % (sWD0, sOFF + unit))
        e("s_add_u32 s%d, s%d, s%d" % (sWD0, sWD0, sWDG))
    g.vmem("buffer_load_dwordx4 %s, %s, s%d offen offset:%d lds" % (v(vWDO + n), srd(SRD_WD), sWD0, 1024 * n), "wd%d" % unit)


def wd_read(g, unit, i):
    ct, ee = i >> 1, i & 1
    if i == 0:
        g.wait_vm("wd%d" % unit)
    g.lds("ds_read_b64_tr_b16 %s, %s offset:%d" % (rname(wdf(unit, ct), 2, 2 * ee), v(vWDB + ct), 4096 * (unit % 4) + 1024 * ee), "wr%d" % unit)


def hb_dma(g, blk, n):
    e = g.e
    if n in (0, 4):
        e("s_add_u32 m0, s%d, %d" % (sHBL, L_HB + 28672 * (blk % 3) + (4096 if n == 4 else 0)))
        e("s_add_u32 s%d, s%d, %d" % (sT4, sHBG, 28672 * blk + (4096 if n == 4 else 0)))
    g.vmem("buffer_load_dwordx4 %s, %s, s%d offen offset:%d sc1 lds" % (v(vL16), srd(SRD_WS), sT4, 1024 * (n & 3)), "hb%d" % blk)


def res_dma(g, n, scratch=False):
    e = g.e
    t0, t1, vA = (56, 57, 126) if scratch else (sT0, sT1, 120)
    if n == 0:
        e("v_lshrrev_b32 %s, 1, v1" % v(vA))
        e("v_lshlrev_b32 %s, 6, %s" % (v(vA), v(vA)))
        e("v_and_b32 %s, 1, v1" % v(vW))
        e("v_lshl_add_u32 %s, %s, 4, %s" % (v(vA), v(vW), v(vA)))
        e("s_lshl_b32 s%d, s%d, 2" % (t0, sCI))
        e("s_add_u32 s%d, s%d, s%d" % (t0, t0, sWAVE))
        e("s_mul_i32 s%d, s%d, 28672" % (t0, t0))
        e("s_lshl_b32 s%d, s%d, 12" % (t1, sCJ))
        e("s_add_u32 s%d, s%d, s%d" % (t0, t0, t1))
        e("s_lshl_b32 s%d, s%d, 5" % (t1, sCS))
        e("s_add_u32 s%d, s%d, s%d" % (t0, t0, t1))
        e("s_add_u32 s%d, s%d, %d" % (t0, t0, WS_HB))
        e("s_lshl_b32 s%d, s%d, 11" % (t1, sWAVE))
        e("s_add_u32 m0, s%d, %d" % (t1, L_RES))
    else:
        e("s_add_u32 s%d, s%d, 2048" % (t0, t0))
        e("s_add_u32 m0, s%d, %d" % (t1, L_RES + 1024))
    e("s_nop 0")
    g.vmem("buffer_load_dwordx4 %s, %s, s%d offen sc1 lds" % (v(vA), srd(SRD_WS), t0), "res")


def flag_load(g, u):
    e = g.e
    e("s_lshl_b32 s%d, s%d, 2" % (sT2, sCI))
    e("s_add_u32 s%d, s%d, %d" % (sT2, sT2, C_S3 + u))
    e("s_lshl_b32 s%d, s%d, 8" % (sT2, sT2))
    e("s_add_u32 s%d, s%d, %d" % (sT2, sT2, WS_CNT))
    e("s_load_dword s%d, s[%d:%d], s%d glc" % (sF, SRD_WS, SRD_WS + 1, sT2))


def flag_check(g, u):
    e = g.e
    loop, ok = g.newlabel("fl"), g.newlabel("fo")
    e("s_waitcnt lgkmcnt(0)")
    e("s_cmp_ge_u32 s%d, 14" % sF)
    e("s_cbranch_scc1 %s" % ok)
    e("s_mov_b32 s%d, %d" % (sSPIN, SPIN_LIMIT))
    g.label(loop)
    e("s_sleep 1")
    e("s_load_dword s%d, s[%d:%d], s%d glc" % (sF, SRD_WS, SRD_WS + 1, sT2))
    e("s_waitcnt lgkmcnt(0)")
    e("s_cmp_ge_u32 s%d, 14" % sF)
    e("s_cbranch_scc1 %s" % ok)
    e("s_sub_u32 s%d, s%d, 1" % (sSPIN, sSPIN))
    e("s_cmp_lg_u32 s%d, 0" % sSPIN)
    e("s_cbranch_scc1 %s" % loop)
    g.label(ok)


vFL, vFA = 125, 126


def flagv_load(g, u):
    e = g.e
    e("s_lshl_b32 s%d, s%d, 2" % (sT2, sCI))
    e("s_add_u32 s%d, s%d, %d" % (sT2, sT2, C_S3 + u))
    e("s_lshl_b32 s%d, s%d, 8" % (sT2, sT2))
    e("s_add_u32 s%d, s%d, %d" % (sT2, sT2, WS_CNT))
    e("v_mov_b32 %s, s%d" % (v(vFA), sT2))
    g.vmem("buffer_load_dword %s, %s, %s, 0 offen sc1" % (v(vFL), v(vFA), srd(SRD_WS)), "flag")


def flagv_check(g, wave=None):
    e = g.e
    g.wait_vm("flag", dual=True)
    loop, ok = g.newlabel("fvl"), g.newlabel("fvo")
    if wave is not None:
        e("s_cmp_eq_u32 s%d, %d" % (sWAVE, wave))
        e("s_cbranch_scc0 %s" % ok)
    e("s_mov_b32 s%d, %d" % (sSPIN, SPIN_LIMIT))
    g.label(loop)
    e("v_cmp_gt_u32 vcc, 14, %s" % v(vFL))
    e("s_nop 4")
    e("s_cbranch_vccz %s" % ok)
    e("s_sleep 1")
    e("buffer_load_dword %s, %s, %s, 0 offen sc1" % (v(vFL), v(vFA), srd(SRD_WS)))
    e("s_waitcnt vmcnt(0)")
    e("s_sub_u32 s%d, s%d, 1" % (sSPIN, sSPIN))
    e("s_cmp_lg_u32 s%d, 0" % sSPIN)
    e("s_cbranch_scc1 %s" % loop)
    g.label(ok)


def s3_signal(g, u):
    e = g.e
    e("s_lshl_b32 s%d, s%d, 2" % (sT0, sBI))
    e("s_add_u32 s%d, s%d, %d" % (sT0, sT0, C_S3 + u))
    e("s_lshl_b32 s%d, s%d, 8" % (sT0, sT0))
    e("s_add_u32 s%d, s%d, %d" % (sT0, sT0, WS_CNT))
    e("v_mov_b32 %s, s%d" % (v(vU), sT0))
    e("v_mov_b32 %s, 1" % v(vW))
    g.signal(vU, vW, 1)
    g.vm.append("sig@0")


def epilogue_items(g, q, p, nb):
    e = g.e
    acc = ACC[p & 1]

    def stats():
        vST = vSTB[p]
        g.wait_vm("st%d" % p)
        loop, ok = g.newlabel("stl"), g.newlabel("sto")
        e("s_mov_b32 s%d, %d" % (sSPIN, SPIN_LIMIT))
        g.label(loop)
        e("v_cmp_eq_u32 vcc, 0, %s" % v(vST))
        e("s_nop 4")
        e("s_cbranch_vccz %s" % ok)
        e("buffer_load_dword %s, %s, %s, 0 offen offset:%d sc1" % (v(vST), v(vSTA), srd(SRD_WS), 128 * p))
        e("s_waitcnt vmcnt(0)")
        e("s_sub_u32 s%d, s%d, 1" % (sSPIN, sSPIN))
        e("s_cmp_lg_u32 s%d, 0" % sSPIN)
        e("s_cbranch_scc1 %s" % loop)
        g.label(ok)
    q.fn(stats, 24, nb)
    q.op("v_and_b32 %s, 0xffff0000, %s" % (v(vS), v(vSTB[p])), nb=nb)
    q.op("v_and_b32 %s, 0xffff, %s" % (v(FOLD + 1), v(vSTB[p])), nb=nb)
    q.op("v_rcp_f32 %s, %s" % (v(vC1), v(vS)), 8, nb)
    q.op("v_xor_b32 %s, 0x8000, %s" % (v(FOLD + 1), v(FOLD + 1)), nb=nb)
    q.op("v_cndmask_b32 %s, 0, %s, s[%d:%d]" % (v(FOLD + 1), v(FOLD + 1), sEX, sEX + 1), nb=nb)
    q.op("v_lshl_or_b32 %s, %s, 16, %s" % (v(FOLD), v(FOLD + 1), v(FOLD + 1)), nb=nb)
    q.op("v_mul_f32 %s, 0xbfb8aa3b, %s" % (v(vC1), v(vC1)), nb=nb)
    q.op("s_nop 0", nb=nb)

    def fold():
        for ft in range(2):
            e("v_mfma_f32_32x32x16_bf16 %s, %s, %s, %s" % (v(acc + 16 * ft, 16), v(CS + 4 * ft, 4), v(FOLD, 4), v(acc + 16 * ft, 16)))
    q.fn(fold, 0, nb)
    for _ in range(4):
        q.fn(lambda: None, 100, nb)


def epilogue_valu(g, q, p, nb, direct=False, nostore=False):
    acc = ACC[p & 1]

    def put(line, cost=4):
        if direct:
            g.e(line)
        else:
            q.op(line, cost, nb)
    for ft in range(2):
        b = acc + 16 * ft
        for x in range(8):
            put("v_mul_f32 %s, %s, %s" % (v(b + x), v(b + x), v(vC1)))
        for x in range(8):
            put("v_exp_f32 %s, %s" % (v(b + x), v(b + x)), 8)
        for x in range(8):
            put("v_fma_f32 %s, %s, %s, %s" % (v(b + x), v(b + x), v(vS), v(vS)))
        for x in range(8):
            put("v_rcp_f32 %s, %s" % (v(b + x), v(b + x)), 8)
        for x in range(8):
            put("v_mul_f32 %s, %s, %s" % (v(b + 8 + x), v(b + 8 + x), v(b + x)))
        for i in range(4):
            put("v_cvt_pk_bf16_f32 %s, %s, %s" % (v(PK + 4 * ft + i), v(b + 8 + 2 * i), v(b + 9 + 2 * i)))


    if nostore:
        return
    if direct:
        h_store(g, p)
    else:
        q.fn(lambda: h_store(g, p), 40, max(nb, HST_STEP[p]))


def h_store(g, p):
    g.e("s_add_u32 s%d, s%d, %d" % (sT6, sHFS, 114688 * p))
    for ft in range(2):
        g.vmem("buffer_store_dwordx4 %s, %s, %s, s%d offen offset:%d sc1" % (v(PK + 4 * ft, 4), v(vHST), srd(SRD_WS), sT6, 512 * ft), "hst%d" % p)


def wd_bases(g, dst):
    e = g.e
    t0, t1, t2 = vT, vU, vW
    e("v_lshrrev_b32 %s, 5, v1" % v(t0))
    e("v_bfe_u32 %s, v1, 4, 1" % v(t1))
    e("v_lshlrev_b32 %s, 4, %s" % (v(t0), v(t0)))
    e("v_lshl_add_u32 %s, %s, 2, %s" % (v(t0), v(t1), v(t0)))
    e("v_bfe_u32 %s, v1, 2, 2" % v(t2))
    e("v_add_u32 %s, %s, %s" % (v(t0), v(t0), v(t2)))
    e("v_lshlrev_b32 %s, 7, %s" % (v(t0), v(t0)))
    e("v_lshrrev_b32 %s, 1, %s" % (v(t2), v(t2)))
    e("v_lshl_add_u32 %s, %s, 1, %s" % (v(t1), v(t1), v(t2)))
    e("v_and_b32 %s, 3, v1" % v(t2))
    e("v_lshl_add_u32 %s, %s, 3, %s" % (v(t0), v(t2), v(t0)))
    e("s_lshl_b32 s%d, s%d, 14" % (sT0, sWAVE))
    e("s_add_u32 s%d, s%d, %d" % (sT0, sT0, L_WD))
    e("v_add_u32 %s, s%d, %s" % (v(t0), sT0, v(t0)))
    for ct in range(4):
        e("v_xor_b32 %s, %d, %s" % (v(t2), ct, v(t1)))
        e("v_lshl_add_u32 %s, %s, 5, %s" % (v(dst + ct), v(t2), v(t0)))


def hslot(u, s):
    return a((64 if (u & 1) == 0 else 120) + 4 * s, 4)


vHA = 2


def rot_table(g):
    e = g.e
    e("s_lshl_b32 s%d, s%d, 1" % (sT0, sCI))
    e("s_add_u32 s%d, s%d, s%d" % (sT0, sT0, sCS))
    e("s_and_b32 s%d, s%d, 3" % (sT0, sT0))
    e("s_lshl_b32 s%d, s%d, 1" % (sT0, sT0))
    e("s_add_u32 s%d, s%d, s%d" % (sT0, sT0, sCJ))
    e("s_lshl_b32 s%d, s%d, 1" % (sT0, sT0))
    e("s_cmp_ge_u32 s%d, 14" % sT0)
    e("s_cselect_b32 s%d, 14, 0" % sT1)
    e("s_sub_u32 s%d, s%d, s%d" % (sT0, sT0, sT1))
    for i in range(14):
        e("s_lshl_b32 s%d, s%d, 10" % (sOFF + i, sT0))
        if i != 13:
            e("s_add_u32 s%d, s%d, 1" % (sT0, sT0))
            e("s_cmp_eq_u32 s%d, 14" % sT0)
            e("s_cselect_b32 s%d, 0, s%d" % (sT0, sT0))


def hso(g, u):
    e = g.e
    e("s_add_u32 s%d, s%d, %d" % (sHS, sHFL, 114688 * u))
    e("v_add_u32 %s, s%d, %s" % (v(vHA), sHS, v(vL16)))


vHA0 = 127


def hso3(g, u):
    global vHA
    save = vHA
    vHA = vHA0
    hso(g, u)
    vHA = save


def hload(g, u, s, vaddr=None):
    g.vmem("buffer_load_dwordx4 %s, %s, %s, s%d offen sc1" % (hslot(u, s), v(vHA if vaddr is None else vaddr), srd(SRD_WS), sOFF + s), "hf%d_%d" % (u, s))


def colsum(g, s0, s1, ONES):
    for s in range(s0, s1):
        for ft in range(2):
            g.e("v_mfma_f32_32x32x16_bf16 %s, %s, %s, %s" % (v(ACC[0] + 16 * ft, 16), v(ONES, 4), a(8 * s + 4 * ft, 4), "0" if s == s0 else v(ACC[0] + 16 * ft, 16)))


vCK = 122
CKR = 128
vFHA, vFH = 126, 125


def phase_b(g):
    e = g.e
    g.c("==== B prologue ====")
    ONES = PK
    e("v_lshlrev_b32 %s, 4, v1" % v(vL16))
    e("s_lshl_b32 s72, s%d, 2" % sBI)
    e("s_mul_i32 s%d, s%d, 7168" % (sHBL, sWAVE))
    e("v_add_u32 %s, s%d, %s" % (v(vCK), sHBL, v(vL16)))
    e("s_mul_i32 s%d, s72, 28672" % sHBG)
    e("s_add_u32 s%d, s%d, s%d" % (sHBG, sHBG, sHBL))
    e("s_add_u32 s%d, s%d, %d" % (sHBG, sHBG, WS_HB))
    g.wait_lg("wr")
    e("s_barrier")
    g.stamp(9)
    for n in range(7):
        hb_dma(g, 0, n)
    keep = g.L
    g.L = []
    e("v_lshrrev_b32 %s, 5, v1" % v(vT))
    e("v_bfe_u32 %s, v1, 2, 2" % v(vU))
    e("v_lshl_add_u32 %s, %s, 3, %s" % (v(vT), v(vT), v(vU)))
    e("v_lshlrev_b32 %s, 6, %s" % (v(vHTR0), v(vT)))
    e("v_bfe_u32 %s, v1, 4, 1" % v(vT))
    e("v_lshl_add_u32 %s, %s, 5, %s" % (v(vHTR0), v(vT), v(vHTR0)))
    e("v_and_b32 %s, 3, v1" % v(vT))
    e("v_lshl_add_u32 %s, %s, 3, %s" % (v(vHTR0), v(vT), v(vHTR0)))
    e("v_bfe_u32 %s, v1, 4, 1" % v(vT))
    e("v_mul_u32_u24 %s, 57344, %s" % (v(vHST), v(vT)))
    e("v_lshrrev_b32 %s, 5, v1" % v(vT))
    e("v_lshl_add_u32 %s, %s, 8, %s" % (v(vHST), v(vT), v(vHST)))
    e("v_and_b32 %s, 15, v1" % v(vT))
    e("v_lshl_add_u32 %s, %s, 4, %s" % (v(vHST), v(vT), v(vHST)))
    e("v_and_b32 %s, 31, v1" % v(vT))
    e("s_lshl_b32 s%d, s%d, 9" % (sT0, sBI))
    e("s_add_u32 s%d, s%d, %d" % (sT0, sT0, WS_ST2))
    e("v_lshl_add_u32 %s, %s, 2, s%d" % (v(vSTA), v(vT), sT0))
    e("v_lshrrev_b32 %s, 3, v1" % v(vT))
    e("v_mul_u32_u24 %s, 896, %s" % (v(vWDO), v(vT)))
    e("v_lshrrev_b32 %s, 1, %s" % (v(vT), v(vT)))
    e("v_lshlrev_b32 %s, 1, %s" % (v(vT), v(vT)))
    e("v_and_b32 %s, 7, v1" % v(vU))
    e("v_xor_b32 %s, %s, %s" % (v(vU), v(vU), v(vT)))
    e("v_lshl_add_u32 %s, %s, 4, %s" % (v(vWDO), v(vU), v(vWDO)))
    for n in range(1, 4):
        e("v_add_u32 %s, %d, %s" % (v(vWDO + n), n * 6144, v(vWDO)))
    wd_bases(g, vWDB)
    rot_table(g)
    e("s_mul_i32 s%d, s%d, 401408" % (sWDG, sWAVE))
    e("s_lshl_b32 s%d, s%d, 7" % (sT0, sCJ))
    e("s_add_u32 s%d, s%d, s%d" % (sWDG, sWDG, sT0))
    e("s_lshl_b32 s%d, s%d, 14" % (sWDL, sWAVE))
    e("s_add_u32 s%d, s%d, %d" % (sWDL, sWDL, L_WD))
    e("s_mul_i32 s%d, s72, 114688" % sHFS)
    e("s_lshl_b32 s%d, s%d, 2" % (sT0, sBJ))
    e("s_add_u32 s%d, s%d, s%d" % (sT0, sT0, sWAVE))
    e("s_lshl_b32 s%d, s%d, 10" % (sT0, sT0))
    e("s_add_u32 s%d, s%d, s%d" % (sHFS, sHFS, sT0))
    e("s_add_u32 s%d, s%d, %d" % (sHFS, sHFS, WS_HF))
    e("s_lshl_b32 s%d, s%d, 3" % (sHFL, sCI))
    e("s_add_u32 s%d, s%d, s%d" % (sHFL, sHFL, sCS))
    e("s_mul_i32 s%d, s%d, 57344" % (sHFL, sHFL))
    e("s_mul_i32 s%d, s%d, 14336" % (sT0, sWAVE))
    e("s_add_u32 s%d, s%d, s%d" % (sHFL, sHFL, sT0))
    e("s_add_u32 s%d, s%d, %d" % (sHFL, sHFL, WS_HF))
    e("s_mov_b32 s%d, -1" % sEX)
    e("s_mov_b32 s%d, 0" % (sEX + 1))
    e("v_mov_b32 %s, 0" % v(FOLD + 2))
    e("v_mov_b32 %s, 0" % v(FOLD + 3))
    e("v_add_u32 %s, %d, %s" % (v(vHTR2), 57344, v(vHTR0)))
    e("s_and_b32 s%d, s2, 7" % sT0)
    e("s_lshl_b32 s%d, s%d, 8" % (sT0, sT0))
    e("s_add_u32 s%d, s%d, %d" % (sT0, sT0, WS_CNT + 256 * C_FH))
    e("v_mov_b32 %s, s%d" % (v(vFHA), sT0))
    setup = g.L
    g.L = keep
    per = -(-len(setup) // 28)
    for s_ in range(14, 28):
        for ft in range(2):
            e("v_mfma_f32_32x32x16_bf16 %s, %s, %s, %s" % (v(ACC[1] + 16 * ft, 16), v(ONES, 4), a(8 * s_ + 4 * ft, 4), v(ACC[1] + 16 * ft, 16)))
            g.L += setup[:per]
            setup = setup[per:]
    assert not setup
    g.stamp(29)
    g.wait_vm("hb0")
    g.stamp(30)
    for ln in g.mark_reads(7, vCK, L_HB, CKR, None):
        e(ln)
    e("s_waitcnt lgkmcnt(0)")
    g.lg = []
    for ln in g.mark_fold(7, CKR):
        e(ln)
    g.mark_branch(7, vCK, L_HB, CKR, lambda: g.hb_refetch(72, 0, 0, vL16))
    e("s_barrier")
    g.stamp(10)

    cs_items = []
    for ft in range(2):
        cs = ACC[1] + 16 * ft
        d = CS + 4 * ft
        cs_items += [
            "v_cvt_pk_bf16_f32 %s, %s, %s" % (v(vT), v(cs), v(cs)),
            "v_lshlrev_b32 %s, 16, %s" % (v(vT), v(vT)),
            "v_sub_f32 %s, %s, %s" % (v(vU), v(cs), v(vT)),
            "v_cvt_pk_bf16_f32 %s, %s, %s" % (v(d), v(cs), v(vU)),
            "v_and_b32 %s, 0xffff0000, %s" % (v(vT), v(d)),
            "v_sub_f32 %s, %s, %s" % (v(vU), v(vU), v(vT)),
            "v_cvt_pk_bf16_f32 %s, %s, 0" % (v(d + 1), v(vU)),
            "v_cndmask_b32 %s, 0, %s, s[%d:%d]" % (v(d), v(d), sEX, sEX + 1),
            "v_cndmask_b32 %s, 0, %s, s[%d:%d]" % (v(d + 1), v(d + 1), sEX, sEX + 1),
            "v_mov_b32 %s, 0" % v(d + 2),
            "v_mov_b32 %s, 0" % v(d + 3)]

    vm_ev = {}
    ld_ev = {}

    def put_vm(step, fn):
        while step in vm_ev:
            step += 1
        vm_ev[step] = fn
        return step
    for n in range(7):
        put_vm(0 + n, lambda n=n: hb_dma(g, 1, n))
    D = {0: 7, 1: 11, 2: 15, 3: 26, 4: 35, 5: 39, 6: 43, 7: 47, 8: 63, 9: 67, 10: 71, 11: 75, 12: 91, 13: 95}
    R = {0: 30, 1: 34, 2: 38, 3: 42, 4: 58, 5: 62, 6: 66, 7: 70, 8: 86, 9: 90}
    for n in range(7):
        put_vm(19 + n, lambda n=n: hb_dma(g, 2, n))
    for n in range(7):
        put_vm(54 + n, lambda n=n: hb_dma(g, 3, n))
    for unit in range(14):
        for n in range(4):
            def f(unit=unit, n=n):
                if n == 0 and unit >= 4:
                    g.wait_lg("wr%d" % (unit - 4))
                wd_dma(g, unit, n)
            st = put_vm(D[unit] + n, f)
            assert st == D[unit] + n, (unit, n, st)
    for unit in range(NREG_UNITS):
        for i in range(8):
            ld_ev.setdefault(R[unit] + (i >> 1), []).append(lambda unit=unit, i=i: wd_read(g, unit, i))
    for n in range(2):
        put_vm(84 + n, lambda n=n: res_dma(g, n))
    for p in range(1, 4):
        put_vm(30 + p, lambda p=p: g.vmem("buffer_load_dword %s, %s, %s, 0 offen offset:%d sc1" % (v(vSTB[p]), v(vSTA), srd(SRD_WS), 128 * p), "st%d" % p))
    for unit, r0 in ((10, 94), (11, 98)):
        for i in range(8):
            ld_ev.setdefault(r0 + (i >> 1), []).append(lambda unit=unit, i=i: wd_read(g, unit, i))
    def first_h():
        hso3(g, 0)
        hload(g, 0, 0, vaddr=vHA0)
    put_vm(99, first_h)
    nxt0 = list(range(1, 14))
    for st_ in (100, 101, 102, 103, 104, 105, 106, 107, 109, 110, 111):
        put_vm(st_, lambda s_=nxt0.pop(0): hload(g, 0, s_, vaddr=vHA0))
    tail_h = nxt0

    ck_ev = {}
    for u in range(3):
        def ck_reads(u=u, part=0):
            if part == 0:
                g.wait_vm("hb%d" % (u + 1))
            lines = g.mark_reads(7, vCK, L_HB + 28672 * ((u + 1) % 3), CKR, None)
            for ln in lines[2 * part:2 * part + 2]:
                g.lds(ln, "ck")
        for part in range(4):
            ck_ev.setdefault(28 * u + CK_STEP + part, []).append(lambda u=u, part=part, f=ck_reads: f(u, part))
        fold = g.mark_fold(7, CKR)
        for i in range(0, len(fold), 4):
            def ck_fold(i=i, fold=fold):
                if i == 0:
                    g.wait_lg("ck")
                for ln in fold[i:i + 4]:
                    e(ln)
            ck_ev.setdefault(28 * u + CK_STEP + 5 + i // 4, []).append(ck_fold)
        ck_ev.setdefault(28 * u + 25, []).insert(0, lambda u=u: g.mark_branch(7, vCK, L_HB + 28672 * ((u + 1) % 3), CKR, lambda u=u: g.hb_refetch(72, u + 1, (u + 1) % 3, vL16)))
    vRA, RCK = 125, 116

    def res_ck(part):
        if part == 0:
            e("s_lshl_b32 s%d, s%d, 11" % (sT0, sWAVE))
            e("s_add_u32 s%d, s%d, %d" % (sT0, sT0, L_RES))
            e("v_add_u32 %s, s%d, %s" % (v(vRA), sT0, v(vL16)))
            g.wait_vm("res")
            for ln in g.mark_reads(2, vRA, 0, RCK, None):
                g.lds(ln, "ck")
        else:
            g.wait_lg("ck")
            for ln in g.mark_fold(2, RCK):
                e(ln)
    ck_ev.setdefault(84 + 17, []).append(lambda: res_ck(0))
    ck_ev.setdefault(84 + 20, []).append(lambda: res_ck(1))

    def res_refetch():
        save = list(g.vm)
        res_dma(g, 0, scratch=True)
        res_dma(g, 1, scratch=True)
        g.vm = save
    ck_ev.setdefault(84 + 25, []).insert(0, lambda: g.mark_branch(2, vRA, 0, RCK, res_refetch))

    def fh_check():
        g.wait_vm("fh")
        lab, back = g.newlabel("fh"), g.newlabel("fhb")
        e("v_cmp_gt_u32 vcc, 32, %s" % v(vFH))
        e("s_nop 4")
        e("s_cbranch_vccnz %s" % lab)
        g.label(back)

        def code():
            loop = g.newlabel("fhl")
            g.label(lab)
            e("s_mov_b32 s%d, %d" % (sSPIN, SPIN_LIMIT))
            g.label(loop)
            e("buffer_load_dword %s, %s, %s, 0 offen sc1" % (v(vFH), v(vFHA), srd(SRD_WS)))
            e("s_waitcnt vmcnt(0)")
            e("v_cmp_gt_u32 vcc, 32, %s" % v(vFH))
            e("s_nop 4")
            e("s_cbranch_vccz %s" % back)
            e("s_sub_u32 s%d, s%d, 1" % (sSPIN, sSPIN))
            e("s_cmp_lg_u32 s%d, 0" % sSPIN)
            e("s_cbranch_scc1 %s" % loop)
            e("s_branch %s" % back)
        g.ool.append(code)
    ck_ev.setdefault(8, []).append(lambda: g.vmem("buffer_load_dword %s, %s, %s, 0 offen sc1" % (v(vFH), v(vFHA), srd(SRD_WS)), "fh"))
    ck_ev.setdefault(24, []).append(fh_check)

    def hread(gs):
        u, s = divmod(gs, 28)
        if u > 3:
            return
        buf = u % 3
        base = vHTR2 if buf == 2 else vHTR0
        off = (28672 * buf if buf < 2 else 0) + 1024 * s
        for ee in range(2):
            g.lds("ds_read_b64_tr_b16 %s, %s offset:%d" % (v(HF + 4 * (gs % 3) + 2 * ee, 2), v(base), L_HB + off + 256 * ee), "h%d" % gs)

    hread(0)
    hread(1)
    for u in range(4):
        g.c("---- B block %d" % u)
        q = Q(g)
        acc = ACC[u & 1]
        if u == 0:
            for ln in cs_items:
                q.op(ln, 4, 1)
        if u >= 1:
            epilogue_items(g, q, u - 1, 0)
            epilogue_valu(g, q, u - 1, 0)
        for s in range(28):
            gs = 28 * u + s
            g.wait_lg("h%d" % gs)
            srcc = lambda ft: "0" if s == 0 else v(acc + 16 * ft, 16)
            e("v_mfma_f32_32x32x16_bf16 %s, %s, %s, %s" % (v(acc, 16), a(8 * s, 4), v(HF + 4 * (gs % 3), 4), srcc(0)))
            hread(gs + 2)
            q.gap(16, s)
            e("v_mfma_f32_32x32x16_bf16 %s, %s, %s, %s" % (v(acc + 16, 16), a(8 * s + 4, 4), v(HF + 4 * (gs % 3), 4), srcc(1)))
            budget = 20
            for f in ld_ev.get(gs, []):
                f()
                budget -= 4
            if gs in vm_ev:
                vm_ev[gs]()
                budget -= 4
            q.gap(budget, s) if budget > 0 else None
            if s != 25:
                for f in ck_ev.get(gs, []):
                    f()
            if u == 0 and s == 18:
                g.vmem("buffer_load_dword %s, %s, %s, 0 offen sc1" % (v(vSTB[0]), v(vSTA), srd(SRD_WS)), "st0")
            if s == 25:
                for f in ck_ev.get(gs, []):
                    f()
                e("s_barrier")
        q.flush()
        g.stamp(11 + u)
    g.c("---- B tail / C chunk 0")
    g.redo = []
    q = Q(g)
    epilogue_items(g, q, 3, 0)
    while q.o and q.o[-1][0] == 100:
        q.o.pop()
    q.flush()
    hso(g, 1)
    side = [lambda unit=unit, i=i: wd_read(g, unit, i) for unit in (12, 13) for i in range(8)]
    pre = [lambda s_=s_: hload(g, 0, s_, vaddr=vHA0) for s_ in tail_h] + side[:8 - len(tail_h)]
    side = side[8 - len(tail_h):]
    q2 = Q(g)
    epilogue_valu(g, q2, 3, 0, nostore=True)
    epi = [it[1] for it in q2.o]
    h1 = list(range(14))
    stored = False
    gap = 0
    for s_ in range(14):
        g.wait_vm("hf0_%d" % s_)
        if s_ >= 12:
            g.wait_lg("wr%d" % s_)
        for ct in range(4):
            c_mfma(g, 0, s_, ct)
            if gap < 4:
                pre.pop(0)()
                pre.pop(0)()
            else:
                if side and gap % 3 == 1:
                    side.pop(0)()
                if h1 and gap % 3 == 2:
                    hload(g, 1, h1.pop(0))
                for _ in range(2):
                    if epi:
                        epi.pop(0)()
                if not epi and not stored:
                    assert not h1 and not side
                    h_store(g, 3)
                    g.stamp(16)
                    stored = True
            gap += 1
    assert stored
    e("s_nop 7")
    c_check(g, 0)
    hso(g, 2)
    keep = g.L
    g.L = []
    c_setup(g)
    lines = g.L
    g.L = keep
    h2 = list(range(14))
    for k, ln in enumerate(lines):
        g.L.append(ln)
        if len(h2) > 14 - N2_SETUP and k % 12 == 3:
            hload(g, 2, h2.pop(0))
    g.h2_rest = h2
    g.stamp(15)


CACC = [32, 48]


def c_mfma(g, u, s, ct):
    acc = CACC[u & 1]
    g.e("v_mfma_f32_16x16x32_bf16 %s, %s, %s, %s" % (v(acc + 4 * ct, 4), rname(wdf(s, ct), 4), hslot(u, s), "0" if s == 0 else v(acc + 4 * ct, 4)))


def c_check(g, u):
    lab, back = g.newlabel("redo"), g.newlabel("back")
    acc = CACC[u & 1]
    g.e("v_cmp_u_f32 vcc, %s, %s" % (v(acc), v(acc)))
    g.e("s_nop 4")
    g.e("s_cbranch_vccnz %s" % lab)
    g.label(back)
    g.redo.append((u, lab, back))


vPW, vPR, vRW, vRR, vOUT, vRES = 13, 14, 15, 16, 17, 18
SUM = 64
RS = 84
OUTP = 92


def c_setup(g):
    e = g.e
    e("v_lshrrev_b32 %s, 4, v1" % v(vT))
    e("v_and_b32 %s, 15, v1" % v(vU))
    e("v_mul_u32_u24 %s, 272, %s" % (v(vW), v(vT)))
    e("v_lshl_add_u32 %s, %s, 4, %s" % (v(vW), v(vU), v(vW)))
    e("s_lshl_b32 s%d, s%d, 14" % (sT0, sWAVE))
    e("s_add_u32 s%d, s%d, %d" % (sT0, sT0, L_WD))
    e("v_add_u32 %s, s%d, %s" % (v(vPW), sT0, v(vW)))
    e("s_mul_i32 s%d, s%d, 1088" % (sT0, sWAVE))
    e("s_add_u32 s%d, s%d, %d" % (sT0, sT0, L_RESP))
    e("v_add_u32 %s, s%d, %s" % (v(vRW), sT0, v(vW)))
    e("v_mul_u32_u24 %s, 272, %s" % (v(vW), v(vU)))
    e("s_lshl_b32 s%d, s%d, 2" % (sT0, sWAVE))
    e("v_add_u32 %s, s%d, %s" % (v(vPR), sT0, v(vT)))
    e("v_lshl_add_u32 %s, %s, 4, %s" % (v(vW), v(vPR), v(vW)))
    e("s_lshl_b32 s%d, s%d, 7" % (sT0, sCI))
    e("s_lshl_b32 s%d, s%d, 4" % (sT1, sCS))
    e("s_add_u32 s%d, s%d, s%d" % (sT0, sT0, sT1))
    e("v_add_u32 %s, s%d, %s" % (v(vOUT), sT0, v(vPR)))
    e("v_mul_u32_u24 %s, 896, %s" % (v(vOUT), v(vOUT)))
    e("v_lshl_add_u32 %s, %s, 3, %s" % (v(vOUT), v(vU), v(vOUT)))
    e("s_lshl_b32 s%d, s%d, 7" % (sT0, sCJ))
    e("v_add_u32 %s, s%d, %s" % (v(vOUT), sT0, v(vOUT)))
    e("v_add_u32 %s, %d, %s" % (v(vPR), L_WD, v(vW)))
    e("v_add_u32 %s, %d, %s" % (v(vRR), L_RESP, v(vW)))
    e("v_lshrrev_b32 %s, 4, v1" % v(vT))
    e("v_bfe_u32 %s, v1, 2, 2" % v(vU))
    e("v_lshl_add_u32 %s, %s, 2, %s" % (v(vT), v(vT), v(vU)))
    e("s_lshl_b32 s%d, s%d, 4" % (sT0, sWAVE))
    e("v_add_u32 %s, s%d, %s" % (v(vT), sT0, v(vT)))
    e("v_lshlrev_b32 %s, 5, %s" % (v(vT), v(vT)))
    e("v_and_b32 %s, 3, v1" % v(vU))
    e("v_lshl_add_u32 %s, %s, 3, %s" % (v(vT), v(vU), v(vT)))
    e("v_add_u32 %s, %d, %s" % (v(vRES), L_RES, v(vT)))
    for u in range(4):
        g.lds("ds_read_b64_tr_b16 %s, %s offset:%d" % (v(RS + 2 * u, 2), v(vRES), 2048 * u), "rs%d" % u)
    for u in range(4):
        g.wait_lg("rs%d" % u)
        t = SUM + 4 * u
        e("v_lshlrev_b32 %s, 16, %s" % (v(t), v(RS + 2 * u)))
        e("v_and_b32 %s, 0xffff0000, %s" % (v(t + 1), v(RS + 2 * u)))
        e("v_lshlrev_b32 %s, 16, %s" % (v(t + 2), v(RS + 2 * u + 1)))
        e("v_and_b32 %s, 0xffff0000, %s" % (v(t + 3), v(RS + 2 * u + 1)))
        g.lds("ds_write_b128 %s, %s offset:%d" % (v(vRW), v(t, 4), PART_STRIDE * u), "rw")


def phase_c(g):
    e = g.e
    g.c("==== C ====")

    def finish_items(q, u, nb):
        buf = u & 1
        for w in range(4):
            q.fn(lambda w=w: g.lds("ds_read_b128 %s, %s offset:%d" % (v(SUM + 4 * w, 4), v(vPR), 16384 * w + PART_STRIDE * buf), "p%d" % w), 4, nb)
        q.fn(lambda: g.lds("ds_read_b128 %s, %s offset:%d" % (v(SUM + 16, 4), v(vRR), PART_STRIDE * u), "p4"), 4, nb)
        q.fn(lambda: g.wait_lg("p1"), 4, nb + 1)
        for i in range(4):
            q.op("v_add_f32 %s, %s, %s" % (v(SUM + i), v(SUM + i), v(SUM + 4 + i)), 4, nb)
        q.fn(lambda: g.wait_lg("p3"), 4, nb)
        for i in range(4):
            q.op("v_add_f32 %s, %s, %s" % (v(SUM + 8 + i), v(SUM + 8 + i), v(SUM + 12 + i)), 4, nb)
        q.fn(lambda: g.wait_lg("p4"), 4, nb)
        for i in range(4):
            q.op("v_add_f32 %s, %s, %s" % (v(SUM + i), v(SUM + i), v(SUM + 16 + i)), 4, nb)
        for i in range(4):
            q.op("v_add_f32 %s, %s, %s" % (v(SUM + i), v(SUM + i), v(SUM + 8 + i)), 4, nb)
        q.op("v_cvt_pk_bf16_f32 %s, %s, %s" % (v(OUTP + 2 * u), v(SUM), v(SUM + 1)), 4, nb)
        q.op("v_cvt_pk_bf16_f32 %s, %s, %s" % (v(OUTP + 2 * u + 1), v(SUM + 2), v(SUM + 3)), 4, nb)

    def pwrite(u, ct):
        g.lds("ds_write_b128 %s, %s offset:%d" % (v(vPW), v(CACC[u & 1] + 4 * ct, 4), 1088 * ct + PART_STRIDE * (u & 1)), "pw")

    def mfmas(u, s):
        acc = CACC[u & 1]
        return [lambda ct=ct: e("v_mfma_f32_16x16x32_bf16 %s, %s, %s, %s" % (v(acc + 4 * ct, 4), rname(wdf(s, ct), 4), hslot(u, s), "0" if s == 0 else v(acc + 4 * ct, 4))) for ct in range(4)]

    def reduce_head(q, u):
        for ct in range(4):
            q.fn(lambda ct=ct: pwrite(u, ct), 8, 1)

    vRD = 126

    def check(u):
        c_check(g, u)

    order = [(s, ct) for s in range(14) for ct in (0, 1)] + [(s, ct) for s in range(14) for ct in (2, 3)]
    for u in range(1, 4):
        g.c("---- C chunk %d" % u)
        q = Q(g)
        nxt = {1: g.h2_rest, 2: list(range(14)), 3: []}[u]
        for ct in range(4):
            q.fn(lambda ct=ct, u=u: pwrite(u - 1, ct), 8, 1)
        if u == 2:
            hso(g, u + 1)
        nload = len(nxt)
        slots = [i for i in range(2, 56) if not (28 <= i < 34)]
        at = set(slots[(j * len(slots)) // nload] for j in range(nload)) if nload else set()
        for i, (s, ct) in enumerate(order):
            ps = i // 4
            if i < 28 and ct == 0:
                g.wait_vm("hf%d_%d" % (u, s))
            if i == 4 * C_BAR:
                q.flush()
                g.wait_lg("pw")
                e("s_barrier")
                finish_items(q, u - 1, 0)
            c_mfma(g, u, s, ct)
            if i == 31:
                lab, back = g.newlabel("redo"), g.newlabel("back")
                e("v_cmp_u_f32 vcc, %s, %s" % (v(CACC[u & 1]), v(CACC[u & 1])))
            if i == 33:
                e("s_nop 2")
                e("s_cbranch_vccnz %s" % lab)
                g.label(back)
                g.redo.append((u, lab, back))
            if 28 <= i < 34:
                continue
            if i in at:
                hload(g, u + 1, nxt.pop(0))
            else:
                q.gap(8, ps)
        q.flush()
        assert not nxt
        g.stamp(17 + u if u < 3 else 21)
    e("s_nop 7")
    for ct in range(4):
        pwrite(3, ct)
    g.wait_lg0()
    e("s_barrier")

    def redo_code():
        for u, lab, back in g.redo:
            g.label(lab)
            loop, done = g.newlabel("rl"), g.newlabel("rd")
            e("s_add_u32 s%d, s%d, %d" % (sHS, sHFL, 114688 * u))
            e("v_add_u32 %s, s%d, %s" % (v(vRD), sHS, v(vL16)))
            e("s_mov_b32 s%d, %d" % (sSPIN, SPIN_LIMIT))
            g.label(loop)
            for s in range(14):
                e("buffer_load_dwordx4 %s, %s, %s, s%d offen sc1" % (hslot(u, s), v(vRD), srd(SRD_WS), sOFF + s))
            e("s_waitcnt vmcnt(0)")
            probe = (0,) if u == 0 else (0, 1)
            for s in range(14):
                for ct in probe:
                    c_mfma(g, u, s, ct)
            e("s_nop 7")
            e("s_nop 3")
            e("v_cmp_u_f32 vcc, %s, %s" % (v(CACC[u & 1]), v(CACC[u & 1])))
            e("s_nop 4")
            e("s_cbranch_vccz %s" % done)
            e("s_sub_u32 s%d, s%d, 1" % (sSPIN, sSPIN))
            e("s_cmp_lg_u32 s%d, 0" % sSPIN)
            e("s_cbranch_scc1 %s" % loop)
            g.label(done)
            if u == 0:
                for s in range(14):
                    for ct in range(1, 4):
                        c_mfma(g, u, s, ct)
                e("s_nop 7")
                e("s_nop 3")
            else:
                for s in range(3):
                    for ct in (2, 3):
                        c_mfma(g, u, s, ct)
            e("s_branch %s" % back)
    g.redo_code = redo_code
    for u in range(3):
        e("s_mov_b32 s%d, %d" % (sT4, 32 * 896 * u))
        g.vmem("buffer_store_dwordx2 %s, %s, %s, s%d offen" % (v(OUTP + 2 * u, 2), v(vOUT), srd(SRD_OUT), sT4), "out")
    q = Q(g)
    finish_items(q, 3, 0)
    q.flush()
    e("s_mov_b32 s%d, %d" % (sT4, 32 * 896 * 3))
    g.vmem("buffer_store_dwordx2 %s, %s, %s, s%d offen" % (v(OUTP + 6, 2), v(vOUT), srd(SRD_OUT), sT4), "out")
```
